```python
import torch

def _softmax(x, axis=-1):
    return torch.softmax(x, dim=axis)

def _gelu(x):
    return torch.nn.functional.gelu(x, approximate='tanh')

def _silu(x):
    return torch.nn.functional.silu(x)

def _sigmoid(x):
    return torch.sigmoid(x)

def _layernorm(x, axis=-1, eps=1e-05):
    m = x.mean(dim=axis, keepdim=True)
    v = x.var(dim=axis, keepdim=True, unbiased=False)
    return (x - m) / torch.sqrt(v + eps)

def _scatter_add(tgt, idx, src, axis=0):
    return tgt.clone().index_add_(axis, idx, src)

def _segment_sum(src, seg, n):
    out = torch.zeros((n,) + src.shape[1:], dtype=src.dtype)
    return out.index_add_(0, seg, src)

def _pad(x, pw):
    flat = tuple((v for pair in reversed(pw) for v in pair))
    return torch.nn.functional.pad(x, flat)
kernel_name = 'recurrent_scan__ssm_conv_h3__mixer_gmlp__prompt'

def setup_inputs():

    _w = lambda a: (lambda t: t.to(torch.bfloat16) if t.is_floating_point() else t)(torch.as_tensor(a))

    def _A_setup():
        B, S, D = (1, 2048, 640)
        ks = 4
        return {'q': _w((lambda *s: torch.randn(*s, dtype=torch.bfloat16) * 0.05)(B, S, D)), 'k': _w((lambda *s: torch.randn(*s, dtype=torch.bfloat16) * 0.2)(B, S, D)), 'v': _w((lambda *s: torch.randn(*s, dtype=torch.bfloat16) * 0.2)(B, S, D)), 'shift_k': _w((lambda *s: torch.randn(*s, dtype=torch.bfloat16) * 0.2)(D, ks) * 0.5), 'ssm_k': _w((lambda *s: torch.randn(*s, dtype=torch.bfloat16) * 0.2)(D, S) * (1.0 / S ** 0.5)), 'ssm_D': _w((lambda *s: torch.randn(*s, dtype=torch.bfloat16) * 0.2)(D))}
    _A_in = _A_setup()

    def _B_setup():
        B, S, D, F = (1, 2048, 640, 1536)
        Fh = F // 2
        return {'x': _w((lambda *s: torch.randn(*s, dtype=torch.bfloat16) * 0.05)(B, S, D)), 'w_in': _w((lambda *s: torch.randn(*s, dtype=torch.bfloat16) * 0.8)(D, 2 * Fh)), 'w_sp': _w(0.01 * (lambda *s: torch.randn(*s, dtype=torch.bfloat16) * 0.8)(S, S)), 'b_sp': _w(1.0 + 0.01 * (lambda *s: torch.randn(*s, dtype=torch.bfloat16) * 0.1)(S)), 'w_out': _w((lambda *s: torch.randn(*s, dtype=torch.bfloat16) * 0.1)(Fh, D))}
    _B_in = _B_setup()
    return {'A_q': _A_in['q'], 'A_k': _A_in['k'], 'A_v': _A_in['v'], 'A_shift_k': _A_in['shift_k'], 'A_ssm_k': _A_in['ssm_k'], 'A_ssm_D': _A_in['ssm_D'], 'B_x': _B_in['x'], 'B_w_in': _B_in['w_in'], 'B_w_sp': _B_in['w_sp'], 'B_b_sp': _B_in['b_sp'], 'B_w_out': _B_in['w_out']}

def reference(A_q, A_k, A_v, A_shift_k, A_ssm_k, A_ssm_D, B_x, B_w_in, B_w_sp, B_b_sp, B_w_out):

    def _A_ref(q, k, v, shift_k, ssm_k, ssm_D):
        B, S, D = q.shape
        ks = shift_k.shape[-1]
        k_pad = _pad(k, ((0, 0), (ks - 1, 0), (0, 0)))
        k_shift = torch.zeros_like(k)
        for t in range(ks):
            k_shift = k_shift + k_pad[:, t:t + S, :] * shift_k[:, ks - 1 - t][None, None, :]
        kv = k_shift * v
        L = 2 * S
        kv_pad = _pad(kv, ((0, 0), (0, S), (0, 0)))
        kf_pad = _pad(ssm_k, ((0, 0), (0, S)))
        kv_f = (lambda x, axes=(-2, -1): torch.fft.rfft2(x.float(), dim=axes))(kv_pad[:, None, :, :], axes=(1, 2))
        kf_f = (lambda x, axes=(-2, -1): torch.fft.rfft2(x.float(), dim=axes))(kf_pad[:, None, :], axes=(1, 2))
        kf_f = (lambda x, *d: x.permute(*d))(kf_f, 1, 2, 0)
        y_f = kv_f * kf_f[None, :, :, :]
        y = (lambda x, s, axes=(-2, -1): torch.fft.irfft2(x, s=s, dim=axes).to(torch.bfloat16))(y_f, (1, L), axes=(1, 2))[:, 0, :S, :]
        y = y + kv * ssm_D[None, None, :]
        return q * y

    def _B_ref(x, w_in, w_sp, b_sp, w_out):
        B, S, D = x.shape
        F = w_in.shape[-1]
        Fh = F // 2
        z = _gelu(torch.einsum('bsd,df->bsf', x, w_in))
        z1 = z[..., :Fh].clone()
        z2 = _layernorm(z[..., Fh:], axis=-1)
        g = torch.einsum('ts,bsf->btf', w_sp, z2) + b_sp[None, :, None]
        return torch.einsum('bsf,fd->bsd', z1 * g, w_out)
    x = A_q
    xn = _layernorm(x, axis=-1)
    s = _A_ref(xn, A_k, A_v, A_shift_k, A_ssm_k, A_ssm_D)
    g = _silu(_B_ref(xn, B_w_in, B_w_sp, B_b_sp, B_w_out))
    return x + s * g
```

```python
import re

def vr(a, n=1):
    return f"v{a}" if n == 1 else f"v[{a}:{a+n-1}]"
def sr(a, n=1):
    return f"s{a}" if n == 1 else f"s[{a}:{a+n-1}]"
def ar(a, n=1):
    return f"a{a}" if n == 1 else f"a[{a}:{a+n-1}]"

_REG = re.compile(r"^(-|abs\()?([vsa])(\d+)\)?$")
_RNG = re.compile(r"^(-)?([vsa])\[(\d+):(\d+)\]$")

def parse_reg(tok):
    tok = tok.strip()
    m = _REG.match(tok)
    if m: return [(m.group(2), int(m.group(3)))]
    m = _RNG.match(tok)
    if m: return [(m.group(2), i) for i in range(int(m.group(3)), int(m.group(4)) + 1)]
    if tok == "vcc": return [("s", "vcc")]
    if tok == "exec": return [("s", "exec")]
    if tok == "m0": return [("s", "m0")]
    if tok in ("vcc_lo", "vcc_hi"): return [("s", "vcc")]
    return []

TRANS = ("v_exp_f32", "v_log_f32", "v_rcp_f32", "v_rsq_f32", "v_sqrt_f32", "v_sin_f32", "v_cos_f32")

class Ins:
    __slots__ = ("text", "op", "kind", "rd", "wr", "dpp", "passes", "cregs", "storedata", "nop", "lds_dma", "sgpr_const")
    def __init__(self, text):
        self.text = text
        body = text.split(";")[0].strip()
        parts = body.split(None, 1)
        self.op = parts[0]
        rest = parts[1] if len(parts) > 1 else ""
        ops = []; depth = 0; cur = ""
        for ch in rest:
            if ch == "[": depth += 1
            if ch == "]": depth -= 1
            if ch == "," and depth == 0: ops.append(cur.strip()); cur = ""
            else: cur += ch
        if cur.strip(): ops.append(cur.strip())
        mods = ""
        clean = []
        for o in ops:
            t = o.split()
            clean.append(t[0] if t else "")
            if len(t) > 1: mods += " " + " ".join(t[1:])
        ops = clean
        self.rd = []; self.wr = []; self.dpp = False; self.passes = 0; self.cregs = []; self.storedata = []
        self.nop = 1; self.lds_dma = False
        op = self.op
        R = lambda i: parse_reg(ops[i]) if i < len(ops) else []
        if op == "s_nop":
            self.kind = "nop"; self.nop = int(ops[0], 0) + 1
        elif op.startswith("v_mfma"):
            self.kind = "mfma"
            self.wr = R(0); self.rd = R(1) + R(2) + R(3); self.cregs = R(3)
            self.passes = 8 if "32x32x16" in op else 4 if "16x16x32" in op else None
            assert self.passes
        elif op.startswith("v_cmp"):
            self.kind = "valu"; self.wr = R(0); self.rd = R(1) + R(2)
        elif op.startswith("v_readfirstlane") or op.startswith("v_readlane"):
            self.kind = "valu"; self.wr = R(0); self.rd = R(1) + R(2)
        elif op.startswith("v_permlane"):
            self.kind = "valu"; self.wr = R(0) + R(1); self.rd = R(0) + R(1)
        elif op.startswith("v_"):
            self.kind = "valu"
            self.wr = R(0)
            k = 1
            if op.startswith(("v_add_co", "v_sub_co", "v_addc_co", "v_subb_co")):
                self.wr += R(1); k = 2
            for i in range(k, len(ops)): self.rd += R(i)
            if op.startswith(("v_fmac", "v_dot2c", "v_pk_fmac")): self.rd += R(0)
            if "cndmask" in op and len(ops) == 3: self.rd += [("s", "vcc")]
            if "_dpp" in op or "quad_perm" in mods or "row_" in mods or "wave_" in mods:
                self.dpp = True
                self.rd += R(0)
        elif op.startswith(("buffer_load", "global_load")):
            self.kind = "vmem"
            if " lds" in (" " + body + " "):
                self.lds_dma = True
                for i in range(len(ops)): self.rd += R(i)
                self.rd += [("s", "m0")]
            else:
                self.wr = R(0)
                for i in range(1, len(ops)): self.rd += R(i)
        elif op.startswith(("buffer_store", "buffer_atomic", "global_store", "global_atomic")):
            self.kind = "vmem"
            for i in range(len(ops)): self.rd += R(i)
            if op.startswith("buffer_"):
                d = R(0)
            else:
                d = R(1)
            if len(d) >= 3: self.storedata = d
            if "atomic" in op and "sc0" in mods: self.wr = R(0)
        elif op.startswith("ds_"):
            self.kind = "ds"
            if op.startswith(("ds_read", "ds_bpermute", "ds_permute", "ds_swizzle")):
                self.wr = R(0)
                for i in range(1, len(ops)): self.rd += R(i)
            else:
                for i in range(len(ops)): self.rd += R(i)
        elif op.startswith("s_"):
            self.kind = "salu"
            if op.startswith(("s_cmp", "s_cbranch", "s_branch", "s_waitcnt", "s_barrier", "s_endpgm", "s_sleep", "s_setprio", "s_bitcmp")):
                for i in range(len(ops)): self.rd += R(i)
            else:
                self.wr = R(0)
                for i in range(1, len(ops)): self.rd += R(i)
                if "saveexec" in op: self.wr += [("s", "exec")]
        else:
            raise ValueError("unknown op " + text)

def required_gap(p, c):
    need = 0
    pw = set(p.wr)
    if p.kind == "valu":
        vw = {r for r in pw if r[0] in "va"}
        sw = {r for r in pw if r[0] == "s"}
        if c.kind == "mfma" and vw & set(c.rd): need = max(need, 2)
        if c.kind == "valu":
            if c.dpp and vw & set(c.rd): need = max(need, 2)
            if c.op.startswith("v_permlane") and vw & set(c.rd): need = max(need, 2)
            if c.op.startswith(("v_readfirstlane", "v_readlane")) and vw & set(c.rd): need = max(need, 1)
            if p.op in TRANS and vw & set(c.rd) : need = max(need, 1)
            if sw & set(c.rd):
                need = max(need, 4 if c.op.startswith(("v_readlane", "v_writelane")) else 2)
            if ("s", "exec") in sw: need = max(need, 5 if c.dpp else 4)
        if c.kind == "vmem" and sw & set(c.rd): need = max(need, 5)
        if c.kind == "mfma" and ("s", "exec") in sw: need = max(need, 4)
        if c.kind == "salu" and sw & set(c.rd): need = max(need, 1)
    if p.kind == "mfma":
        d = set(p.wr)
        big = {4: 8, 8: 12}[p.passes]
        if c.kind == "mfma":
            ab = set(c.rd) - set(c.cregs) if False else None
            cab = [r for r in c.rd if r not in c.cregs]
            if d & set(cab): need = max(need, big)
            cc = set(c.cregs)
            if d & cc:
                if list(c.cregs) == list(p.wr) and c.passes == p.passes: pass
                else: need = max(need, {4: 6, 8: 10}[p.passes])
            if d & set(c.wr) and list(c.wr) != list(p.wr): need = max(need, big)
        elif c.kind in ("valu", "vmem", "ds"):
            if d & set(c.rd) or d & set(c.wr): need = max(need, big)
        if c.kind == "valu" and set(p.cregs) & set(c.wr): need = max(need, {4: 3, 8: 7}[p.passes])
    if p.kind == "vmem" and p.storedata:
        if set(p.storedata) & set(c.wr): need = max(need, 2)
    if p.kind == "salu" and ("s", "m0") in pw and (c.lds_dma): need = max(need, 1)
    return need

class Asm:
    def __init__(self):
        self.items = []
        self.vm = 0
        self.lg = 0
        self.uid = 0
    def __call__(self, text):
        for line in text.strip().split("\n"):
            line = line.strip()
            if not line: continue
            if line.startswith(";"): self.items.append(("c", line)); continue
            if line.endswith(":"): self.items.append(("l", line[:-1])); continue
            self.items.append(("i", line))
            op = line.split()[0]
            if op.startswith(("buffer_", "global_")) and not op.startswith(("buffer_inv", "buffer_wbl2")): self.vm += 1
            if op.startswith("ds_"): self.lg += 1
        return self
    def vmem(self, text):
        self(text); return self.vm - 1
    def ds(self, text):
        self(text); return self.lg - 1
    def wait_vm(self, idx):
        n = self.vm - idx - 1
        assert n >= 0
        self(f"s_waitcnt vmcnt({min(n, 63)})")
    def wait_lg(self, idx):
        n = self.lg - idx - 1
        assert n >= 0
        self(f"s_waitcnt lgkmcnt({min(n, 15)})")
    def label(self, name): self.items.append(("l", name))
    def newlabel(self, base="L"):
        self.uid += 1; return f"{base}_{self.uid}"
    def comment(self, t): self.items.append(("c", "; " + t))
    def raw(self, t): self.items.append(("r", t))
    def finish(self, window=24):
        out = []; hist = []
        for kind, t in self.items:
            if kind == "c": out.append("    " + t); continue
            if kind == "r": out.append(t); hist = []; continue
            if kind == "l":
                out.append(t + ":")
                continue
            ins = Ins(t)
            need_extra = 0
            dist = 0
            for p in reversed(hist[-window:]):
                g = required_gap(p, ins)
                if g > dist: need_extra = max(need_extra, g - dist)
                dist += p.nop
                if dist > 20: break
            while need_extra > 0:
                k = min(need_extra, 16)
                nop = Ins(f"s_nop {k-1}")
                out.append(f"    s_nop {k-1}"); hist.append(nop); need_extra -= k
            out.append("    " + t); hist.append(ins)
        return "\n".join(out) + "\n"

class Stamps:
    def __init__(self, a, base=70, enabled=False):
        self.a = a; self.base = base; self.n = 0; self.enabled = enabled; self.names = []
    def __call__(self, name):
        if not self.enabled: return
        a = self.a
        a(f"s_memtime s[68:69]")
        a("s_waitcnt lgkmcnt(0)")
        a(f"s_mov_b32 s{self.base + self.n}, s68")
        self.names.append(name); self.n += 1
        assert self.base + self.n <= 101
    def dump(self, srd, sWave, vt0, vt1, off):
        if not self.enabled: return
        a = self.a
        a(f"s_lshl_b32 s68, s2, 4")
        a(f"s_add_u32 s68, s68, s{sWave}")
        a(f"s_lshl_b32 s68, s68, 7")
        a(f"s_add_u32 s68, s68, {off}")
        a(f"v_mov_b32 v{vt0}, 0")
        a(f"s_mov_b64 exec, 1")
        for i in range(self.n):
            a(f"v_mov_b32 v{vt1}, s{self.base + i}")
            a(f"buffer_store_dword v{vt1}, v{vt0}, s[{srd}:{srd+3}], s68 offen offset:{4*i}")
            a("s_nop 1")
        a(f"s_mov_b64 exec, -1")

class Alloc:
    def __init__(self, start=0, limit=256, name="v"):
        self.next = start; self.limit = limit; self.name = name; self.hi = start
    def __call__(self, n=1, align=None):
        if align is None: align = 2 if n >= 2 else 1
        if self.name == "s" and n >= 4 and align < 4: align = 4
        a = (self.next + align - 1) // align * align
        self.next = a + n
        assert self.next <= self.limit, f"out of {self.name} regs: {self.next} > {self.limit}"
        self.hi = max(self.hi, self.next)
        return a
    def mark(self): return self.next
    def reset(self, m): self.next = m

def kernel_desc(name, vgpr, sgpr=102, accum=None):
    if accum is None: accum = (vgpr + 3) // 4 * 4
    return f""".p2align 6
.amdhsa_kernel {name}
  .amdhsa_next_free_vgpr {vgpr}
  .amdhsa_next_free_sgpr {sgpr}
  .amdhsa_accum_offset {accum}
  .amdhsa_group_segment_fixed_size 0
  .amdhsa_kernarg_size 112
  .amdhsa_user_sgpr_count 2
  .amdhsa_user_sgpr_kernarg_segment_ptr 1
  .amdhsa_system_sgpr_workgroup_id_x 1
.end_amdhsa_kernel
"""
```

```python
from dsl import *
from layout import *

XR = 0; WR = 81920; SLOT = 24576; EX = 16384; EXS = 40960
TB = 0
ZT = 0
C1 = 2.302208198144325
C2 = C1 * 0.044715

import struct
def f32(x): return struct.unpack("<I", struct.pack("<f", x))[0]

def reduce_g4(a, x, t):
    a(f"v_mov_b32 v{t}, v{x}")
    a(f"v_permlane16_swap_b32 v{x}, v{t}")
    a(f"v_add_f32 v{x}, v{x}, v{t}")
    a(f"v_mov_b32 v{t}, v{x}")
    a(f"v_permlane32_swap_b32 v{x}, v{t}")
    a(f"v_add_f32 v{x}, v{x}, v{t}")

def rnd_bf16(a, x, t=None):
    a(f"v_cvt_pk_bf16_f32 v{x}, v{x}, v{x}")
    a(f"v_and_b32 v{x}, 0xffff0000, v{x}")

def ln_finish(a, mean, var, sEps):
    a(f"v_max_f32 v{var}, 0, v{var}")
    rnd_bf16(a, var)
    a(f"v_add_f32 v{var}, s{sEps}, v{var}")
    rnd_bf16(a, var)
    a(f"v_sqrt_f32 v{var}, v{var}")
    rnd_bf16(a, var)
    a(f"v_rcp_f32 v{var}, v{var}")
    rnd_bf16(a, mean)

def gelu_pairs(a, vals, tmp, sC1, sC2):
    for i, u in enumerate(vals):
        t = tmp[i]
        a(f"v_pk_mul_f32 v[{t}:{t+1}], v[{u}:{u+1}], v[{u}:{u+1}]")
    for i, u in enumerate(vals):
        t = tmp[i]
        a(f"v_pk_fma_f32 v[{t}:{t+1}], v[{t}:{t+1}], s[{sC2}:{sC2+1}], s[{sC1}:{sC1+1}]") if False else None
    return

def gen_k1(name="k1_kernel", prof=False, diag=0):
    a = Asm()
    ST = Stamps(a, enabled=prof)
    WSZ = WS_SIZE_DBG if prof else WS_END
    V = Alloc(1, 256, "v")
    sX, sWIN, sK, sV, sSHK, sWS, sDBG = 4, 8, 12, 16, 20, 24, 28
    sRB, sJ, sW, sFH, sSH, sKH, sST0, sST = 32, 33, 34, 35, 36, 37, 38, 39
    sT0, sT1, sT2, sT3 = 40, 41, 42, 43
    sXOFF, sWOFF2, sWOFF1 = 44, 45, 46
    sEPS, sONES = 47, 48
    sNC1, sNC2 = 50, 52
    sEXEC = 54
    sM0X, sM0W = 56, 57
    sZ1B = 58
    a.raw(f".globl {name}\n.p2align 8\n.type {name},@function\n{name}:")
    a(f"s_cmp_ge_u32 s2, 256")
    a(f"s_cbranch_scc1 {name}_end")
    a(f"s_load_dwordx2 s[{sX}:{sX+1}], s[0:1], {KA['q']}")
    a(f"s_load_dwordx2 s[{sWIN}:{sWIN+1}], s[0:1], {KA['win']}")
    a(f"s_load_dwordx2 s[{sK}:{sK+1}], s[0:1], {KA['k']}")
    a(f"s_load_dwordx2 s[{sV}:{sV+1}], s[0:1], {KA['v']}")
    a(f"s_load_dwordx2 s[{sSHK}:{sSHK+1}], s[0:1], {KA['shk']}")
    a(f"s_load_dwordx2 s[{sWS}:{sWS+1}], s[0:1], {KA['ws']}")
    a(f"s_load_dwordx2 s[{sDBG}:{sDBG+1}], s[0:1], {KA['dbg']}")
    for srd, size in ((sX, SZ_X), (sWIN, SZ_WIN), (sK, SZ_X), (sV, SZ_X), (sSHK, 5120), (sWS, WSZ), (sDBG, 256)):
        a(f"s_mov_b32 s{srd+2}, {size}")
        a(f"s_mov_b32 s{srd+3}, {SRD3:#x}")
    ST("start")
    vL = V(); vQ = V(); vP = V()
    a(f"v_lshrrev_b32 v{vQ}, 6, v0")
    a(f"v_and_b32 v{vL}, 63, v0")
    a(f"v_readfirstlane_b32 s{sW}, v{vQ}")
    a(f"v_lshrrev_b32 v{vQ}, 4, v{vL}")
    a(f"v_and_b32 v{vP}, 15, v{vL}")
    a(f"s_and_b32 s{sT0}, s2, 7")
    a(f"s_lshr_b32 s{sT1}, s2, 3")
    a(f"s_lshr_b32 s{sRB}, s{sT1}, 3")
    a(f"s_lshl_b32 s{sT0}, s{sT0}, 2")
    a(f"s_add_u32 s{sRB}, s{sRB}, s{sT0}")
    a(f"s_and_b32 s{sJ}, s{sT1}, 7")
    a(f"s_and_b32 s{sFH}, s{sW}, 1")
    a(f"s_lshr_b32 s{sSH}, s{sW}, 1")
    a(f"s_and_b32 s{sSH}, s{sSH}, 1")
    a(f"s_lshr_b32 s{sKH}, s{sW}, 2")
    a(f"s_xor_b32 s{sST0}, s{sFH}, s{sKH}")
    a(f"s_lshl_b32 s{sST}, s{sSH}, 1")
    a(f"s_add_u32 s{sST}, s{sST}, s{sST0}")
    a(f"s_mul_i32 s{sXOFF}, s{sRB}, {64*1280}")
    a(f"s_mul_i32 s{sWOFF1}, s{sJ}, 192")
    a(f"s_add_u32 s{sWOFF2}, s{sWOFF1}, {768*2}")
    a(f"s_mov_b32 s{sEPS}, {f32(1e-5):#x}")
    a(f"s_mov_b32 s{sONES}, 0x3f803f80")
    a(f"s_mov_b32 s{sNC1}, {f32(-C1):#x}")
    a(f"s_mov_b32 s{sNC1+1}, {f32(-C1):#x}")
    a(f"s_mov_b32 s{sNC2}, {f32(-C2):#x}")
    a(f"s_mov_b32 s{sNC2+1}, {f32(-C2):#x}")
    a(f"s_lshl_b32 s{sM0X}, s{sW}, 11")
    a(f"s_mul_i32 s{sM0W}, s{sW}, 3072")
    vXD = [V(), V()]
    t0, t1, t2 = V(), V(), V()
    a(f"s_lshl_b32 s{sT0}, s{sW}, 3")
    for i in range(2):
        a(f"v_add_u32 v{t0}, s{sT0}, v{vQ}")
        if i: a(f"v_add_u32 v{t0}, 4, v{t0}")
        a(f"v_and_b32 v{t1}, 15, v{t0}")
        a(f"v_xor_b32 v{t1}, v{t1}, v{vP}")
        a(f"v_lshlrev_b32 v{t1}, 4, v{t1}")
        a(f"v_mul_u32_u24 v{t0}, 1280, v{t0}")
        a(f"v_add_u32 v{vXD[i]}, v{t0}, v{t1}")
    vWD = [V(), V(), V()]
    a(f"s_mul_i32 s{sT0}, s{sW}, 192")
    for i in range(3):
        a(f"v_add_u32 v{t0}, s{sT0}, v{vL}")
        if i: a(f"v_add_u32 v{t0}, {64*i}, v{t0}")
        a(f"v_mul_u32_u24 v{t1}, 43691, v{t0}")
        a(f"v_lshrrev_b32 v{t1}, 19, v{t1}")
        a(f"v_mul_u32_u24 v{t2}, 12, v{t1}")
        a(f"v_sub_u32 v{t0}, v{t0}, v{t2}")
        a(f"v_lshrrev_b32 v{t2}, 2, v{t1}")
        a(f"v_and_b32 v{t2}, 2, v{t2}")
        a(f"v_xor_b32 v{t0}, v{t0}, v{t2}")
        a(f"v_lshlrev_b32 v{t0}, 4, v{t0}")
        a(f"v_mul_u32_u24 v{t1}, 3072, v{t1}")
        a(f"v_add_u32 v{vWD[i]}, v{t0}, v{t1}")
    a("s_waitcnt lgkmcnt(0)")
    ST("kernarg")
    x_last = {}; w_last = {}
    def dma_x(sc):
        a(f"s_add_u32 s{sT1}, s{sXOFF}, {sc*256}")
        for i in range(2):
            a(f"s_add_u32 m0, s{sM0X}, {XR + sc*16384 + i*1024}")
            x_last[sc] = a.vmem(f"buffer_load_dwordx4 v{vXD[i]}, s[{sX}:{sX+3}], s{sT1} offen lds")
    def dma_w(q, base):
        sc = q % 5
        a(f"s_add_u32 s{sT1}, s{sWOFF2 if q < 5 else sWOFF1}, {sc*128*3072}")
        for i in range(3):
            a(f"s_add_u32 m0, s{sM0W}, {base + i*1024}")
            w_last[q] = a.vmem(f"buffer_load_dwordx4 v{vWD[i]}, s[{sWIN}:{sWIN+3}], s{sT1} offen lds")
    wbase = {0: WR, 1: WR+SLOT, 2: WR+2*SLOT, 3: WR, 4: WR+SLOT, 5: WR+2*SLOT, 6: WR, 7: WR+SLOT, 8: WR+2*SLOT, 9: WR}
    def dstamp(n):
        if diag == 1:
            a("s_waitcnt vmcnt(0)"); ST(n)
        elif diag == 2: ST(n)
    dma_x(0); dstamp("x0"); dma_w(0, wbase[0]); dstamp("w0"); dma_x(1); dstamp("x1"); dma_w(1, wbase[1]); dstamp("w1")
    XF = V(80, 4)
    def xf(sc, kk, sl): return XF + ((sc*2 + kk)*2 + sl)*4
    WF = V(24, 4)
    def wf(kk, ft): return WF + (kk*3 + ft)*4
    ACC = V(24, 4)
    def acc(ft, sl): return ACC + (ft*2 + sl)*4
    Z2V = V(12, 4)
    KR = xf(3, 0, 0)
    VR = KR + 20
    SK = V(16, 4)
    vKV = V()
    vKO = [V() for _ in range(3)]
    vRP = V(); vPP = V()
    a(f"v_mul_u32_u24 v{vRP}, 205, v{vL}")
    a(f"v_lshrrev_b32 v{vRP}, 11, v{vRP}")
    a(f"v_mul_u32_u24 v{t0}, 10, v{vRP}")
    a(f"v_sub_u32 v{vPP}, v{vL}, v{t0}")
    a(f"v_lshlrev_b32 v{t0}, 1, v{vRP}")
    a(f"s_lshl_b32 s{sT0}, s{sW}, 3")
    a(f"v_add_u32 v{t0}, s{sT0}, v{t0}")
    a(f"v_mul_u32_u24 v{t0}, 1280, v{t0}")
    a(f"v_lshlrev_b32 v{t1}, 4, v{vPP}")
    a(f"v_add_u32 v{t0}, v{t0}, v{t1}")
    a(f"s_mul_i32 s{sT0}, s{sJ}, 160")
    a(f"s_add_u32 s{sT0}, s{sT0}, s{sXOFF}")
    a(f"v_add_u32 v{vKV}, s{sT0}, v{t0}")
    for i in range(3):
        a(f"v_subrev_u32 v{vKO[i]}, {1280*(3-i)}, v{vKV}")
    a(f"s_mul_i32 s{sT0}, s{sJ}, 640")
    a(f"v_lshlrev_b32 v{t1}, 6, v{vPP}")
    a(f"v_add_u32 v{t1}, s{sT0}, v{t1}")
    a(f"s_mov_b64 s[{sEXEC}:{sEXEC+1}], exec")
    a(f"s_mov_b32 exec_lo, -1")
    a(f"s_mov_b32 exec_hi, 0xff")
    for i in range(3):
        a.vmem(f"buffer_load_dwordx4 v[{KR+4*i}:{KR+4*i+3}], v{vKO[i]}, s[{sK}:{sK+3}], 0 offen")
    a.vmem(f"buffer_load_dwordx4 v[{KR+12}:{KR+15}], v{vKV}, s[{sK}:{sK+3}], 0 offen")
    a.vmem(f"buffer_load_dwordx4 v[{KR+16}:{KR+19}], v{vKV}, s[{sK}:{sK+3}], 0 offen offset:1280")
    a.vmem(f"buffer_load_dwordx4 v[{VR}:{VR+3}], v{vKV}, s[{sV}:{sV+3}], 0 offen")
    a.vmem(f"buffer_load_dwordx4 v[{VR+4}:{VR+7}], v{vKV}, s[{sV}:{sV+3}], 0 offen offset:1280")
    for i in range(4):
        kv_last = a.vmem(f"buffer_load_dwordx4 v[{SK+4*i}:{SK+4*i+3}], v{t1}, s[{sSHK}:{sSHK+3}], 0 offen offset:{16*i}")
    a(f"s_mov_b64 exec, s[{sEXEC}:{sEXEC+1}]")
    dstamp("kv"); dma_x(2); dma_w(2, wbase[2]); dma_x(3); dma_x(4); dstamp("rest")
    vXA = [[V(), V()], [V(), V()]]
    vWA = [[V(), V(), V()], [V(), V(), V()]]
    sKKA, sKKB = 59, 60
    a(f"s_lshl_b32 s{sT0}, s{sKH}, 1")
    a(f"s_add_u32 s{sKKA}, s{sT0}, s{sSH}")
    a(f"s_xor_b32 s{sKKB}, s{sKKA}, 1")
    a(f"v_xor_b32 v{t0}, v{vQ}, v{vP}")
    for kkidx, sKK in ((0, sKKA), (1, sKKB)):
        a(f"s_lshl_b32 s{sT0}, s{sKK}, 2")
        a(f"v_xor_b32 v{t1}, s{sT0}, v{t0}")
        a(f"v_lshlrev_b32 v{t1}, 4, v{t1}")
        a(f"v_lshlrev_b32 v{t2}, 8, v{vP}")
        a(f"v_add_u32 v{t1}, v{t1}, v{t2}")
        a(f"s_lshl_b32 s{sT0}, s{sSH}, 13")
        a(f"s_lshl_b32 s{sT1}, s{sST0}, 12")
        a(f"s_add_u32 s{sT2}, s{sT0}, s{sT1}")
        a(f"v_add_u32 v{vXA[kkidx][0]}, s{sT2}, v{t1}")
        a(f"s_xor_b32 s{sT1}, s{sT1}, 4096")
        a(f"s_add_u32 s{sT2}, s{sT0}, s{sT1}")
        a(f"v_add_u32 v{vXA[kkidx][1]}, s{sT2}, v{t1}")
    a(f"v_lshlrev_b32 v{t0}, 3, v{vQ}")
    a(f"v_lshrrev_b32 v{t1}, 2, v{vP}")
    a(f"v_add_u32 v{t0}, v{t0}, v{t1}")
    a(f"v_mul_u32_u24 v{t0}, 192, v{t0}")
    a(f"v_and_b32 v{t1}, 3, v{vP}")
    a(f"v_lshlrev_b32 v{t1}, 3, v{t1}")
    a(f"v_add_u32 v{t0}, v{t0}, v{t1}")
    a(f"v_and_b32 v{t1}, 1, v{vQ}")
    a(f"s_mul_i32 s{sT3}, s{sFH}, 3")
    for ft in range(3):
        a(f"s_add_u32 s{sT0}, s{sT3}, {ft}")
        a(f"v_xor_b32 v{t2}, s{sT0}, v{t1}")
        a(f"v_lshlrev_b32 v{t2}, 5, v{t2}")
        a(f"v_add_u32 v{t2}, v{t2}, v{t0}")
        for kkidx, sKK in ((0, sKKA), (1, sKKB)):
            a(f"s_mul_i32 s{sT1}, s{sKK}, 6144")
            a(f"s_add_u32 s{sT1}, s{sT1}, {WR}")
            a(f"v_add_u32 v{vWA[kkidx][ft]}, s{sT1}, v{t2}")
    CS = [V(), V(), V()]
    XS, XQ = V(), V()
    TMP = V(28, 4)
    for r in CS + [XS, XQ]: a(f"v_mov_b32 v{r}, 0")
    cur_wbase = [WR]
    def set_wbase(b):
        d = b - cur_wbase[0]
        if d:
            for kk in range(2):
                for ft in range(3):
                    if d > 0: a(f"v_add_u32 v{vWA[kk][ft]}, {d}, v{vWA[kk][ft]}")
                    else: a(f"v_subrev_u32 v{vWA[kk][ft]}, {-d}, v{vWA[kk][ft]}")
        cur_wbase[0] = b

    def kv_compute():
        a.comment("kv = shiftconv(k) * v")
        a.wait_vm(kv_last)
        a(f"s_mov_b32 exec_lo, -1")
        a(f"s_mov_b32 exec_hi, 0xff")
        kf = TMP
        wp = TMP + 10
        r0 = TMP + 18; r1 = TMP + 20; vf0 = TMP + 22; vf1 = TMP + 24; o = TMP + 26
        vTA = t2
        a(f"v_mul_u32_u24 v{vTA}, {8*144}, v{vPP}")
        a(f"v_lshlrev_b32 v{t0}, 2, v{vRP}")
        a(f"v_sub_u32 v{vTA}, v{vTA}, v{t0}")
        a(f"s_lshl_b32 s{sT0}, s{sW}, 4")
        a(f"s_add_u32 s{sT0}, s{sT0}, {TB + 12}")
        a(f"v_add_u32 v{vTA}, s{sT0}, v{vTA}")
        for i in range(4):
            for r in range(5):
                a(f"v_lshlrev_b32 v{kf+2*r}, 16, v{KR+4*r+i}")
                a(f"v_and_b32 v{kf+2*r+1}, 0xffff0000, v{KR+4*r+i}")
            for t in range(4):
                ra = SK + 2*(2*i) + (t >> 1); rb_ = SK + 2*(2*i+1) + (t >> 1)
                if t & 1:
                    a(f"v_and_b32 v{wp+2*t}, 0xffff0000, v{ra}")
                    a(f"v_and_b32 v{wp+2*t+1}, 0xffff0000, v{rb_}")
                else:
                    a(f"v_lshlrev_b32 v{wp+2*t}, 16, v{ra}")
                    a(f"v_lshlrev_b32 v{wp+2*t+1}, 16, v{rb_}")
            P = lambda r: f"v[{r}:{r+1}]"
            for (dst, top) in ((r0, 3), (r1, 4)):
                a(f"v_pk_mul_f32 {P(dst)}, {P(kf+2*top)}, {P(wp)}")
                for t in range(1, 4):
                    a(f"v_pk_fma_f32 {P(dst)}, {P(kf+2*(top-t))}, {P(wp+2*t)}, {P(dst)}")
            for (vf, rr) in ((vf0, 0), (vf1, 1)):
                a(f"v_lshlrev_b32 v{vf}, 16, v{VR+4*rr+i}")
                a(f"v_and_b32 v{vf+1}, 0xffff0000, v{VR+4*rr+i}")
            a(f"v_pk_mul_f32 {P(r0)}, {P(r0)}, {P(vf0)}")
            a(f"v_pk_mul_f32 {P(r1)}, {P(r1)}, {P(vf1)}")
            a(f"v_cvt_pk_bf16_f32 v{o}, v{r1}, v{r0}")
            a(f"v_cvt_pk_bf16_f32 v{o+1}, v{r1+1}, v{r0+1}")
            a.ds(f"ds_write_b32 v{vTA}, v{o} offset:{(2*i)*144}")
            a.ds(f"ds_write_b32 v{vTA}, v{o+1} offset:{(2*i+1)*144}")
        a(f"s_mov_b64 exec, s[{sEXEC}:{sEXEC+1}]")

    def kv_store():
        a.comment("kv transposed store")
        for rnd in range(2):
            lab = None
            if rnd == 1:
                lab = a.newlabel("k1_kvskip")
                a(f"s_cmp_ge_u32 s{sW}, 2")
                a(f"s_cbranch_scc1 {lab}")
            a(f"s_lshl_b32 s{sT0}, s{sW}, 3")
            if rnd: a(f"s_add_u32 s{sT0}, s{sT0}, 64")
            a(f"v_lshrrev_b32 v{t0}, 3, v{vL}")
            a(f"v_add_u32 v{t0}, s{sT0}, v{t0}")
            a(f"v_and_b32 v{t1}, 7, v{vL}")
            a(f"v_lshlrev_b32 v{t1}, 4, v{t1}")
            a(f"v_mul_u32_u24 v{t2}, 144, v{t0}")
            a(f"v_add_u32 v{t2}, v{t2}, v{t1}")
            d = a.ds(f"ds_read_b128 v[{TMP}:{TMP+3}], v{t2} offset:{TB}")
            a(f"v_lshlrev_b32 v{t0}, 12, v{t0}")
            a(f"v_add_u32 v{t0}, v{t0}, v{t1}")
            a(f"s_mul_i32 s{sT0}, s{sJ}, {80*4096}")
            a(f"s_lshl_b32 s{sT1}, s{sRB}, 7")
            a(f"s_add_u32 s{sT0}, s{sT0}, s{sT1}")
            a(f"s_add_u32 s{sT0}, s{sT0}, {WS_KVT}")
            a("s_waitcnt lgkmcnt(0)")
            if rnd == 0:
                a.vmem(f"buffer_store_dwordx4 v[{TMP}:{TMP+3}], v{t0}, s[{sWS}:{sWS+3}], s{sT0} offen")
            else:
                a(f"buffer_store_dwordx4 v[{TMP}:{TMP+3}], v{t0}, s[{sWS}:{sWS+3}], s{sT0} offen")
                a.vm -= 1
                a.label(lab)
                a("s_nop 1")

    def phase_reads(p):
        sc = p % 5
        if p < 5:
            if p == 4:
                for kk in range(2):
                    for sl in range(2):
                        a(f"v_add_u32 v{vXA[kk][sl]}, 0x10000, v{vXA[kk][sl]}")
            for kk in range(2):
                for sl in range(2):
                    off = XR + (sc*16384 if p < 4 else 0)
                    a.ds(f"ds_read_b128 v[{xf(sc,kk,sl)}:{xf(sc,kk,sl)+3}], v{vXA[kk][sl]} offset:{off}")
        ids = []
        for kk in range(2):
            for ft in range(3):
                r = wf(kk, ft)
                a.ds(f"ds_read_b64_tr_b16 v[{r}:{r+1}], v{vWA[kk][ft]}")
                ids.append(a.ds(f"ds_read_b64_tr_b16 v[{r+2}:{r+3}], v{vWA[kk][ft]} offset:768"))
        return ids

    def phase_mfma(p, ids, extra=None):
        sc = p % 5
        first = (sc == 0)
        for kk in range(2):
            for ft in range(3):
                a.wait_lg(ids[kk*3 + ft])
                for sl in range(2):
                    c = "0" if (first and kk == 0) else f"v[{acc(ft,sl)}:{acc(ft,sl)+3}]"
                    a(f"v_mfma_f32_16x16x32_bf16 v[{acc(ft,sl)}:{acc(ft,sl)+3}], v[{wf(kk,ft)}:{wf(kk,ft)+3}], v[{xf(sc,kk,sl)}:{xf(sc,kk,sl)+3}], {c}")
                if kk == 0:
                    for i in range(4):
                        a(f"v_dot2_f32_bf16 v{CS[ft]}, v{wf(0,ft)+i}, s{sONES}, v{CS[ft]}")
            if p < 5:
                for i in range(4):
                    r = xf(sc, kk, 0) + i
                    a(f"v_dot2_f32_bf16 v{XS}, v{r}, s{sONES}, v{XS}")
                    a(f"v_dot2_f32_bf16 v{XQ}, v{r}, v{r}, v{XQ}")

    def exchange_write(with_x):
        a(f"s_mul_i32 s{sT0}, s{sW}, 3072")
        a(f"s_add_u32 s{sT0}, s{sT0}, {EX}")
        a(f"v_lshlrev_b32 v{t0}, 4, v{vL}")
        a(f"v_add_u32 v{t0}, s{sT0}, v{t0}")
        for ft in range(3):
            a.ds(f"ds_write_b128 v{t0}, v[{acc(ft,1)}:{acc(ft,1)+3}] offset:{ft*1024}")
        for ft in range(3): reduce_g4(a, CS[ft], t1)
        if with_x:
            reduce_g4(a, XS, t1); reduce_g4(a, XQ, t1)
        a(f"s_lshl_b32 s{sT0}, s{sFH}, 2")
        a(f"s_lshl_b32 s{sT1}, s{sSH}, 1")
        a(f"s_add_u32 s{sT0}, s{sT0}, s{sT1}")
        a(f"s_add_u32 s{sT0}, s{sT0}, s{sKH}")
        a(f"s_mul_i32 s{sT0}, s{sT0}, 192")
        a(f"s_add_u32 s{sT0}, s{sT0}, {EXS}")
        a(f"v_lshlrev_b32 v{t0}, 2, v{vP}")
        a(f"v_add_u32 v{t0}, s{sT0}, v{t0}")
        a(f"s_mov_b64 exec, 0xffff")
        for ft in range(3):
            a.ds(f"ds_write_b32 v{t0}, v{CS[ft]} offset:{ft*64}")
        if with_x:
            a(f"s_lshl_b32 s{sT0}, s{sST}, 1")
            a(f"s_add_u32 s{sT0}, s{sT0}, s{sKH}")
            a(f"s_lshl_b32 s{sT0}, s{sT0}, 7")
            a(f"s_add_u32 s{sT0}, s{sT0}, {EXS + 2048}")
            a(f"v_lshlrev_b32 v{t0}, 3, v{vP}")
            a(f"v_add_u32 v{t0}, s{sT0}, v{t0}")
            a(f"v_mov_b32 v{TMP}, v{XS}")
            a(f"v_mov_b32 v{TMP+1}, v{XQ}")
            a.ds(f"ds_write_b64 v{t0}, v[{TMP}:{TMP+1}]")
        a(f"s_mov_b64 exec, -1")
        for ft in range(3): a(f"v_mov_b32 v{CS[ft]}, 0")

    vM, vR = V(), V()
    def exchange_read(dst, with_x):
        PT = TMP
        a(f"s_xor_b32 s{sT0}, s{sW}, 4")
        a(f"s_mul_i32 s{sT0}, s{sT0}, 3072")
        a(f"s_add_u32 s{sT0}, s{sT0}, {EX}")
        a(f"v_lshlrev_b32 v{t0}, 4, v{vL}")
        a(f"v_add_u32 v{t0}, s{sT0}, v{t0}")
        for ft in range(3):
            a.ds(f"ds_read_b128 v[{PT+4*ft}:{PT+4*ft+3}], v{t0} offset:{ft*1024}")
        if with_x:
            a(f"s_lshl_b32 s{sT0}, s{sST}, 8")
            a(f"s_add_u32 s{sT0}, s{sT0}, {EXS + 2048}")
            a(f"v_lshlrev_b32 v{t1}, 3, v{vP}")
            a(f"v_add_u32 v{t1}, s{sT0}, v{t1}")
            a.ds(f"ds_read_b64 v[{TMP+12}:{TMP+13}], v{t1}")
            a.ds(f"ds_read_b64 v[{TMP+14}:{TMP+15}], v{t1} offset:128")
        a("s_waitcnt lgkmcnt(0)")
        for ft in range(3):
            for h in range(2):
                d = dst + 4*ft + 2*h
                a(f"v_pk_add_f32 v[{d}:{d+1}], v[{acc(ft,0)+2*h}:{acc(ft,0)+2*h+1}], v[{PT+4*ft+2*h}:{PT+4*ft+2*h+1}]")
        if with_x:
            a(f"v_pk_add_f32 v[{TMP+12}:{TMP+13}], v[{TMP+12}:{TMP+13}], v[{TMP+14}:{TMP+15}]")
            a(f"v_mul_f32 v{vM}, {f32(1.0/640):#x}, v{TMP+12}")
            a(f"v_mul_f32 v{vR}, {f32(1.0/640):#x}, v{TMP+13}")
            a(f"v_fma_f32 v{vR}, -v{vM}, v{vM}, v{vR}")
            ln_finish(a, vM, vR, sEPS)
        a(f"s_mul_i32 s{sT0}, s{sFH}, {4*192}")
        a(f"s_add_u32 s{sT0}, s{sT0}, {EXS}")
        a(f"v_lshlrev_b32 v{t0}, 4, v{vQ}")
        a(f"v_add_u32 v{t0}, s{sT0}, v{t0}")
        for ft in range(3):
            for q in range(4):
                a.ds(f"ds_read_b128 v[{TMP+4*q}:{TMP+4*q+3}], v{t0} offset:{q*192 + ft*64}")
            a("s_waitcnt lgkmcnt(0)")
            for h in range(2):
                b = TMP + 2*h
                a(f"v_pk_add_f32 v[{b}:{b+1}], v[{b}:{b+1}], v[{b+4}:{b+5}]")
                a(f"v_pk_add_f32 v[{b+8}:{b+9}], v[{b+8}:{b+9}], v[{b+12}:{b+13}]")
                a(f"v_pk_add_f32 v[{b}:{b+1}], v[{b}:{b+1}], v[{b+8}:{b+9}]")
            for r in range(4):
                d = dst + 4*ft + r
                a(f"v_fma_f32 v{d}, -v{vM}, v{TMP+r}, v{d}")
                a(f"v_mul_f32 v{d}, v{vR}, v{d}")

    def gelu(dst, n):
        P = lambda r: f"v[{r}:{r+1}]"
        for i in range(0, n, 2):
            a(f"v_pk_mul_f32 {P(TMP+i)}, {P(dst+i)}, {P(dst+i)}")
        for i in range(0, n, 2):
            a(f"v_pk_fma_f32 {P(TMP+i)}, {P(TMP+i)}, s[{sNC2}:{sNC2+1}], v[{vC1}:{vC1+1}]")
        for i in range(0, n, 2):
            a(f"v_pk_mul_f32 {P(TMP+i)}, {P(TMP+i)}, {P(dst+i)}")
        for i in range(n):
            a(f"v_exp_f32 v{TMP+i}, v{TMP+i}")
        for i in range(0, n, 2):
            a(f"v_pk_add_f32 {P(TMP+i)}, {P(TMP+i)}, v[{vOne}:{vOne+1}]")
        for i in range(n):
            a(f"v_rcp_f32 v{TMP+i}, v{TMP+i}")
        for i in range(0, n, 2):
            a(f"v_pk_mul_f32 {P(dst+i)}, {P(dst+i)}, {P(TMP+i)}")
    vC1 = V(2, 2); vOne = V(2, 2)
    a(f"v_mov_b32 v{vC1}, s{sNC1}"); a(f"v_mov_b32 v{vC1+1}, s{sNC1}")
    a(f"v_mov_b32 v{vOne}, 1.0"); a(f"v_mov_b32 v{vOne+1}, 1.0")

    zst_store = None
    for p in range(10):
        a.comment(f"---------------- phase {p}")
        need = w_last[p]
        if p < 5: need = max(need, x_last[p])
        if p == 6: need = max(need, zst_store)
        a.wait_vm(need)
        a("s_waitcnt lgkmcnt(0)")
        if not diag or p < 3: ST(f"p{p}_wait")
        a("s_barrier")
        if not diag or p < 3: ST(f"p{p}_bar")
        if p == 6:
            lab = a.newlabel("k1_sig")
            a(f"s_cmp_lg_u32 s{sW}, 0")
            a(f"s_cbranch_scc1 {lab}")
            a(f"s_lshl_b32 s{sT0}, s{sRB}, 2")
            a(f"v_mov_b32 v{t0}, s{sT0}")
            a(f"v_mov_b32 v{t1}, 1")
            a(f"s_mov_b64 exec, 1")
            a(f"buffer_atomic_add v{t1}, v{t0}, s[{sDBG}:{sDBG+3}], 0 offen")
            a.vm -= 1
            a(f"s_mov_b64 exec, -1")
            a.label(lab)
        if 1 <= p <= 7: dma_w(p + 2, wbase[p + 2])
        set_wbase(wbase[p])
        if p == 5:
            exchange_read(Z2V, True)
        ids = phase_reads(p)
        if p == 1: kv_compute()
        if p == 2: kv_store()
        phase_mfma(p, ids)
        if p == 4: exchange_write(True)
        if p == 5:
            gelu(Z2V, 12)
            m = TMP; q = TMP + 1; t = TMP + 2
            a(f"v_add_f32 v{m}, v{Z2V}, v{Z2V+1}")
            for i in range(2, 12): a(f"v_add_f32 v{m}, v{m}, v{Z2V+i}")
            reduce_g4(a, m, t)
            a(f"v_mul_f32 v{m}, {f32(1.0/48):#x}, v{m}")
            a(f"v_sub_f32 v{t}, v{Z2V}, v{m}")
            a(f"v_mul_f32 v{q}, v{t}, v{t}")
            for i in range(1, 12):
                a(f"v_sub_f32 v{t}, v{Z2V+i}, v{m}")
                a(f"v_fmac_f32 v{q}, v{t}, v{t}")
            reduce_g4(a, q, t)
            a(f"s_lshl_b32 s{sT0}, s{sRB}, 4")
            a(f"s_lshl_b32 s{sT1}, s{sJ}, 1")
            a(f"s_add_u32 s{sT0}, s{sT0}, s{sT1}")
            a(f"s_add_u32 s{sT0}, s{sT0}, s{sFH}")
            a(f"s_lshl_b32 s{sT0}, s{sT0}, 9")
            a(f"s_lshl_b32 s{sT1}, s{sST}, 7")
            a(f"s_add_u32 s{sT0}, s{sT0}, s{sT1}")
            a(f"s_add_u32 s{sT0}, s{sT0}, {WS_ZST}")
            a(f"v_lshlrev_b32 v{t0}, 3, v{vP}")
            a(f"s_mov_b64 exec, 0xffff")
            zst_store = a.vmem(f"buffer_store_dwordx2 v[{m}:{m+1}], v{t0}, s[{sWS}:{sWS+3}], s{sT0} offen sc1")
            a(f"s_mov_b64 exec, -1")
            lab = a.newlabel("k1_xst")
            a(f"s_or_b32 s{sT0}, s{sJ}, s{sFH}")
            a(f"s_cmp_lg_u32 s{sT0}, 0")
            a(f"s_cbranch_scc1 {lab}")
            a(f"s_lshl_b32 s{sT0}, s{sRB}, 9")
            a(f"s_lshl_b32 s{sT1}, s{sST}, 7")
            a(f"s_add_u32 s{sT0}, s{sT0}, s{sT1}")
            a(f"s_add_u32 s{sT0}, s{sT0}, {WS_XST}")
            a(f"v_mov_b32 v{TMP+4}, v{vM}")
            a(f"v_mov_b32 v{TMP+5}, v{vR}")
            a(f"s_mov_b64 exec, 0xffff")
            a(f"buffer_store_dwordx2 v[{TMP+4}:{TMP+5}], v{t0}, s[{sWS}:{sWS+3}], s{sT0} offen")
            a.vm -= 1
            a(f"s_mov_b64 exec, -1")
            a.label(lab)
        if p == 9: exchange_write(False)
    ST("p9_done")
    a("s_waitcnt lgkmcnt(0)")
    a("s_barrier")
    Z1V = WF
    exchange_read(Z1V, False)
    gelu(Z1V, 12)
    a(f"v_lshrrev_b32 v{t0}, 1, v{vQ}")
    a(f"v_mul_u32_u24 v{t0}, 3072, v{t0}")
    a(f"v_and_b32 v{t1}, 1, v{vQ}")
    a(f"v_lshlrev_b32 v{t1}, 5, v{t1}")
    a(f"v_add_u32 v{t1}, v{t1}, v{vP}")
    a(f"v_lshlrev_b32 v{t1}, 4, v{t1}")
    a(f"v_add_u32 v{t0}, v{t0}, v{t1}")
    a(f"s_lshl_b32 s{sT0}, s{sRB}, 3")
    a(f"s_add_u32 s{sT0}, s{sT0}, s{sJ}")
    a(f"s_mul_i32 s{sZ1B}, s{sT0}, 12288")
    a(f"s_lshr_b32 s{sT0}, s{sST}, 1")
    a(f"s_mul_i32 s{sT0}, s{sT0}, 6144")
    a(f"s_add_u32 s{sZ1B}, s{sZ1B}, s{sT0}")
    a(f"s_and_b32 s{sT0}, s{sST}, 1")
    a(f"s_lshl_b32 s{sT0}, s{sT0}, 8")
    a(f"s_add_u32 s{sZ1B}, s{sZ1B}, s{sT0}")
    a(f"s_add_u32 s{sZ1B}, s{sZ1B}, {WS_Z1F}")
    a(f"s_mul_i32 s{sT3}, s{sFH}, 3")
    for ft in range(3):
        a(f"v_cvt_pk_bf16_f32 v{TMP+2*ft}, v{Z1V+4*ft}, v{Z1V+4*ft+1}")
        a(f"v_cvt_pk_bf16_f32 v{TMP+2*ft+1}, v{Z1V+4*ft+2}, v{Z1V+4*ft+3}")
        a(f"s_add_u32 s{sT0}, s{sT3}, {ft}")
        a(f"s_lshr_b32 s{sT1}, s{sT0}, 1")
        a(f"s_lshl_b32 s{sT1}, s{sT1}, 10")
        a(f"s_and_b32 s{sT0}, s{sT0}, 1")
        a(f"s_lshl_b32 s{sT0}, s{sT0}, 3")
        a(f"s_add_u32 s{sT0}, s{sT0}, s{sT1}")
        a(f"s_add_u32 s{sT0}, s{sT0}, s{sZ1B}")
        a.vmem(f"buffer_store_dwordx2 v[{TMP+2*ft}:{TMP+2*ft+1}], v{t0}, s[{sWS}:{sWS+3}], s{sT0} offen")
    ST("z1_stored")
    lp = a.newlabel("k1_poll")
    a(f"s_lshl_b32 s{sT0}, s{sRB}, 2")
    a(f"v_mov_b32 v{t1}, s{sT0}")
    a.label(lp)
    a(f"buffer_load_dword v{t2}, v{t1}, s[{sDBG}:{sDBG+3}], 0 offen sc1")
    a("s_waitcnt vmcnt(0)")
    a(f"v_readfirstlane_b32 s{sT1}, v{t2}")
    a(f"s_cmp_ge_u32 s{sT1}, 8")
    lp2 = a.newlabel("k1_polled")
    a(f"s_cbranch_scc1 {lp2}")
    a("s_sleep 1")
    a(f"s_branch {lp}")
    a.label(lp2)
    ST("polled")
    a(f"s_lshl_b32 s{sT0}, s{sRB}, 13")
    a(f"s_lshl_b32 s{sT1}, s{sST}, 7")
    a(f"s_add_u32 s{sT0}, s{sT0}, s{sT1}")
    a(f"s_add_u32 s{sT0}, s{sT0}, {WS_ZST}")
    a(f"v_lshlrev_b32 v{t0}, 11, v{vQ}")
    a(f"v_lshlrev_b32 v{t1}, 3, v{vP}")
    a(f"v_add_u32 v{t0}, v{t0}, v{t1}")
    SP = TMP + 8
    for i in range(4):
        a(f"buffer_load_dwordx2 v[{SP+2*i}:{SP+2*i+1}], v{t0}, s[{sWS}:{sWS+3}], s{sT0} offen offset:{512*i} sc1")
    a("s_waitcnt vmcnt(0)")
    m = TMP; q = TMP + 1; t = TMP + 2
    a(f"v_add_f32 v{m}, v{SP}, v{SP+2}")
    a(f"v_add_f32 v{m}, v{m}, v{SP+4}")
    a(f"v_add_f32 v{m}, v{m}, v{SP+6}")
    reduce_g4(a, m, t)
    a(f"v_mul_f32 v{m}, {f32(1.0/16):#x}, v{m}")
    a(f"v_mov_b32 v{q}, 0")
    a(f"v_mov_b32 v{TMP+3}, {f32(48.0):#x}")
    for i in range(4):
        a(f"v_sub_f32 v{t}, v{SP+2*i}, v{m}")
        a(f"v_mul_f32 v{t}, v{t}, v{t}")
        a(f"v_fma_f32 v{t}, v{t}, v{TMP+3}, v{SP+2*i+1}")
        a(f"v_add_f32 v{q}, v{q}, v{t}")
    reduce_g4(a, q, t)
    a(f"v_mul_f32 v{q}, {f32(1.0/768):#x}, v{q}")
    ln_finish(a, m, q, sEPS)
    for i in range(12):
        a(f"v_sub_f32 v{Z2V+i}, v{Z2V+i}, v{m}")
        a(f"v_mul_f32 v{Z2V+i}, v{Z2V+i}, v{q}")
    a(f"s_lshl_b32 s{sT0}, s{sST}, 4")
    a(f"v_add_u32 v{t0}, s{sT0}, v{vP}")
    a(f"v_mul_u32_u24 v{t0}, 200, v{t0}")
    a(f"v_lshlrev_b32 v{t1}, 3, v{vQ}")
    a(f"v_add_u32 v{t0}, v{t0}, v{t1}")
    a(f"s_mul_i32 s{sT0}, s{sFH}, 96")
    a(f"s_add_u32 s{sT0}, s{sT0}, {ZT}")
    a(f"v_add_u32 v{t0}, s{sT0}, v{t0}")
    for ft in range(3):
        a(f"v_cvt_pk_bf16_f32 v{TMP+2*ft}, v{Z2V+4*ft}, v{Z2V+4*ft+1}")
        a(f"v_cvt_pk_bf16_f32 v{TMP+2*ft+1}, v{Z2V+4*ft+2}, v{Z2V+4*ft+3}")
        a.ds(f"ds_write_b64 v{t0}, v[{TMP+2*ft}:{TMP+2*ft+1}] offset:{32*ft}")
    a("s_waitcnt lgkmcnt(0)")
    a("s_barrier")
    a(f"v_lshrrev_b32 v{t0}, 1, v{vQ}")
    a(f"v_lshlrev_b32 v{t0}, 3, v{t0}")
    a(f"v_lshrrev_b32 v{t1}, 2, v{vP}")
    a(f"v_add_u32 v{t0}, v{t0}, v{t1}")
    a(f"v_mul_u32_u24 v{t0}, 200, v{t0}")
    a(f"v_and_b32 v{t1}, 1, v{vQ}")
    a(f"v_lshlrev_b32 v{t1}, 5, v{t1}")
    a(f"v_add_u32 v{t0}, v{t0}, v{t1}")
    a(f"v_and_b32 v{t1}, 3, v{vP}")
    a(f"v_lshlrev_b32 v{t1}, 3, v{t1}")
    a(f"v_add_u32 v{t0}, v{t0}, v{t1}")
    a(f"v_lshlrev_b32 v{t2}, 4, v{vL}")
    for rnd in range(2):
        lab = None
        if rnd == 1:
            lab = a.newlabel("k1_fr")
            a(f"s_cmp_ge_u32 s{sW}, 4")
            a(f"s_cbranch_scc1 {lab}")
        a(f"s_add_u32 s{sT0}, s{sW}, {8*rnd}")
        a(f"s_mul_i32 s{sT1}, s{sT0}, 43")
        a(f"s_lshr_b32 s{sT1}, s{sT1}, 7")
        a(f"s_mul_i32 s{sT2}, s{sT1}, 3")
        a(f"s_sub_u32 s{sT2}, s{sT0}, s{sT2}")
        a(f"s_mul_i32 s{sT1}, s{sT1}, {16*200}")
        a(f"s_lshl_b32 s{sT2}, s{sT2}, 6")
        a(f"s_add_u32 s{sT1}, s{sT1}, s{sT2}")
        a(f"s_add_u32 s{sT1}, s{sT1}, {ZT}")
        a(f"v_add_u32 v{t1}, s{sT1}, v{t0}")
        a(f"ds_read_b64_tr_b16 v[{TMP}:{TMP+1}], v{t1}")
        a(f"ds_read_b64_tr_b16 v[{TMP+2}:{TMP+3}], v{t1} offset:800")
        a(f"s_lshl_b32 s{sT1}, s{sJ}, 7")
        a(f"s_lshl_b32 s{sT2}, s{sRB}, 2")
        a(f"s_add_u32 s{sT1}, s{sT1}, s{sT2}")
        a(f"s_mul_i32 s{sT1}, s{sT1}, 3")
        a(f"s_add_u32 s{sT1}, s{sT1}, s{sT0}")
        a(f"s_lshl_b32 s{sT1}, s{sT1}, 10")
        a(f"s_add_u32 s{sT1}, s{sT1}, {WS_Z2F}")
        a("s_waitcnt lgkmcnt(0)")
        a(f"buffer_store_dwordx4 v[{TMP}:{TMP+3}], v{t2}, s[{sWS}:{sWS+3}], s{sT1} offen")
        if lab: a.label(lab)
    ST("end")
    ST.dump(sWS, sW, t0, t1, WS_DBG)
    gen_k1.stamp_names = ST.names
    a.label(f"{name}_end")
    a("s_endpgm")
    return a.finish(), V.hi
```

```python
from dsl import *
from layout import *
from k1 import f32

ZDEPTH = 8
CS_ = 4416
TOEP = 0
OZ = 7
UB = 8 * CS_
PB = UB + 33 * 144 + 48
PB = (PB + 15) // 16 * 16

def gen_gemm(a, V, ST, prof):
    sWSP, sWS, sBSP = 4, 8, 12
    sRB, sJ, sW = 32, 33, 34
    sT0, sT1, sT2, sT3 = 40, 41, 42, 43
    sZ, sWB, sLB = 44, 45, 46
    a(f"s_load_dwordx2 s[{sWSP}:{sWSP+1}], s[0:1], {KA['wsp']}")
    a(f"s_load_dwordx2 s[{sWS}:{sWS+1}], s[0:1], {KA['ws']}")
    a(f"s_load_dwordx2 s[{sBSP}:{sBSP+1}], s[0:1], {KA['bsp']}")
    for srd, size in ((sWSP, SZ_WSP), (sWS, WS_SIZE_DBG if prof else WS_END), (sBSP, 4096)):
        a(f"s_mov_b32 s{srd+2}, {size}")
        a(f"s_mov_b32 s{srd+3}, {SRD3:#x}")
    vL = V(); t0, t1, t2 = V(), V(), V()
    a(f"v_lshrrev_b32 v{t0}, 6, v0")
    a(f"v_and_b32 v{vL}, 63, v0")
    a(f"v_readfirstlane_b32 s{sW}, v{t0}")
    a(f"s_and_b32 s{sT0}, s2, 7")
    a(f"s_lshr_b32 s{sT1}, s2, 3")
    a(f"s_lshr_b32 s{sRB}, s{sT0}, 1")
    a(f"s_lshl_b32 s{sRB}, s{sRB}, 3")
    a(f"s_and_b32 s{sT2}, s{sT1}, 7")
    a(f"s_add_u32 s{sRB}, s{sRB}, s{sT2}")
    a(f"s_and_b32 s{sJ}, s{sT0}, 1")
    a(f"s_lshl_b32 s{sJ}, s{sJ}, 2")
    a(f"s_lshr_b32 s{sT2}, s{sT1}, 3")
    a(f"s_add_u32 s{sJ}, s{sJ}, s{sT2}")
    a(f"s_lshl_b32 s{sZ}, s{sJ}, 7")
    a(f"s_lshl_b32 s{sT0}, s{sW}, 5")
    a(f"s_add_u32 s{sZ}, s{sZ}, s{sT0}")
    a(f"s_mul_i32 s{sZ}, s{sZ}, 3072")
    a(f"s_add_u32 s{sZ}, s{sZ}, {WS_Z2F}")
    a(f"s_lshl_b32 s{sWB}, s{sRB}, 18")
    a(f"s_lshl_b32 s{sT0}, s{sW}, 10")
    a(f"s_add_u32 s{sWB}, s{sWB}, s{sT0}")
    a(f"s_lshl_b32 s{sLB}, s{sW}, 14")
    vZ = V()
    a(f"v_lshlrev_b32 v{vZ}, 4, v{vL}")
    vWE, vWO = V(), V()
    a(f"v_lshrrev_b32 v{t0}, 3, v{vL}")
    a(f"v_lshlrev_b32 v{t0}, 12, v{t0}")
    a(f"v_and_b32 v{t1}, 7, v{vL}")
    a(f"v_lshrrev_b32 v{t2}, 4, v{vL}")
    a(f"v_xor_b32 v{t1}, v{t1}, v{t2}")
    a(f"v_lshlrev_b32 v{t2}, 4, v{t1}")
    a(f"v_add_u32 v{vWE}, v{t0}, v{t2}")
    a(f"v_xor_b32 v{t1}, 4, v{t1}")
    a(f"v_lshlrev_b32 v{t2}, 4, v{t1}")
    a(f"v_add_u32 v{vWO}, v{t0}, v{t2}")
    vWA = [V() for _ in range(4)]
    a(f"v_and_b32 v{t0}, 31, v{vL}")
    a(f"v_lshrrev_b32 v{t1}, 1, v{t0}")
    a(f"v_and_b32 v{t1}, 7, v{t1}")
    a(f"v_lshrrev_b32 v{t2}, 5, v{vL}")
    a(f"v_xor_b32 v{t1}, v{t1}, v{t2}")
    a(f"v_lshlrev_b32 v{t0}, 7, v{t0}")
    a(f"v_add_u32 v{t0}, s{sLB}, v{t0}")
    for kk in range(4):
        a(f"v_xor_b32 v{t2}, {2*kk}, v{t1}")
        a(f"v_lshlrev_b32 v{t2}, 4, v{t2}")
        a(f"v_add_u32 v{vWA[kk]}, v{t0}, v{t2}")
    ACC = V(96, 4)
    def acc(ft, tt): return ACC + (ft*2 + tt)*16
    ZF = V(ZDEPTH*12, 4)
    def zf(ks, ft): return ZF + ((ks % ZDEPTH)*3 + ft)*4
    WFr = V(16, 4)
    def wfr(b, tt): return WFr + (b*2 + tt)*4
    a("s_waitcnt lgkmcnt(0)")
    ST("g_kernarg")
    z_id = {}; w_id = {}
    def load_z(ks):
        a(f"s_add_u32 s{sT1}, s{sZ}, {ks*3072}")
        for ft in range(3):
            z_id[(ks, ft)] = a.vmem(f"buffer_load_dwordx4 v[{zf(ks,ft)}:{zf(ks,ft)+3}], v{vZ}, s[{sWS}:{sWS+3}], s{sT1} offen offset:{ft*1024}")
    def dma_w(c):
        sl = c & 1
        for i in range(8):
            a(f"s_add_u32 s{sT1}, s{sWB}, {i*8*4096 + c*128}")
            a(f"s_add_u32 m0, s{sLB}, {sl*8192 + i*1024}")
            w_id[c] = a.vmem(f"buffer_load_dwordx4 v{vWE if i % 2 == 0 else vWO}, s[{sWSP}:{sWSP+3}], s{sT1} offen lds")
    dma_w(0)
    for ks in range(4): load_z(ks)
    dma_w(1)
    for ks in range(4, ZDEPTH): load_z(ks)
    Z1 = V(12, 4); vB = V()
    a(f"s_lshl_b32 s{sT0}, s{sRB}, 3")
    a(f"s_add_u32 s{sT0}, s{sT0}, s{sJ}")
    a(f"s_lshl_b32 s{sT0}, s{sT0}, 2")
    a(f"s_add_u32 s{sT0}, s{sT0}, s{sW}")
    a(f"s_mul_i32 s{sT0}, s{sT0}, 3072")
    a(f"s_add_u32 s{sT0}, s{sT0}, {WS_Z1F}")
    for ft in range(3):
        a.vmem(f"buffer_load_dwordx4 v[{Z1+4*ft}:{Z1+4*ft+3}], v{vZ}, s[{sWS}:{sWS+3}], s{sT0} offen offset:{ft*1024}")
    a(f"v_and_b32 v{t0}, 31, v{vL}")
    a(f"v_lshlrev_b32 v{t0}, 1, v{t0}")
    a(f"s_lshr_b32 s{sT0}, s{sW}, 1")
    a(f"s_lshl_b32 s{sT0}, s{sT0}, 6")
    a(f"s_lshl_b32 s{sT1}, s{sRB}, 7")
    a(f"s_add_u32 s{sT0}, s{sT0}, s{sT1}")
    b_id = a.vmem(f"buffer_load_ushort v{vB}, v{t0}, s[{sBSP}:{sBSP+3}], s{sT0} offen")
    def read_w(ks):
        c = ks // 4; kk = ks % 4; b = ks & 1
        ids = []
        for tt in range(2):
            ids.append(a.ds(f"ds_read_b128 v[{wfr(b,tt)}:{wfr(b,tt)+3}], v{vWA[kk]} offset:{(c&1)*8192 + tt*4096}"))
        return ids[-1]
    a.wait_vm(w_id[0])
    ST("g_w0")
    rd = {0: read_w(0)}
    for ks in range(32):
        c = ks // 4
        if ks + 1 < 32:
            if (ks + 1) % 4 == 0: a.wait_vm(w_id[(ks + 1)//4])
            rd[ks + 1] = read_w(ks + 1)
        a.wait_vm(z_id[(ks, 2)])
        a.wait_lg(rd[ks])
        b = ks & 1
        for ft in range(3):
            for tt in range(2):
                cc = "0" if ks == 0 else f"v[{acc(ft,tt)}:{acc(ft,tt)+15}]"
                a(f"v_mfma_f32_32x32x16_bf16 v[{acc(ft,tt)}:{acc(ft,tt)+15}], v[{zf(ks,ft)}:{zf(ks,ft)+3}], v[{wfr(b,tt)}:{wfr(b,tt)+3}], {cc}")
        if ks + ZDEPTH < 32: load_z(ks + ZDEPTH)
        if ks % 4 == 3 and c + 2 < 8: dma_w(c + 2)
    ST("g_loop")
    a("s_barrier")
    a(f"s_mul_i32 s{sT0}, s{sW}, 18432")
    a(f"v_add_u32 v{t0}, s{sT0}, v{vZ}")
    vD = [V() for _ in range(4)]
    for d in range(4):
        a(f"s_sub_u32 s{sT1}, {d + 3}, s{sW}")
        a(f"s_and_b32 s{sT1}, s{sT1}, 3")
        a(f"s_mul_i32 s{sT2}, s{sT1}, 6144")
        a(f"s_add_u32 s{sT2}, s{sT2}, s{sT0}")
        a(f"s_cmp_eq_u32 s{sT1}, 3")
        a(f"s_cselect_b32 s{sT2}, 73728, s{sT2}")
        a(f"v_add_u32 v{vD[d]}, s{sT2}, v{vZ}")
    for d in range(4):
        tt = d >> 1; g0 = d & 1
        for ft in range(3):
            for gh in range(2):
                r = acc(ft, tt) + 4*(g0 + 2*gh)
                a.ds(f"ds_write_b128 v{vD[d]}, v[{r}:{r+3}] offset:{(ft*2+gh)*1024}")
    a("s_waitcnt lgkmcnt(0)")
    a("s_barrier")
    OWN = ZF
    labs = [a.newlabel("g_own") for _ in range(4)]; lend = a.newlabel("g_ownend")
    for d in range(4):
        if d < 3:
            a(f"s_cmp_lg_u32 s{sW}, {d}")
            a(f"s_cbranch_scc1 {labs[d]}")
        tt = d >> 1; g0 = d & 1
        for ft in range(3):
            for gh in range(2):
                r = acc(ft, tt) + 4*(g0 + 2*gh)
                for e in range(4):
                    a(f"v_mov_b32 v{OWN + (ft*2+gh)*4 + e}, v{r+e}")
        if d < 3:
            a(f"s_branch {lend}")
            a.label(labs[d])
    a.label(lend)
    PT = ACC
    for k in range(3):
        a(f"s_add_u32 s{sT1}, s{sW}, {k + 1}")
        a(f"s_and_b32 s{sT1}, s{sT1}, 3")
        a(f"s_mul_i32 s{sT2}, s{sT1}, 18432")
        a(f"s_add_u32 s{sT2}, s{sT2}, {(2 - k)*6144}")
        a(f"v_add_u32 v{t0}, s{sT2}, v{vZ}")
        for q in range(6):
            a.ds(f"ds_read_b128 v[{PT + (k*6+q)*4}:{PT + (k*6+q)*4 + 3}], v{t0} offset:{q*1024}")
    a.wait_vm(b_id)
    a(f"v_lshlrev_b32 v{vB}, 16, v{vB}")
    a("s_waitcnt lgkmcnt(0)")
    for k in range(3):
        for i in range(0, 24, 2):
            a(f"v_pk_add_f32 v[{OWN+i}:{OWN+i+1}], v[{OWN+i}:{OWN+i+1}], v[{PT+k*24+i}:{PT+k*24+i+1}]")
    OUT = PT
    for ft in range(3):
        for gh in range(2):
            for pr in range(2):
                o = OWN + (ft*2+gh)*4 + 2*pr
                z = Z1 + 4*ft + 2*gh + pr
                a(f"v_add_f32 v{o}, v{o}, v{vB}")
                a(f"v_add_f32 v{o+1}, v{o+1}, v{vB}")
                a(f"v_lshlrev_b32 v{t1}, 16, v{z}")
                a(f"v_and_b32 v{t2}, 0xffff0000, v{z}")
                a(f"v_mul_f32 v{o}, v{o}, v{t1}")
                a(f"v_mul_f32 v{o+1}, v{o+1}, v{t2}")
                a(f"v_cvt_pk_bf16_f32 v{OUT + 4*ft + 2*gh + pr}, v{o}, v{o+1}")
    a(f"v_lshrrev_b32 v{t0}, 4, v{vL}")
    a(f"v_and_b32 v{t0}, 1, v{t0}")
    a(f"v_mul_u32_u24 v{t0}, {24*1024}, v{t0}")
    a(f"v_and_b32 v{t1}, 15, v{vL}")
    a(f"v_lshrrev_b32 v{t2}, 5, v{vL}")
    a(f"v_lshlrev_b32 v{t2}, 4, v{t2}")
    a(f"v_add_u32 v{t1}, v{t1}, v{t2}")
    a(f"v_lshlrev_b32 v{t1}, 4, v{t1}")
    a(f"v_add_u32 v{t0}, v{t0}, v{t1}")
    a(f"s_mul_i32 s{sT0}, s{sRB}, {4*24*1024}")
    a(f"s_lshr_b32 s{sT1}, s{sW}, 1")
    a(f"s_mul_i32 s{sT1}, s{sT1}, {2*24*1024}")
    a(f"s_add_u32 s{sT0}, s{sT0}, s{sT1}")
    a(f"s_mul_i32 s{sT1}, s{sJ}, 3072")
    a(f"s_add_u32 s{sT0}, s{sT0}, s{sT1}")
    a(f"s_and_b32 s{sT1}, s{sW}, 1")
    a(f"s_lshl_b32 s{sT1}, s{sT1}, 9")
    a(f"s_add_u32 s{sT0}, s{sT0}, s{sT1}")
    a(f"s_add_u32 s{sT0}, s{sT0}, {WS_PF}")
    for ft in range(3):
        a.vmem(f"buffer_store_dwordx4 v[{OUT+4*ft}:{OUT+4*ft+3}], v{t0}, s[{sWS}:{sWS+3}], s{sT0} offen offset:{ft*1024}")
    ST("g_end")
    ST.dump(sWS, sW, t0, t1, WS_DBG + 0x200000)

def gen_conv(a, V, ST, prof, name):
    sSSM, sWS, sDv = 4, 8, 12
    sC, sW, sCH = 32, 34, 35
    sT0, sT1, sT2, sT3 = 40, 41, 42, 43
    sH = 44
    sDD = 48
    a(f"s_load_dwordx2 s[{sSSM}:{sSSM+1}], s[0:1], {KA['ssmk']}")
    a(f"s_load_dwordx2 s[{sWS}:{sWS+1}], s[0:1], {KA['ws']}")
    a(f"s_load_dwordx2 s[{sDv}:{sDv+1}], s[0:1], {KA['ssmD']}")
    for srd, size in ((sSSM, SZ_SSMK), (sWS, WS_SIZE_DBG if prof else WS_END), (sDv, 1280)):
        a(f"s_mov_b32 s{srd+2}, {size}")
        a(f"s_mov_b32 s{srd+3}, {SRD3:#x}")
    vL = V(); vT = V(); t0, t1, t2 = V(), V(), V()
    a(f"v_lshrrev_b32 v{t0}, 6, v0")
    a(f"v_and_b32 v{vL}, 63, v0")
    a(f"v_readfirstlane_b32 s{sW}, v{t0}")
    a(f"s_sub_u32 s{sC}, s2, 256")
    a(f"v_lshlrev_b32 v{vT}, 4, v0")
    NCH = 3
    HR = V(8*NCH, 4)
    UR = V(4*NCH, 4)
    DR = V(NCH)
    vTm = V()
    a(f"v_subrev_u32 v{vTm}, 16, v{vT}")
    a("s_waitcnt lgkmcnt(0)")
    ST("c_kernarg")
    ld = {}
    def loads(i):
        a(f"s_add_u32 s{sCH}, s{sC}, {256*i}")
        a(f"s_min_u32 s{sCH}, s{sCH}, 639")
        a(f"s_lshl_b32 s{sT0}, s{sCH}, 12")
        a.vmem(f"buffer_load_dwordx4 v[{HR+8*i+4}:{HR+8*i+7}], v{vT}, s[{sSSM}:{sSSM+3}], s{sT0} offen")
        a.vmem(f"buffer_load_dwordx4 v[{HR+8*i}:{HR+8*i+3}], v{vTm}, s[{sSSM}:{sSSM+3}], s{sT0} offen")
        a(f"s_add_u32 s{sT0}, s{sT0}, {WS_KVT}")
        a.vmem(f"buffer_load_dwordx4 v[{UR+4*i}:{UR+4*i+3}], v{vT}, s[{sWS}:{sWS+3}], s{sT0} offen")
        a(f"s_lshl_b32 s{sT0}, s{sCH}, 1")
        a(f"v_mov_b32 v{t0}, 0")
        ld[i] = a.vmem(f"buffer_load_ushort v{DR+i}, v{t0}, s[{sDv}:{sDv+3}], s{sT0} offen")
    for i in range(NCH): loads(i)
    Zr = V(4, 4)
    for e in range(4): a(f"v_mov_b32 v{Zr+e}, 0")
    a(f"v_lshrrev_b32 v{t0}, 3, v0")
    a(f"v_mul_u32_u24 v{t0}, {CS_}, v{t0}")
    a(f"v_and_b32 v{t1}, 7, v0")
    a(f"v_lshlrev_b32 v{t1}, 4, v{t1}")
    a(f"v_add_u32 v{t0}, v{t0}, v{t1}")
    a(f"v_cmp_gt_u32 vcc, 64, v0")
    a(f"s_and_saveexec_b64 s[50:51], vcc")
    lz = a.newlabel("c_z")
    a(f"s_cbranch_execz {lz}")
    a.ds(f"ds_write_b128 v{t0}, v[{Zr}:{Zr+3}] offset:{TOEP}")
    a(f"v_cmp_gt_u32 vcc, 8, v0")
    a(f"s_and_b64 exec, exec, vcc")
    a.ds(f"ds_write_b128 v{vT}, v[{Zr}:{Zr+3}] offset:{UB}")
    a.label(lz)
    a(f"s_mov_b64 exec, s[50:51]")
    a("s_waitcnt lgkmcnt(0)")
    a("s_barrier")
    vTW = V()
    a(f"v_add_u32 v{vTW}, {OZ*16 + TOEP}, v{vT}")
    vUW = V()
    a(f"v_lshrrev_b32 v{t0}, 3, v0")
    a(f"v_mul_u32_u24 v{t0}, 144, v{t0}")
    a(f"v_and_b32 v{t1}, 7, v0")
    a(f"v_lshlrev_b32 v{t1}, 4, v{t1}")
    a(f"v_add_u32 v{vUW}, v{t0}, v{t1}")
    a(f"v_add_u32 v{vUW}, {UB + 144}, v{vUW}")
    vA = V()
    a(f"v_and_b32 v{t0}, 7, v{vL}")
    a(f"v_mul_u32_u24 v{t0}, {CS_}, v{t0}")
    a(f"v_and_b32 v{t1}, 31, v{vL}")
    a(f"v_lshrrev_b32 v{t1}, 3, v{t1}")
    a(f"v_lshrrev_b32 v{t2}, 5, v{vL}")
    a(f"v_sub_u32 v{t1}, v{t1}, v{t2}")
    a(f"v_lshlrev_b32 v{t1}, 4, v{t1}")
    a(f"v_add_u32 v{t0}, v{t0}, v{t1}")
    a(f"s_lshl_b32 s{sT0}, s{sW}, 10")
    a(f"s_add_u32 s{sT0}, s{sT0}, {TOEP + 16}")
    a(f"v_add_u32 v{vA}, s{sT0}, v{t0}")
    vBq = V()
    a(f"v_and_b32 v{t0}, 31, v{vL}")
    a(f"s_lshl_b32 s{sT0}, s{sW}, 3")
    a(f"v_subrev_u32 v{t0}, s{sT0}, v{t0}")
    a(f"v_max_i32 v{t0}, -1, v{t0}")
    a(f"v_add_u32 v{t0}, 1, v{t0}")
    a(f"v_mul_u32_u24 v{t0}, 144, v{t0}")
    a(f"v_lshrrev_b32 v{t1}, 5, v{vL}")
    a(f"v_lshlrev_b32 v{t1}, 4, v{t1}")
    a(f"v_add_u32 v{vBq}, v{t0}, v{t1}")
    vMask = V()
    a(f"v_and_b32 v{t0}, 31, v{vL}")
    a(f"v_cmp_ne_u32 vcc, 0, v{t0}")
    a(f"v_cndmask_b32 v{vMask}, 0, -1, vcc")
    DM = V(8, 4)
    a(f"v_and_b32 v{t0}, 31, v{vL}")
    a(f"v_lshrrev_b32 v{t1}, 5, v{vL}")
    a(f"v_lshlrev_b32 v{t1}, 3, v{t1}")
    a(f"v_add_u32 v{t1}, 7, v{t1}")
    a(f"v_sub_u32 v{t1}, v{t1}, v{t0}")
    for e in range(2):
        for dw in range(4):
            a(f"v_cmp_eq_u32 vcc, {2*dw - 16*e}, v{t1}")
            a(f"v_cndmask_b32 v{DM+4*e+dw}, 0, v{Zr}, vcc") if False else None
            a(f"v_mov_b32 v{t2}, 0xffff")
            a(f"v_cndmask_b32 v{DM+4*e+dw}, 0, v{t2}, vcc")
            a(f"v_cmp_eq_u32 vcc, {2*dw + 1 - 16*e}, v{t1}")
            a(f"v_mov_b32 v{t2}, 0xffff0000")
            a(f"v_cndmask_b32 v{t2}, 0, v{t2}, vcc")
            a(f"v_or_b32 v{DM+4*e+dw}, v{DM+4*e+dw}, v{t2}")
    vPW = V()
    a(f"v_and_b32 v{t0}, 31, v{vL}")
    a(f"v_mul_u32_u24 v{t0}, 272, v{t0}")
    a(f"v_lshrrev_b32 v{t1}, 5, v{vL}")
    a(f"v_lshlrev_b32 v{t1}, 4, v{t1}")
    a(f"v_add_u32 v{t0}, v{t0}, v{t1}")
    a(f"s_mul_i32 s{sT0}, s{sW}, 8704")
    a(f"s_add_u32 s{sT0}, s{sT0}, {PB}")
    a(f"v_add_u32 v{vPW}, s{sT0}, v{t0}")
    vPR = V()
    a(f"v_lshrrev_b32 v{t0}, 3, v0")
    a(f"v_mul_u32_u24 v{t0}, 272, v{t0}")
    a(f"v_and_b32 v{t1}, 7, v0")
    a(f"v_lshlrev_b32 v{t1}, 5, v{t1}")
    a(f"v_add_u32 v{vPR}, v{t0}, v{t1}")
    a(f"v_add_u32 v{vPR}, {PB}, v{vPR}")
    ACC = V(32, 4)
    BF = V(16, 4)
    NA = 10
    AF = V(NA*4, 4)
    EW = V(8, 4)
    TQ = V(4, 4)
    DG = V(8, 4)
    lend = f"{name}_cend"
    for i in range(NCH):
        a.comment(f"------- channel slot {i}")
        if i == 2:
            a(f"s_cmp_ge_u32 s{sC}, 128")
            a(f"s_cbranch_scc1 {lend}")
        a(f"s_add_u32 s{sCH}, s{sC}, {256*i}")
        a.wait_vm(ld[i])
        ST(f"c{i}_ld")
        d = HR + 8*i
        a(f"v_cmp_ne_u32 vcc, 0, v0")
        for e in range(4): a(f"v_cndmask_b32 v{d+e}, 0, v{d+e}, vcc")
        for e in range(7): a(f"v_alignbit_b32 v{EW+e}, v{d+e+1}, v{d+e}, 16")
        for c in range(8):
            st = c + 1
            if st % 2 == 0: src = d + st//2
            else: src = EW + (st-1)//2
            if (src % 2) != 0:
                for e in range(4): a(f"v_mov_b32 v{TQ+e}, v{src+e}")
                src = TQ
            a.ds(f"ds_write_b128 v{vTW}, v[{src}:{src+3}] offset:{c*CS_}")
            if src == TQ: a("s_nop 1")
        a.ds(f"ds_write_b128 v{vUW}, v[{UR+4*i}:{UR+4*i+3}]")
        a(f"v_lshlrev_b32 v{t0}, 16, v{DR+i}")
        a(f"v_or_b32 v{t0}, v{t0}, v{DR+i}")
        for e in range(8): a(f"v_and_b32 v{DG+e}, v{DM+e}, v{t0}")
        a("s_waitcnt lgkmcnt(0)")
        a("s_barrier")
        ST(f"c{i}_built")
        for ks in range(4):
            a.ds(f"ds_read_b128 v[{BF+4*ks}:{BF+4*ks+3}], v{vBq} offset:{UB + ks*32}")
        aid = {}
        def af(qq): return AF + ((qq + 3) % NA)*4
        def read_a(qq):
            aid[qq] = a.ds(f"ds_read_b128 v[{af(qq)}:{af(qq)+3}], v{vA} offset:{(2*qq + OZ)*16 - 16}")
        for qq in range(-3, 3): read_a(qq)
        started = [False, False]
        for dl in range(8):
            if dl < 7:
                for qq in range(4*dl + 3, 4*dl + 7): read_a(qq)
            a.wait_lg(aid[4*dl + 2])
            for ks in range(4):
                for mt in range(2):
                    qq = 4*dl + 2*mt - ks
                    c = f"v[{ACC+16*mt}:{ACC+16*mt+15}]" if started[mt] else "0"
                    started[mt] = True
                    a(f"v_mfma_f32_32x32x16_bf16 v[{ACC+16*mt}:{ACC+16*mt+15}], v[{af(qq)}:{af(qq)+3}], v[{BF+4*ks}:{BF+4*ks+3}], {c}")
                if dl == 0:
                    ls = a.newlabel("c_dg")
                    a(f"s_cmp_lg_u32 s{sW}, 0")
                    a(f"s_cbranch_scc1 {ls}")
                    mt = ks >> 1; e = ks & 1
                    a(f"v_mfma_f32_32x32x16_bf16 v[{ACC+16*mt}:{ACC+16*mt+15}], v[{DG+4*e}:{DG+4*e+3}], v[{BF+4*ks}:{BF+4*ks+3}], v[{ACC+16*mt}:{ACC+16*mt+15}]")
                    a.label(ls)
                if dl < 7:
                    for e in range(4):
                        a(f"v_and_b32_dpp v{BF+4*ks+e}, v{BF+4*ks+e}, v{vMask} wave_shr:1 row_mask:0xf bank_mask:0xf bound_ctrl:0")
        ST(f"c{i}_mfma")
        for mt in range(2):
            for g in range(4):
                r = ACC + 16*mt + 4*g
                a.ds(f"ds_write_b128 v{vPW}, v[{r}:{r+3}] offset:{(32*mt + 8*g)*4}")
        a("s_waitcnt lgkmcnt(0)")
        a("s_barrier")
        PT = AF
        for w in range(4):
            a.ds(f"ds_read_b128 v[{PT+8*w}:{PT+8*w+3}], v{vPR} offset:{w*8704}")
            a.ds(f"ds_read_b128 v[{PT+8*w+4}:{PT+8*w+7}], v{vPR} offset:{w*8704 + 16}")
        a("s_waitcnt lgkmcnt(0)")
        for w in range(1, 4):
            for e in range(0, 8, 2):
                a(f"v_pk_add_f32 v[{PT+e}:{PT+e+1}], v[{PT+e}:{PT+e+1}], v[{PT+8*w+e}:{PT+8*w+e+1}]")
        for e in range(4):
            a(f"v_cvt_pk_bf16_f32 v{TQ+e}, v{PT+2*e}, v{PT+2*e+1}")
        a(f"s_lshl_b32 s{sT0}, s{sCH}, 12")
        a(f"s_add_u32 s{sT0}, s{sT0}, {WS_YT}")
        a.vmem(f"buffer_store_dwordx4 v[{TQ}:{TQ+3}], v{vT}, s[{sWS}:{sWS+3}], s{sT0} offen")
        a("s_nop 1")
        ST(f"c{i}_done")
    a.label(lend)
    ST.dump(sWS, sW, t0, t1, WS_DBG + 0x400000)

def gen_k2(name="k2_kernel", prof=False):
    a = Asm()
    a.raw(f".globl {name}\n.p2align 8\n.type {name},@function\n{name}:")
    a(f"s_cmp_ge_u32 s2, 512")
    a(f"s_cbranch_scc1 {name}_end")
    a(f"s_cmp_ge_u32 s2, 256")
    a(f"s_cbranch_scc1 {name}_conv")
    ST = Stamps(a, enabled=prof); ST("g_start")
    V = Alloc(1, 256, "v")
    gen_gemm(a, V, ST, prof)
    a("s_endpgm")
    hi = V.hi
    a.label(f"{name}_conv")
    a.vm = 0; a.lg = 0
    ST2 = Stamps(a, enabled=prof); ST2("c_start")
    V2 = Alloc(1, 256, "v")
    gen_conv(a, V2, ST2, prof, name)
    a.label(f"{name}_end")
    a("s_endpgm")
    gen_k2.stamp_names = {"k2g": ST.names, "k2c": ST2.names}
    return a.finish(), max(hi, V2.hi)
```

```python
from dsl import *
from layout import *
from k1 import f32
WO = 0; XT = 122880; YTL = 133120; OT = 143360; LDS = 153600
LOG2E = 1.4426950408889634

def gen_k3(name="k3_kernel", prof=False):
    a = Asm()
    ST = Stamps(a, enabled=prof)
    V = Alloc(1, 256, "v")
    sWO, sX, sWS, sOUT = 4, 8, 12, 16
    sRB, sDJ, sW = 32, 33, 34
    sT0, sT1, sT2, sT3 = 40, 41, 42, 43
    sCOL, sXB = 44, 45
    a.raw(f".globl {name}\n.p2align 8\n.type {name},@function\n{name}:")
    a(f"s_cmp_ge_u32 s2, 256")
    a(f"s_cbranch_scc1 {name}_end")
    ST("start")
    a(f"s_load_dwordx2 s[{sWO}:{sWO+1}], s[0:1], {KA['wout']}")
    a(f"s_load_dwordx2 s[{sX}:{sX+1}], s[0:1], {KA['q']}")
    a(f"s_load_dwordx2 s[{sWS}:{sWS+1}], s[0:1], {KA['ws']}")
    a(f"s_load_dwordx2 s[{sOUT}:{sOUT+1}], s[0:1], {KA['out']}")
    for srd, size in ((sWO, SZ_WOUT), (sX, SZ_X), (sWS, WS_SIZE_DBG if prof else WS_END), (sOUT, SZ_X)):
        a(f"s_mov_b32 s{srd+2}, {size}")
        a(f"s_mov_b32 s{srd+3}, {SRD3:#x}")
    vL, vQ, vP = V(), V(), V(); t0, t1, t2 = V(), V(), V()
    a(f"v_lshrrev_b32 v{t0}, 6, v0")
    a(f"v_and_b32 v{vL}, 63, v0")
    a(f"v_readfirstlane_b32 s{sW}, v{t0}")
    a(f"v_lshrrev_b32 v{vQ}, 4, v{vL}")
    a(f"v_and_b32 v{vP}, 15, v{vL}")
    a(f"s_and_b32 s{sT0}, s2, 7")
    a(f"s_lshr_b32 s{sT1}, s2, 3")
    a(f"s_lshr_b32 s{sRB}, s{sT0}, 1")
    a(f"s_lshl_b32 s{sRB}, s{sRB}, 3")
    a(f"s_and_b32 s{sT2}, s{sT1}, 7")
    a(f"s_add_u32 s{sRB}, s{sRB}, s{sT2}")
    a(f"s_and_b32 s{sDJ}, s{sT0}, 1")
    a(f"s_lshl_b32 s{sDJ}, s{sDJ}, 2")
    a(f"s_lshr_b32 s{sT2}, s{sT1}, 3")
    a(f"s_add_u32 s{sDJ}, s{sDJ}, s{sT2}")
    a(f"s_mul_i32 s{sCOL}, s{sDJ}, 160")
    a(f"s_mul_i32 s{sXB}, s{sRB}, {64*1280}")
    a(f"s_add_u32 s{sXB}, s{sXB}, s{sCOL}")
    vO = [V() for _ in range(5)]
    for r in range(5):
        a(f"v_add_u32 v{t0}, {64*r}, v{vL}")
        a(f"v_mul_u32_u24 v{t1}, 6554, v{t0}")
        a(f"v_lshrrev_b32 v{t1}, 16, v{t1}")
        a(f"v_mul_u32_u24 v{t2}, 10, v{t1}")
        a(f"v_sub_u32 v{t0}, v{t0}, v{t2}")
        a(f"v_lshlrev_b32 v{t0}, 4, v{t0}")
        a(f"v_mul_u32_u24 v{t1}, 1280, v{t1}")
        a(f"v_add_u32 v{vO[r]}, v{t0}, v{t1}")
    vZ = V()
    a(f"v_lshlrev_b32 v{vZ}, 4, v{vL}")
    PFr = V(96, 4)
    a("s_waitcnt lgkmcnt(0)")
    ST("kernarg")
    p_id = {}; w_id = {}
    a(f"s_mul_i32 s{sT0}, s{sRB}, {4*24*1024}")
    a(f"s_mul_i32 s{sT1}, s{sW}, {24*1024}")
    a(f"s_add_u32 s{sT3}, s{sT0}, s{sT1}")
    a(f"s_add_u32 s{sT3}, s{sT3}, {WS_PF}")
    def dma_w(m):
        a(f"s_mul_i32 s{sT0}, s{sW}, {32*1280}")
        a(f"s_add_u32 s{sT0}, s{sT0}, {m*4*32*1280}")
        a(f"s_add_u32 s{sT0}, s{sT0}, s{sCOL}")
        a(f"s_mul_i32 s{sT1}, s{sW}, 5120")
        for r in range(5):
            a(f"s_add_u32 m0, s{sT1}, {WO + m*4*5120 + r*1024}")
            w_id[m] = a.vmem(f"buffer_load_dwordx4 v{vO[r]}, s[{sWO}:{sWO+3}], s{sT0} offen lds")
    def load_p(ks):
        a(f"s_add_u32 s{sT2}, s{sT3}, {(ks//4)*4096}")
        p_id[ks] = a.vmem(f"buffer_load_dwordx4 v[{PFr+4*ks}:{PFr+4*ks+3}], v{vZ}, s[{sWS}:{sWS+3}], s{sT2} offen offset:{(ks%4)*1024}")
    for m in range(6):
        dma_w(m)
        for ks in range(4*m, 4*m + 4): load_p(ks)
        if m == 0: a("s_barrier")
    lx = a.newlabel("k3_y"); lx2 = a.newlabel("k3_xy")
    a(f"s_cmp_ge_u32 s{sW}, 2")
    a(f"s_cbranch_scc1 {lx}")
    a(f"s_mul_i32 s{sT0}, s{sW}, {32*1280}")
    a(f"s_add_u32 s{sT0}, s{sT0}, s{sXB}")
    a(f"s_mul_i32 s{sT1}, s{sW}, 5120")
    for r in range(5):
        a(f"s_add_u32 m0, s{sT1}, {XT + r*1024}")
        a(f"buffer_load_dwordx4 v{vO[r]}, s[{sX}:{sX+3}], s{sT0} offen lds")
    a(f"s_branch {lx2}")
    a.label(lx)
    a(f"v_lshrrev_b32 v{t0}, 3, v{vL}")
    a(f"v_lshlrev_b32 v{t0}, 12, v{t0}")
    a(f"v_and_b32 v{t1}, 7, v{vL}")
    a(f"v_lshlrev_b32 v{t1}, 4, v{t1}")
    a(f"v_add_u32 v{t0}, v{t0}, v{t1}")
    a(f"s_sub_u32 s{sT2}, s{sW}, 2")
    a(f"s_mul_i32 s{sT0}, s{sT2}, 40")
    a(f"s_mul_i32 s{sT1}, s{sDJ}, 80")
    a(f"s_add_u32 s{sT0}, s{sT0}, s{sT1}")
    a(f"s_lshl_b32 s{sT0}, s{sT0}, 12")
    a(f"s_lshl_b32 s{sT1}, s{sRB}, 7")
    a(f"s_add_u32 s{sT0}, s{sT0}, s{sT1}")
    a(f"s_add_u32 s{sT0}, s{sT0}, {WS_YT}")
    a(f"s_mul_i32 s{sT1}, s{sT2}, 5120")
    for r in range(5):
        a(f"s_add_u32 m0, s{sT1}, {YTL + r*1024}")
        a(f"buffer_load_dwordx4 v{t0}, s[{sWS}:{sWS+3}], s{sT0} offen lds")
        a(f"s_add_u32 s{sT0}, s{sT0}, {8*4096}")
    a.label(lx2)
    a.vm -= 5
    a.vm += 0
    XS = V(2, 2)
    a(f"s_lshl_b32 s{sT0}, s{sRB}, 9")
    a(f"s_lshl_b32 s{sT1}, s{sW}, 7")
    a(f"s_add_u32 s{sT0}, s{sT0}, s{sT1}")
    a(f"s_add_u32 s{sT0}, s{sT0}, {WS_XST}")
    a(f"v_lshlrev_b32 v{t0}, 3, v{vP}")
    xs_id = a.vmem(f"buffer_load_dwordx2 v[{XS}:{XS+1}], v{t0}, s[{sWS}:{sWS+3}], s{sT0} offen")
    vA = [V(), V()]
    a(f"v_lshlrev_b32 v{t0}, 2, v{vQ}")
    a(f"v_lshrrev_b32 v{t1}, 2, v{vP}")
    a(f"v_add_u32 v{t0}, v{t0}, v{t1}")
    a(f"v_mul_u32_u24 v{t0}, 160, v{t0}")
    a(f"v_and_b32 v{t1}, 3, v{vP}")
    a(f"v_lshlrev_b32 v{t1}, 3, v{t1}")
    a(f"v_add_u32 v{vA[0]}, v{t0}, v{t1}")
    a(f"v_add_u32 v{vA[1]}, {12*5120}, v{vA[0]}")
    ACC = V(20, 4)
    AF = V(40, 4)
    def read_a(ks):
        b = ks & 1; ids = []
        base = vA[0] if ks < 12 else vA[1]
        o = WO + (ks % 12)*5120
        for dt in range(5):
            r = AF + (b*5 + dt)*4
            a.ds(f"ds_read_b64_tr_b16 v[{r}:{r+1}], v{base} offset:{o + dt*32}")
            ids.append(a.ds(f"ds_read_b64_tr_b16 v[{r+2}:{r+3}], v{base} offset:{o + 2560 + dt*32}"))
        return ids
    rd = {}
    for m in range(6):
        a.wait_vm(w_id[m])
        a("s_barrier")
        ST(f"m{m}")
        rd[4*m] = read_a(4*m)
        for ks in range(4*m, 4*m + 4):
            if ks + 1 < 4*m + 4: rd[ks+1] = read_a(ks + 1)
            a.wait_vm(p_id[ks])
            b = ks & 1
            for dt in range(5):
                a.wait_lg(rd[ks][dt])
                r = AF + (b*5 + dt)*4
                c = "0" if ks == 0 else f"v[{ACC+4*dt}:{ACC+4*dt+3}]"
                a(f"v_mfma_f32_16x16x32_bf16 v[{ACC+4*dt}:{ACC+4*dt+3}], v[{r}:{r+3}], v[{PFr+4*ks}:{PFr+4*ks+3}], {c}")
    ST("loop")
    a("s_waitcnt vmcnt(0)")
    a("s_barrier")
    XV = AF; YV = AF + 10
    a(f"s_lshl_b32 s{sT0}, s{sW}, 4")
    a(f"v_add_u32 v{t0}, s{sT0}, v{vP}")
    a(f"v_mul_u32_u24 v{t0}, 160, v{t0}")
    a(f"v_lshlrev_b32 v{t1}, 3, v{vQ}")
    vXA = V()
    a(f"v_add_u32 v{vXA}, v{t0}, v{t1}")
    for dt in range(5):
        a.ds(f"ds_read_b64 v[{XV+2*dt}:{XV+2*dt+1}], v{vXA} offset:{XT % 65536 + dt*32}") if False else None
    vX2 = V()
    a(f"v_add_u32 v{vX2}, {XT}, v{vXA}")
    for dt in range(5):
        a.ds(f"ds_read_b64 v[{XV+2*dt}:{XV+2*dt+1}], v{vX2} offset:{dt*32}")
    a(f"v_lshlrev_b32 v{t0}, 2, v{vQ}")
    a(f"v_lshrrev_b32 v{t1}, 2, v{vP}")
    a(f"v_add_u32 v{t0}, v{t0}, v{t1}")
    a(f"v_lshlrev_b32 v{t0}, 7, v{t0}")
    a(f"v_and_b32 v{t1}, 3, v{vP}")
    a(f"v_lshlrev_b32 v{t1}, 3, v{t1}")
    a(f"v_add_u32 v{t0}, v{t0}, v{t1}")
    a(f"s_lshl_b32 s{sT0}, s{sW}, 5")
    a(f"s_add_u32 s{sT0}, s{sT0}, {YTL}")
    a(f"v_add_u32 v{t0}, s{sT0}, v{t0}")
    for dt in range(5):
        a.ds(f"ds_read_b64_tr_b16 v[{YV+2*dt}:{YV+2*dt+1}], v{t0} offset:{dt*2048}")
    a("s_waitcnt lgkmcnt(0)")
    T = AF + 20
    sL = 46
    a(f"s_mov_b32 s{sL}, {f32(-LOG2E):#x}")
    OV = PFr
    for dt in range(5):
        for pr in range(2):
            b0 = ACC + 4*dt + 2*pr
            xr = XV + 2*dt + pr; yr = YV + 2*dt + pr
            x0, x1, y0, y1, e0, e1 = T, T+1, T+2, T+3, T+4, T+5
            a(f"v_lshlrev_b32 v{x0}, 16, v{xr}")
            a(f"v_and_b32 v{x1}, 0xffff0000, v{xr}")
            a(f"v_lshlrev_b32 v{y0}, 16, v{yr}")
            a(f"v_and_b32 v{y1}, 0xffff0000, v{yr}")
            a(f"v_mul_f32 v{e0}, s{sL}, v{b0}")
            a(f"v_mul_f32 v{e1}, s{sL}, v{b0+1}")
            a(f"v_exp_f32 v{e0}, v{e0}")
            a(f"v_exp_f32 v{e1}, v{e1}")
            a(f"v_add_f32 v{e0}, 1.0, v{e0}")
            a(f"v_add_f32 v{e1}, 1.0, v{e1}")
            a(f"v_rcp_f32 v{e0}, v{e0}")
            a(f"v_rcp_f32 v{e1}, v{e1}")
            a(f"v_mul_f32 v{e0}, v{e0}, v{b0}")
            a(f"v_mul_f32 v{e1}, v{e1}, v{b0+1}")
            for (xx, yy, ee) in ((x0, y0, e0), (x1, y1, e1)):
                n = T + 6
                a(f"v_sub_f32 v{n}, v{xx}, v{XS}")
                a(f"v_mul_f32 v{n}, v{n}, v{XS+1}")
                a(f"v_mul_f32 v{n}, v{n}, v{yy}")
                a(f"v_fma_f32 v{xx}, v{n}, v{ee}, v{xx}")
            a(f"v_cvt_pk_bf16_f32 v{OV + 2*dt + pr}, v{x0}, v{x1}")
    vOW = V()
    a(f"v_add_u32 v{vOW}, {OT}, v{vXA}")
    for dt in range(5):
        a.ds(f"ds_write_b64 v{vOW}, v[{OV+2*dt}:{OV+2*dt+1}] offset:{dt*32}")
    a("s_waitcnt lgkmcnt(0)")
    a(f"s_mul_i32 s{sT0}, s{sW}, 2560")
    a(f"s_add_u32 s{sT0}, s{sT0}, {OT}")
    a(f"v_add_u32 v{t0}, s{sT0}, v{vZ}")
    for r in range(3):
        a.ds(f"ds_read_b128 v[{T+4*r}:{T+4*r+3}], v{t0} offset:{r*1024}")
    a(f"s_mul_i32 s{sT0}, s{sW}, {16*1280}")
    a(f"s_add_u32 s{sT0}, s{sT0}, s{sXB}")
    a("s_waitcnt lgkmcnt(0)")
    for r in range(3):
        if r == 2: a(f"s_mov_b32 exec_hi, 0")
        a.vmem(f"buffer_store_dwordx4 v[{T+4*r}:{T+4*r+3}], v{vO[r]}, s[{sOUT}:{sOUT+3}], s{sT0} offen")
    a(f"s_mov_b64 exec, -1")
    ST("end")
    ST.dump(sWS, sW, t0, t1, WS_DBG + 0x600000)
    gen_k3.stamp_names = ST.names
    a.label(f"{name}_end")
    a("s_endpgm")
    return a.finish(), V.hi
```

```python
KA = dict(q=0, k=8, v=16, shk=24, ssmk=32, ssmD=40, bx=48, win=56, wsp=64, bsp=72, wout=80, out=88, dbg=96, ws=104)
S, D, F, FH = 2048, 640, 1536, 768
SZ_X = S * D * 2
SZ_WIN = D * F * 2
SZ_WSP = S * S * 2
SZ_WOUT = FH * D * 2
SZ_SSMK = D * S * 2
WS_Z2F = 0x000000
WS_Z1F = 0x300000
WS_KVT = 0x600000
WS_YT  = 0x880000
WS_PF  = 0xB00000
WS_XST = 0xE00000
WS_EPO = 0xE08000
WS_F1  = 0xE09000
WS_F2  = 0xE0A000
WS_F4  = 0xE0B000
WS_F5  = 0xE0C000
WS_ZST = 0xE10000
WS_WOF = 0xE50000
WS_END = 0xF40000
SRD3 = 0x00020000
WS_DBG = 0x1000000
WS_SIZE_DBG = 0x1800000
```

```python
import sys
sys.path.insert(0, 'gen')
from dsl import *
from layout import *
import k1
def build(kernels, path):
    hdr = open('recurrent_scan__ssm_conv_h3__mixer_gmlp__prompt.s.ref').read().split("; Override launch geometry")[0]
    out = hdr
    texts = []; descs = []
    for (name, grid, block, lds, text, vg) in kernels:
        out += f"; @launch kernel={name} grid=({grid},1,1) block=({block},1,1) lds={lds}\n"
        texts.append(text); descs.append(kernel_desc(name, vg))
    out += '.amdgcn_target "amdgcn-amd-amdhsa--gfx950"\n.text\n'
    out += "\n".join(texts)
    out += '.section .rodata,"a"\n' + "".join(descs)
    open(path, 'w').write(out)
if __name__ == "__main__":
    which = sys.argv[1] if len(sys.argv) > 1 else "all"
    path = sys.argv[2] if len(sys.argv) > 2 else "cur.s"
    ks = []
    prof = "--prof" in sys.argv
    t, vg = k1.gen_k1(prof=prof, diag=int(__import__('os').environ.get('DIAG', '0'))); print("k1 vgprs", vg); ks.append(("k1_kernel", 256, 512, 163840, t, max(vg, 8)))
    if which != "k1":
        import k2
        t, vg = k2.gen_k2(prof=prof); print("k2 vgprs", vg); ks.append(("k2_kernel", 512, 256, 81920, t, vg))
    if which == "all":
        import k3
        t, vg = k3.gen_k3(prof=prof); print("k3 vgprs", vg); ks.append(("k3_kernel", 256, 256, k3.LDS, t, vg))
    build(ks, path)
    if prof:
        import json
        d = {'k1': k1.gen_k1.stamp_names}
        if which != 'k1': d.update(k2.gen_k2.stamp_names)
        if which == 'all': d['k3'] = k3.gen_k3.stamp_names
        json.dump(d, open(path + '.stamps.json', 'w'))
```

```python
import re, os

def vr(a, n=1):
    return f"v{a}" if n == 1 else f"v[{a}:{a+n-1}]"
def sr(a, n=1):
    return f"s{a}" if n == 1 else f"s[{a}:{a+n-1}]"
def ar(a, n=1):
    return f"a{a}" if n == 1 else f"a[{a}:{a+n-1}]"

_REG = re.compile(r"^(-|abs\()?([vsa])(\d+)\)?$")
_RNG = re.compile(r"^(-)?([vsa])\[(\d+):(\d+)\]$")

def parse_reg(tok):
    tok = tok.strip()
    m = _REG.match(tok)
    if m: return [(m.group(2), int(m.group(3)))]
    m = _RNG.match(tok)
    if m: return [(m.group(2), i) for i in range(int(m.group(3)), int(m.group(4)) + 1)]
    if tok == "vcc": return [("s", "vcc")]
    if tok == "exec": return [("s", "exec")]
    if tok == "m0": return [("s", "m0")]
    if tok in ("vcc_lo", "vcc_hi"): return [("s", "vcc")]
    return []

TRANS = ("v_exp_f32", "v_log_f32", "v_rcp_f32", "v_rsq_f32", "v_sqrt_f32", "v_sin_f32", "v_cos_f32")

class Ins:
    __slots__ = ("text", "op", "kind", "rd", "wr", "dpp", "passes", "cregs", "storedata", "nop", "lds_dma", "sgpr_const")
    def __init__(self, text):
        self.text = text
        body = text.split(";")[0].strip()
        parts = body.split(None, 1)
        self.op = parts[0]
        rest = parts[1] if len(parts) > 1 else ""
        ops = []; depth = 0; cur = ""
        for ch in rest:
            if ch == "[": depth += 1
            if ch == "]": depth -= 1
            if ch == "," and depth == 0: ops.append(cur.strip()); cur = ""
            else: cur += ch
        if cur.strip(): ops.append(cur.strip())
        mods = ""
        clean = []
        for o in ops:
            t = o.split()
            clean.append(t[0] if t else "")
            if len(t) > 1: mods += " " + " ".join(t[1:])
        ops = clean
        self.rd = []; self.wr = []; self.dpp = False; self.passes = 0; self.cregs = []; self.storedata = []
        self.nop = 1; self.lds_dma = False
        op = self.op
        R = lambda i: parse_reg(ops[i]) if i < len(ops) else []
        if op == "s_nop":
            self.kind = "nop"; self.nop = int(ops[0], 0) + 1
        elif op.startswith("v_mfma"):
            self.kind = "mfma"
            self.wr = R(0); self.rd = R(1) + R(2) + R(3); self.cregs = R(3)
            self.passes = 8 if "32x32x16" in op else 4 if "16x16x32" in op else None
            assert self.passes
        elif op.startswith("v_cmp"):
            self.kind = "valu"; self.wr = R(0); self.rd = R(1) + R(2)
        elif op.startswith("v_readfirstlane") or op.startswith("v_readlane"):
            self.kind = "valu"; self.wr = R(0); self.rd = R(1) + R(2)
        elif op.startswith("v_permlane"):
            self.kind = "valu"; self.wr = R(0) + R(1); self.rd = R(0) + R(1)
        elif op.startswith("v_"):
            self.kind = "valu"
            self.wr = R(0)
            k = 1
            if op.startswith(("v_add_co", "v_sub_co", "v_addc_co", "v_subb_co")):
                self.wr += R(1); k = 2
            for i in range(k, len(ops)): self.rd += R(i)
            if op.startswith(("v_fmac", "v_dot2c", "v_pk_fmac")): self.rd += R(0)
            if "cndmask" in op and len(ops) == 3: self.rd += [("s", "vcc")]
            if "_dpp" in op or "quad_perm" in mods or "row_" in mods or "wave_" in mods:
                self.dpp = True
                self.rd += R(0)
        elif op.startswith(("buffer_load", "global_load")):
            self.kind = "vmem"
            if " lds" in (" " + body + " "):
                self.lds_dma = True
                for i in range(len(ops)): self.rd += R(i)
                self.rd += [("s", "m0")]
            else:
                self.wr = R(0)
                for i in range(1, len(ops)): self.rd += R(i)
        elif op.startswith(("buffer_store", "buffer_atomic", "global_store", "global_atomic")):
            self.kind = "vmem"
            for i in range(len(ops)): self.rd += R(i)
            if op.startswith("buffer_"):
                d = R(0)
            else:
                d = R(1)
            if len(d) >= 3: self.storedata = d
            if "atomic" in op and "sc0" in mods: self.wr = R(0)
        elif op.startswith("ds_"):
            self.kind = "ds"
            if op.startswith(("ds_read", "ds_bpermute", "ds_permute", "ds_swizzle")):
                self.wr = R(0)
                for i in range(1, len(ops)): self.rd += R(i)
            else:
                for i in range(len(ops)): self.rd += R(i)
        elif op.startswith("s_"):
            self.kind = "salu"
            if op.startswith(("s_cmp", "s_cbranch", "s_branch", "s_waitcnt", "s_barrier", "s_endpgm", "s_sleep", "s_setprio", "s_bitcmp")):
                for i in range(len(ops)): self.rd += R(i)
            else:
                self.wr = R(0)
                for i in range(1, len(ops)): self.rd += R(i)
                if "saveexec" in op: self.wr += [("s", "exec")]
        else:
            raise ValueError("unknown op " + text)

def required_gap(p, c):
    need = 0
    pw = set(p.wr)
    X = os.environ.get("HZX", "")
    if "A" in X and p.op in TRANS and c.kind == "mfma": need = max(need, 4)
    if "B" in X and p.op.startswith("v_dot2") and c.op.startswith("v_pk_"): need = max(need, 2)
    if "C" in X and p.kind == "mfma" and c.op in TRANS: need = max(need, 3)
    if "D" in X and p.op.startswith("v_dot2") and c.op in TRANS: need = max(need, 2)
    assert not (p.op.startswith("v_pk_") and " op_sel:" in p.text), p.text
    if "E" in X and p.op.startswith("v_pk_") and c.kind == "mfma": need = max(need, 2)
    if "F" in X and p.op in TRANS and c.op.startswith("v_dot2"): need = max(need, 4)
    if p.kind == "valu":
        vw = {r for r in pw if r[0] in "va"}
        sw = {r for r in pw if r[0] == "s"}
        if c.kind == "mfma" and vw & set(c.rd): need = max(need, 2)
        if c.kind == "valu":
            if c.dpp and vw & set(c.rd): need = max(need, 2)
            if c.op.startswith("v_permlane") and vw & set(c.rd): need = max(need, 2)
            if c.op.startswith(("v_readfirstlane", "v_readlane")) and vw & set(c.rd): need = max(need, 1)
            if p.op in TRANS and vw & set(c.rd) : need = max(need, 1)
            if sw & set(c.rd):
                need = max(need, 4 if c.op.startswith(("v_readlane", "v_writelane")) else 2)
            if ("s", "exec") in sw: need = max(need, 5 if c.dpp else 4)
        if c.kind == "vmem" and sw & set(c.rd): need = max(need, 5)
        if c.kind == "mfma" and ("s", "exec") in sw: need = max(need, 4)
        if c.kind == "salu" and sw & set(c.rd): need = max(need, 1)
    if p.kind == "valu" and p.op.startswith("v_dot2"):
        d = set(p.wr)
        if d & (set(c.rd) | set(c.wr)):
            same_c = (c.op == p.op and c.text.split(",")[-1].strip().split()[0] == p.text.split(",")[0].split()[-1].strip()
                      and sum(1 for r in c.rd if r in d) == 1)
            if not same_c: need = max(need, 3)
    if p.kind == "mfma":
        d = set(p.wr)
        big = {4: 8, 8: 12}[p.passes]
        if c.kind == "mfma":
            ab = set(c.rd) - set(c.cregs) if False else None
            cab = [r for r in c.rd if r not in c.cregs]
            if d & set(cab): need = max(need, big)
            cc = set(c.cregs)
            if d & cc:
                if list(c.cregs) == list(p.wr) and c.passes == p.passes: pass
                else: need = max(need, {4: 6, 8: 10}[p.passes])
            if d & set(c.wr) and list(c.wr) != list(p.wr): need = max(need, big)
        elif c.kind in ("valu", "vmem", "ds"):
            if d & set(c.rd) or d & set(c.wr): need = max(need, big)
        if c.kind == "valu" and set(p.cregs) & set(c.wr): need = max(need, {4: 3, 8: 7}[p.passes])
    if p.kind == "vmem" and p.storedata:
        if set(p.storedata) & set(c.wr): need = max(need, 2)
    if p.kind == "salu" and ("s", "m0") in pw and (c.lds_dma): need = max(need, 1)
    return need

class Asm:
    def __init__(self):
        self.items = []
        self.vm = 0
        self.lg = 0
        self.uid = 0
    def __call__(self, text):
        for line in text.strip().split("\n"):
            line = line.strip()
            if not line: continue
            if line.startswith(";"): self.items.append(("c", line)); continue
            if line.endswith(":"): self.items.append(("l", line[:-1])); continue
            op = line.split()[0]
            STF = os.environ.get("STFLAG", "")
            if STF and op.startswith("buffer_store") and " sc1" not in line and " sc0" not in line: line = line + " " + STF
            self.items.append(("i", line))
            if op.startswith(("buffer_", "global_")) and not op.startswith(("buffer_inv", "buffer_wbl2")): self.vm += 1
            if op.startswith("ds_"): self.lg += 1
        return self
    def vmem(self, text):
        self(text); return self.vm - 1
    def ds(self, text):
        self(text); return self.lg - 1
    def wait_vm(self, idx):
        n = self.vm - idx - 1
        assert n >= 0
        self(f"s_waitcnt vmcnt({min(n, 63)})")
    def wait_lg(self, idx):
        n = self.lg - idx - 1
        assert n >= 0
        self(f"s_waitcnt lgkmcnt({min(n, 15)})")
    def label(self, name): self.items.append(("l", name))
    def newlabel(self, base="L"):
        self.uid += 1; return f"{base}_{self.uid}"
    def comment(self, t): self.items.append(("c", "; " + t))
    def raw(self, t): self.items.append(("r", t))
    def finish(self, window=24):
        out = []; hist = []
        for kind, t in self.items:
            if kind == "c": out.append("    " + t); continue
            if kind == "r": out.append(t); hist = []; continue
            if kind == "l":
                out.append(t + ":")
                continue
            ins = Ins(t)
            need_extra = 0
            dist = 0
            for p in reversed(hist[-window:]):
                g = required_gap(p, ins)
                if g > dist: need_extra = max(need_extra, g - dist)
                dist += p.nop
                if dist > 20: break
            while need_extra > 0:
                k = min(need_extra, 16)
                nop = Ins(f"s_nop {k-1}")
                out.append(f"    s_nop {k-1}"); hist.append(nop); need_extra -= k
            out.append("    " + t); hist.append(ins)
        return "\n".join(out) + "\n"

class Stamps:
    def __init__(self, a, base=70, enabled=False):
        self.a = a; self.base = base; self.n = 0; self.enabled = enabled; self.names = []
    def __call__(self, name):
        if not self.enabled: return
        a = self.a
        if os.environ.get("RT"): a(f"s_memrealtime s[68:69]")
        else: a(f"s_memtime s[68:69]")
        a("s_waitcnt lgkmcnt(0)")
        a(f"s_mov_b32 s{self.base + self.n}, s68")
        self.names.append(name); self.n += 1
        assert self.base + self.n <= 101
    def dump(self, srd, sWave, vt0, vt1, off):
        if not self.enabled: return
        a = self.a
        a(f"s_lshl_b32 s68, s2, 4")
        a(f"s_add_u32 s68, s68, s{sWave}")
        a(f"s_lshl_b32 s68, s68, 7")
        a(f"s_add_u32 s68, s68, {off}")
        a(f"v_mov_b32 v{vt0}, 0")
        a(f"s_mov_b64 exec, 1")
        for i in range(self.n):
            a(f"v_mov_b32 v{vt1}, s{self.base + i}")
            a(f"buffer_store_dword v{vt1}, v{vt0}, s[{srd}:{srd+3}], s68 offen offset:{4*i}")
            a("s_nop 1")
        a(f"s_mov_b64 exec, -1")

class Alloc:
    def __init__(self, start=0, limit=256, name="v"):
        self.next = start; self.limit = limit; self.name = name; self.hi = start
    def __call__(self, n=1, align=None):
        if align is None: align = 2 if n >= 2 else 1
        if self.name == "s" and n >= 4 and align < 4: align = 4
        a = (self.next + align - 1) // align * align
        self.next = a + n
        if os.environ.get("ALLOCDBG"): print("alloc", self.name, a, n)
        assert self.next <= self.limit, f"out of {self.name} regs: {self.next} > {self.limit}"
        self.hi = max(self.hi, self.next)
        return a
    def mark(self): return self.next
    def reset(self, m): self.next = m

def kernel_desc(name, vgpr, sgpr=102, accum=None):
    if accum is None: accum = (vgpr + 3) // 4 * 4
    return f""".p2align 6
.amdhsa_kernel {name}
  .amdhsa_next_free_vgpr {vgpr}
  .amdhsa_next_free_sgpr {sgpr}
  .amdhsa_accum_offset {accum}
  .amdhsa_group_segment_fixed_size 0
  .amdhsa_kernarg_size 112
  .amdhsa_user_sgpr_count 2
  .amdhsa_user_sgpr_kernarg_segment_ptr 1
  .amdhsa_system_sgpr_workgroup_id_x 1
.end_amdhsa_kernel
"""
```

```python
from dsl import *
from layout import *
import os, struct

XR = 0; WR = 81920; SLOT = 24576
MISC = 155648
CSUM = MISC
XSUM = MISC + 3072
ZSUM = MISC + 4096
SHKL = MISC + 5120
EX = 16384
TB = 0
ZT = 0
C1 = 2.302208198144325
C2 = C1 * 0.044715

def f32(x): return struct.unpack("<I", struct.pack("<f", x))[0]
def P(r): return f"v[{r}:{r+1}]"

def pkop(a, kind, d, x, y, z=None, pk=True, bcast_y=False, neg_y=False, ys=None, zs=None):
    if pk:
        yo = f"s[{ys}:{ys+1}]" if ys is not None else P(y)
        mods = ""
        n = 3 if kind == "fma" else 2
        if bcast_y: mods += " op_sel_hi:[1,0" + (",1" if n == 3 else "") + "]"
        if neg_y: mods += " neg_lo:[0,1" + (",0" if n == 3 else "") + "] neg_hi:[0,1" + (",0" if n == 3 else "") + "]"
        if kind == "fma": a(f"v_pk_fma_f32 {P(d)}, {P(x)}, {yo}, {P(z)}{mods}")
        else: a(f"v_pk_{kind}_f32 {P(d)}, {P(x)}, {yo}{mods}")
        yield
    else:
        for h in range(2):
            yo = f"s{ys}" if ys is not None else f"v{y + (0 if bcast_y else h)}"
            if neg_y: yo = "-" + yo
            if kind == "fma": a(f"v_fma_f32 v{d+h}, v{x+h}, {yo}, v{z+h}")
            elif kind == "mul":
                if ys is not None: a(f"v_mul_f32 v{d+h}, {yo}, v{x+h}")
                else: a(f"v_mul_f32 v{d+h}, v{x+h}, {yo}")
            else:
                if neg_y: a(f"v_sub_f32 v{d+h}, v{x+h}, {yo[1:]}")
                else: a(f"v_add_f32 v{d+h}, v{x+h}, {yo}")
            yield

def reduce_g4_multi(a, xs, ts):
    for op in ("v_permlane16_swap_b32", "v_permlane32_swap_b32"):
        for x, t in zip(xs, ts): a(f"v_mov_b32 v{t}, v{x}"); yield
        for x, t in zip(xs, ts): a(f"{op} v{x}, v{t}"); yield
        for x, t in zip(xs, ts): a(f"v_add_f32 v{x}, v{x}, v{t}"); yield

def ln_finish_gen(a, mean, var, sEps):
    a(f"v_max_f32 v{var}, 0, v{var}"); yield
    a(f"v_cvt_pk_bf16_f32 v{var}, v{var}, v{mean}"); yield
    a(f"v_and_b32 v{mean}, 0xffff0000, v{var}"); yield
    a(f"v_lshlrev_b32 v{var}, 16, v{var}"); yield
    a(f"v_add_f32 v{var}, s{sEps}, v{var}"); yield
    a(f"v_cvt_pk_bf16_f32 v{var}, v{var}, v{var}"); yield
    a(f"v_and_b32 v{var}, 0xffff0000, v{var}"); yield
    a(f"v_sqrt_f32 v{var}, v{var}"); yield
    a(f"v_cvt_pk_bf16_f32 v{var}, v{var}, v{var}"); yield
    a(f"v_and_b32 v{var}, 0xffff0000, v{var}"); yield
    a(f"v_rcp_f32 v{var}, v{var}"); yield

def run(gen):
    for _ in gen: pass

class Filler:
    def __init__(self): self.q = []
    def add(self, g): self.q.append(g)
    def step(self, n=1):
        for _ in range(n):
            while self.q:
                try:
                    next(self.q[0]); break
                except StopIteration:
                    self.q.pop(0)
    def drain(self):
        while self.q:
            run(self.q.pop(0))

def mask(a, n):
    if n >= 64: a("s_mov_b64 exec, -1")
    elif n > 32:
        a("s_mov_b32 exec_lo, -1"); a(f"s_mov_b32 exec_hi, {(1 << (n-32)) - 1:#x}")
    elif n == 32:
        a("s_mov_b32 exec_lo, -1"); a("s_mov_b32 exec_hi, 0")
    else: a(f"s_mov_b64 exec, {(1 << n) - 1:#x}")

def gen_k1(name="k1_kernel", prof=False):
    K1X = os.environ.get("K1X", "")
    a = Asm()
    ST = Stamps(a, enabled=prof)
    WSZ = WS_SIZE_DBG if prof else WS_END
    V = Alloc(1, 256, "v")
    sX, sWIN, sK, sV, sSHK, sWS, sDBG, sWSP, sSSM = 4, 8, 12, 16, 20, 24, 28, 32, 36
    sRB, sJ, sW, sFH, sSH, sKH, sST0, sST = 40, 41, 42, 43, 44, 45, 46, 47
    sT0, sT1, sT2, sT3 = 48, 49, 50, 51
    sXOFF, sWOFF2, sWOFF1 = 52, 53, 54
    sEPS, sONES, sU = 55, 56, 57
    sNC2 = 58
    sM0X, sM0W = 60, 61
    sZ1B, sKKA, sKKB, sD0 = 62, 63, 64, 65
    sXC, sH = 66, 67
    a.raw(f".globl {name}\n.p2align 8\n.type {name},@function\n{name}:")
    a(f"s_cmp_ge_u32 s2, 256")
    a(f"s_cbranch_scc1 {name}_end")
    srds = ((sX, 'q', SZ_X), (sWIN, 'win', SZ_WIN), (sK, 'k', SZ_X), (sV, 'v', SZ_X), (sSHK, 'shk', 5120), (sWS, 'ws', WSZ),
            (sDBG, 'dbg', 256), (sWSP, 'wsp', SZ_WSP), (sSSM, 'ssmk', SZ_SSMK))
    for srd, key, _ in srds:
        a(f"s_load_dwordx2 s[{srd}:{srd+1}], s[0:1], {KA[key]}")
    ST("start")
    vL = V(); vQ = V(); vP = V()
    t0, t1, t2 = V(), V(), V()
    vKV = V()
    a(f"v_lshrrev_b32 v{vQ}, 6, v0")
    a(f"v_and_b32 v{vL}, 63, v0")
    a(f"v_readfirstlane_b32 s{sW}, v{vQ}")
    for srd, _, size in srds:
        a(f"s_mov_b32 s{srd+2}, {size}")
        a(f"s_mov_b32 s{srd+3}, {SRD3:#x}")
    a(f"s_and_b32 s{sT0}, s2, 7")
    a(f"s_lshr_b32 s{sT1}, s2, 3")
    a(f"s_lshr_b32 s{sXC}, s{sT0}, 1")
    a(f"s_and_b32 s{sH}, s{sT0}, 1")
    a(f"s_lshl_b32 s{sU}, s{sT1}, 3")
    a(f"s_add_u32 s{sU}, s{sU}, s{sW}")
    TMP = V(28, 4)
    vTO = V()
    vDummy = V()
    a(f"v_lshrrev_b32 v{t0}, 2, v{vL}")
    a(f"s_lshl_b32 s{sT2}, s{sU}, 1")
    a(f"v_add_u32 v{t0}, s{sT2}, v{t0}")
    a(f"v_mul_u32_u24 v{t0}, 1280, v{t0}")
    a(f"v_and_b32 v{t1}, 3, v{vL}")
    a(f"v_lshl_add_u32 v{t0}, v{t1}, 7, v{t0}")
    a(f"s_mul_i32 s{sT2}, s{sU}, 3072")
    a(f"s_sub_u32 s{sT2}, s{sT2}, 1024")
    a(f"v_lshl_add_u32 v{t1}, v{vL}, 7, s{sT2}")
    a(f"v_cmp_gt_u32 vcc, 8, v{vL}")
    a(f"v_cndmask_b32 v{vTO}, v{t1}, v{t0}, vcc")
    sTXB, sTWB, sTKB = 70 - 70 + 86, 87, 88
    a(f"s_mul_i32 s{sTXB}, s{sXC}, {512*1280}")
    a(f"s_mul_i32 s{sTWB}, s{sH}, 768")
    a(f"s_mul_i32 s{sTKB}, s{sH}, 640")
    a(f"s_add_u32 s{sTKB}, s{sTKB}, s{sTXB}")
    def touch_x(g):
        if "notouch" in K1X: return
        a(f"s_add_u32 s{sT0}, s{sTXB}, {g*512}")
        mask(a, 8)
        a.vmem(f"buffer_load_dword v{vDummy}, v{vTO}, s[{sX}:{sX+3}], s{sT0} offen")
        mask(a, 64)
    def touch_w(g, z2):
        if "notouch" in K1X: return
        a(f"s_add_u32 s{sT0}, s{sTWB}, {g*256*3072 + (1536 if z2 else 0)}")
        a(f"s_mov_b64 exec, 0x3f00")
        a.vmem(f"buffer_load_dword v{vDummy}, v{vTO}, s[{sWIN}:{sWIN+3}], s{sT0} offen")
        mask(a, 64)
    def touch_kv():
        if "notouch" in K1X: return
        a(f"s_mul_i32 s{sT2}, s{sU}, 10")
        a(f"v_add_u32 v{t0}, s{sT2}, v{vL}")
        a(f"v_mul_u32_u24 v{t1}, 52429, v{t0}")
        a(f"v_lshrrev_b32 v{t1}, 18, v{t1}")
        a(f"v_mul_u32_u24 v{t2}, 5, v{t1}")
        a(f"v_sub_u32 v{t0}, v{t0}, v{t2}")
        a(f"v_lshlrev_b32 v{t0}, 7, v{t0}")
        a(f"v_mul_u32_u24 v{t1}, 1280, v{t1}")
        a(f"v_add_u32 v{t0}, v{t0}, v{t1}")
        mask(a, 10)
        a.vmem(f"buffer_load_dword v{vDummy}, v{t0}, s[{sK}:{sK+3}], s{sTKB} offen")
        a.vmem(f"buffer_load_dword v{vDummy}, v{t0}, s[{sV}:{sV+3}], s{sTKB} offen")
        mask(a, 64)
    a(f"s_lshl_b32 s{sRB}, s{sXC}, 3")
    a(f"s_and_b32 s{sT0}, s{sT1}, 7")
    a(f"s_add_u32 s{sRB}, s{sRB}, s{sT0}")
    a(f"s_lshl_b32 s{sJ}, s{sH}, 2")
    a(f"s_lshr_b32 s{sT0}, s{sT1}, 3")
    a(f"s_add_u32 s{sJ}, s{sJ}, s{sT0}")
    a(f"s_mul_i32 s{sXOFF}, s{sRB}, {64*1280}")
    a(f"s_mul_i32 s{sWOFF1}, s{sJ}, 192")
    a(f"s_add_u32 s{sWOFF2}, s{sWOFF1}, {768*2}")
    a(f"s_lshl_b32 s{sM0X}, s{sW}, 11")
    a(f"s_mul_i32 s{sM0W}, s{sW}, 3072")
    a(f"v_lshrrev_b32 v{vQ}, 4, v{vL}")
    a(f"v_and_b32 v{vP}, 15, v{vL}")
    a("s_waitcnt lgkmcnt(0)")
    ST("kernarg")
    vEP = TMP + 26
    a(f"v_mov_b32 v{t0}, {WS_EPO}")
    ep_id = a.vmem(f"buffer_load_dwordx2 {P(vEP)}, v{t0}, s[{sWS}:{sWS+3}], 0 offen sc1")
    touch_x(0); touch_w(0, True)
    if "t3" in K1X: touch_x(1); touch_w(1, True); touch_x(2); touch_w(2, True)
    if "pro" in K1X: ST("t0")
    vXD = [V(), V()]
    a(f"s_lshl_b32 s{sT0}, s{sW}, 3")
    for i in range(2):
        a(f"v_add_u32 v{t0}, s{sT0}, v{vQ}")
        if i: a(f"v_add_u32 v{t0}, 4, v{t0}")
        a(f"v_and_b32 v{t1}, 15, v{t0}")
        a(f"v_xor_b32 v{t1}, v{t1}, v{vP}")
        a(f"v_lshlrev_b32 v{t1}, 4, v{t1}")
        a(f"v_mul_u32_u24 v{t0}, 1280, v{t0}")
        a(f"v_add_u32 v{vXD[i]}, v{t0}, v{t1}")
    sSCX = [90, 91, 92, 93, 94]; sSCW = [95, 96, 97, 98, 99]
    a(f"s_add_u32 s{sT0}, s{sRB}, s{sJ}")
    a(f"s_mul_i32 s{sT1}, s{sT0}, 52")
    a(f"s_lshr_b32 s{sT1}, s{sT1}, 8")
    a(f"s_mul_i32 s{sT1}, s{sT1}, 5")
    a(f"s_sub_u32 s{sT0}, s{sT0}, s{sT1}")
    if "norot" in K1X: a(f"s_mov_b32 s{sT0}, 0")
    for p_ in range(5):
        a(f"s_add_u32 s{sT1}, s{sT0}, {p_}")
        a(f"s_sub_u32 s{sT2}, s{sT1}, 5")
        a(f"s_cmp_ge_u32 s{sT1}, 5")
        a(f"s_cselect_b32 s{sT1}, s{sT2}, s{sT1}")
        a(f"s_lshl_b32 s{sSCX[p_]}, s{sT1}, 8")
        a(f"s_mul_i32 s{sSCW[p_]}, s{sT1}, {128*3072}")
    x_last = {}; w_last = {}
    if "nobar" not in K1X: a("s_barrier")
    def dma_x_g(sc):
        for i in range(2):
            a(f"s_add_u32 s{sD0}, s{sXOFF}, s{sSCX[sc]}")
            a(f"s_add_u32 m0, s{sM0X}, {XR + sc*16384 + i*1024}")
            x_last[sc] = a.vmem(f"buffer_load_dwordx4 v{vXD[i]}, s[{sX}:{sX+3}], s{sD0} offen lds")
            yield
    def wbase(q): return WR + (q % 3)*SLOT
    def dma_w_g(q):
        sc = q % 5
        for i in range(3):
            a(f"s_add_u32 s{sD0}, s{sWOFF2 if q < 5 else sWOFF1}, s{sSCW[sc]}")
            a(f"s_add_u32 m0, s{sM0W}, {wbase(q) + i*1024}")
            w_last[q] = a.vmem(f"buffer_load_dwordx4 v{vWD[i]}, s[{sWIN}:{sWIN+3}], s{sD0} offen lds")
            yield
    def dma_x(sc): run(dma_x_g(sc))
    def dma_w(q): run(dma_w_g(q))
    dma_x(0)
    if "pro" in K1X: ST("x0")
    vWD = [V(), V(), V()]
    a(f"s_mul_i32 s{sT0}, s{sW}, 192")
    for i in range(3):
        a(f"v_add_u32 v{t0}, s{sT0}, v{vL}")
        if i: a(f"v_add_u32 v{t0}, {64*i}, v{t0}")
        a(f"v_mul_u32_u24 v{t1}, 43691, v{t0}")
        a(f"v_lshrrev_b32 v{t1}, 19, v{t1}")
        a(f"v_mul_u32_u24 v{t2}, 12, v{t1}")
        a(f"v_sub_u32 v{t0}, v{t0}, v{t2}")
        a(f"v_lshrrev_b32 v{t2}, 2, v{t1}")
        a(f"v_and_b32 v{t2}, 2, v{t2}")
        a(f"v_xor_b32 v{t0}, v{t0}, v{t2}")
        a(f"v_lshlrev_b32 v{t0}, 4, v{t0}")
        a(f"v_mul_u32_u24 v{t1}, 3072, v{t1}")
        a(f"v_add_u32 v{vWD[i]}, v{t0}, v{t1}")
    dma_w(0)
    if "pro" in K1X: ST("w0")
    if "t3" not in K1X: touch_x(1); touch_w(1, True)
    if "nobar" not in K1X: a("s_barrier")
    lab = a.newlabel("k1_shk")
    a(f"s_cmp_lg_u32 s{sW}, 7")
    a(f"s_cbranch_scc1 {lab}")
    a(f"v_lshlrev_b32 v{t0}, 4, v{vL}")
    a(f"s_mul_i32 s{sT0}, s{sJ}, 640")
    a(f"s_mov_b32 m0, {SHKL}")
    mask(a, 40)
    a(f"buffer_load_dwordx4 v{t0}, s[{sSHK}:{sSHK+3}], s{sT0} offen lds")
    a.vm -= 1
    mask(a, 64)
    a.label(lab)
    dma_x(1); dma_w(1)
    if "pro" in K1X: ST("xw1")
    a(f"s_and_b32 s{sFH}, s{sW}, 1")
    a(f"s_lshr_b32 s{sSH}, s{sW}, 1")
    a(f"s_and_b32 s{sSH}, s{sSH}, 1")
    a(f"s_lshr_b32 s{sKH}, s{sW}, 2")
    a(f"s_xor_b32 s{sST0}, s{sFH}, s{sKH}")
    a(f"s_lshl_b32 s{sST}, s{sSH}, 1")
    a(f"s_add_u32 s{sST}, s{sST}, s{sST0}")
    a(f"s_mov_b32 s{sEPS}, {f32(1e-5):#x}")
    a(f"s_mov_b32 s{sONES}, 0x3f803f80")
    a(f"s_mov_b32 s{sNC2}, {f32(-C2):#x}")
    a(f"s_mov_b32 s{sNC2+1}, {f32(-C2):#x}")
    vRP = V(); vPP = V()
    _pre = [V(), V(), V()]
    XF = V(80, 4)
    def xf(sc, kk, sl): return XF + ((sc*2 + kk)*2 + sl)*4
    WF = V(48, 4)
    def wf(b, kk, ft): return WF + ((b*2 + kk)*3 + ft)*4
    ACC = V(24, 4)
    def acc(ft, sl): return ACC + (ft*2 + sl)*4
    Z2V = V(12, 4)
    KX = V(12, 4)
    KROW = [xf(4, 0, 0) + 4*r for r in range(4)] + [KX]
    VROW = [KX + 4, KX + 8]
    vXA = [[_pre[0], _pre[1]], [_pre[2], V()]]
    vWA = [[V(), V(), V()], [V(), V(), V()]]
    a(f"s_lshl_b32 s{sT0}, s{sKH}, 1")
    a(f"s_add_u32 s{sKKA}, s{sT0}, s{sSH}")
    a(f"s_xor_b32 s{sKKB}, s{sKKA}, 1")
    a(f"v_xor_b32 v{t0}, v{vQ}, v{vP}")
    a(f"v_lshlrev_b32 v{t2}, 8, v{vP}")
    a(f"s_lshl_b32 s{sT0}, s{sSH}, 13")
    a(f"s_lshl_b32 s{sT1}, s{sST0}, 12")
    a(f"s_add_u32 s{sT2}, s{sT0}, s{sT1}")
    a(f"s_xor_b32 s{sT1}, s{sT1}, 4096")
    a(f"s_add_u32 s{sT3}, s{sT0}, s{sT1}")
    for kkidx, sKK in ((0, sKKA), (1, sKKB)):
        a(f"s_lshl_b32 s{sT0}, s{sKK}, 2")
        a(f"v_xor_b32 v{t1}, s{sT0}, v{t0}")
        a(f"v_lshl_add_u32 v{t1}, v{t1}, 4, v{t2}")
        a(f"v_add_u32 v{vXA[kkidx][0]}, s{sT2}, v{t1}")
        a(f"v_add_u32 v{vXA[kkidx][1]}, s{sT3}, v{t1}")
    a(f"v_lshrrev_b32 v{t1}, 2, v{vP}")
    a(f"v_lshl_add_u32 v{t0}, v{vQ}, 3, v{t1}")
    a(f"v_mul_u32_u24 v{t0}, 192, v{t0}")
    a(f"v_and_b32 v{t1}, 3, v{vP}")
    a(f"v_lshl_add_u32 v{t0}, v{t1}, 3, v{t0}")
    a(f"v_and_b32 v{t1}, 1, v{vQ}")
    a(f"s_mul_i32 s{sT3}, s{sFH}, 3")
    a(f"s_mul_i32 s{sT1}, s{sKKA}, 6144")
    a(f"s_add_u32 s{sT1}, s{sT1}, {WR}")
    a(f"s_mul_i32 s{sT2}, s{sKKB}, 6144")
    a(f"s_add_u32 s{sT2}, s{sT2}, {WR}")
    for ft in range(3):
        a(f"s_add_u32 s{sT0}, s{sT3}, {ft}")
        a(f"v_xor_b32 v{t2}, s{sT0}, v{t1}")
        a(f"v_lshl_add_u32 v{t2}, v{t2}, 5, v{t0}")
        a(f"v_add_u32 v{vWA[0][ft]}, s{sT1}, v{t2}")
        a(f"v_add_u32 v{vWA[1][ft]}, s{sT2}, v{t2}")
    CSA = V(12, 4)
    XSA = V(4, 4); XQA = V(4, 4)
    ONE = V(4, 4)
    for i in range(4): a(f"v_mov_b32 v{ONE+i}, s{sONES}")
    vC1 = XSA + 2
    vMR = XQA; vM, vR = vMR, vMR + 1
    vRB = XQA + 2
    a(f"v_mul_u32_u24 v{vRP}, 205, v{vL}")
    a(f"v_lshrrev_b32 v{vRP}, 11, v{vRP}")
    a(f"v_mul_u32_u24 v{t0}, 10, v{vRP}")
    a(f"v_sub_u32 v{vPP}, v{vL}, v{t0}")
    a(f"s_lshl_b32 s{sT0}, s{sW}, 3")
    a(f"v_lshl_add_u32 v{t0}, v{vRP}, 1, s{sT0}")
    a(f"v_mul_u32_u24 v{t0}, 1280, v{t0}")
    a(f"v_lshl_add_u32 v{t0}, v{vPP}, 4, v{t0}")
    a(f"s_mul_i32 s{sT0}, s{sJ}, 160")
    a(f"s_add_u32 s{sT0}, s{sT0}, s{sXOFF}")
    a(f"v_add_u32 v{vKV}, s{sT0}, v{t0}")

    kv = {}
    def kv_loads():
        vKO = [TMP + 24, TMP + 25, TMP + 26]
        for i in range(3):
            a(f"v_subrev_u32 v{vKO[i]}, {1280*(3-i)}, v{vKV}")
        mask(a, 40)
        for i in range(3):
            a.vmem(f"buffer_load_dwordx4 v[{KROW[i]}:{KROW[i]+3}], v{vKO[i]}, s[{sK}:{sK+3}], 0 offen")
        a.vmem(f"buffer_load_dwordx4 v[{KROW[3]}:{KROW[3]+3}], v{vKV}, s[{sK}:{sK+3}], 0 offen")
        a.vmem(f"buffer_load_dwordx4 v[{KROW[4]}:{KROW[4]+3}], v{vKV}, s[{sK}:{sK+3}], 0 offen offset:1280")
        a.vmem(f"buffer_load_dwordx4 v[{VROW[0]}:{VROW[0]+3}], v{vKV}, s[{sV}:{sV+3}], 0 offen")
        kv['last'] = a.vmem(f"buffer_load_dwordx4 v[{VROW[1]}:{VROW[1]+3}], v{vKV}, s[{sV}:{sV+3}], 0 offen offset:1280")
        mask(a, 64)

    def kv_compute():
        kf = TMP; wp = TMP + 10; r0 = TMP + 18; r1 = TMP + 20; vf0 = TMP + 22; vf1 = TMP + 24; o = TMP + 26
        SK = Z2V
        vTA = vKV
        a.wait_vm(kv['last']); yield
        a(f"v_mul_u32_u24 v{vTA}, {8*144}, v{vPP}"); yield
        a(f"v_lshlrev_b32 v{o}, 2, v{vRP}"); yield
        a(f"v_sub_u32 v{vTA}, v{vTA}, v{o}"); yield
        a(f"s_lshl_b32 s{sT0}, s{sW}, 4")
        a(f"s_add_u32 s{sT0}, s{sT0}, {TB + 12}")
        a(f"v_add_u32 v{vTA}, s{sT0}, v{vTA}"); yield
        a(f"v_lshlrev_b32 v{vPP}, 6, v{vPP}"); yield
        a(f"v_add_u32 v{vPP}, {SHKL}, v{vPP}"); yield
        for i in range(4):
            if i % 2 == 0:
                a.ds(f"ds_read_b128 v[{SK}:{SK+3}], v{vPP} offset:{(i//2)*32}")
                d = a.ds(f"ds_read_b128 v[{SK+4}:{SK+7}], v{vPP} offset:{(i//2)*32 + 16}"); yield
            for r in range(5):
                a(f"v_lshlrev_b32 v{kf+2*r}, 16, v{KROW[r]+i}"); yield
                a(f"v_and_b32 v{kf+2*r+1}, 0xffff0000, v{KROW[r]+i}"); yield
            if i % 2 == 0:
                a.wait_lg(d)
            for t in range(4):
                ra = SK + 2*(2*(i % 2)) + (t >> 1); rb_ = SK + 2*(2*(i % 2) + 1) + (t >> 1)
                if t & 1:
                    a(f"v_and_b32 v{wp+2*t}, 0xffff0000, v{ra}"); yield
                    a(f"v_and_b32 v{wp+2*t+1}, 0xffff0000, v{rb_}"); yield
                else:
                    a(f"v_lshlrev_b32 v{wp+2*t}, 16, v{ra}"); yield
                    a(f"v_lshlrev_b32 v{wp+2*t+1}, 16, v{rb_}"); yield
            for t in range(4):
                for (dst, top) in ((r0, 3), (r1, 4)):
                    if t == 0: yield from pkop(a, "mul", dst, kf+2*top, wp, pk=False)
                    else: yield from pkop(a, "fma", dst, kf+2*(top-t), wp+2*t, dst, pk=False)
            for (vf, rr) in ((vf0, 0), (vf1, 1)):
                a(f"v_lshlrev_b32 v{vf}, 16, v{VROW[rr]+i}"); yield
                a(f"v_and_b32 v{vf+1}, 0xffff0000, v{VROW[rr]+i}"); yield
            yield from pkop(a, "mul", r0, r0, vf0, pk=False)
            yield from pkop(a, "mul", r1, r1, vf1, pk=False)
            a(f"v_cvt_pk_bf16_f32 v{o}, v{r1}, v{r0}"); yield
            a(f"v_cvt_pk_bf16_f32 v{o+1}, v{r1+1}, v{r0+1}"); yield
            a(f"s_mov_b32 exec_hi, 0xff")
            a.ds(f"ds_write_b32 v{vTA}, v{o} offset:{(2*i)*144}")
            a.ds(f"ds_write_b32 v{vTA}, v{o+1} offset:{(2*i+1)*144}")
            a(f"s_mov_b32 exec_hi, -1"); yield

    def kv_store():
        for rnd in range(2):
            T4 = TMP + 4*rnd
            a(f"s_lshl_b32 s{sT0}, s{sW}, 3")
            if rnd: a(f"s_add_u32 s{sT0}, s{sT0}, 64")
            a(f"v_lshrrev_b32 v{t0}, 3, v{vL}")
            a(f"v_add_u32 v{t0}, s{sT0}, v{t0}"); yield
            a(f"v_and_b32 v{t1}, 7, v{vL}")
            a(f"v_lshlrev_b32 v{t1}, 4, v{t1}"); yield
            a(f"v_mul_u32_u24 v{t2}, 144, v{t0}")
            a(f"v_add_u32 v{t2}, v{t2}, v{t1}"); yield
            d = a.ds(f"ds_read_b128 v[{T4}:{T4+3}], v{t2} offset:{TB}"); yield
            a(f"v_lshlrev_b32 v{t0}, 12, v{t0}")
            a(f"v_add_u32 v{t0}, v{t0}, v{t1}"); yield
            a(f"s_mul_i32 s{sT0}, s{sJ}, {80*4096}")
            a(f"s_lshl_b32 s{sT1}, s{sRB}, 7")
            a(f"s_add_u32 s{sT0}, s{sT0}, s{sT1}")
            a(f"s_add_u32 s{sT0}, s{sT0}, {WS_KVT}")
            a.wait_lg(d)
            if rnd == 0:
                a.vmem(f"buffer_store_dwordx4 v[{T4}:{T4+3}], v{t0}, s[{sWS}:{sWS+3}], s{sT0} offen"); yield
            else:
                lab = a.newlabel("k1_kvskip")
                a(f"s_cmp_ge_u32 s{sW}, 2")
                a(f"s_cbranch_scc1 {lab}")
                a(f"buffer_store_dwordx4 v[{T4}:{T4+3}], v{t0}, s[{sWS}:{sWS+3}], s{sT0} offen")
                a.vm -= 1
                a.label(lab); yield

    def prefetch_next():
        a(f"s_lshl_b32 s{sT0}, s{sU}, 13")
        a(f"s_lshl_b32 s{sT1}, s{sXC}, 21")
        a(f"s_add_u32 s{sT0}, s{sT0}, s{sT1}")
        a(f"v_lshlrev_b32 v{t0}, 7, v{vL}")
        a.vmem(f"buffer_load_dword v{vDummy}, v{t0}, s[{sWSP}:{sWSP+3}], s{sT0} offen")
        a(f"s_mul_i32 s{sT0}, s{sU}, 10")
        a(f"v_add_u32 v{t0}, s{sT0}, v{vL}")
        a(f"v_lshrrev_b32 v{t1}, 5, v{t0}")
        a(f"v_lshlrev_b32 v{t1}, 15, v{t1}")
        a(f"v_and_b32 v{t0}, 31, v{t0}")
        a(f"v_lshl_add_u32 v{t0}, v{t0}, 7, v{t1}")
        a(f"s_and_b32 s{sT0}, s2, 7")
        a(f"s_lshl_b32 s{sT0}, s{sT0}, 12")
        mask(a, 10)
        a.vmem(f"buffer_load_dword v{vDummy}, v{t0}, s[{sSSM}:{sSSM+3}], s{sT0} offen")
        mask(a, 64)
        yield

    def reads(p):
        sc = p % 5; b = p & 1
        if p < 5:
            if p == 4:
                for kk in range(2):
                    for sl in range(2):
                        a(f"v_add_u32 v{vXA[kk][sl]}, 0x10000, v{vXA[kk][sl]}")
            for kk in range(2):
                for sl in range(2):
                    off = XR + (sc*16384 if p < 4 else 0)
                    a.ds(f"ds_read_b128 v[{xf(sc,kk,sl)}:{xf(sc,kk,sl)+3}], v{vXA[kk][sl]} offset:{off}")
        so = (p % 3)*SLOT
        for kk in range(2):
            for ft in range(3):
                r = wf(b, kk, ft)
                a.ds(f"ds_read_b64_tr_b16 v[{r}:{r+1}], v{vWA[kk][ft]} offset:{so}")
                a.ds(f"ds_read_b64_tr_b16 v[{r+2}:{r+3}], v{vWA[kk][ft]} offset:{so + 768}")

    def mfmas(p, fill, nfill, dmaf=None):
        sc = p % 5; b = p & 1
        first = (sc == 0)
        ops = []
        for kk in range(2):
            for ft in range(3):
                for sl in range(2):
                    c = "0" if (first and kk == 0) else f"v[{acc(ft,sl)}:{acc(ft,sl)+3}]"
                    ops.append(f"v_mfma_f32_16x16x32_bf16 v[{acc(ft,sl)}:{acc(ft,sl)+3}], v[{wf(b,kk,ft)}:{wf(b,kk,ft)+3}], v[{xf(sc,kk,sl)}:{xf(sc,kk,sl)+3}], {c}")
                if kk == 0:
                    c = "0" if first else f"v[{CSA+4*ft}:{CSA+4*ft+3}]"
                    ops.append(f"v_mfma_f32_16x16x32_bf16 v[{CSA+4*ft}:{CSA+4*ft+3}], v[{wf(b,0,ft)}:{wf(b,0,ft)+3}], v[{ONE}:{ONE+3}], {c}")
            if p < 5:
                x = xf(sc, kk, 0)
                c = "0" if (first and kk == 0) else f"v[{XSA}:{XSA+3}]"
                ops.append(f"v_mfma_f32_16x16x32_bf16 v[{XSA}:{XSA+3}], v[{ONE}:{ONE+3}], v[{x}:{x+3}], {c}")
                c = "0" if (first and kk == 0) else f"v[{XQA}:{XQA+3}]"
                ops.append(f"v_mfma_f32_16x16x32_bf16 v[{XQA}:{XQA+3}], v[{x}:{x+3}], v[{x}:{x+3}], {c}")
        nd = 0
        for oi, o in enumerate(ops):
            a(o)
            if dmaf is not None and oi % 3 == 1: dmaf.step(1)
            fill.step(nfill)
        if dmaf is not None: dmaf.drain()

    def exchange_write(ps, dst):
        T = TMP
        a(f"s_mul_i32 s{sT0}, s{sW}, 3072")
        a(f"s_add_u32 s{sT0}, s{sT0}, {EX}")
        a(f"v_lshl_add_u32 v{t0}, v{vL}, 4, s{sT0}")
        a(f"s_lshl_b32 s{sT0}, s{sFH}, 2")
        a(f"s_lshl_b32 s{sT1}, s{sSH}, 1")
        a(f"s_add_u32 s{sT0}, s{sT0}, s{sT1}")
        a(f"s_add_u32 s{sT0}, s{sT0}, s{sKH}")
        a(f"s_mul_i32 s{sT0}, s{sT0}, 192")
        a(f"s_add_u32 s{sT0}, s{sT0}, {CSUM + ps*1536}")
        a(f"v_lshl_add_u32 v{t1}, v{vQ}, 4, s{sT0}")
        for ft in range(3):
            a.ds(f"ds_write_b128 v{t0}, v[{acc(ft,1)}:{acc(ft,1)+3}] offset:{ft*1024}")
        a(f"s_mov_b32 exec_lo, 0x00010001")
        a(f"s_mov_b32 exec_hi, 0x00010001")
        for ft in range(3):
            a.ds(f"ds_write_b128 v{t1}, v[{CSA+4*ft}:{CSA+4*ft+3}] offset:{ft*64}")
        a(f"s_mov_b64 exec, -1")
        if ps == 0:
            a(f"v_and_b32 v{T}, 3, v{vP}")
            a(f"v_cmp_eq_u32 vcc, 1, v{T}")
            a(f"v_cndmask_b32 v{XSA+1}, v{XQA}, v{XQA+1}, vcc")
            a(f"v_cmp_eq_u32 vcc, 2, v{T}")
            a(f"v_cndmask_b32 v{XSA+1}, v{XSA+1}, v{XQA+2}, vcc")
            a(f"v_cmp_eq_u32 vcc, 3, v{T}")
            a(f"v_cndmask_b32 v{XSA+1}, v{XSA+1}, v{XQA+3}, vcc")
            a(f"s_lshl_b32 s{sT0}, s{sST}, 1")
            a(f"s_add_u32 s{sT0}, s{sT0}, s{sKH}")
            a(f"s_lshl_b32 s{sT0}, s{sT0}, 7")
            a(f"s_add_u32 s{sT0}, s{sT0}, {XSUM}")
            a(f"v_lshl_add_u32 v{t2}, v{vP}, 3, s{sT0}")
            a(f"s_mov_b32 exec_lo, 0x00F0000F")
            a(f"s_mov_b32 exec_hi, 0xF0000F00")
            a.ds(f"ds_write_b64 v{t2}, {P(XSA)}")
            a(f"s_mov_b64 exec, -1")
        for ft in range(3):
            for h in range(2):
                a(f"v_pk_add_f32 {P(dst+4*ft+2*h)}, {P(acc(ft,0)+2*h)}, 0")
        if ps == 0:
            a(f"v_mov_b32 v{vC1}, {f32(-C1):#x}"); a(f"v_mov_b32 v{vC1+1}, {f32(-C1):#x}")

    def fold_gelu(ps, dst, T, pk):
        a(f"s_xor_b32 s{sT0}, s{sW}, 4")
        a(f"s_mul_i32 s{sT0}, s{sT0}, 3072")
        a(f"s_add_u32 s{sT0}, s{sT0}, {EX}")
        a(f"v_lshl_add_u32 v{t0}, v{vL}, 4, s{sT0}"); yield
        ids = [a.ds(f"ds_read_b128 v[{T+4*ft}:{T+4*ft+3}], v{t0} offset:{ft*1024}") for ft in range(3)]; yield
        a(f"s_mul_i32 s{sT0}, s{sFH}, {4*192}")
        a(f"s_add_u32 s{sT0}, s{sT0}, {CSUM + ps*1536}")
        a(f"v_lshl_add_u32 v{t0}, v{vQ}, 4, s{sT0}"); yield
        c1 = [a.ds(f"ds_read_b128 v[{T+12+4*ft}:{T+12+4*ft+3}], v{t0} offset:{ft*64}") for ft in range(3)]; yield
        if ps == 0:
            a(f"s_lshl_b32 s{sT0}, s{sST}, 8")
            a(f"s_add_u32 s{sT0}, s{sT0}, {XSUM}")
            a(f"v_lshl_add_u32 v{t1}, v{vP}, 3, s{sT0}"); yield
            a.ds(f"ds_read_b64 {P(vMR)}, v{t1}")
            dx = a.ds(f"ds_read_b64 {P(T+24)}, v{t1} offset:128"); yield
        a.wait_lg(ids[2])
        for i in range(0, 12, 2):
            yield from pkop(a, "add", dst+i, dst+i, T+i, pk=pk)
        c0 = [a.ds(f"ds_read_b128 v[{T+4*ft}:{T+4*ft+3}], v{t0} offset:{192 + ft*64}") for ft in range(3)]; yield
        if ps == 0:
            a.wait_lg(dx)
            a(f"v_add_f32 v{vM}, v{vM}, v{T+24}"); yield
            a(f"v_add_f32 v{vR}, v{vR}, v{T+25}"); yield
            a(f"v_mul_f32 v{vM}, {f32(1.0/640):#x}, v{vM}"); yield
            a(f"v_mul_f32 v{vR}, {f32(1.0/640):#x}, v{vR}"); yield
            a(f"v_fma_f32 v{vR}, -v{vM}, v{vM}, v{vR}"); yield
            yield from ln_finish_gen(a, vM, vR, sEPS)
            a(f"v_mov_b32 v{vRB}, v{vR}"); yield
        for q in (1, 2, 3):
            a.wait_lg(c0[2])
            for i in range(0, 12, 2):
                yield from pkop(a, "add", T+12+i, T+12+i, T+i, pk=pk)
            if q < 3:
                c0 = [a.ds(f"ds_read_b128 v[{T+4*ft}:{T+4*ft+3}], v{t0} offset:{(q+1)*192 + ft*64}") for ft in range(3)]; yield
        for i in range(0, 12, 2):
            yield from pkop(a, "fma", dst+i, T+12+i, vMR, dst+i, pk=pk, bcast_y=True, neg_y=True)
        for i in range(0, 12, 2):
            yield from pkop(a, "mul", dst+i, dst+i, vRB, pk=pk, bcast_y=True)
        for i in range(0, 12, 2):
            yield from pkop(a, "mul", T+i, dst+i, dst+i, pk=pk)
        for i in range(0, 12, 2):
            yield from pkop(a, "fma", T+i, T+i, None, vC1, pk=pk, ys=sNC2)
        for i in range(0, 12, 2):
            yield from pkop(a, "mul", T+i, T+i, dst+i, pk=pk)
        for i in range(12):
            a(f"v_exp_f32 v{T+i}, v{T+i}"); yield
        for i in range(0, 12, 2):
            if pk: a(f"v_pk_add_f32 {P(T+i)}, {P(T+i)}, 1.0 op_sel_hi:[1,0]"); yield
            else:
                a(f"v_add_f32 v{T+i}, 1.0, v{T+i}"); yield
                a(f"v_add_f32 v{T+i+1}, 1.0, v{T+i+1}"); yield
        for i in range(12):
            a(f"v_rcp_f32 v{T+i}, v{T+i}"); yield
        for i in range(0, 12, 2):
            yield from pkop(a, "mul", dst+i, dst+i, T+i, pk=pk)

    def z2_stats():
        T = TMP
        a(f"v_add_f32 v{T}, v{Z2V}, v{Z2V+1}"); yield
        a(f"v_mul_f32 v{T+1}, v{Z2V}, v{Z2V}"); yield
        a(f"v_add_f32 v{T+2}, v{Z2V+2}, v{Z2V+3}"); yield
        a(f"v_mul_f32 v{T+3}, v{Z2V+1}, v{Z2V+1}"); yield
        for i in range(2, 12):
            if i >= 4: a(f"v_add_f32 v{T + 2*(i&1)}, v{T + 2*(i&1)}, v{Z2V+i}"); yield
            a(f"v_fmac_f32 v{T+1+2*(i&1)}, v{Z2V+i}, v{Z2V+i}"); yield
        a(f"s_lshl_b32 s{sT0}, s{sST}, 7")
        a(f"s_lshl_b32 s{sT1}, s{sFH}, 9")
        a(f"s_add_u32 s{sT0}, s{sT0}, s{sT1}")
        a(f"s_add_u32 s{sT0}, s{sT0}, {ZSUM}")
        a(f"v_lshl_add_u32 v{t0}, v{vP}, 3, s{sT0}"); yield
        a(f"v_add_f32 v{T}, v{T}, v{T+2}"); yield
        a(f"v_add_f32 v{T+1}, v{T+1}, v{T+3}"); yield
        yield from reduce_g4_multi(a, [T, T+1], [T+4, T+5])
        a(f"s_mov_b64 exec, 0xffff")
        a.ds(f"ds_write_b64 v{t0}, {P(T)}")
        a(f"s_mov_b64 exec, -1"); yield

    def xst_store():
        lab = a.newlabel("k1_xst")
        a(f"s_or_b32 s{sT0}, s{sJ}, s{sFH}")
        a(f"s_cmp_lg_u32 s{sT0}, 0")
        a(f"s_cbranch_scc1 {lab}")
        a(f"s_lshl_b32 s{sT0}, s{sRB}, 9")
        a(f"s_lshl_b32 s{sT1}, s{sST}, 7")
        a(f"s_add_u32 s{sT0}, s{sT0}, s{sT1}")
        a(f"s_add_u32 s{sT0}, s{sT0}, {WS_XST}")
        a(f"v_lshlrev_b32 v{t0}, 3, v{vP}")
        a(f"s_mov_b64 exec, 0xffff")
        a(f"buffer_store_dwordx2 {P(vMR)}, v{t0}, s[{sWS}:{sWS+3}], s{sT0} offen")
        a.vm -= 1
        a(f"s_mov_b64 exec, -1")
        a.label(lab)
        yield

    def gen1(f):
        f(); yield

    SP = TMP + 20
    vFA = vKV
    vDummy2 = vPP
    zfin = {}
    def stats_load():
        a(f"s_lshl_b32 s{sT0}, s{sRB}, 13")
        a(f"s_lshl_b32 s{sT1}, s{sST}, 8")
        a(f"s_add_u32 s{sT0}, s{sT0}, s{sT1}")
        a(f"s_add_u32 s{sZ1B}, s{sT0}, {WS_ZST}")
        a(f"v_lshlrev_b32 v{vFA}, 4, v{vP}")
        a(f"v_lshl_add_u32 v{vFA}, v{vQ}, 11, v{vFA}")
        a.vmem(f"buffer_load_dwordx4 v[{SP}:{SP+3}], v{vFA}, s[{sWS}:{sWS+3}], s{sZ1B} offen sc1")
        zfin['sp'] = a.vmem(f"buffer_load_dwordx4 v[{SP+4}:{SP+7}], v{vFA}, s[{sWS}:{sWS+3}], s{sZ1B} offen offset:1024 sc1")
    def stats_check():
        a.wait_vm(zfin['sp'])
        lp = a.newlabel("k1_poll"); lp2 = a.newlabel("k1_polled")
        a.label(lp)
        a(f"v_cmp_ne_u32 vcc, s{sTAG}, v{SP+2}")
        a(f"v_cmp_ne_u32 s[{sT2}:{sT2+1}], s{sTAG+1}, v{SP+3}")
        a(f"s_or_b64 vcc, vcc, s[{sT2}:{sT2+1}]")
        a(f"v_cmp_ne_u32 s[{sT2}:{sT2+1}], s{sTAG}, v{SP+6}")
        a(f"s_or_b64 vcc, vcc, s[{sT2}:{sT2+1}]")
        a(f"v_cmp_ne_u32 s[{sT2}:{sT2+1}], s{sTAG+1}, v{SP+7}")
        a(f"s_or_b64 vcc, vcc, s[{sT2}:{sT2+1}]")
        if 'nopoll' in K1X: a("s_mov_b64 vcc, 0")
        a(f"s_cmp_eq_u64 vcc, 0")
        a(f"s_cbranch_scc1 {lp2}")
        a("s_sleep 4")
        a(f"buffer_load_dwordx4 v[{SP}:{SP+3}], v{vFA}, s[{sWS}:{sWS+3}], s{sZ1B} offen sc1")
        a(f"buffer_load_dwordx4 v[{SP+4}:{SP+7}], v{vFA}, s[{sWS}:{sWS+3}], s{sZ1B} offen offset:1024 sc1")
        a.vm -= 2
        a("s_waitcnt vmcnt(0)")
        a(f"s_branch {lp}")
        a.label(lp2)
    def z2_normalize():
        vZW = vRP
        a(f"s_lshl_b32 s{sT0}, s{sST}, 4")
        a(f"v_add_u32 v{vZW}, s{sT0}, v{vP}")
        a(f"v_mul_u32_u24 v{vZW}, 200, v{vZW}")
        a(f"v_lshl_add_u32 v{vZW}, v{vQ}, 3, v{vZW}")
        a(f"s_mul_i32 s{sT0}, s{sFH}, 96")
        a(f"s_add_u32 s{sT0}, s{sT0}, {ZT}")
        a(f"v_add_u32 v{vZW}, s{sT0}, v{vZW}")
        stats_check()
        lab = a.newlabel("k1_ep")
        a(f"s_xor_b32 s{sT0}, s{sW}, 1")
        a(f"s_or_b32 s{sT0}, s{sT0}, s{sJ}")
        a(f"s_cmp_lg_u32 s{sT0}, 0")
        a(f"s_cbranch_scc1 {lab}")
        a(f"v_mov_b32 v{t0}, 0")
        a(f"v_mov_b32 v{vDummy2}, 1")
        a(f"s_mov_b64 exec, 1")
        a(f"buffer_atomic_add v{vDummy2}, v{t0}, s[{sDBG}:{sDBG+3}], 0 offen sc0")
        a(f"s_mov_b64 exec, -1")
        a.vm -= 1
        a.label(lab)
        mq = TMP
        a(f"v_pk_add_f32 {P(mq)}, {P(SP)}, {P(SP+4)}")
        run(reduce_g4_multi(a, [mq, mq+1], [TMP+2, TMP+3]))
        a(f"v_mul_f32 v{mq}, {f32(1.0/768):#x}, v{mq}")
        a(f"v_mul_f32 v{mq+1}, {f32(1.0/768):#x}, v{mq+1}")
        a(f"v_fma_f32 v{mq+1}, -v{mq}, v{mq}, v{mq+1}")
        run(ln_finish_gen(a, mq, mq+1, sEPS))
        a(f"v_mov_b32 v{TMP+2}, v{mq+1}")
        for i in range(0, 12, 2):
            a(f"v_pk_add_f32 {P(Z2V+i)}, {P(Z2V+i)}, {P(mq)} op_sel_hi:[1,0] neg_lo:[0,1] neg_hi:[0,1]")
        for i in range(0, 12, 2):
            a(f"v_pk_mul_f32 {P(Z2V+i)}, {P(Z2V+i)}, {P(TMP+2)} op_sel_hi:[1,0]")
        for ft in range(3):
            a(f"v_cvt_pk_bf16_f32 v{TMP+8+2*ft}, v{Z2V+4*ft}, v{Z2V+4*ft+1}")
            a(f"v_cvt_pk_bf16_f32 v{TMP+8+2*ft+1}, v{Z2V+4*ft+2}, v{Z2V+4*ft+3}")
            a.ds(f"ds_write_b64 v{vZW}, {P(TMP+8+2*ft)} offset:{32*ft}")

    PUB = int(os.environ.get("PUB", "8"))
    NF5 = int(os.environ.get("NF5", "5"))
    fill = Filler()
    if "pro" in K1X: ST("setup")
    a.wait_vm(max(w_last[0], x_last[0]))
    if "pro" in K1X: ST("w0arr")
    a("s_barrier")
    ST("d0")
    sTAG = 100
    a(f"v_readfirstlane_b32 s{sTAG}, v{vEP}")
    a(f"v_readfirstlane_b32 s{sTAG+1}, v{vEP+1}")
    a(f"s_add_u32 s{sTAG}, s{sTAG}, 1")
    a(f"s_addc_u32 s{sTAG+1}, s{sTAG+1}, 0")
    reads(0)
    if "t3" not in K1X: touch_x(2); touch_w(2, True)
    dma_x(2); dma_w(2)
    for p in range(10):
        a.comment(f"---------------- iteration {p}")
        if p + 1 < 10:
            need = w_last[p+1]
            if p + 1 < 5: need = max(need, x_last[p+1])
            a.wait_vm(need)
        a("s_waitcnt lgkmcnt(0)")
        a("s_barrier")
        if ("pro" not in K1X or p < 2) and ("pubst" not in K1X or p in (6, 7, 8, 9)): ST(f"i{p}")
        if p == PUB:
            lab = a.newlabel("k1_pub")
            a(f"s_cmp_lg_u32 s{sW}, 0")
            a(f"s_cbranch_scc1 {lab}")
            a(f"v_lshlrev_b32 v{t0}, 3, v{vL}")
            a(f"v_add_u32 v{t1}, {ZSUM}, v{t0}")
            a(f"ds_read_b64 {P(TMP)}, v{t1}")
            a(f"ds_read_b64 {P(TMP+4)}, v{t1} offset:512")
            a(f"s_lshl_b32 s{sT0}, s{sRB}, 3")
            a(f"s_add_u32 s{sT0}, s{sT0}, s{sJ}")
            a(f"s_lshl_b32 s{sT0}, s{sT0}, 10")
            a(f"s_add_u32 s{sT0}, s{sT0}, {WS_ZST}")
            a(f"v_lshlrev_b32 v{t0}, 4, v{vL}")
            a(f"v_mov_b32 v{TMP+2}, s{sTAG}")
            a(f"v_mov_b32 v{TMP+3}, s{sTAG+1}")
            a("s_waitcnt lgkmcnt(0)")
            a(f"v_pk_add_f32 {P(TMP)}, {P(TMP)}, {P(TMP+4)}")
            a(f"buffer_store_dwordx4 v[{TMP}:{TMP+3}], v{t0}, s[{sWS}:{sWS+3}], s{sT0} offen sc1")
            a.vm -= 1; a.lg -= 2
            a.label(lab)
        if p + 1 < 10 and "nocomp" not in K1X: reads(p + 1)
        dmaf = Filler()
        if p == 0:
            if "nokv" not in K1X: dmaf.add(gen1(touch_kv))
            dmaf.add(gen1(lambda: touch_w(0, False)))
        if p == 1: dmaf.add(gen1(lambda: touch_w(1, False)))
        if p == 3: dmaf.add(gen1(lambda: touch_w(2, False)))
        if p + 3 < 5: dmaf.add(dma_x_g(p + 3))
        if p + 3 < 10: dmaf.add(dma_w_g(p + 3))
        if p == 0 and "nokv" not in K1X: dmaf.add(gen1(kv_loads))
        if p == 0 and "nokv" in K1X: kv['last'] = a.vm - 1
        if p == 9: stats_load()
        nf = 0
        if p == 1: fill.add(kv_compute()); nf = 5
        if p == 2: nf = 5
        if p == 3: fill.add(kv_store()); nf = 1
        if p == 5:
            fill.add(fold_gelu(0, Z2V, TMP, False)); fill.add(z2_stats()); fill.add(xst_store()); nf = NF5
        if p >= 6 and p < PUB: nf = NF5
        if "nocomp" in K1X:
            dmaf.drain(); fill.q = []
        else:
            mfmas(p, fill, nf, dmaf)
        if p in (2, 3, PUB - 1): fill.drain()
        if p == 4: exchange_write(0, Z2V)
        if p == 9:
            exchange_write(1, WF)
            z2_normalize()
    ST("loop")
    if "nopf" not in K1X: run(prefetch_next())
    vZR = vWA[0][1]; vZS = vWA[0][2]
    a(f"v_lshrrev_b32 v{vZR}, 1, v{vQ}")
    a(f"v_lshrrev_b32 v{t1}, 2, v{vP}")
    a(f"v_lshl_add_u32 v{vZR}, v{vZR}, 3, v{t1}")
    a(f"v_mul_u32_u24 v{vZR}, 200, v{vZR}")
    a(f"v_and_b32 v{t1}, 1, v{vQ}")
    a(f"v_lshl_add_u32 v{vZR}, v{t1}, 5, v{vZR}")
    a(f"v_and_b32 v{t1}, 3, v{vP}")
    a(f"v_lshl_add_u32 v{vZR}, v{t1}, 3, v{vZR}")
    a(f"v_lshlrev_b32 v{vZS}, 4, v{vL}")
    a("s_waitcnt lgkmcnt(0)")
    a("s_barrier")
    ST("bar")
    for rnd in range(2):
        lab = None
        if rnd == 1:
            lab = a.newlabel("k1_fr")
            a(f"s_cmp_ge_u32 s{sW}, 4")
            a(f"s_cbranch_scc1 {lab}")
        a(f"s_add_u32 s{sT0}, s{sW}, {8*rnd}")
        a(f"s_mul_i32 s{sT1}, s{sT0}, 43")
        a(f"s_lshr_b32 s{sT1}, s{sT1}, 7")
        a(f"s_mul_i32 s{sT2}, s{sT1}, 3")
        a(f"s_sub_u32 s{sT2}, s{sT0}, s{sT2}")
        a(f"s_mul_i32 s{sT1}, s{sT1}, {16*200}")
        a(f"s_lshl_b32 s{sT2}, s{sT2}, 6")
        a(f"s_add_u32 s{sT1}, s{sT1}, s{sT2}")
        a(f"s_add_u32 s{sT1}, s{sT1}, {ZT}")
        a(f"v_add_u32 v{t1}, s{sT1}, v{vZR}")
        Tq = TMP + 4*rnd
        a(f"ds_read_b64_tr_b16 {P(Tq)}, v{t1}")
        a(f"ds_read_b64_tr_b16 {P(Tq+2)}, v{t1} offset:800")
        a(f"s_lshl_b32 s{sT1}, s{sJ}, 7")
        a(f"s_lshl_b32 s{sT2}, s{sRB}, 2")
        a(f"s_add_u32 s{sT1}, s{sT1}, s{sT2}")
        a(f"s_mul_i32 s{sT1}, s{sT1}, 3")
        a(f"s_add_u32 s{sT1}, s{sT1}, s{sT0}")
        a(f"s_lshl_b32 s{sT1}, s{sT1}, 10")
        a(f"s_add_u32 s{sT1}, s{sT1}, {WS_Z2F}")
        a("s_waitcnt lgkmcnt(0)")
        a(f"buffer_store_dwordx4 v[{Tq}:{Tq+3}], v{vZS}, s[{sWS}:{sWS+3}], s{sT1} offen")
        if lab: a.label(lab)
    a.lg = a.lg
    Z1V = WF
    T2 = XF
    run(fold_gelu(1, Z1V, T2, True))
    a(f"v_lshrrev_b32 v{t0}, 1, v{vQ}")
    a(f"v_mul_u32_u24 v{t0}, 3072, v{t0}")
    a(f"v_and_b32 v{t1}, 1, v{vQ}")
    a(f"v_lshlrev_b32 v{t1}, 5, v{t1}")
    a(f"v_add_u32 v{t1}, v{t1}, v{vP}")
    a(f"v_lshl_add_u32 v{t0}, v{t1}, 4, v{t0}")
    a(f"s_lshl_b32 s{sT0}, s{sRB}, 3")
    a(f"s_add_u32 s{sT0}, s{sT0}, s{sJ}")
    a(f"s_mul_i32 s{sZ1B}, s{sT0}, 12288")
    a(f"s_lshr_b32 s{sT0}, s{sST}, 1")
    a(f"s_mul_i32 s{sT0}, s{sT0}, 6144")
    a(f"s_add_u32 s{sZ1B}, s{sZ1B}, s{sT0}")
    a(f"s_and_b32 s{sT0}, s{sST}, 1")
    a(f"s_lshl_b32 s{sT0}, s{sT0}, 8")
    a(f"s_add_u32 s{sZ1B}, s{sZ1B}, s{sT0}")
    a(f"s_add_u32 s{sZ1B}, s{sZ1B}, {WS_Z1F}")
    a(f"s_mul_i32 s{sT3}, s{sFH}, 3")
    for ft in range(3):
        a(f"v_cvt_pk_bf16_f32 v{T2+2*ft}, v{Z1V+4*ft}, v{Z1V+4*ft+1}")
        a(f"v_cvt_pk_bf16_f32 v{T2+2*ft+1}, v{Z1V+4*ft+2}, v{Z1V+4*ft+3}")
        a(f"s_add_u32 s{sT0}, s{sT3}, {ft}")
        a(f"s_lshr_b32 s{sT1}, s{sT0}, 1")
        a(f"s_lshl_b32 s{sT1}, s{sT1}, 10")
        a(f"s_and_b32 s{sT0}, s{sT0}, 1")
        a(f"s_lshl_b32 s{sT0}, s{sT0}, 3")
        a(f"s_add_u32 s{sT0}, s{sT0}, s{sT1}")
        a(f"s_add_u32 s{sT0}, s{sT0}, s{sZ1B}")
        a.vmem(f"buffer_store_dwordx2 {P(T2+2*ft)}, v{t0}, s[{sWS}:{sWS+3}], s{sT0} offen")
    lab = a.newlabel("k1_ep2")
    a(f"s_xor_b32 s{sT0}, s{sW}, 1")
    a(f"s_or_b32 s{sT0}, s{sT0}, s{sJ}")
    a(f"s_cmp_lg_u32 s{sT0}, 0")
    a(f"s_cbranch_scc1 {lab}")
    a("s_waitcnt vmcnt(0)")
    a(f"v_readfirstlane_b32 s{sT0}, v{vDummy2}")
    a(f"s_cmp_lg_u32 s{sT0}, 31")
    a(f"s_cbranch_scc1 {lab}")
    a(f"v_mov_b32 v{TMP}, s{sTAG}")
    a(f"v_mov_b32 v{TMP+1}, s{sTAG+1}")
    a(f"v_mov_b32 v{t0}, {WS_EPO}")
    a(f"s_mov_b64 exec, 1")
    a(f"buffer_store_dwordx2 {P(TMP)}, v{t0}, s[{sWS}:{sWS+3}], 0 offen sc1")
    a(f"s_mov_b64 exec, -1")
    a.label(lab)
    ST("end")
    ST.dump(sWS, sW, t0, t1, WS_DBG)
    gen_k1.stamp_names = ST.names
    a.label(f"{name}_end")
    a("s_endpgm")
    gen_k1.ninstr = sum(1 for k, _ in a.items if k == "i")
    return a.finish(), V.hi
```

```python
from dsl import *
from layout import *
from k1 import f32
import os
K2X = os.environ.get('K2X', '')

ZDEPTH = 8
CS_ = 4416
TOEP = 0
OZ = 7
UB = 8 * CS_
PB = UB + 33 * 144 + 48
PB = (PB + 15) // 16 * 16

def gen_gemm(a, V, ST, prof):
    sWSP, sWS, sBSP = 4, 8, 12
    sRB, sJ, sW = 32, 33, 34
    sT0, sT1, sT2, sT3 = 40, 41, 42, 43
    sZ, sWB, sLB = 44, 45, 46
    a(f"s_load_dwordx2 s[{sWSP}:{sWSP+1}], s[0:1], {KA['wsp']}")
    a(f"s_load_dwordx2 s[{sWS}:{sWS+1}], s[0:1], {KA['ws']}")
    a(f"s_load_dwordx2 s[{sBSP}:{sBSP+1}], s[0:1], {KA['bsp']}")
    for srd, size in ((sWSP, SZ_WSP), (sWS, WS_SIZE_DBG if prof else WS_END), (sBSP, 4096)):
        a(f"s_mov_b32 s{srd+2}, {size}")
        a(f"s_mov_b32 s{srd+3}, {SRD3:#x}")
    vL = V(); t0, t1, t2 = V(), V(), V()
    a(f"v_lshrrev_b32 v{t0}, 6, v0")
    a(f"v_and_b32 v{vL}, 63, v0")
    a(f"v_readfirstlane_b32 s{sW}, v{t0}")
    a(f"s_and_b32 s{sT0}, s2, 7")
    a(f"s_lshr_b32 s{sT1}, s2, 3")
    a(f"s_lshr_b32 s{sRB}, s{sT0}, 1")
    a(f"s_lshl_b32 s{sRB}, s{sRB}, 3")
    a(f"s_and_b32 s{sT2}, s{sT1}, 7")
    a(f"s_add_u32 s{sRB}, s{sRB}, s{sT2}")
    a(f"s_and_b32 s{sJ}, s{sT0}, 1")
    a(f"s_lshl_b32 s{sJ}, s{sJ}, 2")
    a(f"s_lshr_b32 s{sT2}, s{sT1}, 3")
    a(f"s_add_u32 s{sJ}, s{sJ}, s{sT2}")
    a(f"s_lshl_b32 s{sZ}, s{sJ}, 7")
    a(f"s_lshl_b32 s{sT0}, s{sW}, 5")
    a(f"s_add_u32 s{sZ}, s{sZ}, s{sT0}")
    a(f"s_mul_i32 s{sZ}, s{sZ}, 3072")
    a(f"s_add_u32 s{sZ}, s{sZ}, {WS_Z2F}")
    a(f"s_lshl_b32 s{sWB}, s{sRB}, 18")
    a(f"s_lshl_b32 s{sT0}, s{sW}, 10")
    a(f"s_add_u32 s{sWB}, s{sWB}, s{sT0}")
    a(f"s_lshl_b32 s{sLB}, s{sW}, 14")
    vZ = V()
    a(f"v_lshlrev_b32 v{vZ}, 4, v{vL}")
    vWE, vWO = V(), V()
    a(f"v_lshrrev_b32 v{t0}, 3, v{vL}")
    a(f"v_lshlrev_b32 v{t0}, 12, v{t0}")
    a(f"v_and_b32 v{t1}, 7, v{vL}")
    a(f"v_lshrrev_b32 v{t2}, 4, v{vL}")
    a(f"v_xor_b32 v{t1}, v{t1}, v{t2}")
    a(f"v_lshlrev_b32 v{t2}, 4, v{t1}")
    a(f"v_add_u32 v{vWE}, v{t0}, v{t2}")
    a(f"v_xor_b32 v{t1}, 4, v{t1}")
    a(f"v_lshlrev_b32 v{t2}, 4, v{t1}")
    a(f"v_add_u32 v{vWO}, v{t0}, v{t2}")
    vWA = [V() for _ in range(4)]
    a(f"v_and_b32 v{t0}, 31, v{vL}")
    a(f"v_lshrrev_b32 v{t1}, 1, v{t0}")
    a(f"v_and_b32 v{t1}, 7, v{t1}")
    a(f"v_lshrrev_b32 v{t2}, 5, v{vL}")
    a(f"v_xor_b32 v{t1}, v{t1}, v{t2}")
    a(f"v_lshlrev_b32 v{t0}, 7, v{t0}")
    a(f"v_add_u32 v{t0}, s{sLB}, v{t0}")
    for kk in range(4):
        a(f"v_xor_b32 v{t2}, {2*kk}, v{t1}")
        a(f"v_lshlrev_b32 v{t2}, 4, v{t2}")
        a(f"v_add_u32 v{vWA[kk]}, v{t0}, v{t2}")
    ACC = V(96, 4)
    def acc(ft, tt): return ACC + (ft*2 + tt)*16
    ZF = V(ZDEPTH*12, 4)
    def zf(ks, ft): return ZF + ((ks % ZDEPTH)*3 + ft)*4
    WFr = V(16, 4)
    def wfr(b, tt): return WFr + (b*2 + tt)*4
    vTW, vTZ, vDm = V(), V(), V()
    sU = 47
    a(f"s_lshl_b32 s{sU}, s{sT1 if False else 48}, 0") if False else None
    a(f"s_lshr_b32 s{sU}, s2, 3")
    a(f"s_and_b32 s{sU}, s{sU}, 31")
    a(f"s_lshl_b32 s{sU}, s{sU}, 2")
    a(f"s_add_u32 s{sU}, s{sU}, s{sW}")
    a(f"s_lshl_b32 s{sT0}, s{sU}, 4")
    a(f"v_add_u32 v{t0}, s{sT0}, v{vL}")
    a(f"v_lshrrev_b32 v{t1}, 2, v{t0}")
    a(f"v_lshlrev_b32 v{t1}, 12, v{t1}")
    a(f"v_and_b32 v{t0}, 3, v{t0}")
    a(f"v_lshl_add_u32 v{vTW}, v{t0}, 10, v{t1}")
    a(f"s_mul_i32 s{sT0}, s{sU}, 12")
    a(f"v_add_u32 v{t0}, s{sT0}, v{vL}")
    a(f"v_mul_u32_u24 v{t1}, 43691, v{t0}")
    a(f"v_lshrrev_b32 v{t1}, 22, v{t1}")
    a(f"v_mul_u32_u24 v{t2}, 96, v{t1}")
    a(f"v_sub_u32 v{t0}, v{t0}, v{t2}")
    a(f"v_mul_u32_u24 v{t1}, 98304, v{t1}")
    a(f"v_lshl_add_u32 v{vTZ}, v{t0}, 7, v{t1}")
    sTWB, sTZB = 48, 49
    a(f"s_and_b32 s{sT0}, s2, 7")
    a(f"s_lshr_b32 s{sTWB}, s{sT0}, 1")
    a(f"s_lshl_b32 s{sTWB}, s{sTWB}, 21")
    a(f"s_and_b32 s{sTZB}, s{sT0}, 1")
    a(f"s_mul_i32 s{sTZB}, s{sTZB}, {4*393216}")
    a(f"s_add_u32 s{sTZB}, s{sTZB}, {WS_Z2F}")
    sROT = 50
    if "norot" in K2X: a(f"s_mov_b32 s{sROT}, 0")
    else:
        a(f"s_and_b32 s{sROT}, s{sJ}, 3")
        a(f"s_lshl_b32 s{sROT}, s{sROT}, 1")
        a(f"s_add_u32 s{sROT}, s{sROT}, s{sRB}")
        if "rotw" in K2X:
            a(f"s_add_u32 s{sROT}, s{sROT}, s{sW}")
        a(f"s_and_b32 s{sROT}, s{sROT}, 7")
    def chunk(c, dst):
        a(f"s_add_u32 s{dst}, s{sROT}, {c}")
        a(f"s_and_b32 s{dst}, s{dst}, 7")
    def touch(c):
        if "notouch" in K2X: return
        a(f"s_lshr_b32 s{sT2}, s{sU}, 4")
        if "norot" in K2X: a(f"s_mov_b32 s{sT2}, 0")
        a(f"s_add_u32 s{sT2}, s{sT2}, {c}")
        a(f"s_and_b32 s{sT2}, s{sT2}, 7")
        a(f"s_lshl_b32 s{sT0}, s{sT2}, 7")
        a(f"s_add_u32 s{sT0}, s{sT0}, s{sTWB}")
        a(f"s_mov_b64 exec, 0xffff")
        a.vmem(f"buffer_load_dword v{vDm}, v{vTW}, s[{sWSP}:{sWSP+3}], s{sT0} offen")
        if "notz" in K2X:
            a(f"s_mov_b64 exec, -1")
            return
        a(f"s_add_u32 s{sT0}, s{sTZB}, {c*12288}")
        a(f"s_mov_b64 exec, 0xfff")
        a.vmem(f"buffer_load_dword v{vDm}, v{vTZ}, s[{sWS}:{sWS+3}], s{sT0} offen")
        a(f"s_mov_b64 exec, -1")
    a("s_waitcnt lgkmcnt(0)")
    ST("g_kernarg")
    z_id = {}; w_id = {}
    def load_z(ks):
        if "noz" in K2X:
            for ft in range(3): z_id[(ks, ft)] = a.vm - 1
            return
        chunk(ks//4, sT1)
        a(f"s_mul_i32 s{sT1}, s{sT1}, 12288")
        a(f"s_add_u32 s{sT1}, s{sT1}, s{sZ}")
        if ks % 4: a(f"s_add_u32 s{sT1}, s{sT1}, {(ks%4)*3072}")
        for ft in range(3):
            z_id[(ks, ft)] = a.vmem(f"buffer_load_dwordx4 v[{zf(ks,ft)}:{zf(ks,ft)+3}], v{vZ}, s[{sWS}:{sWS+3}], s{sT1} offen offset:{ft*1024}")
    def dma_w(c):
        sl = c & 1
        if "now" in K2X and c > 0:
            w_id[c] = a.vm - 1
            return
        chunk(c, sT3)
        a(f"s_lshl_b32 s{sT3}, s{sT3}, 7")
        a(f"s_add_u32 s{sT3}, s{sT3}, s{sWB}")
        for i in range(8):
            a(f"s_add_u32 s{sT1}, s{sT3}, {i*8*4096}")
            a(f"s_add_u32 m0, s{sLB}, {sl*8192 + i*1024}")
            w_id[c] = a.vmem(f"buffer_load_dwordx4 v{vWE if i % 2 == 0 else vWO}, s[{sWSP}:{sWSP+3}], s{sT1} offen lds")
    TL = int(os.environ.get("TL", "3"))
    touch(0); touch(1)
    dma_w(0)
    for ks in range(4): load_z(ks)
    for c in range(2, TL): touch(c)
    dma_w(1)
    for ks in range(4, ZDEPTH): load_z(ks)
    Z1 = V(12, 4); vB = V()
    a(f"s_lshl_b32 s{sT0}, s{sRB}, 3")
    a(f"s_add_u32 s{sT0}, s{sT0}, s{sJ}")
    a(f"s_lshl_b32 s{sT0}, s{sT0}, 2")
    a(f"s_add_u32 s{sT0}, s{sT0}, s{sW}")
    a(f"s_mul_i32 s{sT0}, s{sT0}, 3072")
    a(f"s_add_u32 s{sT0}, s{sT0}, {WS_Z1F}")
    for ft in range(3):
        a.vmem(f"buffer_load_dwordx4 v[{Z1+4*ft}:{Z1+4*ft+3}], v{vZ}, s[{sWS}:{sWS+3}], s{sT0} offen offset:{ft*1024}")
    a(f"v_and_b32 v{t0}, 31, v{vL}")
    a(f"v_lshlrev_b32 v{t0}, 1, v{t0}")
    a(f"s_lshr_b32 s{sT0}, s{sW}, 1")
    a(f"s_lshl_b32 s{sT0}, s{sT0}, 6")
    a(f"s_lshl_b32 s{sT1}, s{sRB}, 7")
    a(f"s_add_u32 s{sT0}, s{sT0}, s{sT1}")
    b_id = a.vmem(f"buffer_load_ushort v{vB}, v{t0}, s[{sBSP}:{sBSP+3}], s{sT0} offen")
    def read_w(ks):
        c = ks // 4; kk = ks % 4; b = ks & 1
        ids = []
        for tt in range(2):
            ids.append(a.ds(f"ds_read_b128 v[{wfr(b,tt)}:{wfr(b,tt)+3}], v{vWA[kk]} offset:{(c&1)*8192 + tt*4096}"))
        return ids[-1]
    a.wait_vm(w_id[0])
    ST("g_w0")
    rd = {0: read_w(0)}
    for ks in range(32):
        c = ks // 4
        if ks % 4 == 0 and c + TL < 8: touch(c + TL)
        if ks % 4 == 0 and "cst" in K2X: ST(f"c{c}")
        if ks + 1 < 32:
            if (ks + 1) % 4 == 0: a.wait_vm(w_id[(ks + 1)//4])
            rd[ks + 1] = read_w(ks + 1)
        a.wait_vm(z_id[(ks, 2)])
        a.wait_lg(rd[ks])
        b = ks & 1
        for ft in range(3):
            for tt in range(2):
                cc = "0" if ks == 0 else f"v[{acc(ft,tt)}:{acc(ft,tt)+15}]"
                if "nomfma" in K2X and ks > 0: continue
                a(f"v_mfma_f32_32x32x16_bf16 v[{acc(ft,tt)}:{acc(ft,tt)+15}], v[{zf(ks,ft)}:{zf(ks,ft)+3}], v[{wfr(b,tt)}:{wfr(b,tt)+3}], {cc}")
        if ks + ZDEPTH < 32: load_z(ks + ZDEPTH)
        if ks % 4 == 3 and c + 2 < 8: dma_w(c + 2)
    ST("g_loop")
    a("s_barrier")
    a(f"s_mul_i32 s{sT0}, s{sW}, 18432")
    a(f"v_add_u32 v{t0}, s{sT0}, v{vZ}")
    vD = [V() for _ in range(4)]
    for d in range(4):
        a(f"s_sub_u32 s{sT1}, {d + 3}, s{sW}")
        a(f"s_and_b32 s{sT1}, s{sT1}, 3")
        a(f"s_mul_i32 s{sT2}, s{sT1}, 6144")
        a(f"s_add_u32 s{sT2}, s{sT2}, s{sT0}")
        a(f"s_cmp_eq_u32 s{sT1}, 3")
        a(f"s_cselect_b32 s{sT2}, 73728, s{sT2}")
        a(f"v_add_u32 v{vD[d]}, s{sT2}, v{vZ}")
    for d in range(4):
        tt = d >> 1; g0 = d & 1
        for ft in range(3):
            for gh in range(2):
                r = acc(ft, tt) + 4*(g0 + 2*gh)
                a.ds(f"ds_write_b128 v{vD[d]}, v[{r}:{r+3}] offset:{(ft*2+gh)*1024}")
    a("s_waitcnt lgkmcnt(0)")
    a("s_barrier")
    OWN = ZF
    labs = [a.newlabel("g_own") for _ in range(4)]; lend = a.newlabel("g_ownend")
    for d in range(4):
        if d < 3:
            a(f"s_cmp_lg_u32 s{sW}, {d}")
            a(f"s_cbranch_scc1 {labs[d]}")
        tt = d >> 1; g0 = d & 1
        for ft in range(3):
            for gh in range(2):
                r = acc(ft, tt) + 4*(g0 + 2*gh)
                for e in range(4):
                    a(f"v_mov_b32 v{OWN + (ft*2+gh)*4 + e}, v{r+e}")
        if d < 3:
            a(f"s_branch {lend}")
            a.label(labs[d])
    a.label(lend)
    PT = ACC
    for k in range(3):
        a(f"s_add_u32 s{sT1}, s{sW}, {k + 1}")
        a(f"s_and_b32 s{sT1}, s{sT1}, 3")
        a(f"s_mul_i32 s{sT2}, s{sT1}, 18432")
        a(f"s_add_u32 s{sT2}, s{sT2}, {(2 - k)*6144}")
        a(f"v_add_u32 v{t0}, s{sT2}, v{vZ}")
        for q in range(6):
            a.ds(f"ds_read_b128 v[{PT + (k*6+q)*4}:{PT + (k*6+q)*4 + 3}], v{t0} offset:{q*1024}")
    a.wait_vm(b_id)
    a(f"v_lshlrev_b32 v{vB}, 16, v{vB}")
    a("s_waitcnt lgkmcnt(0)")
    for k in range(3):
        for i in range(0, 24, 2):
            a(f"v_pk_add_f32 v[{OWN+i}:{OWN+i+1}], v[{OWN+i}:{OWN+i+1}], v[{PT+k*24+i}:{PT+k*24+i+1}]")
    OUT = PT
    for ft in range(3):
        for gh in range(2):
            for pr in range(2):
                o = OWN + (ft*2+gh)*4 + 2*pr
                z = Z1 + 4*ft + 2*gh + pr
                a(f"v_add_f32 v{o}, v{o}, v{vB}")
                a(f"v_add_f32 v{o+1}, v{o+1}, v{vB}")
                a(f"v_lshlrev_b32 v{t1}, 16, v{z}")
                a(f"v_and_b32 v{t2}, 0xffff0000, v{z}")
                a(f"v_mul_f32 v{o}, v{o}, v{t1}")
                a(f"v_mul_f32 v{o+1}, v{o+1}, v{t2}")
                a(f"v_cvt_pk_bf16_f32 v{OUT + 4*ft + 2*gh + pr}, v{o}, v{o+1}")
    a(f"v_lshrrev_b32 v{t0}, 4, v{vL}")
    a(f"v_and_b32 v{t0}, 1, v{t0}")
    a(f"v_mul_u32_u24 v{t0}, {24*1024}, v{t0}")
    a(f"v_and_b32 v{t1}, 15, v{vL}")
    a(f"v_lshrrev_b32 v{t2}, 5, v{vL}")
    a(f"v_lshlrev_b32 v{t2}, 4, v{t2}")
    a(f"v_add_u32 v{t1}, v{t1}, v{t2}")
    a(f"v_lshlrev_b32 v{t1}, 4, v{t1}")
    a(f"v_add_u32 v{t0}, v{t0}, v{t1}")
    a(f"s_mul_i32 s{sT0}, s{sRB}, {4*24*1024}")
    a(f"s_lshr_b32 s{sT1}, s{sW}, 1")
    a(f"s_mul_i32 s{sT1}, s{sT1}, {2*24*1024}")
    a(f"s_add_u32 s{sT0}, s{sT0}, s{sT1}")
    a(f"s_mul_i32 s{sT1}, s{sJ}, 3072")
    a(f"s_add_u32 s{sT0}, s{sT0}, s{sT1}")
    a(f"s_and_b32 s{sT1}, s{sW}, 1")
    a(f"s_lshl_b32 s{sT1}, s{sT1}, 9")
    a(f"s_add_u32 s{sT0}, s{sT0}, s{sT1}")
    a(f"s_add_u32 s{sT0}, s{sT0}, {WS_PF}")
    for ft in range(3):
        a.vmem(f"buffer_store_dwordx4 v[{OUT+4*ft}:{OUT+4*ft+3}], v{t0}, s[{sWS}:{sWS+3}], s{sT0} offen offset:{ft*1024}")
    ST("g_end")
    ST.dump(sWS, sW, t0, t1, WS_DBG + 0x200000)

def gen_conv(a, V, ST, prof, name):
    sSSM, sWS, sDv = 4, 8, 12
    sC, sW, sCH = 32, 34, 35
    sT0, sT1, sT2, sT3 = 40, 41, 42, 43
    sH = 44
    sDD = 48
    a(f"s_load_dwordx2 s[{sSSM}:{sSSM+1}], s[0:1], {KA['ssmk']}")
    a(f"s_load_dwordx2 s[{sWS}:{sWS+1}], s[0:1], {KA['ws']}")
    a(f"s_load_dwordx2 s[{sDv}:{sDv+1}], s[0:1], {KA['ssmD']}")
    for srd, size in ((sSSM, SZ_SSMK), (sWS, WS_SIZE_DBG if prof else WS_END), (sDv, 1280)):
        a(f"s_mov_b32 s{srd+2}, {size}")
        a(f"s_mov_b32 s{srd+3}, {SRD3:#x}")
    vL = V(); vT = V(); t0, t1, t2 = V(), V(), V()
    a(f"v_lshrrev_b32 v{t0}, 6, v0")
    a(f"v_and_b32 v{vL}, 63, v0")
    a(f"v_readfirstlane_b32 s{sW}, v{t0}")
    a(f"s_sub_u32 s{sC}, s2, 256")
    a(f"v_lshlrev_b32 v{vT}, 4, v0")
    NCH = 3
    HR = V(8*NCH, 4)
    UR = V(4*NCH, 4)
    DR = V(NCH)
    vTm = V()
    a(f"v_subrev_u32 v{vTm}, 16, v{vT}")
    a("s_waitcnt lgkmcnt(0)")
    ST("c_kernarg")
    ld = {}
    def loads(i):
        a(f"s_add_u32 s{sCH}, s{sC}, {256*i}")
        a(f"s_min_u32 s{sCH}, s{sCH}, 639")
        a(f"s_lshl_b32 s{sT0}, s{sCH}, 12")
        a.vmem(f"buffer_load_dwordx4 v[{HR+8*i+4}:{HR+8*i+7}], v{vT}, s[{sSSM}:{sSSM+3}], s{sT0} offen")
        a.vmem(f"buffer_load_dwordx4 v[{HR+8*i}:{HR+8*i+3}], v{vTm}, s[{sSSM}:{sSSM+3}], s{sT0} offen")
        a(f"s_add_u32 s{sT0}, s{sT0}, {WS_KVT}")
        a.vmem(f"buffer_load_dwordx4 v[{UR+4*i}:{UR+4*i+3}], v{vT}, s[{sWS}:{sWS+3}], s{sT0} offen")
        a(f"s_lshl_b32 s{sT0}, s{sCH}, 1")
        a(f"v_mov_b32 v{t0}, 0")
        ld[i] = a.vmem(f"buffer_load_ushort v{DR+i}, v{t0}, s[{sDv}:{sDv+3}], s{sT0} offen")
    for i in range(NCH): loads(i)
    Zr = V(4, 4)
    for e in range(4): a(f"v_mov_b32 v{Zr+e}, 0")
    a(f"v_lshrrev_b32 v{t0}, 3, v0")
    a(f"v_mul_u32_u24 v{t0}, {CS_}, v{t0}")
    a(f"v_and_b32 v{t1}, 7, v0")
    a(f"v_lshlrev_b32 v{t1}, 4, v{t1}")
    a(f"v_add_u32 v{t0}, v{t0}, v{t1}")
    a(f"v_cmp_gt_u32 vcc, 64, v0")
    a(f"s_and_saveexec_b64 s[50:51], vcc")
    lz = a.newlabel("c_z")
    a(f"s_cbranch_execz {lz}")
    a.ds(f"ds_write_b128 v{t0}, v[{Zr}:{Zr+3}] offset:{TOEP}")
    a(f"v_cmp_gt_u32 vcc, 8, v0")
    a(f"s_and_b64 exec, exec, vcc")
    a.ds(f"ds_write_b128 v{vT}, v[{Zr}:{Zr+3}] offset:{UB}")
    a.label(lz)
    a(f"s_mov_b64 exec, s[50:51]")
    a("s_waitcnt lgkmcnt(0)")
    a("s_barrier")
    vTW = V()
    a(f"v_add_u32 v{vTW}, {OZ*16 + TOEP}, v{vT}")
    vUW = V()
    a(f"v_lshrrev_b32 v{t0}, 3, v0")
    a(f"v_mul_u32_u24 v{t0}, 144, v{t0}")
    a(f"v_and_b32 v{t1}, 7, v0")
    a(f"v_lshlrev_b32 v{t1}, 4, v{t1}")
    a(f"v_add_u32 v{vUW}, v{t0}, v{t1}")
    a(f"v_add_u32 v{vUW}, {UB + 144}, v{vUW}")
    vA = V()
    a(f"v_and_b32 v{t0}, 7, v{vL}")
    a(f"v_mul_u32_u24 v{t0}, {CS_}, v{t0}")
    a(f"v_and_b32 v{t1}, 31, v{vL}")
    a(f"v_lshrrev_b32 v{t1}, 3, v{t1}")
    a(f"v_lshrrev_b32 v{t2}, 5, v{vL}")
    a(f"v_sub_u32 v{t1}, v{t1}, v{t2}")
    a(f"v_lshlrev_b32 v{t1}, 4, v{t1}")
    a(f"v_add_u32 v{t0}, v{t0}, v{t1}")
    a(f"s_lshl_b32 s{sT0}, s{sW}, 10")
    a(f"s_add_u32 s{sT0}, s{sT0}, {TOEP + 16}")
    a(f"v_add_u32 v{vA}, s{sT0}, v{t0}")
    vBq = V()
    a(f"v_and_b32 v{t0}, 31, v{vL}")
    a(f"s_lshl_b32 s{sT0}, s{sW}, 3")
    a(f"v_subrev_u32 v{t0}, s{sT0}, v{t0}")
    a(f"v_max_i32 v{t0}, -1, v{t0}")
    a(f"v_add_u32 v{t0}, 1, v{t0}")
    a(f"v_mul_u32_u24 v{t0}, 144, v{t0}")
    a(f"v_lshrrev_b32 v{t1}, 5, v{vL}")
    a(f"v_lshlrev_b32 v{t1}, 4, v{t1}")
    a(f"v_add_u32 v{vBq}, v{t0}, v{t1}")
    vMask = V()
    a(f"v_and_b32 v{t0}, 31, v{vL}")
    a(f"v_cmp_ne_u32 vcc, 0, v{t0}")
    a(f"v_cndmask_b32 v{vMask}, 0, -1, vcc")
    DM = V(8, 4)
    a(f"v_and_b32 v{t0}, 31, v{vL}")
    a(f"v_lshrrev_b32 v{t1}, 5, v{vL}")
    a(f"v_lshlrev_b32 v{t1}, 3, v{t1}")
    a(f"v_add_u32 v{t1}, 7, v{t1}")
    a(f"v_sub_u32 v{t1}, v{t1}, v{t0}")
    for e in range(2):
        for dw in range(4):
            a(f"v_cmp_eq_u32 vcc, {2*dw - 16*e}, v{t1}")
            a(f"v_cndmask_b32 v{DM+4*e+dw}, 0, v{Zr}, vcc") if False else None
            a(f"v_mov_b32 v{t2}, 0xffff")
            a(f"v_cndmask_b32 v{DM+4*e+dw}, 0, v{t2}, vcc")
            a(f"v_cmp_eq_u32 vcc, {2*dw + 1 - 16*e}, v{t1}")
            a(f"v_mov_b32 v{t2}, 0xffff0000")
            a(f"v_cndmask_b32 v{t2}, 0, v{t2}, vcc")
            a(f"v_or_b32 v{DM+4*e+dw}, v{DM+4*e+dw}, v{t2}")
    vPW = V()
    a(f"v_and_b32 v{t0}, 31, v{vL}")
    a(f"v_mul_u32_u24 v{t0}, 272, v{t0}")
    a(f"v_lshrrev_b32 v{t1}, 5, v{vL}")
    a(f"v_lshlrev_b32 v{t1}, 4, v{t1}")
    a(f"v_add_u32 v{t0}, v{t0}, v{t1}")
    a(f"s_mul_i32 s{sT0}, s{sW}, 8704")
    a(f"s_add_u32 s{sT0}, s{sT0}, {PB}")
    a(f"v_add_u32 v{vPW}, s{sT0}, v{t0}")
    vPR = V()
    a(f"v_lshrrev_b32 v{t0}, 3, v0")
    a(f"v_mul_u32_u24 v{t0}, 272, v{t0}")
    a(f"v_and_b32 v{t1}, 7, v0")
    a(f"v_lshlrev_b32 v{t1}, 5, v{t1}")
    a(f"v_add_u32 v{vPR}, v{t0}, v{t1}")
    a(f"v_add_u32 v{vPR}, {PB}, v{vPR}")
    ACC = V(32, 4)
    BF = V(16, 4)
    NA = 10
    AF = V(NA*4, 4)
    EW = V(8, 4)
    TQ = V(4, 4)
    DG = V(8, 4)
    lend = f"{name}_cend"
    for i in range(NCH):
        a.comment(f"------- channel slot {i}")
        if i == 2:
            a(f"s_cmp_ge_u32 s{sC}, 128")
            a(f"s_cbranch_scc1 {lend}")
        a(f"s_add_u32 s{sCH}, s{sC}, {256*i}")
        a.wait_vm(ld[i])
        ST(f"c{i}_ld")
        d = HR + 8*i
        a(f"v_cmp_ne_u32 vcc, 0, v0")
        for e in range(4): a(f"v_cndmask_b32 v{d+e}, 0, v{d+e}, vcc")
        for e in range(7): a(f"v_alignbit_b32 v{EW+e}, v{d+e+1}, v{d+e}, 16")
        for c in range(8):
            st = c + 1
            if st % 2 == 0: src = d + st//2
            else: src = EW + (st-1)//2
            if (src % 2) != 0:
                for e in range(4): a(f"v_mov_b32 v{TQ+e}, v{src+e}")
                src = TQ
            a.ds(f"ds_write_b128 v{vTW}, v[{src}:{src+3}] offset:{c*CS_}")
            if src == TQ: a("s_nop 1")
        a.ds(f"ds_write_b128 v{vUW}, v[{UR+4*i}:{UR+4*i+3}]")
        a(f"v_lshlrev_b32 v{t0}, 16, v{DR+i}")
        a(f"v_or_b32 v{t0}, v{t0}, v{DR+i}")
        for e in range(8): a(f"v_and_b32 v{DG+e}, v{DM+e}, v{t0}")
        a("s_waitcnt lgkmcnt(0)")
        a("s_barrier")
        ST(f"c{i}_built")
        for ks in range(4):
            a.ds(f"ds_read_b128 v[{BF+4*ks}:{BF+4*ks+3}], v{vBq} offset:{UB + ks*32}")
        aid = {}
        def af(qq): return AF + ((qq + 3) % NA)*4
        def read_a(qq):
            aid[qq] = a.ds(f"ds_read_b128 v[{af(qq)}:{af(qq)+3}], v{vA} offset:{(2*qq + OZ)*16 - 16}")
        for qq in range(-3, 3): read_a(qq)
        started = [False, False]
        for dl in range(8):
            if dl < 7:
                for qq in range(4*dl + 3, 4*dl + 7): read_a(qq)
            a.wait_lg(aid[4*dl + 2])
            for ks in range(4):
                for mt in range(2):
                    qq = 4*dl + 2*mt - ks
                    c = f"v[{ACC+16*mt}:{ACC+16*mt+15}]" if started[mt] else "0"
                    started[mt] = True
                    a(f"v_mfma_f32_32x32x16_bf16 v[{ACC+16*mt}:{ACC+16*mt+15}], v[{af(qq)}:{af(qq)+3}], v[{BF+4*ks}:{BF+4*ks+3}], {c}")
                if dl == 0:
                    ls = a.newlabel("c_dg")
                    a(f"s_cmp_lg_u32 s{sW}, 0")
                    a(f"s_cbranch_scc1 {ls}")
                    mt = ks >> 1; e = ks & 1
                    a(f"v_mfma_f32_32x32x16_bf16 v[{ACC+16*mt}:{ACC+16*mt+15}], v[{DG+4*e}:{DG+4*e+3}], v[{BF+4*ks}:{BF+4*ks+3}], v[{ACC+16*mt}:{ACC+16*mt+15}]")
                    a.label(ls)
                if dl < 7:
                    for e in range(4):
                        a(f"v_and_b32_dpp v{BF+4*ks+e}, v{BF+4*ks+e}, v{vMask} wave_shr:1 row_mask:0xf bank_mask:0xf bound_ctrl:0")
        ST(f"c{i}_mfma")
        for mt in range(2):
            for g in range(4):
                r = ACC + 16*mt + 4*g
                a.ds(f"ds_write_b128 v{vPW}, v[{r}:{r+3}] offset:{(32*mt + 8*g)*4}")
        a("s_waitcnt lgkmcnt(0)")
        a("s_barrier")
        PT = AF
        for w in range(4):
            a.ds(f"ds_read_b128 v[{PT+8*w}:{PT+8*w+3}], v{vPR} offset:{w*8704}")
            a.ds(f"ds_read_b128 v[{PT+8*w+4}:{PT+8*w+7}], v{vPR} offset:{w*8704 + 16}")
        a("s_waitcnt lgkmcnt(0)")
        for w in range(1, 4):
            for e in range(0, 8, 2):
                a(f"v_pk_add_f32 v[{PT+e}:{PT+e+1}], v[{PT+e}:{PT+e+1}], v[{PT+8*w+e}:{PT+8*w+e+1}]")
        for e in range(4):
            a(f"v_cvt_pk_bf16_f32 v{TQ+e}, v{PT+2*e}, v{PT+2*e+1}")
        a(f"s_lshl_b32 s{sT0}, s{sCH}, 12")
        a(f"s_add_u32 s{sT0}, s{sT0}, {WS_YT}")
        a.vmem(f"buffer_store_dwordx4 v[{TQ}:{TQ+3}], v{vT}, s[{sWS}:{sWS+3}], s{sT0} offen")
        a("s_nop 1")
        ST(f"c{i}_done")
    a.label(lend)
    ST.dump(sWS, sW, t0, t1, WS_DBG + 0x400000)

def gen_k2(name="k2_kernel", prof=False):
    a = Asm()
    a.raw(f".globl {name}\n.p2align 8\n.type {name},@function\n{name}:")
    a(f"s_cmp_ge_u32 s2, 512")
    a(f"s_cbranch_scc1 {name}_end")
    a(f"s_cmp_ge_u32 s2, 256")
    a(f"s_cbranch_scc1 {name}_conv" if "noconv" not in K2X else f"s_cbranch_scc1 {name}_end")
    ST = Stamps(a, enabled=prof); ST("g_start")
    V = Alloc(1, 256, "v")
    gen_gemm(a, V, ST, prof)
    a("s_endpgm")
    hi = V.hi
    a.label(f"{name}_conv")
    a.vm = 0; a.lg = 0
    ST2 = Stamps(a, enabled=prof); ST2("c_start")
    V2 = Alloc(1, 256, "v")
    gen_conv(a, V2, ST2, prof, name)
    a.label(f"{name}_end")
    a("s_endpgm")
    gen_k2.stamp_names = {"k2g": ST.names, "k2c": ST2.names}
    return a.finish(), max(hi, V2.hi)
```

```python
from dsl import *
from layout import *
from k1 import f32
WO = 0; XT = 122880; YTL = 133120; OT = 143360; LDS = 153600
LOG2E = 1.4426950408889634

import os
def gen_k3(name="k3_kernel", prof=False):
    K3X = os.environ.get("K3X", "")
    a = Asm()
    ST = Stamps(a, enabled=prof)
    V = Alloc(1, 256, "v")
    sWO, sX, sWS, sOUT = 4, 8, 12, 16
    sRB, sDJ, sW = 32, 33, 34
    sT0, sT1, sT2, sT3 = 40, 41, 42, 43
    sCOL, sXB = 44, 45
    a.raw(f".globl {name}\n.p2align 8\n.type {name},@function\n{name}:")
    a(f"s_cmp_ge_u32 s2, 256")
    a(f"s_cbranch_scc1 {name}_end")
    ST("start")
    a(f"s_load_dwordx2 s[{sWO}:{sWO+1}], s[0:1], {KA['wout']}")
    a(f"s_load_dwordx2 s[{sX}:{sX+1}], s[0:1], {KA['q']}")
    a(f"s_load_dwordx2 s[{sWS}:{sWS+1}], s[0:1], {KA['ws']}")
    a(f"s_load_dwordx2 s[{sOUT}:{sOUT+1}], s[0:1], {KA['out']}")
    for srd, size in ((sWO, SZ_WOUT), (sX, SZ_X), (sWS, WS_SIZE_DBG if prof else WS_END), (sOUT, SZ_X)):
        a(f"s_mov_b32 s{srd+2}, {size}")
        a(f"s_mov_b32 s{srd+3}, {SRD3:#x}")
    vL, vQ, vP = V(), V(), V(); t0, t1, t2 = V(), V(), V()
    a(f"v_lshrrev_b32 v{t0}, 6, v0")
    a(f"v_and_b32 v{vL}, 63, v0")
    a(f"v_readfirstlane_b32 s{sW}, v{t0}")
    a(f"v_lshrrev_b32 v{vQ}, 4, v{vL}")
    a(f"v_and_b32 v{vP}, 15, v{vL}")
    a(f"s_and_b32 s{sT0}, s2, 7")
    a(f"s_lshr_b32 s{sT1}, s2, 3")
    a(f"s_lshr_b32 s{sRB}, s{sT0}, 1")
    a(f"s_lshl_b32 s{sRB}, s{sRB}, 3")
    a(f"s_and_b32 s{sT2}, s{sT1}, 7")
    a(f"s_add_u32 s{sRB}, s{sRB}, s{sT2}")
    a(f"s_and_b32 s{sDJ}, s{sT0}, 1")
    a(f"s_lshl_b32 s{sDJ}, s{sDJ}, 2")
    a(f"s_lshr_b32 s{sT2}, s{sT1}, 3")
    a(f"s_add_u32 s{sDJ}, s{sDJ}, s{sT2}")
    a(f"s_mul_i32 s{sCOL}, s{sDJ}, 160")
    a(f"s_mul_i32 s{sXB}, s{sRB}, {64*1280}")
    a(f"s_add_u32 s{sXB}, s{sXB}, s{sCOL}")
    vO = [V() for _ in range(5)]
    for r in range(5):
        a(f"v_add_u32 v{t0}, {64*r}, v{vL}")
        a(f"v_mul_u32_u24 v{t1}, 6554, v{t0}")
        a(f"v_lshrrev_b32 v{t1}, 16, v{t1}")
        a(f"v_mul_u32_u24 v{t2}, 10, v{t1}")
        a(f"v_sub_u32 v{t0}, v{t0}, v{t2}")
        a(f"v_lshlrev_b32 v{t0}, 4, v{t0}")
        a(f"v_mul_u32_u24 v{t1}, 1280, v{t1}")
        a(f"v_add_u32 v{vO[r]}, v{t0}, v{t1}")
    vZ = V()
    a(f"v_lshlrev_b32 v{vZ}, 4, v{vL}")
    PFr = V(96, 4)
    a("s_waitcnt lgkmcnt(0)")
    ST("kernarg")
    p_id = {}; w_id = {}
    a(f"s_mul_i32 s{sT0}, s{sRB}, {4*24*1024}")
    a(f"s_mul_i32 s{sT1}, s{sW}, {24*1024}")
    a(f"s_add_u32 s{sT3}, s{sT0}, s{sT1}")
    a(f"s_add_u32 s{sT3}, s{sT3}, {WS_PF}")
    def dma_w(m):
        a(f"s_mul_i32 s{sT0}, s{sW}, {32*1280}")
        a(f"s_add_u32 s{sT0}, s{sT0}, {m*4*32*1280}")
        a(f"s_add_u32 s{sT0}, s{sT0}, s{sCOL}")
        a(f"s_mul_i32 s{sT1}, s{sW}, 5120")
        for r in range(5):
            a(f"s_add_u32 m0, s{sT1}, {WO + m*4*5120 + r*1024}")
            w_id[m] = a.vmem(f"buffer_load_dwordx4 v{vO[r]}, s[{sWO}:{sWO+3}], s{sT0} offen lds")
    def load_p(ks):
        a(f"s_add_u32 s{sT2}, s{sT3}, {(ks//4)*4096}")
        p_id[ks] = a.vmem(f"buffer_load_dwordx4 v[{PFr+4*ks}:{PFr+4*ks+3}], v{vZ}, s[{sWS}:{sWS+3}], s{sT2} offen offset:{(ks%4)*1024}")
    for m in range(6):
        if "now" in K3X: w_id[m] = a.vmem(f"buffer_load_dword v{t2}, v{vZ}, s[{sWO}:{sWO+3}], 0 offen")
        else: dma_w(m)
        for ks in range(4*m, 4*m + 4):
            if "nop" in K3X: p_id[ks] = w_id[m]
            else: load_p(ks)
        if m == 0 and "nobar" not in K3X: a("s_barrier")
        if "st" in K3X: ST(f"i{m}")
    lx = a.newlabel("k3_y"); lx2 = a.newlabel("k3_xy")
    a(f"s_cmp_ge_u32 s{sW}, 2")
    a(f"s_cbranch_scc1 {lx}")
    a(f"s_mul_i32 s{sT0}, s{sW}, {32*1280}")
    a(f"s_add_u32 s{sT0}, s{sT0}, s{sXB}")
    a(f"s_mul_i32 s{sT1}, s{sW}, 5120")
    for r in range(5):
        a(f"s_add_u32 m0, s{sT1}, {XT + r*1024}")
        a(f"buffer_load_dwordx4 v{vO[r]}, s[{sX}:{sX+3}], s{sT0} offen lds")
    a(f"s_branch {lx2}")
    a.label(lx)
    a(f"v_lshrrev_b32 v{t0}, 3, v{vL}")
    a(f"v_lshlrev_b32 v{t0}, 12, v{t0}")
    a(f"v_and_b32 v{t1}, 7, v{vL}")
    a(f"v_lshlrev_b32 v{t1}, 4, v{t1}")
    a(f"v_add_u32 v{t0}, v{t0}, v{t1}")
    a(f"s_sub_u32 s{sT2}, s{sW}, 2")
    a(f"s_mul_i32 s{sT0}, s{sT2}, 40")
    a(f"s_mul_i32 s{sT1}, s{sDJ}, 80")
    a(f"s_add_u32 s{sT0}, s{sT0}, s{sT1}")
    a(f"s_lshl_b32 s{sT0}, s{sT0}, 12")
    a(f"s_lshl_b32 s{sT1}, s{sRB}, 7")
    a(f"s_add_u32 s{sT0}, s{sT0}, s{sT1}")
    a(f"s_add_u32 s{sT0}, s{sT0}, {WS_YT}")
    a(f"s_mul_i32 s{sT1}, s{sT2}, 5120")
    for r in range(5):
        a(f"s_add_u32 m0, s{sT1}, {YTL + r*1024}")
        a(f"buffer_load_dwordx4 v{t0}, s[{sWS}:{sWS+3}], s{sT0} offen lds")
        a(f"s_add_u32 s{sT0}, s{sT0}, {8*4096}")
    a.label(lx2)
    a.vm -= 5
    a.vm += 0
    XS = V(2, 2)
    a(f"s_lshl_b32 s{sT0}, s{sRB}, 9")
    a(f"s_lshl_b32 s{sT1}, s{sW}, 7")
    a(f"s_add_u32 s{sT0}, s{sT0}, s{sT1}")
    a(f"s_add_u32 s{sT0}, s{sT0}, {WS_XST}")
    a(f"v_lshlrev_b32 v{t0}, 3, v{vP}")
    xs_id = a.vmem(f"buffer_load_dwordx2 v[{XS}:{XS+1}], v{t0}, s[{sWS}:{sWS+3}], s{sT0} offen")
    vA = [V(), V()]
    a(f"v_lshlrev_b32 v{t0}, 2, v{vQ}")
    a(f"v_lshrrev_b32 v{t1}, 2, v{vP}")
    a(f"v_add_u32 v{t0}, v{t0}, v{t1}")
    a(f"v_mul_u32_u24 v{t0}, 160, v{t0}")
    a(f"v_and_b32 v{t1}, 3, v{vP}")
    a(f"v_lshlrev_b32 v{t1}, 3, v{t1}")
    a(f"v_add_u32 v{vA[0]}, v{t0}, v{t1}")
    a(f"v_add_u32 v{vA[1]}, {12*5120}, v{vA[0]}")
    ACC = V(20, 4)
    AF = V(40, 4)
    def read_a(ks):
        b = ks & 1; ids = []
        base = vA[0] if ks < 12 else vA[1]
        o = WO + (ks % 12)*5120
        for dt in range(5):
            r = AF + (b*5 + dt)*4
            a.ds(f"ds_read_b64_tr_b16 v[{r}:{r+1}], v{base} offset:{o + dt*32}")
            ids.append(a.ds(f"ds_read_b64_tr_b16 v[{r+2}:{r+3}], v{base} offset:{o + 2560 + dt*32}"))
        return ids
    rd = {}
    for m in range(6):
        a.wait_vm(w_id[m])
        a("s_barrier")
        ST(f"m{m}")
        rd[4*m] = read_a(4*m)
        for ks in range(4*m, 4*m + 4):
            if ks + 1 < 4*m + 4: rd[ks+1] = read_a(ks + 1)
            a.wait_vm(p_id[ks])
            b = ks & 1
            for dt in range(5):
                a.wait_lg(rd[ks][dt])
                r = AF + (b*5 + dt)*4
                c = "0" if ks == 0 else f"v[{ACC+4*dt}:{ACC+4*dt+3}]"
                a(f"v_mfma_f32_16x16x32_bf16 v[{ACC+4*dt}:{ACC+4*dt+3}], v[{r}:{r+3}], v[{PFr+4*ks}:{PFr+4*ks+3}], {c}")
    ST("loop")
    a("s_waitcnt vmcnt(0)")
    a("s_barrier")
    XV = AF; YV = AF + 10
    a(f"s_lshl_b32 s{sT0}, s{sW}, 4")
    a(f"v_add_u32 v{t0}, s{sT0}, v{vP}")
    a(f"v_mul_u32_u24 v{t0}, 160, v{t0}")
    a(f"v_lshlrev_b32 v{t1}, 3, v{vQ}")
    vXA = V()
    a(f"v_add_u32 v{vXA}, v{t0}, v{t1}")
    for dt in range(5):
        a.ds(f"ds_read_b64 v[{XV+2*dt}:{XV+2*dt+1}], v{vXA} offset:{XT % 65536 + dt*32}") if False else None
    vX2 = V()
    a(f"v_add_u32 v{vX2}, {XT}, v{vXA}")
    for dt in range(5):
        a.ds(f"ds_read_b64 v[{XV+2*dt}:{XV+2*dt+1}], v{vX2} offset:{dt*32}")
    a(f"v_lshlrev_b32 v{t0}, 2, v{vQ}")
    a(f"v_lshrrev_b32 v{t1}, 2, v{vP}")
    a(f"v_add_u32 v{t0}, v{t0}, v{t1}")
    a(f"v_lshlrev_b32 v{t0}, 7, v{t0}")
    a(f"v_and_b32 v{t1}, 3, v{vP}")
    a(f"v_lshlrev_b32 v{t1}, 3, v{t1}")
    a(f"v_add_u32 v{t0}, v{t0}, v{t1}")
    a(f"s_lshl_b32 s{sT0}, s{sW}, 5")
    a(f"s_add_u32 s{sT0}, s{sT0}, {YTL}")
    a(f"v_add_u32 v{t0}, s{sT0}, v{t0}")
    for dt in range(5):
        a.ds(f"ds_read_b64_tr_b16 v[{YV+2*dt}:{YV+2*dt+1}], v{t0} offset:{dt*2048}")
    a("s_waitcnt lgkmcnt(0)")
    T = AF + 20
    sL = 46
    a(f"s_mov_b32 s{sL}, {f32(-LOG2E):#x}")
    OV = PFr
    for dt in range(5):
        for pr in range(2):
            b0 = ACC + 4*dt + 2*pr
            xr = XV + 2*dt + pr; yr = YV + 2*dt + pr
            x0, x1, y0, y1, e0, e1 = T, T+1, T+2, T+3, T+4, T+5
            a(f"v_lshlrev_b32 v{x0}, 16, v{xr}")
            a(f"v_and_b32 v{x1}, 0xffff0000, v{xr}")
            a(f"v_lshlrev_b32 v{y0}, 16, v{yr}")
            a(f"v_and_b32 v{y1}, 0xffff0000, v{yr}")
            a(f"v_mul_f32 v{e0}, s{sL}, v{b0}")
            a(f"v_mul_f32 v{e1}, s{sL}, v{b0+1}")
            a(f"v_exp_f32 v{e0}, v{e0}")
            a(f"v_exp_f32 v{e1}, v{e1}")
            a(f"v_add_f32 v{e0}, 1.0, v{e0}")
            a(f"v_add_f32 v{e1}, 1.0, v{e1}")
            a(f"v_rcp_f32 v{e0}, v{e0}")
            a(f"v_rcp_f32 v{e1}, v{e1}")
            a(f"v_mul_f32 v{e0}, v{e0}, v{b0}")
            a(f"v_mul_f32 v{e1}, v{e1}, v{b0+1}")
            for (xx, yy, ee) in ((x0, y0, e0), (x1, y1, e1)):
                n = T + 6
                a(f"v_sub_f32 v{n}, v{xx}, v{XS}")
                a(f"v_mul_f32 v{n}, v{n}, v{XS+1}")
                a(f"v_mul_f32 v{n}, v{n}, v{yy}")
                a(f"v_fma_f32 v{xx}, v{n}, v{ee}, v{xx}")
            a(f"v_cvt_pk_bf16_f32 v{OV + 2*dt + pr}, v{x0}, v{x1}")
    vOW = V()
    a(f"v_add_u32 v{vOW}, {OT}, v{vXA}")
    for dt in range(5):
        a.ds(f"ds_write_b64 v{vOW}, v[{OV+2*dt}:{OV+2*dt+1}] offset:{dt*32}")
    a("s_waitcnt lgkmcnt(0)")
    a(f"s_mul_i32 s{sT0}, s{sW}, 2560")
    a(f"s_add_u32 s{sT0}, s{sT0}, {OT}")
    a(f"v_add_u32 v{t0}, s{sT0}, v{vZ}")
    for r in range(3):
        a.ds(f"ds_read_b128 v[{T+4*r}:{T+4*r+3}], v{t0} offset:{r*1024}")
    a(f"s_mul_i32 s{sT0}, s{sW}, {16*1280}")
    a(f"s_add_u32 s{sT0}, s{sT0}, s{sXB}")
    a("s_waitcnt lgkmcnt(0)")
    for r in range(3):
        if r == 2: a(f"s_mov_b32 exec_hi, 0")
        a.vmem(f"buffer_store_dwordx4 v[{T+4*r}:{T+4*r+3}], v{vO[r]}, s[{sOUT}:{sOUT+3}], s{sT0} offen")
    a(f"s_mov_b64 exec, -1")
    ST("end")
    ST.dump(sWS, sW, t0, t1, WS_DBG + 0x600000)
    gen_k3.stamp_names = ST.names
    a.label(f"{name}_end")
    a("s_endpgm")
    return a.finish(), V.hi
```

```python
import sys, os
sys.path.insert(0, 'gen')
from dsl import *
from layout import *
import k1
def build(kernels, path):
    hdr = open('recurrent_scan__ssm_conv_h3__mixer_gmlp__prompt.s.ref').read().split("; Override launch geometry")[0]
    out = hdr
    texts = []; descs = []
    seen = set()
    for (name, grid, block, lds, text, vg) in kernels:
        out += f"; @launch kernel={name} grid=({grid},1,1) block=({block},1,1) lds={lds}\n"
        if name in seen: continue
        seen.add(name)
        texts.append(text); descs.append(kernel_desc(name, vg))
    out += '.amdgcn_target "amdgcn-amd-amdhsa--gfx950"\n.text\n'
    out += "\n".join(texts)
    out += '.section .rodata,"a"\n' + "".join(descs)
    open(path, 'w').write(out)
if __name__ == "__main__":
    which = sys.argv[1] if len(sys.argv) > 1 else "all"
    path = sys.argv[2] if len(sys.argv) > 2 else "cur.s"
    ks = []
    prof = "--prof" in sys.argv
    t, vg = k1.gen_k1(prof=prof); print("k1 vgprs", vg); ks.append(("k1_kernel", 256, 512, 163840, t, max(vg, 8)))
    if which != "k1":
        import k2
        t, vg = k2.gen_k2(prof=prof); print("k2 vgprs", vg); ks.append(("k2_kernel", 512, 256, 81920, t, vg))
    if which == "all":
        import k3
        t, vg = k3.gen_k3(prof=prof); print("k3 vgprs", vg); ks.append(("k3_kernel", 256, 256, k3.LDS, t, vg))
    if prof: ks = [(n, g, b, l, t, 256) for (n, g, b, l, t, v) in ks]
    if os.environ.get('DUPK1'): ks.insert(1, ks[0])
    if os.environ.get('DUPK2'): ks.insert(2, ks[1])
    if os.environ.get('DUPK3'): ks.append(ks[-1])
    build(ks, path)
    if prof:
        import json
        d = {'k1': k1.gen_k1.stamp_names}
        if which != 'k1': d.update(k2.gen_k2.stamp_names)
        if which == 'all': d['k3'] = k3.gen_k3.stamp_names
        json.dump(d, open(path + '.stamps.json', 'w'))
```

```python
from dsl import *
from layout import *
from k1 import f32, Filler, run, mask, P
import os
K2X = os.environ.get('K2X', '')

ZDEPTH = int(os.environ.get('ZD', '4'))
CS_ = 4160
TOEP = 0
OZ = 3
UB = 8 * CS_
PB = UB + 7680
PT_ = 4608
WJ = PB + 7*PT_
assert WJ + 5120 <= 81920

def gen_gemm(a, V, ST, prof):
    sWSP, sWS, sBSP = 4, 8, 12
    sRB, sJ, sW = 32, 33, 34
    sT0, sT1, sT2, sT3 = 40, 41, 42, 43
    sZ, sWB, sLB = 44, 45, 46
    a(f"s_load_dwordx2 s[{sWSP}:{sWSP+1}], s[0:1], {KA['wsp']}")
    a(f"s_load_dwordx2 s[{sWS}:{sWS+1}], s[0:1], {KA['ws']}")
    a(f"s_load_dwordx2 s[{sBSP}:{sBSP+1}], s[0:1], {KA['bsp']}")
    vL = V(); t0, t1, t2 = V(), V(), V()
    a(f"v_lshrrev_b32 v{t0}, 6, v0")
    a(f"v_and_b32 v{vL}, 63, v0")
    a(f"v_readfirstlane_b32 s{sW}, v{t0}")
    for srd, size in ((sWSP, SZ_WSP), (sWS, WS_SIZE_DBG if prof else WS_END), (sBSP, 4096)):
        a(f"s_mov_b32 s{srd+2}, {size}")
        a(f"s_mov_b32 s{srd+3}, {SRD3:#x}")
    a(f"s_and_b32 s{sT0}, s2, 7")
    a(f"s_lshr_b32 s{sT1}, s2, 3")
    a(f"s_and_b32 s{sT1}, s{sT1}, 31")
    a(f"s_lshr_b32 s{sRB}, s{sT0}, 1")
    a(f"s_lshl_b32 s{sRB}, s{sRB}, 3")
    a(f"s_and_b32 s{sT2}, s{sT1}, 7")
    a(f"s_add_u32 s{sRB}, s{sRB}, s{sT2}")
    a(f"s_and_b32 s{sJ}, s{sT0}, 1")
    a(f"s_lshl_b32 s{sJ}, s{sJ}, 2")
    a(f"s_lshr_b32 s{sT2}, s{sT1}, 3")
    a(f"s_add_u32 s{sJ}, s{sJ}, s{sT2}")
    a(f"s_lshl_b32 s{sZ}, s{sJ}, 7")
    a(f"s_lshl_b32 s{sT0}, s{sW}, 5")
    a(f"s_add_u32 s{sZ}, s{sZ}, s{sT0}")
    a(f"s_mul_i32 s{sZ}, s{sZ}, 3072")
    a(f"s_add_u32 s{sZ}, s{sZ}, {WS_Z2F}")
    a(f"s_lshl_b32 s{sWB}, s{sRB}, 18")
    a(f"s_lshl_b32 s{sT0}, s{sW}, 10")
    a(f"s_add_u32 s{sWB}, s{sWB}, s{sT0}")
    a(f"s_lshl_b32 s{sLB}, s{sW}, 14")
    vZ = V()
    a(f"v_lshlrev_b32 v{vZ}, 4, v{vL}")
    vWE, vWO = V(), V()
    a(f"v_lshrrev_b32 v{t0}, 3, v{vL}")
    a(f"v_lshlrev_b32 v{t0}, 12, v{t0}")
    a(f"v_and_b32 v{t1}, 7, v{vL}")
    a(f"v_lshrrev_b32 v{t2}, 4, v{vL}")
    a(f"v_xor_b32 v{t1}, v{t1}, v{t2}")
    a(f"v_lshl_add_u32 v{vWE}, v{t1}, 4, v{t0}")
    a(f"v_xor_b32 v{vWO}, 64, v{vWE}")
    sROT = 50
    if "rot" in K2X:
        a(f"s_and_b32 s{sROT}, s{sJ}, 3")
        a(f"s_lshl_b32 s{sROT}, s{sROT}, 1")
        a(f"s_add_u32 s{sROT}, s{sROT}, s{sRB}")
        a(f"s_and_b32 s{sROT}, s{sROT}, 7")
    else: a(f"s_mov_b32 s{sROT}, 0")
    def chunk(c, dst):
        a(f"s_add_u32 s{dst}, s{sROT}, {c}")
        a(f"s_and_b32 s{dst}, s{dst}, 7")
    ACC = V(96, 4)
    def acc(ft, tt): return ACC + (ft*2 + tt)*16
    ZF = V((ZDEPTH+1)*12, 4)
    def zf(ks, ft): return ZF + ((ks % (ZDEPTH+1))*3 + ft)*4
    WFr = V(16, 4)
    def wfr(b, tt): return WFr + (b*2 + tt)*4
    z_id = {}; w_id = {}
    sZc = [52, 53]; sWc = [54, 55]
    def z_base(c):
        chunk(c, sZc[c & 1])
        a(f"s_mul_i32 s{sZc[c & 1]}, s{sZc[c & 1]}, 12288")
        a(f"s_add_u32 s{sZc[c & 1]}, s{sZc[c & 1]}, s{sZ}")
    def w_base(c):
        chunk(c, sWc[c & 1])
        a(f"s_lshl_b32 s{sWc[c & 1]}, s{sWc[c & 1]}, 7")
        a(f"s_add_u32 s{sWc[c & 1]}, s{sWc[c & 1]}, s{sWB}")
    def load_z_g(ks):
        c = ks // 4
        if ks % 4 == 0: z_base(c)
        for ft in range(3):
            so = sZc[c & 1]
            if ks % 4:
                a(f"s_add_u32 s{sT1}, s{sZc[c & 1]}, {(ks%4)*3072}"); so = sT1
            z_id[(ks, ft)] = a.vmem(f"buffer_load_dwordx4 v[{zf(ks,ft)}:{zf(ks,ft)+3}], v{vZ}, s[{sWS}:{sWS+3}], s{so} offen offset:{ft*1024}")
            yield
    def dma_w_g(c, lo, hi):
        sl = c & 1
        if lo == 0: w_base(c)
        for i in range(lo, hi):
            a(f"s_add_u32 s{sT2}, s{sWc[c & 1]}, {i*8*4096}")
            a(f"s_add_u32 m0, s{sLB}, {sl*8192 + i*1024}")
            w_id[c] = a.vmem(f"buffer_load_dwordx4 v{vWE if i % 2 == 0 else vWO}, s[{sWSP}:{sWSP+3}], s{sT2} offen lds")
            yield
    a("s_waitcnt lgkmcnt(0)")
    ST("g_kernarg")
    run(load_z_g(0)); run(dma_w_g(0, 0, 8))
    for ks in range(1, ZDEPTH): run(load_z_g(ks))
    vWA = [V() for _ in range(4)]
    a(f"v_and_b32 v{t0}, 31, v{vL}")
    a(f"v_lshrrev_b32 v{t1}, 1, v{t0}")
    a(f"v_and_b32 v{t1}, 7, v{t1}")
    a(f"v_lshrrev_b32 v{t2}, 5, v{vL}")
    a(f"v_xor_b32 v{t1}, v{t1}, v{t2}")
    a(f"v_lshl_add_u32 v{t0}, v{t0}, 7, s{sLB}")
    for kk in range(4):
        a(f"v_xor_b32 v{t2}, {2*kk}, v{t1}")
        a(f"v_lshl_add_u32 v{vWA[kk]}, v{t2}, 4, v{t0}")
    Z1 = V(12, 4); vB = V()
    ep = {}
    def epi_loads():
        a(f"s_lshl_b32 s{sT0}, s{sRB}, 3")
        a(f"s_add_u32 s{sT0}, s{sT0}, s{sJ}")
        a(f"s_lshl_b32 s{sT0}, s{sT0}, 2")
        a(f"s_add_u32 s{sT0}, s{sT0}, s{sW}")
        a(f"s_mul_i32 s{sT0}, s{sT0}, 3072")
        a(f"s_add_u32 s{sT0}, s{sT0}, {WS_Z1F}")
        for ft in range(3):
            a.vmem(f"buffer_load_dwordx4 v[{Z1+4*ft}:{Z1+4*ft+3}], v{vZ}, s[{sWS}:{sWS+3}], s{sT0} offen offset:{ft*1024}")
            yield
        a(f"v_and_b32 v{t0}, 31, v{vL}")
        a(f"v_lshlrev_b32 v{t0}, 1, v{t0}")
        a(f"s_lshr_b32 s{sT0}, s{sW}, 1")
        a(f"s_lshl_b32 s{sT0}, s{sT0}, 6")
        a(f"s_lshl_b32 s{sT3}, s{sRB}, 7")
        a(f"s_add_u32 s{sT0}, s{sT0}, s{sT3}")
        ep['b'] = a.vmem(f"buffer_load_ushort v{vB}, v{t0}, s[{sBSP}:{sBSP+3}], s{sT0} offen")
        yield
    def read_w(ks):
        c = ks // 4; kk = ks % 4; b = ks & 1
        ids = []
        for tt in range(2):
            ids.append(a.ds(f"ds_read_b128 v[{wfr(b,tt)}:{wfr(b,tt)+3}], v{vWA[kk]} offset:{(c&1)*8192 + tt*4096}"))
        return ids[-1]
    a.wait_vm(w_id[0])
    ST("g_w0")
    if "noprio" not in K2X: a("s_setprio 2")
    rd = {0: read_w(0)}
    for ks in range(32):
        c = ks // 4
        if ks % 4 == 0 and "cst" in K2X: ST(f"c{c}")
        a.wait_vm(z_id[(ks, 2)])
        a.wait_lg(rd[ks])
        fl = Filler()
        def rdw(k=ks):
            if (k + 1) % 4 == 0: a.wait_vm(w_id[(k + 1)//4])
            rd[k + 1] = read_w(k + 1)
            yield
        if ks + 1 < 32: fl.add(rdw())
        if ks + ZDEPTH < 32: fl.add(load_z_g(ks + ZDEPTH))
        if ks == 0: fl.add(dma_w_g(1, 0, 4))
        if ks == 1: fl.add(dma_w_g(1, 4, 8))
        for n in range(2, 8):
            if ks == 4*(n-1) - 1: fl.add(dma_w_g(n, 0, 2))
            if ks == 4*(n-1): fl.add(dma_w_g(n, 2, 5))
            if ks == 4*(n-1) + 1: fl.add(dma_w_g(n, 5, 8))
        if ks == 30: fl.add(epi_loads())
        b = ks & 1
        for ft in range(3):
            for tt in range(2):
                cc = "0" if ks == 0 else f"v[{acc(ft,tt)}:{acc(ft,tt)+15}]"
                if not ("nomfma" in K2X and ks > 0):
                    a(f"v_mfma_f32_32x32x16_bf16 v[{acc(ft,tt)}:{acc(ft,tt)+15}], v[{zf(ks,ft)}:{zf(ks,ft)+3}], v[{wfr(b,tt)}:{wfr(b,tt)+3}], {cc}")
                fl.step(1)
        fl.drain()
    ST("g_loop")
    a("s_setprio 0")
    OWN = ZF
    lend = a.newlabel("g_epi_end")
    labs = [a.newlabel("g_epi") for _ in range(4)]
    a(f"v_add_u32 v{t2}, 0x10000, v{vZ}")
    a("s_nop 15")
    a("s_barrier")
    lg0 = a.lg
    for w in range(4):
        if w < 3:
            a(f"s_cmp_lg_u32 s{sW}, {w}")
            a(f"s_cbranch_scc1 {labs[w]}")
        a.lg = lg0
        for d in range(4):
            if d == w: continue
            tt = d >> 1; g0 = d & 1
            k = (w - d - 1) & 3
            for ft in range(3):
                for gh in range(2):
                    r = acc(ft, tt) + 4*(g0 + 2*gh)
                    off = d*18432 + k*6144 + (ft*2+gh)*1024
                    if off >= 65536: a.ds(f"ds_write_b128 v{t2}, v[{r}:{r+3}] offset:{off - 65536}")
                    else: a.ds(f"ds_write_b128 v{vZ}, v[{r}:{r+3}] offset:{off}")
        tt = w >> 1; g0 = w & 1
        for ft in range(3):
            for gh in range(2):
                r = acc(ft, tt) + 4*(g0 + 2*gh)
                for e in range(0, 4, 2):
                    a(f"v_pk_add_f32 {P(OWN + (ft*2+gh)*4 + e)}, {P(r+e)}, 0")
        if w < 3:
            a(f"s_branch {lend}")
            a.label(labs[w])
    a.label(lend)
    return_epi = True
    a("s_waitcnt lgkmcnt(0)")
    a("s_barrier")
    PT = ACC
    a(f"s_mul_i32 s{sT0}, s{sW}, 18432")
    a(f"v_add_u32 v{t0}, s{sT0}, v{vZ}")
    for k in range(3):
        for q in range(6):
            a.ds(f"ds_read_b128 v[{PT + (k*6+q)*4}:{PT + (k*6+q)*4 + 3}], v{t0} offset:{k*6144 + q*1024}")
    vSt = vWE
    a(f"v_lshrrev_b32 v{vSt}, 4, v{vL}")
    a(f"v_and_b32 v{vSt}, 1, v{vSt}")
    a(f"v_mul_u32_u24 v{vSt}, {24*1024}, v{vSt}")
    a(f"v_and_b32 v{t1}, 15, v{vL}")
    a(f"v_lshrrev_b32 v{t2}, 5, v{vL}")
    a(f"v_lshl_add_u32 v{t1}, v{t2}, 4, v{t1}")
    a(f"v_lshl_add_u32 v{vSt}, v{t1}, 4, v{vSt}")
    a(f"s_mul_i32 s{sT0}, s{sRB}, {4*24*1024}")
    a(f"s_lshr_b32 s{sT1}, s{sW}, 1")
    a(f"s_mul_i32 s{sT1}, s{sT1}, {2*24*1024}")
    a(f"s_add_u32 s{sT0}, s{sT0}, s{sT1}")
    a(f"s_mul_i32 s{sT1}, s{sJ}, 3072")
    a(f"s_add_u32 s{sT0}, s{sT0}, s{sT1}")
    a(f"s_and_b32 s{sT1}, s{sW}, 1")
    a(f"s_lshl_b32 s{sT1}, s{sT1}, 9")
    a(f"s_add_u32 s{sT0}, s{sT0}, s{sT1}")
    a(f"s_add_u32 s{sT0}, s{sT0}, {WS_PF}")
    a.wait_vm(ep['b'])
    vB2 = vWA[0] if vWA[0] % 2 == 0 else vWA[1]
    a(f"v_lshlrev_b32 v{vB2}, 16, v{vB}")
    ZU = PT + 72
    for i in range(12):
        a(f"v_lshlrev_b32 v{ZU+2*i}, 16, v{Z1+i}")
        a(f"v_and_b32 v{ZU+2*i+1}, 0xffff0000, v{Z1+i}")
    for k in range(3):
        a(f"s_waitcnt lgkmcnt({min(15, 12 - 6*k)})")
        for i in range(0, 24, 2):
            a(f"v_pk_add_f32 {P(OWN+i)}, {P(OWN+i)}, {P(PT+k*24+i)}")
    for i in range(0, 24, 2):
        a(f"v_pk_add_f32 {P(OWN+i)}, {P(OWN+i)}, {P(vB2)} op_sel_hi:[1,0]")
    for i in range(0, 24, 2):
        a(f"v_pk_mul_f32 {P(OWN+i)}, {P(OWN+i)}, {P(ZU+i)}")
    OUT = PT
    for ft in range(3):
        for i in range(4):
            a(f"v_cvt_pk_bf16_f32 v{OUT+4*ft+i}, v{OWN+8*ft+2*i}, v{OWN+8*ft+2*i+1}")
        a.vmem(f"buffer_store_dwordx4 v[{OUT+4*ft}:{OUT+4*ft+3}], v{vSt}, s[{sWS}:{sWS+3}], s{sT0} offen offset:{ft*1024}" + (" sc1" if "psc1" in K2X else ""))
    ST("g_end")
    ST.dump(sWS, sW, t0, t1, WS_DBG + 0x200000)

def gen_conv(a, V, ST, prof, name):
    sSSM, sWS, sDv, sWSP, sWO = 4, 8, 12, 16, 20
    sC, sW, sCH = 32, 34, 35
    sT0, sT1, sT2, sT3 = 40, 41, 42, 43
    a(f"s_load_dwordx2 s[{sSSM}:{sSSM+1}], s[0:1], {KA['ssmk']}")
    a(f"s_load_dwordx2 s[{sWS}:{sWS+1}], s[0:1], {KA['ws']}")
    a(f"s_load_dwordx2 s[{sDv}:{sDv+1}], s[0:1], {KA['ssmD']}")
    a(f"s_load_dwordx2 s[{sWSP}:{sWSP+1}], s[0:1], {KA['wsp']}")
    a(f"s_load_dwordx2 s[{sWO}:{sWO+1}], s[0:1], {KA['wout']}")
    vL = V(); vT = V(); t0, t1, t2 = V(), V(), V()
    a(f"v_lshrrev_b32 v{t0}, 6, v0")
    a(f"v_and_b32 v{vL}, 63, v0")
    a(f"v_readfirstlane_b32 s{sW}, v{t0}")
    for srd, size in ((sSSM, SZ_SSMK), (sWS, WS_SIZE_DBG if prof else WS_END), (sDv, 1280), (sWSP, SZ_WSP), (sWO, SZ_WOUT)):
        a(f"s_mov_b32 s{srd+2}, {size}")
        a(f"s_mov_b32 s{srd+3}, {SRD3:#x}")
    a(f"s_mov_b32 s{sC}, s2")
    a(f"v_lshlrev_b32 v{vT}, 4, v0")
    NCH = 3
    HR = V(8*NCH, 4); UR = V(4*NCH, 4); DR = V(NCH)
    vTm = V()
    a(f"v_subrev_u32 v{vTm}, 16, v{vT}")
    sCHN = [56, 57, 58]
    a(f"s_mov_b32 s{sCHN[0]}, s2")
    a(f"s_add_u32 s{sCHN[1]}, s2, 256")
    a(f"s_lshr_b32 s{sCHN[2]}, s2, 1")
    a(f"s_add_u32 s{sCHN[2]}, s{sCHN[2]}, 512")
    ld = {}
    def loads(i):
        a(f"s_lshl_b32 s{sT0}, s{sCHN[i]}, 12")
        a.vmem(f"buffer_load_dwordx4 v[{HR+8*i+4}:{HR+8*i+7}], v{vT}, s[{sSSM}:{sSSM+3}], s{sT0} offen")
        a.vmem(f"buffer_load_dwordx4 v[{HR+8*i}:{HR+8*i+3}], v{vTm}, s[{sSSM}:{sSSM+3}], s{sT0} offen")
        a(f"s_add_u32 s{sT0}, s{sT0}, {WS_KVT}")
        a.vmem(f"buffer_load_dwordx4 v[{UR+4*i}:{UR+4*i+3}], v{vT}, s[{sWS}:{sWS+3}], s{sT0} offen")
        a(f"s_lshl_b32 s{sT0}, s{sCHN[i]}, 1")
        a(f"v_mov_b32 v{t0}, 0")
        ld[i] = a.vmem(f"buffer_load_ushort v{DR+i}, v{t0}, s[{sDv}:{sDv+3}], s{sT0} offen")
    a("s_waitcnt lgkmcnt(0)")
    ST("c_kernarg")
    loads(0)
    vTW, vTZ, vDm = V(), V(), V()
    sU, sTWB, sTZB = 47, 52, 53
    a(f"s_lshr_b32 s{sU}, s2, 3")
    a(f"s_lshl_b32 s{sU}, s{sU}, 2")
    a(f"s_add_u32 s{sU}, s{sU}, s{sW}")
    a(f"s_mul_i32 s{sT0}, s{sU}, 12")
    a(f"v_add_u32 v{t0}, s{sT0}, v{vL}")
    a(f"v_mul_u32_u24 v{t1}, 43691, v{t0}")
    a(f"v_lshrrev_b32 v{t1}, 22, v{t1}")
    a(f"v_mul_u32_u24 v{t2}, 96, v{t1}")
    a(f"v_sub_u32 v{t0}, v{t0}, v{t2}")
    a(f"v_mul_u32_u24 v{t1}, 98304, v{t1}")
    a(f"v_lshl_add_u32 v{vTZ}, v{t0}, 7, v{t1}")
    a(f"s_and_b32 s{sT0}, s2, 7")
    a(f"s_lshr_b32 s{sTWB}, s{sT0}, 1")
    a(f"s_lshl_b32 s{sTWB}, s{sTWB}, 21")
    a(f"s_and_b32 s{sTZB}, s{sT0}, 1")
    a(f"s_mul_i32 s{sTZB}, s{sTZB}, {4*393216}")
    a(f"s_add_u32 s{sTZB}, s{sTZB}, {WS_Z2F}")
    a(f"s_lshl_b32 s{sT0}, s{sU}, 4")
    a(f"v_add_u32 v{t0}, s{sT0}, v{vL}")
    a(f"v_lshrrev_b32 v{t1}, 2, v{t0}")
    a(f"v_lshlrev_b32 v{t1}, 12, v{t1}")
    a(f"v_and_b32 v{t0}, 3, v{t0}")
    a(f"v_lshl_add_u32 v{vTW}, v{t0}, 10, v{t1}")
    def touch(c, w=True):
        if "notouch" in K2X: return
        a(f"s_add_u32 s{sT0}, s{sTZB}, {c*12288}")
        a(f"s_mov_b64 exec, 0xfff")
        a.vmem(f"buffer_load_dword v{vDm}, v{vTZ}, s[{sWS}:{sWS+3}], s{sT0} offen")
        if w and "notw" not in K2X:
            a(f"s_add_u32 s{sT0}, s{sTWB}, {c*128}")
            a(f"s_mov_b64 exec, 0xffff")
            a.vmem(f"buffer_load_dword v{vDm}, v{vTW}, s[{sWSP}:{sWSP+3}], s{sT0} offen")
        a(f"s_mov_b64 exec, -1")
    NUP = int(os.environ.get('NUP', '2'))
    for c_ in range(NUP): touch(c_)
    sWJ = 54
    lwj = a.newlabel("c_wj")
    a(f"s_cmp_ge_u32 s2, 192")
    a(f"s_cbranch_scc1 {lwj}")
    a(f"s_mul_i32 s{sT0}, s2, 2731")
    a(f"s_lshr_b32 s{sT0}, s{sT0}, 16")
    a(f"s_mul_i32 s{sT1}, s{sT0}, 24")
    a(f"s_sub_u32 s{sT1}, s2, s{sT1}")
    a(f"s_mul_i32 s{sT1}, s{sT1}, {32*1280}")
    a(f"s_mul_i32 s{sT0}, s{sT0}, 160")
    a(f"s_add_u32 s{sWJ}, s{sT0}, s{sT1}")
    for r in range(2):
        l2 = None
        if r == 1:
            l2 = a.newlabel("c_wj2")
            a(f"s_cmp_lg_u32 s{sW}, 0")
            a(f"s_cbranch_scc1 {l2}")
        if r == 0: a(f"v_mov_b32 v{t0}, v0")
        else: a(f"v_add_u32 v{t0}, 256, v{vL}")
        a(f"v_mul_u32_u24 v{t1}, 6554, v{t0}")
        a(f"v_lshrrev_b32 v{t1}, 16, v{t1}")
        a(f"v_mul_u32_u24 v{t2}, 10, v{t1}")
        a(f"v_sub_u32 v{t0}, v{t0}, v{t2}")
        a(f"v_lshlrev_b32 v{t0}, 4, v{t0}")
        a(f"v_mul_u32_u24 v{t1}, 1280, v{t1}")
        a(f"v_add_u32 v{t0}, v{t0}, v{t1}")
        if r == 0:
            a(f"s_lshl_b32 s{sT0}, s{sW}, 10")
            a(f"s_add_u32 m0, s{sT0}, {WJ}")
        else: a(f"s_mov_b32 m0, {WJ + 4096}")
        a(f"buffer_load_dwordx4 v{t0}, s[{sWO}:{sWO+3}], s{sWJ} offen lds")
        a.vm -= 1
        if l2: a.label(l2)
    a.label(lwj)
    for i in range(1, NCH): loads(i)
    Zr = V(4, 4)
    for e in range(4): a(f"v_mov_b32 v{Zr+e}, 0")
    a(f"v_lshrrev_b32 v{t0}, 2, v0")
    a(f"v_mul_u32_u24 v{t0}, {CS_}, v{t0}")
    a(f"v_and_b32 v{t1}, 3, v0")
    a(f"v_lshl_add_u32 v{t0}, v{t1}, 4, v{t0}")
    a(f"v_cmp_gt_u32 vcc, 160, v0")
    a(f"s_and_saveexec_b64 s[50:51], vcc")
    lz = a.newlabel("c_z")
    a(f"s_cbranch_execz {lz}")
    a.ds(f"ds_write_b128 v{vT}, v[{Zr}:{Zr+3}] offset:{UB}")
    a(f"v_cmp_gt_u32 vcc, 32, v0")
    a(f"s_and_b64 exec, exec, vcc")
    lz2 = a.newlabel("c_z2")
    a(f"s_cbranch_execz {lz2}")
    a.ds(f"ds_write_b128 v{t0}, v[{Zr}:{Zr+3}] offset:{TOEP}")
    a.label(lz2)
    a.label(lz)
    a(f"s_mov_b64 exec, s[50:51]")
    vTW_ = V()
    a(f"v_add_u32 v{vTW_}, {OZ*16 + TOEP}, v{vT}")
    vUW = V()
    a(f"v_lshrrev_b32 v{t0}, 2, v0")
    a(f"v_lshl_add_u32 v{vUW}, v{t0}, 4, v{vT}")
    a(f"v_add_u32 v{vUW}, {UB + 2560}, v{vUW}")
    vA = V()
    a(f"v_and_b32 v{t0}, 7, v{vL}")
    a(f"v_mul_u32_u24 v{t0}, {CS_}, v{t0}")
    a(f"v_and_b32 v{t1}, 31, v{vL}")
    a(f"v_lshrrev_b32 v{t1}, 3, v{t1}")
    a(f"v_lshrrev_b32 v{t2}, 5, v{vL}")
    a(f"v_sub_u32 v{t1}, v{t1}, v{t2}")
    a(f"v_lshl_add_u32 v{t0}, v{t1}, 4, v{t0}")
    a(f"v_add_u32 v{vA}, {TOEP + 16}, v{t0}")
    vBq = V()
    a(f"v_and_b32 v{t0}, 31, v{vL}")
    a(f"v_mul_u32_u24 v{t0}, 80, v{t0}")
    a(f"v_lshl_add_u32 v{vBq}, v{t2}, 4, v{t0}")
    a(f"v_add_u32 v{vBq}, {UB}, v{vBq}")
    DM = V(8, 4)
    a(f"v_and_b32 v{t0}, 31, v{vL}")
    a(f"v_lshlrev_b32 v{t1}, 3, v{t2}")
    a(f"v_add_u32 v{t1}, 7, v{t1}")
    a(f"v_sub_u32 v{t1}, v{t1}, v{t0}")
    vK0, vK1 = V(), V()
    a(f"v_mov_b32 v{vK0}, 0xffff"); a(f"v_mov_b32 v{vK1}, 0xffff0000")
    for e in range(2):
        for dw in range(4):
            a(f"v_cmp_eq_u32 vcc, {2*dw - 16*e}, v{t1}")
            a(f"v_cndmask_b32 v{DM+4*e+dw}, 0, v{vK0}, vcc")
            a(f"v_cmp_eq_u32 vcc, {2*dw + 1 - 16*e}, v{t1}")
            a(f"v_cndmask_b32 v{DM+4*e+dw}, v{DM+4*e+dw}, v{vK1}, vcc")
    vPW = V()
    a(f"v_and_b32 v{t0}, 31, v{vL}")
    a(f"v_mul_u32_u24 v{t0}, 144, v{t0}")
    a(f"v_lshl_add_u32 v{vPW}, v{t2}, 4, v{t0}")
    a(f"v_add_u32 v{vPW}, {PB}, v{vPW}")
    vPR = V()
    a(f"v_and_b32 v{t0}, 127, v0")
    a(f"v_lshrrev_b32 v{t0}, 2, v{t0}")
    a(f"v_mul_u32_u24 v{t0}, 144, v{t0}")
    a(f"v_and_b32 v{t1}, 3, v0")
    a(f"v_lshl_add_u32 v{vPR}, v{t1}, 5, v{t0}")
    a(f"v_add_u32 v{vPR}, {PB}, v{vPR}")
    ACCL = V(16, 4); ACCH = V(16, 4)
    NA = 6
    AF = V(NA*4, 4); BL = V(NA*4, 4); BH = V(NA*4, 4)
    EW = V(8, 4); TQ = V(4, 4); DG = V(8, 4)
    SL_L = [0, 1, 2]; SL_H = [3, 4, 5, 6]

    def Koff(c0): return 16*c0 + 16*(c0 // 4)
    def mfma_block(steps, diag, touches):
        ids = {}
        def issue(n):
            q, dL, dH = steps[n]
            s = n % NA
            a.ds(f"ds_read_b128 v[{AF+4*s}:{AF+4*s+3}], v{vA} offset:{(2*q + OZ)*16 - 16}")
            if dL: a.ds(f"ds_read_b128 v[{BL+4*s}:{BL+4*s+3}], v{vBq} offset:{Koff(128 - 2*q)}")
            if dH: a.ds(f"ds_read_b128 v[{BH+4*s}:{BH+4*s+3}], v{vBq} offset:{Koff(256 - 2*q)}")
            ids[n] = a.lg - 1
        PD = NA - 2
        for n in range(min(PD, len(steps))): issue(n)
        stL = stH = False
        tq = list(touches)
        for n, (q, dL, dH) in enumerate(steps):
            if n + PD < len(steps): issue(n + PD)
            a.wait_lg(ids[n])
            s = n % NA
            if dL:
                c = f"v[{ACCL}:{ACCL+15}]" if stL else "0"; stL = True
                a(f"v_mfma_f32_32x32x16_bf16 v[{ACCL}:{ACCL+15}], v[{AF+4*s}:{AF+4*s+3}], v[{BL+4*s}:{BL+4*s+3}], {c}")
            if dH:
                c = f"v[{ACCH}:{ACCH+15}]" if stH else "0"; stH = True
                a(f"v_mfma_f32_32x32x16_bf16 v[{ACCH}:{ACCH+15}], v[{AF+4*s}:{AF+4*s+3}], v[{BH+4*s}:{BH+4*s+3}], {c}")
            if q in (0, -1):
                e = -q
                if diag[0] and dL: a(f"v_mfma_f32_32x32x16_bf16 v[{ACCL}:{ACCL+15}], v[{DG+4*e}:{DG+4*e+3}], v[{BL+4*s}:{BL+4*s+3}], v[{ACCL}:{ACCL+15}]")
                if diag[1] and dH: a(f"v_mfma_f32_32x32x16_bf16 v[{ACCH}:{ACCH+15}], v[{DG+4*e}:{DG+4*e+3}], v[{BH+4*s}:{BH+4*s+3}], v[{ACCH}:{ACCH+15}]")
            if tq and n % 3 == 2: touch(tq.pop(0))
        return stL, stH
    def write_partial(accb, slot):
        for g in range(4):
            a.ds(f"ds_write_b128 v{vPW}, v[{accb+4*g}:{accb+4*g+3}] offset:{slot*PT_ + g*32}")
    def finalize(slots, i, half):
        PT = AF
        regs = [AF, AF+8, AF+16, BL]
        for k, sl in enumerate(slots):
            a.ds(f"ds_read_b128 v[{regs[k]}:{regs[k]+3}], v{vPR} offset:{sl*PT_}")
            a.ds(f"ds_read_b128 v[{regs[k]+4}:{regs[k]+7}], v{vPR} offset:{sl*PT_ + 16}")
        a("s_waitcnt lgkmcnt(0)")
        for k in range(1, len(slots)):
            for e in range(0, 8, 2):
                a(f"v_pk_add_f32 {P(AF+e)}, {P(AF+e)}, {P(regs[k]+e)}")
        for e in range(4):
            a(f"v_cvt_pk_bf16_f32 v{TQ+e}, v{AF+2*e}, v{AF+2*e+1}")
        a(f"s_lshl_b32 s{sT0}, s{sCHN[i]}, 12")
        a(f"s_add_u32 s{sT0}, s{sT0}, {WS_YT + half*2048}")
        a(f"v_and_b32 v{t0}, 127, v0")
        a(f"v_lshlrev_b32 v{t0}, 4, v{t0}")
        a(f"buffer_store_dwordx4 v[{TQ}:{TQ+3}], v{t0}, s[{sWS}:{sWS+3}], s{sT0} offen" + (" sc1" if "ysc1" in K2X else ""))
        a.vm -= 1
        a("s_nop 1")

    def per_wave(variants):
        lend = a.newlabel("c_pw_end"); labs = [a.newlabel("c_pw") for _ in range(4)]
        lg0, vm0 = a.lg, a.vm
        lgmax, vmmin = lg0, None
        for w in range(4):
            if w < 3:
                a(f"s_cmp_lg_u32 s{sW}, {w}")
                a(f"s_cbranch_scc1 {labs[w]}")
            a.lg, a.vm = lg0, vm0
            variants[w]()
            lgmax = max(lgmax, a.lg); vmmin = a.vm if vmmin is None else min(vmmin, a.vm)
            if w < 3:
                a(f"s_branch {lend}")
                a.label(labs[w])
        a.label(lend)
        a.lg, a.vm = lgmax, vmmin

    for i in range(NCH):
        a.comment(f"------- channel slot {i}")
        a.wait_vm(ld[i])
        ST(f"c{i}_ld")
        d = HR + 8*i
        a(f"v_cmp_ne_u32 vcc, 0, v0")
        for e in range(4): a(f"v_cndmask_b32 v{d+e}, 0, v{d+e}, vcc")
        for e in range(7): a(f"v_alignbit_b32 v{EW+e}, v{d+e+1}, v{d+e}, 16")
        for c in range(8):
            st = c + 1
            if st % 2 == 0: src = d + st//2
            else: src = EW + (st-1)//2
            if (src % 2) != 0:
                for e in range(4): a(f"v_mov_b32 v{TQ+e}, v{src+e}")
                src = TQ
            a.ds(f"ds_write_b128 v{vTW_}, v[{src}:{src+3}] offset:{c*CS_}")
            if src == TQ: a("s_nop 1")
        a.ds(f"ds_write_b128 v{vUW}, v[{UR+4*i}:{UR+4*i+3}]")
        a(f"v_lshlrev_b32 v{t0}, 16, v{DR+i}")
        a(f"v_or_b32 v{t0}, v{t0}, v{DR+i}")
        for e in range(8): a(f"v_and_b32 v{DG+e}, v{DM+e}, v{t0}")
        if i == 0: a.wait_vm(ld[1])
        a("s_waitcnt lgkmcnt(0)")
        a("s_barrier")
        ST(f"c{i}_built")
        if i == 0:
            lw3 = a.newlabel("c_wj3")
            a(f"s_cmp_ge_u32 s2, 192")
            a(f"s_cbranch_scc1 {lw3}")
            a(f"v_lshrrev_b32 v{t0}, 4, v{vL}")
            a(f"v_and_b32 v{t2}, 15, v{vL}")
            a(f"v_lshrrev_b32 v{t1}, 2, v{t2}")
            a(f"v_lshl_add_u32 v{t0}, v{t0}, 2, v{t1}")
            a(f"v_mul_u32_u24 v{t0}, 160, v{t0}")
            a(f"v_and_b32 v{t1}, 3, v{t2}")
            a(f"v_lshl_add_u32 v{t0}, v{t1}, 3, v{t0}")
            a(f"v_lshlrev_b32 v{t2}, 4, v{vL}")
            for r in range(2):
                l2 = None
                if r == 1:
                    l2 = a.newlabel("c_wj4")
                    a(f"s_cmp_lg_u32 s{sW}, 0")
                    a(f"s_cbranch_scc1 {l2}")
                if r == 0: a(f"s_lshl_b32 s{sT0}, s{sW}, 5")
                else: a(f"s_mov_b32 s{sT0}, 128")
                a(f"s_add_u32 s{sT1}, s{sT0}, {WJ}")
                a(f"v_add_u32 v{t1}, s{sT1}, v{t0}")
                a(f"ds_read_b64_tr_b16 v[{TQ}:{TQ+1}], v{t1}")
                a(f"ds_read_b64_tr_b16 v[{TQ+2}:{TQ+3}], v{t1} offset:2560")
                a(f"s_mul_i32 s{sT1}, s2, 5120")
                a(f"s_lshl_b32 s{sT0}, s{sT0}, 5")
                a(f"s_add_u32 s{sT1}, s{sT1}, s{sT0}")
                a(f"s_add_u32 s{sT1}, s{sT1}, {WS_WOF}")
                a("s_waitcnt lgkmcnt(0)")
                a(f"buffer_store_dwordx4 v[{TQ}:{TQ+3}], v{t2}, s[{sWS}:{sWS+3}], s{sT1} offen" + (" sc1" if "ysc1" in K2X else ""))
                a("s_nop 1")
                a.vm -= 1; a.lg -= 2
                if l2: a.label(l2)
            a.label(lw3)
        tch = list(range(NUP, 8)) if i == 0 else []
        if i < 2:
            plan = [([(q, True, True) for q in range(-1, 22)], (True, True)),
                    ([(q, True, True) for q in range(22, 46)], (False, False)),
                    ([(q, True, True) for q in range(46, 63)] + [(q, False, True) for q in range(63, 78)], (False, False)),
                    ([(q, False, True) for q in range(78, 127)], (False, False))]
            def mk(w):
                def f():
                    uL, uH = mfma_block(plan[w][0], plan[w][1], tch)
                    ST(f"c{i}_mfma") if False else None
                    if uL: write_partial(ACCL, SL_L[w])
                    write_partial(ACCH, SL_H[w])
                return f
            per_wave([mk(w) for w in range(4)])
            ST(f"c{i}_mfma")
            a("s_waitcnt lgkmcnt(0)")
            a("s_barrier")
            lab = a.newlabel("c_finH"); lab2 = a.newlabel("c_fin_end")
            a(f"s_cmp_ge_u32 s{sW}, 2")
            a(f"s_cbranch_scc1 {lab}")
            finalize(SL_L, i, 0)
            a(f"s_branch {lab2}")
            a.label(lab)
            finalize(SL_H, i, 1)
            a.label(lab2)
        else:
            labL = a.newlabel("c_halfL"); labE = a.newlabel("c_halfE")
            a(f"s_bitcmp1_b32 s2, 0")
            a(f"s_cbranch_scc1 {labL}")
            lg0, vm0 = a.lg, a.vm
            for tile in (1, 0):
                if tile == 0:
                    a.label(labL); a.lg, a.vm = lg0, vm0
                qs = list(range(-1, 127 if tile else 63))
                n4 = len(qs)//4
                parts = [qs[w*n4:(w+1)*n4] for w in range(4)]
                def mk(w, tile=tile, parts=parts):
                    def f():
                        mfma_block([(q, tile == 0, tile == 1) for q in parts[w]], (tile == 0 and w == 0, tile == 1 and w == 0), [])
                        write_partial(ACCH if tile else ACCL, SL_H[w])
                    return f
                per_wave([mk(w) for w in range(4)])
                a("s_waitcnt lgkmcnt(0)")
                a("s_barrier")
                lab = a.newlabel("c_hf")
                a(f"s_cmp_ge_u32 s{sW}, 2")
                a(f"s_cbranch_scc1 {lab}")
                finalize(SL_H, i, tile)
                a.label(lab)
                if tile == 1: a(f"s_branch {labE}")
            a.label(labE)
        ST(f"c{i}_done")
    ST.dump(sWS, sW, t0, t1, WS_DBG + 0x400000)

def gen_k2(name="k2_kernel", prof=False):
    a = Asm()
    a.raw(f".globl {name}\n.p2align 8\n.type {name},@function\n{name}:")
    a(f"s_cmp_ge_u32 s2, 512")
    a(f"s_cbranch_scc1 {name}_end")
    a(f"s_cmp_lt_u32 s2, 256")
    a(f"s_cbranch_scc1 {name}_conv" if "noconv" not in K2X else f"s_cbranch_scc1 {name}_end")
    ST = Stamps(a, enabled=prof); ST("g_start")
    V = Alloc(1, 256, "v")
    gen_gemm(a, V, ST, prof)
    a("s_endpgm")
    hi = V.hi
    a.label(f"{name}_conv")
    a.vm = 0; a.lg = 0
    ST2 = Stamps(a, enabled=prof); ST2("c_start")
    V2 = Alloc(1, 256, "v")
    gen_conv(a, V2, ST2, prof, name)
    a.label(f"{name}_end")
    a("s_endpgm")
    gen_k2.stamp_names = {"k2g": ST.names, "k2c": ST2.names}
    return a.finish(), max(hi, V2.hi)
```

```python
from dsl import *
from layout import *
from k1 import f32, Filler, run, mask, P
import os
WO = 0; XT = 122880; YTL = 133120; OT = 143360; LDS = 153600
LOG2E = 1.4426950408889634

def gen_k3(name="k3_kernel", prof=False):
    K3X = os.environ.get("K3X", "")
    a = Asm()
    ST = Stamps(a, enabled=prof)
    V = Alloc(1, 256, "v")
    sX, sWS, sOUT = 8, 12, 16
    sRB, sDJ, sW = 32, 33, 34
    sT0, sT1, sT2, sT3 = 40, 41, 42, 43
    sCOL, sXB, sWB, sPB, sROT = 44, 45, 46, 47, 48
    a.raw(f".globl {name}\n.p2align 8\n.type {name},@function\n{name}:")
    a(f"s_cmp_ge_u32 s2, 256")
    a(f"s_cbranch_scc1 {name}_end")
    a(f"s_load_dwordx2 s[{sWS}:{sWS+1}], s[0:1], {KA['ws']}")
    a(f"s_load_dwordx2 s[{sX}:{sX+1}], s[0:1], {KA['q']}")
    a(f"s_load_dwordx2 s[{sOUT}:{sOUT+1}], s[0:1], {KA['out']}")
    ST("start")
    for srd, size in ((sX, SZ_X), (sWS, WS_SIZE_DBG if prof else WS_END), (sOUT, SZ_X)):
        a(f"s_mov_b32 s{srd+2}, {size}")
        a(f"s_mov_b32 s{srd+3}, {SRD3:#x}")
    vL, vQ, vP = V(), V(), V(); t0, t1, t2 = V(), V(), V()
    a(f"v_lshrrev_b32 v{t0}, 6, v0")
    a(f"v_and_b32 v{vL}, 63, v0")
    a(f"v_readfirstlane_b32 s{sW}, v{t0}")
    vZ = V()
    a(f"v_lshlrev_b32 v{vZ}, 4, v{vL}")
    a(f"s_and_b32 s{sT0}, s2, 7")
    a(f"s_lshr_b32 s{sT1}, s2, 3")
    a(f"s_lshr_b32 s{sRB}, s{sT0}, 1")
    a(f"s_lshl_b32 s{sRB}, s{sRB}, 3")
    a(f"s_and_b32 s{sT2}, s{sT1}, 7")
    a(f"s_add_u32 s{sRB}, s{sRB}, s{sT2}")
    a(f"s_and_b32 s{sDJ}, s{sT0}, 1")
    a(f"s_lshl_b32 s{sDJ}, s{sDJ}, 2")
    a(f"s_lshr_b32 s{sT2}, s{sT1}, 3")
    a(f"s_add_u32 s{sDJ}, s{sDJ}, s{sT2}")
    a(f"s_add_u32 s{sT0}, s{sRB}, s{sDJ}")
    a(f"s_mul_i32 s{sT1}, s{sT0}, 43")
    a(f"s_lshr_b32 s{sT1}, s{sT1}, 8")
    a(f"s_mul_i32 s{sT1}, s{sT1}, 6")
    a(f"s_sub_u32 s{sROT}, s{sT0}, s{sT1}")
    if "norot" in K3X: a(f"s_mov_b32 s{sROT}, 0")
    a(f"s_mul_i32 s{sWB}, s{sDJ}, {24*5120}")
    a(f"s_add_u32 s{sWB}, s{sWB}, {WS_WOF}")
    a(f"s_mul_i32 s{sT0}, s{sW}, 5120")
    a(f"s_add_u32 s{sWB}, s{sWB}, s{sT0}")
    a(f"s_mul_i32 s{sPB}, s{sRB}, {4*24*1024}")
    a(f"s_mul_i32 s{sT1}, s{sW}, {24*1024}")
    a(f"s_add_u32 s{sPB}, s{sPB}, s{sT1}")
    a(f"s_add_u32 s{sPB}, s{sPB}, {WS_PF}")
    sG = [50, 51, 52, 53, 54, 55]
    for m in range(6):
        a(f"s_add_u32 s{sT0}, s{sROT}, {m}")
        a(f"s_sub_u32 s{sT1}, s{sT0}, 6")
        a(f"s_cmp_ge_u32 s{sT0}, 6")
        a(f"s_cselect_b32 s{sG[m]}, s{sT1}, s{sT0}")
    PFr = V(96, 4)
    a("s_waitcnt lgkmcnt(0)")
    ST("kernarg")
    p_id = {}; w_id = {}
    def dma_w_g(m):
        for r in range(5):
            a(f"s_mul_i32 s{sT0}, s{sG[m]}, {4*5120}")
            a(f"s_add_u32 s{sT0}, s{sT0}, s{sWB}")
            a(f"s_add_u32 s{sT0}, s{sT0}, {r*1024}")
            a(f"s_mul_i32 s{sT1}, s{sW}, 5120")
            a(f"s_add_u32 m0, s{sT1}, {WO + m*4*5120 + r*1024}")
            w_id[m] = a.vmem(f"buffer_load_dwordx4 v{vZ}, s[{sWS}:{sWS+3}], s{sT0} offen lds")
            yield
    def load_p_g(m):
        for k in range(4):
            ks = 4*m + k
            a(f"s_lshl_b32 s{sT2}, s{sG[m]}, 12")
            a(f"s_add_u32 s{sT2}, s{sT2}, s{sPB}")
            p_id[ks] = a.vmem(f"buffer_load_dwordx4 v[{PFr+4*ks}:{PFr+4*ks+3}], v{vZ}, s[{sWS}:{sWS+3}], s{sT2} offen offset:{k*1024}")
            yield
    run(dma_w_g(0)); run(load_p_g(0))
    a("s_barrier")
    run(dma_w_g(1)); run(load_p_g(1))
    a(f"s_mul_i32 s{sCOL}, s{sDJ}, 160")
    a(f"s_mul_i32 s{sXB}, s{sRB}, {64*1280}")
    a(f"s_add_u32 s{sXB}, s{sXB}, s{sCOL}")
    vO = [V() for _ in range(5)]
    for r in range(5):
        a(f"v_add_u32 v{t0}, {64*r}, v{vL}")
        a(f"v_mul_u32_u24 v{t1}, 6554, v{t0}")
        a(f"v_lshrrev_b32 v{t1}, 16, v{t1}")
        a(f"v_mul_u32_u24 v{t2}, 10, v{t1}")
        a(f"v_sub_u32 v{t0}, v{t0}, v{t2}")
        a(f"v_lshlrev_b32 v{t0}, 4, v{t0}")
        a(f"v_mul_u32_u24 v{t1}, 1280, v{t1}")
        a(f"v_add_u32 v{vO[r]}, v{t0}, v{t1}")
    XS = V(2, 2)
    vY = V()
    def xy_g():
        lx = a.newlabel("k3_y"); lx2 = a.newlabel("k3_xy")
        a(f"s_cmp_ge_u32 s{sW}, 2")
        a(f"s_cbranch_scc1 {lx}")
        a(f"s_mul_i32 s{sT0}, s{sW}, {32*1280}")
        a(f"s_add_u32 s{sT0}, s{sT0}, s{sXB}")
        a(f"s_mul_i32 s{sT1}, s{sW}, 5120")
        for r in range(5):
            a(f"s_add_u32 m0, s{sT1}, {XT + r*1024}")
            a(f"buffer_load_dwordx4 v{vO[r]}, s[{sX}:{sX+3}], s{sT0} offen lds")
        a(f"s_branch {lx2}")
        a.label(lx)
        a(f"v_lshrrev_b32 v{t0}, 3, v{vL}")
        a(f"v_lshlrev_b32 v{t0}, 12, v{t0}")
        a(f"v_and_b32 v{t1}, 7, v{vL}")
        a(f"v_lshl_add_u32 v{vY}, v{t1}, 4, v{t0}")
        a(f"s_sub_u32 s{sT2}, s{sW}, 2")
        a(f"s_mul_i32 s{sT0}, s{sT2}, 40")
        a(f"s_mul_i32 s{sT1}, s{sDJ}, 80")
        a(f"s_add_u32 s{sT0}, s{sT0}, s{sT1}")
        a(f"s_lshl_b32 s{sT0}, s{sT0}, 12")
        a(f"s_lshl_b32 s{sT1}, s{sRB}, 7")
        a(f"s_add_u32 s{sT0}, s{sT0}, s{sT1}")
        a(f"s_add_u32 s{sT0}, s{sT0}, {WS_YT}")
        a(f"s_mul_i32 s{sT1}, s{sT2}, 5120")
        for r in range(5):
            a(f"s_add_u32 m0, s{sT1}, {YTL + r*1024}")
            a(f"buffer_load_dwordx4 v{vY}, s[{sWS}:{sWS+3}], s{sT0} offen lds")
            a(f"s_add_u32 s{sT0}, s{sT0}, {8*4096}")
        a.label(lx2)
        a.vm -= 5
        a(f"s_lshl_b32 s{sT0}, s{sRB}, 9")
        a(f"s_lshl_b32 s{sT1}, s{sW}, 7")
        a(f"s_add_u32 s{sT0}, s{sT0}, s{sT1}")
        a(f"s_add_u32 s{sT0}, s{sT0}, {WS_XST}")
        a(f"v_lshlrev_b32 v{t0}, 3, v{vP}")
        a.vmem(f"buffer_load_dwordx2 {P(XS)}, v{t0}, s[{sWS}:{sWS+3}], s{sT0} offen")
        yield
    a(f"v_lshrrev_b32 v{vQ}, 4, v{vL}")
    a(f"v_and_b32 v{vP}, 15, v{vL}")
    vA = [V(), V()]
    a(f"v_mov_b32 v{vA[0]}, v{vZ}")
    a(f"v_add_u32 v{vA[1]}, {12*5120}, v{vZ}")
    ACC = V(20, 4)
    AF = V(40, 4)
    def read_a(ks):
        b = ks & 1; ids = []
        base = vA[0] if ks < 12 else vA[1]
        o = WO + (ks % 12)*5120
        for dt in range(5):
            r = AF + (b*5 + dt)*4
            ids.append(a.ds(f"ds_read_b128 v[{r}:{r+3}], v{base} offset:{o + dt*1024}"))
        return ids
    rd = {}
    for m in range(6):
        a.wait_vm(w_id[m])
        a("s_barrier")
        ST(f"m{m}")
        rd[4*m] = read_a(4*m)
        fl = Filler()
        if m + 2 < 6: fl.add(dma_w_g(m + 2)); fl.add(load_p_g(m + 2))
        if m == 3: fl.add(xy_g())
        for ks in range(4*m, 4*m + 4):
            if ks + 1 < 4*m + 4: rd[ks+1] = read_a(ks + 1)
            a.wait_vm(p_id[ks])
            b = ks & 1
            for dt in range(5):
                a.wait_lg(rd[ks][dt])
                r = AF + (b*5 + dt)*4
                c = "0" if ks == 0 else f"v[{ACC+4*dt}:{ACC+4*dt+3}]"
                a(f"v_mfma_f32_16x16x32_bf16 v[{ACC+4*dt}:{ACC+4*dt+3}], v[{r}:{r+3}], v[{PFr+4*ks}:{PFr+4*ks+3}], {c}")
                if dt % 2 == 0: fl.step(1)
        fl.drain()
    ST("loop")
    XV = AF; YV = AF + 10
    a(f"s_lshl_b32 s{sT0}, s{sW}, 4")
    a(f"v_add_u32 v{t0}, s{sT0}, v{vP}")
    a(f"v_mul_u32_u24 v{t0}, 160, v{t0}")
    vXA = V(); vX2 = V(); vYA = V()
    a(f"v_lshl_add_u32 v{vXA}, v{vQ}, 3, v{t0}")
    a(f"v_add_u32 v{vX2}, {XT}, v{vXA}")
    a(f"v_lshrrev_b32 v{t1}, 2, v{vP}")
    a(f"v_lshl_add_u32 v{t0}, v{vQ}, 2, v{t1}")
    a(f"v_lshlrev_b32 v{t0}, 7, v{t0}")
    a(f"v_and_b32 v{t1}, 3, v{vP}")
    a(f"v_lshl_add_u32 v{t0}, v{t1}, 3, v{t0}")
    a(f"s_lshl_b32 s{sT0}, s{sW}, 5")
    a(f"s_add_u32 s{sT0}, s{sT0}, {YTL}")
    a(f"v_add_u32 v{vYA}, s{sT0}, v{t0}")
    T = PFr
    sL = 46
    a(f"s_mov_b32 s{sL}, {f32(-LOG2E):#x}")
    a(f"s_mov_b32 s{sL+1}, {f32(-LOG2E):#x}")
    E = T
    for i in range(0, 20, 2): a(f"v_pk_mul_f32 {P(E+i)}, {P(ACC+i)}, s[{sL}:{sL+1}]")
    a("s_waitcnt vmcnt(0)")
    a("s_barrier")
    for dt in range(5):
        a.ds(f"ds_read_b64 v[{XV+2*dt}:{XV+2*dt+1}], v{vX2} offset:{dt*32}")
    for dt in range(5):
        a.ds(f"ds_read_b64_tr_b16 v[{YV+2*dt}:{YV+2*dt+1}], v{vYA} offset:{dt*2048}")
    for i in range(20): a(f"v_exp_f32 v{E+i}, v{E+i}")
    for i in range(0, 20, 2): a(f"v_pk_add_f32 {P(E+i)}, {P(E+i)}, 1.0 op_sel_hi:[1,0]")
    for i in range(20): a(f"v_rcp_f32 v{E+i}, v{E+i}")
    for i in range(0, 20, 2): a(f"v_pk_mul_f32 {P(E+i)}, {P(E+i)}, {P(ACC+i)}")
    a("s_waitcnt lgkmcnt(0)")
    XF_ = T + 20; YF = T + 40; N = T + 60
    for i in range(10):
        a(f"v_lshlrev_b32 v{XF_+2*i}, 16, v{XV+i}")
        a(f"v_and_b32 v{XF_+2*i+1}, 0xffff0000, v{XV+i}")
        a(f"v_lshlrev_b32 v{YF+2*i}, 16, v{YV+i}")
        a(f"v_and_b32 v{YF+2*i+1}, 0xffff0000, v{YV+i}")
    RB = V(2, 2)
    a(f"v_mov_b32 v{RB}, v{XS+1}")
    for i in range(0, 20, 2): a(f"v_pk_add_f32 {P(N+i)}, {P(XF_+i)}, {P(XS)} op_sel_hi:[1,0] neg_lo:[0,1] neg_hi:[0,1]")
    for i in range(0, 20, 2): a(f"v_pk_mul_f32 {P(N+i)}, {P(N+i)}, {P(RB)} op_sel_hi:[1,0]")
    for i in range(0, 20, 2): a(f"v_pk_mul_f32 {P(N+i)}, {P(N+i)}, {P(YF+i)}")
    for i in range(0, 20, 2): a(f"v_pk_fma_f32 {P(N+i)}, {P(N+i)}, {P(E+i)}, {P(XF_+i)}")
    OV = AF
    for i in range(10): a(f"v_cvt_pk_bf16_f32 v{OV+i}, v{N+2*i}, v{N+2*i+1}")
    vOW = V()
    a(f"v_add_u32 v{vOW}, {OT}, v{vXA}")
    for dt in range(5):
        a.ds(f"ds_write_b64 v{vOW}, v[{OV+2*dt}:{OV+2*dt+1}] offset:{dt*32}")
    a(f"s_mul_i32 s{sT0}, s{sW}, 2560")
    a(f"s_add_u32 s{sT0}, s{sT0}, {OT}")
    a(f"v_add_u32 v{t0}, s{sT0}, v{vZ}")
    a("s_waitcnt lgkmcnt(0)")
    for r in range(3):
        a.ds(f"ds_read_b128 v[{T+4*r}:{T+4*r+3}], v{t0} offset:{r*1024}")
    a(f"s_mul_i32 s{sT0}, s{sW}, {16*1280}")
    a(f"s_add_u32 s{sT0}, s{sT0}, s{sXB}")
    a("s_waitcnt lgkmcnt(0)")
    for r in range(3):
        if r == 2: a(f"s_mov_b32 exec_hi, 0")
        a.vmem(f"buffer_store_dwordx4 v[{T+4*r}:{T+4*r+3}], v{vO[r]}, s[{sOUT}:{sOUT+3}], s{sT0} offen" + (" sc1" if "osc1" in K3X else ""))
    a(f"s_mov_b64 exec, -1")
    ST("end")
    ST.dump(sWS, sW, t0, t1, WS_DBG + 0x600000)
    gen_k3.stamp_names = ST.names
    a.label(f"{name}_end")
    a("s_endpgm")
    return a.finish(), V.hi
```

```python
from dsl import *
from layout import *
import os, struct

XR = 0; WR = 81920; SLOT = 24576
MISC = 155648
CSUM = MISC
XSUM = MISC + 3072
ZSUM = MISC + 4096
SHKL = MISC + 5120
EX = 16384
TB = 81920 + 24576
KS = 65536
VS = 49152
ZT = 0
C1 = 2.302208198144325
C2 = C1 * 0.044715

def f32(x): return struct.unpack("<I", struct.pack("<f", x))[0]
def P(r): return f"v[{r}:{r+1}]"

def pkop(a, kind, d, x, y, z=None, pk=True, bcast_y=False, neg_y=False, ys=None, zs=None):
    if pk:
        yo = f"s[{ys}:{ys+1}]" if ys is not None else P(y)
        mods = ""
        n = 3 if kind == "fma" else 2
        if bcast_y: mods += " op_sel_hi:[1,0" + (",1" if n == 3 else "") + "]"
        if neg_y: mods += " neg_lo:[0,1" + (",0" if n == 3 else "") + "] neg_hi:[0,1" + (",0" if n == 3 else "") + "]"
        if kind == "fma": a(f"v_pk_fma_f32 {P(d)}, {P(x)}, {yo}, {P(z)}{mods}")
        else: a(f"v_pk_{kind}_f32 {P(d)}, {P(x)}, {yo}{mods}")
        yield
    else:
        for h in range(2):
            yo = f"s{ys}" if ys is not None else f"v{y + (0 if bcast_y else h)}"
            if neg_y: yo = "-" + yo
            if kind == "fma": a(f"v_fma_f32 v{d+h}, v{x+h}, {yo}, v{z+h}")
            elif kind == "mul":
                if ys is not None: a(f"v_mul_f32 v{d+h}, {yo}, v{x+h}")
                else: a(f"v_mul_f32 v{d+h}, v{x+h}, {yo}")
            else:
                if neg_y: a(f"v_sub_f32 v{d+h}, v{x+h}, {yo[1:]}")
                else: a(f"v_add_f32 v{d+h}, v{x+h}, {yo}")
            yield

def reduce_g4_multi(a, xs, ts):
    for op in ("v_permlane16_swap_b32", "v_permlane32_swap_b32"):
        for x, t in zip(xs, ts): a(f"v_mov_b32 v{t}, v{x}"); yield
        for x, t in zip(xs, ts): a(f"{op} v{x}, v{t}"); yield
        for x, t in zip(xs, ts): a(f"v_add_f32 v{x}, v{x}, v{t}"); yield

def ln_finish_gen(a, mean, var, sEps):
    a(f"v_max_f32 v{var}, 0, v{var}"); yield
    a(f"v_cvt_pk_bf16_f32 v{var}, v{var}, v{mean}"); yield
    a(f"v_and_b32 v{mean}, 0xffff0000, v{var}"); yield
    a(f"v_lshlrev_b32 v{var}, 16, v{var}"); yield
    a(f"v_add_f32 v{var}, s{sEps}, v{var}"); yield
    a(f"v_cvt_pk_bf16_f32 v{var}, v{var}, v{var}"); yield
    a(f"v_and_b32 v{var}, 0xffff0000, v{var}"); yield
    a(f"v_sqrt_f32 v{var}, v{var}"); yield
    a(f"v_cvt_pk_bf16_f32 v{var}, v{var}, v{var}"); yield
    a(f"v_and_b32 v{var}, 0xffff0000, v{var}"); yield
    a(f"v_rcp_f32 v{var}, v{var}"); yield

def run(gen):
    for _ in gen: pass

class Filler:
    def __init__(self): self.q = []
    def add(self, g): self.q.append(g)
    def step(self, n=1):
        for _ in range(n):
            while self.q:
                try:
                    next(self.q[0]); break
                except StopIteration:
                    self.q.pop(0)
    def drain(self):
        while self.q:
            run(self.q.pop(0))

def mask(a, n):
    if n >= 64: a("s_mov_b64 exec, -1")
    elif n > 32:
        a("s_mov_b32 exec_lo, -1"); a(f"s_mov_b32 exec_hi, {(1 << (n-32)) - 1:#x}")
    elif n == 32:
        a("s_mov_b32 exec_lo, -1"); a("s_mov_b32 exec_hi, 0")
    else: a(f"s_mov_b64 exec, {(1 << n) - 1:#x}")

def gen_k1(name="k1_kernel", prof=False):
    K1X = os.environ.get("K1X", "")
    a = Asm()
    ST = Stamps(a, enabled=prof)
    WSZ = WS_SIZE_DBG if prof else WS_END
    V = Alloc(1, 256, "v")
    sX, sWIN, sK, sV, sSHK, sWS, sDBG, sWSP, sSSM = 4, 8, 12, 16, 20, 24, 28, 32, 36
    sRB, sJ, sW, sFH, sSH, sKH, sST0, sST = 40, 41, 42, 43, 44, 45, 46, 47
    sT0, sT1, sT2, sT3 = 48, 49, 50, 51
    sXOFF, sWOFF2, sWOFF1 = 52, 53, 54
    sEPS, sONES, sU = 55, 56, 57
    sNC2 = 58
    sM0X, sM0W = 60, 61
    sZ1B, sKKA, sKKB, sD0 = 62, 63, 64, 65
    sXC, sH = 66, 67
    a.raw(f".globl {name}\n.p2align 8\n.type {name},@function\n{name}:")
    a(f"s_cmp_ge_u32 s2, 256")
    a(f"s_cbranch_scc1 {name}_end")
    srds = ((sX, 'q', SZ_X), (sWIN, 'win', SZ_WIN), (sK, 'k', SZ_X), (sV, 'v', SZ_X), (sSHK, 'shk', 5120), (sWS, 'ws', WSZ),
            (sDBG, 'dbg', 256), (sWSP, 'wsp', SZ_WSP), (sSSM, 'ssmk', SZ_SSMK))
    for srd, key, _ in srds:
        a(f"s_load_dwordx2 s[{srd}:{srd+1}], s[0:1], {KA[key]}")
    ST("start")
    vL = V(); vQ = V(); vP = V()
    t0, t1, t2 = V(), V(), V()
    vKV = V()
    a(f"v_lshrrev_b32 v{vQ}, 6, v0")
    a(f"v_and_b32 v{vL}, 63, v0")
    a(f"v_readfirstlane_b32 s{sW}, v{vQ}")
    a(f"v_lshrrev_b32 v{vQ}, 4, v{vL}")
    a(f"v_and_b32 v{vP}, 15, v{vL}")
    a(f"s_and_b32 s{sT0}, s2, 7")
    a(f"s_lshr_b32 s{sT1}, s2, 3")
    a(f"s_lshr_b32 s{sXC}, s{sT0}, 1")
    a(f"s_and_b32 s{sH}, s{sT0}, 1")
    a(f"s_lshl_b32 s{sRB}, s{sXC}, 3")
    a(f"s_and_b32 s{sT0}, s{sT1}, 7")
    a(f"s_add_u32 s{sRB}, s{sRB}, s{sT0}")
    a(f"s_lshl_b32 s{sJ}, s{sH}, 2")
    a(f"s_lshr_b32 s{sT0}, s{sT1}, 3")
    a(f"s_add_u32 s{sJ}, s{sJ}, s{sT0}")
    a(f"s_mul_i32 s{sXOFF}, s{sRB}, {64*1280}")
    a(f"s_mul_i32 s{sWOFF1}, s{sJ}, 192")
    a(f"s_add_u32 s{sWOFF2}, s{sWOFF1}, {768*2}")
    a(f"s_lshl_b32 s{sM0X}, s{sW}, 11")
    a(f"s_mul_i32 s{sM0W}, s{sW}, 3072")
    for srd, _, size in srds[:2]:
        a(f"s_mov_b32 s{srd+2}, {size}")
        a(f"s_mov_b32 s{srd+3}, {SRD3:#x}")
    TMP = V(28, 4)
    vTO = V()
    vDummy = V()
    vXD = [V(), V()]
    a(f"s_lshl_b32 s{sT0}, s{sW}, 3")
    for i in range(2):
        a(f"v_add_u32 v{t0}, s{sT0}, v{vQ}")
        if i: a(f"v_add_u32 v{t0}, 4, v{t0}")
        a(f"v_and_b32 v{t1}, 15, v{t0}")
        a(f"v_xor_b32 v{t1}, v{t1}, v{vP}")
        a(f"v_mul_u32_u24 v{t0}, 1280, v{t0}")
        a(f"v_lshl_add_u32 v{vXD[i]}, v{t1}, 4, v{t0}")
    vWD = [V(), V(), V()]
    a(f"s_mul_i32 s{sT0}, s{sW}, 192")
    for i in range(3):
        a(f"v_add_u32 v{t0}, s{sT0}, v{vL}")
        if i: a(f"v_add_u32 v{t0}, {64*i}, v{t0}")
        a(f"v_mul_u32_u24 v{t1}, 43691, v{t0}")
        a(f"v_lshrrev_b32 v{t1}, 19, v{t1}")
        a(f"v_mul_u32_u24 v{t2}, 12, v{t1}")
        a(f"v_sub_u32 v{t0}, v{t0}, v{t2}")
        a(f"v_lshrrev_b32 v{t2}, 2, v{t1}")
        a(f"v_and_b32 v{t2}, 2, v{t2}")
        a(f"v_xor_b32 v{t0}, v{t0}, v{t2}")
        a(f"v_mul_u32_u24 v{t1}, 3072, v{t1}")
        a(f"v_lshl_add_u32 v{vWD[i]}, v{t0}, 4, v{t1}")
    sSCX = [90, 91, 92, 93, 94]; sSCW = [95, 96, 97, 98, 99]
    a(f"s_add_u32 s{sT0}, s{sRB}, s{sJ}")
    a(f"s_mul_i32 s{sT1}, s{sT0}, 52")
    a(f"s_lshr_b32 s{sT1}, s{sT1}, 8")
    a(f"s_mul_i32 s{sT1}, s{sT1}, 5")
    a(f"s_sub_u32 s{sT3}, s{sT0}, s{sT1}")
    if "norot" in K1X: a(f"s_mov_b32 s{sT3}, 0")
    def sc_regs(p_):
        a(f"s_add_u32 s{sT1}, s{sT3}, {p_}")
        a(f"s_sub_u32 s{sT2}, s{sT1}, 5")
        a(f"s_cmp_ge_u32 s{sT1}, 5")
        a(f"s_cselect_b32 s{sT1}, s{sT2}, s{sT1}")
        a(f"s_lshl_b32 s{sSCX[p_]}, s{sT1}, 8")
        a(f"s_mul_i32 s{sSCW[p_]}, s{sT1}, {128*3072}")
    sc_regs(0); sc_regs(1)
    x_last = {}; w_last = {}
    def dma_x_g(sc):
        for i in range(2):
            a(f"s_add_u32 s{sD0}, s{sXOFF}, s{sSCX[sc]}")
            a(f"s_add_u32 m0, s{sM0X}, {XR + sc*16384 + i*1024}")
            x_last[sc] = a.vmem(f"buffer_load_dwordx4 v{vXD[i]}, s[{sX}:{sX+3}], s{sD0} offen lds")
            yield
    def wbase(q): return WR + (q % 3)*SLOT
    def dma_w_g(q):
        sc = q % 5
        for i in range(3):
            a(f"s_add_u32 s{sD0}, s{sWOFF2 if q < 5 else sWOFF1}, s{sSCW[sc]}")
            a(f"s_add_u32 m0, s{sM0W}, {wbase(q) + i*1024}")
            w_last[q] = a.vmem(f"buffer_load_dwordx4 v{vWD[i]}, s[{sWIN}:{sWIN+3}], s{sD0} offen lds")
            yield
    def dma_x(sc): run(dma_x_g(sc))
    def dma_w(q): run(dma_w_g(q))
    a("s_waitcnt lgkmcnt(0)")
    ST("kernarg")
    dma_x(0); dma_w(0)
    for p_ in range(2, 5): sc_regs(p_)
    for srd, _, size in srds[2:]:
        a(f"s_mov_b32 s{srd+2}, {size}")
        a(f"s_mov_b32 s{srd+3}, {SRD3:#x}")
    a(f"v_lshlrev_b32 v{vTO}, 7, v{vL}")
    a("s_barrier")
    dma_x(1); dma_w(1)
    def kv_dma():
        for rnd in range(3):
            lab = a.newlabel("k1_kvd"); labv = a.newlabel("k1_kvdv"); labe = a.newlabel("k1_kvde")
            a(f"s_add_u32 s{sT0}, s{sW}, {8*rnd}")
            a(f"s_cmp_ge_u32 s{sT0}, 21")
            a(f"s_cbranch_scc1 {labe}")
            a(f"s_sub_u32 s{sT1}, s{sT0}, 11")
            a(f"s_cmp_ge_u32 s{sT0}, 11")
            a(f"s_cselect_b32 s{sT2}, s{sT1}, s{sT0}")
            a(f"s_lshl_b32 s{sT2}, s{sT2}, 6")
            a(f"v_add_u32 v{t0}, s{sT2}, v{vL}")
            a(f"v_mul_u32_u24 v{t1}, 6554, v{t0}")
            a(f"v_lshrrev_b32 v{t1}, 16, v{t1}")
            a(f"v_mul_u32_u24 v{t2}, 10, v{t1}")
            a(f"v_sub_u32 v{t0}, v{t0}, v{t2}")
            a(f"v_mul_u32_u24 v{t1}, 1280, v{t1}")
            a(f"v_lshl_add_u32 v{t0}, v{t0}, 4, v{t1}")
            a(f"s_mul_i32 s{sT1}, s{sJ}, 160")
            a(f"s_add_u32 s{sT1}, s{sT1}, s{sXOFF}")
            a(f"s_lshl_b32 s{sT2}, s{sT2}, 4")
            a(f"s_cmp_ge_u32 s{sT0}, 11")
            a(f"s_cbranch_scc1 {labv}")
            a(f"v_add_u32 v{t0}, s{sT1}, v{t0}")
            a(f"v_subrev_u32 v{t0}, {3*1280}, v{t0}")
            a(f"s_add_u32 m0, s{sT2}, {KS}")
            a(f"buffer_load_dwordx4 v{t0}, s[{sK}:{sK+3}], 0 offen lds")
            a(f"s_branch {labe}")
            a.label(labv)
            a(f"s_add_u32 m0, s{sT2}, {VS}")
            a(f"buffer_load_dwordx4 v{t0}, s[{sV}:{sV+3}], s{sT1} offen lds")
            a.label(labe)
            a.vm -= 2
            yield

    lab = a.newlabel("k1_shk")
    a(f"s_cmp_lg_u32 s{sW}, 7")
    a(f"s_cbranch_scc1 {lab}")
    a(f"v_lshlrev_b32 v{t0}, 4, v{vL}")
    a(f"s_mul_i32 s{sT0}, s{sJ}, 640")
    a(f"s_mov_b32 m0, {SHKL}")
    mask(a, 40)
    a(f"buffer_load_dwordx4 v{t0}, s[{sSHK}:{sSHK+3}], s{sT0} offen lds")
    a.vm -= 1
    mask(a, 64)
    a.label(lab)
    a(f"s_and_b32 s{sFH}, s{sW}, 1")
    a(f"s_lshr_b32 s{sSH}, s{sW}, 1")
    a(f"s_and_b32 s{sSH}, s{sSH}, 1")
    a(f"s_lshr_b32 s{sKH}, s{sW}, 2")
    a(f"s_xor_b32 s{sST0}, s{sFH}, s{sKH}")
    a(f"s_lshl_b32 s{sST}, s{sSH}, 1")
    a(f"s_add_u32 s{sST}, s{sST}, s{sST0}")
    a(f"s_mov_b32 s{sEPS}, {f32(1e-5):#x}")
    a(f"s_mov_b32 s{sONES}, 0x3f803f80")
    a(f"s_mov_b32 s{sNC2}, {f32(-C2):#x}")
    a(f"s_mov_b32 s{sNC2+1}, {f32(-C2):#x}")
    vRP = V(); vPP = V()
    _pre = [V(), V(), V()]
    XF = V(80, 4)
    def xf(sc, kk, sl): return XF + ((sc*2 + kk)*2 + sl)*4
    WF = V(48, 4)
    def wf(b, kk, ft): return WF + ((b*2 + kk)*3 + ft)*4
    ACC = V(24, 4)
    def acc(ft, sl): return ACC + (ft*2 + sl)*4
    Z2V = V(12, 4)
    KX = V(4, 4)
    KROW = [XF + 4*r for r in range(5)]
    VROW = [XF + 20, XF + 24]
    vXA = [[_pre[0], _pre[1]], [_pre[2], V()]]
    vWA = [[V(), V(), V()], [V(), V(), V()]]
    a(f"s_lshl_b32 s{sT0}, s{sKH}, 1")
    a(f"s_add_u32 s{sKKA}, s{sT0}, s{sSH}")
    a(f"s_xor_b32 s{sKKB}, s{sKKA}, 1")
    a(f"v_xor_b32 v{t0}, v{vQ}, v{vP}")
    a(f"v_lshlrev_b32 v{t2}, 8, v{vP}")
    a(f"s_lshl_b32 s{sT0}, s{sSH}, 13")
    a(f"s_lshl_b32 s{sT1}, s{sST0}, 12")
    a(f"s_add_u32 s{sT2}, s{sT0}, s{sT1}")
    a(f"s_xor_b32 s{sT1}, s{sT1}, 4096")
    a(f"s_add_u32 s{sT3}, s{sT0}, s{sT1}")
    for kkidx, sKK in ((0, sKKA), (1, sKKB)):
        a(f"s_lshl_b32 s{sT0}, s{sKK}, 2")
        a(f"v_xor_b32 v{t1}, s{sT0}, v{t0}")
        a(f"v_lshl_add_u32 v{t1}, v{t1}, 4, v{t2}")
        a(f"v_add_u32 v{vXA[kkidx][0]}, s{sT2}, v{t1}")
        a(f"v_add_u32 v{vXA[kkidx][1]}, s{sT3}, v{t1}")
    a(f"v_lshrrev_b32 v{t1}, 2, v{vP}")
    a(f"v_lshl_add_u32 v{t0}, v{vQ}, 3, v{t1}")
    a(f"v_mul_u32_u24 v{t0}, 192, v{t0}")
    a(f"v_and_b32 v{t1}, 3, v{vP}")
    a(f"v_lshl_add_u32 v{t0}, v{t1}, 3, v{t0}")
    a(f"v_and_b32 v{t1}, 1, v{vQ}")
    a(f"s_mul_i32 s{sT3}, s{sFH}, 3")
    a(f"s_mul_i32 s{sT1}, s{sKKA}, 6144")
    a(f"s_add_u32 s{sT1}, s{sT1}, {WR}")
    a(f"s_mul_i32 s{sT2}, s{sKKB}, 6144")
    a(f"s_add_u32 s{sT2}, s{sT2}, {WR}")
    for ft in range(3):
        a(f"s_add_u32 s{sT0}, s{sT3}, {ft}")
        a(f"v_xor_b32 v{t2}, s{sT0}, v{t1}")
        a(f"v_lshl_add_u32 v{t2}, v{t2}, 5, v{t0}")
        a(f"v_add_u32 v{vWA[0][ft]}, s{sT1}, v{t2}")
        a(f"v_add_u32 v{vWA[1][ft]}, s{sT2}, v{t2}")
    CSA = V(12, 4)
    XSA = V(4, 4); XQA = V(4, 4)
    ONE = V(4, 4)
    for i in range(4): a(f"v_mov_b32 v{ONE+i}, s{sONES}")
    vC1 = XSA + 2
    vMR = XQA; vM, vR = vMR, vMR + 1
    vRB = XQA + 2
    a(f"v_mul_u32_u24 v{vRP}, 205, v{vL}")
    a(f"v_lshrrev_b32 v{vRP}, 11, v{vRP}")
    a(f"v_mul_u32_u24 v{t0}, 10, v{vRP}")
    a(f"v_sub_u32 v{vPP}, v{vL}, v{t0}")
    a(f"s_lshl_b32 s{sT0}, s{sW}, 3")
    a(f"v_lshl_add_u32 v{t0}, v{vRP}, 1, s{sT0}")
    a(f"v_min_u32 v{t0}, 62, v{t0}")
    a(f"v_mul_u32_u24 v{t0}, 160, v{t0}")
    a(f"v_lshl_add_u32 v{vKV}, v{vPP}, 4, v{t0}")

    kv = {}
    zfin = {}
    vTO2 = KX + 3
    a(f"v_lshlrev_b32 v{vTO2}, 10, v{vL}")
    def kv_loads():
        a(f"v_add_u32 v{t0}, {KS}, v{vKV}")
        for i in range(5):
            a.ds(f"ds_read_b128 v[{KROW[i]}:{KROW[i]+3}], v{t0} offset:{160*i}")
        a(f"v_add_u32 v{t0}, {VS}, v{vKV}")
        a.ds(f"ds_read_b128 v[{VROW[0]}:{VROW[0]+3}], v{t0}")
        kv['last'] = a.ds(f"ds_read_b128 v[{VROW[1]}:{VROW[1]+3}], v{t0} offset:160")

    def kv_compute():
        KT = XF + 32
        kf = KT; wp = KT + 10; r0 = KT + 18; r1 = KT + 20; vf0 = KT + 22; vf1 = KT + 24; o = KT + 26
        SK = KT + 28
        vTA = vKV
        a.wait_lg(kv['last']); yield
        a(f"v_mul_u32_u24 v{vTA}, {8*144}, v{vPP}"); yield
        a(f"v_lshlrev_b32 v{o}, 2, v{vRP}"); yield
        a(f"v_sub_u32 v{vTA}, v{vTA}, v{o}"); yield
        a(f"s_lshl_b32 s{sT0}, s{sW}, 4")
        a(f"s_add_u32 s{sT0}, s{sT0}, {TB + 12}")
        a(f"v_add_u32 v{vTA}, s{sT0}, v{vTA}"); yield
        a(f"v_lshlrev_b32 v{vPP}, 6, v{vPP}"); yield
        a(f"v_add_u32 v{vPP}, {SHKL}, v{vPP}"); yield
        for i in range(4):
            if i % 2 == 0:
                a.ds(f"ds_read_b128 v[{SK}:{SK+3}], v{vPP} offset:{(i//2)*32}")
                d = a.ds(f"ds_read_b128 v[{SK+4}:{SK+7}], v{vPP} offset:{(i//2)*32 + 16}"); yield
            for r in range(5):
                a(f"v_lshlrev_b32 v{kf+2*r}, 16, v{KROW[r]+i}"); yield
                a(f"v_and_b32 v{kf+2*r+1}, 0xffff0000, v{KROW[r]+i}"); yield
            if i % 2 == 0:
                a.wait_lg(d)
            for t in range(4):
                ra = SK + 2*(2*(i % 2)) + (t >> 1); rb_ = SK + 2*(2*(i % 2) + 1) + (t >> 1)
                if t & 1:
                    a(f"v_and_b32 v{wp+2*t}, 0xffff0000, v{ra}"); yield
                    a(f"v_and_b32 v{wp+2*t+1}, 0xffff0000, v{rb_}"); yield
                else:
                    a(f"v_lshlrev_b32 v{wp+2*t}, 16, v{ra}"); yield
                    a(f"v_lshlrev_b32 v{wp+2*t+1}, 16, v{rb_}"); yield
            for t in range(4):
                for (dst, top) in ((r0, 3), (r1, 4)):
                    if t == 0: yield from pkop(a, "mul", dst, kf+2*top, wp, pk=True)
                    else: yield from pkop(a, "fma", dst, kf+2*(top-t), wp+2*t, dst, pk=True)
            for (vf, rr) in ((vf0, 0), (vf1, 1)):
                a(f"v_lshlrev_b32 v{vf}, 16, v{VROW[rr]+i}"); yield
                a(f"v_and_b32 v{vf+1}, 0xffff0000, v{VROW[rr]+i}"); yield
            yield from pkop(a, "mul", r0, r0, vf0, pk=True)
            yield from pkop(a, "mul", r1, r1, vf1, pk=True)
            a(f"v_cvt_pk_bf16_f32 v{o}, v{r1}, v{r0}"); yield
            a(f"v_cvt_pk_bf16_f32 v{o+1}, v{r1+1}, v{r0+1}"); yield
            a(f"s_mov_b32 exec_hi, 0xff")
            a.ds(f"ds_write_b32 v{vTA}, v{o} offset:{(2*i)*144}")
            a.ds(f"ds_write_b32 v{vTA}, v{o+1} offset:{(2*i+1)*144}")
            a(f"s_mov_b32 exec_hi, -1"); yield

    def kv_store():
        for rnd in range(2):
            T4 = XF + 72 + 4*rnd
            a(f"s_lshl_b32 s{sT0}, s{sW}, 3")
            if rnd: a(f"s_add_u32 s{sT0}, s{sT0}, 64")
            a(f"v_lshrrev_b32 v{t0}, 3, v{vL}")
            a(f"v_add_u32 v{t0}, s{sT0}, v{t0}"); yield
            a(f"v_and_b32 v{t1}, 7, v{vL}")
            a(f"v_lshlrev_b32 v{t1}, 4, v{t1}"); yield
            a(f"v_mul_u32_u24 v{t2}, 144, v{t0}")
            a(f"v_add_u32 v{t2}, v{t2}, v{t1}")
            a(f"v_add_u32 v{t2}, {TB}, v{t2}"); yield
            d = a.ds(f"ds_read_b128 v[{T4}:{T4+3}], v{t2}"); yield
            a(f"v_lshlrev_b32 v{t0}, 12, v{t0}")
            a(f"v_add_u32 v{t0}, v{t0}, v{t1}"); yield
            a(f"s_mul_i32 s{sT0}, s{sJ}, {80*4096}")
            a(f"s_lshl_b32 s{sT1}, s{sRB}, 7")
            a(f"s_add_u32 s{sT0}, s{sT0}, s{sT1}")
            a(f"s_add_u32 s{sT0}, s{sT0}, {WS_KVT}")
            a.wait_lg(d)
            if rnd == 0:
                a.vmem(f"buffer_store_dwordx4 v[{T4}:{T4+3}], v{t0}, s[{sWS}:{sWS+3}], s{sT0} offen"); yield
            else:
                lab = a.newlabel("k1_kvskip")
                a(f"s_cmp_ge_u32 s{sW}, 2")
                a(f"s_cbranch_scc1 {lab}")
                a(f"buffer_store_dwordx4 v[{T4}:{T4+3}], v{t0}, s[{sWS}:{sWS+3}], s{sT0} offen")
                a.vm -= 1
                a.label(lab); yield

    def reads(p):
        sc = p % 5; b = p & 1
        if p < 5:
            if p == 4:
                for kk in range(2):
                    for sl in range(2):
                        a(f"v_add_u32 v{vXA[kk][sl]}, 0x10000, v{vXA[kk][sl]}")
            for kk in range(2):
                for sl in range(2):
                    off = XR + (sc*16384 if p < 4 else 0)
                    a.ds(f"ds_read_b128 v[{xf(sc,kk,sl)}:{xf(sc,kk,sl)+3}], v{vXA[kk][sl]} offset:{off}")
        so = (p % 3)*SLOT
        for kk in range(2):
            for ft in range(3):
                r = wf(b, kk, ft)
                a.ds(f"ds_read_b64_tr_b16 v[{r}:{r+1}], v{vWA[kk][ft]} offset:{so}")
                a.ds(f"ds_read_b64_tr_b16 v[{r+2}:{r+3}], v{vWA[kk][ft]} offset:{so + 768}")

    def mfmas(p, fill, nfill, dmaf=None):
        sc = p % 5; b = p & 1
        first = (sc == 0)
        ops = []
        for kk in range(2):
            for ft in range(3):
                for sl in range(2):
                    c = "0" if (first and kk == 0) else f"v[{acc(ft,sl)}:{acc(ft,sl)+3}]"
                    ops.append(f"v_mfma_f32_16x16x32_bf16 v[{acc(ft,sl)}:{acc(ft,sl)+3}], v[{wf(b,kk,ft)}:{wf(b,kk,ft)+3}], v[{xf(sc,kk,sl)}:{xf(sc,kk,sl)+3}], {c}")
                if kk == 0:
                    c = "0" if first else f"v[{CSA+4*ft}:{CSA+4*ft+3}]"
                    ops.append(f"v_mfma_f32_16x16x32_bf16 v[{CSA+4*ft}:{CSA+4*ft+3}], v[{wf(b,0,ft)}:{wf(b,0,ft)+3}], v[{ONE}:{ONE+3}], {c}")
            if p < 5:
                x = xf(sc, kk, 0)
                c = "0" if (first and kk == 0) else f"v[{XSA}:{XSA+3}]"
                ops.append(f"v_mfma_f32_16x16x32_bf16 v[{XSA}:{XSA+3}], v[{ONE}:{ONE+3}], v[{x}:{x+3}], {c}")
                c = "0" if (first and kk == 0) else f"v[{XQA}:{XQA+3}]"
                ops.append(f"v_mfma_f32_16x16x32_bf16 v[{XQA}:{XQA+3}], v[{x}:{x+3}], v[{x}:{x+3}], {c}")
        nd = 0
        for oi, o in enumerate(ops):
            a(o)
            if dmaf is not None and oi % 3 == 1: dmaf.step(1)
            fill.step(nfill)
        if dmaf is not None: dmaf.drain()

    def exchange_write(ps, dst):
        T = TMP
        a(f"s_mul_i32 s{sT0}, s{sW}, 3072")
        a(f"s_add_u32 s{sT0}, s{sT0}, {EX}")
        a(f"v_lshl_add_u32 v{t0}, v{vL}, 4, s{sT0}")
        a(f"s_lshl_b32 s{sT0}, s{sFH}, 2")
        a(f"s_lshl_b32 s{sT1}, s{sSH}, 1")
        a(f"s_add_u32 s{sT0}, s{sT0}, s{sT1}")
        a(f"s_add_u32 s{sT0}, s{sT0}, s{sKH}")
        a(f"s_mul_i32 s{sT0}, s{sT0}, 192")
        a(f"s_add_u32 s{sT0}, s{sT0}, {CSUM + ps*1536}")
        a(f"v_lshl_add_u32 v{t1}, v{vQ}, 4, s{sT0}")
        for ft in range(3):
            a.ds(f"ds_write_b128 v{t0}, v[{acc(ft,1)}:{acc(ft,1)+3}] offset:{ft*1024}")
        a(f"s_mov_b32 exec_lo, 0x00010001")
        a(f"s_mov_b32 exec_hi, 0x00010001")
        for ft in range(3):
            a.ds(f"ds_write_b128 v{t1}, v[{CSA+4*ft}:{CSA+4*ft+3}] offset:{ft*64}")
        a(f"s_mov_b64 exec, -1")
        if ps == 0:
            a(f"v_and_b32 v{T}, 3, v{vP}")
            a(f"v_cmp_eq_u32 vcc, 1, v{T}")
            a(f"v_cndmask_b32 v{XSA+1}, v{XQA}, v{XQA+1}, vcc")
            a(f"v_cmp_eq_u32 vcc, 2, v{T}")
            a(f"v_cndmask_b32 v{XSA+1}, v{XSA+1}, v{XQA+2}, vcc")
            a(f"v_cmp_eq_u32 vcc, 3, v{T}")
            a(f"v_cndmask_b32 v{XSA+1}, v{XSA+1}, v{XQA+3}, vcc")
            a(f"s_lshl_b32 s{sT0}, s{sST}, 1")
            a(f"s_add_u32 s{sT0}, s{sT0}, s{sKH}")
            a(f"s_lshl_b32 s{sT0}, s{sT0}, 7")
            a(f"s_add_u32 s{sT0}, s{sT0}, {XSUM}")
            a(f"v_lshl_add_u32 v{t2}, v{vP}, 3, s{sT0}")
            a(f"s_mov_b32 exec_lo, 0x00F0000F")
            a(f"s_mov_b32 exec_hi, 0xF0000F00")
            a.ds(f"ds_write_b64 v{t2}, {P(XSA)}")
            a(f"s_mov_b64 exec, -1")
        for ft in range(3):
            for h in range(2):
                a(f"v_pk_add_f32 {P(dst+4*ft+2*h)}, {P(acc(ft,0)+2*h)}, 0")
        if ps == 0:
            a(f"v_mov_b32 v{vC1}, {f32(-C1):#x}"); a(f"v_mov_b32 v{vC1+1}, {f32(-C1):#x}")

    def fold_gelu(ps, dst, E, X, C):
        a(f"s_xor_b32 s{sT0}, s{sW}, 4")
        a(f"s_mul_i32 s{sT0}, s{sT0}, 3072")
        a(f"s_add_u32 s{sT0}, s{sT0}, {EX}")
        a(f"v_lshl_add_u32 v{t0}, v{vL}, 4, s{sT0}")
        if ps == 0:
            a(f"s_lshl_b32 s{sT0}, s{sST}, 8")
            a(f"s_add_u32 s{sT0}, s{sT0}, {XSUM}")
            a(f"v_lshl_add_u32 v{t1}, v{vP}, 3, s{sT0}")
            a.ds(f"ds_read_b64 {P(X)}, v{t1}")
            dx = a.ds(f"ds_read_b64 {P(X+2)}, v{t1} offset:128")
        ids = [a.ds(f"ds_read_b128 v[{E+4*ft}:{E+4*ft+3}], v{t0} offset:{ft*1024}") for ft in range(3)]
        a(f"s_mul_i32 s{sT0}, s{sFH}, {4*192}")
        a(f"s_add_u32 s{sT0}, s{sT0}, {CSUM + ps*1536}")
        a(f"v_lshl_add_u32 v{t2}, v{vQ}, 4, s{sT0}")
        cid = []
        for q in range(4):
            for ft in range(3):
                cid.append(a.ds(f"ds_read_b128 v[{C[q]+4*ft}:{C[q]+4*ft+3}], v{t2} offset:{q*192 + ft*64}"))
        if ps == 0:
            a.wait_lg(dx)
            a(f"v_pk_add_f32 {P(vMR)}, {P(X)}, {P(X+2)}")
            a(f"v_mul_f32 v{vM}, {f32(1.0/640):#x}, v{vM}")
            a(f"v_mul_f32 v{vR}, {f32(1.0/640):#x}, v{vR}")
            a(f"v_fma_f32 v{vR}, -v{vM}, v{vM}, v{vR}")
            run(ln_finish_gen(a, vM, vR, sEPS))
            a(f"v_mov_b32 v{vRB}, v{vR}")
        a.wait_lg(ids[2])
        for i in range(0, 12, 2): a(f"v_pk_add_f32 {P(dst+i)}, {P(dst+i)}, {P(E+i)}")
        a.wait_lg(cid[5])
        for i in range(0, 12, 2): a(f"v_pk_add_f32 {P(C[0]+i)}, {P(C[0]+i)}, {P(C[1]+i)}")
        a.wait_lg(cid[11])
        for i in range(0, 12, 2): a(f"v_pk_add_f32 {P(C[2]+i)}, {P(C[2]+i)}, {P(C[3]+i)}")
        for i in range(0, 12, 2): a(f"v_pk_add_f32 {P(C[0]+i)}, {P(C[0]+i)}, {P(C[2]+i)}")
        for i in range(0, 12, 2):
            a(f"v_pk_fma_f32 {P(dst+i)}, {P(C[0]+i)}, {P(vMR)}, {P(dst+i)} op_sel_hi:[1,0,1] neg_lo:[0,1,0] neg_hi:[0,1,0]")
        for i in range(0, 12, 2): a(f"v_pk_mul_f32 {P(dst+i)}, {P(dst+i)}, {P(vRB)} op_sel_hi:[1,0]")
        T = E
        for i in range(0, 12, 2): a(f"v_pk_mul_f32 {P(T+i)}, {P(dst+i)}, {P(dst+i)}")
        for i in range(0, 12, 2): a(f"v_pk_fma_f32 {P(T+i)}, {P(T+i)}, s[{sNC2}:{sNC2+1}], {P(vC1)}")
        for i in range(0, 12, 2): a(f"v_pk_mul_f32 {P(T+i)}, {P(T+i)}, {P(dst+i)}")
        for i in range(12): a(f"v_exp_f32 v{T+i}, v{T+i}")
        for i in range(0, 12, 2): a(f"v_pk_add_f32 {P(T+i)}, {P(T+i)}, 1.0 op_sel_hi:[1,0]")
        for i in range(12): a(f"v_rcp_f32 v{T+i}, v{T+i}")
        for i in range(0, 12, 2): a(f"v_pk_mul_f32 {P(dst+i)}, {P(dst+i)}, {P(T+i)}")

    def z2_stats():
        T = TMP
        a(f"v_pk_add_f32 {P(T+6)}, {P(Z2V)}, {P(Z2V+2)}"); yield
        a(f"v_pk_mul_f32 {P(T+8)}, {P(Z2V)}, {P(Z2V)}"); yield
        a(f"v_pk_add_f32 {P(T+10)}, {P(Z2V+4)}, {P(Z2V+6)}"); yield
        a(f"v_pk_fma_f32 {P(T+8)}, {P(Z2V+2)}, {P(Z2V+2)}, {P(T+8)}"); yield
        a(f"v_pk_add_f32 {P(T+12)}, {P(Z2V+8)}, {P(Z2V+10)}"); yield
        a(f"v_pk_fma_f32 {P(T+8)}, {P(Z2V+4)}, {P(Z2V+4)}, {P(T+8)}"); yield
        a(f"v_pk_add_f32 {P(T+6)}, {P(T+6)}, {P(T+10)}"); yield
        a(f"v_pk_fma_f32 {P(T+8)}, {P(Z2V+6)}, {P(Z2V+6)}, {P(T+8)}"); yield
        a(f"v_pk_add_f32 {P(T+6)}, {P(T+6)}, {P(T+12)}"); yield
        a(f"v_pk_fma_f32 {P(T+8)}, {P(Z2V+8)}, {P(Z2V+8)}, {P(T+8)}"); yield
        a(f"v_pk_fma_f32 {P(T+8)}, {P(Z2V+10)}, {P(Z2V+10)}, {P(T+8)}"); yield
        a(f"v_add_f32 v{T}, v{T+6}, v{T+7}"); yield
        a(f"v_add_f32 v{T+1}, v{T+8}, v{T+9}"); yield
        a(f"v_mov_b32 v{T+2}, 0"); a(f"v_mov_b32 v{T+3}, 0")
        a(f"s_lshl_b32 s{sT0}, s{sST}, 7")
        a(f"s_lshl_b32 s{sT1}, s{sFH}, 9")
        a(f"s_add_u32 s{sT0}, s{sT0}, s{sT1}")
        a(f"s_add_u32 s{sT0}, s{sT0}, {ZSUM}")
        a(f"v_lshl_add_u32 v{t0}, v{vP}, 3, s{sT0}"); yield
        a(f"v_add_f32 v{T}, v{T}, v{T+2}"); yield
        a(f"v_add_f32 v{T+1}, v{T+1}, v{T+3}"); yield
        yield from reduce_g4_multi(a, [T, T+1], [T+4, T+5])
        a(f"s_mov_b64 exec, 0xffff")
        a.ds(f"ds_write_b64 v{t0}, {P(T)}")
        a(f"s_mov_b64 exec, -1"); yield

    def xst_store():
        lab = a.newlabel("k1_xst")
        a(f"s_or_b32 s{sT0}, s{sJ}, s{sFH}")
        a(f"s_cmp_lg_u32 s{sT0}, 0")
        a(f"s_cbranch_scc1 {lab}")
        a(f"s_lshl_b32 s{sT0}, s{sRB}, 9")
        a(f"s_lshl_b32 s{sT1}, s{sST}, 7")
        a(f"s_add_u32 s{sT0}, s{sT0}, s{sT1}")
        a(f"s_add_u32 s{sT0}, s{sT0}, {WS_XST}")
        a(f"v_lshlrev_b32 v{t0}, 3, v{vP}")
        a(f"s_mov_b64 exec, 0xffff")
        a(f"buffer_store_dwordx2 {P(vMR)}, v{t0}, s[{sWS}:{sWS+3}], s{sT0} offen")
        a.vm -= 1
        a(f"s_mov_b64 exec, -1")
        a.label(lab)
        yield

    sGU = 89
    a(f"s_lshl_b32 s{sGU}, s2, 3")
    a(f"s_add_u32 s{sGU}, s{sGU}, s{sW}")
    def mall_touch(srd, nper, first, count):
        if "nomall" in K1X: return
        a(f"s_mul_i32 s{sT0}, s{sGU}, {nper*128}")
        a(f"s_add_u32 s{sT0}, s{sT0}, {first*128}")
        mask(a, count)
        a.vmem(f"buffer_load_dword v{vDummy}, v{vTO}, s[{srd}:{srd+3}], s{sT0} offen")
        mask(a, 64)

    def l2_touch_wsp(i):
        a(f"s_lshr_b32 s{sT0}, s2, 3")
        a(f"s_lshl_b32 s{sT0}, s{sT0}, 3")
        a(f"s_add_u32 s{sT0}, s{sT0}, s{sW}")
        a(f"s_lshl_b32 s{sT0}, s{sT0}, 13")
        a(f"s_lshl_b32 s{sT1}, s{sXC}, 21")
        a(f"s_add_u32 s{sT0}, s{sT0}, s{sT1}")
        a(f"s_add_u32 s{sT0}, s{sT0}, {i*128}")
        mask(a, 8)
        a.vmem(f"buffer_load_dword v{vDummy}, v{vTO2}, s[{sWSP}:{sWSP+3}], s{sT0} offen")
        mask(a, 64)

    def epoch_load():
        a(f"v_mov_b32 v{KX+2}, {WS_EPO}")
        zfin['ep'] = a.vmem(f"buffer_load_dwordx2 {P(KX)}, v{KX+2}, s[{sWS}:{sWS+3}], 0 offen sc1")

    def gen1(f):
        f(); yield

    SP = TMP + 20
    vFA = vXD[0]
    vDummy2 = vPP
    def stats_load():
        a(f"s_lshl_b32 s{sT0}, s{sRB}, 13")
        a(f"s_lshl_b32 s{sT1}, s{sST}, 8")
        a(f"s_add_u32 s{sT0}, s{sT0}, s{sT1}")
        a(f"s_add_u32 s{sZ1B}, s{sT0}, {WS_ZST}")
        a(f"v_lshlrev_b32 v{vFA}, 4, v{vP}")
        a(f"v_lshl_add_u32 v{vFA}, v{vQ}, 11, v{vFA}")
        a.vmem(f"buffer_load_dwordx4 v[{SP}:{SP+3}], v{vFA}, s[{sWS}:{sWS+3}], s{sZ1B} offen sc1")
        zfin['sp'] = a.vmem(f"buffer_load_dwordx4 v[{SP+4}:{SP+7}], v{vFA}, s[{sWS}:{sWS+3}], s{sZ1B} offen offset:1024 sc1")
    def stats_check():
        a.wait_vm(zfin['sp'])
        lp = a.newlabel("k1_poll"); lp2 = a.newlabel("k1_polled")
        a(f"s_mov_b32 s{sD0}, 0")
        a.label(lp)
        a(f"s_add_u32 s{sD0}, s{sD0}, 1")
        a(f"s_cmp_gt_u32 s{sD0}, 100000")
        a(f"s_cbranch_scc1 {lp2}")
        a(f"v_cmp_ne_u32 vcc, s{sTAG}, v{SP+2}")
        a(f"v_cmp_ne_u32 s[{sT2}:{sT2+1}], s{sTAG+1}, v{SP+3}")
        a(f"s_or_b64 vcc, vcc, s[{sT2}:{sT2+1}]")
        a(f"v_cmp_ne_u32 s[{sT2}:{sT2+1}], s{sTAG}, v{SP+6}")
        a(f"s_or_b64 vcc, vcc, s[{sT2}:{sT2+1}]")
        a(f"v_cmp_ne_u32 s[{sT2}:{sT2+1}], s{sTAG+1}, v{SP+7}")
        a(f"s_or_b64 vcc, vcc, s[{sT2}:{sT2+1}]")
        if 'nopoll' in K1X: a("s_mov_b64 vcc, 0")
        a(f"s_cmp_eq_u64 vcc, 0")
        a(f"s_cbranch_scc1 {lp2}")
        a("s_sleep 4")
        a(f"buffer_load_dwordx4 v[{SP}:{SP+3}], v{vFA}, s[{sWS}:{sWS+3}], s{sZ1B} offen sc1")
        a(f"buffer_load_dwordx4 v[{SP+4}:{SP+7}], v{vFA}, s[{sWS}:{sWS+3}], s{sZ1B} offen offset:1024 sc1")
        a.vm -= 2
        a("s_waitcnt vmcnt(0)")
        a(f"s_branch {lp}")
        a.label(lp2)
    def z2_normalize():
        vZW = vRP
        a(f"s_lshl_b32 s{sT0}, s{sST}, 4")
        a(f"v_add_u32 v{vZW}, s{sT0}, v{vP}")
        a(f"v_mul_u32_u24 v{vZW}, 200, v{vZW}")
        a(f"v_lshl_add_u32 v{vZW}, v{vQ}, 3, v{vZW}")
        a(f"s_mul_i32 s{sT0}, s{sFH}, 96")
        a(f"s_add_u32 s{sT0}, s{sT0}, {ZT}")
        a(f"v_add_u32 v{vZW}, s{sT0}, v{vZW}")
        stats_check()
        lab = a.newlabel("k1_ep")
        a(f"s_xor_b32 s{sT0}, s{sW}, 1")
        a(f"s_or_b32 s{sT0}, s{sT0}, s{sJ}")
        a(f"s_cmp_lg_u32 s{sT0}, 0")
        a(f"s_cbranch_scc1 {lab}")
        a(f"v_mov_b32 v{t0}, 0")
        a(f"v_mov_b32 v{vDummy2}, 1")
        a(f"s_mov_b64 exec, 1")
        a(f"buffer_atomic_add v{vDummy2}, v{t0}, s[{sDBG}:{sDBG+3}], 0 offen sc0")
        a(f"s_mov_b64 exec, -1")
        a.vm -= 1
        a.label(lab)
        mq = TMP
        a(f"v_pk_add_f32 {P(mq)}, {P(SP)}, {P(SP+4)}")
        run(reduce_g4_multi(a, [mq, mq+1], [TMP+2, TMP+3]))
        a(f"v_mul_f32 v{mq}, {f32(1.0/768):#x}, v{mq}")
        a(f"v_mul_f32 v{mq+1}, {f32(1.0/768):#x}, v{mq+1}")
        a(f"v_fma_f32 v{mq+1}, -v{mq}, v{mq}, v{mq+1}")
        run(ln_finish_gen(a, mq, mq+1, sEPS))
        a(f"v_mov_b32 v{TMP+2}, v{mq+1}")
        for i in range(0, 12, 2):
            a(f"v_pk_add_f32 {P(Z2V+i)}, {P(Z2V+i)}, {P(mq)} op_sel_hi:[1,0] neg_lo:[0,1] neg_hi:[0,1]")
        for i in range(0, 12, 2):
            a(f"v_pk_mul_f32 {P(Z2V+i)}, {P(Z2V+i)}, {P(TMP+2)} op_sel_hi:[1,0]")
        for ft in range(3):
            a(f"v_cvt_pk_bf16_f32 v{TMP+8+2*ft}, v{Z2V+4*ft}, v{Z2V+4*ft+1}")
            a(f"v_cvt_pk_bf16_f32 v{TMP+8+2*ft+1}, v{Z2V+4*ft+2}, v{Z2V+4*ft+3}")
            a.ds(f"ds_write_b64 v{vZW}, {P(TMP+8+2*ft)} offset:{32*ft}")

    PUB = int(os.environ.get("PUB", "6"))
    NF5 = int(os.environ.get("NF5", "5"))
    fill = Filler()
    if "pro" in K1X: ST("setup")
    a.wait_vm(max(w_last[0], x_last[0]))
    if "pro" in K1X: ST("w0arr")
    a("s_barrier")
    ST("d0")
    sTAG = 100
    reads(0)
    dma_x(2); dma_w(2)
    for p in range(10):
        a.comment(f"---------------- iteration {p}")
        if p + 1 < 10:
            need = w_last[p+1]
            if p + 1 < 5: need = max(need, x_last[p+1])
            a.wait_vm(need)
        a("s_waitcnt lgkmcnt(0)")
        a("s_barrier")
        if ("pro" not in K1X or p < 2) and ("pubst" not in K1X or p in (6, 7, 8, 9)): ST(f"i{p}")
        if p == PUB:
            lab = a.newlabel("k1_pub")
            a(f"s_cmp_lg_u32 s{sW}, 0")
            a(f"s_cbranch_scc1 {lab}")
            a(f"v_lshlrev_b32 v{t0}, 3, v{vL}")
            a(f"v_add_u32 v{t1}, {ZSUM}, v{t0}")
            a(f"ds_read_b64 {P(TMP)}, v{t1}")
            a(f"ds_read_b64 {P(TMP+4)}, v{t1} offset:512")
            a(f"s_lshl_b32 s{sT0}, s{sRB}, 3")
            a(f"s_add_u32 s{sT0}, s{sT0}, s{sJ}")
            a(f"s_lshl_b32 s{sT0}, s{sT0}, 10")
            a(f"s_add_u32 s{sT0}, s{sT0}, {WS_ZST}")
            a(f"v_lshlrev_b32 v{t0}, 4, v{vL}")
            a(f"v_mov_b32 v{TMP+2}, s{sTAG}")
            a(f"v_mov_b32 v{TMP+3}, s{sTAG+1}")
            a("s_waitcnt lgkmcnt(0)")
            a(f"v_pk_add_f32 {P(TMP)}, {P(TMP)}, {P(TMP+4)}")
            a(f"buffer_store_dwordx4 v[{TMP}:{TMP+3}], v{t0}, s[{sWS}:{sWS+3}], s{sT0} offen sc1")
            a.vm -= 1; a.lg -= 2
            a.label(lab)
        if p + 1 < 10 and "nocomp" not in K1X: reads(p + 1)
        dmaf = Filler()
        if p + 3 < 5: dmaf.add(dma_x_g(p + 3))
        if p + 3 < 10: dmaf.add(dma_w_g(p + 3))
        if p == 5: dmaf.add(kv_dma())
        if p == 3: dmaf.add(gen1(epoch_load))
        if p == 5:
            a.wait_vm(zfin['ep'])
            a(f"v_readfirstlane_b32 s{sTAG}, v{KX}")
            a(f"v_readfirstlane_b32 s{sTAG+1}, v{KX+1}")
            a(f"s_add_u32 s{sTAG}, s{sTAG}, 1")
            a(f"s_addc_u32 s{sTAG+1}, s{sTAG+1}, 0")
        if 1 <= p <= 8:
            if "l2pf" in K1X: dmaf.add(gen1(lambda p=p: l2_touch_wsp(p-1)))
            else: dmaf.add(gen1(lambda p=p: mall_touch(sWSP, 32, (p-1)*4, 4)))
        if p in (2, 5): dmaf.add(gen1(lambda p=p: mall_touch(sSSM, 10, 0 if p == 2 else 5, 5)))
        if p == int(os.environ.get('SLD', '9')): stats_load()
        nf = 0
        if p == 5:
            fold_gelu(0, Z2V, TMP, TMP+12, [TMP+16, ACC, ACC+12, CSA]); run(z2_stats()); run(xst_store())
        if "nocomp" in K1X:
            dmaf.drain(); fill.q = []
        else:
            mfmas(p, fill, nf, dmaf)
        if p == 4: exchange_write(0, Z2V)
        if p == 9:
            exchange_write(1, WF)
            kv_loads()
            run(kv_compute())
            z2_normalize()
    ST("loop")
    vZR = vWA[0][1]; vZS = vWA[0][2]
    a(f"v_lshrrev_b32 v{vZR}, 1, v{vQ}")
    a(f"v_lshrrev_b32 v{t1}, 2, v{vP}")
    a(f"v_lshl_add_u32 v{vZR}, v{vZR}, 3, v{t1}")
    a(f"v_mul_u32_u24 v{vZR}, 200, v{vZR}")
    a(f"v_and_b32 v{t1}, 1, v{vQ}")
    a(f"v_lshl_add_u32 v{vZR}, v{t1}, 5, v{vZR}")
    a(f"v_and_b32 v{t1}, 3, v{vP}")
    a(f"v_lshl_add_u32 v{vZR}, v{t1}, 3, v{vZR}")
    a(f"v_lshlrev_b32 v{vZS}, 4, v{vL}")
    a("s_waitcnt lgkmcnt(0)")
    a("s_barrier")
    ST("bar")
    for rnd in range(2):
        lab = None
        if rnd == 1:
            lab = a.newlabel("k1_fr")
            a(f"s_cmp_ge_u32 s{sW}, 4")
            a(f"s_cbranch_scc1 {lab}")
        a(f"s_add_u32 s{sT0}, s{sW}, {8*rnd}")
        a(f"s_mul_i32 s{sT1}, s{sT0}, 43")
        a(f"s_lshr_b32 s{sT1}, s{sT1}, 7")
        a(f"s_mul_i32 s{sT2}, s{sT1}, 3")
        a(f"s_sub_u32 s{sT2}, s{sT0}, s{sT2}")
        a(f"s_mul_i32 s{sT1}, s{sT1}, {16*200}")
        a(f"s_lshl_b32 s{sT2}, s{sT2}, 6")
        a(f"s_add_u32 s{sT1}, s{sT1}, s{sT2}")
        a(f"s_add_u32 s{sT1}, s{sT1}, {ZT}")
        a(f"v_add_u32 v{t1}, s{sT1}, v{vZR}")
        Tq = TMP + 4*rnd
        a(f"ds_read_b64_tr_b16 {P(Tq)}, v{t1}")
        a(f"ds_read_b64_tr_b16 {P(Tq+2)}, v{t1} offset:800")
        a(f"s_lshl_b32 s{sT1}, s{sJ}, 7")
        a(f"s_lshl_b32 s{sT2}, s{sRB}, 2")
        a(f"s_add_u32 s{sT1}, s{sT1}, s{sT2}")
        a(f"s_mul_i32 s{sT1}, s{sT1}, 3")
        a(f"s_add_u32 s{sT1}, s{sT1}, s{sT0}")
        a(f"s_lshl_b32 s{sT1}, s{sT1}, 10")
        a(f"s_add_u32 s{sT1}, s{sT1}, {WS_Z2F}")
        a("s_waitcnt lgkmcnt(0)")
        a(f"buffer_store_dwordx4 v[{Tq}:{Tq+3}], v{vZS}, s[{sWS}:{sWS+3}], s{sT1} offen")
        if lab: a.label(lab)
    run(kv_store())
    Z1V = WF
    T2 = XF
    fold_gelu(1, Z1V, T2, T2+12, [T2+16, T2+28, T2+40, T2+52])
    a(f"v_lshrrev_b32 v{t0}, 1, v{vQ}")
    a(f"v_mul_u32_u24 v{t0}, 3072, v{t0}")
    a(f"v_and_b32 v{t1}, 1, v{vQ}")
    a(f"v_lshlrev_b32 v{t1}, 5, v{t1}")
    a(f"v_add_u32 v{t1}, v{t1}, v{vP}")
    a(f"v_lshl_add_u32 v{t0}, v{t1}, 4, v{t0}")
    a(f"s_lshl_b32 s{sT0}, s{sRB}, 3")
    a(f"s_add_u32 s{sT0}, s{sT0}, s{sJ}")
    a(f"s_mul_i32 s{sZ1B}, s{sT0}, 12288")
    a(f"s_lshr_b32 s{sT0}, s{sST}, 1")
    a(f"s_mul_i32 s{sT0}, s{sT0}, 6144")
    a(f"s_add_u32 s{sZ1B}, s{sZ1B}, s{sT0}")
    a(f"s_and_b32 s{sT0}, s{sST}, 1")
    a(f"s_lshl_b32 s{sT0}, s{sT0}, 8")
    a(f"s_add_u32 s{sZ1B}, s{sZ1B}, s{sT0}")
    a(f"s_add_u32 s{sZ1B}, s{sZ1B}, {WS_Z1F}")
    a(f"s_mul_i32 s{sT3}, s{sFH}, 3")
    for ft in range(3):
        a(f"v_cvt_pk_bf16_f32 v{T2+2*ft}, v{Z1V+4*ft}, v{Z1V+4*ft+1}")
        a(f"v_cvt_pk_bf16_f32 v{T2+2*ft+1}, v{Z1V+4*ft+2}, v{Z1V+4*ft+3}")
        a(f"s_add_u32 s{sT0}, s{sT3}, {ft}")
        a(f"s_lshr_b32 s{sT1}, s{sT0}, 1")
        a(f"s_lshl_b32 s{sT1}, s{sT1}, 10")
        a(f"s_and_b32 s{sT0}, s{sT0}, 1")
        a(f"s_lshl_b32 s{sT0}, s{sT0}, 3")
        a(f"s_add_u32 s{sT0}, s{sT0}, s{sT1}")
        a(f"s_add_u32 s{sT0}, s{sT0}, s{sZ1B}")
        a.vmem(f"buffer_store_dwordx2 {P(T2+2*ft)}, v{t0}, s[{sWS}:{sWS+3}], s{sT0} offen")
    lab = a.newlabel("k1_ep2")
    a(f"s_xor_b32 s{sT0}, s{sW}, 1")
    a(f"s_or_b32 s{sT0}, s{sT0}, s{sJ}")
    a(f"s_cmp_lg_u32 s{sT0}, 0")
    a(f"s_cbranch_scc1 {lab}")
    a("s_waitcnt vmcnt(0)")
    a(f"v_readfirstlane_b32 s{sT0}, v{vDummy2}")
    a(f"s_cmp_lg_u32 s{sT0}, 31")
    a(f"s_cbranch_scc1 {lab}")
    a(f"v_mov_b32 v{TMP}, s{sTAG}")
    a(f"v_mov_b32 v{TMP+1}, s{sTAG+1}")
    a(f"v_mov_b32 v{t0}, {WS_EPO}")
    a(f"s_mov_b64 exec, 1")
    a(f"buffer_store_dwordx2 {P(TMP)}, v{t0}, s[{sWS}:{sWS+3}], 0 offen sc1")
    a(f"s_mov_b64 exec, -1")
    a.label(lab)
    ST("end")
    ST.dump(sWS, sW, t0, t1, WS_DBG)
    gen_k1.stamp_names = ST.names
    a.label(f"{name}_end")
    a("s_endpgm")
    if "st1" in K1X:
        a.items = [(k, (t + " sc1") if (k == "i" and t.startswith("buffer_store") and " sc1" not in t) else t) for k, t in a.items]
    gen_k1.ninstr = sum(1 for k, _ in a.items if k == "i")
    return a.finish(), V.hi
```

```python
from dsl import *
from layout import *
import os, struct

XR = 0; WR = 81920; SLOT = 24576
MISC = 155648
CSUM = MISC
XSUM = MISC + 3072
ZSUM = MISC + 4096
SHKL = MISC + 5120
EX = 16384
TB = 81920 + 24576
KS = 65536
VS = 49152
ZT = 0
C1 = 2.302208198144325
C2 = C1 * 0.044715

def f32(x): return struct.unpack("<I", struct.pack("<f", x))[0]
def P(r): return f"v[{r}:{r+1}]"

def pkop(a, kind, d, x, y, z=None, pk=True, bcast_y=False, neg_y=False, ys=None, zs=None):
    if pk:
        yo = f"s[{ys}:{ys+1}]" if ys is not None else P(y)
        mods = ""
        n = 3 if kind == "fma" else 2
        if bcast_y: mods += " op_sel_hi:[1,0" + (",1" if n == 3 else "") + "]"
        if neg_y: mods += " neg_lo:[0,1" + (",0" if n == 3 else "") + "] neg_hi:[0,1" + (",0" if n == 3 else "") + "]"
        if kind == "fma": a(f"v_pk_fma_f32 {P(d)}, {P(x)}, {yo}, {P(z)}{mods}")
        else: a(f"v_pk_{kind}_f32 {P(d)}, {P(x)}, {yo}{mods}")
        yield
    else:
        for h in range(2):
            yo = f"s{ys}" if ys is not None else f"v{y + (0 if bcast_y else h)}"
            if neg_y: yo = "-" + yo
            if kind == "fma": a(f"v_fma_f32 v{d+h}, v{x+h}, {yo}, v{z+h}")
            elif kind == "mul":
                if ys is not None: a(f"v_mul_f32 v{d+h}, {yo}, v{x+h}")
                else: a(f"v_mul_f32 v{d+h}, v{x+h}, {yo}")
            else:
                if neg_y: a(f"v_sub_f32 v{d+h}, v{x+h}, {yo[1:]}")
                else: a(f"v_add_f32 v{d+h}, v{x+h}, {yo}")
            yield

def reduce_g4_multi(a, xs, ts):
    for op in ("v_permlane16_swap_b32", "v_permlane32_swap_b32"):
        for x, t in zip(xs, ts): a(f"v_mov_b32 v{t}, v{x}"); yield
        for x, t in zip(xs, ts): a(f"{op} v{x}, v{t}"); yield
        for x, t in zip(xs, ts): a(f"v_add_f32 v{x}, v{x}, v{t}"); yield

def ln_finish_gen(a, mean, var, sEps):
    a(f"v_max_f32 v{var}, 0, v{var}"); yield
    a(f"v_cvt_pk_bf16_f32 v{var}, v{var}, v{mean}"); yield
    a(f"v_and_b32 v{mean}, 0xffff0000, v{var}"); yield
    a(f"v_lshlrev_b32 v{var}, 16, v{var}"); yield
    a(f"v_add_f32 v{var}, s{sEps}, v{var}"); yield
    a(f"v_cvt_pk_bf16_f32 v{var}, v{var}, v{var}"); yield
    a(f"v_and_b32 v{var}, 0xffff0000, v{var}"); yield
    a(f"v_sqrt_f32 v{var}, v{var}"); yield
    a(f"v_cvt_pk_bf16_f32 v{var}, v{var}, v{var}"); yield
    a(f"v_and_b32 v{var}, 0xffff0000, v{var}"); yield
    a(f"v_rcp_f32 v{var}, v{var}"); yield

def run(gen):
    for _ in gen: pass

class Filler:
    def __init__(self): self.q = []
    def add(self, g): self.q.append(g)
    def step(self, n=1):
        for _ in range(n):
            while self.q:
                try:
                    next(self.q[0]); break
                except StopIteration:
                    self.q.pop(0)
    def drain(self):
        while self.q:
            run(self.q.pop(0))

def mask(a, n):
    if n >= 64: a("s_mov_b64 exec, -1")
    elif n > 32:
        a("s_mov_b32 exec_lo, -1"); a(f"s_mov_b32 exec_hi, {(1 << (n-32)) - 1:#x}")
    elif n == 32:
        a("s_mov_b32 exec_lo, -1"); a("s_mov_b32 exec_hi, 0")
    else: a(f"s_mov_b64 exec, {(1 << n) - 1:#x}")

def gen_k1(name="k1_kernel", prof=False):
    K1X = os.environ.get("K1X", "")
    a = Asm()
    ST = Stamps(a, enabled=prof)
    WSZ = WS_SIZE_DBG if prof else WS_END
    V = Alloc(1, 256, "v")
    sX, sWIN, sK, sV, sSHK, sWS, sDBG, sWSP, sSSM = 4, 8, 12, 16, 20, 24, 28, 32, 36
    sRB, sJ, sW, sFH, sSH, sKH, sST0, sST = 40, 41, 42, 43, 44, 45, 46, 47
    sT0, sT1, sT2, sT3 = 48, 49, 50, 51
    sXOFF, sWOFF2, sWOFF1 = 52, 53, 54
    sEPS, sONES, sU = 55, 56, 57
    sNC2 = 58
    sM0X, sM0W = 60, 61
    sZ1B, sKKA, sKKB, sD0 = 62, 63, 64, 65
    sXC, sH = 66, 67
    a.raw(f".globl {name}\n.p2align 8\n.type {name},@function\n{name}:")
    a(f"s_cmp_ge_u32 s2, 256")
    a(f"s_cbranch_scc1 {name}_end")
    srds = ((sX, 'q', SZ_X), (sWIN, 'win', SZ_WIN), (sK, 'k', SZ_X), (sV, 'v', SZ_X), (sSHK, 'shk', 5120), (sWS, 'ws', WSZ),
            (sDBG, 'dbg', 256), (sWSP, 'wsp', SZ_WSP), (sSSM, 'ssmk', SZ_SSMK))
    for srd, key, _ in srds:
        a(f"s_load_dwordx2 s[{srd}:{srd+1}], s[0:1], {KA[key]}")
    ST("start")
    vL = V(); vQ = V(); vP = V()
    t0, t1, t2 = V(), V(), V()
    vKV = V()
    a(f"v_lshrrev_b32 v{vQ}, 6, v0")
    a(f"v_and_b32 v{vL}, 63, v0")
    a(f"v_readfirstlane_b32 s{sW}, v{vQ}")
    a(f"v_lshrrev_b32 v{vQ}, 4, v{vL}")
    a(f"v_and_b32 v{vP}, 15, v{vL}")
    a(f"s_and_b32 s{sT0}, s2, 7")
    a(f"s_lshr_b32 s{sT1}, s2, 3")
    a(f"s_lshr_b32 s{sXC}, s{sT0}, 1")
    a(f"s_and_b32 s{sH}, s{sT0}, 1")
    a(f"s_lshl_b32 s{sRB}, s{sXC}, 3")
    a(f"s_and_b32 s{sT0}, s{sT1}, 7")
    a(f"s_add_u32 s{sRB}, s{sRB}, s{sT0}")
    a(f"s_lshl_b32 s{sJ}, s{sH}, 2")
    a(f"s_lshr_b32 s{sT0}, s{sT1}, 3")
    a(f"s_add_u32 s{sJ}, s{sJ}, s{sT0}")
    a(f"s_mul_i32 s{sXOFF}, s{sRB}, {64*1280}")
    a(f"s_mul_i32 s{sWOFF1}, s{sJ}, 192")
    a(f"s_add_u32 s{sWOFF2}, s{sWOFF1}, {768*2}")
    a(f"s_lshl_b32 s{sM0X}, s{sW}, 11")
    a(f"s_mul_i32 s{sM0W}, s{sW}, 3072")
    for srd, _, size in srds[:2]:
        a(f"s_mov_b32 s{srd+2}, {size}")
        a(f"s_mov_b32 s{srd+3}, {SRD3:#x}")
    TMP = V(28, 4)
    vTO = V()
    vDummy = V()
    vXD = [V(), V()]
    a(f"s_lshl_b32 s{sT0}, s{sW}, 3")
    for i in range(2):
        a(f"v_add_u32 v{t0}, s{sT0}, v{vQ}")
        if i: a(f"v_add_u32 v{t0}, 4, v{t0}")
        a(f"v_and_b32 v{t1}, 15, v{t0}")
        a(f"v_xor_b32 v{t1}, v{t1}, v{vP}")
        a(f"v_mul_u32_u24 v{t0}, 1280, v{t0}")
        a(f"v_lshl_add_u32 v{vXD[i]}, v{t1}, 4, v{t0}")
    vWD = [V(), V(), V()]
    a(f"s_mul_i32 s{sT0}, s{sW}, 192")
    for i in range(3):
        a(f"v_add_u32 v{t0}, s{sT0}, v{vL}")
        if i: a(f"v_add_u32 v{t0}, {64*i}, v{t0}")
        a(f"v_mul_u32_u24 v{t1}, 43691, v{t0}")
        a(f"v_lshrrev_b32 v{t1}, 19, v{t1}")
        a(f"v_mul_u32_u24 v{t2}, 12, v{t1}")
        a(f"v_sub_u32 v{t0}, v{t0}, v{t2}")
        a(f"v_lshrrev_b32 v{t2}, 2, v{t1}")
        a(f"v_and_b32 v{t2}, 2, v{t2}")
        a(f"v_xor_b32 v{t0}, v{t0}, v{t2}")
        a(f"v_mul_u32_u24 v{t1}, 3072, v{t1}")
        a(f"v_lshl_add_u32 v{vWD[i]}, v{t0}, 4, v{t1}")
    sSCX = [90, 91, 92, 93, 94]; sSCW = [95, 96, 97, 98, 99]
    a(f"s_add_u32 s{sT0}, s{sRB}, s{sJ}")
    a(f"s_mul_i32 s{sT1}, s{sT0}, 52")
    a(f"s_lshr_b32 s{sT1}, s{sT1}, 8")
    a(f"s_mul_i32 s{sT1}, s{sT1}, 5")
    a(f"s_sub_u32 s{sT3}, s{sT0}, s{sT1}")
    if "norot" in K1X: a(f"s_mov_b32 s{sT3}, 0")
    if "rot2" in K1X: a(f"s_and_b32 s{sT3}, s{sT0}, 1")
    if "rot4" in K1X: a(f"s_and_b32 s{sT3}, s{sT0}, 3")
    if "rotj" in K1X: a(f"s_and_b32 s{sT3}, s{sJ}, 3")
    if "rotr" in K1X:
        a(f"s_and_b32 s{sT3}, s{sRB}, 1")
        a(f"s_lshl_b32 s{sT3}, s{sT3}, 1")
    def sc_regs(p_):
        a(f"s_add_u32 s{sT1}, s{sT3}, {p_}")
        a(f"s_sub_u32 s{sT2}, s{sT1}, 5")
        a(f"s_cmp_ge_u32 s{sT1}, 5")
        a(f"s_cselect_b32 s{sT1}, s{sT2}, s{sT1}")
        a(f"s_lshl_b32 s{sSCX[p_]}, s{sT1}, 8")
        a(f"s_mul_i32 s{sSCW[p_]}, s{sT1}, {128*3072}")
    sc_regs(0); sc_regs(1)
    x_last = {}; w_last = {}
    def dma_x_g(sc):
        for i in range(2):
            a(f"s_add_u32 s{sD0}, s{sXOFF}, s{sSCX[sc]}")
            a(f"s_add_u32 m0, s{sM0X}, {XR + sc*16384 + i*1024}")
            x_last[sc] = a.vmem(f"buffer_load_dwordx4 v{vXD[i]}, s[{sX}:{sX+3}], s{sD0} offen lds")
            yield
    def wbase(q): return WR + (q % 3)*SLOT
    def dma_w_g(q):
        sc = q % 5
        for i in range(3):
            a(f"s_add_u32 s{sD0}, s{sWOFF2 if q < 5 else sWOFF1}, s{sSCW[sc]}")
            a(f"s_add_u32 m0, s{sM0W}, {wbase(q) + i*1024}")
            w_last[q] = a.vmem(f"buffer_load_dwordx4 v{vWD[i]}, s[{sWIN}:{sWIN+3}], s{sD0} offen lds")
            yield
    def dma_x(sc): run(dma_x_g(sc))
    def dma_w(q): run(dma_w_g(q))
    a("s_waitcnt lgkmcnt(0)")
    ST("kernarg")
    dma_x(0); dma_w(0)
    sTAG = 100
    a(f"s_mov_b32 s{sT0}, {WS_EPO}")
    a(f"s_load_dwordx2 s[{sTAG}:{sTAG+1}], s[{sWS}:{sWS+1}], s{sT0}")
    for p_ in range(2, 5): sc_regs(p_)
    for srd, _, size in srds[2:]:
        a(f"s_mov_b32 s{srd+2}, {size}")
        a(f"s_mov_b32 s{srd+3}, {SRD3:#x}")
    a(f"v_lshlrev_b32 v{vTO}, 7, v{vL}")
    a("s_barrier")
    dma_x(1); dma_w(1)
    def kv_dma():
        for rnd in range(3):
            lab = a.newlabel("k1_kvd"); labv = a.newlabel("k1_kvdv"); labe = a.newlabel("k1_kvde")
            a(f"s_add_u32 s{sT0}, s{sW}, {8*rnd}")
            a(f"s_cmp_ge_u32 s{sT0}, 21")
            a(f"s_cbranch_scc1 {labe}")
            a(f"s_sub_u32 s{sT1}, s{sT0}, 11")
            a(f"s_cmp_ge_u32 s{sT0}, 11")
            a(f"s_cselect_b32 s{sT2}, s{sT1}, s{sT0}")
            a(f"s_lshl_b32 s{sT2}, s{sT2}, 6")
            a(f"v_add_u32 v{t0}, s{sT2}, v{vL}")
            a(f"v_mul_u32_u24 v{t1}, 6554, v{t0}")
            a(f"v_lshrrev_b32 v{t1}, 16, v{t1}")
            a(f"v_mul_u32_u24 v{t2}, 10, v{t1}")
            a(f"v_sub_u32 v{t0}, v{t0}, v{t2}")
            a(f"v_mul_u32_u24 v{t1}, 1280, v{t1}")
            a(f"v_lshl_add_u32 v{t0}, v{t0}, 4, v{t1}")
            a(f"s_mul_i32 s{sT1}, s{sJ}, 160")
            a(f"s_add_u32 s{sT1}, s{sT1}, s{sXOFF}")
            a(f"s_lshl_b32 s{sT2}, s{sT2}, 4")
            a(f"s_cmp_ge_u32 s{sT0}, 11")
            a(f"s_cbranch_scc1 {labv}")
            a(f"v_add_u32 v{t0}, s{sT1}, v{t0}")
            a(f"v_subrev_u32 v{t0}, {3*1280}, v{t0}")
            a(f"s_add_u32 m0, s{sT2}, {KS}")
            a(f"buffer_load_dwordx4 v{t0}, s[{sK}:{sK+3}], 0 offen lds")
            a(f"s_branch {labe}")
            a.label(labv)
            a(f"s_add_u32 m0, s{sT2}, {VS}")
            a(f"buffer_load_dwordx4 v{t0}, s[{sV}:{sV+3}], s{sT1} offen lds")
            a.label(labe)
            a.vm -= 2
            yield

    lab = a.newlabel("k1_shk")
    a(f"s_cmp_lg_u32 s{sW}, 7")
    a(f"s_cbranch_scc1 {lab}")
    a(f"v_lshlrev_b32 v{t0}, 4, v{vL}")
    a(f"s_mul_i32 s{sT0}, s{sJ}, 640")
    a(f"s_mov_b32 m0, {SHKL}")
    mask(a, 40)
    a(f"buffer_load_dwordx4 v{t0}, s[{sSHK}:{sSHK+3}], s{sT0} offen lds")
    a.vm -= 1
    mask(a, 64)
    a.label(lab)
    a(f"s_and_b32 s{sFH}, s{sW}, 1")
    a(f"s_lshr_b32 s{sSH}, s{sW}, 1")
    a(f"s_and_b32 s{sSH}, s{sSH}, 1")
    a(f"s_lshr_b32 s{sKH}, s{sW}, 2")
    a(f"s_xor_b32 s{sST0}, s{sFH}, s{sKH}")
    a(f"s_lshl_b32 s{sST}, s{sSH}, 1")
    a(f"s_add_u32 s{sST}, s{sST}, s{sST0}")
    a(f"s_mov_b32 s{sEPS}, {f32(1e-5):#x}")
    a(f"s_mov_b32 s{sONES}, 0x3f803f80")
    a(f"s_mov_b32 s{sNC2}, {f32(-C2):#x}")
    a(f"s_mov_b32 s{sNC2+1}, {f32(-C2):#x}")
    vRP = V(); vPP = V()
    _pre = [V(), V(), V()]
    XF = V(80, 4)
    def xf(sc, kk, sl): return XF + ((sc*2 + kk)*2 + sl)*4
    WF = V(48, 4)
    def wf(b, kk, ft): return WF + ((b*2 + kk)*3 + ft)*4
    ACC = V(24, 4)
    def acc(ft, sl): return ACC + (ft*2 + sl)*4
    Z2V = V(12, 4)
    KX = V(4, 4)
    KROW = [XF + 4*r for r in range(5)]
    VROW = [XF + 20, XF + 24]
    vXA = [[_pre[0], _pre[1]], [_pre[2], V()]]
    vWA = [[V(), V(), V()], [V(), V(), V()]]
    a(f"s_lshl_b32 s{sT0}, s{sKH}, 1")
    a(f"s_add_u32 s{sKKA}, s{sT0}, s{sSH}")
    a(f"s_xor_b32 s{sKKB}, s{sKKA}, 1")
    a(f"v_xor_b32 v{t0}, v{vQ}, v{vP}")
    a(f"v_lshlrev_b32 v{t2}, 8, v{vP}")
    a(f"s_lshl_b32 s{sT0}, s{sSH}, 13")
    a(f"s_lshl_b32 s{sT1}, s{sST0}, 12")
    a(f"s_add_u32 s{sT2}, s{sT0}, s{sT1}")
    a(f"s_xor_b32 s{sT1}, s{sT1}, 4096")
    a(f"s_add_u32 s{sT3}, s{sT0}, s{sT1}")
    for kkidx, sKK in ((0, sKKA), (1, sKKB)):
        a(f"s_lshl_b32 s{sT0}, s{sKK}, 2")
        a(f"v_xor_b32 v{t1}, s{sT0}, v{t0}")
        a(f"v_lshl_add_u32 v{t1}, v{t1}, 4, v{t2}")
        a(f"v_add_u32 v{vXA[kkidx][0]}, s{sT2}, v{t1}")
        a(f"v_add_u32 v{vXA[kkidx][1]}, s{sT3}, v{t1}")
    a(f"v_lshrrev_b32 v{t1}, 2, v{vP}")
    a(f"v_lshl_add_u32 v{t0}, v{vQ}, 3, v{t1}")
    a(f"v_mul_u32_u24 v{t0}, 192, v{t0}")
    a(f"v_and_b32 v{t1}, 3, v{vP}")
    a(f"v_lshl_add_u32 v{t0}, v{t1}, 3, v{t0}")
    a(f"v_and_b32 v{t1}, 1, v{vQ}")
    a(f"s_mul_i32 s{sT3}, s{sFH}, 3")
    a(f"s_mul_i32 s{sT1}, s{sKKA}, 6144")
    a(f"s_add_u32 s{sT1}, s{sT1}, {WR}")
    a(f"s_mul_i32 s{sT2}, s{sKKB}, 6144")
    a(f"s_add_u32 s{sT2}, s{sT2}, {WR}")
    for ft in range(3):
        a(f"s_add_u32 s{sT0}, s{sT3}, {ft}")
        a(f"v_xor_b32 v{t2}, s{sT0}, v{t1}")
        a(f"v_lshl_add_u32 v{t2}, v{t2}, 5, v{t0}")
        a(f"v_add_u32 v{vWA[0][ft]}, s{sT1}, v{t2}")
        a(f"v_add_u32 v{vWA[1][ft]}, s{sT2}, v{t2}")
    CSA = V(12, 4)
    XSA = V(4, 4); XQA = V(4, 4)
    ONE = V(4, 4)
    for i in range(4): a(f"v_mov_b32 v{ONE+i}, s{sONES}")
    vC1 = XSA + 2
    vMR = XQA; vM, vR = vMR, vMR + 1
    vRB = XQA + 2
    a(f"v_mul_u32_u24 v{vRP}, 205, v{vL}")
    a(f"v_lshrrev_b32 v{vRP}, 11, v{vRP}")
    a(f"v_mul_u32_u24 v{t0}, 10, v{vRP}")
    a(f"v_sub_u32 v{vPP}, v{vL}, v{t0}")
    a(f"s_lshl_b32 s{sT0}, s{sW}, 3")
    a(f"v_lshl_add_u32 v{t0}, v{vRP}, 1, s{sT0}")
    a(f"v_min_u32 v{t0}, 62, v{t0}")
    a(f"v_mul_u32_u24 v{t0}, 160, v{t0}")
    a(f"v_lshl_add_u32 v{vKV}, v{vPP}, 4, v{t0}")

    kv = {}
    zfin = {}
    vTO2 = KX + 3
    a(f"v_lshlrev_b32 v{vTO2}, 10, v{vL}")
    def kv_loads():
        a(f"v_add_u32 v{t0}, {KS}, v{vKV}")
        for i in range(5):
            a.ds(f"ds_read_b128 v[{KROW[i]}:{KROW[i]+3}], v{t0} offset:{160*i}")
        a(f"v_add_u32 v{t0}, {VS}, v{vKV}")
        a.ds(f"ds_read_b128 v[{VROW[0]}:{VROW[0]+3}], v{t0}")
        kv['last'] = a.ds(f"ds_read_b128 v[{VROW[1]}:{VROW[1]+3}], v{t0} offset:160")

    def kv_compute():
        KT = XF + 32
        kf = KT; wp = KT + 10; r0 = KT + 18; r1 = KT + 20; vf0 = KT + 22; vf1 = KT + 24; o = KT + 26
        SK = KT + 28
        vTA = vKV
        a.wait_lg(kv['last']); yield
        a(f"v_mul_u32_u24 v{vTA}, {8*144}, v{vPP}"); yield
        a(f"v_lshlrev_b32 v{o}, 2, v{vRP}"); yield
        a(f"v_sub_u32 v{vTA}, v{vTA}, v{o}"); yield
        a(f"s_lshl_b32 s{sT0}, s{sW}, 4")
        a(f"s_add_u32 s{sT0}, s{sT0}, {TB + 12}")
        a(f"v_add_u32 v{vTA}, s{sT0}, v{vTA}"); yield
        a(f"v_lshlrev_b32 v{vPP}, 6, v{vPP}"); yield
        a(f"v_add_u32 v{vPP}, {SHKL}, v{vPP}"); yield
        for i in range(4):
            if i % 2 == 0:
                a.ds(f"ds_read_b128 v[{SK}:{SK+3}], v{vPP} offset:{(i//2)*32}")
                d = a.ds(f"ds_read_b128 v[{SK+4}:{SK+7}], v{vPP} offset:{(i//2)*32 + 16}"); yield
            for r in range(5):
                a(f"v_lshlrev_b32 v{kf+2*r}, 16, v{KROW[r]+i}"); yield
                a(f"v_and_b32 v{kf+2*r+1}, 0xffff0000, v{KROW[r]+i}"); yield
            if i % 2 == 0:
                a.wait_lg(d)
            for t in range(4):
                ra = SK + 2*(2*(i % 2)) + (t >> 1); rb_ = SK + 2*(2*(i % 2) + 1) + (t >> 1)
                if t & 1:
                    a(f"v_and_b32 v{wp+2*t}, 0xffff0000, v{ra}"); yield
                    a(f"v_and_b32 v{wp+2*t+1}, 0xffff0000, v{rb_}"); yield
                else:
                    a(f"v_lshlrev_b32 v{wp+2*t}, 16, v{ra}"); yield
                    a(f"v_lshlrev_b32 v{wp+2*t+1}, 16, v{rb_}"); yield
            for t in range(4):
                for (dst, top) in ((r0, 3), (r1, 4)):
                    if t == 0: yield from pkop(a, "mul", dst, kf+2*top, wp, pk=True)
                    else: yield from pkop(a, "fma", dst, kf+2*(top-t), wp+2*t, dst, pk=True)
            for (vf, rr) in ((vf0, 0), (vf1, 1)):
                a(f"v_lshlrev_b32 v{vf}, 16, v{VROW[rr]+i}"); yield
                a(f"v_and_b32 v{vf+1}, 0xffff0000, v{VROW[rr]+i}"); yield
            yield from pkop(a, "mul", r0, r0, vf0, pk=True)
            yield from pkop(a, "mul", r1, r1, vf1, pk=True)
            a(f"v_cvt_pk_bf16_f32 v{o}, v{r1}, v{r0}"); yield
            a(f"v_cvt_pk_bf16_f32 v{o+1}, v{r1+1}, v{r0+1}"); yield
            a(f"s_mov_b32 exec_hi, 0xff")
            a.ds(f"ds_write_b32 v{vTA}, v{o} offset:{(2*i)*144}")
            a.ds(f"ds_write_b32 v{vTA}, v{o+1} offset:{(2*i+1)*144}")
            a(f"s_mov_b32 exec_hi, -1"); yield

    def kv_store():
        for rnd in range(2):
            T4 = XF + 72 + 4*rnd
            a(f"s_lshl_b32 s{sT0}, s{sW}, 3")
            if rnd: a(f"s_add_u32 s{sT0}, s{sT0}, 64")
            a(f"v_lshrrev_b32 v{t0}, 3, v{vL}")
            a(f"v_add_u32 v{t0}, s{sT0}, v{t0}"); yield
            a(f"v_and_b32 v{t1}, 7, v{vL}")
            a(f"v_lshlrev_b32 v{t1}, 4, v{t1}"); yield
            a(f"v_mul_u32_u24 v{t2}, 144, v{t0}")
            a(f"v_add_u32 v{t2}, v{t2}, v{t1}")
            a(f"v_add_u32 v{t2}, {TB}, v{t2}"); yield
            d = a.ds(f"ds_read_b128 v[{T4}:{T4+3}], v{t2}"); yield
            a(f"v_lshlrev_b32 v{t0}, 12, v{t0}")
            a(f"v_add_u32 v{t0}, v{t0}, v{t1}"); yield
            a(f"s_mul_i32 s{sT0}, s{sJ}, {80*4096}")
            a(f"s_lshl_b32 s{sT1}, s{sRB}, 7")
            a(f"s_add_u32 s{sT0}, s{sT0}, s{sT1}")
            a(f"s_add_u32 s{sT0}, s{sT0}, {WS_KVT}")
            a.wait_lg(d)
            if rnd == 0:
                a.vmem(f"buffer_store_dwordx4 v[{T4}:{T4+3}], v{t0}, s[{sWS}:{sWS+3}], s{sT0} offen"); yield
            else:
                lab = a.newlabel("k1_kvskip")
                a(f"s_cmp_ge_u32 s{sW}, 2")
                a(f"s_cbranch_scc1 {lab}")
                a(f"buffer_store_dwordx4 v[{T4}:{T4+3}], v{t0}, s[{sWS}:{sWS+3}], s{sT0} offen")
                a.vm -= 1
                a.label(lab); yield

    def reads_g(p):
        sc = p % 5; b = p & 1
        so = (p % 3)*SLOT
        for kk in range(2):
            for ft in range(3):
                r = wf(b, kk, ft)
                a.ds(f"ds_read_b64_tr_b16 v[{r}:{r+1}], v{vWA[kk][ft]} offset:{so}"); yield
                a.ds(f"ds_read_b64_tr_b16 v[{r+2}:{r+3}], v{vWA[kk][ft]} offset:{so + 768}"); yield
        if p < 5:
            if p == 4:
                for kk in range(2):
                    for sl in range(2):
                        a(f"v_add_u32 v{vXA[kk][sl]}, 0x10000, v{vXA[kk][sl]}")
            for kk in range(2):
                for sl in range(2):
                    off = XR + (sc*16384 if p < 4 else 0)
                    a.ds(f"ds_read_b128 v[{xf(sc,kk,sl)}:{xf(sc,kk,sl)+3}], v{vXA[kk][sl]} offset:{off}"); yield
    def reads(p): run(reads_g(p))

    def mfmas(p, fill, nfill, dmaf=None):
        sc = p % 5; b = p & 1
        first = (sc == 0)
        ops = []
        for kk in range(2):
            for ft in range(3):
                for sl in range(2):
                    c = "0" if (first and kk == 0) else f"v[{acc(ft,sl)}:{acc(ft,sl)+3}]"
                    ops.append(f"v_mfma_f32_16x16x32_bf16 v[{acc(ft,sl)}:{acc(ft,sl)+3}], v[{wf(b,kk,ft)}:{wf(b,kk,ft)+3}], v[{xf(sc,kk,sl)}:{xf(sc,kk,sl)+3}], {c}")
                if kk == 0:
                    c = "0" if first else f"v[{CSA+4*ft}:{CSA+4*ft+3}]"
                    ops.append(f"v_mfma_f32_16x16x32_bf16 v[{CSA+4*ft}:{CSA+4*ft+3}], v[{wf(b,0,ft)}:{wf(b,0,ft)+3}], v[{ONE}:{ONE+3}], {c}")
            if p < 5:
                x = xf(sc, kk, 0)
                c = "0" if (first and kk == 0) else f"v[{XSA}:{XSA+3}]"
                ops.append(f"v_mfma_f32_16x16x32_bf16 v[{XSA}:{XSA+3}], v[{ONE}:{ONE+3}], v[{x}:{x+3}], {c}")
                c = "0" if (first and kk == 0) else f"v[{XQA}:{XQA+3}]"
                ops.append(f"v_mfma_f32_16x16x32_bf16 v[{XQA}:{XQA+3}], v[{x}:{x+3}], v[{x}:{x+3}], {c}")
        nd = 0
        for oi, o in enumerate(ops):
            a(o)
            if dmaf is not None and oi % 3 == 1: dmaf.step(1)
            fill.step(nfill)
        if dmaf is not None: dmaf.drain()

    def exchange_write(ps, dst):
        T = TMP
        a(f"s_mul_i32 s{sT0}, s{sW}, 3072")
        a(f"s_add_u32 s{sT0}, s{sT0}, {EX}")
        a(f"v_lshl_add_u32 v{t0}, v{vL}, 4, s{sT0}")
        a(f"s_lshl_b32 s{sT0}, s{sFH}, 2")
        a(f"s_lshl_b32 s{sT1}, s{sSH}, 1")
        a(f"s_add_u32 s{sT0}, s{sT0}, s{sT1}")
        a(f"s_add_u32 s{sT0}, s{sT0}, s{sKH}")
        a(f"s_mul_i32 s{sT0}, s{sT0}, 192")
        a(f"s_add_u32 s{sT0}, s{sT0}, {CSUM + ps*1536}")
        a(f"v_lshl_add_u32 v{t1}, v{vQ}, 4, s{sT0}")
        for ft in range(3):
            a.ds(f"ds_write_b128 v{t0}, v[{acc(ft,1)}:{acc(ft,1)+3}] offset:{ft*1024}")
        a(f"s_mov_b32 exec_lo, 0x00010001")
        a(f"s_mov_b32 exec_hi, 0x00010001")
        for ft in range(3):
            a.ds(f"ds_write_b128 v{t1}, v[{CSA+4*ft}:{CSA+4*ft+3}] offset:{ft*64}")
        a(f"s_mov_b64 exec, -1")
        if ps == 0:
            a(f"v_and_b32 v{T}, 3, v{vP}")
            a(f"v_cmp_eq_u32 vcc, 1, v{T}")
            a(f"v_cndmask_b32 v{XSA+1}, v{XQA}, v{XQA+1}, vcc")
            a(f"v_cmp_eq_u32 vcc, 2, v{T}")
            a(f"v_cndmask_b32 v{XSA+1}, v{XSA+1}, v{XQA+2}, vcc")
            a(f"v_cmp_eq_u32 vcc, 3, v{T}")
            a(f"v_cndmask_b32 v{XSA+1}, v{XSA+1}, v{XQA+3}, vcc")
            a(f"s_lshl_b32 s{sT0}, s{sST}, 1")
            a(f"s_add_u32 s{sT0}, s{sT0}, s{sKH}")
            a(f"s_lshl_b32 s{sT0}, s{sT0}, 7")
            a(f"s_add_u32 s{sT0}, s{sT0}, {XSUM}")
            a(f"v_lshl_add_u32 v{t2}, v{vP}, 3, s{sT0}")
            a(f"s_mov_b32 exec_lo, 0x00F0000F")
            a(f"s_mov_b32 exec_hi, 0xF0000F00")
            a.ds(f"ds_write_b64 v{t2}, {P(XSA)}")
            a(f"s_mov_b64 exec, -1")
        for ft in range(3):
            for h in range(2):
                a(f"v_pk_add_f32 {P(dst+4*ft+2*h)}, {P(acc(ft,0)+2*h)}, 0")
        if ps == 0:
            a(f"v_mov_b32 v{vC1}, {f32(-C1):#x}"); a(f"v_mov_b32 v{vC1+1}, {f32(-C1):#x}")

    def fold_gelu(ps, dst, E, X, C):
        a(f"s_xor_b32 s{sT0}, s{sW}, 4")
        a(f"s_mul_i32 s{sT0}, s{sT0}, 3072")
        a(f"s_add_u32 s{sT0}, s{sT0}, {EX}")
        a(f"v_lshl_add_u32 v{t0}, v{vL}, 4, s{sT0}")
        if ps == 0:
            a(f"s_lshl_b32 s{sT0}, s{sST}, 8")
            a(f"s_add_u32 s{sT0}, s{sT0}, {XSUM}")
            a(f"v_lshl_add_u32 v{t1}, v{vP}, 3, s{sT0}")
            a.ds(f"ds_read_b64 {P(X)}, v{t1}")
            dx = a.ds(f"ds_read_b64 {P(X+2)}, v{t1} offset:128")
        ids = [a.ds(f"ds_read_b128 v[{E+4*ft}:{E+4*ft+3}], v{t0} offset:{ft*1024}") for ft in range(3)]
        a(f"s_mul_i32 s{sT0}, s{sFH}, {4*192}")
        a(f"s_add_u32 s{sT0}, s{sT0}, {CSUM + ps*1536}")
        a(f"v_lshl_add_u32 v{t2}, v{vQ}, 4, s{sT0}")
        cid = []
        for q in range(4):
            for ft in range(3):
                cid.append(a.ds(f"ds_read_b128 v[{C[q]+4*ft}:{C[q]+4*ft+3}], v{t2} offset:{q*192 + ft*64}"))
        if ps == 0:
            a.wait_lg(dx)
            a(f"v_pk_add_f32 {P(vMR)}, {P(X)}, {P(X+2)}")
            a(f"v_mul_f32 v{vM}, {f32(1.0/640):#x}, v{vM}")
            a(f"v_mul_f32 v{vR}, {f32(1.0/640):#x}, v{vR}")
            a(f"v_fma_f32 v{vR}, -v{vM}, v{vM}, v{vR}")
            run(ln_finish_gen(a, vM, vR, sEPS))
            a(f"v_mov_b32 v{vRB}, v{vR}")
        a.wait_lg(ids[2])
        for i in range(0, 12, 2): a(f"v_pk_add_f32 {P(dst+i)}, {P(dst+i)}, {P(E+i)}")
        a.wait_lg(cid[5])
        for i in range(0, 12, 2): a(f"v_pk_add_f32 {P(C[0]+i)}, {P(C[0]+i)}, {P(C[1]+i)}")
        a.wait_lg(cid[11])
        for i in range(0, 12, 2): a(f"v_pk_add_f32 {P(C[2]+i)}, {P(C[2]+i)}, {P(C[3]+i)}")
        for i in range(0, 12, 2): a(f"v_pk_add_f32 {P(C[0]+i)}, {P(C[0]+i)}, {P(C[2]+i)}")
        for i in range(0, 12, 2):
            a(f"v_pk_fma_f32 {P(dst+i)}, {P(C[0]+i)}, {P(vMR)}, {P(dst+i)} op_sel_hi:[1,0,1] neg_lo:[0,1,0] neg_hi:[0,1,0]")
        for i in range(0, 12, 2): a(f"v_pk_mul_f32 {P(dst+i)}, {P(dst+i)}, {P(vRB)} op_sel_hi:[1,0]")
        T = E
        for i in range(0, 12, 2): a(f"v_pk_mul_f32 {P(T+i)}, {P(dst+i)}, {P(dst+i)}")
        for i in range(0, 12, 2): a(f"v_pk_fma_f32 {P(T+i)}, {P(T+i)}, s[{sNC2}:{sNC2+1}], {P(vC1)}")
        for i in range(0, 12, 2): a(f"v_pk_mul_f32 {P(T+i)}, {P(T+i)}, {P(dst+i)}")
        for i in range(12): a(f"v_exp_f32 v{T+i}, v{T+i}")
        for i in range(0, 12, 2): a(f"v_pk_add_f32 {P(T+i)}, {P(T+i)}, 1.0 op_sel_hi:[1,0]")
        for i in range(12): a(f"v_rcp_f32 v{T+i}, v{T+i}")
        for i in range(0, 12, 2): a(f"v_pk_mul_f32 {P(dst+i)}, {P(dst+i)}, {P(T+i)}")

    def z2_stats():
        T = TMP
        a(f"v_pk_add_f32 {P(T+6)}, {P(Z2V)}, {P(Z2V+2)}"); yield
        a(f"v_pk_mul_f32 {P(T+8)}, {P(Z2V)}, {P(Z2V)}"); yield
        a(f"v_pk_add_f32 {P(T+10)}, {P(Z2V+4)}, {P(Z2V+6)}"); yield
        a(f"v_pk_fma_f32 {P(T+8)}, {P(Z2V+2)}, {P(Z2V+2)}, {P(T+8)}"); yield
        a(f"v_pk_add_f32 {P(T+12)}, {P(Z2V+8)}, {P(Z2V+10)}"); yield
        a(f"v_pk_fma_f32 {P(T+8)}, {P(Z2V+4)}, {P(Z2V+4)}, {P(T+8)}"); yield
        a(f"v_pk_add_f32 {P(T+6)}, {P(T+6)}, {P(T+10)}"); yield
        a(f"v_pk_fma_f32 {P(T+8)}, {P(Z2V+6)}, {P(Z2V+6)}, {P(T+8)}"); yield
        a(f"v_pk_add_f32 {P(T+6)}, {P(T+6)}, {P(T+12)}"); yield
        a(f"v_pk_fma_f32 {P(T+8)}, {P(Z2V+8)}, {P(Z2V+8)}, {P(T+8)}"); yield
        a(f"v_pk_fma_f32 {P(T+8)}, {P(Z2V+10)}, {P(Z2V+10)}, {P(T+8)}"); yield
        a(f"v_add_f32 v{T}, v{T+6}, v{T+7}"); yield
        a(f"v_add_f32 v{T+1}, v{T+8}, v{T+9}"); yield
        a(f"v_mov_b32 v{T+2}, 0"); a(f"v_mov_b32 v{T+3}, 0")
        a(f"s_lshl_b32 s{sT0}, s{sST}, 7")
        a(f"s_lshl_b32 s{sT1}, s{sFH}, 9")
        a(f"s_add_u32 s{sT0}, s{sT0}, s{sT1}")
        a(f"s_add_u32 s{sT0}, s{sT0}, {ZSUM}")
        a(f"v_lshl_add_u32 v{t0}, v{vP}, 3, s{sT0}"); yield
        a(f"v_add_f32 v{T}, v{T}, v{T+2}"); yield
        a(f"v_add_f32 v{T+1}, v{T+1}, v{T+3}"); yield
        yield from reduce_g4_multi(a, [T, T+1], [T+4, T+5])
        a(f"s_mov_b64 exec, 0xffff")
        a.ds(f"ds_write_b64 v{t0}, {P(T)}")
        a(f"s_mov_b64 exec, -1"); yield

    def xst_store():
        lab = a.newlabel("k1_xst")
        a(f"s_or_b32 s{sT0}, s{sJ}, s{sFH}")
        a(f"s_cmp_lg_u32 s{sT0}, 0")
        a(f"s_cbranch_scc1 {lab}")
        a(f"s_lshl_b32 s{sT0}, s{sRB}, 9")
        a(f"s_lshl_b32 s{sT1}, s{sST}, 7")
        a(f"s_add_u32 s{sT0}, s{sT0}, s{sT1}")
        a(f"s_add_u32 s{sT0}, s{sT0}, {WS_XST}")
        a(f"v_lshlrev_b32 v{t0}, 3, v{vP}")
        a(f"s_mov_b64 exec, 0xffff")
        a(f"buffer_store_dwordx2 {P(vMR)}, v{t0}, s[{sWS}:{sWS+3}], s{sT0} offen")
        a.vm -= 1
        a(f"s_mov_b64 exec, -1")
        a.label(lab)
        yield

    sGU = 89
    a(f"s_lshl_b32 s{sGU}, s2, 3")
    a(f"s_add_u32 s{sGU}, s{sGU}, s{sW}")
    def mall_touch(srd, nper, first, count):
        if "nomall" in K1X: return
        a(f"s_mul_i32 s{sT0}, s{sGU}, {nper*128}")
        a(f"s_add_u32 s{sT0}, s{sT0}, {first*128}")
        mask(a, count)
        a.vmem(f"buffer_load_dword v{vDummy}, v{vTO}, s[{srd}:{srd+3}], s{sT0} offen")
        mask(a, 64)

    def l2_touch_wsp(i):
        a(f"s_lshr_b32 s{sT0}, s2, 3")
        a(f"s_lshl_b32 s{sT0}, s{sT0}, 3")
        a(f"s_add_u32 s{sT0}, s{sT0}, s{sW}")
        a(f"s_lshl_b32 s{sT0}, s{sT0}, 13")
        a(f"s_lshl_b32 s{sT1}, s{sXC}, 21")
        a(f"s_add_u32 s{sT0}, s{sT0}, s{sT1}")
        a(f"s_add_u32 s{sT0}, s{sT0}, {i*128}")
        mask(a, 8)
        a.vmem(f"buffer_load_dword v{vDummy}, v{vTO2}, s[{sWSP}:{sWSP+3}], s{sT0} offen")
        mask(a, 64)

    def epoch_load():
        a(f"v_mov_b32 v{KX+2}, {WS_EPO}")
        zfin['ep'] = a.vmem(f"buffer_load_dwordx2 {P(KX)}, v{KX+2}, s[{sWS}:{sWS+3}], 0 offen sc1")

    def gen1(f):
        f(); yield

    SP = TMP + 20
    vFA = vXD[0]
    vDummy2 = vPP
    def stats_load():
        a(f"s_lshl_b32 s{sT0}, s{sRB}, 13")
        a(f"s_lshl_b32 s{sT1}, s{sST}, 8")
        a(f"s_add_u32 s{sT0}, s{sT0}, s{sT1}")
        a(f"s_add_u32 s{sZ1B}, s{sT0}, {WS_ZST}")
        a(f"v_lshlrev_b32 v{vFA}, 4, v{vP}")
        a(f"v_lshl_add_u32 v{vFA}, v{vQ}, 11, v{vFA}")
        a.vmem(f"buffer_load_dwordx4 v[{SP}:{SP+3}], v{vFA}, s[{sWS}:{sWS+3}], s{sZ1B} offen sc1")
        zfin['sp'] = a.vmem(f"buffer_load_dwordx4 v[{SP+4}:{SP+7}], v{vFA}, s[{sWS}:{sWS+3}], s{sZ1B} offen offset:1024 sc1")
    def stats_check():
        a.wait_vm(zfin['sp'])
        lp = a.newlabel("k1_poll"); lp2 = a.newlabel("k1_polled")
        a(f"s_mov_b32 s{sD0}, 0")
        a.label(lp)
        a(f"s_add_u32 s{sD0}, s{sD0}, 1")
        a(f"s_cmp_gt_u32 s{sD0}, 100000")
        a(f"s_cbranch_scc1 {lp2}")
        a(f"v_cmp_ne_u32 vcc, s{sTAG}, v{SP+2}")
        a(f"v_cmp_ne_u32 s[{sT2}:{sT2+1}], s{sTAG+1}, v{SP+3}")
        a(f"s_or_b64 vcc, vcc, s[{sT2}:{sT2+1}]")
        a(f"v_cmp_ne_u32 s[{sT2}:{sT2+1}], s{sTAG}, v{SP+6}")
        a(f"s_or_b64 vcc, vcc, s[{sT2}:{sT2+1}]")
        a(f"v_cmp_ne_u32 s[{sT2}:{sT2+1}], s{sTAG+1}, v{SP+7}")
        a(f"s_or_b64 vcc, vcc, s[{sT2}:{sT2+1}]")
        if 'nopoll' in K1X: a("s_mov_b64 vcc, 0")
        a(f"s_cmp_eq_u64 vcc, 0")
        a(f"s_cbranch_scc1 {lp2}")
        a("s_sleep 4")
        a(f"buffer_load_dwordx4 v[{SP}:{SP+3}], v{vFA}, s[{sWS}:{sWS+3}], s{sZ1B} offen sc1")
        a(f"buffer_load_dwordx4 v[{SP+4}:{SP+7}], v{vFA}, s[{sWS}:{sWS+3}], s{sZ1B} offen offset:1024 sc1")
        a.vm -= 2
        a("s_waitcnt vmcnt(0)")
        a(f"s_branch {lp}")
        a.label(lp2)
    def z2_normalize():
        vZW = vRP
        a(f"s_lshl_b32 s{sT0}, s{sST}, 4")
        a(f"v_add_u32 v{vZW}, s{sT0}, v{vP}")
        a(f"v_mul_u32_u24 v{vZW}, 200, v{vZW}")
        a(f"v_lshl_add_u32 v{vZW}, v{vQ}, 3, v{vZW}")
        a(f"s_mul_i32 s{sT0}, s{sFH}, 96")
        a(f"s_add_u32 s{sT0}, s{sT0}, {ZT}")
        a(f"v_add_u32 v{vZW}, s{sT0}, v{vZW}")
        stats_check()
        lab = a.newlabel("k1_ep")
        a(f"s_xor_b32 s{sT0}, s{sW}, 1")
        a(f"s_or_b32 s{sT0}, s{sT0}, s{sJ}")
        a(f"s_cmp_lg_u32 s{sT0}, 0")
        a(f"s_cbranch_scc1 {lab}")
        a(f"v_mov_b32 v{t0}, 0")
        a(f"v_mov_b32 v{vDummy2}, 1")
        a(f"s_mov_b64 exec, 1")
        a(f"buffer_atomic_add v{vDummy2}, v{t0}, s[{sDBG}:{sDBG+3}], 0 offen sc0")
        a(f"s_mov_b64 exec, -1")
        a.vm -= 1
        a.label(lab)
        mq = TMP
        a(f"v_pk_add_f32 {P(mq)}, {P(SP)}, {P(SP+4)}")
        run(reduce_g4_multi(a, [mq, mq+1], [TMP+2, TMP+3]))
        a(f"v_mul_f32 v{mq}, {f32(1.0/768):#x}, v{mq}")
        a(f"v_mul_f32 v{mq+1}, {f32(1.0/768):#x}, v{mq+1}")
        a(f"v_fma_f32 v{mq+1}, -v{mq}, v{mq}, v{mq+1}")
        run(ln_finish_gen(a, mq, mq+1, sEPS))
        a(f"v_mov_b32 v{TMP+2}, v{mq+1}")
        for i in range(0, 12, 2):
            a(f"v_pk_add_f32 {P(Z2V+i)}, {P(Z2V+i)}, {P(mq)} op_sel_hi:[1,0] neg_lo:[0,1] neg_hi:[0,1]")
        for i in range(0, 12, 2):
            a(f"v_pk_mul_f32 {P(Z2V+i)}, {P(Z2V+i)}, {P(TMP+2)} op_sel_hi:[1,0]")
        for ft in range(3):
            a(f"v_cvt_pk_bf16_f32 v{TMP+8+2*ft}, v{Z2V+4*ft}, v{Z2V+4*ft+1}")
            a(f"v_cvt_pk_bf16_f32 v{TMP+8+2*ft+1}, v{Z2V+4*ft+2}, v{Z2V+4*ft+3}")
            a.ds(f"ds_write_b64 v{vZW}, {P(TMP+8+2*ft)} offset:{32*ft}")

    PUB = int(os.environ.get("PUB", "6"))
    NF5 = int(os.environ.get("NF5", "5"))
    fill = Filler()
    if "pro" in K1X: ST("setup")
    a.wait_vm(max(w_last[0], x_last[0]))
    if "pro" in K1X: ST("w0arr")
    a("s_waitcnt lgkmcnt(0)")
    a(f"s_add_u32 s{sTAG}, s{sTAG}, 1")
    a(f"s_addc_u32 s{sTAG+1}, s{sTAG+1}, 0")
    a("s_barrier")
    ST("d0")
    reads(0)
    dma_x(2); dma_w(2)
    for p in range(10):
        a.comment(f"---------------- iteration {p}")
        if p + 1 < 10:
            need = w_last[p+1]
            if p + 1 < 5: need = max(need, x_last[p+1])
            a.wait_vm(need)
        a("s_waitcnt lgkmcnt(0)")
        a("s_barrier")
        if ("pro" not in K1X or p < 2) and ("pubst" not in K1X or p in (6, 7, 8, 9)): ST(f"i{p}")
        if p == PUB:
            lab = a.newlabel("k1_pub")
            a(f"s_cmp_lg_u32 s{sW}, 0")
            a(f"s_cbranch_scc1 {lab}")
            a(f"v_lshlrev_b32 v{t0}, 3, v{vL}")
            a(f"v_add_u32 v{t1}, {ZSUM}, v{t0}")
            a(f"ds_read_b64 {P(TMP)}, v{t1}")
            a(f"ds_read_b64 {P(TMP+4)}, v{t1} offset:512")
            a(f"s_lshl_b32 s{sT0}, s{sRB}, 3")
            a(f"s_add_u32 s{sT0}, s{sT0}, s{sJ}")
            a(f"s_lshl_b32 s{sT0}, s{sT0}, 10")
            a(f"s_add_u32 s{sT0}, s{sT0}, {WS_ZST}")
            a(f"v_lshlrev_b32 v{t0}, 4, v{vL}")
            a(f"v_mov_b32 v{TMP+2}, s{sTAG}")
            a(f"v_mov_b32 v{TMP+3}, s{sTAG+1}")
            a("s_waitcnt lgkmcnt(0)")
            a(f"v_pk_add_f32 {P(TMP)}, {P(TMP)}, {P(TMP+4)}")
            a(f"buffer_store_dwordx4 v[{TMP}:{TMP+3}], v{t0}, s[{sWS}:{sWS+3}], s{sT0} offen sc1")
            a.vm -= 1; a.lg -= 2
            a.label(lab)
        if p + 1 < 10 and "nocomp" not in K1X:
            if "rdfirst" in K1X: reads(p + 1)
            else: fill.add(reads_g(p + 1))
        dmaf = Filler()
        if p + 3 < 5: dmaf.add(dma_x_g(p + 3))
        if p + 3 < 10: dmaf.add(dma_w_g(p + 3))
        if p == 5: dmaf.add(kv_dma())
        if 1 <= p <= 8:
            if "l2pf" in K1X: dmaf.add(gen1(lambda p=p: l2_touch_wsp(p-1)))
            else: dmaf.add(gen1(lambda p=p: mall_touch(sWSP, 32, (p-1)*4, 4)))
        if p in (2, 5): dmaf.add(gen1(lambda p=p: mall_touch(sSSM, 10, 0 if p == 2 else 5, 5)))
        if p == int(os.environ.get('SLD', '9')): stats_load()
        nf = 0 if "rdfirst" in K1X else 2
        if p == 5:
            fold_gelu(0, Z2V, TMP, TMP+12, [TMP+16, ACC, ACC+12, CSA]); run(z2_stats()); run(xst_store())
        if "nocomp" in K1X:
            dmaf.drain(); fill.q = []
        else:
            mfmas(p, fill, nf, dmaf)
            fill.drain()
        if p == 4: exchange_write(0, Z2V)
        if p == 9:
            exchange_write(1, WF)
            kv_loads()
            run(kv_compute())
            z2_normalize()
    ST("loop")
    vZR = vWA[0][1]; vZS = vWA[0][2]
    a(f"v_lshrrev_b32 v{vZR}, 1, v{vQ}")
    a(f"v_lshrrev_b32 v{t1}, 2, v{vP}")
    a(f"v_lshl_add_u32 v{vZR}, v{vZR}, 3, v{t1}")
    a(f"v_mul_u32_u24 v{vZR}, 200, v{vZR}")
    a(f"v_and_b32 v{t1}, 1, v{vQ}")
    a(f"v_lshl_add_u32 v{vZR}, v{t1}, 5, v{vZR}")
    a(f"v_and_b32 v{t1}, 3, v{vP}")
    a(f"v_lshl_add_u32 v{vZR}, v{t1}, 3, v{vZR}")
    a(f"v_lshlrev_b32 v{vZS}, 4, v{vL}")
    a("s_waitcnt lgkmcnt(0)")
    a("s_barrier")
    ST("bar")
    for rnd in range(2):
        lab = None
        if rnd == 1:
            lab = a.newlabel("k1_fr")
            a(f"s_cmp_ge_u32 s{sW}, 4")
            a(f"s_cbranch_scc1 {lab}")
        a(f"s_add_u32 s{sT0}, s{sW}, {8*rnd}")
        a(f"s_mul_i32 s{sT1}, s{sT0}, 43")
        a(f"s_lshr_b32 s{sT1}, s{sT1}, 7")
        a(f"s_mul_i32 s{sT2}, s{sT1}, 3")
        a(f"s_sub_u32 s{sT2}, s{sT0}, s{sT2}")
        a(f"s_mul_i32 s{sT1}, s{sT1}, {16*200}")
        a(f"s_lshl_b32 s{sT2}, s{sT2}, 6")
        a(f"s_add_u32 s{sT1}, s{sT1}, s{sT2}")
        a(f"s_add_u32 s{sT1}, s{sT1}, {ZT}")
        a(f"v_add_u32 v{t1}, s{sT1}, v{vZR}")
        Tq = TMP + 4*rnd
        a(f"ds_read_b64_tr_b16 {P(Tq)}, v{t1}")
        a(f"ds_read_b64_tr_b16 {P(Tq+2)}, v{t1} offset:800")
        a(f"s_lshl_b32 s{sT1}, s{sJ}, 7")
        a(f"s_lshl_b32 s{sT2}, s{sRB}, 2")
        a(f"s_add_u32 s{sT1}, s{sT1}, s{sT2}")
        a(f"s_mul_i32 s{sT1}, s{sT1}, 3")
        a(f"s_add_u32 s{sT1}, s{sT1}, s{sT0}")
        a(f"s_lshl_b32 s{sT1}, s{sT1}, 10")
        a(f"s_add_u32 s{sT1}, s{sT1}, {WS_Z2F}")
        a("s_waitcnt lgkmcnt(0)")
        a(f"buffer_store_dwordx4 v[{Tq}:{Tq+3}], v{vZS}, s[{sWS}:{sWS+3}], s{sT1} offen")
        if lab: a.label(lab)
    run(kv_store())
    Z1V = WF
    T2 = XF
    fold_gelu(1, Z1V, T2, T2+12, [T2+16, T2+28, T2+40, T2+52])
    a(f"v_lshrrev_b32 v{t0}, 1, v{vQ}")
    a(f"v_mul_u32_u24 v{t0}, 3072, v{t0}")
    a(f"v_and_b32 v{t1}, 1, v{vQ}")
    a(f"v_lshlrev_b32 v{t1}, 5, v{t1}")
    a(f"v_add_u32 v{t1}, v{t1}, v{vP}")
    a(f"v_lshl_add_u32 v{t0}, v{t1}, 4, v{t0}")
    a(f"s_lshl_b32 s{sT0}, s{sRB}, 3")
    a(f"s_add_u32 s{sT0}, s{sT0}, s{sJ}")
    a(f"s_mul_i32 s{sZ1B}, s{sT0}, 12288")
    a(f"s_lshr_b32 s{sT0}, s{sST}, 1")
    a(f"s_mul_i32 s{sT0}, s{sT0}, 6144")
    a(f"s_add_u32 s{sZ1B}, s{sZ1B}, s{sT0}")
    a(f"s_and_b32 s{sT0}, s{sST}, 1")
    a(f"s_lshl_b32 s{sT0}, s{sT0}, 8")
    a(f"s_add_u32 s{sZ1B}, s{sZ1B}, s{sT0}")
    a(f"s_add_u32 s{sZ1B}, s{sZ1B}, {WS_Z1F}")
    a(f"s_mul_i32 s{sT3}, s{sFH}, 3")
    for ft in range(3):
        a(f"v_cvt_pk_bf16_f32 v{T2+2*ft}, v{Z1V+4*ft}, v{Z1V+4*ft+1}")
        a(f"v_cvt_pk_bf16_f32 v{T2+2*ft+1}, v{Z1V+4*ft+2}, v{Z1V+4*ft+3}")
        a(f"s_add_u32 s{sT0}, s{sT3}, {ft}")
        a(f"s_lshr_b32 s{sT1}, s{sT0}, 1")
        a(f"s_lshl_b32 s{sT1}, s{sT1}, 10")
        a(f"s_and_b32 s{sT0}, s{sT0}, 1")
        a(f"s_lshl_b32 s{sT0}, s{sT0}, 3")
        a(f"s_add_u32 s{sT0}, s{sT0}, s{sT1}")
        a(f"s_add_u32 s{sT0}, s{sT0}, s{sZ1B}")
        a.vmem(f"buffer_store_dwordx2 {P(T2+2*ft)}, v{t0}, s[{sWS}:{sWS+3}], s{sT0} offen")
    lab = a.newlabel("k1_ep2")
    a(f"s_xor_b32 s{sT0}, s{sW}, 1")
    a(f"s_or_b32 s{sT0}, s{sT0}, s{sJ}")
    a(f"s_cmp_lg_u32 s{sT0}, 0")
    a(f"s_cbranch_scc1 {lab}")
    a("s_waitcnt vmcnt(0)")
    a(f"v_readfirstlane_b32 s{sT0}, v{vDummy2}")
    a(f"s_cmp_lg_u32 s{sT0}, 31")
    a(f"s_cbranch_scc1 {lab}")
    a(f"v_mov_b32 v{TMP}, s{sTAG}")
    a(f"v_mov_b32 v{TMP+1}, s{sTAG+1}")
    a(f"v_mov_b32 v{t0}, {WS_EPO}")
    a(f"s_mov_b64 exec, 1")
    a(f"buffer_store_dwordx2 {P(TMP)}, v{t0}, s[{sWS}:{sWS+3}], 0 offen sc1")
    a(f"s_mov_b64 exec, -1")
    a.label(lab)
    ST("end")
    ST.dump(sWS, sW, t0, t1, WS_DBG)
    gen_k1.stamp_names = ST.names
    a.label(f"{name}_end")
    a("s_endpgm")
    if "st1" in K1X:
        a.items = [(k, (t + " sc1") if (k == "i" and t.startswith("buffer_store") and " sc1" not in t) else t) for k, t in a.items]
    gen_k1.ninstr = sum(1 for k, _ in a.items if k == "i")
    return a.finish(), V.hi
```

```python
import re, os

def vr(a, n=1):
    return f"v{a}" if n == 1 else f"v[{a}:{a+n-1}]"
def sr(a, n=1):
    return f"s{a}" if n == 1 else f"s[{a}:{a+n-1}]"
def ar(a, n=1):
    return f"a{a}" if n == 1 else f"a[{a}:{a+n-1}]"

_REG = re.compile(r"^(-|abs\()?([vsa])(\d+)\)?$")
_RNG = re.compile(r"^(-)?([vsa])\[(\d+):(\d+)\]$")

def parse_reg(tok):
    tok = tok.strip()
    m = _REG.match(tok)
    if m: return [(m.group(2), int(m.group(3)))]
    m = _RNG.match(tok)
    if m: return [(m.group(2), i) for i in range(int(m.group(3)), int(m.group(4)) + 1)]
    if tok == "vcc": return [("s", "vcc")]
    if tok == "exec": return [("s", "exec")]
    if tok == "m0": return [("s", "m0")]
    if tok in ("vcc_lo", "vcc_hi"): return [("s", "vcc")]
    return []

TRANS = ("v_exp_f32", "v_log_f32", "v_rcp_f32", "v_rsq_f32", "v_sqrt_f32", "v_sin_f32", "v_cos_f32")

class Ins:
    __slots__ = ("text", "op", "kind", "rd", "wr", "dpp", "passes", "cregs", "storedata", "nop", "lds_dma", "sgpr_const")
    def __init__(self, text):
        self.text = text
        body = text.split(";")[0].strip()
        parts = body.split(None, 1)
        self.op = parts[0]
        rest = parts[1] if len(parts) > 1 else ""
        ops = []; depth = 0; cur = ""
        for ch in rest:
            if ch == "[": depth += 1
            if ch == "]": depth -= 1
            if ch == "," and depth == 0: ops.append(cur.strip()); cur = ""
            else: cur += ch
        if cur.strip(): ops.append(cur.strip())
        mods = ""
        clean = []
        for o in ops:
            t = o.split()
            clean.append(t[0] if t else "")
            if len(t) > 1: mods += " " + " ".join(t[1:])
        ops = clean
        self.rd = []; self.wr = []; self.dpp = False; self.passes = 0; self.cregs = []; self.storedata = []
        self.nop = 1; self.lds_dma = False
        op = self.op
        R = lambda i: parse_reg(ops[i]) if i < len(ops) else []
        if op == "s_nop":
            self.kind = "nop"; self.nop = int(ops[0], 0) + 1
        elif op.startswith("v_mfma"):
            self.kind = "mfma"
            self.wr = R(0); self.rd = R(1) + R(2) + R(3); self.cregs = R(3)
            self.passes = 8 if "32x32x16" in op else 4 if "16x16x32" in op else None
            assert self.passes
        elif op.startswith("v_cmp"):
            self.kind = "valu"; self.wr = R(0); self.rd = R(1) + R(2)
        elif op.startswith("v_readfirstlane") or op.startswith("v_readlane"):
            self.kind = "valu"; self.wr = R(0); self.rd = R(1) + R(2)
        elif op.startswith("v_writelane"):
            self.kind = "valu"; self.wr = R(0); self.rd = R(0) + R(1)
        elif op.startswith("v_permlane"):
            self.kind = "valu"; self.wr = R(0) + R(1); self.rd = R(0) + R(1)
        elif op.startswith("v_"):
            self.kind = "valu"
            self.wr = R(0)
            k = 1
            if op.startswith(("v_add_co", "v_sub_co", "v_addc_co", "v_subb_co")):
                self.wr += R(1); k = 2
            for i in range(k, len(ops)): self.rd += R(i)
            if op.startswith(("v_fmac", "v_dot2c", "v_pk_fmac")): self.rd += R(0)
            if "cndmask" in op and len(ops) == 3: self.rd += [("s", "vcc")]
            if "_dpp" in op or "quad_perm" in mods or "row_" in mods or "wave_" in mods:
                self.dpp = True
                self.rd += R(0)
        elif op.startswith(("buffer_load", "global_load")):
            self.kind = "vmem"
            if " lds" in (" " + body + " "):
                self.lds_dma = True
                for i in range(len(ops)): self.rd += R(i)
                self.rd += [("s", "m0")]
            else:
                self.wr = R(0)
                for i in range(1, len(ops)): self.rd += R(i)
        elif op.startswith(("buffer_store", "buffer_atomic", "global_store", "global_atomic")):
            self.kind = "vmem"
            for i in range(len(ops)): self.rd += R(i)
            if op.startswith("buffer_"):
                d = R(0)
            else:
                d = R(1)
            if len(d) >= 3: self.storedata = d
            if "atomic" in op and "sc0" in mods: self.wr = R(0)
        elif op.startswith("ds_"):
            self.kind = "ds"
            if op.startswith(("ds_read", "ds_bpermute", "ds_permute", "ds_swizzle")):
                self.wr = R(0)
                for i in range(1, len(ops)): self.rd += R(i)
            else:
                for i in range(len(ops)): self.rd += R(i)
        elif op.startswith("s_"):
            self.kind = "salu"
            if op.startswith(("s_cmp", "s_cbranch", "s_branch", "s_waitcnt", "s_barrier", "s_endpgm", "s_sleep", "s_setprio", "s_bitcmp")):
                for i in range(len(ops)): self.rd += R(i)
            else:
                self.wr = R(0)
                for i in range(1, len(ops)): self.rd += R(i)
                if "saveexec" in op: self.wr += [("s", "exec")]
        else:
            raise ValueError("unknown op " + text)

def required_gap(p, c):
    need = 0
    pw = set(p.wr)
    X = os.environ.get("HZX", "")
    if "A" in X and p.op in TRANS and c.kind == "mfma": need = max(need, 4)
    if "B" in X and p.op.startswith("v_dot2") and c.op.startswith("v_pk_"): need = max(need, 2)
    if "C" in X and p.kind == "mfma" and c.op in TRANS: need = max(need, 3)
    if "D" in X and p.op.startswith("v_dot2") and c.op in TRANS: need = max(need, 2)
    assert not (p.op.startswith("v_pk_") and " op_sel:" in p.text), p.text
    if "E" in X and p.op.startswith("v_pk_") and c.kind == "mfma": need = max(need, 2)
    if "F" in X and p.op in TRANS and c.op.startswith("v_dot2"): need = max(need, 4)
    if p.kind == "valu":
        vw = {r for r in pw if r[0] in "va"}
        sw = {r for r in pw if r[0] == "s"}
        if c.kind == "mfma" and vw & set(c.rd): need = max(need, 2)
        if c.kind == "valu":
            if c.dpp and vw & set(c.rd): need = max(need, 2)
            if c.op.startswith("v_permlane") and vw & set(c.rd): need = max(need, 2)
            if c.op.startswith(("v_readfirstlane", "v_readlane")) and vw & set(c.rd): need = max(need, 1)
            if p.op in TRANS and vw & set(c.rd) : need = max(need, 1)
            if sw & set(c.rd):
                need = max(need, 4 if c.op.startswith(("v_readlane", "v_writelane")) else 2)
            if ("s", "exec") in sw: need = max(need, 5 if c.dpp else 4)
        if c.kind == "vmem" and sw & set(c.rd): need = max(need, 5)
        if c.kind == "mfma" and ("s", "exec") in sw: need = max(need, 4)
        if c.kind == "salu" and sw & set(c.rd): need = max(need, 1)
    if p.kind == "valu" and p.op.startswith("v_dot2"):
        d = set(p.wr)
        if d & (set(c.rd) | set(c.wr)):
            same_c = (c.op == p.op and c.text.split(",")[-1].strip().split()[0] == p.text.split(",")[0].split()[-1].strip()
                      and sum(1 for r in c.rd if r in d) == 1)
            if not same_c: need = max(need, 3)
    if p.kind == "mfma":
        d = set(p.wr)
        big = {4: 8, 8: 12}[p.passes]
        if c.kind == "mfma":
            ab = set(c.rd) - set(c.cregs) if False else None
            cab = [r for r in c.rd if r not in c.cregs]
            if d & set(cab): need = max(need, big)
            cc = set(c.cregs)
            if d & cc:
                if list(c.cregs) == list(p.wr) and c.passes == p.passes: pass
                else: need = max(need, {4: 6, 8: 10}[p.passes])
            if d & set(c.wr) and list(c.wr) != list(p.wr): need = max(need, big)
        elif c.kind in ("valu", "vmem", "ds"):
            if d & set(c.rd) or d & set(c.wr): need = max(need, big)
        if c.kind == "valu" and set(p.cregs) & set(c.wr): need = max(need, {4: 3, 8: 7}[p.passes])
    if p.kind == "vmem" and p.storedata:
        if set(p.storedata) & set(c.wr): need = max(need, 2)
    if p.kind == "salu" and ("s", "m0") in pw and (c.lds_dma): need = max(need, 1)
    return need

class Asm:
    def __init__(self):
        self.items = []
        self.vm = 0
        self.lg = 0
        self.uid = 0
    def __call__(self, text):
        for line in text.strip().split("\n"):
            line = line.strip()
            if not line: continue
            if line.startswith(";"): self.items.append(("c", line)); continue
            if line.endswith(":"): self.items.append(("l", line[:-1])); continue
            op = line.split()[0]
            STF = os.environ.get("STFLAG", "")
            if STF and op.startswith("buffer_store") and " sc1" not in line and " sc0" not in line: line = line + " " + STF
            self.items.append(("i", line))
            if op.startswith(("buffer_", "global_")) and not op.startswith(("buffer_inv", "buffer_wbl2")): self.vm += 1
            if op.startswith("ds_"): self.lg += 1
        return self
    def vmem(self, text):
        self(text); return self.vm - 1
    def ds(self, text):
        self(text); return self.lg - 1
    def wait_vm(self, idx):
        n = self.vm - idx - 1
        assert n >= 0
        self(f"s_waitcnt vmcnt({min(n, 63)})")
    def wait_lg(self, idx):
        n = self.lg - idx - 1
        assert n >= 0
        self(f"s_waitcnt lgkmcnt({min(n, 15)})")
    def label(self, name): self.items.append(("l", name))
    def newlabel(self, base="L"):
        self.uid += 1; return f"{base}_{self.uid}"
    def comment(self, t): self.items.append(("c", "; " + t))
    def raw(self, t): self.items.append(("r", t))
    def finish(self, window=24):
        out = []; hist = []
        for kind, t in self.items:
            if kind == "c": out.append("    " + t); continue
            if kind == "r": out.append(t); hist = []; continue
            if kind == "l":
                out.append(t + ":")
                continue
            ins = Ins(t)
            need_extra = 0
            dist = 0
            for p in reversed(hist[-window:]):
                g = required_gap(p, ins)
                if g > dist: need_extra = max(need_extra, g - dist)
                dist += p.nop
                if dist > 20: break
            while need_extra > 0:
                k = min(need_extra, 16)
                nop = Ins(f"s_nop {k-1}")
                out.append(f"    s_nop {k-1}"); hist.append(nop); need_extra -= k
            out.append("    " + t); hist.append(ins)
        return "\n".join(out) + "\n"

class Stamps:
    def __init__(self, a, base=70, enabled=False):
        self.a = a; self.n = 0; self.enabled = enabled; self.names = []; self.v = 255
    def __call__(self, name):
        if not self.enabled: return
        a = self.a
        if os.environ.get("RT"): a(f"s_memrealtime s[68:69]")
        else: a(f"s_memtime s[68:69]")
        a("s_waitcnt lgkmcnt(0)")
        a(f"v_writelane_b32 v{self.v}, s68, {self.n}")
        self.names.append(name); self.n += 1
        assert self.n <= 32
    def dump(self, srd, sWave, vt0, vt1, off):
        if not self.enabled: return
        a = self.a
        a(f"s_lshl_b32 s68, s2, 4")
        a(f"s_add_u32 s68, s68, s{sWave}")
        a(f"s_lshl_b32 s68, s68, 7")
        a(f"s_add_u32 s68, s68, {off}")
        a(f"v_mbcnt_lo_u32_b32 v{vt0}, -1, 0")
        a(f"v_mbcnt_hi_u32_b32 v{vt0}, -1, v{vt0}")
        a(f"v_lshlrev_b32 v{vt0}, 2, v{vt0}")
        a(f"s_mov_b64 exec, {(1 << self.n) - 1:#x}")
        a(f"buffer_store_dword v{self.v}, v{vt0}, s[{srd}:{srd+3}], s68 offen")
        a(f"s_mov_b64 exec, -1")

class Alloc:
    def __init__(self, start=0, limit=256, name="v"):
        self.next = start; self.limit = limit; self.name = name; self.hi = start
    def __call__(self, n=1, align=None):
        if align is None: align = 2 if n >= 2 else 1
        if self.name == "s" and n >= 4 and align < 4: align = 4
        a = (self.next + align - 1) // align * align
        self.next = a + n
        if os.environ.get("ALLOCDBG"): print("alloc", self.name, a, n)
        assert self.next <= self.limit, f"out of {self.name} regs: {self.next} > {self.limit}"
        self.hi = max(self.hi, self.next)
        return a
    def mark(self): return self.next
    def reset(self, m): self.next = m

def kernel_desc(name, vgpr, sgpr=102, accum=None):
    if accum is None: accum = (vgpr + 3) // 4 * 4
    return f""".p2align 6
.amdhsa_kernel {name}
  .amdhsa_next_free_vgpr {vgpr}
  .amdhsa_next_free_sgpr {sgpr}
  .amdhsa_accum_offset {accum}
  .amdhsa_group_segment_fixed_size 0
  .amdhsa_kernarg_size 112
  .amdhsa_user_sgpr_count 2
  .amdhsa_user_sgpr_kernarg_segment_ptr 1
  .amdhsa_system_sgpr_workgroup_id_x 1
.end_amdhsa_kernel
"""
```

```python
from dsl import *
from layout import *
import os, struct

XR = 0; WR = 81920; SLOT = 24576
MISC = 155648
CSUM = MISC
XSUM = MISC + 3072
ZSUM = MISC + 4096
SHKL = MISC + 5120
EX = 16384
TB = 81920 + 24576
KS = 65536
VS = 49152
ZT = 0
C1 = 2.302208198144325
C2 = C1 * 0.044715

def f32(x): return struct.unpack("<I", struct.pack("<f", x))[0]
def P(r): return f"v[{r}:{r+1}]"

def pkop(a, kind, d, x, y, z=None, pk=True, bcast_y=False, neg_y=False, ys=None, zs=None):
    if pk:
        yo = f"s[{ys}:{ys+1}]" if ys is not None else P(y)
        mods = ""
        n = 3 if kind == "fma" else 2
        if bcast_y: mods += " op_sel_hi:[1,0" + (",1" if n == 3 else "") + "]"
        if neg_y: mods += " neg_lo:[0,1" + (",0" if n == 3 else "") + "] neg_hi:[0,1" + (",0" if n == 3 else "") + "]"
        if kind == "fma": a(f"v_pk_fma_f32 {P(d)}, {P(x)}, {yo}, {P(z)}{mods}")
        else: a(f"v_pk_{kind}_f32 {P(d)}, {P(x)}, {yo}{mods}")
        yield
    else:
        for h in range(2):
            yo = f"s{ys}" if ys is not None else f"v{y + (0 if bcast_y else h)}"
            if neg_y: yo = "-" + yo
            if kind == "fma": a(f"v_fma_f32 v{d+h}, v{x+h}, {yo}, v{z+h}")
            elif kind == "mul":
                if ys is not None: a(f"v_mul_f32 v{d+h}, {yo}, v{x+h}")
                else: a(f"v_mul_f32 v{d+h}, v{x+h}, {yo}")
            else:
                if neg_y: a(f"v_sub_f32 v{d+h}, v{x+h}, {yo[1:]}")
                else: a(f"v_add_f32 v{d+h}, v{x+h}, {yo}")
            yield

def reduce_g4_multi(a, xs, ts):
    for op in ("v_permlane16_swap_b32", "v_permlane32_swap_b32"):
        for x, t in zip(xs, ts): a(f"v_mov_b32 v{t}, v{x}"); yield
        for x, t in zip(xs, ts): a(f"{op} v{x}, v{t}"); yield
        for x, t in zip(xs, ts): a(f"v_add_f32 v{x}, v{x}, v{t}"); yield

def ln_finish_gen(a, mean, var, sEps):
    a(f"v_max_f32 v{var}, 0, v{var}"); yield
    a(f"v_cvt_pk_bf16_f32 v{var}, v{var}, v{mean}"); yield
    a(f"v_and_b32 v{mean}, 0xffff0000, v{var}"); yield
    a(f"v_lshlrev_b32 v{var}, 16, v{var}"); yield
    a(f"v_add_f32 v{var}, s{sEps}, v{var}"); yield
    a(f"v_cvt_pk_bf16_f32 v{var}, v{var}, v{var}"); yield
    a(f"v_and_b32 v{var}, 0xffff0000, v{var}"); yield
    a(f"v_sqrt_f32 v{var}, v{var}"); yield
    a(f"v_cvt_pk_bf16_f32 v{var}, v{var}, v{var}"); yield
    a(f"v_and_b32 v{var}, 0xffff0000, v{var}"); yield
    a(f"v_rcp_f32 v{var}, v{var}"); yield

def run(gen):
    for _ in gen: pass

class Filler:
    def __init__(self): self.q = []
    def add(self, g): self.q.append(g)
    def step(self, n=1):
        for _ in range(n):
            while self.q:
                try:
                    next(self.q[0]); break
                except StopIteration:
                    self.q.pop(0)
    def drain(self):
        while self.q:
            run(self.q.pop(0))

def mask(a, n):
    if n >= 64: a("s_mov_b64 exec, -1")
    elif n > 32:
        a("s_mov_b32 exec_lo, -1"); a(f"s_mov_b32 exec_hi, {(1 << (n-32)) - 1:#x}")
    elif n == 32:
        a("s_mov_b32 exec_lo, -1"); a("s_mov_b32 exec_hi, 0")
    else: a(f"s_mov_b64 exec, {(1 << n) - 1:#x}")

def gen_k1(name="k1_kernel", prof=False):
    K1X = os.environ.get("K1X", "")
    a = Asm()
    ST = Stamps(a, enabled=prof)
    WSZ = WS_SIZE_DBG if prof else WS_END
    V = Alloc(1, 256, "v")
    sX, sWIN, sK, sV, sSHK, sWS, sDBG, sWSP, sSSM = 4, 8, 12, 16, 20, 24, 28, 32, 36
    sWOU = 84 if not prof else 84
    sRB, sJ, sW, sFH, sSH, sKH, sST0, sST = 40, 41, 42, 43, 44, 45, 46, 47
    sT0, sT1, sT2, sT3 = 48, 49, 50, 51
    sXOFF, sWOFF2, sWOFF1 = 52, 53, 54
    sEPS, sONES, sU = 55, 56, 57
    sNC2 = 58
    sM0X, sM0W = 60, 61
    sZ1B, sKKA, sKKB, sD0 = 62, 63, 64, 65
    sXC, sH = 66, 67
    (sEXW, sEXR, sCSW, sCSR, sXSW, sXSR, sZSW, sZPB, sZRB, sXST, sZ1S0, sZ1S1, sZ1S2, sKVB) = range(70, 84)
    sZ2L = [88, 63]; sZ2G = [64, 67]; sL2B = 66
    a.raw(f".globl {name}\n.p2align 8\n.type {name},@function\n{name}:")
    a(f"s_cmp_ge_u32 s2, 256")
    a(f"s_cbranch_scc1 {name}_end")
    srds = ((sX, 'q', SZ_X), (sWIN, 'win', SZ_WIN), (sK, 'k', SZ_X), (sV, 'v', SZ_X), (sSHK, 'shk', 5120), (sWS, 'ws', WSZ),
            (sDBG, 'dbg', 256), (sWSP, 'wsp', SZ_WSP), (sSSM, 'ssmk', SZ_SSMK), (sWOU, 'wout', SZ_WOUT))
    for srd, key, _ in srds:
        a(f"s_load_dwordx2 s[{srd}:{srd+1}], s[0:1], {KA[key]}")
    ST("start")
    vL = V(); vQ = V(); vP = V()
    t0, t1, t2 = V(), V(), V()
    vKV = V()
    a(f"v_lshrrev_b32 v{vQ}, 6, v0")
    a(f"v_and_b32 v{vL}, 63, v0")
    a(f"v_readfirstlane_b32 s{sW}, v{vQ}")
    a(f"v_lshrrev_b32 v{vQ}, 4, v{vL}")
    a(f"v_and_b32 v{vP}, 15, v{vL}")
    a(f"s_and_b32 s{sT0}, s2, 7")
    a(f"s_lshr_b32 s{sT1}, s2, 3")
    a(f"s_lshr_b32 s{sXC}, s{sT0}, 1")
    a(f"s_and_b32 s{sH}, s{sT0}, 1")
    a(f"s_lshl_b32 s{sRB}, s{sXC}, 3")
    a(f"s_and_b32 s{sT0}, s{sT1}, 7")
    a(f"s_add_u32 s{sRB}, s{sRB}, s{sT0}")
    a(f"s_lshl_b32 s{sJ}, s{sH}, 2")
    a(f"s_lshr_b32 s{sT0}, s{sT1}, 3")
    a(f"s_add_u32 s{sJ}, s{sJ}, s{sT0}")
    a(f"s_mul_i32 s{sXOFF}, s{sRB}, {64*1280}")
    a(f"s_mul_i32 s{sWOFF1}, s{sJ}, 192")
    a(f"s_add_u32 s{sWOFF2}, s{sWOFF1}, {768*2}")
    a(f"s_lshl_b32 s{sM0X}, s{sW}, 11")
    a(f"s_mul_i32 s{sM0W}, s{sW}, 3072")
    for srd, _, size in srds[:2]:
        a(f"s_mov_b32 s{srd+2}, {size}")
        a(f"s_mov_b32 s{srd+3}, {SRD3:#x}")
    TMP = V(28, 4)
    vTO = V()
    vDummy = V()
    vXD = [V(), V()]
    a(f"s_lshl_b32 s{sT0}, s{sW}, 3")
    for i in range(2):
        a(f"v_add_u32 v{t0}, s{sT0}, v{vQ}")
        if i: a(f"v_add_u32 v{t0}, 4, v{t0}")
        a(f"v_and_b32 v{t1}, 15, v{t0}")
        a(f"v_xor_b32 v{t1}, v{t1}, v{vP}")
        a(f"v_mul_u32_u24 v{t0}, 1280, v{t0}")
        a(f"v_lshl_add_u32 v{vXD[i]}, v{t1}, 4, v{t0}")
    vWD = [V(), V(), V()]
    a(f"s_mul_i32 s{sT0}, s{sW}, 192")
    for i in range(3):
        a(f"v_add_u32 v{t0}, s{sT0}, v{vL}")
        if i: a(f"v_add_u32 v{t0}, {64*i}, v{t0}")
        a(f"v_mul_u32_u24 v{t1}, 43691, v{t0}")
        a(f"v_lshrrev_b32 v{t1}, 19, v{t1}")
        a(f"v_mul_u32_u24 v{t2}, 12, v{t1}")
        a(f"v_sub_u32 v{t0}, v{t0}, v{t2}")
        a(f"v_lshrrev_b32 v{t2}, 2, v{t1}")
        a(f"v_and_b32 v{t2}, 2, v{t2}")
        a(f"v_xor_b32 v{t0}, v{t0}, v{t2}")
        a(f"v_mul_u32_u24 v{t1}, 3072, v{t1}")
        a(f"v_lshl_add_u32 v{vWD[i]}, v{t0}, 4, v{t1}")
    sSCX = [90, 91, 92, 93, 94]; sSCW = [95, 96, 97, 98, 99]
    a(f"s_add_u32 s{sT0}, s{sRB}, s{sJ}")
    a(f"s_mul_i32 s{sT1}, s{sT0}, 52")
    a(f"s_lshr_b32 s{sT1}, s{sT1}, 8")
    a(f"s_mul_i32 s{sT1}, s{sT1}, 5")
    a(f"s_sub_u32 s{sT3}, s{sT0}, s{sT1}")
    if "norot" in K1X: a(f"s_mov_b32 s{sT3}, 0")
    if "rot2" in K1X: a(f"s_and_b32 s{sT3}, s{sT0}, 1")
    if "rot4" in K1X: a(f"s_and_b32 s{sT3}, s{sT0}, 3")
    if "rotj" in K1X: a(f"s_and_b32 s{sT3}, s{sJ}, 3")
    if "rotr" in K1X:
        a(f"s_and_b32 s{sT3}, s{sRB}, 1")
        a(f"s_lshl_b32 s{sT3}, s{sT3}, 1")
    def sc_regs(p_):
        a(f"s_add_u32 s{sT1}, s{sT3}, {p_}")
        a(f"s_sub_u32 s{sT2}, s{sT1}, 5")
        a(f"s_cmp_ge_u32 s{sT1}, 5")
        a(f"s_cselect_b32 s{sT1}, s{sT2}, s{sT1}")
        a(f"s_lshl_b32 s{sSCX[p_]}, s{sT1}, 8")
        a(f"s_mul_i32 s{sSCW[p_]}, s{sT1}, {128*3072}")
    sc_regs(0); sc_regs(1)
    x_last = {}; w_last = {}
    def dma_x_g(sc):
        for i in range(2):
            a(f"s_add_u32 s{sD0}, s{sXOFF}, s{sSCX[sc]}")
            a(f"s_add_u32 m0, s{sM0X}, {XR + sc*16384 + i*1024}")
            x_last[sc] = a.vmem(f"buffer_load_dwordx4 v{vXD[i]}, s[{sX}:{sX+3}], s{sD0} offen lds")
            yield
    def wbase(q): return WR + (q % 3)*SLOT
    def dma_w_g(q):
        sc = q % 5
        for i in range(3):
            a(f"s_add_u32 s{sD0}, s{sWOFF2 if q < 5 else sWOFF1}, s{sSCW[sc]}")
            a(f"s_add_u32 m0, s{sM0W}, {wbase(q) + i*1024}")
            w_last[q] = a.vmem(f"buffer_load_dwordx4 v{vWD[i]}, s[{sWIN}:{sWIN+3}], s{sD0} offen lds")
            yield
    def dma_x(sc): run(dma_x_g(sc))
    def dma_w(q): run(dma_w_g(q))
    a("s_waitcnt lgkmcnt(0)")
    ST("kernarg")
    dma_x(0); dma_w(0)
    sTAG = 100
    a(f"s_mov_b32 s{sT0}, {WS_EPO}")
    a(f"s_load_dwordx2 s[{sTAG}:{sTAG+1}], s[{sWS}:{sWS+1}], s{sT0}")
    for p_ in range(2, 5): sc_regs(p_)
    for srd, _, size in srds[2:]:
        a(f"s_mov_b32 s{srd+2}, {size}")
        a(f"s_mov_b32 s{srd+3}, {SRD3:#x}")
    a(f"v_lshlrev_b32 v{vTO}, 7, v{vL}")
    a("s_barrier")
    dma_x(1); dma_w(1)
    def kv_dma():
        a(f"v_mul_u32_u24 v{t0}, 1280, v{vRP}")
        a(f"v_lshl_add_u32 v{t0}, v{vPP}, 4, v{t0}")
        a(f"s_mul_i32 s{sT3}, s{sJ}, 160")
        a(f"s_add_u32 s{sT3}, s{sT3}, s{sXOFF}")
        for rnd in range(3):
            n0 = 8*rnd
            if rnd == 0:
                a(f"s_mul_i32 s{sT0}, s{sW}, {6*1280}")
                a(f"s_add_u32 s{sT0}, s{sT0}, s{sT3}")
                a(f"s_sub_i32 s{sT0}, s{sT0}, {3*1280}")
                a(f"s_cmp_lt_i32 s{sT0}, 0")
                a(f"s_cselect_b32 s{sT1}, {3*1280}, 0")
                a(f"s_add_u32 s{sT0}, s{sT0}, s{sT1}")
                a(f"v_subrev_u32 v{t1}, s{sT1}, v{t0}")
                a(f"s_mul_i32 s{sT2}, s{sW}, 960")
                a(f"s_add_u32 m0, s{sT2}, {KS}")
                mask(a, 60)
                a.vmem(f"buffer_load_dwordx4 v{t1}, s[{sK}:{sK+3}], s{sT0} offen lds")
                mask(a, 64)
            elif rnd == 1:
                lv = a.newlabel("k1_kvv"); le = a.newlabel("k1_kve")
                a(f"s_cmp_ge_u32 s{sW}, 4")
                mask(a, 60)
                a(f"s_cbranch_scc1 {lv}")
                a(f"s_mul_i32 s{sT0}, s{sW}, {6*1280}")
                a(f"s_add_u32 s{sT0}, s{sT0}, s{sT3}")
                a(f"s_add_u32 s{sT0}, s{sT0}, {45*1280}")
                a(f"s_mul_i32 s{sT2}, s{sW}, 960")
                a(f"s_add_u32 m0, s{sT2}, {KS + 8*960}")
                a(f"buffer_load_dwordx4 v{t0}, s[{sK}:{sK+3}], s{sT0} offen lds")
                a(f"s_branch {le}")
                a.label(lv)
                a(f"s_sub_u32 s{sT1}, s{sW}, 4")
                a(f"s_mul_i32 s{sT0}, s{sT1}, {6*1280}")
                a(f"s_add_u32 s{sT0}, s{sT0}, s{sT3}")
                a(f"s_mul_i32 s{sT2}, s{sT1}, 960")
                a(f"s_add_u32 m0, s{sT2}, {VS}")
                a(f"buffer_load_dwordx4 v{t0}, s[{sV}:{sV+3}], s{sT0} offen lds")
                a.label(le)
                a.vm -= 1
                mask(a, 64)
            else:
                a(f"s_add_u32 s{sT1}, s{sW}, 4")
                a(f"s_mul_i32 s{sT0}, s{sT1}, {6*1280}")
                a(f"s_add_u32 s{sT0}, s{sT0}, s{sT3}")
                a(f"s_mul_i32 s{sT2}, s{sT1}, 960")
                a(f"s_add_u32 m0, s{sT2}, {VS}")
                mask(a, 60)
                a.vmem(f"buffer_load_dwordx4 v{t0}, s[{sV}:{sV+3}], s{sT0} offen lds")
                mask(a, 64)
            yield
    lab = a.newlabel("k1_shk")
    a(f"s_cmp_lg_u32 s{sW}, 7")
    a(f"s_cbranch_scc1 {lab}")
    a(f"v_lshlrev_b32 v{t0}, 4, v{vL}")
    a(f"s_mul_i32 s{sT0}, s{sJ}, 640")
    a(f"s_mov_b32 m0, {SHKL}")
    mask(a, 40)
    a(f"buffer_load_dwordx4 v{t0}, s[{sSHK}:{sSHK+3}], s{sT0} offen lds")
    a.vm -= 1
    mask(a, 64)
    a.label(lab)
    a(f"s_and_b32 s{sFH}, s{sW}, 1")
    a(f"s_lshr_b32 s{sSH}, s{sW}, 1")
    a(f"s_and_b32 s{sSH}, s{sSH}, 1")
    a(f"s_lshr_b32 s{sKH}, s{sW}, 2")
    a(f"s_xor_b32 s{sST0}, s{sFH}, s{sKH}")
    a(f"s_lshl_b32 s{sST}, s{sSH}, 1")
    a(f"s_add_u32 s{sST}, s{sST}, s{sST0}")
    a(f"s_mov_b32 s{sEPS}, {f32(1e-5):#x}")
    a(f"s_mov_b32 s{sONES}, 0x3f803f80")
    a(f"s_mov_b32 s{sNC2}, {f32(-C2):#x}")
    a(f"s_mov_b32 s{sNC2+1}, {f32(-C2):#x}")
    vRP = V(); vPP = V()
    _pre = [V(), V(), V()]
    XF = V(80, 4)
    def xf(sc, kk, sl): return XF + ((sc*2 + kk)*2 + sl)*4
    WF = V(48, 4)
    def wf(b, kk, ft): return WF + ((b*2 + kk)*3 + ft)*4
    ACC = V(24, 4)
    def acc(ft, sl): return ACC + (ft*2 + sl)*4
    Z2V = V(12, 4)
    KX = V(4, 4)
    KROW = [XF + 4*r for r in range(5)]
    VROW = [XF + 20, XF + 24]
    vXA = [[_pre[0], _pre[1]], [_pre[2], V()]]
    vWA = [[V(), V(), V()], [V(), V(), V()]]
    a(f"s_lshl_b32 s{sT0}, s{sKH}, 1")
    a(f"s_add_u32 s{sKKA}, s{sT0}, s{sSH}")
    a(f"s_xor_b32 s{sKKB}, s{sKKA}, 1")
    a(f"v_xor_b32 v{t0}, v{vQ}, v{vP}")
    a(f"v_lshlrev_b32 v{t2}, 8, v{vP}")
    a(f"s_lshl_b32 s{sT0}, s{sSH}, 13")
    a(f"s_lshl_b32 s{sT1}, s{sST0}, 12")
    a(f"s_add_u32 s{sT2}, s{sT0}, s{sT1}")
    a(f"s_xor_b32 s{sT1}, s{sT1}, 4096")
    a(f"s_add_u32 s{sT3}, s{sT0}, s{sT1}")
    for kkidx, sKK in ((0, sKKA), (1, sKKB)):
        a(f"s_lshl_b32 s{sT0}, s{sKK}, 2")
        a(f"v_xor_b32 v{t1}, s{sT0}, v{t0}")
        a(f"v_lshl_add_u32 v{t1}, v{t1}, 4, v{t2}")
        a(f"v_add_u32 v{vXA[kkidx][0]}, s{sT2}, v{t1}")
        a(f"v_add_u32 v{vXA[kkidx][1]}, s{sT3}, v{t1}")
    a(f"v_lshrrev_b32 v{t1}, 2, v{vP}")
    a(f"v_lshl_add_u32 v{t0}, v{vQ}, 3, v{t1}")
    a(f"v_mul_u32_u24 v{t0}, 192, v{t0}")
    a(f"v_and_b32 v{t1}, 3, v{vP}")
    a(f"v_lshl_add_u32 v{t0}, v{t1}, 3, v{t0}")
    a(f"v_and_b32 v{t1}, 1, v{vQ}")
    a(f"s_mul_i32 s{sT3}, s{sFH}, 3")
    a(f"s_mul_i32 s{sT1}, s{sKKA}, 6144")
    a(f"s_add_u32 s{sT1}, s{sT1}, {WR}")
    a(f"s_mul_i32 s{sT2}, s{sKKB}, 6144")
    a(f"s_add_u32 s{sT2}, s{sT2}, {WR}")
    for ft in range(3):
        a(f"s_add_u32 s{sT0}, s{sT3}, {ft}")
        a(f"v_xor_b32 v{t2}, s{sT0}, v{t1}")
        a(f"v_lshl_add_u32 v{t2}, v{t2}, 5, v{t0}")
        a(f"v_add_u32 v{vWA[0][ft]}, s{sT1}, v{t2}")
        a(f"v_add_u32 v{vWA[1][ft]}, s{sT2}, v{t2}")
    CSA = V(12, 4)
    XSA = V(4, 4); XQA = V(4, 4)
    ONE = V(4, 4)
    for i in range(4): a(f"v_mov_b32 v{ONE+i}, s{sONES}")
    vC1 = XSA + 2
    vMR = XQA; vM, vR = vMR, vMR + 1
    vRB = XQA + 2
    a(f"v_mul_u32_u24 v{vRP}, 205, v{vL}")
    a(f"v_lshrrev_b32 v{vRP}, 11, v{vRP}")
    a(f"v_mul_u32_u24 v{t0}, 10, v{vRP}")
    a(f"v_sub_u32 v{vPP}, v{vL}, v{t0}")
    a(f"s_lshl_b32 s{sT0}, s{sW}, 3")
    a(f"v_lshl_add_u32 v{t0}, v{vRP}, 1, s{sT0}")
    a(f"v_min_u32 v{t0}, 62, v{t0}")
    a(f"v_mul_u32_u24 v{t0}, 160, v{t0}")
    a(f"v_lshl_add_u32 v{vKV}, v{vPP}, 4, v{t0}")

    kv = {}
    zfin = {}
    vTO2 = KX + 3
    a(f"v_lshlrev_b32 v{vTO2}, 10, v{vL}")
    def kv_loads():
        a(f"v_add_u32 v{t0}, {KS}, v{vKV}")
        for i in range(5):
            a.ds(f"ds_read_b128 v[{KROW[i]}:{KROW[i]+3}], v{t0} offset:{160*i}")
        a(f"v_add_u32 v{t0}, {VS}, v{vKV}")
        a.ds(f"ds_read_b128 v[{VROW[0]}:{VROW[0]+3}], v{t0}")
        kv['last'] = a.ds(f"ds_read_b128 v[{VROW[1]}:{VROW[1]+3}], v{t0} offset:160")

    def kv_compute():
        KT = XF + 32
        kf = KT; wp = KT + 10; r0 = KT + 18; r1 = KT + 20; vf0 = KT + 22; vf1 = KT + 24; o = KT + 26
        SK = KT + 28
        vTA = vKV
        a.wait_lg(kv['last']); yield
        a(f"v_mul_u32_u24 v{vTA}, {8*144}, v{vPP}"); yield
        a(f"v_lshlrev_b32 v{o}, 2, v{vRP}"); yield
        a(f"v_sub_u32 v{vTA}, v{vTA}, v{o}"); yield
        a(f"s_lshl_b32 s{sT0}, s{sW}, 4")
        a(f"s_add_u32 s{sT0}, s{sT0}, {TB + 12}")
        a(f"v_add_u32 v{vTA}, s{sT0}, v{vTA}"); yield
        a(f"v_lshlrev_b32 v{vPP}, 6, v{vPP}"); yield
        a(f"v_add_u32 v{vPP}, {SHKL}, v{vPP}"); yield
        for i in range(4):
            if i % 2 == 0:
                a.ds(f"ds_read_b128 v[{SK}:{SK+3}], v{vPP} offset:{(i//2)*32}")
                d = a.ds(f"ds_read_b128 v[{SK+4}:{SK+7}], v{vPP} offset:{(i//2)*32 + 16}"); yield
            for r in range(5):
                a(f"v_lshlrev_b32 v{kf+2*r}, 16, v{KROW[r]+i}"); yield
                a(f"v_and_b32 v{kf+2*r+1}, 0xffff0000, v{KROW[r]+i}"); yield
            if i % 2 == 0:
                a.wait_lg(d)
            for t in range(4):
                ra = SK + 2*(2*(i % 2)) + (t >> 1); rb_ = SK + 2*(2*(i % 2) + 1) + (t >> 1)
                if t & 1:
                    a(f"v_and_b32 v{wp+2*t}, 0xffff0000, v{ra}"); yield
                    a(f"v_and_b32 v{wp+2*t+1}, 0xffff0000, v{rb_}"); yield
                else:
                    a(f"v_lshlrev_b32 v{wp+2*t}, 16, v{ra}"); yield
                    a(f"v_lshlrev_b32 v{wp+2*t+1}, 16, v{rb_}"); yield
            for t in range(4):
                for (dst, top) in ((r0, 3), (r1, 4)):
                    if t == 0: yield from pkop(a, "mul", dst, kf+2*top, wp, pk=True)
                    else: yield from pkop(a, "fma", dst, kf+2*(top-t), wp+2*t, dst, pk=True)
            for (vf, rr) in ((vf0, 0), (vf1, 1)):
                a(f"v_lshlrev_b32 v{vf}, 16, v{VROW[rr]+i}"); yield
                a(f"v_and_b32 v{vf+1}, 0xffff0000, v{VROW[rr]+i}"); yield
            yield from pkop(a, "mul", r0, r0, vf0, pk=True)
            yield from pkop(a, "mul", r1, r1, vf1, pk=True)
            a(f"v_cvt_pk_bf16_f32 v{o}, v{r1}, v{r0}"); yield
            a(f"v_cvt_pk_bf16_f32 v{o+1}, v{r1+1}, v{r0+1}"); yield
            a(f"s_mov_b32 exec_hi, 0xff")
            a.ds(f"ds_write_b32 v{vTA}, v{o} offset:{(2*i)*144}")
            a.ds(f"ds_write_b32 v{vTA}, v{o+1} offset:{(2*i+1)*144}")
            a(f"s_mov_b32 exec_hi, -1"); yield

    def kv_store():
        for rnd in range(2):
            T4 = XF + 72 + 4*rnd
            a(f"s_lshl_b32 s{sT0}, s{sW}, 3")
            if rnd: a(f"s_add_u32 s{sT0}, s{sT0}, 64")
            a(f"v_lshrrev_b32 v{t0}, 3, v{vL}")
            a(f"v_add_u32 v{t0}, s{sT0}, v{t0}"); yield
            a(f"v_and_b32 v{t1}, 7, v{vL}")
            a(f"v_lshlrev_b32 v{t1}, 4, v{t1}"); yield
            a(f"v_mul_u32_u24 v{t2}, 144, v{t0}")
            a(f"v_add_u32 v{t2}, v{t2}, v{t1}")
            a(f"v_add_u32 v{t2}, {TB}, v{t2}"); yield
            d = a.ds(f"ds_read_b128 v[{T4}:{T4+3}], v{t2}"); yield
            a(f"v_lshlrev_b32 v{t0}, 12, v{t0}")
            a(f"v_add_u32 v{t0}, v{t0}, v{t1}"); yield
            a.wait_lg(d)
            if rnd == 0:
                a.vmem(f"buffer_store_dwordx4 v[{T4}:{T4+3}], v{t0}, s[{sWS}:{sWS+3}], s{sKVB} offen"); yield
            else:
                lab = a.newlabel("k1_kvskip")
                a(f"s_cmp_ge_u32 s{sW}, 2")
                a(f"s_cbranch_scc1 {lab}")
                a(f"buffer_store_dwordx4 v[{T4}:{T4+3}], v{t0}, s[{sWS}:{sWS+3}], s{sKVB} offen")
                a.vm -= 1
                a.label(lab); yield

    def reads_g(p):
        sc = p % 5; b = p & 1
        so = (p % 3)*SLOT
        for kk in range(2):
            for ft in range(3):
                r = wf(b, kk, ft)
                a.ds(f"ds_read_b64_tr_b16 v[{r}:{r+1}], v{vWA[kk][ft]} offset:{so}"); yield
                a.ds(f"ds_read_b64_tr_b16 v[{r+2}:{r+3}], v{vWA[kk][ft]} offset:{so + 768}"); yield
        if p < 5:
            if p == 4:
                for kk in range(2):
                    for sl in range(2):
                        a(f"v_add_u32 v{vXA[kk][sl]}, 0x10000, v{vXA[kk][sl]}")
            for kk in range(2):
                for sl in range(2):
                    off = XR + (sc*16384 if p < 4 else 0)
                    a.ds(f"ds_read_b128 v[{xf(sc,kk,sl)}:{xf(sc,kk,sl)+3}], v{vXA[kk][sl]} offset:{off}"); yield
    def reads(p): run(reads_g(p))

    def mfmas(p, fill, nfill, dmaf=None):
        sc = p % 5; b = p & 1
        first = (sc == 0)
        ops = []
        for kk in range(2):
            for ft in range(3):
                for sl in range(2):
                    c = "0" if (first and kk == 0) else f"v[{acc(ft,sl)}:{acc(ft,sl)+3}]"
                    ops.append(f"v_mfma_f32_16x16x32_bf16 v[{acc(ft,sl)}:{acc(ft,sl)+3}], v[{wf(b,kk,ft)}:{wf(b,kk,ft)+3}], v[{xf(sc,kk,sl)}:{xf(sc,kk,sl)+3}], {c}")
                if kk == 0:
                    c = "0" if first else f"v[{CSA+4*ft}:{CSA+4*ft+3}]"
                    ops.append(f"v_mfma_f32_16x16x32_bf16 v[{CSA+4*ft}:{CSA+4*ft+3}], v[{wf(b,0,ft)}:{wf(b,0,ft)+3}], v[{ONE}:{ONE+3}], {c}")
            if p < 5:
                x = xf(sc, kk, 0)
                c = "0" if (first and kk == 0) else f"v[{XSA}:{XSA+3}]"
                ops.append(f"v_mfma_f32_16x16x32_bf16 v[{XSA}:{XSA+3}], v[{ONE}:{ONE+3}], v[{x}:{x+3}], {c}")
                c = "0" if (first and kk == 0) else f"v[{XQA}:{XQA+3}]"
                ops.append(f"v_mfma_f32_16x16x32_bf16 v[{XQA}:{XQA+3}], v[{x}:{x+3}], v[{x}:{x+3}], {c}")
        nd = 0
        for oi, o in enumerate(ops):
            a(o)
            if dmaf is not None and oi % 3 == 1: dmaf.step(1)
            fill.step(nfill)
        if dmaf is not None: dmaf.drain()

    def exchange_write(ps, dst):
        T = TMP
        a(f"v_lshl_add_u32 v{t0}, v{vL}, 4, s{sEXW}")
        a(f"v_lshl_add_u32 v{t1}, v{vQ}, 4, s{sCSW}")
        for ft in range(3):
            a.ds(f"ds_write_b128 v{t0}, v[{acc(ft,1)}:{acc(ft,1)+3}] offset:{ft*1024}")
        a(f"s_mov_b32 exec_lo, 0x00010001")
        a(f"s_mov_b32 exec_hi, 0x00010001")
        for ft in range(3):
            a.ds(f"ds_write_b128 v{t1}, v[{CSA+4*ft}:{CSA+4*ft+3}] offset:{ps*1536 + ft*64}")
        a(f"s_mov_b64 exec, -1")
        if ps == 0:
            a(f"v_and_b32 v{T}, 3, v{vP}")
            a(f"v_cmp_eq_u32 vcc, 1, v{T}")
            a(f"v_cndmask_b32 v{XSA+1}, v{XQA}, v{XQA+1}, vcc")
            a(f"v_cmp_eq_u32 vcc, 2, v{T}")
            a(f"v_cndmask_b32 v{XSA+1}, v{XSA+1}, v{XQA+2}, vcc")
            a(f"v_cmp_eq_u32 vcc, 3, v{T}")
            a(f"v_cndmask_b32 v{XSA+1}, v{XSA+1}, v{XQA+3}, vcc")
            a(f"v_lshl_add_u32 v{t2}, v{vP}, 3, s{sXSW}")
            a(f"s_mov_b32 exec_lo, 0x00F0000F")
            a(f"s_mov_b32 exec_hi, 0xF0000F00")
            a.ds(f"ds_write_b64 v{t2}, {P(XSA)}")
            a(f"s_mov_b64 exec, -1")
        for ft in range(3):
            for h in range(2):
                a(f"v_pk_add_f32 {P(dst+4*ft+2*h)}, {P(acc(ft,0)+2*h)}, 0")
        if ps == 0:
            a(f"v_mov_b32 v{vC1}, {f32(-C1):#x}"); a(f"v_mov_b32 v{vC1+1}, {f32(-C1):#x}")

    def fold_gelu(ps, dst, E, X, C):
        a(f"v_lshl_add_u32 v{t0}, v{vL}, 4, s{sEXR}")
        if ps == 0:
            a(f"v_lshl_add_u32 v{t1}, v{vP}, 3, s{sXSR}")
            a.ds(f"ds_read_b64 {P(X)}, v{t1}")
            dx = a.ds(f"ds_read_b64 {P(X+2)}, v{t1} offset:128")
        ids = [a.ds(f"ds_read_b128 v[{E+4*ft}:{E+4*ft+3}], v{t0} offset:{ft*1024}") for ft in range(3)]
        a(f"v_lshl_add_u32 v{t2}, v{vQ}, 4, s{sCSR}")
        cid = []
        for q in range(4):
            for ft in range(3):
                cid.append(a.ds(f"ds_read_b128 v[{C[q]+4*ft}:{C[q]+4*ft+3}], v{t2} offset:{ps*1536 + q*192 + ft*64}"))
        if ps == 0:
            a.wait_lg(dx)
            a(f"v_pk_add_f32 {P(vMR)}, {P(X)}, {P(X+2)}")
            a(f"v_mul_f32 v{vM}, {f32(1.0/640):#x}, v{vM}")
            a(f"v_mul_f32 v{vR}, {f32(1.0/640):#x}, v{vR}")
            a(f"v_fma_f32 v{vR}, -v{vM}, v{vM}, v{vR}")
            run(ln_finish_gen(a, vM, vR, sEPS))
            a(f"v_mov_b32 v{vRB}, v{vR}")
        a.wait_lg(ids[2])
        for i in range(0, 12, 2): a(f"v_pk_add_f32 {P(dst+i)}, {P(dst+i)}, {P(E+i)}")
        a.wait_lg(cid[5])
        for i in range(0, 12, 2): a(f"v_pk_add_f32 {P(C[0]+i)}, {P(C[0]+i)}, {P(C[1]+i)}")
        a.wait_lg(cid[11])
        for i in range(0, 12, 2): a(f"v_pk_add_f32 {P(C[2]+i)}, {P(C[2]+i)}, {P(C[3]+i)}")
        for i in range(0, 12, 2): a(f"v_pk_add_f32 {P(C[0]+i)}, {P(C[0]+i)}, {P(C[2]+i)}")
        for i in range(0, 12, 2):
            a(f"v_pk_fma_f32 {P(dst+i)}, {P(C[0]+i)}, {P(vMR)}, {P(dst+i)} op_sel_hi:[1,0,1] neg_lo:[0,1,0] neg_hi:[0,1,0]")
        for i in range(0, 12, 2): a(f"v_pk_mul_f32 {P(dst+i)}, {P(dst+i)}, {P(vRB)} op_sel_hi:[1,0]")
        T = E
        for i in range(0, 12, 2): a(f"v_pk_mul_f32 {P(T+i)}, {P(dst+i)}, {P(dst+i)}")
        for i in range(0, 12, 2): a(f"v_pk_fma_f32 {P(T+i)}, {P(T+i)}, s[{sNC2}:{sNC2+1}], {P(vC1)}")
        for i in range(0, 12, 2): a(f"v_pk_mul_f32 {P(T+i)}, {P(T+i)}, {P(dst+i)}")
        for i in range(12): a(f"v_exp_f32 v{T+i}, v{T+i}")
        for i in range(0, 12, 2): a(f"v_pk_add_f32 {P(T+i)}, {P(T+i)}, 1.0 op_sel_hi:[1,0]")
        for i in range(12): a(f"v_rcp_f32 v{T+i}, v{T+i}")
        for i in range(0, 12, 2): a(f"v_pk_mul_f32 {P(dst+i)}, {P(dst+i)}, {P(T+i)}")

    def z2_stats():
        T = TMP
        a(f"v_pk_add_f32 {P(T+6)}, {P(Z2V)}, {P(Z2V+2)}"); yield
        a(f"v_pk_mul_f32 {P(T+8)}, {P(Z2V)}, {P(Z2V)}"); yield
        a(f"v_pk_add_f32 {P(T+10)}, {P(Z2V+4)}, {P(Z2V+6)}"); yield
        a(f"v_pk_fma_f32 {P(T+8)}, {P(Z2V+2)}, {P(Z2V+2)}, {P(T+8)}"); yield
        a(f"v_pk_add_f32 {P(T+12)}, {P(Z2V+8)}, {P(Z2V+10)}"); yield
        a(f"v_pk_fma_f32 {P(T+8)}, {P(Z2V+4)}, {P(Z2V+4)}, {P(T+8)}"); yield
        a(f"v_pk_add_f32 {P(T+6)}, {P(T+6)}, {P(T+10)}"); yield
        a(f"v_pk_fma_f32 {P(T+8)}, {P(Z2V+6)}, {P(Z2V+6)}, {P(T+8)}"); yield
        a(f"v_pk_add_f32 {P(T+6)}, {P(T+6)}, {P(T+12)}"); yield
        a(f"v_pk_fma_f32 {P(T+8)}, {P(Z2V+8)}, {P(Z2V+8)}, {P(T+8)}"); yield
        a(f"v_pk_fma_f32 {P(T+8)}, {P(Z2V+10)}, {P(Z2V+10)}, {P(T+8)}"); yield
        a(f"v_add_f32 v{T}, v{T+6}, v{T+7}"); yield
        a(f"v_add_f32 v{T+1}, v{T+8}, v{T+9}"); yield
        a(f"v_lshl_add_u32 v{t0}, v{vP}, 3, s{sZSW}"); yield
        yield from reduce_g4_multi(a, [T, T+1], [T+4, T+5])
        a(f"s_mov_b64 exec, 0xffff")
        a.ds(f"ds_write_b64 v{t0}, {P(T)}")
        a(f"s_mov_b64 exec, -1"); yield

    def xst_store():
        a(f"s_or_b32 s{sT0}, s{sJ}, s{sFH}")
        a(f"s_cmp_eq_u32 s{sT0}, 0")
        a(f"v_lshlrev_b32 v{t0}, 3, v{vP}")
        a(f"s_cselect_b64 exec, 0xffff, 0")
        a.vmem(f"buffer_store_dwordx2 {P(vMR)}, v{t0}, s[{sWS}:{sWS+3}], s{sXST} offen")
        a(f"s_mov_b64 exec, -1")
        yield

    sGU = 89
    a(f"s_lshl_b32 s{sGU}, s2, 3")
    a(f"s_add_u32 s{sGU}, s{sGU}, s{sW}")
    def mall_touch(srd, nper, first, count):
        if "nomall" in K1X: return
        a(f"s_mul_i32 s{sT0}, s{sGU}, {nper*128}")
        a(f"s_add_u32 s{sT0}, s{sT0}, {first*128}")
        mask(a, count)
        a.vmem(f"buffer_load_dword v{vDummy}, v{vTO}, s[{srd}:{srd+3}], s{sT0} offen")
        mask(a, 64)

    def l2_touch_wsp(i):
        a(f"s_add_u32 s{sT0}, s{sL2B}, {i*128}")
        mask(a, 8)
        a.vmem(f"buffer_load_dword v{vDummy}, v{vTO2}, s[{sWSP}:{sWSP+3}], s{sT0} offen")
        mask(a, 64)

    def epoch_load():
        a(f"v_mov_b32 v{KX+2}, {WS_EPO}")
        zfin['ep'] = a.vmem(f"buffer_load_dwordx2 {P(KX)}, v{KX+2}, s[{sWS}:{sWS+3}], 0 offen sc1")

    def gen1(f):
        f(); yield

    SP = TMP + 20
    vFA = vXD[0]
    vDummy2 = vPP
    def stats_load():
        a(f"v_lshlrev_b32 v{vFA}, 4, v{vP}")
        a(f"v_lshl_add_u32 v{vFA}, v{vQ}, 11, v{vFA}")
        a.vmem(f"buffer_load_dwordx4 v[{SP}:{SP+3}], v{vFA}, s[{sWS}:{sWS+3}], s{sZRB} offen sc1")
        zfin['sp'] = a.vmem(f"buffer_load_dwordx4 v[{SP+4}:{SP+7}], v{vFA}, s[{sWS}:{sWS+3}], s{sZRB} offen offset:1024 sc1")
    def stats_check():
        a.wait_vm(zfin['sp'])
        lp = a.newlabel("k1_poll"); lp2 = a.newlabel("k1_polled")
        a(f"s_mov_b32 s{sD0}, 0")
        a.label(lp)
        a(f"s_add_u32 s{sD0}, s{sD0}, 1")
        a(f"s_cmp_gt_u32 s{sD0}, 100000")
        a(f"s_cbranch_scc1 {lp2}")
        a(f"v_cmp_ne_u32 vcc, s{sTAG}, v{SP+2}")
        a(f"v_cmp_ne_u32 s[{sT2}:{sT2+1}], s{sTAG+1}, v{SP+3}")
        a(f"s_or_b64 vcc, vcc, s[{sT2}:{sT2+1}]")
        a(f"v_cmp_ne_u32 s[{sT2}:{sT2+1}], s{sTAG}, v{SP+6}")
        a(f"s_or_b64 vcc, vcc, s[{sT2}:{sT2+1}]")
        a(f"v_cmp_ne_u32 s[{sT2}:{sT2+1}], s{sTAG+1}, v{SP+7}")
        a(f"s_or_b64 vcc, vcc, s[{sT2}:{sT2+1}]")
        if 'nopoll' in K1X: a("s_mov_b64 vcc, 0")
        a(f"s_cmp_eq_u64 vcc, 0")
        a(f"s_cbranch_scc1 {lp2}")
        a("s_sleep 4")
        a(f"buffer_load_dwordx4 v[{SP}:{SP+3}], v{vFA}, s[{sWS}:{sWS+3}], s{sZRB} offen sc1")
        a(f"buffer_load_dwordx4 v[{SP+4}:{SP+7}], v{vFA}, s[{sWS}:{sWS+3}], s{sZRB} offen offset:1024 sc1")
        a.vm -= 2
        a("s_waitcnt vmcnt(0)")
        a(f"s_branch {lp}")
        a.label(lp2)
    def z2_normalize():
        vZW = vRP
        a(f"s_lshl_b32 s{sT0}, s{sST}, 4")
        a(f"v_add_u32 v{vZW}, s{sT0}, v{vP}")
        a(f"v_mul_u32_u24 v{vZW}, 200, v{vZW}")
        a(f"v_lshl_add_u32 v{vZW}, v{vQ}, 3, v{vZW}")
        a(f"s_mul_i32 s{sT0}, s{sFH}, 96")
        a(f"s_add_u32 s{sT0}, s{sT0}, {ZT}")
        a(f"v_add_u32 v{vZW}, s{sT0}, v{vZW}")
        stats_check()
        lab = a.newlabel("k1_ep")
        a(f"s_xor_b32 s{sT0}, s{sW}, 1")
        a(f"s_or_b32 s{sT0}, s{sT0}, s{sJ}")
        a(f"s_cmp_lg_u32 s{sT0}, 0")
        a(f"s_cbranch_scc1 {lab}")
        a(f"v_mov_b32 v{t0}, 0")
        a(f"v_mov_b32 v{vDummy2}, 1")
        a(f"s_mov_b64 exec, 1")
        a(f"buffer_atomic_add v{vDummy2}, v{t0}, s[{sDBG}:{sDBG+3}], 0 offen sc0")
        a(f"s_mov_b64 exec, -1")
        a.vm -= 1
        a.label(lab)
        mq = TMP
        a(f"v_pk_add_f32 {P(mq)}, {P(SP)}, {P(SP+4)}")
        run(reduce_g4_multi(a, [mq, mq+1], [TMP+2, TMP+3]))
        a(f"v_mul_f32 v{mq}, {f32(1.0/768):#x}, v{mq}")
        a(f"v_mul_f32 v{mq+1}, {f32(1.0/768):#x}, v{mq+1}")
        a(f"v_fma_f32 v{mq+1}, -v{mq}, v{mq}, v{mq+1}")
        run(ln_finish_gen(a, mq, mq+1, sEPS))
        a(f"v_mov_b32 v{TMP+2}, v{mq+1}")
        for i in range(0, 12, 2):
            a(f"v_pk_add_f32 {P(Z2V+i)}, {P(Z2V+i)}, {P(mq)} op_sel_hi:[1,0] neg_lo:[0,1] neg_hi:[0,1]")
        for i in range(0, 12, 2):
            a(f"v_pk_mul_f32 {P(Z2V+i)}, {P(Z2V+i)}, {P(TMP+2)} op_sel_hi:[1,0]")
        for ft in range(3):
            a(f"v_cvt_pk_bf16_f32 v{TMP+8+2*ft}, v{Z2V+4*ft}, v{Z2V+4*ft+1}")
            a(f"v_cvt_pk_bf16_f32 v{TMP+8+2*ft+1}, v{Z2V+4*ft+2}, v{Z2V+4*ft+3}")
            a.ds(f"ds_write_b64 v{vZW}, {P(TMP+8+2*ft)} offset:{32*ft}")

    PUB = int(os.environ.get("PUB", "6"))
    NF5 = int(os.environ.get("NF5", "5"))
    fill = Filler()
    A, B, C_ = sT0, sT1, sT2
    a(f"s_mul_i32 s{sEXW}, s{sW}, 3072"); a(f"s_add_u32 s{sEXW}, s{sEXW}, {EX}")
    a(f"s_xor_b32 s{A}, s{sW}, 4"); a(f"s_mul_i32 s{sEXR}, s{A}, 3072"); a(f"s_add_u32 s{sEXR}, s{sEXR}, {EX}")
    a(f"s_lshl_b32 s{A}, s{sFH}, 2"); a(f"s_lshl_b32 s{B}, s{sSH}, 1"); a(f"s_add_u32 s{A}, s{A}, s{B}"); a(f"s_add_u32 s{A}, s{A}, s{sKH}")
    a(f"s_mul_i32 s{sCSW}, s{A}, 192"); a(f"s_add_u32 s{sCSW}, s{sCSW}, {CSUM}")
    a(f"s_mul_i32 s{sCSR}, s{sFH}, 768"); a(f"s_add_u32 s{sCSR}, s{sCSR}, {CSUM}")
    a(f"s_lshl_b32 s{A}, s{sST}, 1"); a(f"s_add_u32 s{A}, s{A}, s{sKH}"); a(f"s_lshl_b32 s{A}, s{A}, 7"); a(f"s_add_u32 s{sXSW}, s{A}, {XSUM}")
    a(f"s_lshl_b32 s{A}, s{sST}, 8"); a(f"s_add_u32 s{sXSR}, s{A}, {XSUM}")
    a(f"s_lshl_b32 s{A}, s{sST}, 7"); a(f"s_lshl_b32 s{B}, s{sFH}, 9"); a(f"s_add_u32 s{A}, s{A}, s{B}"); a(f"s_add_u32 s{sZSW}, s{A}, {ZSUM}")
    a(f"s_lshl_b32 s{A}, s{sRB}, 3"); a(f"s_add_u32 s{A}, s{A}, s{sJ}"); a(f"s_lshl_b32 s{B}, s{A}, 10"); a(f"s_add_u32 s{sZPB}, s{B}, {WS_ZST}")
    a(f"s_mul_i32 s{A}, s{A}, 12288"); a(f"s_lshr_b32 s{B}, s{sST}, 1"); a(f"s_mul_i32 s{B}, s{B}, 6144"); a(f"s_add_u32 s{A}, s{A}, s{B}")
    a(f"s_and_b32 s{B}, s{sST}, 1"); a(f"s_lshl_b32 s{B}, s{B}, 8"); a(f"s_add_u32 s{A}, s{A}, s{B}"); a(f"s_add_u32 s{A}, s{A}, {WS_Z1F}")
    for ft, dst in enumerate((sZ1S0, sZ1S1, sZ1S2)):
        a(f"s_mul_i32 s{B}, s{sFH}, 3"); a(f"s_add_u32 s{B}, s{B}, {ft}")
        a(f"s_lshr_b32 s{C_}, s{B}, 1"); a(f"s_lshl_b32 s{C_}, s{C_}, 10"); a(f"s_and_b32 s{B}, s{B}, 1"); a(f"s_lshl_b32 s{B}, s{B}, 3")
        a(f"s_add_u32 s{dst}, s{A}, s{B}"); a(f"s_add_u32 s{dst}, s{dst}, s{C_}")
    a(f"s_lshl_b32 s{A}, s{sRB}, 13"); a(f"s_lshl_b32 s{B}, s{sST}, 8"); a(f"s_add_u32 s{A}, s{A}, s{B}"); a(f"s_add_u32 s{sZRB}, s{A}, {WS_ZST}")
    a(f"s_lshl_b32 s{A}, s{sRB}, 9"); a(f"s_lshl_b32 s{B}, s{sST}, 7"); a(f"s_add_u32 s{A}, s{A}, s{B}"); a(f"s_add_u32 s{sXST}, s{A}, {WS_XST}")
    a(f"s_mul_i32 s{A}, s{sJ}, {80*4096}"); a(f"s_lshl_b32 s{B}, s{sRB}, 7"); a(f"s_add_u32 s{A}, s{A}, s{B}"); a(f"s_add_u32 s{sKVB}, s{A}, {WS_KVT}")
    a(f"s_lshr_b32 s{A}, s2, 3"); a(f"s_lshl_b32 s{A}, s{A}, 3"); a(f"s_add_u32 s{A}, s{A}, s{sW}"); a(f"s_lshl_b32 s{A}, s{A}, 13")
    a(f"s_lshl_b32 s{B}, s{sXC}, 21"); a(f"s_add_u32 s{sL2B}, s{A}, s{B}")
    for rnd in range(2):
        a(f"s_add_u32 s{sT3}, s{sW}, {8*rnd}")
        a(f"s_mul_i32 s{A}, s{sT3}, 43"); a(f"s_lshr_b32 s{A}, s{A}, 7")
        a(f"s_mul_i32 s{B}, s{A}, 3"); a(f"s_sub_u32 s{B}, s{sT3}, s{B}")
        a(f"s_mul_i32 s{A}, s{A}, {16*200}"); a(f"s_lshl_b32 s{B}, s{B}, 6"); a(f"s_add_u32 s{A}, s{A}, s{B}")
        a(f"s_add_u32 s{sZ2L[rnd]}, s{A}, {ZT}")
        a(f"s_lshl_b32 s{A}, s{sJ}, 7"); a(f"s_lshl_b32 s{B}, s{sRB}, 2"); a(f"s_add_u32 s{A}, s{A}, s{B}"); a(f"s_mul_i32 s{A}, s{A}, 3")
        a(f"s_add_u32 s{A}, s{A}, s{sT3}"); a(f"s_lshl_b32 s{A}, s{A}, 10"); a(f"s_add_u32 s{sZ2G[rnd]}, s{A}, {WS_Z2F}")
    if "pro" in K1X: ST("setup")
    a.wait_vm(max(w_last[0], x_last[0]))
    if "pro" in K1X: ST("w0arr")
    a("s_waitcnt lgkmcnt(0)")
    a(f"s_add_u32 s{sTAG}, s{sTAG}, 1")
    a(f"s_addc_u32 s{sTAG+1}, s{sTAG+1}, 0")
    a("s_barrier")
    ST("d0")
    reads(0)
    dma_x(2); dma_w(2)
    for p in range(10):
        a.comment(f"---------------- iteration {p}")
        if p + 1 < 10:
            need = w_last[p+1]
            if p + 1 < 5: need = max(need, x_last[p+1])
            a.wait_vm(need)
        if "f5" in K1X and p in (5, 6): ST(f"w{p}")
        a("s_waitcnt lgkmcnt(0)")
        a("s_barrier")
        if ("pro" not in K1X or p < 2) and ("pubst" not in K1X or p in (6, 7, 8, 9)): ST(f"i{p}")
        if p == PUB:
            lab = a.newlabel("k1_pub")
            a(f"s_cmp_lg_u32 s{sW}, 0")
            a(f"s_cbranch_scc1 {lab}")
            a(f"v_lshlrev_b32 v{t0}, 3, v{vL}")
            a(f"v_add_u32 v{t1}, {ZSUM}, v{t0}")
            a(f"ds_read_b64 {P(TMP)}, v{t1}")
            a(f"ds_read_b64 {P(TMP+4)}, v{t1} offset:512")
            a(f"v_lshlrev_b32 v{t0}, 4, v{vL}")
            a(f"v_mov_b32 v{TMP+2}, s{sTAG}")
            a(f"v_mov_b32 v{TMP+3}, s{sTAG+1}")
            a("s_waitcnt lgkmcnt(0)")
            a(f"v_pk_add_f32 {P(TMP)}, {P(TMP)}, {P(TMP+4)}")
            a.lg -= 2
            a.label(lab)
            a(f"s_cmp_eq_u32 s{sW}, 0")
            a(f"s_cselect_b64 exec, -1, 0")
            a.vmem(f"buffer_store_dwordx4 v[{TMP}:{TMP+3}], v{t0}, s[{sWS}:{sWS+3}], s{sZPB} offen sc1")
            a(f"s_mov_b64 exec, -1")
        if p + 1 < 10 and "nocomp" not in K1X:
            if "rdfirst" in K1X: reads(p + 1)
            else: fill.add(reads_g(p + 1))
        dmaf = Filler()
        if p + 3 < 5: dmaf.add(dma_x_g(p + 3))
        if p + 3 < 10: dmaf.add(dma_w_g(p + 3))
        if p == 5: dmaf.add(kv_dma())
        if 1 <= p <= 8:
            if "l2pf" in K1X: dmaf.add(gen1(lambda p=p: l2_touch_wsp(p-1)))
            else: dmaf.add(gen1(lambda p=p: mall_touch(sWSP, 32, (p-1)*4, 4)))
        if p in (2, 5): dmaf.add(gen1(lambda p=p: mall_touch(sSSM, 10, 0 if p == 2 else 5, 5)))
        if p == 7 and "nowo" not in K1X: dmaf.add(gen1(lambda: mall_touch(sWOU, 4, 0, 4)))
        if p == int(os.environ.get('SLD', '9')): stats_load()
        nf = 0 if "rdfirst" in K1X else 2
        if p == 5:
            if "f5" in K1X: ST("f5a")
            fold_gelu(0, Z2V, TMP, TMP+12, [TMP+16, ACC, ACC+12, CSA])
            if "f5" in K1X: ST("f5b")
            run(z2_stats()); run(xst_store())
            if "f5" in K1X: ST("f5c")
        if "nocomp" in K1X:
            dmaf.drain(); fill.q = []
        else:
            mfmas(p, fill, nf, dmaf)
            fill.drain()
        if "f5" in K1X and p in (4, 5): ST(f"f{p}m")
        if p == 4: exchange_write(0, Z2V)
        if p == 9:
            if "f5" in K1X: ST("f9m")
            exchange_write(1, WF)
            kv_loads()
            run(kv_compute())
            if "f5" in K1X: ST("f9k")
            z2_normalize()
    ST("loop")
    vZR = vWA[0][1]; vZS = vWA[0][2]
    a(f"v_lshrrev_b32 v{vZR}, 1, v{vQ}")
    a(f"v_lshrrev_b32 v{t1}, 2, v{vP}")
    a(f"v_lshl_add_u32 v{vZR}, v{vZR}, 3, v{t1}")
    a(f"v_mul_u32_u24 v{vZR}, 200, v{vZR}")
    a(f"v_and_b32 v{t1}, 1, v{vQ}")
    a(f"v_lshl_add_u32 v{vZR}, v{t1}, 5, v{vZR}")
    a(f"v_and_b32 v{t1}, 3, v{vP}")
    a(f"v_lshl_add_u32 v{vZR}, v{t1}, 3, v{vZR}")
    a(f"v_lshlrev_b32 v{vZS}, 4, v{vL}")
    a("s_waitcnt lgkmcnt(0)")
    a("s_barrier")
    ST("bar")
    for rnd in range(2):
        lab = None
        if rnd == 1:
            lab = a.newlabel("k1_fr")
            a(f"s_cmp_ge_u32 s{sW}, 4")
            a(f"s_cbranch_scc1 {lab}")
        a(f"v_add_u32 v{t1}, s{sZ2L[rnd]}, v{vZR}")
        Tq = TMP + 4*rnd
        a(f"ds_read_b64_tr_b16 {P(Tq)}, v{t1}")
        a(f"ds_read_b64_tr_b16 {P(Tq+2)}, v{t1} offset:800")
        a("s_waitcnt lgkmcnt(0)")
        a(f"buffer_store_dwordx4 v[{Tq}:{Tq+3}], v{vZS}, s[{sWS}:{sWS+3}], s{sZ2G[rnd]} offen")
        if lab: a.label(lab)
    run(kv_store())
    Z1V = WF
    T2 = XF
    fold_gelu(1, Z1V, T2, T2+12, [T2+16, T2+28, T2+40, T2+52])
    a(f"v_lshrrev_b32 v{t0}, 1, v{vQ}")
    a(f"v_mul_u32_u24 v{t0}, 3072, v{t0}")
    a(f"v_and_b32 v{t1}, 1, v{vQ}")
    a(f"v_lshlrev_b32 v{t1}, 5, v{t1}")
    a(f"v_add_u32 v{t1}, v{t1}, v{vP}")
    a(f"v_lshl_add_u32 v{t0}, v{t1}, 4, v{t0}")
    for ft in range(3):
        a(f"v_cvt_pk_bf16_f32 v{T2+2*ft}, v{Z1V+4*ft}, v{Z1V+4*ft+1}")
        a(f"v_cvt_pk_bf16_f32 v{T2+2*ft+1}, v{Z1V+4*ft+2}, v{Z1V+4*ft+3}")
        a.vmem(f"buffer_store_dwordx2 {P(T2+2*ft)}, v{t0}, s[{sWS}:{sWS+3}], s{[sZ1S0, sZ1S1, sZ1S2][ft]} offen")
    lab = a.newlabel("k1_ep2")
    a(f"s_xor_b32 s{sT0}, s{sW}, 1")
    a(f"s_or_b32 s{sT0}, s{sT0}, s{sJ}")
    a(f"s_cmp_lg_u32 s{sT0}, 0")
    a(f"s_cbranch_scc1 {lab}")
    a("s_waitcnt vmcnt(0)")
    a(f"v_readfirstlane_b32 s{sT0}, v{vDummy2}")
    a(f"s_cmp_lg_u32 s{sT0}, 31")
    a(f"s_cbranch_scc1 {lab}")
    a(f"v_mov_b32 v{TMP}, s{sTAG}")
    a(f"v_mov_b32 v{TMP+1}, s{sTAG+1}")
    a(f"v_mov_b32 v{t0}, {WS_EPO}")
    a(f"s_mov_b64 exec, 1")
    a(f"buffer_store_dwordx2 {P(TMP)}, v{t0}, s[{sWS}:{sWS+3}], 0 offen sc1")
    a(f"s_mov_b64 exec, -1")
    a.label(lab)
    ST("end")
    ST.dump(sWS, sW, t0, t1, WS_DBG)
    gen_k1.stamp_names = ST.names
    a.label(f"{name}_end")
    a("s_endpgm")
    if "st2" in K1X:
        a.items = [(k, (t + " sc1") if (k == "i" and t.startswith("buffer_store_dwordx4") and " sc1" not in t) else t) for k, t in a.items]
    if "st1" in K1X:
        a.items = [(k, (t + " sc1") if (k == "i" and t.startswith("buffer_store") and " sc1" not in t) else t) for k, t in a.items]
    gen_k1.ninstr = sum(1 for k, _ in a.items if k == "i")
    return a.finish(), V.hi
```

```python
from dsl import *
from layout import *
from k1 import f32, Filler, run, mask, P
import os
K2X = os.environ.get('K2X', '')

ZDEPTH = int(os.environ.get('ZD', '4'))
CS_ = 4160
TOEP = 0
OZ = 1
UZ = 32
UB = 8 * CS_
PB = UB + 4608
PT_ = 8192
WJ = PB + 4*PT_
assert WJ + 5120 <= 81920

def gen_gemm(a, V, ST, prof):
    sWSP, sWS, sBSP = 4, 8, 12
    sRB, sJ, sW = 32, 33, 34
    sT0, sT1, sT2, sT3 = 40, 41, 42, 43
    sZ, sWB, sLB = 44, 45, 46
    a(f"s_load_dwordx2 s[{sWSP}:{sWSP+1}], s[0:1], {KA['wsp']}")
    a(f"s_load_dwordx2 s[{sWS}:{sWS+1}], s[0:1], {KA['ws']}")
    a(f"s_load_dwordx2 s[{sBSP}:{sBSP+1}], s[0:1], {KA['bsp']}")
    vL = V(); t0, t1, t2 = V(), V(), V()
    a(f"v_lshrrev_b32 v{t0}, 6, v0")
    a(f"v_and_b32 v{vL}, 63, v0")
    a(f"v_readfirstlane_b32 s{sW}, v{t0}")
    for srd, size in ((sWSP, SZ_WSP), (sWS, WS_SIZE_DBG if prof else WS_END), (sBSP, 4096)):
        a(f"s_mov_b32 s{srd+2}, {size}")
        a(f"s_mov_b32 s{srd+3}, {SRD3:#x}")
    a(f"s_and_b32 s{sT0}, s2, 7")
    a(f"s_lshr_b32 s{sT1}, s2, 3")
    a(f"s_and_b32 s{sT1}, s{sT1}, 31")
    a(f"s_lshr_b32 s{sRB}, s{sT0}, 1")
    a(f"s_lshl_b32 s{sRB}, s{sRB}, 3")
    a(f"s_and_b32 s{sT2}, s{sT1}, 7")
    a(f"s_add_u32 s{sRB}, s{sRB}, s{sT2}")
    a(f"s_and_b32 s{sJ}, s{sT0}, 1")
    a(f"s_lshl_b32 s{sJ}, s{sJ}, 2")
    a(f"s_lshr_b32 s{sT2}, s{sT1}, 3")
    a(f"s_add_u32 s{sJ}, s{sJ}, s{sT2}")
    a(f"s_lshl_b32 s{sZ}, s{sJ}, 7")
    a(f"s_lshl_b32 s{sT0}, s{sW}, 5")
    a(f"s_add_u32 s{sZ}, s{sZ}, s{sT0}")
    a(f"s_mul_i32 s{sZ}, s{sZ}, 3072")
    a(f"s_add_u32 s{sZ}, s{sZ}, {WS_Z2F}")
    a(f"s_lshl_b32 s{sWB}, s{sRB}, 18")
    a(f"s_lshl_b32 s{sT0}, s{sW}, 10")
    a(f"s_add_u32 s{sWB}, s{sWB}, s{sT0}")
    a(f"s_lshl_b32 s{sLB}, s{sW}, 14")
    vZ = V()
    a(f"v_lshlrev_b32 v{vZ}, 4, v{vL}")
    vWE, vWO = V(), V()
    a(f"v_lshrrev_b32 v{t0}, 3, v{vL}")
    a(f"v_lshlrev_b32 v{t0}, 12, v{t0}")
    a(f"v_and_b32 v{t1}, 7, v{vL}")
    a(f"v_lshrrev_b32 v{t2}, 4, v{vL}")
    a(f"v_xor_b32 v{t1}, v{t1}, v{t2}")
    a(f"v_lshl_add_u32 v{vWE}, v{t1}, 4, v{t0}")
    a(f"v_xor_b32 v{vWO}, 64, v{vWE}")
    sROT = 50
    if "rot" in K2X:
        a(f"s_and_b32 s{sROT}, s{sJ}, 3")
        a(f"s_lshl_b32 s{sROT}, s{sROT}, 1")
        a(f"s_add_u32 s{sROT}, s{sROT}, s{sRB}")
        a(f"s_and_b32 s{sROT}, s{sROT}, 7")
    else: a(f"s_mov_b32 s{sROT}, 0")
    def chunk(c, dst):
        a(f"s_add_u32 s{dst}, s{sROT}, {c}")
        a(f"s_and_b32 s{dst}, s{dst}, 7")
    ACC = V(96, 4)
    def acc(ft, tt): return ACC + (ft*2 + tt)*16
    ZF = V((ZDEPTH+1)*12, 4)
    def zf(ks, ft): return ZF + ((ks % (ZDEPTH+1))*3 + ft)*4
    WFr = V(16, 4)
    def wfr(b, tt): return WFr + (b*2 + tt)*4
    z_id = {}; w_id = {}
    sZc = [52, 53]; sWc = [54, 55]
    def z_base(c):
        chunk(c, sZc[c & 1])
        a(f"s_mul_i32 s{sZc[c & 1]}, s{sZc[c & 1]}, 12288")
        a(f"s_add_u32 s{sZc[c & 1]}, s{sZc[c & 1]}, s{sZ}")
    def w_base(c):
        chunk(c, sWc[c & 1])
        a(f"s_lshl_b32 s{sWc[c & 1]}, s{sWc[c & 1]}, 7")
        a(f"s_add_u32 s{sWc[c & 1]}, s{sWc[c & 1]}, s{sWB}")
    def load_z_g(ks):
        c = ks // 4
        if ks % 4 == 0: z_base(c)
        for ft in range(3):
            so = sZc[c & 1]
            if ks % 4:
                a(f"s_add_u32 s{sT1}, s{sZc[c & 1]}, {(ks%4)*3072}"); so = sT1
            z_id[(ks, ft)] = a.vmem(f"buffer_load_dwordx4 v[{zf(ks,ft)}:{zf(ks,ft)+3}], v{vZ}, s[{sWS}:{sWS+3}], s{so} offen offset:{ft*1024}")
            yield
    def dma_w_g(c, lo, hi):
        sl = c & 1
        if lo == 0: w_base(c)
        for i in range(lo, hi):
            a(f"s_add_u32 s{sT2}, s{sWc[c & 1]}, {i*8*4096}")
            a(f"s_add_u32 m0, s{sLB}, {sl*8192 + i*1024}")
            w_id[c] = a.vmem(f"buffer_load_dwordx4 v{vWE if i % 2 == 0 else vWO}, s[{sWSP}:{sWSP+3}], s{sT2} offen lds")
            yield
    a("s_waitcnt lgkmcnt(0)")
    ST("g_kernarg")
    run(load_z_g(0)); run(dma_w_g(0, 0, 8))
    for ks in range(1, ZDEPTH): run(load_z_g(ks))
    vWA = [V() for _ in range(4)]
    a(f"v_and_b32 v{t0}, 31, v{vL}")
    a(f"v_lshrrev_b32 v{t1}, 1, v{t0}")
    a(f"v_and_b32 v{t1}, 7, v{t1}")
    a(f"v_lshrrev_b32 v{t2}, 5, v{vL}")
    a(f"v_xor_b32 v{t1}, v{t1}, v{t2}")
    a(f"v_lshl_add_u32 v{t0}, v{t0}, 7, s{sLB}")
    for kk in range(4):
        a(f"v_xor_b32 v{t2}, {2*kk}, v{t1}")
        a(f"v_lshl_add_u32 v{vWA[kk]}, v{t2}, 4, v{t0}")
    Z1 = V(12, 4); vB = V()
    ep = {}
    def epi_loads():
        a(f"s_lshl_b32 s{sT0}, s{sRB}, 3")
        a(f"s_add_u32 s{sT0}, s{sT0}, s{sJ}")
        a(f"s_lshl_b32 s{sT0}, s{sT0}, 2")
        a(f"s_add_u32 s{sT0}, s{sT0}, s{sW}")
        a(f"s_mul_i32 s{sT0}, s{sT0}, 3072")
        a(f"s_add_u32 s{sT0}, s{sT0}, {WS_Z1F}")
        for ft in range(3):
            a.vmem(f"buffer_load_dwordx4 v[{Z1+4*ft}:{Z1+4*ft+3}], v{vZ}, s[{sWS}:{sWS+3}], s{sT0} offen offset:{ft*1024}")
            yield
        a(f"v_and_b32 v{t0}, 31, v{vL}")
        a(f"v_lshlrev_b32 v{t0}, 1, v{t0}")
        a(f"s_lshr_b32 s{sT0}, s{sW}, 1")
        a(f"s_lshl_b32 s{sT0}, s{sT0}, 6")
        a(f"s_lshl_b32 s{sT3}, s{sRB}, 7")
        a(f"s_add_u32 s{sT0}, s{sT0}, s{sT3}")
        ep['b'] = a.vmem(f"buffer_load_ushort v{vB}, v{t0}, s[{sBSP}:{sBSP+3}], s{sT0} offen")
        yield
    def read_w(ks):
        c = ks // 4; kk = ks % 4; b = ks & 1
        ids = []
        for tt in range(2):
            ids.append(a.ds(f"ds_read_b128 v[{wfr(b,tt)}:{wfr(b,tt)+3}], v{vWA[kk]} offset:{(c&1)*8192 + tt*4096}"))
        return ids[-1]
    a.wait_vm(w_id[0])
    ST("g_w0")
    if "noprio" not in K2X: a("s_setprio 2")
    rd = {0: read_w(0)}
    for ks in range(32):
        c = ks // 4
        if ks % 4 == 0 and "cst" in K2X: ST(f"c{c}")
        a.wait_vm(z_id[(ks, 2)])
        a.wait_lg(rd[ks])
        fl = Filler()
        def rdw(k=ks):
            if (k + 1) % 4 == 0: a.wait_vm(w_id[(k + 1)//4])
            rd[k + 1] = read_w(k + 1)
            yield
        if ks + 1 < 32: fl.add(rdw())
        if ks + ZDEPTH < 32: fl.add(load_z_g(ks + ZDEPTH))
        if ks == 0: fl.add(dma_w_g(1, 0, 4))
        if ks == 1: fl.add(dma_w_g(1, 4, 8))
        for n in range(2, 8):
            if ks == 4*(n-1) - 1: fl.add(dma_w_g(n, 0, 2))
            if ks == 4*(n-1): fl.add(dma_w_g(n, 2, 5))
            if ks == 4*(n-1) + 1: fl.add(dma_w_g(n, 5, 8))
        if ks == 30: fl.add(epi_loads())
        b = ks & 1
        for ft in range(3):
            for tt in range(2):
                cc = "0" if ks == 0 else f"v[{acc(ft,tt)}:{acc(ft,tt)+15}]"
                if not ("nomfma" in K2X and ks > 0):
                    a(f"v_mfma_f32_32x32x16_bf16 v[{acc(ft,tt)}:{acc(ft,tt)+15}], v[{zf(ks,ft)}:{zf(ks,ft)+3}], v[{wfr(b,tt)}:{wfr(b,tt)+3}], {cc}")
                fl.step(1)
        fl.drain()
    ST("g_loop")
    a("s_setprio 0")
    OWN = ZF
    lend = a.newlabel("g_epi_end")
    labs = [a.newlabel("g_epi") for _ in range(4)]
    a(f"v_add_u32 v{t2}, 0x10000, v{vZ}")
    a("s_nop 15")
    a("s_barrier")
    lg0 = a.lg
    for w in range(4):
        if w < 3:
            a(f"s_cmp_lg_u32 s{sW}, {w}")
            a(f"s_cbranch_scc1 {labs[w]}")
        a.lg = lg0
        for d in range(4):
            if d == w: continue
            tt = d >> 1; g0 = d & 1
            k = (w - d - 1) & 3
            for ft in range(3):
                for gh in range(2):
                    r = acc(ft, tt) + 4*(g0 + 2*gh)
                    off = d*18432 + k*6144 + (ft*2+gh)*1024
                    if off >= 65536: a.ds(f"ds_write_b128 v{t2}, v[{r}:{r+3}] offset:{off - 65536}")
                    else: a.ds(f"ds_write_b128 v{vZ}, v[{r}:{r+3}] offset:{off}")
        tt = w >> 1; g0 = w & 1
        for ft in range(3):
            for gh in range(2):
                r = acc(ft, tt) + 4*(g0 + 2*gh)
                for e in range(0, 4, 2):
                    a(f"v_pk_add_f32 {P(OWN + (ft*2+gh)*4 + e)}, {P(r+e)}, 0")
        if w < 3:
            a(f"s_branch {lend}")
            a.label(labs[w])
    a.label(lend)
    return_epi = True
    a("s_waitcnt lgkmcnt(0)")
    a("s_barrier")
    PT = ACC
    a(f"s_mul_i32 s{sT0}, s{sW}, 18432")
    a(f"v_add_u32 v{t0}, s{sT0}, v{vZ}")
    for k in range(3):
        for q in range(6):
            a.ds(f"ds_read_b128 v[{PT + (k*6+q)*4}:{PT + (k*6+q)*4 + 3}], v{t0} offset:{k*6144 + q*1024}")
    vSt = vWE
    a(f"v_lshrrev_b32 v{vSt}, 4, v{vL}")
    a(f"v_and_b32 v{vSt}, 1, v{vSt}")
    a(f"v_mul_u32_u24 v{vSt}, {24*1024}, v{vSt}")
    a(f"v_and_b32 v{t1}, 15, v{vL}")
    a(f"v_lshrrev_b32 v{t2}, 5, v{vL}")
    a(f"v_lshl_add_u32 v{t1}, v{t2}, 4, v{t1}")
    a(f"v_lshl_add_u32 v{vSt}, v{t1}, 4, v{vSt}")
    a(f"s_mul_i32 s{sT0}, s{sRB}, {4*24*1024}")
    a(f"s_lshr_b32 s{sT1}, s{sW}, 1")
    a(f"s_mul_i32 s{sT1}, s{sT1}, {2*24*1024}")
    a(f"s_add_u32 s{sT0}, s{sT0}, s{sT1}")
    a(f"s_mul_i32 s{sT1}, s{sJ}, 3072")
    a(f"s_add_u32 s{sT0}, s{sT0}, s{sT1}")
    a(f"s_and_b32 s{sT1}, s{sW}, 1")
    a(f"s_lshl_b32 s{sT1}, s{sT1}, 9")
    a(f"s_add_u32 s{sT0}, s{sT0}, s{sT1}")
    a(f"s_add_u32 s{sT0}, s{sT0}, {WS_PF}")
    a.wait_vm(ep['b'])
    vB2 = vWA[0] if vWA[0] % 2 == 0 else vWA[1]
    a(f"v_lshlrev_b32 v{vB2}, 16, v{vB}")
    ZU = PT + 72
    for i in range(12):
        a(f"v_lshlrev_b32 v{ZU+2*i}, 16, v{Z1+i}")
        a(f"v_and_b32 v{ZU+2*i+1}, 0xffff0000, v{Z1+i}")
    for k in range(3):
        a(f"s_waitcnt lgkmcnt({min(15, 12 - 6*k)})")
        for i in range(0, 24, 2):
            a(f"v_pk_add_f32 {P(OWN+i)}, {P(OWN+i)}, {P(PT+k*24+i)}")
    for i in range(0, 24, 2):
        a(f"v_pk_add_f32 {P(OWN+i)}, {P(OWN+i)}, {P(vB2)} op_sel_hi:[1,0]")
    for i in range(0, 24, 2):
        a(f"v_pk_mul_f32 {P(OWN+i)}, {P(OWN+i)}, {P(ZU+i)}")
    OUT = PT
    for ft in range(3):
        for i in range(4):
            a(f"v_cvt_pk_bf16_f32 v{OUT+4*ft+i}, v{OWN+8*ft+2*i}, v{OWN+8*ft+2*i+1}")
        a.vmem(f"buffer_store_dwordx4 v[{OUT+4*ft}:{OUT+4*ft+3}], v{vSt}, s[{sWS}:{sWS+3}], s{sT0} offen offset:{ft*1024}" + (" sc1" if "psc1" in K2X else ""))
    ST("g_end")
    ST.dump(sWS, sW, t0, t1, WS_DBG + 0x200000)

def gen_conv(a, V, ST, prof, name):
    sSSM, sWS, sDv, sWSP, sWO = 4, 8, 12, 16, 20
    sC, sW, sCH = 32, 34, 35
    sT0, sT1, sT2, sT3 = 40, 41, 42, 43
    a(f"s_load_dwordx2 s[{sSSM}:{sSSM+1}], s[0:1], {KA['ssmk']}")
    a(f"s_load_dwordx2 s[{sWS}:{sWS+1}], s[0:1], {KA['ws']}")
    a(f"s_load_dwordx2 s[{sDv}:{sDv+1}], s[0:1], {KA['ssmD']}")
    a(f"s_load_dwordx2 s[{sWSP}:{sWSP+1}], s[0:1], {KA['wsp']}")
    a(f"s_load_dwordx2 s[{sWO}:{sWO+1}], s[0:1], {KA['wout']}")
    vL = V(); vT = V(); t0, t1, t2 = V(), V(), V()
    a(f"v_lshrrev_b32 v{t0}, 6, v0")
    a(f"v_and_b32 v{vL}, 63, v0")
    a(f"v_readfirstlane_b32 s{sW}, v{t0}")
    for srd, size in ((sSSM, SZ_SSMK), (sWS, WS_SIZE_DBG if prof else WS_END), (sDv, 1280), (sWSP, SZ_WSP), (sWO, SZ_WOUT)):
        a(f"s_mov_b32 s{srd+2}, {size}")
        a(f"s_mov_b32 s{srd+3}, {SRD3:#x}")
    a(f"s_mov_b32 s{sC}, s2")
    a(f"v_lshlrev_b32 v{vT}, 4, v0")
    NCH = 3
    HR = V(8*NCH, 4); UR = V(4*NCH, 4); DR = V(NCH)
    vTm = V()
    a(f"v_subrev_u32 v{vTm}, 16, v{vT}")
    sCHN = [56, 57, 58]
    a(f"s_mov_b32 s{sCHN[0]}, s2")
    a(f"s_add_u32 s{sCHN[1]}, s2, 256")
    a(f"s_lshr_b32 s{sCHN[2]}, s2, 1")
    a(f"s_add_u32 s{sCHN[2]}, s{sCHN[2]}, 512")
    ld = {}
    def loads(i):
        a(f"s_lshl_b32 s{sT0}, s{sCHN[i]}, 12")
        a.vmem(f"buffer_load_dwordx4 v[{HR+8*i+4}:{HR+8*i+7}], v{vT}, s[{sSSM}:{sSSM+3}], s{sT0} offen")
        a.vmem(f"buffer_load_dwordx4 v[{HR+8*i}:{HR+8*i+3}], v{vTm}, s[{sSSM}:{sSSM+3}], s{sT0} offen")
        a(f"s_add_u32 s{sT0}, s{sT0}, {WS_KVT}")
        a.vmem(f"buffer_load_dwordx4 v[{UR+4*i}:{UR+4*i+3}], v{vT}, s[{sWS}:{sWS+3}], s{sT0} offen")
        a(f"s_lshl_b32 s{sT0}, s{sCHN[i]}, 1")
        a(f"v_mov_b32 v{t0}, 0")
        ld[i] = a.vmem(f"buffer_load_ushort v{DR+i}, v{t0}, s[{sDv}:{sDv+3}], s{sT0} offen")
    a("s_waitcnt lgkmcnt(0)")
    ST("c_kernarg")
    loads(0)
    vTW, vTZ, vDm = V(), V(), V()
    sU, sTWB, sTZB = 47, 52, 53
    a(f"s_lshr_b32 s{sU}, s2, 3")
    a(f"s_lshl_b32 s{sU}, s{sU}, 2")
    a(f"s_add_u32 s{sU}, s{sU}, s{sW}")
    a(f"s_mul_i32 s{sT0}, s{sU}, 12")
    a(f"v_add_u32 v{t0}, s{sT0}, v{vL}")
    a(f"v_mul_u32_u24 v{t1}, 43691, v{t0}")
    a(f"v_lshrrev_b32 v{t1}, 22, v{t1}")
    a(f"v_mul_u32_u24 v{t2}, 96, v{t1}")
    a(f"v_sub_u32 v{t0}, v{t0}, v{t2}")
    a(f"v_mul_u32_u24 v{t1}, 98304, v{t1}")
    a(f"v_lshl_add_u32 v{vTZ}, v{t0}, 7, v{t1}")
    a(f"s_and_b32 s{sT0}, s2, 7")
    a(f"s_lshr_b32 s{sTWB}, s{sT0}, 1")
    a(f"s_lshl_b32 s{sTWB}, s{sTWB}, 21")
    a(f"s_and_b32 s{sTZB}, s{sT0}, 1")
    a(f"s_mul_i32 s{sTZB}, s{sTZB}, {4*393216}")
    a(f"s_add_u32 s{sTZB}, s{sTZB}, {WS_Z2F}")
    a(f"s_lshl_b32 s{sT0}, s{sU}, 4")
    a(f"v_add_u32 v{t0}, s{sT0}, v{vL}")
    a(f"v_lshrrev_b32 v{t1}, 2, v{t0}")
    a(f"v_lshlrev_b32 v{t1}, 12, v{t1}")
    a(f"v_and_b32 v{t0}, 3, v{t0}")
    a(f"v_lshl_add_u32 v{vTW}, v{t0}, 10, v{t1}")
    def touch(c, w=True):
        if "notouch" in K2X: return
        a(f"s_add_u32 s{sT0}, s{sTZB}, {c*12288}")
        a(f"s_mov_b64 exec, 0xfff")
        a.vmem(f"buffer_load_dword v{vDm}, v{vTZ}, s[{sWS}:{sWS+3}], s{sT0} offen")
        if w and "notw" not in K2X:
            a(f"s_add_u32 s{sT0}, s{sTWB}, {c*128}")
            a(f"s_mov_b64 exec, 0xffff")
            a.vmem(f"buffer_load_dword v{vDm}, v{vTW}, s[{sWSP}:{sWSP+3}], s{sT0} offen")
        a(f"s_mov_b64 exec, -1")
    NUP = int(os.environ.get('NUP', '2'))
    for c_ in range(NUP): touch(c_)
    Zr = V(4, 4)
    for e in range(4): a(f"v_mov_b32 v{Zr+e}, 0")
    a(f"v_mul_u32_u24 v{t0}, {CS_}, v0")
    a(f"v_cmp_gt_u32 vcc, 64, v0")
    a(f"s_and_saveexec_b64 s[50:51], vcc")
    lz = a.newlabel("c_z")
    a(f"s_cbranch_execz {lz}")
    a(f"v_subrev_u32 v{t1}, {32*16 - UB}, v{vT}")
    a(f"v_cmp_gt_u32 vcc, 8, v0")
    a(f"v_cndmask_b32 v{t1}, v{t1}, v{t0}, vcc")
    a(f"v_add_u32 v{t2}, -8, v0")
    a(f"v_cmp_lt_u32 vcc, 23, v{t2}")
    a(f"s_and_b64 exec, exec, vcc")
    a.ds(f"ds_write_b128 v{t1}, v[{Zr}:{Zr+3}]")
    a.label(lz)
    a(f"s_mov_b64 exec, s[50:51]")
    vTW_ = V()
    a(f"v_add_u32 v{vTW_}, {OZ*16 + TOEP}, v{vT}")
    vUW = V()
    a(f"v_add_u32 v{vUW}, {UB + UZ*16}, v{vT}")
    vA = V()
    a(f"v_and_b32 v{t0}, 7, v{vL}")
    a(f"v_mul_u32_u24 v{t0}, {CS_}, v{t0}")
    a(f"v_bfe_u32 v{t1}, v{vL}, 3, 1")
    a(f"v_lshrrev_b32 v{t2}, 4, v{vL}")
    a(f"v_sub_u32 v{t1}, v{t1}, v{t2}")
    a(f"v_add_u32 v{t1}, 3, v{t1}")
    a(f"v_lshl_add_u32 v{vA}, v{t1}, 4, v{t0}")
    vBq = V()
    a(f"v_and_b32 v{t0}, 15, v{vL}")
    a(f"v_lshl_add_u32 v{t0}, v{t0}, 1, v{t2}")
    a(f"v_lshlrev_b32 v{vBq}, 4, v{t0}")
    a(f"v_add_u32 v{vBq}, {UB}, v{vBq}")
    DM = V(4, 4)
    a(f"v_and_b32 v{t0}, 15, v{vL}")
    a(f"v_lshlrev_b32 v{t1}, 3, v{t2}")
    a(f"v_sub_u32 v{t1}, v{t1}, v{t0}")
    a(f"v_add_u32 v{t1}, -9, v{t1}")
    vK0, vK1 = V(), V()
    a(f"v_mov_b32 v{vK0}, 0xffff"); a(f"v_mov_b32 v{vK1}, 0xffff0000")
    for dw in range(4):
        a(f"v_cmp_eq_u32 vcc, {2*dw}, v{t1}")
        a(f"v_cndmask_b32 v{DM+dw}, 0, v{vK0}, vcc")
        a(f"v_cmp_eq_u32 vcc, {2*dw + 1}, v{t1}")
        a(f"v_cndmask_b32 v{DM+dw}, v{DM+dw}, v{vK1}, vcc")
    vPW = V()
    a(f"v_and_b32 v{t0}, 15, v{vL}")
    a(f"v_lshlrev_b32 v{t0}, 6, v{t0}")
    a(f"v_lshl_add_u32 v{t0}, v{t2}, 4, v{t0}")
    a(f"s_lshl_b32 s{sT0}, s{sW}, 13")
    a(f"s_add_u32 s{sT0}, s{sT0}, {PB}")
    a(f"v_add_u32 v{vPW}, s{sT0}, v{t0}")
    vPR = V()
    a(f"v_lshlrev_b32 v{vPR}, 5, v0")
    a(f"v_add_u32 v{vPR}, {PB}, v{vPR}")
    ACC = V(32, 4)
    AF = V(12, 4); BF = V(64, 4)
    EW = V(8, 4); TQ = V(4, 4); DG = V(4, 4)

    def mfma_block(w, tiles, touches):
        tq = list(touches)
        started = set()
        seq = []
        for r in range(2):
            q0 = 2*w + r
            dmin = 0
            ips = [ip for ip in range(8) if any(T >= ip for T in tiles)]
            seq += [(r, ip) for ip in ips]
        bid = {}
        def need_d(r): return sorted({T - ip for (rr, ip) in seq if rr == r for T in tiles if T >= ip})
        def read_b(r):
            q0 = 2*w + r
            for d in need_d(r):
                m = 8*d - q0
                bid[(r, d)] = a.ds(f"ds_read_b128 v[{BF+(r*8+d)*4}:{BF+(r*8+d)*4+3}], v{vBq} offset:{(4*m - 2 + UZ)*16}")
        aid = {}
        def read_a(n):
            r, ip = seq[n]
            q = 2*w + r + 8*ip
            aid[n] = a.ds(f"ds_read_b128 v[{AF+(n%3)*4}:{AF+(n%3)*4+3}], v{vA} offset:{64*q}")
        read_a(0); read_b(0); read_a(1)
        for n, (r, ip) in enumerate(seq):
            if n + 2 < len(seq): read_a(n + 2)
            if n == 2: read_b(1)
            last = max([aid[n]] + [bid[(r, T - ip)] for T in tiles if T >= ip])
            a.wait_lg(last)
            q0 = 2*w + r
            for T in sorted(tiles, reverse=True):
                if T < ip: continue
                c = f"v[{ACC+4*T}:{ACC+4*T+3}]" if T in started else "0"; started.add(T)
                a(f"v_mfma_f32_16x16x32_bf16 v[{ACC+4*T}:{ACC+4*T+3}], v[{AF+(n%3)*4}:{AF+(n%3)*4+3}], v[{BF+(r*8+T-ip)*4}:{BF+(r*8+T-ip)*4+3}], {c}")
            if q0 == 0 and ip == 0:
                for T in tiles:
                    a(f"v_mfma_f32_16x16x32_bf16 v[{ACC+4*T}:{ACC+4*T+3}], v[{DG}:{DG+3}], v[{BF+(r*8+T)*4}:{BF+(r*8+T)*4+3}], v[{ACC+4*T}:{ACC+4*T+3}]")
            if tq and n % 2 == 1: touch(tq.pop(0))
        for T in tiles:
            a.ds(f"ds_write_b128 v{vPW}, v[{ACC+4*T}:{ACC+4*T+3}] offset:{T*1024}")
    def finalize(i, tiles):
        regs = [BF, BF+8, BF+16, BF+24]
        full = len(tiles) == 8
        if not full:
            lab = a.newlabel("c_fm")
            a(f"s_mov_b64 exec, 0")
            for w in range(4):
                lo = 0xffffffff if 2*w in tiles else 0
                hi = 0xffffffff if 2*w + 1 in tiles else 0
                a(f"s_cmp_eq_u32 s{sW}, {w}")
                a(f"s_cselect_b32 exec_lo, {lo if lo == 0 else -1}, exec_lo")
                a(f"s_cselect_b32 exec_hi, {hi if hi == 0 else -1}, exec_hi")
            lskip = a.newlabel("c_fskip")
            a(f"s_cbranch_execz {lskip}")
        for k in range(4):
            a.ds(f"ds_read_b128 v[{regs[k]}:{regs[k]+3}], v{vPR} offset:{k*PT_}")
            a.ds(f"ds_read_b128 v[{regs[k]+4}:{regs[k]+7}], v{vPR} offset:{k*PT_ + 16}")
        a(f"s_lshl_b32 s{sT0}, s{sCHN[i]}, 12")
        a(f"s_add_u32 s{sT0}, s{sT0}, {WS_YT}")
        a("s_waitcnt lgkmcnt(0)")
        for e in range(0, 8, 2):
            a(f"v_pk_add_f32 {P(regs[0]+e)}, {P(regs[0]+e)}, {P(regs[1]+e)}")
            a(f"v_pk_add_f32 {P(regs[2]+e)}, {P(regs[2]+e)}, {P(regs[3]+e)}")
        for e in range(0, 8, 2):
            a(f"v_pk_add_f32 {P(regs[0]+e)}, {P(regs[0]+e)}, {P(regs[2]+e)}")
        for e in range(4):
            a(f"v_cvt_pk_bf16_f32 v{TQ+e}, v{regs[0]+2*e}, v{regs[0]+2*e+1}")
        a(f"buffer_store_dwordx4 v[{TQ}:{TQ+3}], v{vT}, s[{sWS}:{sWS+3}], s{sT0} offen" + (" sc1" if "ysc1" in K2X else ""))
        a.vm -= 1
        if not full:
            a.label(lskip)
            a(f"s_mov_b64 exec, -1")
        a("s_nop 1")

    def per_wave(variants):
        lend = a.newlabel("c_pw_end"); labs = [a.newlabel("c_pw") for _ in range(4)]
        lg0, vm0 = a.lg, a.vm
        lgmax, vmmin = lg0, None
        for w in range(4):
            if w < 3:
                a(f"s_cmp_lg_u32 s{sW}, {w}")
                a(f"s_cbranch_scc1 {labs[w]}")
            a.lg, a.vm = lg0, vm0
            variants[w]()
            lgmax = max(lgmax, a.lg); vmmin = a.vm if vmmin is None else min(vmmin, a.vm)
            if w < 3:
                a(f"s_branch {lend}")
                a.label(labs[w])
        a.label(lend)
        a.lg, a.vm = lgmax, vmmin

    for i in range(NCH):
        a.comment(f"------- channel slot {i}")
        a.wait_vm(ld[i])
        ST(f"c{i}_ld")
        d = HR + 8*i
        a(f"v_cmp_ne_u32 vcc, 0, v0")
        for e in range(4): a(f"v_cndmask_b32 v{d+e}, 0, v{d+e}, vcc")
        for e in range(7): a(f"v_alignbit_b32 v{EW+e}, v{d+e+1}, v{d+e}, 16")
        for c in range(8):
            st = c + 1
            if st % 2 == 0: src = d + st//2
            else: src = EW + (st-1)//2
            if (src % 2) != 0:
                for e in range(4): a(f"v_mov_b32 v{TQ+e}, v{src+e}")
                src = TQ
            a.ds(f"ds_write_b128 v{vTW_}, v[{src}:{src+3}] offset:{c*CS_}")
            if src == TQ: a("s_nop 1")
        a.ds(f"ds_write_b128 v{vUW}, v[{UR+4*i}:{UR+4*i+3}]")
        a(f"v_lshlrev_b32 v{t0}, 16, v{DR+i}")
        a(f"v_or_b32 v{t0}, v{t0}, v{DR+i}")
        for e in range(4): a(f"v_and_b32 v{DG+e}, v{DM+e}, v{t0}")
        if i == 0:
            sWJ = 54
            lwj = a.newlabel("c_wj")
            a(f"s_cmp_ge_u32 s2, 192")
            a(f"s_cbranch_scc1 {lwj}")
            a(f"s_mul_i32 s{sT0}, s2, 2731")
            a(f"s_lshr_b32 s{sT0}, s{sT0}, 16")
            a(f"s_mul_i32 s{sT1}, s{sT0}, 24")
            a(f"s_sub_u32 s{sT1}, s2, s{sT1}")
            a(f"s_mul_i32 s{sT1}, s{sT1}, {32*1280}")
            a(f"s_mul_i32 s{sT0}, s{sT0}, 160")
            a(f"s_add_u32 s{sWJ}, s{sT0}, s{sT1}")
            for r in range(2):
                l2 = None
                if r == 1:
                    l2 = a.newlabel("c_wj2")
                    a(f"s_cmp_lg_u32 s{sW}, 0")
                    a(f"s_cbranch_scc1 {l2}")
                if r == 0: a(f"v_mov_b32 v{t0}, v0")
                else: a(f"v_add_u32 v{t0}, 256, v{vL}")
                a(f"v_mul_u32_u24 v{t1}, 6554, v{t0}")
                a(f"v_lshrrev_b32 v{t1}, 16, v{t1}")
                a(f"v_mul_u32_u24 v{t2}, 10, v{t1}")
                a(f"v_sub_u32 v{t0}, v{t0}, v{t2}")
                a(f"v_lshlrev_b32 v{t0}, 4, v{t0}")
                a(f"v_mul_u32_u24 v{t1}, 1280, v{t1}")
                a(f"v_add_u32 v{t0}, v{t0}, v{t1}")
                if r == 0:
                    a(f"s_lshl_b32 s{sT0}, s{sW}, 10")
                    a(f"s_add_u32 m0, s{sT0}, {WJ}")
                else: a(f"s_mov_b32 m0, {WJ + 4096}")
                a(f"buffer_load_dwordx4 v{t0}, s[{sWO}:{sWO+3}], s{sWJ} offen lds")
                a.vm -= 1
                if l2: a.label(l2)
            a.label(lwj)
            for i_ in range(1, NCH): loads(i_)
        a("s_waitcnt lgkmcnt(0)")
        a("s_barrier")
        ST(f"c{i}_built")
        if i == 1:
            lw3 = a.newlabel("c_wj3")
            a(f"s_cmp_ge_u32 s2, 192")
            a(f"s_cbranch_scc1 {lw3}")
            a(f"v_lshrrev_b32 v{t0}, 4, v{vL}")
            a(f"v_and_b32 v{t2}, 15, v{vL}")
            a(f"v_lshrrev_b32 v{t1}, 2, v{t2}")
            a(f"v_lshl_add_u32 v{t0}, v{t0}, 2, v{t1}")
            a(f"v_mul_u32_u24 v{t0}, 160, v{t0}")
            a(f"v_and_b32 v{t1}, 3, v{t2}")
            a(f"v_lshl_add_u32 v{t0}, v{t1}, 3, v{t0}")
            a(f"v_lshlrev_b32 v{t2}, 4, v{vL}")
            for r in range(2):
                l2 = None
                if r == 1:
                    l2 = a.newlabel("c_wj4")
                    a(f"s_cmp_lg_u32 s{sW}, 0")
                    a(f"s_cbranch_scc1 {l2}")
                if r == 0: a(f"s_lshl_b32 s{sT0}, s{sW}, 5")
                else: a(f"s_mov_b32 s{sT0}, 128")
                a(f"s_add_u32 s{sT1}, s{sT0}, {WJ}")
                a(f"v_add_u32 v{t1}, s{sT1}, v{t0}")
                a(f"ds_read_b64_tr_b16 v[{TQ}:{TQ+1}], v{t1}")
                a(f"ds_read_b64_tr_b16 v[{TQ+2}:{TQ+3}], v{t1} offset:2560")
                a(f"s_mul_i32 s{sT1}, s2, 5120")
                a(f"s_lshl_b32 s{sT0}, s{sT0}, 5")
                a(f"s_add_u32 s{sT1}, s{sT1}, s{sT0}")
                a(f"s_add_u32 s{sT1}, s{sT1}, {WS_WOF}")
                a("s_waitcnt lgkmcnt(0)")
                a(f"buffer_store_dwordx4 v[{TQ}:{TQ+3}], v{t2}, s[{sWS}:{sWS+3}], s{sT1} offen" + (" sc1" if "ysc1" in K2X else ""))
                a("s_nop 1")
                a.vm -= 1; a.lg -= 2
                if l2: a.label(l2)
            a.label(lw3)
        tch = list(range(NUP, 8)) if i == 0 else []
        def do_channel(tiles):
            per_wave([(lambda w=w: mfma_block(w, tiles, tch)) for w in range(4)])
            if i < 2: ST(f"c{i}_mfma")
            a("s_waitcnt lgkmcnt(0)")
            a("s_barrier")
            finalize(i, tiles)
        if i < 2:
            do_channel(list(range(8)))
        else:
            labB = a.newlabel("c_halfB"); labE = a.newlabel("c_halfE")
            a(f"s_bitcmp1_b32 s2, 0")
            a(f"s_cbranch_scc1 {labB}")
            lg0, vm0 = a.lg, a.vm
            do_channel([2, 6, 7])
            a(f"s_branch {labE}")
            a.label(labB); a.lg, a.vm = lg0, vm0
            do_channel([0, 1, 3, 4, 5])
            a.label(labE)
        ST(f"c{i}_done")
    ST.dump(sWS, sW, t0, t1, WS_DBG + 0x400000)

def gen_k2(name="k2_kernel", prof=False):
    a = Asm()
    a.raw(f".globl {name}\n.p2align 8\n.type {name},@function\n{name}:")
    a(f"s_cmp_ge_u32 s2, 512")
    a(f"s_cbranch_scc1 {name}_end")
    a(f"s_cmp_lt_u32 s2, 256")
    a(f"s_cbranch_scc1 {name}_conv" if "noconv" not in K2X else f"s_cbranch_scc1 {name}_end")
    ST = Stamps(a, enabled=prof); ST("g_start")
    V = Alloc(1, 256, "v")
    gen_gemm(a, V, ST, prof)
    a("s_endpgm")
    hi = V.hi
    a.label(f"{name}_conv")
    a.vm = 0; a.lg = 0
    ST2 = Stamps(a, enabled=prof); ST2("c_start")
    V2 = Alloc(1, 256, "v")
    gen_conv(a, V2, ST2, prof, name)
    a.label(f"{name}_end")
    a("s_endpgm")
    gen_k2.stamp_names = {"k2g": ST.names, "k2c": ST2.names}
    return a.finish(), max(hi, V2.hi)
```

```python
from dsl import *
from layout import *
import os, struct

XR = 0; WR = 81920; SLOT = 24576
MISC = 155648
CSUM = MISC
XSUM = MISC + 3072
ZSUM = MISC + 4096
SHKL = MISC + 5120
EX = 16384
TB = 81920 + 24576
KS = 65536
VS = 49152
ZT = 0
C1 = 2.302208198144325
C2 = C1 * 0.044715

def f32(x): return struct.unpack("<I", struct.pack("<f", x))[0]
def P(r): return f"v[{r}:{r+1}]"

def pkop(a, kind, d, x, y, z=None, pk=True, bcast_y=False, neg_y=False, ys=None, zs=None):
    if pk:
        yo = f"s[{ys}:{ys+1}]" if ys is not None else P(y)
        mods = ""
        n = 3 if kind == "fma" else 2
        if bcast_y: mods += " op_sel_hi:[1,0" + (",1" if n == 3 else "") + "]"
        if neg_y: mods += " neg_lo:[0,1" + (",0" if n == 3 else "") + "] neg_hi:[0,1" + (",0" if n == 3 else "") + "]"
        if kind == "fma": a(f"v_pk_fma_f32 {P(d)}, {P(x)}, {yo}, {P(z)}{mods}")
        else: a(f"v_pk_{kind}_f32 {P(d)}, {P(x)}, {yo}{mods}")
        yield
    else:
        for h in range(2):
            yo = f"s{ys}" if ys is not None else f"v{y + (0 if bcast_y else h)}"
            if neg_y: yo = "-" + yo
            if kind == "fma": a(f"v_fma_f32 v{d+h}, v{x+h}, {yo}, v{z+h}")
            elif kind == "mul":
                if ys is not None: a(f"v_mul_f32 v{d+h}, {yo}, v{x+h}")
                else: a(f"v_mul_f32 v{d+h}, v{x+h}, {yo}")
            else:
                if neg_y: a(f"v_sub_f32 v{d+h}, v{x+h}, {yo[1:]}")
                else: a(f"v_add_f32 v{d+h}, v{x+h}, {yo}")
            yield

def reduce_g4_multi(a, xs, ts):
    for op in ("v_permlane16_swap_b32", "v_permlane32_swap_b32"):
        for x, t in zip(xs, ts): a(f"v_mov_b32 v{t}, v{x}"); yield
        for x, t in zip(xs, ts): a(f"{op} v{x}, v{t}"); yield
        for x, t in zip(xs, ts): a(f"v_add_f32 v{x}, v{x}, v{t}"); yield

def ln_finish_gen(a, mean, var, sEps):
    a(f"v_max_f32 v{var}, 0, v{var}"); yield
    a(f"v_cvt_pk_bf16_f32 v{var}, v{var}, v{mean}"); yield
    a(f"v_and_b32 v{mean}, 0xffff0000, v{var}"); yield
    a(f"v_lshlrev_b32 v{var}, 16, v{var}"); yield
    a(f"v_add_f32 v{var}, s{sEps}, v{var}"); yield
    a(f"v_cvt_pk_bf16_f32 v{var}, v{var}, v{var}"); yield
    a(f"v_and_b32 v{var}, 0xffff0000, v{var}"); yield
    a(f"v_sqrt_f32 v{var}, v{var}"); yield
    a(f"v_cvt_pk_bf16_f32 v{var}, v{var}, v{var}"); yield
    a(f"v_and_b32 v{var}, 0xffff0000, v{var}"); yield
    a(f"v_rcp_f32 v{var}, v{var}"); yield

def run(gen):
    for _ in gen: pass

class Filler:
    def __init__(self): self.q = []
    def add(self, g): self.q.append(g)
    def step(self, n=1):
        for _ in range(n):
            while self.q:
                try:
                    next(self.q[0]); break
                except StopIteration:
                    self.q.pop(0)
    def drain(self):
        while self.q:
            run(self.q.pop(0))

def mask(a, n):
    if n >= 64: a("s_mov_b64 exec, -1")
    elif n > 32:
        a("s_mov_b32 exec_lo, -1"); a(f"s_mov_b32 exec_hi, {(1 << (n-32)) - 1:#x}")
    elif n == 32:
        a("s_mov_b32 exec_lo, -1"); a("s_mov_b32 exec_hi, 0")
    else: a(f"s_mov_b64 exec, {(1 << n) - 1:#x}")

def gen_k1(name="k1_kernel", prof=False):
    K1X = os.environ.get("K1X", "")
    a = Asm()
    ST = Stamps(a, enabled=prof)
    WSZ = WS_SIZE_DBG if prof else WS_END
    V = Alloc(1, 256, "v")
    sX, sWIN, sK, sV, sSHK, sWS, sDBG, sWSP, sSSM = 4, 8, 12, 16, 20, 24, 28, 32, 36
    sWOU = 84 if not prof else 84
    sRB, sJ, sW, sFH, sSH, sKH, sST0, sST = 40, 41, 42, 43, 44, 45, 46, 47
    sT0, sT1, sT2, sT3 = 48, 49, 50, 51
    sXOFF, sWOFF2, sWOFF1 = 52, 53, 54
    sEPS, sONES, sU = 55, 56, 57
    sNC2 = 58
    sM0X, sM0W = 60, 61
    sZ1B, sKKA, sKKB, sD0 = 62, 63, 64, 65
    sXC, sH = 66, 67
    (sEXW, sEXR, sCSW, sCSR, sXSW, sXSR, sZSW, sZPB, sZRB, sXST, sZ1S0, sZ1S1, sZ1S2, sKVB) = range(70, 84)
    sZ2L = [88, 63]; sZ2G = [64, 67]; sL2B = 66
    a.raw(f".globl {name}\n.p2align 8\n.type {name},@function\n{name}:")
    a(f"s_cmp_ge_u32 s2, 256")
    a(f"s_cbranch_scc1 {name}_end")
    srds = ((sX, 'q', SZ_X), (sWIN, 'win', SZ_WIN), (sK, 'k', SZ_X), (sV, 'v', SZ_X), (sSHK, 'shk', 5120), (sWS, 'ws', WSZ),
            (sDBG, 'dbg', 256), (sWSP, 'wsp', SZ_WSP), (sSSM, 'ssmk', SZ_SSMK), (sWOU, 'wout', SZ_WOUT))
    for srd, key, _ in srds:
        a(f"s_load_dwordx2 s[{srd}:{srd+1}], s[0:1], {KA[key]}")
    ST("start")
    vL = V(); vQ = V(); vP = V()
    t0, t1, t2 = V(), V(), V()
    vKV = V()
    a(f"v_lshrrev_b32 v{vQ}, 6, v0")
    a(f"v_and_b32 v{vL}, 63, v0")
    a(f"v_readfirstlane_b32 s{sW}, v{vQ}")
    a(f"v_lshrrev_b32 v{vQ}, 4, v{vL}")
    a(f"v_and_b32 v{vP}, 15, v{vL}")
    a(f"s_and_b32 s{sT0}, s2, 7")
    a(f"s_lshr_b32 s{sT1}, s2, 3")
    a(f"s_lshr_b32 s{sXC}, s{sT0}, 1")
    a(f"s_and_b32 s{sH}, s{sT0}, 1")
    a(f"s_lshl_b32 s{sRB}, s{sXC}, 3")
    a(f"s_and_b32 s{sT0}, s{sT1}, 7")
    a(f"s_add_u32 s{sRB}, s{sRB}, s{sT0}")
    a(f"s_lshl_b32 s{sJ}, s{sH}, 2")
    a(f"s_lshr_b32 s{sT0}, s{sT1}, 3")
    a(f"s_add_u32 s{sJ}, s{sJ}, s{sT0}")
    a(f"s_mul_i32 s{sXOFF}, s{sRB}, {64*1280}")
    a(f"s_mul_i32 s{sWOFF1}, s{sJ}, 192")
    a(f"s_add_u32 s{sWOFF2}, s{sWOFF1}, {768*2}")
    a(f"s_lshl_b32 s{sM0X}, s{sW}, 11")
    a(f"s_mul_i32 s{sM0W}, s{sW}, 3072")
    for srd, _, size in srds[:2]:
        a(f"s_mov_b32 s{srd+2}, {size}")
        a(f"s_mov_b32 s{srd+3}, {SRD3:#x}")
    TMP = V(28, 4)
    vTO = V()
    vDummy = V()
    vXD = [V(), V()]
    a(f"s_lshl_b32 s{sT0}, s{sW}, 3")
    for i in range(2):
        a(f"v_add_u32 v{t0}, s{sT0}, v{vQ}")
        if i: a(f"v_add_u32 v{t0}, 4, v{t0}")
        a(f"v_and_b32 v{t1}, 15, v{t0}")
        a(f"v_xor_b32 v{t1}, v{t1}, v{vP}")
        a(f"v_mul_u32_u24 v{t0}, 1280, v{t0}")
        a(f"v_lshl_add_u32 v{vXD[i]}, v{t1}, 4, v{t0}")
    vWD = [V(), V(), V()]
    a(f"s_mul_i32 s{sT0}, s{sW}, 192")
    for i in range(3):
        a(f"v_add_u32 v{t0}, s{sT0}, v{vL}")
        if i: a(f"v_add_u32 v{t0}, {64*i}, v{t0}")
        a(f"v_mul_u32_u24 v{t1}, 43691, v{t0}")
        a(f"v_lshrrev_b32 v{t1}, 19, v{t1}")
        a(f"v_mul_u32_u24 v{t2}, 12, v{t1}")
        a(f"v_sub_u32 v{t0}, v{t0}, v{t2}")
        a(f"v_lshrrev_b32 v{t2}, 2, v{t1}")
        a(f"v_and_b32 v{t2}, 2, v{t2}")
        a(f"v_xor_b32 v{t0}, v{t0}, v{t2}")
        a(f"v_mul_u32_u24 v{t1}, 3072, v{t1}")
        a(f"v_lshl_add_u32 v{vWD[i]}, v{t0}, 4, v{t1}")
    sSCX = [90, 91, 92, 93, 94]; sSCW = [95, 96, 97, 98, 99]
    a(f"s_add_u32 s{sT0}, s{sRB}, s{sJ}")
    a(f"s_mul_i32 s{sT1}, s{sT0}, 52")
    a(f"s_lshr_b32 s{sT1}, s{sT1}, 8")
    a(f"s_mul_i32 s{sT1}, s{sT1}, 5")
    a(f"s_sub_u32 s{sT3}, s{sT0}, s{sT1}")
    if "norot" in K1X: a(f"s_mov_b32 s{sT3}, 0")
    if "rot2" in K1X: a(f"s_and_b32 s{sT3}, s{sT0}, 1")
    if "rot4" in K1X: a(f"s_and_b32 s{sT3}, s{sT0}, 3")
    if "rotj" in K1X: a(f"s_and_b32 s{sT3}, s{sJ}, 3")
    if "rotr" in K1X:
        a(f"s_and_b32 s{sT3}, s{sRB}, 1")
        a(f"s_lshl_b32 s{sT3}, s{sT3}, 1")
    def sc_regs(p_):
        a(f"s_add_u32 s{sT1}, s{sT3}, {p_}")
        a(f"s_sub_u32 s{sT2}, s{sT1}, 5")
        a(f"s_cmp_ge_u32 s{sT1}, 5")
        a(f"s_cselect_b32 s{sT1}, s{sT2}, s{sT1}")
        a(f"s_lshl_b32 s{sSCX[p_]}, s{sT1}, 8")
        a(f"s_mul_i32 s{sSCW[p_]}, s{sT1}, {128*3072}")
    sc_regs(0); sc_regs(1)
    x_last = {}; w_last = {}
    def dma_x_g(sc):
        for i in range(2):
            a(f"s_add_u32 s{sD0}, s{sXOFF}, s{sSCX[sc]}")
            a(f"s_add_u32 m0, s{sM0X}, {XR + sc*16384 + i*1024}")
            x_last[sc] = a.vmem(f"buffer_load_dwordx4 v{vXD[i]}, s[{sX}:{sX+3}], s{sD0} offen lds")
            yield
    def wbase(q): return WR + (q % 3)*SLOT
    def dma_w_g(q):
        sc = q % 5
        for i in range(3):
            a(f"s_add_u32 s{sD0}, s{sWOFF2 if q < 5 else sWOFF1}, s{sSCW[sc]}")
            a(f"s_add_u32 m0, s{sM0W}, {wbase(q) + i*1024}")
            w_last[q] = a.vmem(f"buffer_load_dwordx4 v{vWD[i]}, s[{sWIN}:{sWIN+3}], s{sD0} offen lds")
            yield
    def dma_x(sc): run(dma_x_g(sc))
    def dma_w(q): run(dma_w_g(q))
    a("s_waitcnt lgkmcnt(0)")
    ST("kernarg")
    dma_x(0); dma_w(0)
    sTAG = 100
    a(f"s_mov_b32 s{sT0}, {WS_EPO}")
    a(f"s_load_dwordx2 s[{sTAG}:{sTAG+1}], s[{sWS}:{sWS+1}], s{sT0}")
    for p_ in range(2, 5): sc_regs(p_)
    for srd, _, size in srds[2:]:
        a(f"s_mov_b32 s{srd+2}, {size}")
        a(f"s_mov_b32 s{srd+3}, {SRD3:#x}")
    a(f"v_lshlrev_b32 v{vTO}, 7, v{vL}")
    a("s_barrier")
    dma_x(1); dma_w(1)
    def kv_dma():
        a(f"v_mul_u32_u24 v{t0}, 1280, v{vRP}")
        a(f"v_lshl_add_u32 v{t0}, v{vPP}, 4, v{t0}")
        a(f"s_mul_i32 s{sT3}, s{sJ}, 160")
        a(f"s_add_u32 s{sT3}, s{sT3}, s{sXOFF}")
        for rnd in range(3):
            n0 = 8*rnd
            if rnd == 0:
                a(f"s_mul_i32 s{sT0}, s{sW}, {6*1280}")
                a(f"s_add_u32 s{sT0}, s{sT0}, s{sT3}")
                a(f"s_sub_i32 s{sT0}, s{sT0}, {3*1280}")
                a(f"s_cmp_lt_i32 s{sT0}, 0")
                a(f"s_cselect_b32 s{sT1}, {3*1280}, 0")
                a(f"s_add_u32 s{sT0}, s{sT0}, s{sT1}")
                a(f"v_subrev_u32 v{t1}, s{sT1}, v{t0}")
                a(f"s_mul_i32 s{sT2}, s{sW}, 960")
                a(f"s_add_u32 m0, s{sT2}, {KS}")
                mask(a, 60)
                a.vmem(f"buffer_load_dwordx4 v{t1}, s[{sK}:{sK+3}], s{sT0} offen lds")
                mask(a, 64)
            elif rnd == 1:
                lv = a.newlabel("k1_kvv"); le = a.newlabel("k1_kve")
                a(f"s_cmp_ge_u32 s{sW}, 4")
                mask(a, 60)
                a(f"s_cbranch_scc1 {lv}")
                a(f"s_mul_i32 s{sT0}, s{sW}, {6*1280}")
                a(f"s_add_u32 s{sT0}, s{sT0}, s{sT3}")
                a(f"s_add_u32 s{sT0}, s{sT0}, {45*1280}")
                a(f"s_mul_i32 s{sT2}, s{sW}, 960")
                a(f"s_add_u32 m0, s{sT2}, {KS + 8*960}")
                a(f"buffer_load_dwordx4 v{t0}, s[{sK}:{sK+3}], s{sT0} offen lds")
                a(f"s_branch {le}")
                a.label(lv)
                a(f"s_sub_u32 s{sT1}, s{sW}, 4")
                a(f"s_mul_i32 s{sT0}, s{sT1}, {6*1280}")
                a(f"s_add_u32 s{sT0}, s{sT0}, s{sT3}")
                a(f"s_mul_i32 s{sT2}, s{sT1}, 960")
                a(f"s_add_u32 m0, s{sT2}, {VS}")
                a(f"buffer_load_dwordx4 v{t0}, s[{sV}:{sV+3}], s{sT0} offen lds")
                a.label(le)
                a.vm -= 1
                mask(a, 64)
            else:
                a(f"s_add_u32 s{sT1}, s{sW}, 4")
                a(f"s_mul_i32 s{sT0}, s{sT1}, {6*1280}")
                a(f"s_add_u32 s{sT0}, s{sT0}, s{sT3}")
                a(f"s_mul_i32 s{sT2}, s{sT1}, 960")
                a(f"s_add_u32 m0, s{sT2}, {VS}")
                mask(a, 60)
                a.vmem(f"buffer_load_dwordx4 v{t0}, s[{sV}:{sV+3}], s{sT0} offen lds")
                mask(a, 64)
            yield
    lab = a.newlabel("k1_shk")
    a(f"s_cmp_lg_u32 s{sW}, 7")
    a(f"s_cbranch_scc1 {lab}")
    a(f"v_lshlrev_b32 v{t0}, 4, v{vL}")
    a(f"s_mul_i32 s{sT0}, s{sJ}, 640")
    a(f"s_mov_b32 m0, {SHKL}")
    mask(a, 40)
    a(f"buffer_load_dwordx4 v{t0}, s[{sSHK}:{sSHK+3}], s{sT0} offen lds")
    a.vm -= 1
    mask(a, 64)
    a.label(lab)
    a(f"s_and_b32 s{sFH}, s{sW}, 1")
    a(f"s_lshr_b32 s{sSH}, s{sW}, 1")
    a(f"s_and_b32 s{sSH}, s{sSH}, 1")
    a(f"s_lshr_b32 s{sKH}, s{sW}, 2")
    a(f"s_xor_b32 s{sST0}, s{sFH}, s{sKH}")
    a(f"s_lshl_b32 s{sST}, s{sSH}, 1")
    a(f"s_add_u32 s{sST}, s{sST}, s{sST0}")
    a(f"s_mov_b32 s{sEPS}, {f32(1e-5):#x}")
    a(f"s_mov_b32 s{sONES}, 0x3f803f80")
    a(f"s_mov_b32 s{sNC2}, {f32(-C2):#x}")
    a(f"s_mov_b32 s{sNC2+1}, {f32(-C2):#x}")
    vRP = V(); vPP = V()
    _pre = [V(), V(), V()]
    XF = V(80, 4)
    def xf(sc, kk, sl): return XF + ((sc*2 + kk)*2 + sl)*4
    WF = V(48, 4)
    def wf(b, kk, ft): return WF + ((b*2 + kk)*3 + ft)*4
    ACC = V(24, 4)
    def acc(ft, sl): return ACC + (ft*2 + sl)*4
    Z2V = V(12, 4)
    KX = V(4, 4)
    KROW = [XF + 4*r for r in range(5)]
    VROW = [XF + 20, XF + 24]
    vXA = [[_pre[0], _pre[1]], [_pre[2], V()]]
    vWA = [[V(), V(), V()], [V(), V(), V()]]
    a(f"s_lshl_b32 s{sT0}, s{sKH}, 1")
    a(f"s_add_u32 s{sKKA}, s{sT0}, s{sSH}")
    a(f"s_xor_b32 s{sKKB}, s{sKKA}, 1")
    a(f"v_xor_b32 v{t0}, v{vQ}, v{vP}")
    a(f"v_lshlrev_b32 v{t2}, 8, v{vP}")
    a(f"s_lshl_b32 s{sT0}, s{sSH}, 13")
    a(f"s_lshl_b32 s{sT1}, s{sST0}, 12")
    a(f"s_add_u32 s{sT2}, s{sT0}, s{sT1}")
    a(f"s_xor_b32 s{sT1}, s{sT1}, 4096")
    a(f"s_add_u32 s{sT3}, s{sT0}, s{sT1}")
    for kkidx, sKK in ((0, sKKA), (1, sKKB)):
        a(f"s_lshl_b32 s{sT0}, s{sKK}, 2")
        a(f"v_xor_b32 v{t1}, s{sT0}, v{t0}")
        a(f"v_lshl_add_u32 v{t1}, v{t1}, 4, v{t2}")
        a(f"v_add_u32 v{vXA[kkidx][0]}, s{sT2}, v{t1}")
        a(f"v_add_u32 v{vXA[kkidx][1]}, s{sT3}, v{t1}")
    a(f"v_lshrrev_b32 v{t1}, 2, v{vP}")
    a(f"v_lshl_add_u32 v{t0}, v{vQ}, 3, v{t1}")
    a(f"v_mul_u32_u24 v{t0}, 192, v{t0}")
    a(f"v_and_b32 v{t1}, 3, v{vP}")
    a(f"v_lshl_add_u32 v{t0}, v{t1}, 3, v{t0}")
    a(f"v_and_b32 v{t1}, 1, v{vQ}")
    a(f"s_mul_i32 s{sT3}, s{sFH}, 3")
    a(f"s_mul_i32 s{sT1}, s{sKKA}, 6144")
    a(f"s_add_u32 s{sT1}, s{sT1}, {WR}")
    a(f"s_mul_i32 s{sT2}, s{sKKB}, 6144")
    a(f"s_add_u32 s{sT2}, s{sT2}, {WR}")
    for ft in range(3):
        a(f"s_add_u32 s{sT0}, s{sT3}, {ft}")
        a(f"v_xor_b32 v{t2}, s{sT0}, v{t1}")
        a(f"v_lshl_add_u32 v{t2}, v{t2}, 5, v{t0}")
        a(f"v_add_u32 v{vWA[0][ft]}, s{sT1}, v{t2}")
        a(f"v_add_u32 v{vWA[1][ft]}, s{sT2}, v{t2}")
    CSA = V(12, 4)
    XSA = V(4, 4); XQA = V(4, 4)
    ONE = V(4, 4)
    for i in range(4): a(f"v_mov_b32 v{ONE+i}, s{sONES}")
    vC1 = XSA + 2
    vMR = XQA; vM, vR = vMR, vMR + 1
    vRB = XQA + 2
    a(f"v_mul_u32_u24 v{vRP}, 205, v{vL}")
    a(f"v_lshrrev_b32 v{vRP}, 11, v{vRP}")
    a(f"v_mul_u32_u24 v{t0}, 10, v{vRP}")
    a(f"v_sub_u32 v{vPP}, v{vL}, v{t0}")
    a(f"s_lshl_b32 s{sT0}, s{sW}, 3")
    a(f"v_lshl_add_u32 v{t0}, v{vRP}, 1, s{sT0}")
    a(f"v_min_u32 v{t0}, 62, v{t0}")
    a(f"v_mul_u32_u24 v{t0}, 160, v{t0}")
    a(f"v_lshl_add_u32 v{vKV}, v{vPP}, 4, v{t0}")

    kv = {}
    zfin = {}
    vTO2 = KX + 3
    a(f"v_lshlrev_b32 v{vTO2}, 10, v{vL}")
    def kv_loads():
        a(f"v_add_u32 v{t0}, {KS}, v{vKV}")
        for i in range(5):
            a.ds(f"ds_read_b128 v[{KROW[i]}:{KROW[i]+3}], v{t0} offset:{160*i}")
        a(f"v_add_u32 v{t0}, {VS}, v{vKV}")
        a.ds(f"ds_read_b128 v[{VROW[0]}:{VROW[0]+3}], v{t0}")
        kv['last'] = a.ds(f"ds_read_b128 v[{VROW[1]}:{VROW[1]+3}], v{t0} offset:160")

    def kv_compute():
        KT = XF + 32
        kf = KT; wp = KT + 10; r0 = KT + 18; r1 = KT + 20; vf0 = KT + 22; vf1 = KT + 24; o = KT + 26
        SK = KT + 28
        vTA = vKV
        a.wait_lg(kv['last']); yield
        a(f"v_mul_u32_u24 v{vTA}, {8*144}, v{vPP}"); yield
        a(f"v_lshlrev_b32 v{o}, 2, v{vRP}"); yield
        a(f"v_sub_u32 v{vTA}, v{vTA}, v{o}"); yield
        a(f"s_lshl_b32 s{sT0}, s{sW}, 4")
        a(f"s_add_u32 s{sT0}, s{sT0}, {TB + 12}")
        a(f"v_add_u32 v{vTA}, s{sT0}, v{vTA}"); yield
        a(f"v_lshlrev_b32 v{vPP}, 6, v{vPP}"); yield
        a(f"v_add_u32 v{vPP}, {SHKL}, v{vPP}"); yield
        for i in range(4):
            if i % 2 == 0:
                a.ds(f"ds_read_b128 v[{SK}:{SK+3}], v{vPP} offset:{(i//2)*32}")
                d = a.ds(f"ds_read_b128 v[{SK+4}:{SK+7}], v{vPP} offset:{(i//2)*32 + 16}"); yield
            for r in range(5):
                a(f"v_lshlrev_b32 v{kf+2*r}, 16, v{KROW[r]+i}"); yield
                a(f"v_and_b32 v{kf+2*r+1}, 0xffff0000, v{KROW[r]+i}"); yield
            if i % 2 == 0:
                a.wait_lg(d)
            for t in range(4):
                ra = SK + 2*(2*(i % 2)) + (t >> 1); rb_ = SK + 2*(2*(i % 2) + 1) + (t >> 1)
                if t & 1:
                    a(f"v_and_b32 v{wp+2*t}, 0xffff0000, v{ra}"); yield
                    a(f"v_and_b32 v{wp+2*t+1}, 0xffff0000, v{rb_}"); yield
                else:
                    a(f"v_lshlrev_b32 v{wp+2*t}, 16, v{ra}"); yield
                    a(f"v_lshlrev_b32 v{wp+2*t+1}, 16, v{rb_}"); yield
            for t in range(4):
                for (dst, top) in ((r0, 3), (r1, 4)):
                    if t == 0: yield from pkop(a, "mul", dst, kf+2*top, wp, pk=True)
                    else: yield from pkop(a, "fma", dst, kf+2*(top-t), wp+2*t, dst, pk=True)
            for (vf, rr) in ((vf0, 0), (vf1, 1)):
                a(f"v_lshlrev_b32 v{vf}, 16, v{VROW[rr]+i}"); yield
                a(f"v_and_b32 v{vf+1}, 0xffff0000, v{VROW[rr]+i}"); yield
            yield from pkop(a, "mul", r0, r0, vf0, pk=True)
            yield from pkop(a, "mul", r1, r1, vf1, pk=True)
            a(f"v_cvt_pk_bf16_f32 v{o}, v{r1}, v{r0}"); yield
            a(f"v_cvt_pk_bf16_f32 v{o+1}, v{r1+1}, v{r0+1}"); yield
            a(f"s_mov_b32 exec_hi, 0xff")
            a.ds(f"ds_write_b32 v{vTA}, v{o} offset:{(2*i)*144}")
            a.ds(f"ds_write_b32 v{vTA}, v{o+1} offset:{(2*i+1)*144}")
            a(f"s_mov_b32 exec_hi, -1"); yield

    def kv_store():
        for rnd in range(2):
            T4 = XF + 72 + 4*rnd
            a(f"s_lshl_b32 s{sT0}, s{sW}, 3")
            if rnd: a(f"s_add_u32 s{sT0}, s{sT0}, 64")
            a(f"v_lshrrev_b32 v{t0}, 3, v{vL}")
            a(f"v_add_u32 v{t0}, s{sT0}, v{t0}"); yield
            a(f"v_and_b32 v{t1}, 7, v{vL}")
            a(f"v_lshlrev_b32 v{t1}, 4, v{t1}"); yield
            a(f"v_mul_u32_u24 v{t2}, 144, v{t0}")
            a(f"v_add_u32 v{t2}, v{t2}, v{t1}")
            a(f"v_add_u32 v{t2}, {TB}, v{t2}"); yield
            d = a.ds(f"ds_read_b128 v[{T4}:{T4+3}], v{t2}"); yield
            a(f"v_lshlrev_b32 v{t0}, 12, v{t0}")
            a(f"v_add_u32 v{t0}, v{t0}, v{t1}"); yield
            a.wait_lg(d)
            if rnd == 0:
                a.vmem(f"buffer_store_dwordx4 v[{T4}:{T4+3}], v{t0}, s[{sWS}:{sWS+3}], s{sKVB} offen"); yield
            else:
                lab = a.newlabel("k1_kvskip")
                a(f"s_cmp_ge_u32 s{sW}, 2")
                a(f"s_cbranch_scc1 {lab}")
                a(f"buffer_store_dwordx4 v[{T4}:{T4+3}], v{t0}, s[{sWS}:{sWS+3}], s{sKVB} offen")
                a.vm -= 1
                a.label(lab); yield

    def reads_g(p):
        sc = p % 5; b = p & 1
        so = (p % 3)*SLOT
        for kk in range(2):
            for ft in range(3):
                r = wf(b, kk, ft)
                a.ds(f"ds_read_b64_tr_b16 v[{r}:{r+1}], v{vWA[kk][ft]} offset:{so}"); yield
                a.ds(f"ds_read_b64_tr_b16 v[{r+2}:{r+3}], v{vWA[kk][ft]} offset:{so + 768}"); yield
        if p < 5:
            if p == 4:
                for kk in range(2):
                    for sl in range(2):
                        a(f"v_add_u32 v{vXA[kk][sl]}, 0x10000, v{vXA[kk][sl]}")
            for kk in range(2):
                for sl in range(2):
                    off = XR + (sc*16384 if p < 4 else 0)
                    a.ds(f"ds_read_b128 v[{xf(sc,kk,sl)}:{xf(sc,kk,sl)+3}], v{vXA[kk][sl]} offset:{off}"); yield
    def reads(p): run(reads_g(p))

    def mfmas(p, fill, nfill, dmaf=None):
        sc = p % 5; b = p & 1
        first = (sc == 0)
        ops = []
        for kk in range(2):
            for ft in range(3):
                for sl in range(2):
                    c = "0" if (first and kk == 0) else f"v[{acc(ft,sl)}:{acc(ft,sl)+3}]"
                    ops.append(f"v_mfma_f32_16x16x32_bf16 v[{acc(ft,sl)}:{acc(ft,sl)+3}], v[{wf(b,kk,ft)}:{wf(b,kk,ft)+3}], v[{xf(sc,kk,sl)}:{xf(sc,kk,sl)+3}], {c}")
                if kk == 0:
                    c = "0" if first else f"v[{CSA+4*ft}:{CSA+4*ft+3}]"
                    ops.append(f"v_mfma_f32_16x16x32_bf16 v[{CSA+4*ft}:{CSA+4*ft+3}], v[{wf(b,0,ft)}:{wf(b,0,ft)+3}], v[{ONE}:{ONE+3}], {c}")
            if p < 5:
                x = xf(sc, kk, 0)
                c = "0" if (first and kk == 0) else f"v[{XSA}:{XSA+3}]"
                ops.append(f"v_mfma_f32_16x16x32_bf16 v[{XSA}:{XSA+3}], v[{ONE}:{ONE+3}], v[{x}:{x+3}], {c}")
                c = "0" if (first and kk == 0) else f"v[{XQA}:{XQA+3}]"
                ops.append(f"v_mfma_f32_16x16x32_bf16 v[{XQA}:{XQA+3}], v[{x}:{x+3}], v[{x}:{x+3}], {c}")
        nd = 0
        for oi, o in enumerate(ops):
            a(o)
            if dmaf is not None and oi % 3 == 1: dmaf.step(1)
            fill.step(nfill)
        if dmaf is not None: dmaf.drain()

    def exchange_write(ps, dst):
        T = TMP
        a(f"v_lshl_add_u32 v{t0}, v{vL}, 4, s{sEXW}")
        a(f"v_lshl_add_u32 v{t1}, v{vQ}, 4, s{sCSW}")
        for ft in range(3):
            a.ds(f"ds_write_b128 v{t0}, v[{acc(ft,1)}:{acc(ft,1)+3}] offset:{ft*1024}")
        a(f"s_mov_b32 exec_lo, 0x00010001")
        a(f"s_mov_b32 exec_hi, 0x00010001")
        for ft in range(3):
            a.ds(f"ds_write_b128 v{t1}, v[{CSA+4*ft}:{CSA+4*ft+3}] offset:{ps*1536 + ft*64}")
        a(f"s_mov_b64 exec, -1")
        if ps == 0:
            a(f"v_and_b32 v{T}, 3, v{vP}")
            a(f"v_cmp_eq_u32 vcc, 1, v{T}")
            a(f"v_cndmask_b32 v{XSA+1}, v{XQA}, v{XQA+1}, vcc")
            a(f"v_cmp_eq_u32 vcc, 2, v{T}")
            a(f"v_cndmask_b32 v{XSA+1}, v{XSA+1}, v{XQA+2}, vcc")
            a(f"v_cmp_eq_u32 vcc, 3, v{T}")
            a(f"v_cndmask_b32 v{XSA+1}, v{XSA+1}, v{XQA+3}, vcc")
            a(f"v_lshl_add_u32 v{t2}, v{vP}, 3, s{sXSW}")
            a(f"s_mov_b32 exec_lo, 0x00F0000F")
            a(f"s_mov_b32 exec_hi, 0xF0000F00")
            a.ds(f"ds_write_b64 v{t2}, {P(XSA)}")
            a(f"s_mov_b64 exec, -1")
        for ft in range(3):
            for h in range(2):
                a(f"v_pk_add_f32 {P(dst+4*ft+2*h)}, {P(acc(ft,0)+2*h)}, 0")
        if ps == 0:
            a(f"v_mov_b32 v{vC1}, {f32(-C1):#x}"); a(f"v_mov_b32 v{vC1+1}, {f32(-C1):#x}")

    def fold_gelu(ps, dst, E, X, C):
        a(f"v_lshl_add_u32 v{t0}, v{vL}, 4, s{sEXR}")
        if ps == 0:
            a(f"v_lshl_add_u32 v{t1}, v{vP}, 3, s{sXSR}")
            a.ds(f"ds_read_b64 {P(X)}, v{t1}")
            dx = a.ds(f"ds_read_b64 {P(X+2)}, v{t1} offset:128")
        ids = [a.ds(f"ds_read_b128 v[{E+4*ft}:{E+4*ft+3}], v{t0} offset:{ft*1024}") for ft in range(3)]
        a(f"v_lshl_add_u32 v{t2}, v{vQ}, 4, s{sCSR}")
        cid = []
        for q in range(4):
            for ft in range(3):
                cid.append(a.ds(f"ds_read_b128 v[{C[q]+4*ft}:{C[q]+4*ft+3}], v{t2} offset:{ps*1536 + q*192 + ft*64}"))
        if ps == 0:
            a.wait_lg(dx)
            a(f"v_pk_add_f32 {P(vMR)}, {P(X)}, {P(X+2)}")
            a(f"v_mul_f32 v{vM}, {f32(1.0/640):#x}, v{vM}")
            a(f"v_mul_f32 v{vR}, {f32(1.0/640):#x}, v{vR}")
            a(f"v_fma_f32 v{vR}, -v{vM}, v{vM}, v{vR}")
            run(ln_finish_gen(a, vM, vR, sEPS))
            a(f"v_mov_b32 v{vRB}, v{vR}")
        a.wait_lg(ids[2])
        for i in range(0, 12, 2): a(f"v_pk_add_f32 {P(dst+i)}, {P(dst+i)}, {P(E+i)}")
        a.wait_lg(cid[5])
        for i in range(0, 12, 2): a(f"v_pk_add_f32 {P(C[0]+i)}, {P(C[0]+i)}, {P(C[1]+i)}")
        a.wait_lg(cid[11])
        for i in range(0, 12, 2): a(f"v_pk_add_f32 {P(C[2]+i)}, {P(C[2]+i)}, {P(C[3]+i)}")
        for i in range(0, 12, 2): a(f"v_pk_add_f32 {P(C[0]+i)}, {P(C[0]+i)}, {P(C[2]+i)}")
        for i in range(0, 12, 2):
            a(f"v_pk_fma_f32 {P(dst+i)}, {P(C[0]+i)}, {P(vMR)}, {P(dst+i)} op_sel_hi:[1,0,1] neg_lo:[0,1,0] neg_hi:[0,1,0]")
        for i in range(0, 12, 2): a(f"v_pk_mul_f32 {P(dst+i)}, {P(dst+i)}, {P(vRB)} op_sel_hi:[1,0]")
        T = E
        for i in range(0, 12, 2): a(f"v_pk_mul_f32 {P(T+i)}, {P(dst+i)}, {P(dst+i)}")
        for i in range(0, 12, 2): a(f"v_pk_fma_f32 {P(T+i)}, {P(T+i)}, s[{sNC2}:{sNC2+1}], {P(vC1)}")
        for i in range(0, 12, 2): a(f"v_pk_mul_f32 {P(T+i)}, {P(T+i)}, {P(dst+i)}")
        for i in range(12): a(f"v_exp_f32 v{T+i}, v{T+i}")
        for i in range(0, 12, 2): a(f"v_pk_add_f32 {P(T+i)}, {P(T+i)}, 1.0 op_sel_hi:[1,0]")
        for i in range(12): a(f"v_rcp_f32 v{T+i}, v{T+i}")
        for i in range(0, 12, 2): a(f"v_pk_mul_f32 {P(dst+i)}, {P(dst+i)}, {P(T+i)}")

    def z2_stats():
        T = TMP
        a(f"v_pk_add_f32 {P(T+6)}, {P(Z2V)}, {P(Z2V+2)}"); yield
        a(f"v_pk_mul_f32 {P(T+8)}, {P(Z2V)}, {P(Z2V)}"); yield
        a(f"v_pk_add_f32 {P(T+10)}, {P(Z2V+4)}, {P(Z2V+6)}"); yield
        a(f"v_pk_fma_f32 {P(T+8)}, {P(Z2V+2)}, {P(Z2V+2)}, {P(T+8)}"); yield
        a(f"v_pk_add_f32 {P(T+12)}, {P(Z2V+8)}, {P(Z2V+10)}"); yield
        a(f"v_pk_fma_f32 {P(T+8)}, {P(Z2V+4)}, {P(Z2V+4)}, {P(T+8)}"); yield
        a(f"v_pk_add_f32 {P(T+6)}, {P(T+6)}, {P(T+10)}"); yield
        a(f"v_pk_fma_f32 {P(T+8)}, {P(Z2V+6)}, {P(Z2V+6)}, {P(T+8)}"); yield
        a(f"v_pk_add_f32 {P(T+6)}, {P(T+6)}, {P(T+12)}"); yield
        a(f"v_pk_fma_f32 {P(T+8)}, {P(Z2V+8)}, {P(Z2V+8)}, {P(T+8)}"); yield
        a(f"v_pk_fma_f32 {P(T+8)}, {P(Z2V+10)}, {P(Z2V+10)}, {P(T+8)}"); yield
        a(f"v_add_f32 v{T}, v{T+6}, v{T+7}"); yield
        a(f"v_add_f32 v{T+1}, v{T+8}, v{T+9}"); yield
        a(f"v_lshl_add_u32 v{t0}, v{vP}, 3, s{sZSW}"); yield
        yield from reduce_g4_multi(a, [T, T+1], [T+4, T+5])
        a(f"s_mov_b64 exec, 0xffff")
        a.ds(f"ds_write_b64 v{t0}, {P(T)}")
        a(f"s_mov_b64 exec, -1"); yield

    def xst_store():
        a(f"s_or_b32 s{sT0}, s{sJ}, s{sFH}")
        a(f"s_cmp_eq_u32 s{sT0}, 0")
        a(f"v_lshlrev_b32 v{t0}, 3, v{vP}")
        a(f"s_cselect_b64 exec, 0xffff, 0")
        a.vmem(f"buffer_store_dwordx2 {P(vMR)}, v{t0}, s[{sWS}:{sWS+3}], s{sXST} offen")
        a(f"s_mov_b64 exec, -1")
        yield

    sGU = 89
    a(f"s_lshl_b32 s{sGU}, s2, 3")
    a(f"s_add_u32 s{sGU}, s{sGU}, s{sW}")
    def mall_touch(srd, nper, first, count):
        if "nomall" in K1X: return
        a(f"s_mul_i32 s{sT0}, s{sGU}, {nper*128}")
        a(f"s_add_u32 s{sT0}, s{sT0}, {first*128}")
        mask(a, count)
        a.vmem(f"buffer_load_dword v{vDummy}, v{vTO}, s[{srd}:{srd+3}], s{sT0} offen")
        mask(a, 64)

    def l2_touch_wsp(i):
        a(f"s_add_u32 s{sT0}, s{sL2B}, {i*128}")
        mask(a, 8)
        a.vmem(f"buffer_load_dword v{vDummy}, v{vTO2}, s[{sWSP}:{sWSP+3}], s{sT0} offen")
        mask(a, 64)

    def epoch_load():
        a(f"v_mov_b32 v{KX+2}, {WS_EPO}")
        zfin['ep'] = a.vmem(f"buffer_load_dwordx2 {P(KX)}, v{KX+2}, s[{sWS}:{sWS+3}], 0 offen sc1")

    def gen1(f):
        f(); yield

    SP = TMP + 20
    vFA = vXD[0]
    vDummy2 = vPP
    def stats_load():
        a(f"v_lshlrev_b32 v{vFA}, 4, v{vP}")
        a(f"v_lshl_add_u32 v{vFA}, v{vQ}, 11, v{vFA}")
        a.vmem(f"buffer_load_dwordx4 v[{SP}:{SP+3}], v{vFA}, s[{sWS}:{sWS+3}], s{sZRB} offen sc1")
        zfin['sp'] = a.vmem(f"buffer_load_dwordx4 v[{SP+4}:{SP+7}], v{vFA}, s[{sWS}:{sWS+3}], s{sZRB} offen offset:1024 sc1")
    def stats_check():
        a.wait_vm(zfin['sp'])
        lp = a.newlabel("k1_poll"); lp2 = a.newlabel("k1_polled")
        a(f"s_mov_b32 s{sD0}, 0")
        a.label(lp)
        a(f"s_add_u32 s{sD0}, s{sD0}, 1")
        a(f"s_cmp_gt_u32 s{sD0}, 100000")
        a(f"s_cbranch_scc1 {lp2}")
        a(f"v_cmp_ne_u32 vcc, s{sTAG}, v{SP+2}")
        a(f"v_cmp_ne_u32 s[{sT2}:{sT2+1}], s{sTAG+1}, v{SP+3}")
        a(f"s_or_b64 vcc, vcc, s[{sT2}:{sT2+1}]")
        a(f"v_cmp_ne_u32 s[{sT2}:{sT2+1}], s{sTAG}, v{SP+6}")
        a(f"s_or_b64 vcc, vcc, s[{sT2}:{sT2+1}]")
        a(f"v_cmp_ne_u32 s[{sT2}:{sT2+1}], s{sTAG+1}, v{SP+7}")
        a(f"s_or_b64 vcc, vcc, s[{sT2}:{sT2+1}]")
        if 'nopoll' in K1X: a("s_mov_b64 vcc, 0")
        a(f"s_cmp_eq_u64 vcc, 0")
        a(f"s_cbranch_scc1 {lp2}")
        a("s_sleep 4")
        a(f"buffer_load_dwordx4 v[{SP}:{SP+3}], v{vFA}, s[{sWS}:{sWS+3}], s{sZRB} offen sc1")
        a(f"buffer_load_dwordx4 v[{SP+4}:{SP+7}], v{vFA}, s[{sWS}:{sWS+3}], s{sZRB} offen offset:1024 sc1")
        a.vm -= 2
        a("s_waitcnt vmcnt(0)")
        a(f"s_branch {lp}")
        a.label(lp2)
    def z2_normalize():
        vZW = vRP
        a(f"s_lshl_b32 s{sT0}, s{sST}, 4")
        a(f"v_add_u32 v{vZW}, s{sT0}, v{vP}")
        a(f"v_mul_u32_u24 v{vZW}, 200, v{vZW}")
        a(f"v_lshl_add_u32 v{vZW}, v{vQ}, 3, v{vZW}")
        a(f"s_mul_i32 s{sT0}, s{sFH}, 96")
        a(f"s_add_u32 s{sT0}, s{sT0}, {ZT}")
        a(f"v_add_u32 v{vZW}, s{sT0}, v{vZW}")
        stats_check()
        lab = a.newlabel("k1_ep")
        a(f"s_xor_b32 s{sT0}, s{sW}, 1")
        a(f"s_or_b32 s{sT0}, s{sT0}, s{sJ}")
        a(f"s_cmp_lg_u32 s{sT0}, 0")
        a(f"s_cbranch_scc1 {lab}")
        a(f"v_mov_b32 v{t0}, 0")
        a(f"v_mov_b32 v{vDummy2}, 1")
        a(f"s_mov_b64 exec, 1")
        a(f"buffer_atomic_add v{vDummy2}, v{t0}, s[{sDBG}:{sDBG+3}], 0 offen sc0")
        a(f"s_mov_b64 exec, -1")
        a.vm -= 1
        a.label(lab)
        mq = TMP
        a(f"v_pk_add_f32 {P(mq)}, {P(SP)}, {P(SP+4)}")
        run(reduce_g4_multi(a, [mq, mq+1], [TMP+2, TMP+3]))
        a(f"v_mul_f32 v{mq}, {f32(1.0/768):#x}, v{mq}")
        a(f"v_mul_f32 v{mq+1}, {f32(1.0/768):#x}, v{mq+1}")
        a(f"v_fma_f32 v{mq+1}, -v{mq}, v{mq}, v{mq+1}")
        run(ln_finish_gen(a, mq, mq+1, sEPS))
        a(f"v_mov_b32 v{TMP+2}, v{mq+1}")
        for i in range(0, 12, 2):
            a(f"v_pk_add_f32 {P(Z2V+i)}, {P(Z2V+i)}, {P(mq)} op_sel_hi:[1,0] neg_lo:[0,1] neg_hi:[0,1]")
        for i in range(0, 12, 2):
            a(f"v_pk_mul_f32 {P(Z2V+i)}, {P(Z2V+i)}, {P(TMP+2)} op_sel_hi:[1,0]")
        for ft in range(3):
            a(f"v_cvt_pk_bf16_f32 v{TMP+8+2*ft}, v{Z2V+4*ft}, v{Z2V+4*ft+1}")
            a(f"v_cvt_pk_bf16_f32 v{TMP+8+2*ft+1}, v{Z2V+4*ft+2}, v{Z2V+4*ft+3}")
            a.ds(f"ds_write_b64 v{vZW}, {P(TMP+8+2*ft)} offset:{32*ft}")

    PUB = int(os.environ.get("PUB", "6"))
    NF5 = int(os.environ.get("NF5", "5"))
    fill = Filler()
    A, B, C_ = sT0, sT1, sT2
    a(f"s_mul_i32 s{sEXW}, s{sW}, 3072"); a(f"s_add_u32 s{sEXW}, s{sEXW}, {EX}")
    a(f"s_xor_b32 s{A}, s{sW}, 4"); a(f"s_mul_i32 s{sEXR}, s{A}, 3072"); a(f"s_add_u32 s{sEXR}, s{sEXR}, {EX}")
    a(f"s_lshl_b32 s{A}, s{sFH}, 2"); a(f"s_lshl_b32 s{B}, s{sSH}, 1"); a(f"s_add_u32 s{A}, s{A}, s{B}"); a(f"s_add_u32 s{A}, s{A}, s{sKH}")
    a(f"s_mul_i32 s{sCSW}, s{A}, 192"); a(f"s_add_u32 s{sCSW}, s{sCSW}, {CSUM}")
    a(f"s_mul_i32 s{sCSR}, s{sFH}, 768"); a(f"s_add_u32 s{sCSR}, s{sCSR}, {CSUM}")
    a(f"s_lshl_b32 s{A}, s{sST}, 1"); a(f"s_add_u32 s{A}, s{A}, s{sKH}"); a(f"s_lshl_b32 s{A}, s{A}, 7"); a(f"s_add_u32 s{sXSW}, s{A}, {XSUM}")
    a(f"s_lshl_b32 s{A}, s{sST}, 8"); a(f"s_add_u32 s{sXSR}, s{A}, {XSUM}")
    a(f"s_lshl_b32 s{A}, s{sST}, 7"); a(f"s_lshl_b32 s{B}, s{sFH}, 9"); a(f"s_add_u32 s{A}, s{A}, s{B}"); a(f"s_add_u32 s{sZSW}, s{A}, {ZSUM}")
    a(f"s_lshl_b32 s{A}, s{sRB}, 3"); a(f"s_add_u32 s{A}, s{A}, s{sJ}"); a(f"s_lshl_b32 s{B}, s{A}, 10"); a(f"s_add_u32 s{sZPB}, s{B}, {WS_ZST}")
    a(f"s_mul_i32 s{A}, s{A}, 12288"); a(f"s_lshr_b32 s{B}, s{sST}, 1"); a(f"s_mul_i32 s{B}, s{B}, 6144"); a(f"s_add_u32 s{A}, s{A}, s{B}")
    a(f"s_and_b32 s{B}, s{sST}, 1"); a(f"s_lshl_b32 s{B}, s{B}, 8"); a(f"s_add_u32 s{A}, s{A}, s{B}"); a(f"s_add_u32 s{A}, s{A}, {WS_Z1F}")
    for ft, dst in enumerate((sZ1S0, sZ1S1, sZ1S2)):
        a(f"s_mul_i32 s{B}, s{sFH}, 3"); a(f"s_add_u32 s{B}, s{B}, {ft}")
        a(f"s_lshr_b32 s{C_}, s{B}, 1"); a(f"s_lshl_b32 s{C_}, s{C_}, 10"); a(f"s_and_b32 s{B}, s{B}, 1"); a(f"s_lshl_b32 s{B}, s{B}, 3")
        a(f"s_add_u32 s{dst}, s{A}, s{B}"); a(f"s_add_u32 s{dst}, s{dst}, s{C_}")
    a(f"s_lshl_b32 s{A}, s{sRB}, 13"); a(f"s_lshl_b32 s{B}, s{sST}, 8"); a(f"s_add_u32 s{A}, s{A}, s{B}"); a(f"s_add_u32 s{sZRB}, s{A}, {WS_ZST}")
    a(f"s_lshl_b32 s{A}, s{sRB}, 9"); a(f"s_lshl_b32 s{B}, s{sST}, 7"); a(f"s_add_u32 s{A}, s{A}, s{B}"); a(f"s_add_u32 s{sXST}, s{A}, {WS_XST}")
    a(f"s_mul_i32 s{A}, s{sJ}, {80*4096}"); a(f"s_lshl_b32 s{B}, s{sRB}, 7"); a(f"s_add_u32 s{A}, s{A}, s{B}"); a(f"s_add_u32 s{sKVB}, s{A}, {WS_KVT}")
    a(f"s_lshr_b32 s{A}, s2, 3"); a(f"s_lshl_b32 s{A}, s{A}, 3"); a(f"s_add_u32 s{A}, s{A}, s{sW}"); a(f"s_lshl_b32 s{A}, s{A}, 13")
    a(f"s_lshl_b32 s{B}, s{sXC}, 21"); a(f"s_add_u32 s{sL2B}, s{A}, s{B}")
    for rnd in range(2):
        a(f"s_add_u32 s{sT3}, s{sW}, {8*rnd}")
        a(f"s_mul_i32 s{A}, s{sT3}, 43"); a(f"s_lshr_b32 s{A}, s{A}, 7")
        a(f"s_mul_i32 s{B}, s{A}, 3"); a(f"s_sub_u32 s{B}, s{sT3}, s{B}")
        a(f"s_mul_i32 s{A}, s{A}, {16*200}"); a(f"s_lshl_b32 s{B}, s{B}, 6"); a(f"s_add_u32 s{A}, s{A}, s{B}")
        a(f"s_add_u32 s{sZ2L[rnd]}, s{A}, {ZT}")
        a(f"s_lshl_b32 s{A}, s{sJ}, 7"); a(f"s_lshl_b32 s{B}, s{sRB}, 2"); a(f"s_add_u32 s{A}, s{A}, s{B}"); a(f"s_mul_i32 s{A}, s{A}, 3")
        a(f"s_add_u32 s{A}, s{A}, s{sT3}"); a(f"s_lshl_b32 s{A}, s{A}, 10"); a(f"s_add_u32 s{sZ2G[rnd]}, s{A}, {WS_Z2F}")
    if "pro" in K1X: ST("setup")
    a.wait_vm(max(w_last[0], x_last[0]))
    if "pro" in K1X: ST("w0arr")
    a("s_waitcnt lgkmcnt(0)")
    a(f"s_add_u32 s{sTAG}, s{sTAG}, 1")
    a(f"s_addc_u32 s{sTAG+1}, s{sTAG+1}, 0")
    a("s_barrier")
    ST("d0")
    reads(0)
    dma_x(2); dma_w(2)
    for p in range(10):
        a.comment(f"---------------- iteration {p}")
        if p + 1 < 10:
            need = w_last[p+1]
            if p + 1 < 5: need = max(need, x_last[p+1])
            a.wait_vm(need)
        if "f5" in K1X and p in (5, 6): ST(f"w{p}")
        a("s_waitcnt lgkmcnt(0)")
        a("s_barrier")
        if ("pro" not in K1X or p < 2) and ("pubst" not in K1X or p in (6, 7, 8, 9)): ST(f"i{p}")
        if p == PUB:
            lab = a.newlabel("k1_pub")
            a(f"s_cmp_lg_u32 s{sW}, 0")
            a(f"s_cbranch_scc1 {lab}")
            a(f"v_lshlrev_b32 v{t0}, 3, v{vL}")
            a(f"v_add_u32 v{t1}, {ZSUM}, v{t0}")
            a(f"ds_read_b64 {P(TMP)}, v{t1}")
            a(f"ds_read_b64 {P(TMP+4)}, v{t1} offset:512")
            a(f"v_lshlrev_b32 v{t0}, 4, v{vL}")
            a(f"v_mov_b32 v{TMP+2}, s{sTAG}")
            a(f"v_mov_b32 v{TMP+3}, s{sTAG+1}")
            a("s_waitcnt lgkmcnt(0)")
            a(f"v_pk_add_f32 {P(TMP)}, {P(TMP)}, {P(TMP+4)}")
            a.lg -= 2
            a.label(lab)
            a(f"s_cmp_eq_u32 s{sW}, 0")
            a(f"s_cselect_b64 exec, -1, 0")
            a.vmem(f"buffer_store_dwordx4 v[{TMP}:{TMP+3}], v{t0}, s[{sWS}:{sWS+3}], s{sZPB} offen sc1")
            a(f"s_mov_b64 exec, -1")
        if p + 1 < 10 and "nocomp" not in K1X:
            if "rdfirst" in K1X: reads(p + 1)
            else: fill.add(reads_g(p + 1))
        dmaf = Filler()
        if p + 3 < 5: dmaf.add(dma_x_g(p + 3))
        if p + 3 < 10: dmaf.add(dma_w_g(p + 3))
        if p == int(os.environ.get("KVD", "5")): dmaf.add(kv_dma())
        sched = {"a": {1:[0],2:[1],3:[2],4:[3],5:[4],6:[5],7:[6],8:[7]},
                 "b": {5:[0,1],6:[2,3],7:[4,5],8:[6,7]},
                 "c": {4:[0],5:[1],6:[2,3],7:[4,5],8:[6,7]},
                 "d": {6:[0,1,2],7:[3,4,5],8:[6,7]},
                 "e": {7:[0,1,2,3],8:[4,5,6,7]}}[os.environ.get("L2S", "a")]
        for i_ in sched.get(p, []):
            if "l2pf" in K1X: dmaf.add(gen1(lambda i_=i_: l2_touch_wsp(i_)))
            else: dmaf.add(gen1(lambda i_=i_: mall_touch(sWSP, 32, i_*4, 4)))
        if p in (2, 5): dmaf.add(gen1(lambda p=p: mall_touch(sSSM, 10, 0 if p == 2 else 5, 5)))
        if p == 7 and "nowo" not in K1X: dmaf.add(gen1(lambda: mall_touch(sWOU, 4, 0, 4)))
        if p == int(os.environ.get('SLD', '9')): stats_load()
        nf = 0 if "rdfirst" in K1X else 2
        if p == 5:
            if "f5" in K1X: ST("f5a")
            fold_gelu(0, Z2V, TMP, TMP+12, [TMP+16, ACC, ACC+12, CSA])
            if "f5" in K1X: ST("f5b")
            run(z2_stats()); run(xst_store())
            if "f5" in K1X: ST("f5c")
        if "nocomp" in K1X:
            dmaf.drain(); fill.q = []
        else:
            mfmas(p, fill, nf, dmaf)
            fill.drain()
        if "f5" in K1X and p in (4, 5): ST(f"f{p}m")
        if p == 4: exchange_write(0, Z2V)
        if p == 9:
            if "f5" in K1X: ST("f9m")
            exchange_write(1, WF)
            kv_loads()
            run(kv_compute())
            if "f5" in K1X: ST("f9k")
            z2_normalize()
    ST("loop")
    vZR = vWA[0][1]; vZS = vWA[0][2]
    a(f"v_lshrrev_b32 v{vZR}, 1, v{vQ}")
    a(f"v_lshrrev_b32 v{t1}, 2, v{vP}")
    a(f"v_lshl_add_u32 v{vZR}, v{vZR}, 3, v{t1}")
    a(f"v_mul_u32_u24 v{vZR}, 200, v{vZR}")
    a(f"v_and_b32 v{t1}, 1, v{vQ}")
    a(f"v_lshl_add_u32 v{vZR}, v{t1}, 5, v{vZR}")
    a(f"v_and_b32 v{t1}, 3, v{vP}")
    a(f"v_lshl_add_u32 v{vZR}, v{t1}, 3, v{vZR}")
    a(f"v_lshlrev_b32 v{vZS}, 4, v{vL}")
    a("s_waitcnt lgkmcnt(0)")
    a("s_barrier")
    ST("bar")
    for rnd in range(2):
        lab = None
        if rnd == 1:
            lab = a.newlabel("k1_fr")
            a(f"s_cmp_ge_u32 s{sW}, 4")
            a(f"s_cbranch_scc1 {lab}")
        a(f"v_add_u32 v{t1}, s{sZ2L[rnd]}, v{vZR}")
        Tq = TMP + 4*rnd
        a(f"ds_read_b64_tr_b16 {P(Tq)}, v{t1}")
        a(f"ds_read_b64_tr_b16 {P(Tq+2)}, v{t1} offset:800")
        a("s_waitcnt lgkmcnt(0)")
        a(f"buffer_store_dwordx4 v[{Tq}:{Tq+3}], v{vZS}, s[{sWS}:{sWS+3}], s{sZ2G[rnd]} offen")
        if lab: a.label(lab)
    run(kv_store())
    Z1V = WF
    T2 = XF
    fold_gelu(1, Z1V, T2, T2+12, [T2+16, T2+28, T2+40, T2+52])
    a(f"v_lshrrev_b32 v{t0}, 1, v{vQ}")
    a(f"v_mul_u32_u24 v{t0}, 3072, v{t0}")
    a(f"v_and_b32 v{t1}, 1, v{vQ}")
    a(f"v_lshlrev_b32 v{t1}, 5, v{t1}")
    a(f"v_add_u32 v{t1}, v{t1}, v{vP}")
    a(f"v_lshl_add_u32 v{t0}, v{t1}, 4, v{t0}")
    for ft in range(3):
        a(f"v_cvt_pk_bf16_f32 v{T2+2*ft}, v{Z1V+4*ft}, v{Z1V+4*ft+1}")
        a(f"v_cvt_pk_bf16_f32 v{T2+2*ft+1}, v{Z1V+4*ft+2}, v{Z1V+4*ft+3}")
        a.vmem(f"buffer_store_dwordx2 {P(T2+2*ft)}, v{t0}, s[{sWS}:{sWS+3}], s{[sZ1S0, sZ1S1, sZ1S2][ft]} offen")
    lab = a.newlabel("k1_ep2")
    a(f"s_xor_b32 s{sT0}, s{sW}, 1")
    a(f"s_or_b32 s{sT0}, s{sT0}, s{sJ}")
    a(f"s_cmp_lg_u32 s{sT0}, 0")
    a(f"s_cbranch_scc1 {lab}")
    a("s_waitcnt vmcnt(0)")
    a(f"v_readfirstlane_b32 s{sT0}, v{vDummy2}")
    a(f"s_cmp_lg_u32 s{sT0}, 31")
    a(f"s_cbranch_scc1 {lab}")
    a(f"v_mov_b32 v{TMP}, s{sTAG}")
    a(f"v_mov_b32 v{TMP+1}, s{sTAG+1}")
    a(f"v_mov_b32 v{t0}, {WS_EPO}")
    a(f"s_mov_b64 exec, 1")
    a(f"buffer_store_dwordx2 {P(TMP)}, v{t0}, s[{sWS}:{sWS+3}], 0 offen sc1")
    a(f"s_mov_b64 exec, -1")
    a.label(lab)
    ST("end")
    ST.dump(sWS, sW, t0, t1, WS_DBG)
    gen_k1.stamp_names = ST.names
    a.label(f"{name}_end")
    a("s_endpgm")
    if "st2" in K1X:
        a.items = [(k, (t + " sc1") if (k == "i" and t.startswith("buffer_store_dwordx4") and " sc1" not in t) else t) for k, t in a.items]
    if "st1" in K1X:
        a.items = [(k, (t + " sc1") if (k == "i" and t.startswith("buffer_store") and " sc1" not in t) else t) for k, t in a.items]
    gen_k1.ninstr = sum(1 for k, _ in a.items if k == "i")
    return a.finish(), V.hi
```

```python
from dsl import *
from layout import *
import os, struct

XR = 0; WR = 81920; SLOT = 24576
MISC = 155648
CSUM = MISC
XSUM = MISC + 3072
ZSUM = MISC + 4096
SHKL = MISC + 5120
EX = 16384
TB = 81920 + 24576
KS = 65536
VS = 49152
ZT = 0
C1 = 2.302208198144325
C2 = C1 * 0.044715

def f32(x): return struct.unpack("<I", struct.pack("<f", x))[0]
def P(r): return f"v[{r}:{r+1}]"

def pkop(a, kind, d, x, y, z=None, pk=True, bcast_y=False, neg_y=False, ys=None, zs=None):
    if pk:
        yo = f"s[{ys}:{ys+1}]" if ys is not None else P(y)
        mods = ""
        n = 3 if kind == "fma" else 2
        if bcast_y: mods += " op_sel_hi:[1,0" + (",1" if n == 3 else "") + "]"
        if neg_y: mods += " neg_lo:[0,1" + (",0" if n == 3 else "") + "] neg_hi:[0,1" + (",0" if n == 3 else "") + "]"
        if kind == "fma": a(f"v_pk_fma_f32 {P(d)}, {P(x)}, {yo}, {P(z)}{mods}")
        else: a(f"v_pk_{kind}_f32 {P(d)}, {P(x)}, {yo}{mods}")
        yield
    else:
        for h in range(2):
            yo = f"s{ys}" if ys is not None else f"v{y + (0 if bcast_y else h)}"
            if neg_y: yo = "-" + yo
            if kind == "fma": a(f"v_fma_f32 v{d+h}, v{x+h}, {yo}, v{z+h}")
            elif kind == "mul":
                if ys is not None: a(f"v_mul_f32 v{d+h}, {yo}, v{x+h}")
                else: a(f"v_mul_f32 v{d+h}, v{x+h}, {yo}")
            else:
                if neg_y: a(f"v_sub_f32 v{d+h}, v{x+h}, {yo[1:]}")
                else: a(f"v_add_f32 v{d+h}, v{x+h}, {yo}")
            yield

def reduce_g4_multi(a, xs, ts):
    for op in ("v_permlane16_swap_b32", "v_permlane32_swap_b32"):
        for x, t in zip(xs, ts): a(f"v_mov_b32 v{t}, v{x}"); yield
        for x, t in zip(xs, ts): a(f"{op} v{x}, v{t}"); yield
        for x, t in zip(xs, ts): a(f"v_add_f32 v{x}, v{x}, v{t}"); yield

def ln_finish_gen(a, mean, var, sEps):
    a(f"v_max_f32 v{var}, 0, v{var}"); yield
    a(f"v_cvt_pk_bf16_f32 v{var}, v{var}, v{mean}"); yield
    a(f"v_and_b32 v{mean}, 0xffff0000, v{var}"); yield
    a(f"v_lshlrev_b32 v{var}, 16, v{var}"); yield
    a(f"v_add_f32 v{var}, s{sEps}, v{var}"); yield
    a(f"v_cvt_pk_bf16_f32 v{var}, v{var}, v{var}"); yield
    a(f"v_and_b32 v{var}, 0xffff0000, v{var}"); yield
    a(f"v_sqrt_f32 v{var}, v{var}"); yield
    a(f"v_cvt_pk_bf16_f32 v{var}, v{var}, v{var}"); yield
    a(f"v_and_b32 v{var}, 0xffff0000, v{var}"); yield
    a(f"v_rcp_f32 v{var}, v{var}"); yield

def run(gen):
    for _ in gen: pass

class Filler:
    def __init__(self): self.q = []
    def add(self, g): self.q.append(g)
    def step(self, n=1):
        for _ in range(n):
            while self.q:
                try:
                    next(self.q[0]); break
                except StopIteration:
                    self.q.pop(0)
    def drain(self):
        while self.q:
            run(self.q.pop(0))

def mask(a, n):
    if n >= 64: a("s_mov_b64 exec, -1")
    elif n > 32:
        a("s_mov_b32 exec_lo, -1"); a(f"s_mov_b32 exec_hi, {(1 << (n-32)) - 1:#x}")
    elif n == 32:
        a("s_mov_b32 exec_lo, -1"); a("s_mov_b32 exec_hi, 0")
    else: a(f"s_mov_b64 exec, {(1 << n) - 1:#x}")

Z1L = 73728
SYNC = 161792

def gen_k1(name="k1_kernel", prof=False, fused=False):
    K1X = os.environ.get("K1X", "")
    a = Asm()
    ST = Stamps(a, enabled=prof)
    WSZ = WS_SIZE_DBG if prof else WS_END
    V = Alloc(1, 256, "v")
    sX, sWIN, sK, sV, sSHK, sWS, sDBG, sWSP, sSSM = 4, 8, 12, 16, 20, 24, 28, 32, 36
    sWOU = 84 if not prof else 84
    sRB, sJ, sW, sFH, sSH, sKH, sST0, sST = 40, 41, 42, 43, 44, 45, 46, 47
    sT0, sT1, sT2, sT3 = 48, 49, 50, 51
    sXOFF, sWOFF2, sWOFF1 = 52, 53, 54
    sEPS, sONES, sU = 55, 56, 57
    sNC2 = 58
    sM0X, sM0W = 60, 61
    sZ1B, sKKA, sKKB, sD0 = 62, 63, 64, 65
    sXC, sH = 66, 67
    (sEXW, sEXR, sCSW, sCSR, sXSW, sXSR, sZSW, sZPB, sZRB, sXST, sZ1S0, sZ1S1, sZ1S2, sKVB) = range(70, 84)
    sZ2L = [88, 63]; sZ2G = [64, 67]; sL2B = 66
    a.raw(f".globl {name}\n.p2align 8\n.type {name},@function\n{name}:")
    a(f"s_cmp_ge_u32 s2, 256")
    a(f"s_cbranch_scc1 {name}_end")
    srds = ((sX, 'q', SZ_X), (sWIN, 'win', SZ_WIN), (sK, 'k', SZ_X), (sV, 'v', SZ_X), (sSHK, 'shk', 5120), (sWS, 'ws', WSZ),
            (sDBG, 'dbg', 256), (sWSP, 'wsp', SZ_WSP), (sSSM, 'ssmk', SZ_SSMK), (sWOU, 'wout', SZ_WOUT))
    for srd, key, _ in srds:
        a(f"s_load_dwordx2 s[{srd}:{srd+1}], s[0:1], {KA[key]}")
    ST("start")
    vL = V(); vQ = V(); vP = V()
    t0, t1, t2 = V(), V(), V()
    vKV = V()
    a(f"v_lshrrev_b32 v{vQ}, 6, v0")
    a(f"v_and_b32 v{vL}, 63, v0")
    a(f"v_readfirstlane_b32 s{sW}, v{vQ}")
    a(f"v_lshrrev_b32 v{vQ}, 4, v{vL}")
    a(f"v_and_b32 v{vP}, 15, v{vL}")
    a(f"s_and_b32 s{sT0}, s2, 7")
    a(f"s_lshr_b32 s{sT1}, s2, 3")
    a(f"s_lshr_b32 s{sXC}, s{sT0}, 1")
    a(f"s_and_b32 s{sH}, s{sT0}, 1")
    a(f"s_lshl_b32 s{sRB}, s{sXC}, 3")
    a(f"s_and_b32 s{sT0}, s{sT1}, 7")
    a(f"s_add_u32 s{sRB}, s{sRB}, s{sT0}")
    a(f"s_lshl_b32 s{sJ}, s{sH}, 2")
    a(f"s_lshr_b32 s{sT0}, s{sT1}, 3")
    a(f"s_add_u32 s{sJ}, s{sJ}, s{sT0}")
    a(f"s_mul_i32 s{sXOFF}, s{sRB}, {64*1280}")
    a(f"s_mul_i32 s{sWOFF1}, s{sJ}, 192")
    a(f"s_add_u32 s{sWOFF2}, s{sWOFF1}, {768*2}")
    a(f"s_lshl_b32 s{sM0X}, s{sW}, 11")
    a(f"s_mul_i32 s{sM0W}, s{sW}, 3072")
    for srd, _, size in srds[:2]:
        a(f"s_mov_b32 s{srd+2}, {size}")
        a(f"s_mov_b32 s{srd+3}, {SRD3:#x}")
    TMP = V(28, 4)
    vTO = V()
    vDummy = V()
    vXD = [V(), V()]
    a(f"s_lshl_b32 s{sT0}, s{sW}, 3")
    for i in range(2):
        a(f"v_add_u32 v{t0}, s{sT0}, v{vQ}")
        if i: a(f"v_add_u32 v{t0}, 4, v{t0}")
        a(f"v_and_b32 v{t1}, 15, v{t0}")
        a(f"v_xor_b32 v{t1}, v{t1}, v{vP}")
        a(f"v_mul_u32_u24 v{t0}, 1280, v{t0}")
        a(f"v_lshl_add_u32 v{vXD[i]}, v{t1}, 4, v{t0}")
    vWD = [V(), V(), V()]
    a(f"s_mul_i32 s{sT0}, s{sW}, 192")
    for i in range(3):
        a(f"v_add_u32 v{t0}, s{sT0}, v{vL}")
        if i: a(f"v_add_u32 v{t0}, {64*i}, v{t0}")
        a(f"v_mul_u32_u24 v{t1}, 43691, v{t0}")
        a(f"v_lshrrev_b32 v{t1}, 19, v{t1}")
        a(f"v_mul_u32_u24 v{t2}, 12, v{t1}")
        a(f"v_sub_u32 v{t0}, v{t0}, v{t2}")
        a(f"v_lshrrev_b32 v{t2}, 2, v{t1}")
        a(f"v_and_b32 v{t2}, 2, v{t2}")
        a(f"v_xor_b32 v{t0}, v{t0}, v{t2}")
        a(f"v_mul_u32_u24 v{t1}, 3072, v{t1}")
        a(f"v_lshl_add_u32 v{vWD[i]}, v{t0}, 4, v{t1}")
    sSCX = [90, 91, 92, 93, 94]; sSCW = [95, 96, 97, 98, 99]
    a(f"s_add_u32 s{sT0}, s{sRB}, s{sJ}")
    a(f"s_mul_i32 s{sT1}, s{sT0}, 52")
    a(f"s_lshr_b32 s{sT1}, s{sT1}, 8")
    a(f"s_mul_i32 s{sT1}, s{sT1}, 5")
    a(f"s_sub_u32 s{sT3}, s{sT0}, s{sT1}")
    if "norot" in K1X: a(f"s_mov_b32 s{sT3}, 0")
    if "rot2" in K1X: a(f"s_and_b32 s{sT3}, s{sT0}, 1")
    if "rot4" in K1X: a(f"s_and_b32 s{sT3}, s{sT0}, 3")
    if "rotj" in K1X: a(f"s_and_b32 s{sT3}, s{sJ}, 3")
    if "rotr" in K1X:
        a(f"s_and_b32 s{sT3}, s{sRB}, 1")
        a(f"s_lshl_b32 s{sT3}, s{sT3}, 1")
    def sc_regs(p_):
        a(f"s_add_u32 s{sT1}, s{sT3}, {p_}")
        a(f"s_sub_u32 s{sT2}, s{sT1}, 5")
        a(f"s_cmp_ge_u32 s{sT1}, 5")
        a(f"s_cselect_b32 s{sT1}, s{sT2}, s{sT1}")
        a(f"s_lshl_b32 s{sSCX[p_]}, s{sT1}, 8")
        a(f"s_mul_i32 s{sSCW[p_]}, s{sT1}, {128*3072}")
    sc_regs(0); sc_regs(1)
    x_last = {}; w_last = {}
    def dma_x_g(sc):
        for i in range(2):
            a(f"s_add_u32 s{sD0}, s{sXOFF}, s{sSCX[sc]}")
            a(f"s_add_u32 m0, s{sM0X}, {XR + sc*16384 + i*1024}")
            x_last[sc] = a.vmem(f"buffer_load_dwordx4 v{vXD[i]}, s[{sX}:{sX+3}], s{sD0} offen lds")
            yield
    def wbase(q): return WR + (q % 3)*SLOT
    def dma_w_g(q):
        sc = q % 5
        for i in range(3):
            a(f"s_add_u32 s{sD0}, s{sWOFF2 if q < 5 else sWOFF1}, s{sSCW[sc]}")
            a(f"s_add_u32 m0, s{sM0W}, {wbase(q) + i*1024}")
            w_last[q] = a.vmem(f"buffer_load_dwordx4 v{vWD[i]}, s[{sWIN}:{sWIN+3}], s{sD0} offen lds")
            yield
    def dma_x(sc): run(dma_x_g(sc))
    def dma_w(q): run(dma_w_g(q))
    a("s_waitcnt lgkmcnt(0)")
    ST("kernarg")
    dma_x(0); dma_w(0)
    sTAG = 100
    a(f"s_mov_b32 s{sT0}, {WS_EPO}")
    a(f"s_load_dwordx2 s[{sTAG}:{sTAG+1}], s[{sWS}:{sWS+1}], s{sT0}")
    for p_ in range(2, 5): sc_regs(p_)
    for srd, _, size in srds[2:]:
        a(f"s_mov_b32 s{srd+2}, {size}")
        a(f"s_mov_b32 s{srd+3}, {SRD3:#x}")
    a(f"v_lshlrev_b32 v{vTO}, 7, v{vL}")
    if fused:
        a(f"v_mov_b32 v{t0}, {SYNC}")
        a(f"v_mov_b32 v{TMP}, 0"); a(f"v_mov_b32 v{TMP+1}, 0")
        a.ds(f"ds_write_b64 v{t0}, {P(TMP)}")
    a("s_barrier")
    dma_x(1); dma_w(1)
    def kv_dma():
        a(f"v_mul_u32_u24 v{t0}, 1280, v{vRP}")
        a(f"v_lshl_add_u32 v{t0}, v{vPP}, 4, v{t0}")
        a(f"s_mul_i32 s{sT3}, s{sJ}, 160")
        a(f"s_add_u32 s{sT3}, s{sT3}, s{sXOFF}")
        for rnd in range(3):
            n0 = 8*rnd
            if rnd == 0:
                a(f"s_mul_i32 s{sT0}, s{sW}, {6*1280}")
                a(f"s_add_u32 s{sT0}, s{sT0}, s{sT3}")
                a(f"s_sub_i32 s{sT0}, s{sT0}, {3*1280}")
                a(f"s_cmp_lt_i32 s{sT0}, 0")
                a(f"s_cselect_b32 s{sT1}, {3*1280}, 0")
                a(f"s_add_u32 s{sT0}, s{sT0}, s{sT1}")
                a(f"v_subrev_u32 v{t1}, s{sT1}, v{t0}")
                a(f"s_mul_i32 s{sT2}, s{sW}, 960")
                a(f"s_add_u32 m0, s{sT2}, {KS}")
                mask(a, 60)
                a.vmem(f"buffer_load_dwordx4 v{t1}, s[{sK}:{sK+3}], s{sT0} offen lds")
                mask(a, 64)
            elif rnd == 1:
                lv = a.newlabel("k1_kvv"); le = a.newlabel("k1_kve")
                a(f"s_cmp_ge_u32 s{sW}, 4")
                mask(a, 60)
                a(f"s_cbranch_scc1 {lv}")
                a(f"s_mul_i32 s{sT0}, s{sW}, {6*1280}")
                a(f"s_add_u32 s{sT0}, s{sT0}, s{sT3}")
                a(f"s_add_u32 s{sT0}, s{sT0}, {45*1280}")
                a(f"s_mul_i32 s{sT2}, s{sW}, 960")
                a(f"s_add_u32 m0, s{sT2}, {KS + 8*960}")
                a(f"buffer_load_dwordx4 v{t0}, s[{sK}:{sK+3}], s{sT0} offen lds")
                a(f"s_branch {le}")
                a.label(lv)
                a(f"s_sub_u32 s{sT1}, s{sW}, 4")
                a(f"s_mul_i32 s{sT0}, s{sT1}, {6*1280}")
                a(f"s_add_u32 s{sT0}, s{sT0}, s{sT3}")
                a(f"s_mul_i32 s{sT2}, s{sT1}, 960")
                a(f"s_add_u32 m0, s{sT2}, {VS}")
                a(f"buffer_load_dwordx4 v{t0}, s[{sV}:{sV+3}], s{sT0} offen lds")
                a.label(le)
                a.vm -= 1
                mask(a, 64)
            else:
                a(f"s_add_u32 s{sT1}, s{sW}, 4")
                a(f"s_mul_i32 s{sT0}, s{sT1}, {6*1280}")
                a(f"s_add_u32 s{sT0}, s{sT0}, s{sT3}")
                a(f"s_mul_i32 s{sT2}, s{sT1}, 960")
                a(f"s_add_u32 m0, s{sT2}, {VS}")
                mask(a, 60)
                a.vmem(f"buffer_load_dwordx4 v{t0}, s[{sV}:{sV+3}], s{sT0} offen lds")
                mask(a, 64)
            yield
    lab = a.newlabel("k1_shk")
    a(f"s_cmp_lg_u32 s{sW}, 7")
    a(f"s_cbranch_scc1 {lab}")
    a(f"v_lshlrev_b32 v{t0}, 4, v{vL}")
    a(f"s_mul_i32 s{sT0}, s{sJ}, 640")
    a(f"s_mov_b32 m0, {SHKL}")
    mask(a, 40)
    a(f"buffer_load_dwordx4 v{t0}, s[{sSHK}:{sSHK+3}], s{sT0} offen lds")
    a.vm -= 1
    mask(a, 64)
    a.label(lab)
    a(f"s_and_b32 s{sFH}, s{sW}, 1")
    a(f"s_lshr_b32 s{sSH}, s{sW}, 1")
    a(f"s_and_b32 s{sSH}, s{sSH}, 1")
    a(f"s_lshr_b32 s{sKH}, s{sW}, 2")
    a(f"s_xor_b32 s{sST0}, s{sFH}, s{sKH}")
    a(f"s_lshl_b32 s{sST}, s{sSH}, 1")
    a(f"s_add_u32 s{sST}, s{sST}, s{sST0}")
    a(f"s_mov_b32 s{sEPS}, {f32(1e-5):#x}")
    a(f"s_mov_b32 s{sONES}, 0x3f803f80")
    a(f"s_mov_b32 s{sNC2}, {f32(-C2):#x}")
    a(f"s_mov_b32 s{sNC2+1}, {f32(-C2):#x}")
    vRP = V(); vPP = V()
    _pre = [V(), V(), V()]
    XF = V(80, 4)
    def xf(sc, kk, sl): return XF + ((sc*2 + kk)*2 + sl)*4
    WF = V(48, 4)
    def wf(b, kk, ft): return WF + ((b*2 + kk)*3 + ft)*4
    ACC = V(24, 4)
    def acc(ft, sl): return ACC + (ft*2 + sl)*4
    Z2V = V(12, 4)
    KX = V(4, 4)
    KROW = [XF + 4*r for r in range(5)]
    VROW = [XF + 20, XF + 24]
    vXA = [[_pre[0], _pre[1]], [_pre[2], V()]]
    vWA = [[V(), V(), V()], [V(), V(), V()]]
    a(f"s_lshl_b32 s{sT0}, s{sKH}, 1")
    a(f"s_add_u32 s{sKKA}, s{sT0}, s{sSH}")
    a(f"s_xor_b32 s{sKKB}, s{sKKA}, 1")
    a(f"v_xor_b32 v{t0}, v{vQ}, v{vP}")
    a(f"v_lshlrev_b32 v{t2}, 8, v{vP}")
    a(f"s_lshl_b32 s{sT0}, s{sSH}, 13")
    a(f"s_lshl_b32 s{sT1}, s{sST0}, 12")
    a(f"s_add_u32 s{sT2}, s{sT0}, s{sT1}")
    a(f"s_xor_b32 s{sT1}, s{sT1}, 4096")
    a(f"s_add_u32 s{sT3}, s{sT0}, s{sT1}")
    for kkidx, sKK in ((0, sKKA), (1, sKKB)):
        a(f"s_lshl_b32 s{sT0}, s{sKK}, 2")
        a(f"v_xor_b32 v{t1}, s{sT0}, v{t0}")
        a(f"v_lshl_add_u32 v{t1}, v{t1}, 4, v{t2}")
        a(f"v_add_u32 v{vXA[kkidx][0]}, s{sT2}, v{t1}")
        a(f"v_add_u32 v{vXA[kkidx][1]}, s{sT3}, v{t1}")
    a(f"v_lshrrev_b32 v{t1}, 2, v{vP}")
    a(f"v_lshl_add_u32 v{t0}, v{vQ}, 3, v{t1}")
    a(f"v_mul_u32_u24 v{t0}, 192, v{t0}")
    a(f"v_and_b32 v{t1}, 3, v{vP}")
    a(f"v_lshl_add_u32 v{t0}, v{t1}, 3, v{t0}")
    a(f"v_and_b32 v{t1}, 1, v{vQ}")
    a(f"s_mul_i32 s{sT3}, s{sFH}, 3")
    a(f"s_mul_i32 s{sT1}, s{sKKA}, 6144")
    a(f"s_add_u32 s{sT1}, s{sT1}, {WR}")
    a(f"s_mul_i32 s{sT2}, s{sKKB}, 6144")
    a(f"s_add_u32 s{sT2}, s{sT2}, {WR}")
    for ft in range(3):
        a(f"s_add_u32 s{sT0}, s{sT3}, {ft}")
        a(f"v_xor_b32 v{t2}, s{sT0}, v{t1}")
        a(f"v_lshl_add_u32 v{t2}, v{t2}, 5, v{t0}")
        a(f"v_add_u32 v{vWA[0][ft]}, s{sT1}, v{t2}")
        a(f"v_add_u32 v{vWA[1][ft]}, s{sT2}, v{t2}")
    CSA = V(12, 4)
    XSA = V(4, 4); XQA = V(4, 4)
    ONE = V(4, 4)
    for i in range(4): a(f"v_mov_b32 v{ONE+i}, s{sONES}")
    vC1 = XSA + 2
    vMR = XQA; vM, vR = vMR, vMR + 1
    vRB = XQA + 2
    a(f"v_mul_u32_u24 v{vRP}, 205, v{vL}")
    a(f"v_lshrrev_b32 v{vRP}, 11, v{vRP}")
    a(f"v_mul_u32_u24 v{t0}, 10, v{vRP}")
    a(f"v_sub_u32 v{vPP}, v{vL}, v{t0}")
    a(f"s_lshl_b32 s{sT0}, s{sW}, 3")
    a(f"v_lshl_add_u32 v{t0}, v{vRP}, 1, s{sT0}")
    a(f"v_min_u32 v{t0}, 62, v{t0}")
    a(f"v_mul_u32_u24 v{t0}, 160, v{t0}")
    a(f"v_lshl_add_u32 v{vKV}, v{vPP}, 4, v{t0}")

    kv = {}
    zfin = {}
    vTO2 = KX + 3
    a(f"v_lshlrev_b32 v{vTO2}, 10, v{vL}")
    def kv_loads():
        a(f"v_add_u32 v{t0}, {KS}, v{vKV}")
        for i in range(5):
            a.ds(f"ds_read_b128 v[{KROW[i]}:{KROW[i]+3}], v{t0} offset:{160*i}")
        a(f"v_add_u32 v{t0}, {VS}, v{vKV}")
        a.ds(f"ds_read_b128 v[{VROW[0]}:{VROW[0]+3}], v{t0}")
        kv['last'] = a.ds(f"ds_read_b128 v[{VROW[1]}:{VROW[1]+3}], v{t0} offset:160")

    def kv_compute():
        KT = XF + 32
        kf = KT; wp = KT + 10; r0 = KT + 18; r1 = KT + 20; vf0 = KT + 22; vf1 = KT + 24; o = KT + 26
        SK = KT + 28
        vTA = vKV
        a.wait_lg(kv['last']); yield
        a(f"v_mul_u32_u24 v{vTA}, {8*144}, v{vPP}"); yield
        a(f"v_lshlrev_b32 v{o}, 2, v{vRP}"); yield
        a(f"v_sub_u32 v{vTA}, v{vTA}, v{o}"); yield
        a(f"s_lshl_b32 s{sT0}, s{sW}, 4")
        a(f"s_add_u32 s{sT0}, s{sT0}, {TB + 12}")
        a(f"v_add_u32 v{vTA}, s{sT0}, v{vTA}"); yield
        a(f"v_lshlrev_b32 v{vPP}, 6, v{vPP}"); yield
        a(f"v_add_u32 v{vPP}, {SHKL}, v{vPP}"); yield
        for i in range(4):
            if i % 2 == 0:
                a.ds(f"ds_read_b128 v[{SK}:{SK+3}], v{vPP} offset:{(i//2)*32}")
                d = a.ds(f"ds_read_b128 v[{SK+4}:{SK+7}], v{vPP} offset:{(i//2)*32 + 16}"); yield
            for r in range(5):
                a(f"v_lshlrev_b32 v{kf+2*r}, 16, v{KROW[r]+i}"); yield
                a(f"v_and_b32 v{kf+2*r+1}, 0xffff0000, v{KROW[r]+i}"); yield
            if i % 2 == 0:
                a.wait_lg(d)
            for t in range(4):
                ra = SK + 2*(2*(i % 2)) + (t >> 1); rb_ = SK + 2*(2*(i % 2) + 1) + (t >> 1)
                if t & 1:
                    a(f"v_and_b32 v{wp+2*t}, 0xffff0000, v{ra}"); yield
                    a(f"v_and_b32 v{wp+2*t+1}, 0xffff0000, v{rb_}"); yield
                else:
                    a(f"v_lshlrev_b32 v{wp+2*t}, 16, v{ra}"); yield
                    a(f"v_lshlrev_b32 v{wp+2*t+1}, 16, v{rb_}"); yield
            for t in range(4):
                for (dst, top) in ((r0, 3), (r1, 4)):
                    if t == 0: yield from pkop(a, "mul", dst, kf+2*top, wp, pk=True)
                    else: yield from pkop(a, "fma", dst, kf+2*(top-t), wp+2*t, dst, pk=True)
            for (vf, rr) in ((vf0, 0), (vf1, 1)):
                a(f"v_lshlrev_b32 v{vf}, 16, v{VROW[rr]+i}"); yield
                a(f"v_and_b32 v{vf+1}, 0xffff0000, v{VROW[rr]+i}"); yield
            yield from pkop(a, "mul", r0, r0, vf0, pk=True)
            yield from pkop(a, "mul", r1, r1, vf1, pk=True)
            a(f"v_cvt_pk_bf16_f32 v{o}, v{r1}, v{r0}"); yield
            a(f"v_cvt_pk_bf16_f32 v{o+1}, v{r1+1}, v{r0+1}"); yield
            a(f"s_mov_b32 exec_hi, 0xff")
            a.ds(f"ds_write_b32 v{vTA}, v{o} offset:{(2*i)*144}")
            a.ds(f"ds_write_b32 v{vTA}, v{o+1} offset:{(2*i+1)*144}")
            a(f"s_mov_b32 exec_hi, -1"); yield

    def kv_store():
        for rnd in range(2):
            T4 = XF + 72 + 4*rnd
            a(f"s_lshl_b32 s{sT0}, s{sW}, 3")
            if rnd: a(f"s_add_u32 s{sT0}, s{sT0}, 64")
            a(f"v_lshrrev_b32 v{t0}, 3, v{vL}")
            a(f"v_add_u32 v{t0}, s{sT0}, v{t0}"); yield
            a(f"v_and_b32 v{t1}, 7, v{vL}")
            a(f"v_lshlrev_b32 v{t1}, 4, v{t1}"); yield
            a(f"v_mul_u32_u24 v{t2}, 144, v{t0}")
            a(f"v_add_u32 v{t2}, v{t2}, v{t1}")
            a(f"v_add_u32 v{t2}, {TB}, v{t2}"); yield
            d = a.ds(f"ds_read_b128 v[{T4}:{T4+3}], v{t2}"); yield
            a(f"v_lshlrev_b32 v{t0}, 12, v{t0}")
            a(f"v_add_u32 v{t0}, v{t0}, v{t1}"); yield
            a.wait_lg(d)
            if rnd == 0:
                a.vmem(f"buffer_store_dwordx4 v[{T4}:{T4+3}], v{t0}, s[{sWS}:{sWS+3}], s{sKVB} offen"); yield
            else:
                lab = a.newlabel("k1_kvskip")
                a(f"s_cmp_ge_u32 s{sW}, 2")
                a(f"s_cbranch_scc1 {lab}")
                a(f"buffer_store_dwordx4 v[{T4}:{T4+3}], v{t0}, s[{sWS}:{sWS+3}], s{sKVB} offen")
                a.vm -= 1
                a.label(lab); yield

    def reads_g(p):
        sc = p % 5; b = p & 1
        so = (p % 3)*SLOT
        for kk in range(2):
            for ft in range(3):
                r = wf(b, kk, ft)
                a.ds(f"ds_read_b64_tr_b16 v[{r}:{r+1}], v{vWA[kk][ft]} offset:{so}"); yield
                a.ds(f"ds_read_b64_tr_b16 v[{r+2}:{r+3}], v{vWA[kk][ft]} offset:{so + 768}"); yield
        if p < 5:
            if p == 4:
                for kk in range(2):
                    for sl in range(2):
                        a(f"v_add_u32 v{vXA[kk][sl]}, 0x10000, v{vXA[kk][sl]}")
            for kk in range(2):
                for sl in range(2):
                    off = XR + (sc*16384 if p < 4 else 0)
                    a.ds(f"ds_read_b128 v[{xf(sc,kk,sl)}:{xf(sc,kk,sl)+3}], v{vXA[kk][sl]} offset:{off}"); yield
    def reads(p): run(reads_g(p))

    def mfmas(p, fill, nfill, dmaf=None):
        sc = p % 5; b = p & 1
        first = (sc == 0)
        ops = []
        for kk in range(2):
            for ft in range(3):
                for sl in range(2):
                    c = "0" if (first and kk == 0) else f"v[{acc(ft,sl)}:{acc(ft,sl)+3}]"
                    ops.append(f"v_mfma_f32_16x16x32_bf16 v[{acc(ft,sl)}:{acc(ft,sl)+3}], v[{wf(b,kk,ft)}:{wf(b,kk,ft)+3}], v[{xf(sc,kk,sl)}:{xf(sc,kk,sl)+3}], {c}")
                if kk == 0:
                    c = "0" if first else f"v[{CSA+4*ft}:{CSA+4*ft+3}]"
                    ops.append(f"v_mfma_f32_16x16x32_bf16 v[{CSA+4*ft}:{CSA+4*ft+3}], v[{wf(b,0,ft)}:{wf(b,0,ft)+3}], v[{ONE}:{ONE+3}], {c}")
            if p < 5:
                x = xf(sc, kk, 0)
                c = "0" if (first and kk == 0) else f"v[{XSA}:{XSA+3}]"
                ops.append(f"v_mfma_f32_16x16x32_bf16 v[{XSA}:{XSA+3}], v[{ONE}:{ONE+3}], v[{x}:{x+3}], {c}")
                c = "0" if (first and kk == 0) else f"v[{XQA}:{XQA+3}]"
                ops.append(f"v_mfma_f32_16x16x32_bf16 v[{XQA}:{XQA+3}], v[{x}:{x+3}], v[{x}:{x+3}], {c}")
        nd = 0
        for oi, o in enumerate(ops):
            a(o)
            if dmaf is not None and oi % 3 == 1: dmaf.step(1)
            fill.step(nfill)
        if dmaf is not None: dmaf.drain()

    def exchange_write(ps, dst):
        T = TMP
        a(f"v_lshl_add_u32 v{t0}, v{vL}, 4, s{sEXW}")
        a(f"v_lshl_add_u32 v{t1}, v{vQ}, 4, s{sCSW}")
        for ft in range(3):
            a.ds(f"ds_write_b128 v{t0}, v[{acc(ft,1)}:{acc(ft,1)+3}] offset:{ft*1024}")
        a(f"s_mov_b32 exec_lo, 0x00010001")
        a(f"s_mov_b32 exec_hi, 0x00010001")
        for ft in range(3):
            a.ds(f"ds_write_b128 v{t1}, v[{CSA+4*ft}:{CSA+4*ft+3}] offset:{ps*1536 + ft*64}")
        a(f"s_mov_b64 exec, -1")
        if ps == 0:
            a(f"v_and_b32 v{T}, 3, v{vP}")
            a(f"v_cmp_eq_u32 vcc, 1, v{T}")
            a(f"v_cndmask_b32 v{XSA+1}, v{XQA}, v{XQA+1}, vcc")
            a(f"v_cmp_eq_u32 vcc, 2, v{T}")
            a(f"v_cndmask_b32 v{XSA+1}, v{XSA+1}, v{XQA+2}, vcc")
            a(f"v_cmp_eq_u32 vcc, 3, v{T}")
            a(f"v_cndmask_b32 v{XSA+1}, v{XSA+1}, v{XQA+3}, vcc")
            a(f"v_lshl_add_u32 v{t2}, v{vP}, 3, s{sXSW}")
            a(f"s_mov_b32 exec_lo, 0x00F0000F")
            a(f"s_mov_b32 exec_hi, 0xF0000F00")
            a.ds(f"ds_write_b64 v{t2}, {P(XSA)}")
            a(f"s_mov_b64 exec, -1")
        for ft in range(3):
            for h in range(2):
                a(f"v_pk_add_f32 {P(dst+4*ft+2*h)}, {P(acc(ft,0)+2*h)}, 0")
        if ps == 0:
            a(f"v_mov_b32 v{vC1}, {f32(-C1):#x}"); a(f"v_mov_b32 v{vC1+1}, {f32(-C1):#x}")

    def fold_gelu(ps, dst, E, X, C):
        a(f"v_lshl_add_u32 v{t0}, v{vL}, 4, s{sEXR}")
        if ps == 0:
            a(f"v_lshl_add_u32 v{t1}, v{vP}, 3, s{sXSR}")
            a.ds(f"ds_read_b64 {P(X)}, v{t1}")
            dx = a.ds(f"ds_read_b64 {P(X+2)}, v{t1} offset:128")
        ids = [a.ds(f"ds_read_b128 v[{E+4*ft}:{E+4*ft+3}], v{t0} offset:{ft*1024}") for ft in range(3)]
        a(f"v_lshl_add_u32 v{t2}, v{vQ}, 4, s{sCSR}")
        cid = []
        for q in range(4):
            for ft in range(3):
                cid.append(a.ds(f"ds_read_b128 v[{C[q]+4*ft}:{C[q]+4*ft+3}], v{t2} offset:{ps*1536 + q*192 + ft*64}"))
        if ps == 0:
            a.wait_lg(dx)
            a(f"v_pk_add_f32 {P(vMR)}, {P(X)}, {P(X+2)}")
            a(f"v_mul_f32 v{vM}, {f32(1.0/640):#x}, v{vM}")
            a(f"v_mul_f32 v{vR}, {f32(1.0/640):#x}, v{vR}")
            a(f"v_fma_f32 v{vR}, -v{vM}, v{vM}, v{vR}")
            run(ln_finish_gen(a, vM, vR, sEPS))
            a(f"v_mov_b32 v{vRB}, v{vR}")
        a.wait_lg(ids[2])
        for i in range(0, 12, 2): a(f"v_pk_add_f32 {P(dst+i)}, {P(dst+i)}, {P(E+i)}")
        a.wait_lg(cid[5])
        for i in range(0, 12, 2): a(f"v_pk_add_f32 {P(C[0]+i)}, {P(C[0]+i)}, {P(C[1]+i)}")
        a.wait_lg(cid[11])
        for i in range(0, 12, 2): a(f"v_pk_add_f32 {P(C[2]+i)}, {P(C[2]+i)}, {P(C[3]+i)}")
        for i in range(0, 12, 2): a(f"v_pk_add_f32 {P(C[0]+i)}, {P(C[0]+i)}, {P(C[2]+i)}")
        for i in range(0, 12, 2):
            a(f"v_pk_fma_f32 {P(dst+i)}, {P(C[0]+i)}, {P(vMR)}, {P(dst+i)} op_sel_hi:[1,0,1] neg_lo:[0,1,0] neg_hi:[0,1,0]")
        for i in range(0, 12, 2): a(f"v_pk_mul_f32 {P(dst+i)}, {P(dst+i)}, {P(vRB)} op_sel_hi:[1,0]")
        T = E
        for i in range(0, 12, 2): a(f"v_pk_mul_f32 {P(T+i)}, {P(dst+i)}, {P(dst+i)}")
        for i in range(0, 12, 2): a(f"v_pk_fma_f32 {P(T+i)}, {P(T+i)}, s[{sNC2}:{sNC2+1}], {P(vC1)}")
        for i in range(0, 12, 2): a(f"v_pk_mul_f32 {P(T+i)}, {P(T+i)}, {P(dst+i)}")
        for i in range(12): a(f"v_exp_f32 v{T+i}, v{T+i}")
        for i in range(0, 12, 2): a(f"v_pk_add_f32 {P(T+i)}, {P(T+i)}, 1.0 op_sel_hi:[1,0]")
        for i in range(12): a(f"v_rcp_f32 v{T+i}, v{T+i}")
        for i in range(0, 12, 2): a(f"v_pk_mul_f32 {P(dst+i)}, {P(dst+i)}, {P(T+i)}")

    def z2_stats():
        T = TMP
        a(f"v_pk_add_f32 {P(T+6)}, {P(Z2V)}, {P(Z2V+2)}"); yield
        a(f"v_pk_mul_f32 {P(T+8)}, {P(Z2V)}, {P(Z2V)}"); yield
        a(f"v_pk_add_f32 {P(T+10)}, {P(Z2V+4)}, {P(Z2V+6)}"); yield
        a(f"v_pk_fma_f32 {P(T+8)}, {P(Z2V+2)}, {P(Z2V+2)}, {P(T+8)}"); yield
        a(f"v_pk_add_f32 {P(T+12)}, {P(Z2V+8)}, {P(Z2V+10)}"); yield
        a(f"v_pk_fma_f32 {P(T+8)}, {P(Z2V+4)}, {P(Z2V+4)}, {P(T+8)}"); yield
        a(f"v_pk_add_f32 {P(T+6)}, {P(T+6)}, {P(T+10)}"); yield
        a(f"v_pk_fma_f32 {P(T+8)}, {P(Z2V+6)}, {P(Z2V+6)}, {P(T+8)}"); yield
        a(f"v_pk_add_f32 {P(T+6)}, {P(T+6)}, {P(T+12)}"); yield
        a(f"v_pk_fma_f32 {P(T+8)}, {P(Z2V+8)}, {P(Z2V+8)}, {P(T+8)}"); yield
        a(f"v_pk_fma_f32 {P(T+8)}, {P(Z2V+10)}, {P(Z2V+10)}, {P(T+8)}"); yield
        a(f"v_add_f32 v{T}, v{T+6}, v{T+7}"); yield
        a(f"v_add_f32 v{T+1}, v{T+8}, v{T+9}"); yield
        a(f"v_lshl_add_u32 v{t0}, v{vP}, 3, s{sZSW}"); yield
        yield from reduce_g4_multi(a, [T, T+1], [T+4, T+5])
        a(f"s_mov_b64 exec, 0xffff")
        a.ds(f"ds_write_b64 v{t0}, {P(T)}")
        a(f"s_mov_b64 exec, -1"); yield

    def xst_store():
        a(f"s_or_b32 s{sT0}, s{sJ}, s{sFH}")
        a(f"s_cmp_eq_u32 s{sT0}, 0")
        a(f"v_lshlrev_b32 v{t0}, 3, v{vP}")
        a(f"s_cselect_b64 exec, 0xffff, 0")
        a.vmem(f"buffer_store_dwordx2 {P(vMR)}, v{t0}, s[{sWS}:{sWS+3}], s{sXST} offen" + (" sc1" if fused else ""))
        a(f"s_mov_b64 exec, -1")
        yield

    sGU = 89
    a(f"s_lshl_b32 s{sGU}, s2, 3")
    a(f"s_add_u32 s{sGU}, s{sGU}, s{sW}")
    def mall_touch(srd, nper, first, count):
        if "nomall" in K1X: return
        a(f"s_mul_i32 s{sT0}, s{sGU}, {nper*128}")
        a(f"s_add_u32 s{sT0}, s{sT0}, {first*128}")
        mask(a, count)
        a.vmem(f"buffer_load_dword v{vDummy}, v{vTO}, s[{srd}:{srd+3}], s{sT0} offen")
        mask(a, 64)

    def l2_touch_wsp(i):
        a(f"s_add_u32 s{sT0}, s{sL2B}, {i*128}")
        mask(a, 8)
        a.vmem(f"buffer_load_dword v{vDummy}, v{vTO2}, s[{sWSP}:{sWSP+3}], s{sT0} offen")
        mask(a, 64)

    def epoch_load():
        a(f"v_mov_b32 v{KX+2}, {WS_EPO}")
        zfin['ep'] = a.vmem(f"buffer_load_dwordx2 {P(KX)}, v{KX+2}, s[{sWS}:{sWS+3}], 0 offen sc1")

    def gen1(f):
        f(); yield

    SP = TMP + 20
    vFA = vXD[0]
    vDummy2 = vPP
    def stats_load():
        a(f"v_lshlrev_b32 v{vFA}, 4, v{vP}")
        a(f"v_lshl_add_u32 v{vFA}, v{vQ}, 11, v{vFA}")
        a.vmem(f"buffer_load_dwordx4 v[{SP}:{SP+3}], v{vFA}, s[{sWS}:{sWS+3}], s{sZRB} offen sc1")
        zfin['sp'] = a.vmem(f"buffer_load_dwordx4 v[{SP+4}:{SP+7}], v{vFA}, s[{sWS}:{sWS+3}], s{sZRB} offen offset:1024 sc1")
    def stats_check():
        a.wait_vm(zfin['sp'])
        lp = a.newlabel("k1_poll"); lp2 = a.newlabel("k1_polled")
        a(f"s_mov_b32 s{sD0}, 0")
        a.label(lp)
        a(f"s_add_u32 s{sD0}, s{sD0}, 1")
        a(f"s_cmp_gt_u32 s{sD0}, 100000")
        a(f"s_cbranch_scc1 {lp2}")
        a(f"v_cmp_ne_u32 vcc, s{sTAG}, v{SP+2}")
        a(f"v_cmp_ne_u32 s[{sT2}:{sT2+1}], s{sTAG+1}, v{SP+3}")
        a(f"s_or_b64 vcc, vcc, s[{sT2}:{sT2+1}]")
        a(f"v_cmp_ne_u32 s[{sT2}:{sT2+1}], s{sTAG}, v{SP+6}")
        a(f"s_or_b64 vcc, vcc, s[{sT2}:{sT2+1}]")
        a(f"v_cmp_ne_u32 s[{sT2}:{sT2+1}], s{sTAG+1}, v{SP+7}")
        a(f"s_or_b64 vcc, vcc, s[{sT2}:{sT2+1}]")
        if 'nopoll' in K1X: a("s_mov_b64 vcc, 0")
        a(f"s_cmp_eq_u64 vcc, 0")
        a(f"s_cbranch_scc1 {lp2}")
        a("s_sleep 4")
        a(f"buffer_load_dwordx4 v[{SP}:{SP+3}], v{vFA}, s[{sWS}:{sWS+3}], s{sZRB} offen sc1")
        a(f"buffer_load_dwordx4 v[{SP+4}:{SP+7}], v{vFA}, s[{sWS}:{sWS+3}], s{sZRB} offen offset:1024 sc1")
        a.vm -= 2
        a("s_waitcnt vmcnt(0)")
        a(f"s_branch {lp}")
        a.label(lp2)
    def z2_normalize():
        vZW = vRP
        a(f"s_lshl_b32 s{sT0}, s{sST}, 4")
        a(f"v_add_u32 v{vZW}, s{sT0}, v{vP}")
        a(f"v_mul_u32_u24 v{vZW}, 200, v{vZW}")
        a(f"v_lshl_add_u32 v{vZW}, v{vQ}, 3, v{vZW}")
        a(f"s_mul_i32 s{sT0}, s{sFH}, 96")
        a(f"s_add_u32 s{sT0}, s{sT0}, {ZT}")
        a(f"v_add_u32 v{vZW}, s{sT0}, v{vZW}")
        stats_check()
        lab = a.newlabel("k1_ep")
        a(f"s_xor_b32 s{sT0}, s{sW}, 1")
        a(f"s_or_b32 s{sT0}, s{sT0}, s{sJ}")
        a(f"s_cmp_lg_u32 s{sT0}, 0")
        a(f"s_cbranch_scc1 {lab}")
        a(f"v_mov_b32 v{t0}, 0")
        a(f"v_mov_b32 v{vDummy2}, 1")
        a(f"s_mov_b64 exec, 1")
        a(f"buffer_atomic_add v{vDummy2}, v{t0}, s[{sDBG}:{sDBG+3}], 0 offen sc0")
        a(f"s_mov_b64 exec, -1")
        a.vm -= 1
        a.label(lab)
        mq = TMP
        a(f"v_pk_add_f32 {P(mq)}, {P(SP)}, {P(SP+4)}")
        run(reduce_g4_multi(a, [mq, mq+1], [TMP+2, TMP+3]))
        a(f"v_mul_f32 v{mq}, {f32(1.0/768):#x}, v{mq}")
        a(f"v_mul_f32 v{mq+1}, {f32(1.0/768):#x}, v{mq+1}")
        a(f"v_fma_f32 v{mq+1}, -v{mq}, v{mq}, v{mq+1}")
        run(ln_finish_gen(a, mq, mq+1, sEPS))
        a(f"v_mov_b32 v{TMP+2}, v{mq+1}")
        for i in range(0, 12, 2):
            a(f"v_pk_add_f32 {P(Z2V+i)}, {P(Z2V+i)}, {P(mq)} op_sel_hi:[1,0] neg_lo:[0,1] neg_hi:[0,1]")
        for i in range(0, 12, 2):
            a(f"v_pk_mul_f32 {P(Z2V+i)}, {P(Z2V+i)}, {P(TMP+2)} op_sel_hi:[1,0]")
        for ft in range(3):
            a(f"v_cvt_pk_bf16_f32 v{TMP+8+2*ft}, v{Z2V+4*ft}, v{Z2V+4*ft+1}")
            a(f"v_cvt_pk_bf16_f32 v{TMP+8+2*ft+1}, v{Z2V+4*ft+2}, v{Z2V+4*ft+3}")
            a.ds(f"ds_write_b64 v{vZW}, {P(TMP+8+2*ft)} offset:{32*ft}")

    PUB = int(os.environ.get("PUB", "6"))
    NF5 = int(os.environ.get("NF5", "5"))
    fill = Filler()
    A, B, C_ = sT0, sT1, sT2
    a(f"s_mul_i32 s{sEXW}, s{sW}, 3072"); a(f"s_add_u32 s{sEXW}, s{sEXW}, {EX}")
    a(f"s_xor_b32 s{A}, s{sW}, 4"); a(f"s_mul_i32 s{sEXR}, s{A}, 3072"); a(f"s_add_u32 s{sEXR}, s{sEXR}, {EX}")
    a(f"s_lshl_b32 s{A}, s{sFH}, 2"); a(f"s_lshl_b32 s{B}, s{sSH}, 1"); a(f"s_add_u32 s{A}, s{A}, s{B}"); a(f"s_add_u32 s{A}, s{A}, s{sKH}")
    a(f"s_mul_i32 s{sCSW}, s{A}, 192"); a(f"s_add_u32 s{sCSW}, s{sCSW}, {CSUM}")
    a(f"s_mul_i32 s{sCSR}, s{sFH}, 768"); a(f"s_add_u32 s{sCSR}, s{sCSR}, {CSUM}")
    a(f"s_lshl_b32 s{A}, s{sST}, 1"); a(f"s_add_u32 s{A}, s{A}, s{sKH}"); a(f"s_lshl_b32 s{A}, s{A}, 7"); a(f"s_add_u32 s{sXSW}, s{A}, {XSUM}")
    a(f"s_lshl_b32 s{A}, s{sST}, 8"); a(f"s_add_u32 s{sXSR}, s{A}, {XSUM}")
    a(f"s_lshl_b32 s{A}, s{sST}, 7"); a(f"s_lshl_b32 s{B}, s{sFH}, 9"); a(f"s_add_u32 s{A}, s{A}, s{B}"); a(f"s_add_u32 s{sZSW}, s{A}, {ZSUM}")
    a(f"s_lshl_b32 s{A}, s{sRB}, 3"); a(f"s_add_u32 s{A}, s{A}, s{sJ}"); a(f"s_lshl_b32 s{B}, s{A}, 10"); a(f"s_add_u32 s{sZPB}, s{B}, {WS_ZST}")
    if fused: a(f"s_mov_b32 s{A}, 0")
    else: a(f"s_mul_i32 s{A}, s{A}, 12288")
    a(f"s_lshr_b32 s{B}, s{sST}, 1"); a(f"s_mul_i32 s{B}, s{B}, 6144"); a(f"s_add_u32 s{A}, s{A}, s{B}")
    a(f"s_and_b32 s{B}, s{sST}, 1"); a(f"s_lshl_b32 s{B}, s{B}, 8"); a(f"s_add_u32 s{A}, s{A}, s{B}"); a(f"s_add_u32 s{A}, s{A}, {Z1L if fused else WS_Z1F}")
    for ft, dst in enumerate((sZ1S0, sZ1S1, sZ1S2)):
        a(f"s_mul_i32 s{B}, s{sFH}, 3"); a(f"s_add_u32 s{B}, s{B}, {ft}")
        a(f"s_lshr_b32 s{C_}, s{B}, 1"); a(f"s_lshl_b32 s{C_}, s{C_}, 10"); a(f"s_and_b32 s{B}, s{B}, 1"); a(f"s_lshl_b32 s{B}, s{B}, 3")
        a(f"s_add_u32 s{dst}, s{A}, s{B}"); a(f"s_add_u32 s{dst}, s{dst}, s{C_}")
    a(f"s_lshl_b32 s{A}, s{sRB}, 13"); a(f"s_lshl_b32 s{B}, s{sST}, 8"); a(f"s_add_u32 s{A}, s{A}, s{B}"); a(f"s_add_u32 s{sZRB}, s{A}, {WS_ZST}")
    a(f"s_lshl_b32 s{A}, s{sRB}, 9"); a(f"s_lshl_b32 s{B}, s{sST}, 7"); a(f"s_add_u32 s{A}, s{A}, s{B}"); a(f"s_add_u32 s{sXST}, s{A}, {WS_XST}")
    a(f"s_mul_i32 s{A}, s{sJ}, {80*4096}"); a(f"s_lshl_b32 s{B}, s{sRB}, 7"); a(f"s_add_u32 s{A}, s{A}, s{B}"); a(f"s_add_u32 s{sKVB}, s{A}, {WS_KVT}")
    a(f"s_lshr_b32 s{A}, s2, 3"); a(f"s_lshl_b32 s{A}, s{A}, 3"); a(f"s_add_u32 s{A}, s{A}, s{sW}"); a(f"s_lshl_b32 s{A}, s{A}, 13")
    a(f"s_lshl_b32 s{B}, s{sXC}, 21"); a(f"s_add_u32 s{sL2B}, s{A}, s{B}")
    for rnd in range(2):
        a(f"s_add_u32 s{sT3}, s{sW}, {8*rnd}")
        a(f"s_mul_i32 s{A}, s{sT3}, 43"); a(f"s_lshr_b32 s{A}, s{A}, 7")
        a(f"s_mul_i32 s{B}, s{A}, 3"); a(f"s_sub_u32 s{B}, s{sT3}, s{B}")
        a(f"s_mul_i32 s{A}, s{A}, {16*200}"); a(f"s_lshl_b32 s{B}, s{B}, 6"); a(f"s_add_u32 s{A}, s{A}, s{B}")
        a(f"s_add_u32 s{sZ2L[rnd]}, s{A}, {ZT}")
        a(f"s_lshl_b32 s{A}, s{sJ}, 7"); a(f"s_lshl_b32 s{B}, s{sRB}, 2"); a(f"s_add_u32 s{A}, s{A}, s{B}"); a(f"s_mul_i32 s{A}, s{A}, 3")
        a(f"s_add_u32 s{A}, s{A}, s{sT3}"); a(f"s_lshl_b32 s{A}, s{A}, 10"); a(f"s_add_u32 s{sZ2G[rnd]}, s{A}, {WS_Z2F}")
    if "pro" in K1X: ST("setup")
    a.wait_vm(max(w_last[0], x_last[0]))
    if "pro" in K1X: ST("w0arr")
    a("s_waitcnt lgkmcnt(0)")
    a(f"s_add_u32 s{sTAG}, s{sTAG}, 1")
    a(f"s_addc_u32 s{sTAG+1}, s{sTAG+1}, 0")
    a("s_barrier")
    ST("d0")
    reads(0)
    dma_x(2); dma_w(2)
    for p in range(10):
        a.comment(f"---------------- iteration {p}")
        if p + 1 < 10:
            need = w_last[p+1]
            if p + 1 < 5: need = max(need, x_last[p+1])
            a.wait_vm(need)
        if "f5" in K1X and p in (5, 6): ST(f"w{p}")
        a("s_waitcnt lgkmcnt(0)")
        a("s_barrier")
        if ("pro" not in K1X or p < 2) and ("pubst" not in K1X or p in (6, 7, 8, 9)): ST(f"i{p}")
        if p == PUB:
            lab = a.newlabel("k1_pub")
            a(f"s_cmp_lg_u32 s{sW}, 0")
            a(f"s_cbranch_scc1 {lab}")
            a(f"v_lshlrev_b32 v{t0}, 3, v{vL}")
            a(f"v_add_u32 v{t1}, {ZSUM}, v{t0}")
            a(f"ds_read_b64 {P(TMP)}, v{t1}")
            a(f"ds_read_b64 {P(TMP+4)}, v{t1} offset:512")
            a(f"v_lshlrev_b32 v{t0}, 4, v{vL}")
            a(f"v_mov_b32 v{TMP+2}, s{sTAG}")
            a(f"v_mov_b32 v{TMP+3}, s{sTAG+1}")
            a("s_waitcnt lgkmcnt(0)")
            a(f"v_pk_add_f32 {P(TMP)}, {P(TMP)}, {P(TMP+4)}")
            a.lg -= 2
            a.label(lab)
            a(f"s_cmp_eq_u32 s{sW}, 0")
            a(f"s_cselect_b64 exec, -1, 0")
            a.vmem(f"buffer_store_dwordx4 v[{TMP}:{TMP+3}], v{t0}, s[{sWS}:{sWS+3}], s{sZPB} offen sc1")
            a(f"s_mov_b64 exec, -1")
        if p + 1 < 10 and "nocomp" not in K1X:
            if "rdfirst" in K1X: reads(p + 1)
            else: fill.add(reads_g(p + 1))
        dmaf = Filler()
        if p + 3 < 5: dmaf.add(dma_x_g(p + 3))
        if p + 3 < 10: dmaf.add(dma_w_g(p + 3))
        if p == int(os.environ.get("KVD", "5")): dmaf.add(kv_dma())
        sched = {"a": {1:[0],2:[1],3:[2],4:[3],5:[4],6:[5],7:[6],8:[7]},
                 "b": {5:[0,1],6:[2,3],7:[4,5],8:[6,7]},
                 "c": {4:[0],5:[1],6:[2,3],7:[4,5],8:[6,7]},
                 "d": {6:[0,1,2],7:[3,4,5],8:[6,7]},
                 "e": {7:[0,1,2,3],8:[4,5,6,7]}}[os.environ.get("L2S", "a")]
        for i_ in sched.get(p, []):
            if "l2pf" in K1X: dmaf.add(gen1(lambda i_=i_: l2_touch_wsp(i_)))
            else: dmaf.add(gen1(lambda i_=i_: mall_touch(sWSP, 32, i_*4, 4)))
        if p in (2, 5): dmaf.add(gen1(lambda p=p: mall_touch(sSSM, 10, 0 if p == 2 else 5, 5)))
        if p == 7 and "nowo" not in K1X: dmaf.add(gen1(lambda: mall_touch(sWOU, 4, 0, 4)))
        if p == int(os.environ.get('SLD', '9')): stats_load()
        nf = 0 if "rdfirst" in K1X else 2
        if p == 5:
            if "f5" in K1X: ST("f5a")
            fold_gelu(0, Z2V, TMP, TMP+12, [TMP+16, ACC, ACC+12, CSA])
            if "f5" in K1X: ST("f5b")
            run(z2_stats()); run(xst_store())
            if "f5" in K1X: ST("f5c")
        if "nocomp" in K1X:
            dmaf.drain(); fill.q = []
        else:
            mfmas(p, fill, nf, dmaf)
            fill.drain()
        if "f5" in K1X and p in (4, 5): ST(f"f{p}m")
        if p == 4: exchange_write(0, Z2V)
        if p == 9:
            if "f5" in K1X: ST("f9m")
            exchange_write(1, WF)
            kv_loads()
            run(kv_compute())
            if "f5" in K1X: ST("f9k")
            z2_normalize()
    ST("loop")
    vZR = vWA[0][1]; vZS = vWA[0][2]
    a(f"v_lshrrev_b32 v{vZR}, 1, v{vQ}")
    a(f"v_lshrrev_b32 v{t1}, 2, v{vP}")
    a(f"v_lshl_add_u32 v{vZR}, v{vZR}, 3, v{t1}")
    a(f"v_mul_u32_u24 v{vZR}, 200, v{vZR}")
    a(f"v_and_b32 v{t1}, 1, v{vQ}")
    a(f"v_lshl_add_u32 v{vZR}, v{t1}, 5, v{vZR}")
    a(f"v_and_b32 v{t1}, 3, v{vP}")
    a(f"v_lshl_add_u32 v{vZR}, v{t1}, 3, v{vZR}")
    a(f"v_lshlrev_b32 v{vZS}, 4, v{vL}")
    a("s_waitcnt lgkmcnt(0)")
    a("s_barrier")
    ST("bar")
    for rnd in range(2):
        lab = None
        if rnd == 1:
            lab = a.newlabel("k1_fr")
            a(f"s_cmp_ge_u32 s{sW}, 4")
            a(f"s_cbranch_scc1 {lab}")
        a(f"v_add_u32 v{t1}, s{sZ2L[rnd]}, v{vZR}")
        Tq = TMP + 4*rnd
        a(f"ds_read_b64_tr_b16 {P(Tq)}, v{t1}")
        a(f"ds_read_b64_tr_b16 {P(Tq+2)}, v{t1} offset:800")
        a("s_waitcnt lgkmcnt(0)")
        a(f"buffer_store_dwordx4 v[{Tq}:{Tq+3}], v{vZS}, s[{sWS}:{sWS+3}], s{sZ2G[rnd]} offen")
        if lab: a.label(lab)
    run(kv_store())
    Z1V = WF
    T2 = XF
    fold_gelu(1, Z1V, T2, T2+12, [T2+16, T2+28, T2+40, T2+52])
    a(f"v_lshrrev_b32 v{t0}, 1, v{vQ}")
    a(f"v_mul_u32_u24 v{t0}, 3072, v{t0}")
    a(f"v_and_b32 v{t1}, 1, v{vQ}")
    a(f"v_lshlrev_b32 v{t1}, 5, v{t1}")
    a(f"v_add_u32 v{t1}, v{t1}, v{vP}")
    a(f"v_lshl_add_u32 v{t0}, v{t1}, 4, v{t0}")
    for ft in range(3):
        a(f"v_cvt_pk_bf16_f32 v{T2+2*ft}, v{Z1V+4*ft}, v{Z1V+4*ft+1}")
        a(f"v_cvt_pk_bf16_f32 v{T2+2*ft+1}, v{Z1V+4*ft+2}, v{Z1V+4*ft+3}")
        if fused:
            a(f"v_add_u32 v{t1}, s{[sZ1S0, sZ1S1, sZ1S2][ft]}, v{t0}")
            a.ds(f"ds_write_b64 v{t1}, {P(T2+2*ft)}")
        else:
            a.vmem(f"buffer_store_dwordx2 {P(T2+2*ft)}, v{t0}, s[{sWS}:{sWS+3}], s{[sZ1S0, sZ1S1, sZ1S2][ft]} offen")
    lab = a.newlabel("k1_ep2")
    a(f"s_xor_b32 s{sT0}, s{sW}, 1")
    a(f"s_or_b32 s{sT0}, s{sT0}, s{sJ}")
    a(f"s_cmp_lg_u32 s{sT0}, 0")
    a(f"s_cbranch_scc1 {lab}")
    a("s_waitcnt vmcnt(0)")
    a(f"v_readfirstlane_b32 s{sT0}, v{vDummy2}")
    a(f"s_cmp_lg_u32 s{sT0}, 31")
    a(f"s_cbranch_scc1 {lab}")
    a(f"v_mov_b32 v{TMP}, s{sTAG}")
    a(f"v_mov_b32 v{TMP+1}, s{sTAG+1}")
    a(f"v_mov_b32 v{t0}, {WS_EPO}")
    a(f"s_mov_b64 exec, 1")
    a(f"buffer_store_dwordx2 {P(TMP)}, v{t0}, s[{sWS}:{sWS+3}], 0 offen sc1")
    a(f"s_mov_b64 exec, -1")
    a.label(lab)
    if fused:
        a("s_waitcnt vmcnt(0) lgkmcnt(0)")
        a("s_barrier")
        a(f"s_lshl_b32 s{sT0}, s{sJ}, 8")
        a(f"s_lshl_b32 s{sT1}, s{sRB}, 3")
        a(f"s_add_u32 s{sT0}, s{sT0}, s{sT1}")
        a(f"s_add_u32 s{sT0}, s{sT0}, {WS_F1}")
        a(f"v_mov_b32 v{TMP}, s{sTAG}")
        a(f"v_mov_b32 v{TMP+1}, s{sTAG+1}")
        a(f"v_mov_b32 v{t0}, 0")
        a(f"s_cmp_eq_u32 s{sW}, 0")
        a(f"s_cselect_b64 exec, 1, 0")
        a(f"buffer_store_dwordx2 {P(TMP)}, v{t0}, s[{sWS}:{sWS+3}], s{sT0} offen sc1")
        a(f"s_mov_b64 exec, -1")
    ST("end")
    ST.dump(sWS, sW, t0, t1, WS_DBG)
    gen_k1.stamp_names = ST.names
    if fused:
        if "st2" not in K1X: raise SystemExit("fused needs st2")
        a.items = [(k, (t + " sc1") if (k == "i" and t.startswith("buffer_store_dwordx4") and " sc1" not in t) else t) for k, t in a.items]
        return a, V.hi, sW
    a.label(f"{name}_end")
    a("s_endpgm")
    if "st2" in K1X:
        a.items = [(k, (t + " sc1") if (k == "i" and t.startswith("buffer_store_dwordx4") and " sc1" not in t) else t) for k, t in a.items]
    if "st1" in K1X:
        a.items = [(k, (t + " sc1") if (k == "i" and t.startswith("buffer_store") and " sc1" not in t) else t) for k, t in a.items]
    gen_k1.ninstr = sum(1 for k, _ in a.items if k == "i")
    return a.finish(), V.hi
```

```python
from dsl import *
from layout import *
from k1 import f32, Filler, run, mask, P, Z1L, SYNC
sTAGF = 100

def gsync(a, which, state, t0, t1):
    state[0] += 1
    a("s_waitcnt lgkmcnt(0)")
    a(f"v_mov_b32 v{t0}, {SYNC + 4*which}")
    a(f"v_mov_b32 v{t1}, 1")
    a("s_mov_b64 exec, 1")
    a(f"ds_add_u32 v{t0}, v{t1}")
    a("s_mov_b64 exec, -1")
    lp = a.newlabel("gsync"); le = a.newlabel("gsync_e")
    a("s_mov_b32 s67, 0")
    a.label(lp)
    a(f"ds_read_b32 v{t1}, v{t0}")
    a("s_add_u32 s67, s67, 1")
    a("s_waitcnt lgkmcnt(0)")
    a(f"v_readfirstlane_b32 s66, v{t1}")
    a("s_cmp_gt_u32 s67, 1000000")
    a(f"s_cbranch_scc1 {le}")
    a(f"s_cmp_lt_u32 s66, {4*state[0]}")
    a(f"s_cbranch_scc1 {lp}")
    a.label(le)
    a.lg -= 2

def poll_flags(a, sWS, sOff, F, t0):
    lp = a.newlabel("fpoll"); le = a.newlabel("fpoll_e")
    a(f"v_mbcnt_lo_u32_b32 v{t0}, -1, 0")
    a(f"v_mbcnt_hi_u32_b32 v{t0}, -1, v{t0}")
    a(f"v_and_b32 v{t0}, 31, v{t0}")
    a(f"v_lshlrev_b32 v{t0}, 3, v{t0}")
    a("s_mov_b32 s67, 0")
    a.label(lp)
    a(f"buffer_load_dwordx2 {P(F)}, v{t0}, s[{sWS}:{sWS+3}], s{sOff} offen sc1")
    a.vm -= 1
    a("s_add_u32 s67, s67, 1")
    a("s_waitcnt vmcnt(0)")
    a(f"v_cmp_ne_u32 vcc, s{sTAGF}, v{F}")
    a(f"v_cmp_ne_u32 s[64:65], s{sTAGF+1}, v{F+1}")
    a("s_or_b64 vcc, vcc, s[64:65]")
    a("s_cmp_gt_u32 s67, 100000")
    a(f"s_cbranch_scc1 {le}")
    a("s_cmp_eq_u64 vcc, 0")
    a(f"s_cbranch_scc1 {le}")
    a("s_sleep 2")
    a(f"s_branch {lp}")
    a.label(le)
import os
K2X = os.environ.get('K2X', '')

ZDEPTH = int(os.environ.get('ZD', '4'))
FUSED = bool(os.environ.get('FUSED'))
CB = 86016 if FUSED else 0
CS_ = 4160
TOEP = CB
OZ = 1
UZ = 32
UB = TOEP + 8 * CS_
PB = UB + 4608
PT_ = 8192
WJ = PB + 4*PT_
assert WJ + 5120 <= (161792 if FUSED else 81920)

def gen_gemm(a, V, ST, prof):
    sWSP, sWS, sBSP = 4, 8, 12
    sRB, sJ, sW = 32, 33, 34
    sT0, sT1, sT2, sT3 = 40, 41, 42, 43
    sZ, sWB, sLB = 44, 45, 46
    a(f"s_load_dwordx2 s[{sWSP}:{sWSP+1}], s[0:1], {KA['wsp']}")
    a(f"s_load_dwordx2 s[{sWS}:{sWS+1}], s[0:1], {KA['ws']}")
    a(f"s_load_dwordx2 s[{sBSP}:{sBSP+1}], s[0:1], {KA['bsp']}")
    vL = V(); t0, t1, t2 = V(), V(), V()
    a(f"v_lshrrev_b32 v{t0}, 6, v0")
    a(f"v_and_b32 v{vL}, 63, v0")
    a(f"v_readfirstlane_b32 s{sW}, v{t0}")
    for srd, size in ((sWSP, SZ_WSP), (sWS, WS_SIZE_DBG if prof else WS_END), (sBSP, 4096)):
        a(f"s_mov_b32 s{srd+2}, {size}")
        a(f"s_mov_b32 s{srd+3}, {SRD3:#x}")
    a(f"s_and_b32 s{sT0}, s2, 7")
    a(f"s_lshr_b32 s{sT1}, s2, 3")
    a(f"s_and_b32 s{sT1}, s{sT1}, 31")
    a(f"s_lshr_b32 s{sRB}, s{sT0}, 1")
    a(f"s_lshl_b32 s{sRB}, s{sRB}, 3")
    a(f"s_and_b32 s{sT2}, s{sT1}, 7")
    a(f"s_add_u32 s{sRB}, s{sRB}, s{sT2}")
    a(f"s_and_b32 s{sJ}, s{sT0}, 1")
    a(f"s_lshl_b32 s{sJ}, s{sJ}, 2")
    a(f"s_lshr_b32 s{sT2}, s{sT1}, 3")
    a(f"s_add_u32 s{sJ}, s{sJ}, s{sT2}")
    a(f"s_lshl_b32 s{sZ}, s{sJ}, 7")
    a(f"s_lshl_b32 s{sT0}, s{sW}, 5")
    a(f"s_add_u32 s{sZ}, s{sZ}, s{sT0}")
    a(f"s_mul_i32 s{sZ}, s{sZ}, 3072")
    a(f"s_add_u32 s{sZ}, s{sZ}, {WS_Z2F}")
    a(f"s_lshl_b32 s{sWB}, s{sRB}, 18")
    a(f"s_lshl_b32 s{sT0}, s{sW}, 10")
    a(f"s_add_u32 s{sWB}, s{sWB}, s{sT0}")
    a(f"s_lshl_b32 s{sLB}, s{sW}, 14")
    vZ = V()
    a(f"v_lshlrev_b32 v{vZ}, 4, v{vL}")
    vWE, vWO = V(), V()
    a(f"v_lshrrev_b32 v{t0}, 3, v{vL}")
    a(f"v_lshlrev_b32 v{t0}, 12, v{t0}")
    a(f"v_and_b32 v{t1}, 7, v{vL}")
    a(f"v_lshrrev_b32 v{t2}, 4, v{vL}")
    a(f"v_xor_b32 v{t1}, v{t1}, v{t2}")
    a(f"v_lshl_add_u32 v{vWE}, v{t1}, 4, v{t0}")
    a(f"v_xor_b32 v{vWO}, 64, v{vWE}")
    sROT = 50
    if "rot" in K2X:
        a(f"s_and_b32 s{sROT}, s{sJ}, 3")
        a(f"s_lshl_b32 s{sROT}, s{sROT}, 1")
        a(f"s_add_u32 s{sROT}, s{sROT}, s{sRB}")
        a(f"s_and_b32 s{sROT}, s{sROT}, 7")
    else: a(f"s_mov_b32 s{sROT}, 0")
    def chunk(c, dst):
        a(f"s_add_u32 s{dst}, s{sROT}, {c}")
        a(f"s_and_b32 s{dst}, s{dst}, 7")
    ACC = V(96, 4)
    def acc(ft, tt): return ACC + (ft*2 + tt)*16
    ZF = V((ZDEPTH+1)*12, 4)
    def zf(ks, ft): return ZF + ((ks % (ZDEPTH+1))*3 + ft)*4
    WFr = V(16, 4)
    def wfr(b, tt): return WFr + (b*2 + tt)*4
    z_id = {}; w_id = {}
    sZc = [52, 53]; sWc = [54, 55]
    def z_base(c):
        chunk(c, sZc[c & 1])
        a(f"s_mul_i32 s{sZc[c & 1]}, s{sZc[c & 1]}, 12288")
        a(f"s_add_u32 s{sZc[c & 1]}, s{sZc[c & 1]}, s{sZ}")
    def w_base(c):
        chunk(c, sWc[c & 1])
        a(f"s_lshl_b32 s{sWc[c & 1]}, s{sWc[c & 1]}, 7")
        a(f"s_add_u32 s{sWc[c & 1]}, s{sWc[c & 1]}, s{sWB}")
    def load_z_g(ks):
        c = ks // 4
        if ks % 4 == 0: z_base(c)
        for ft in range(3):
            so = sZc[c & 1]
            if ks % 4:
                a(f"s_add_u32 s{sT1}, s{sZc[c & 1]}, {(ks%4)*3072}"); so = sT1
            z_id[(ks, ft)] = a.vmem(f"buffer_load_dwordx4 v[{zf(ks,ft)}:{zf(ks,ft)+3}], v{vZ}, s[{sWS}:{sWS+3}], s{so} offen offset:{ft*1024}" + (" sc1" if FUSED else ""))
            yield
    def dma_w_g(c, lo, hi):
        sl = c & 1
        if lo == 0: w_base(c)
        for i in range(lo, hi):
            a(f"s_add_u32 s{sT2}, s{sWc[c & 1]}, {i*8*4096}")
            a(f"s_add_u32 m0, s{sLB}, {sl*8192 + i*1024}")
            w_id[c] = a.vmem(f"buffer_load_dwordx4 v{vWE if i % 2 == 0 else vWO}, s[{sWSP}:{sWSP+3}], s{sT2} offen lds")
            yield
    a("s_waitcnt lgkmcnt(0)")
    ST("g_kernarg")
    if FUSED:
        run(dma_w_g(0, 0, 8))
        a(f"s_lshl_b32 s{sT3}, s{sJ}, 8")
        a(f"s_add_u32 s{sT3}, s{sT3}, {WS_F1}")
        poll_flags(a, sWS, sT3, ZF, t0)
        ST("g_flags")
        for ks in range(ZDEPTH): run(load_z_g(ks))
    else:
        run(load_z_g(0)); run(dma_w_g(0, 0, 8))
        for ks in range(1, ZDEPTH): run(load_z_g(ks))
    vWA = [V() for _ in range(4)]
    a(f"v_and_b32 v{t0}, 31, v{vL}")
    a(f"v_lshrrev_b32 v{t1}, 1, v{t0}")
    a(f"v_and_b32 v{t1}, 7, v{t1}")
    a(f"v_lshrrev_b32 v{t2}, 5, v{vL}")
    a(f"v_xor_b32 v{t1}, v{t1}, v{t2}")
    a(f"v_lshl_add_u32 v{t0}, v{t0}, 7, s{sLB}")
    for kk in range(4):
        a(f"v_xor_b32 v{t2}, {2*kk}, v{t1}")
        a(f"v_lshl_add_u32 v{vWA[kk]}, v{t2}, 4, v{t0}")
    Z1 = V(12, 4); vB = V()
    ep = {}
    def epi_loads():
        a(f"s_lshl_b32 s{sT0}, s{sRB}, 3")
        a(f"s_add_u32 s{sT0}, s{sT0}, s{sJ}")
        a(f"s_lshl_b32 s{sT0}, s{sT0}, 2")
        a(f"s_add_u32 s{sT0}, s{sT0}, s{sW}")
        a(f"s_mul_i32 s{sT0}, s{sT0}, 3072")
        a(f"s_add_u32 s{sT0}, s{sT0}, {WS_Z1F}")
        for ft in range(3):
            if FUSED:
                if ft == 0:
                    a(f"s_mul_i32 s{sT0}, s{sW}, 3072")
                    a(f"s_add_u32 s{sT0}, s{sT0}, {Z1L}")
                    a(f"v_add_u32 v{t1}, s{sT0}, v{vZ}")
                a.ds(f"ds_read_b128 v[{Z1+4*ft}:{Z1+4*ft+3}], v{t1} offset:{ft*1024}")
            else:
                a.vmem(f"buffer_load_dwordx4 v[{Z1+4*ft}:{Z1+4*ft+3}], v{vZ}, s[{sWS}:{sWS+3}], s{sT0} offen offset:{ft*1024}")
            yield
        a(f"v_and_b32 v{t0}, 31, v{vL}")
        a(f"v_lshlrev_b32 v{t0}, 1, v{t0}")
        a(f"s_lshr_b32 s{sT0}, s{sW}, 1")
        a(f"s_lshl_b32 s{sT0}, s{sT0}, 6")
        a(f"s_lshl_b32 s{sT3}, s{sRB}, 7")
        a(f"s_add_u32 s{sT0}, s{sT0}, s{sT3}")
        ep['b'] = a.vmem(f"buffer_load_ushort v{vB}, v{t0}, s[{sBSP}:{sBSP+3}], s{sT0} offen")
        yield
    def read_w(ks):
        c = ks // 4; kk = ks % 4; b = ks & 1
        ids = []
        for tt in range(2):
            ids.append(a.ds(f"ds_read_b128 v[{wfr(b,tt)}:{wfr(b,tt)+3}], v{vWA[kk]} offset:{(c&1)*8192 + tt*4096}"))
        return ids[-1]
    a.wait_vm(w_id[0])
    ST("g_w0")
    if "noprio" not in K2X: a("s_setprio 2")
    rd = {0: read_w(0)}
    for ks in range(32):
        c = ks // 4
        if ks % 4 == 0 and "cst" in K2X: ST(f"c{c}")
        a.wait_vm(z_id[(ks, 2)])
        a.wait_lg(rd[ks])
        fl = Filler()
        def rdw(k=ks):
            if (k + 1) % 4 == 0: a.wait_vm(w_id[(k + 1)//4])
            rd[k + 1] = read_w(k + 1)
            yield
        if ks + 1 < 32: fl.add(rdw())
        if ks + ZDEPTH < 32: fl.add(load_z_g(ks + ZDEPTH))
        if ks == 0: fl.add(dma_w_g(1, 0, 4))
        if ks == 1: fl.add(dma_w_g(1, 4, 8))
        for n in range(2, 8):
            if ks == 4*(n-1) - 1: fl.add(dma_w_g(n, 0, 2))
            if ks == 4*(n-1): fl.add(dma_w_g(n, 2, 5))
            if ks == 4*(n-1) + 1: fl.add(dma_w_g(n, 5, 8))
        if ks == 30: fl.add(epi_loads())
        b = ks & 1
        for ft in range(3):
            for tt in range(2):
                cc = "0" if ks == 0 else f"v[{acc(ft,tt)}:{acc(ft,tt)+15}]"
                if not ("nomfma" in K2X and ks > 0):
                    a(f"v_mfma_f32_32x32x16_bf16 v[{acc(ft,tt)}:{acc(ft,tt)+15}], v[{zf(ks,ft)}:{zf(ks,ft)+3}], v[{wfr(b,tt)}:{wfr(b,tt)+3}], {cc}")
                fl.step(1)
        fl.drain()
    ST("g_loop")
    a("s_setprio 0")
    OWN = ZF
    lend = a.newlabel("g_epi_end")
    labs = [a.newlabel("g_epi") for _ in range(4)]
    a(f"v_add_u32 v{t2}, 0x10000, v{vZ}")
    a("s_nop 15")
    gst = [0]
    if FUSED: gsync(a, 0, gst, t0, t1)
    else: a("s_barrier")
    lg0 = a.lg
    for w in range(4):
        if w < 3:
            a(f"s_cmp_lg_u32 s{sW}, {w}")
            a(f"s_cbranch_scc1 {labs[w]}")
        a.lg = lg0
        for d in range(4):
            if d == w: continue
            tt = d >> 1; g0 = d & 1
            k = (w - d - 1) & 3
            for ft in range(3):
                for gh in range(2):
                    r = acc(ft, tt) + 4*(g0 + 2*gh)
                    off = d*18432 + k*6144 + (ft*2+gh)*1024
                    if off >= 65536: a.ds(f"ds_write_b128 v{t2}, v[{r}:{r+3}] offset:{off - 65536}")
                    else: a.ds(f"ds_write_b128 v{vZ}, v[{r}:{r+3}] offset:{off}")
        tt = w >> 1; g0 = w & 1
        for ft in range(3):
            for gh in range(2):
                r = acc(ft, tt) + 4*(g0 + 2*gh)
                for e in range(0, 4, 2):
                    a(f"v_pk_add_f32 {P(OWN + (ft*2+gh)*4 + e)}, {P(r+e)}, 0")
        if w < 3:
            a(f"s_branch {lend}")
            a.label(labs[w])
    a.label(lend)
    return_epi = True
    a("s_waitcnt lgkmcnt(0)")
    if FUSED: gsync(a, 0, gst, t0, t1)
    else: a("s_barrier")
    PT = ACC
    a(f"s_mul_i32 s{sT0}, s{sW}, 18432")
    a(f"v_add_u32 v{t0}, s{sT0}, v{vZ}")
    for k in range(3):
        for q in range(6):
            a.ds(f"ds_read_b128 v[{PT + (k*6+q)*4}:{PT + (k*6+q)*4 + 3}], v{t0} offset:{k*6144 + q*1024}")
    vSt = vWE
    a(f"v_lshrrev_b32 v{vSt}, 4, v{vL}")
    a(f"v_and_b32 v{vSt}, 1, v{vSt}")
    a(f"v_mul_u32_u24 v{vSt}, {24*1024}, v{vSt}")
    a(f"v_and_b32 v{t1}, 15, v{vL}")
    a(f"v_lshrrev_b32 v{t2}, 5, v{vL}")
    a(f"v_lshl_add_u32 v{t1}, v{t2}, 4, v{t1}")
    a(f"v_lshl_add_u32 v{vSt}, v{t1}, 4, v{vSt}")
    a(f"s_mul_i32 s{sT0}, s{sRB}, {4*24*1024}")
    a(f"s_lshr_b32 s{sT1}, s{sW}, 1")
    a(f"s_mul_i32 s{sT1}, s{sT1}, {2*24*1024}")
    a(f"s_add_u32 s{sT0}, s{sT0}, s{sT1}")
    a(f"s_mul_i32 s{sT1}, s{sJ}, 3072")
    a(f"s_add_u32 s{sT0}, s{sT0}, s{sT1}")
    a(f"s_and_b32 s{sT1}, s{sW}, 1")
    a(f"s_lshl_b32 s{sT1}, s{sT1}, 9")
    a(f"s_add_u32 s{sT0}, s{sT0}, s{sT1}")
    a(f"s_add_u32 s{sT0}, s{sT0}, {WS_PF}")
    a.wait_vm(ep['b'])
    vB2 = vWA[0] if vWA[0] % 2 == 0 else vWA[1]
    a(f"v_lshlrev_b32 v{vB2}, 16, v{vB}")
    ZU = PT + 72
    for i in range(12):
        a(f"v_lshlrev_b32 v{ZU+2*i}, 16, v{Z1+i}")
        a(f"v_and_b32 v{ZU+2*i+1}, 0xffff0000, v{Z1+i}")
    for k in range(3):
        a(f"s_waitcnt lgkmcnt({min(15, 12 - 6*k)})")
        for i in range(0, 24, 2):
            a(f"v_pk_add_f32 {P(OWN+i)}, {P(OWN+i)}, {P(PT+k*24+i)}")
    for i in range(0, 24, 2):
        a(f"v_pk_add_f32 {P(OWN+i)}, {P(OWN+i)}, {P(vB2)} op_sel_hi:[1,0]")
    for i in range(0, 24, 2):
        a(f"v_pk_mul_f32 {P(OWN+i)}, {P(OWN+i)}, {P(ZU+i)}")
    OUT = PT
    for ft in range(3):
        for i in range(4):
            a(f"v_cvt_pk_bf16_f32 v{OUT+4*ft+i}, v{OWN+8*ft+2*i}, v{OWN+8*ft+2*i+1}")
        a.vmem(f"buffer_store_dwordx4 v[{OUT+4*ft}:{OUT+4*ft+3}], v{vSt}, s[{sWS}:{sWS+3}], s{sT0} offen offset:{ft*1024}" + (" sc1" if "psc1" in K2X else ""))
    ST("g_end")
    ST.dump(sWS, sW, t0, t1, WS_DBG + 0x200000)

def gen_conv(a, V, ST, prof, name):
    sSSM, sWS, sDv, sWSP, sWO = 4, 8, 12, 16, 20
    sC, sW, sCH = 32, 34, 35
    sT0, sT1, sT2, sT3 = 40, 41, 42, 43
    a(f"s_load_dwordx2 s[{sSSM}:{sSSM+1}], s[0:1], {KA['ssmk']}")
    a(f"s_load_dwordx2 s[{sWS}:{sWS+1}], s[0:1], {KA['ws']}")
    a(f"s_load_dwordx2 s[{sDv}:{sDv+1}], s[0:1], {KA['ssmD']}")
    a(f"s_load_dwordx2 s[{sWSP}:{sWSP+1}], s[0:1], {KA['wsp']}")
    a(f"s_load_dwordx2 s[{sWO}:{sWO+1}], s[0:1], {KA['wout']}")
    vL = V(); vT = V(); t0, t1, t2 = V(), V(), V()
    if FUSED: a(f"v_subrev_u32 v0, 256, v0")
    cst = [0]
    def csync():
        if FUSED: gsync(a, 1, cst, t0, t1)
        else:
            a("s_waitcnt lgkmcnt(0)")
            a("s_barrier")
    a(f"v_lshrrev_b32 v{t0}, 6, v0")
    a(f"v_and_b32 v{vL}, 63, v0")
    a(f"v_readfirstlane_b32 s{sW}, v{t0}")
    for srd, size in ((sSSM, SZ_SSMK), (sWS, WS_SIZE_DBG if prof else WS_END), (sDv, 1280), (sWSP, SZ_WSP), (sWO, SZ_WOUT)):
        a(f"s_mov_b32 s{srd+2}, {size}")
        a(f"s_mov_b32 s{srd+3}, {SRD3:#x}")
    a(f"s_mov_b32 s{sC}, s2")
    a(f"v_lshlrev_b32 v{vT}, 4, v0")
    NCH = 3
    HR = V(8*NCH, 4); UR = V(4*NCH, 4); DR = V(NCH)
    vTm = V()
    FP = V(2, 2)
    a(f"v_subrev_u32 v{vTm}, 16, v{vT}")
    sCHN = [56, 57, 58]
    a(f"s_mov_b32 s{sCHN[0]}, s2")
    a(f"s_add_u32 s{sCHN[1]}, s2, 256")
    a(f"s_lshr_b32 s{sCHN[2]}, s2, 1")
    a(f"s_add_u32 s{sCHN[2]}, s{sCHN[2]}, 512")
    ld = {}
    def loads(i):
        a(f"s_lshl_b32 s{sT0}, s{sCHN[i]}, 12")
        a.vmem(f"buffer_load_dwordx4 v[{HR+8*i+4}:{HR+8*i+7}], v{vT}, s[{sSSM}:{sSSM+3}], s{sT0} offen")
        a.vmem(f"buffer_load_dwordx4 v[{HR+8*i}:{HR+8*i+3}], v{vTm}, s[{sSSM}:{sSSM+3}], s{sT0} offen")
        a(f"s_lshl_b32 s{sT1}, s{sCHN[i]}, 1")
        a(f"v_mov_b32 v{t0}, 0")
        a.vmem(f"buffer_load_ushort v{DR+i}, v{t0}, s[{sDv}:{sDv+3}], s{sT1} offen")
        if FUSED:
            a(f"s_mul_i32 s{sT1}, s{sCHN[i]}, 820")
            a(f"s_lshr_b32 s{sT1}, s{sT1}, 16")
            a(f"s_lshl_b32 s{sT1}, s{sT1}, 8")
            a(f"s_add_u32 s{sT1}, s{sT1}, {WS_F1}")
            poll_flags(a, sWS, sT1, FP, t0)
        a(f"s_add_u32 s{sT0}, s{sT0}, {WS_KVT}")
        ld[i] = a.vmem(f"buffer_load_dwordx4 v[{UR+4*i}:{UR+4*i+3}], v{vT}, s[{sWS}:{sWS+3}], s{sT0} offen" + (" sc1" if FUSED else ""))
    a("s_waitcnt lgkmcnt(0)")
    ST("c_kernarg")
    loads(0)
    vTW, vTZ, vDm = V(), V(), V()
    sU, sTWB, sTZB = 47, 52, 53
    a(f"s_lshr_b32 s{sU}, s2, 3")
    a(f"s_lshl_b32 s{sU}, s{sU}, 2")
    a(f"s_add_u32 s{sU}, s{sU}, s{sW}")
    a(f"s_mul_i32 s{sT0}, s{sU}, 12")
    a(f"v_add_u32 v{t0}, s{sT0}, v{vL}")
    a(f"v_mul_u32_u24 v{t1}, 43691, v{t0}")
    a(f"v_lshrrev_b32 v{t1}, 22, v{t1}")
    a(f"v_mul_u32_u24 v{t2}, 96, v{t1}")
    a(f"v_sub_u32 v{t0}, v{t0}, v{t2}")
    a(f"v_mul_u32_u24 v{t1}, 98304, v{t1}")
    a(f"v_lshl_add_u32 v{vTZ}, v{t0}, 7, v{t1}")
    a(f"s_and_b32 s{sT0}, s2, 7")
    a(f"s_lshr_b32 s{sTWB}, s{sT0}, 1")
    a(f"s_lshl_b32 s{sTWB}, s{sTWB}, 21")
    a(f"s_and_b32 s{sTZB}, s{sT0}, 1")
    a(f"s_mul_i32 s{sTZB}, s{sTZB}, {4*393216}")
    a(f"s_add_u32 s{sTZB}, s{sTZB}, {WS_Z2F}")
    a(f"s_lshl_b32 s{sT0}, s{sU}, 4")
    a(f"v_add_u32 v{t0}, s{sT0}, v{vL}")
    a(f"v_lshrrev_b32 v{t1}, 2, v{t0}")
    a(f"v_lshlrev_b32 v{t1}, 12, v{t1}")
    a(f"v_and_b32 v{t0}, 3, v{t0}")
    a(f"v_lshl_add_u32 v{vTW}, v{t0}, 10, v{t1}")
    def touch(c, w=True):
        if "notouch" in K2X: return
        a(f"s_add_u32 s{sT0}, s{sTZB}, {c*12288}")
        a(f"s_mov_b64 exec, 0xfff")
        a.vmem(f"buffer_load_dword v{vDm}, v{vTZ}, s[{sWS}:{sWS+3}], s{sT0} offen")
        if w and "notw" not in K2X:
            a(f"s_add_u32 s{sT0}, s{sTWB}, {c*128}")
            a(f"s_mov_b64 exec, 0xffff")
            a.vmem(f"buffer_load_dword v{vDm}, v{vTW}, s[{sWSP}:{sWSP+3}], s{sT0} offen")
        a(f"s_mov_b64 exec, -1")
    NUP = int(os.environ.get('NUP', '2'))
    for c_ in range(NUP): touch(c_)
    Zr = V(4, 4)
    for e in range(4): a(f"v_mov_b32 v{Zr+e}, 0")
    a(f"v_mul_u32_u24 v{t0}, {CS_}, v0")
    if TOEP: a(f"v_add_u32 v{t0}, {TOEP}, v{t0}")
    a(f"v_cmp_gt_u32 vcc, 64, v0")
    a(f"s_and_saveexec_b64 s[50:51], vcc")
    lz = a.newlabel("c_z")
    a(f"s_cbranch_execz {lz}")
    a(f"v_subrev_u32 v{t1}, {32*16 - UB}, v{vT}")
    a(f"v_cmp_gt_u32 vcc, 8, v0")
    a(f"v_cndmask_b32 v{t1}, v{t1}, v{t0}, vcc")
    a(f"v_add_u32 v{t2}, -8, v0")
    a(f"v_cmp_lt_u32 vcc, 23, v{t2}")
    a(f"s_and_b64 exec, exec, vcc")
    a.ds(f"ds_write_b128 v{t1}, v[{Zr}:{Zr+3}]")
    a.label(lz)
    a(f"s_mov_b64 exec, s[50:51]")
    vTW_ = V()
    a(f"v_add_u32 v{vTW_}, {OZ*16 + TOEP}, v{vT}")
    vUW = V()
    a(f"v_add_u32 v{vUW}, {UB + UZ*16}, v{vT}")
    vA = V()
    a(f"v_and_b32 v{t0}, 7, v{vL}")
    a(f"v_mul_u32_u24 v{t0}, {CS_}, v{t0}")
    a(f"v_bfe_u32 v{t1}, v{vL}, 3, 1")
    a(f"v_lshrrev_b32 v{t2}, 4, v{vL}")
    a(f"v_sub_u32 v{t1}, v{t1}, v{t2}")
    a(f"v_add_u32 v{t1}, 3, v{t1}")
    a(f"v_lshl_add_u32 v{vA}, v{t1}, 4, v{t0}")
    if TOEP: a(f"v_add_u32 v{vA}, {TOEP}, v{vA}")
    vBq = V()
    a(f"v_and_b32 v{t0}, 15, v{vL}")
    a(f"v_lshl_add_u32 v{t0}, v{t0}, 1, v{t2}")
    a(f"v_lshlrev_b32 v{vBq}, 4, v{t0}")
    a(f"v_add_u32 v{vBq}, {UB}, v{vBq}")
    DM = V(4, 4)
    a(f"v_and_b32 v{t0}, 15, v{vL}")
    a(f"v_lshlrev_b32 v{t1}, 3, v{t2}")
    a(f"v_sub_u32 v{t1}, v{t1}, v{t0}")
    a(f"v_add_u32 v{t1}, -9, v{t1}")
    vK0, vK1 = V(), V()
    a(f"v_mov_b32 v{vK0}, 0xffff"); a(f"v_mov_b32 v{vK1}, 0xffff0000")
    for dw in range(4):
        a(f"v_cmp_eq_u32 vcc, {2*dw}, v{t1}")
        a(f"v_cndmask_b32 v{DM+dw}, 0, v{vK0}, vcc")
        a(f"v_cmp_eq_u32 vcc, {2*dw + 1}, v{t1}")
        a(f"v_cndmask_b32 v{DM+dw}, v{DM+dw}, v{vK1}, vcc")
    vPW = V()
    a(f"v_and_b32 v{t0}, 15, v{vL}")
    a(f"v_lshlrev_b32 v{t0}, 6, v{t0}")
    a(f"v_lshl_add_u32 v{t0}, v{t2}, 4, v{t0}")
    a(f"s_lshl_b32 s{sT0}, s{sW}, 13")
    a(f"s_add_u32 s{sT0}, s{sT0}, {PB}")
    a(f"v_add_u32 v{vPW}, s{sT0}, v{t0}")
    vPR = V()
    a(f"v_lshlrev_b32 v{vPR}, 5, v0")
    a(f"v_add_u32 v{vPR}, {PB}, v{vPR}")
    ACC = V(32, 4)
    AF = V(12, 4); BF = V(64, 4)
    EW = V(8, 4); TQ = V(4, 4); DG = V(4, 4)

    def mfma_block(w, tiles, touches):
        tq = list(touches)
        started = set()
        seq = []
        for r in range(2):
            q0 = 2*w + r
            dmin = 0
            ips = [ip for ip in range(8) if any(T >= ip for T in tiles)]
            seq += [(r, ip) for ip in ips]
        bid = {}
        def need_d(r): return sorted({T - ip for (rr, ip) in seq if rr == r for T in tiles if T >= ip})
        def read_b(r):
            q0 = 2*w + r
            for d in need_d(r):
                m = 8*d - q0
                bid[(r, d)] = a.ds(f"ds_read_b128 v[{BF+(r*8+d)*4}:{BF+(r*8+d)*4+3}], v{vBq} offset:{(4*m - 2 + UZ)*16}")
        aid = {}
        def read_a(n):
            r, ip = seq[n]
            q = 2*w + r + 8*ip
            aid[n] = a.ds(f"ds_read_b128 v[{AF+(n%3)*4}:{AF+(n%3)*4+3}], v{vA} offset:{64*q}")
        read_a(0); read_b(0); read_a(1)
        for n, (r, ip) in enumerate(seq):
            if n + 2 < len(seq): read_a(n + 2)
            if n == 2: read_b(1)
            last = max([aid[n]] + [bid[(r, T - ip)] for T in tiles if T >= ip])
            a.wait_lg(last)
            q0 = 2*w + r
            for T in sorted(tiles, reverse=True):
                if T < ip: continue
                c = f"v[{ACC+4*T}:{ACC+4*T+3}]" if T in started else "0"; started.add(T)
                a(f"v_mfma_f32_16x16x32_bf16 v[{ACC+4*T}:{ACC+4*T+3}], v[{AF+(n%3)*4}:{AF+(n%3)*4+3}], v[{BF+(r*8+T-ip)*4}:{BF+(r*8+T-ip)*4+3}], {c}")
            if q0 == 0 and ip == 0:
                for T in tiles:
                    a(f"v_mfma_f32_16x16x32_bf16 v[{ACC+4*T}:{ACC+4*T+3}], v[{DG}:{DG+3}], v[{BF+(r*8+T)*4}:{BF+(r*8+T)*4+3}], v[{ACC+4*T}:{ACC+4*T+3}]")
            if tq and n % 2 == 1: touch(tq.pop(0))
        for T in tiles:
            a.ds(f"ds_write_b128 v{vPW}, v[{ACC+4*T}:{ACC+4*T+3}] offset:{T*1024}")
    def finalize(i, tiles):
        regs = [BF, BF+8, BF+16, BF+24]
        full = len(tiles) == 8
        if not full:
            lab = a.newlabel("c_fm")
            a(f"s_mov_b64 exec, 0")
            for w in range(4):
                lo = 0xffffffff if 2*w in tiles else 0
                hi = 0xffffffff if 2*w + 1 in tiles else 0
                a(f"s_cmp_eq_u32 s{sW}, {w}")
                a(f"s_cselect_b32 exec_lo, {lo if lo == 0 else -1}, exec_lo")
                a(f"s_cselect_b32 exec_hi, {hi if hi == 0 else -1}, exec_hi")
            lskip = a.newlabel("c_fskip")
            a(f"s_cbranch_execz {lskip}")
        for k in range(4):
            a.ds(f"ds_read_b128 v[{regs[k]}:{regs[k]+3}], v{vPR} offset:{k*PT_}")
            a.ds(f"ds_read_b128 v[{regs[k]+4}:{regs[k]+7}], v{vPR} offset:{k*PT_ + 16}")
        a(f"s_lshl_b32 s{sT0}, s{sCHN[i]}, 12")
        a(f"s_add_u32 s{sT0}, s{sT0}, {WS_YT}")
        a("s_waitcnt lgkmcnt(0)")
        for e in range(0, 8, 2):
            a(f"v_pk_add_f32 {P(regs[0]+e)}, {P(regs[0]+e)}, {P(regs[1]+e)}")
            a(f"v_pk_add_f32 {P(regs[2]+e)}, {P(regs[2]+e)}, {P(regs[3]+e)}")
        for e in range(0, 8, 2):
            a(f"v_pk_add_f32 {P(regs[0]+e)}, {P(regs[0]+e)}, {P(regs[2]+e)}")
        for e in range(4):
            a(f"v_cvt_pk_bf16_f32 v{TQ+e}, v{regs[0]+2*e}, v{regs[0]+2*e+1}")
        a(f"buffer_store_dwordx4 v[{TQ}:{TQ+3}], v{vT}, s[{sWS}:{sWS+3}], s{sT0} offen" + (" sc1" if "ysc1" in K2X else ""))
        a.vm -= 1
        if not full:
            a.label(lskip)
            a(f"s_mov_b64 exec, -1")
        a("s_nop 1")

    def per_wave(variants):
        lend = a.newlabel("c_pw_end"); labs = [a.newlabel("c_pw") for _ in range(4)]
        lg0, vm0 = a.lg, a.vm
        lgmax, vmmin = lg0, None
        for w in range(4):
            if w < 3:
                a(f"s_cmp_lg_u32 s{sW}, {w}")
                a(f"s_cbranch_scc1 {labs[w]}")
            a.lg, a.vm = lg0, vm0
            variants[w]()
            lgmax = max(lgmax, a.lg); vmmin = a.vm if vmmin is None else min(vmmin, a.vm)
            if w < 3:
                a(f"s_branch {lend}")
                a.label(labs[w])
        a.label(lend)
        a.lg, a.vm = lgmax, vmmin

    for i in range(NCH):
        a.comment(f"------- channel slot {i}")
        a.wait_vm(ld[i])
        ST(f"c{i}_ld")
        d = HR + 8*i
        a(f"v_cmp_ne_u32 vcc, 0, v0")
        for e in range(4): a(f"v_cndmask_b32 v{d+e}, 0, v{d+e}, vcc")
        for e in range(7): a(f"v_alignbit_b32 v{EW+e}, v{d+e+1}, v{d+e}, 16")
        for c in range(8):
            st = c + 1
            if st % 2 == 0: src = d + st//2
            else: src = EW + (st-1)//2
            if (src % 2) != 0:
                for e in range(4): a(f"v_mov_b32 v{TQ+e}, v{src+e}")
                src = TQ
            a.ds(f"ds_write_b128 v{vTW_}, v[{src}:{src+3}] offset:{c*CS_}")
            if src == TQ: a("s_nop 1")
        a.ds(f"ds_write_b128 v{vUW}, v[{UR+4*i}:{UR+4*i+3}]")
        a(f"v_lshlrev_b32 v{t0}, 16, v{DR+i}")
        a(f"v_or_b32 v{t0}, v{t0}, v{DR+i}")
        for e in range(4): a(f"v_and_b32 v{DG+e}, v{DM+e}, v{t0}")
        if i == 0:
            sWJ = 54
            lwj = a.newlabel("c_wj")
            a(f"s_cmp_ge_u32 s2, 192")
            a(f"s_cbranch_scc1 {lwj}")
            a(f"s_mul_i32 s{sT0}, s2, 2731")
            a(f"s_lshr_b32 s{sT0}, s{sT0}, 16")
            a(f"s_mul_i32 s{sT1}, s{sT0}, 24")
            a(f"s_sub_u32 s{sT1}, s2, s{sT1}")
            a(f"s_mul_i32 s{sT1}, s{sT1}, {32*1280}")
            a(f"s_mul_i32 s{sT0}, s{sT0}, 160")
            a(f"s_add_u32 s{sWJ}, s{sT0}, s{sT1}")
            for r in range(2):
                l2 = None
                if r == 1:
                    l2 = a.newlabel("c_wj2")
                    a(f"s_cmp_lg_u32 s{sW}, 0")
                    a(f"s_cbranch_scc1 {l2}")
                if r == 0: a(f"v_mov_b32 v{t0}, v0")
                else: a(f"v_add_u32 v{t0}, 256, v{vL}")
                a(f"v_mul_u32_u24 v{t1}, 6554, v{t0}")
                a(f"v_lshrrev_b32 v{t1}, 16, v{t1}")
                a(f"v_mul_u32_u24 v{t2}, 10, v{t1}")
                a(f"v_sub_u32 v{t0}, v{t0}, v{t2}")
                a(f"v_lshlrev_b32 v{t0}, 4, v{t0}")
                a(f"v_mul_u32_u24 v{t1}, 1280, v{t1}")
                a(f"v_add_u32 v{t0}, v{t0}, v{t1}")
                if r == 0:
                    a(f"s_lshl_b32 s{sT0}, s{sW}, 10")
                    a(f"s_add_u32 m0, s{sT0}, {WJ}")
                else: a(f"s_mov_b32 m0, {WJ + 4096}")
                a(f"buffer_load_dwordx4 v{t0}, s[{sWO}:{sWO+3}], s{sWJ} offen lds")
                a.vm -= 1
                if l2: a.label(l2)
            a.label(lwj)
            for i_ in range(1, NCH): loads(i_)
        csync()
        ST(f"c{i}_built")
        if i == 1:
            lw3 = a.newlabel("c_wj3")
            a(f"s_cmp_ge_u32 s2, 192")
            a(f"s_cbranch_scc1 {lw3}")
            a(f"v_lshrrev_b32 v{t0}, 4, v{vL}")
            a(f"v_and_b32 v{t2}, 15, v{vL}")
            a(f"v_lshrrev_b32 v{t1}, 2, v{t2}")
            a(f"v_lshl_add_u32 v{t0}, v{t0}, 2, v{t1}")
            a(f"v_mul_u32_u24 v{t0}, 160, v{t0}")
            a(f"v_and_b32 v{t1}, 3, v{t2}")
            a(f"v_lshl_add_u32 v{t0}, v{t1}, 3, v{t0}")
            a(f"v_lshlrev_b32 v{t2}, 4, v{vL}")
            for r in range(2):
                l2 = None
                if r == 1:
                    l2 = a.newlabel("c_wj4")
                    a(f"s_cmp_lg_u32 s{sW}, 0")
                    a(f"s_cbranch_scc1 {l2}")
                if r == 0: a(f"s_lshl_b32 s{sT0}, s{sW}, 5")
                else: a(f"s_mov_b32 s{sT0}, 128")
                a(f"s_add_u32 s{sT1}, s{sT0}, {WJ}")
                a(f"v_add_u32 v{t1}, s{sT1}, v{t0}")
                a(f"ds_read_b64_tr_b16 v[{TQ}:{TQ+1}], v{t1}")
                a(f"ds_read_b64_tr_b16 v[{TQ+2}:{TQ+3}], v{t1} offset:2560")
                a(f"s_mul_i32 s{sT1}, s2, 5120")
                a(f"s_lshl_b32 s{sT0}, s{sT0}, 5")
                a(f"s_add_u32 s{sT1}, s{sT1}, s{sT0}")
                a(f"s_add_u32 s{sT1}, s{sT1}, {WS_WOF}")
                a("s_waitcnt lgkmcnt(0)")
                a(f"buffer_store_dwordx4 v[{TQ}:{TQ+3}], v{t2}, s[{sWS}:{sWS+3}], s{sT1} offen" + (" sc1" if "ysc1" in K2X else ""))
                a("s_nop 1")
                a.vm -= 1; a.lg -= 2
                if l2: a.label(l2)
            a.label(lw3)
        tch = list(range(NUP, 8)) if i == 0 else []
        def do_channel(tiles):
            per_wave([(lambda w=w: mfma_block(w, tiles, tch)) for w in range(4)])
            if i < 2: ST(f"c{i}_mfma")
            csync()
            finalize(i, tiles)
        if i < 2:
            do_channel(list(range(8)))
        else:
            labB = a.newlabel("c_halfB"); labE = a.newlabel("c_halfE")
            a(f"s_bitcmp1_b32 s2, 0")
            a(f"s_cbranch_scc1 {labB}")
            lg0, vm0, c0_ = a.lg, a.vm, cst[0]
            do_channel([2, 6, 7])
            a(f"s_branch {labE}")
            a.label(labB); a.lg, a.vm, cst[0] = lg0, vm0, c0_
            do_channel([0, 1, 3, 4, 5])
            a.label(labE)
        ST(f"c{i}_done")
    ST.dump(sWS, sW, t0, t1, WS_DBG + 0x400000)

def gen_k2(name="k2_kernel", prof=False):
    a = Asm()
    a.raw(f".globl {name}\n.p2align 8\n.type {name},@function\n{name}:")
    a(f"s_cmp_ge_u32 s2, 512")
    a(f"s_cbranch_scc1 {name}_end")
    a(f"s_cmp_lt_u32 s2, 256")
    a(f"s_cbranch_scc1 {name}_conv" if "noconv" not in K2X else f"s_cbranch_scc1 {name}_end")
    ST = Stamps(a, enabled=prof); ST("g_start")
    V = Alloc(1, 256, "v")
    gen_gemm(a, V, ST, prof)
    a("s_endpgm")
    hi = V.hi
    a.label(f"{name}_conv")
    a.vm = 0; a.lg = 0
    ST2 = Stamps(a, enabled=prof); ST2("c_start")
    V2 = Alloc(1, 256, "v")
    gen_conv(a, V2, ST2, prof, name)
    a.label(f"{name}_end")
    a("s_endpgm")
    gen_k2.stamp_names = {"k2g": ST.names, "k2c": ST2.names}
    return a.finish(), max(hi, V2.hi)


def gen_k12(name="k12_kernel", prof=False):
    import k1
    a, hi1, sW1 = k1.gen_k1(name=name, prof=prof, fused=True)
    a(f"s_cmp_ge_u32 s{sW1}, 4")
    a(f"s_cbranch_scc1 {name}_conv")
    a.vm = 0; a.lg = 0
    ST = Stamps(a, enabled=prof); ST("g_start")
    V = Alloc(1, 255, "v")
    gen_gemm(a, V, ST, prof)
    a("s_endpgm")
    hi = V.hi
    a.label(f"{name}_conv")
    a.vm = 0; a.lg = 0
    ST2 = Stamps(a, enabled=prof); ST2("c_start")
    V2 = Alloc(1, 255, "v")
    gen_conv(a, V2, ST2, prof, name)
    a.label(f"{name}_end")
    a("s_endpgm")
    gen_k12.stamp_names = {"k1": k1.gen_k1.stamp_names, "k2g": ST.names, "k2c": ST2.names}
    return a.finish(), max(hi1, hi, V2.hi)
```

```python
import sys, os
sys.path.insert(0, 'gen')
from dsl import *
from layout import *
import k1
def build(kernels, path):
    hdr = open('recurrent_scan__ssm_conv_h3__mixer_gmlp__prompt.s.ref').read().split("; Override launch geometry")[0]
    out = hdr
    texts = []; descs = []
    seen = set()
    for (name, grid, block, lds, text, vg) in kernels:
        out += f"; @launch kernel={name} grid=({grid},1,1) block=({block},1,1) lds={lds}\n"
        if name in seen: continue
        seen.add(name)
        texts.append(text); descs.append(kernel_desc(name, vg))
    out += '.amdgcn_target "amdgcn-amd-amdhsa--gfx950"\n.text\n'
    out += "\n".join(texts)
    out += '.section .rodata,"a"\n' + "".join(descs)
    open(path, 'w').write(out)
if __name__ == "__main__":
    which = sys.argv[1] if len(sys.argv) > 1 else "all"
    path = sys.argv[2] if len(sys.argv) > 2 else "cur.s"
    ks = []
    prof = "--prof" in sys.argv
    if os.environ.get('FUSED'):
        import k2, k3
        t, vg = k2.gen_k12(prof=prof); print("k12 vgprs", vg); ks.append(("k12_kernel", 256, 512, 163840, t, vg))
        t, vg = k3.gen_k3(prof=prof); print("k3 vgprs", vg); ks.append(("k3_kernel", 256, 256, k3.LDS, t, vg))
        if prof: ks = [(n, g, b, l, t, 256) for (n, g, b, l, t, v) in ks]
        build(ks, path)
        if prof:
            import json
            d = dict(k2.gen_k12.stamp_names); d['k3'] = k3.gen_k3.stamp_names
            json.dump(d, open(path + '.stamps.json', 'w'))
        sys.exit(0)
    t, vg = k1.gen_k1(prof=prof); print("k1 vgprs", vg); ks.append(("k1_kernel", 256, 512, 163840, t, max(vg, 8)))
    if which != "k1":
        import k2
        t, vg = k2.gen_k2(prof=prof); print("k2 vgprs", vg); ks.append(("k2_kernel", 512, 256, 81920, t, vg))
    if which == "all":
        import k3
        t, vg = k3.gen_k3(prof=prof); print("k3 vgprs", vg); ks.append(("k3_kernel", 256, 256, k3.LDS, t, vg))
    if prof: ks = [(n, g, b, l, t, 256) for (n, g, b, l, t, v) in ks]
    if os.environ.get('DUPK1'): ks.insert(1, ks[0])
    if os.environ.get('DUPK2'): ks.insert(2, ks[1])
    if os.environ.get('DUPK3'): ks.append(ks[-1])
    build(ks, path)
    if prof:
        import json
        d = {'k1': k1.gen_k1.stamp_names}
        if which != 'k1': d.update(k2.gen_k2.stamp_names)
        if which == 'all': d['k3'] = k3.gen_k3.stamp_names
        json.dump(d, open(path + '.stamps.json', 'w'))
```

```python
import sys, os
sys.path.insert(0, 'gen')
from dsl import *
from layout import *
import k1
def build(kernels, path):
    hdr = open('recurrent_scan__ssm_conv_h3__mixer_gmlp__prompt.s.ref').read().split("; Override launch geometry")[0]
    out = hdr
    texts = []; descs = []
    seen = set()
    for (name, grid, block, lds, text, vg) in kernels:
        out += f"; @launch kernel={name} grid=({grid},1,1) block=({block},1,1) lds={lds}\n"
        if name in seen: continue
        seen.add(name)
        texts.append(text); descs.append(kernel_desc(name, vg))
    out += '.amdgcn_target "amdgcn-amd-amdhsa--gfx950"\n.text\n'
    out += "\n".join(texts)
    out += '.section .rodata,"a"\n' + "".join(descs)
    open(path, 'w').write(out)
if __name__ == "__main__":
    which = sys.argv[1] if len(sys.argv) > 1 else "all"
    path = sys.argv[2] if len(sys.argv) > 2 else "cur.s"
    ks = []
    prof = "--prof" in sys.argv
    if os.environ.get('FUSED'):
        import k2, k3
        t, vg = k2.gen_k12(prof=prof); print("k12 vgprs", vg); ks.append(("k12_kernel", 256, 512, 163840, t, vg))
        t, vg = k3.gen_k3(prof=prof); print("k3 vgprs", vg); ks.append(("k3_kernel", 256, 256, k3.LDS, t, vg))
        if prof: ks = [(n, g, b, l, t, 256) for (n, g, b, l, t, v) in ks]
        if os.environ.get('DUPK1'): ks.insert(1, ks[0])
        if os.environ.get('DUPK3'): ks.append(ks[-1])
        if os.environ.get('PRE'):
            e = ".globl e_kernel\n.p2align 8\n.type e_kernel,@function\ne_kernel:\n    s_endpgm\n"
            ks = [("e_kernel", 256, 256, 0, e, 8)] * int(os.environ['PRE']) + ks
        build(ks, path)
        if prof:
            import json
            d = dict(k2.gen_k12.stamp_names); d['k3'] = k3.gen_k3.stamp_names
            json.dump(d, open(path + '.stamps.json', 'w'))
        sys.exit(0)
    t, vg = k1.gen_k1(prof=prof); print("k1 vgprs", vg); ks.append(("k1_kernel", 256, 512, 163840, t, max(vg, 8)))
    if which != "k1":
        import k2
        t, vg = k2.gen_k2(prof=prof); print("k2 vgprs", vg); ks.append(("k2_kernel", 512, 256, 81920, t, vg))
    if which == "all":
        import k3
        t, vg = k3.gen_k3(prof=prof); print("k3 vgprs", vg); ks.append(("k3_kernel", 256, 256, k3.LDS, t, vg))
    if prof: ks = [(n, g, b, l, t, 256) for (n, g, b, l, t, v) in ks]
    if os.environ.get('DUPK1'): ks.insert(1, ks[0])
    if os.environ.get('DUPK2'): ks.insert(2, ks[1])
    if os.environ.get('DUPK3'): ks.append(ks[-1])
    build(ks, path)
    if prof:
        import json
        d = {'k1': k1.gen_k1.stamp_names}
        if which != 'k1': d.update(k2.gen_k2.stamp_names)
        if which == 'all': d['k3'] = k3.gen_k3.stamp_names
        json.dump(d, open(path + '.stamps.json', 'w'))
```

```python
from dsl import *
from layout import *
from k1 import f32, Filler, run, mask, P, Z1L, SYNC
sTAGF = 100

def gsync(a, which, state, t0, t1):
    state[0] += 1
    a("s_waitcnt lgkmcnt(0)")
    a(f"v_mov_b32 v{t0}, {SYNC + 4*which}")
    a(f"v_mov_b32 v{t1}, 1")
    a("s_mov_b64 exec, 1")
    a(f"ds_add_u32 v{t0}, v{t1}")
    a("s_mov_b64 exec, -1")
    lp = a.newlabel("gsync"); le = a.newlabel("gsync_e")
    a("s_mov_b32 s67, 0")
    a.label(lp)
    a(f"ds_read_b32 v{t1}, v{t0}")
    a("s_add_u32 s67, s67, 1")
    a("s_waitcnt lgkmcnt(0)")
    a(f"v_readfirstlane_b32 s66, v{t1}")
    a("s_cmp_gt_u32 s67, 1000000")
    a(f"s_cbranch_scc1 {le}")
    a(f"s_cmp_lt_u32 s66, {4*state[0]}")
    a(f"s_cbranch_scc1 {lp}")
    a.label(le)
    a.lg -= 2

def poll_flags(a, sWS, sOff, F, t0):
    lp = a.newlabel("fpoll"); le = a.newlabel("fpoll_e")
    a(f"v_mbcnt_lo_u32_b32 v{t0}, -1, 0")
    a(f"v_mbcnt_hi_u32_b32 v{t0}, -1, v{t0}")
    a(f"v_and_b32 v{t0}, 31, v{t0}")
    a(f"v_lshlrev_b32 v{t0}, 3, v{t0}")
    a("s_mov_b32 s67, 0")
    a.label(lp)
    a(f"buffer_load_dwordx2 {P(F)}, v{t0}, s[{sWS}:{sWS+3}], s{sOff} offen sc1")
    a.vm -= 1
    a("s_add_u32 s67, s67, 1")
    a("s_waitcnt vmcnt(0)")
    a(f"v_cmp_ne_u32 vcc, s{sTAGF}, v{F}")
    a(f"v_cmp_ne_u32 s[64:65], s{sTAGF+1}, v{F+1}")
    a("s_or_b64 vcc, vcc, s[64:65]")
    a("s_cmp_gt_u32 s67, 100000")
    a(f"s_cbranch_scc1 {le}")
    a("s_cmp_eq_u64 vcc, 0")
    a(f"s_cbranch_scc1 {le}")
    a("s_sleep 2")
    a(f"s_branch {lp}")
    a.label(le)
import os
K2X = os.environ.get('K2X', '')

ZDEPTH = int(os.environ.get('ZD', '4'))
FUSED = bool(os.environ.get('FUSED'))
CB = 86016 if FUSED else 0
CS_ = 4160
TOEP = CB
OZ = 1
UZ = 32
UB = TOEP + 8 * CS_
PB = UB + 4608
PT_ = 8192
WJ = PB + 4*PT_
assert WJ + 5120 <= (161792 if FUSED else 81920)

def gen_gemm(a, V, ST, prof):
    sWSP, sWS, sBSP = 4, 8, 12
    sRB, sJ, sW = 32, 33, 34
    sT0, sT1, sT2, sT3 = 40, 41, 42, 43
    sZ, sWB, sLB = 44, 45, 46
    a(f"s_load_dwordx2 s[{sWSP}:{sWSP+1}], s[0:1], {KA['wsp']}")
    a(f"s_load_dwordx2 s[{sWS}:{sWS+1}], s[0:1], {KA['ws']}")
    a(f"s_load_dwordx2 s[{sBSP}:{sBSP+1}], s[0:1], {KA['bsp']}")
    vL = V(); t0, t1, t2 = V(), V(), V()
    a(f"v_lshrrev_b32 v{t0}, 6, v0")
    a(f"v_and_b32 v{vL}, 63, v0")
    a(f"v_readfirstlane_b32 s{sW}, v{t0}")
    for srd, size in ((sWSP, SZ_WSP), (sWS, WS_SIZE_DBG if prof else WS_END), (sBSP, 4096)):
        a(f"s_mov_b32 s{srd+2}, {size}")
        a(f"s_mov_b32 s{srd+3}, {SRD3:#x}")
    a(f"s_and_b32 s{sT0}, s2, 7")
    a(f"s_lshr_b32 s{sT1}, s2, 3")
    a(f"s_and_b32 s{sT1}, s{sT1}, 31")
    a(f"s_lshr_b32 s{sRB}, s{sT0}, 1")
    a(f"s_lshl_b32 s{sRB}, s{sRB}, 3")
    a(f"s_and_b32 s{sT2}, s{sT1}, 7")
    a(f"s_add_u32 s{sRB}, s{sRB}, s{sT2}")
    a(f"s_and_b32 s{sJ}, s{sT0}, 1")
    a(f"s_lshl_b32 s{sJ}, s{sJ}, 2")
    a(f"s_lshr_b32 s{sT2}, s{sT1}, 3")
    a(f"s_add_u32 s{sJ}, s{sJ}, s{sT2}")
    a(f"s_lshl_b32 s{sZ}, s{sJ}, 7")
    a(f"s_lshl_b32 s{sT0}, s{sW}, 5")
    a(f"s_add_u32 s{sZ}, s{sZ}, s{sT0}")
    a(f"s_mul_i32 s{sZ}, s{sZ}, 3072")
    a(f"s_add_u32 s{sZ}, s{sZ}, {WS_Z2F}")
    a(f"s_lshl_b32 s{sWB}, s{sRB}, 18")
    a(f"s_lshl_b32 s{sT0}, s{sW}, 10")
    a(f"s_add_u32 s{sWB}, s{sWB}, s{sT0}")
    a(f"s_lshl_b32 s{sLB}, s{sW}, 14")
    vZ = V()
    a(f"v_lshlrev_b32 v{vZ}, 4, v{vL}")
    vWE, vWO = V(), V()
    a(f"v_lshrrev_b32 v{t0}, 3, v{vL}")
    a(f"v_lshlrev_b32 v{t0}, 12, v{t0}")
    a(f"v_and_b32 v{t1}, 7, v{vL}")
    a(f"v_lshrrev_b32 v{t2}, 4, v{vL}")
    a(f"v_xor_b32 v{t1}, v{t1}, v{t2}")
    a(f"v_lshl_add_u32 v{vWE}, v{t1}, 4, v{t0}")
    a(f"v_xor_b32 v{vWO}, 64, v{vWE}")
    sROT = 50
    if "rot" in K2X:
        a(f"s_and_b32 s{sROT}, s{sJ}, 3")
        a(f"s_lshl_b32 s{sROT}, s{sROT}, 1")
        a(f"s_add_u32 s{sROT}, s{sROT}, s{sRB}")
        a(f"s_and_b32 s{sROT}, s{sROT}, 7")
    else: a(f"s_mov_b32 s{sROT}, 0")
    def chunk(c, dst):
        a(f"s_add_u32 s{dst}, s{sROT}, {c}")
        a(f"s_and_b32 s{dst}, s{dst}, 7")
    ACC = V(96, 4)
    def acc(ft, tt): return ACC + (ft*2 + tt)*16
    ZF = V((ZDEPTH+1)*12, 4)
    def zf(ks, ft): return ZF + ((ks % (ZDEPTH+1))*3 + ft)*4
    WFr = V(16, 4)
    def wfr(b, tt): return WFr + (b*2 + tt)*4
    z_id = {}; w_id = {}
    sZc = [52, 53]; sWc = [54, 55]
    def z_base(c):
        chunk(c, sZc[c & 1])
        a(f"s_mul_i32 s{sZc[c & 1]}, s{sZc[c & 1]}, 12288")
        a(f"s_add_u32 s{sZc[c & 1]}, s{sZc[c & 1]}, s{sZ}")
    def w_base(c):
        chunk(c, sWc[c & 1])
        a(f"s_lshl_b32 s{sWc[c & 1]}, s{sWc[c & 1]}, 7")
        a(f"s_add_u32 s{sWc[c & 1]}, s{sWc[c & 1]}, s{sWB}")
    def load_z_g(ks):
        c = ks // 4
        if ks % 4 == 0: z_base(c)
        for ft in range(3):
            so = sZc[c & 1]
            if ks % 4:
                a(f"s_add_u32 s{sT1}, s{sZc[c & 1]}, {(ks%4)*3072}"); so = sT1
            z_id[(ks, ft)] = a.vmem(f"buffer_load_dwordx4 v[{zf(ks,ft)}:{zf(ks,ft)+3}], v{vZ}, s[{sWS}:{sWS+3}], s{so} offen offset:{ft*1024}" + (" sc1" if FUSED else ""))
            yield
    def dma_w_g(c, lo, hi):
        sl = c & 1
        if lo == 0: w_base(c)
        for i in range(lo, hi):
            a(f"s_add_u32 s{sT2}, s{sWc[c & 1]}, {i*8*4096}")
            a(f"s_add_u32 m0, s{sLB}, {sl*8192 + i*1024}")
            w_id[c] = a.vmem(f"buffer_load_dwordx4 v{vWE if i % 2 == 0 else vWO}, s[{sWSP}:{sWSP+3}], s{sT2} offen lds")
            yield
    a("s_waitcnt lgkmcnt(0)")
    ST("g_kernarg")
    if FUSED:
        run(dma_w_g(0, 0, 8))
        a(f"s_lshl_b32 s{sT3}, s{sJ}, 8")
        a(f"s_add_u32 s{sT3}, s{sT3}, {WS_F1}")
        poll_flags(a, sWS, sT3, ZF, t0)
        ST("g_flags")
        for ks in range(ZDEPTH): run(load_z_g(ks))
    else:
        run(load_z_g(0)); run(dma_w_g(0, 0, 8))
        for ks in range(1, ZDEPTH): run(load_z_g(ks))
    vWA = [V() for _ in range(4)]
    a(f"v_and_b32 v{t0}, 31, v{vL}")
    a(f"v_lshrrev_b32 v{t1}, 1, v{t0}")
    a(f"v_and_b32 v{t1}, 7, v{t1}")
    a(f"v_lshrrev_b32 v{t2}, 5, v{vL}")
    a(f"v_xor_b32 v{t1}, v{t1}, v{t2}")
    a(f"v_lshl_add_u32 v{t0}, v{t0}, 7, s{sLB}")
    for kk in range(4):
        a(f"v_xor_b32 v{t2}, {2*kk}, v{t1}")
        a(f"v_lshl_add_u32 v{vWA[kk]}, v{t2}, 4, v{t0}")
    Z1 = V(12, 4); vB = V()
    ep = {}
    def epi_loads():
        a(f"s_lshl_b32 s{sT0}, s{sRB}, 3")
        a(f"s_add_u32 s{sT0}, s{sT0}, s{sJ}")
        a(f"s_lshl_b32 s{sT0}, s{sT0}, 2")
        a(f"s_add_u32 s{sT0}, s{sT0}, s{sW}")
        a(f"s_mul_i32 s{sT0}, s{sT0}, 3072")
        a(f"s_add_u32 s{sT0}, s{sT0}, {WS_Z1F}")
        for ft in range(3):
            if FUSED:
                if ft == 0:
                    a(f"s_mul_i32 s{sT0}, s{sW}, 3072")
                    a(f"s_add_u32 s{sT0}, s{sT0}, {Z1L}")
                    a(f"v_add_u32 v{t1}, s{sT0}, v{vZ}")
                a.ds(f"ds_read_b128 v[{Z1+4*ft}:{Z1+4*ft+3}], v{t1} offset:{ft*1024}")
            else:
                a.vmem(f"buffer_load_dwordx4 v[{Z1+4*ft}:{Z1+4*ft+3}], v{vZ}, s[{sWS}:{sWS+3}], s{sT0} offen offset:{ft*1024}")
            yield
        a(f"v_and_b32 v{t0}, 31, v{vL}")
        a(f"v_lshlrev_b32 v{t0}, 1, v{t0}")
        a(f"s_lshr_b32 s{sT0}, s{sW}, 1")
        a(f"s_lshl_b32 s{sT0}, s{sT0}, 6")
        a(f"s_lshl_b32 s{sT3}, s{sRB}, 7")
        a(f"s_add_u32 s{sT0}, s{sT0}, s{sT3}")
        ep['b'] = a.vmem(f"buffer_load_ushort v{vB}, v{t0}, s[{sBSP}:{sBSP+3}], s{sT0} offen")
        yield
    def read_w(ks):
        c = ks // 4; kk = ks % 4; b = ks & 1
        ids = []
        for tt in range(2):
            ids.append(a.ds(f"ds_read_b128 v[{wfr(b,tt)}:{wfr(b,tt)+3}], v{vWA[kk]} offset:{(c&1)*8192 + tt*4096}"))
        return ids[-1]
    a.wait_vm(w_id[0])
    ST("g_w0")
    if "noprio" not in K2X: a("s_setprio 2")
    rd = {0: read_w(0)}
    for ks in range(32):
        c = ks // 4
        if ks % 4 == 0 and "cst" in K2X: ST(f"c{c}")
        a.wait_vm(z_id[(ks, 2)])
        a.wait_lg(rd[ks])
        fl = Filler()
        def rdw(k=ks):
            if (k + 1) % 4 == 0: a.wait_vm(w_id[(k + 1)//4])
            rd[k + 1] = read_w(k + 1)
            yield
        if ks + 1 < 32: fl.add(rdw())
        if ks + ZDEPTH < 32: fl.add(load_z_g(ks + ZDEPTH))
        if ks == 0: fl.add(dma_w_g(1, 0, 4))
        if ks == 1: fl.add(dma_w_g(1, 4, 8))
        for n in range(2, 8):
            if ks == 4*(n-1) - 1: fl.add(dma_w_g(n, 0, 2))
            if ks == 4*(n-1): fl.add(dma_w_g(n, 2, 5))
            if ks == 4*(n-1) + 1: fl.add(dma_w_g(n, 5, 8))
        if ks == 30: fl.add(epi_loads())
        b = ks & 1
        for ft in range(3):
            for tt in range(2):
                cc = "0" if ks == 0 else f"v[{acc(ft,tt)}:{acc(ft,tt)+15}]"
                if not ("nomfma" in K2X and ks > 0):
                    a(f"v_mfma_f32_32x32x16_bf16 v[{acc(ft,tt)}:{acc(ft,tt)+15}], v[{zf(ks,ft)}:{zf(ks,ft)+3}], v[{wfr(b,tt)}:{wfr(b,tt)+3}], {cc}")
                fl.step(1)
        fl.drain()
    ST("g_loop")
    a("s_setprio 0")
    OWN = ZF
    lend = a.newlabel("g_epi_end")
    labs = [a.newlabel("g_epi") for _ in range(4)]
    a(f"v_add_u32 v{t2}, 0x10000, v{vZ}")
    a("s_nop 15")
    gst = [0]
    if FUSED: gsync(a, 0, gst, t0, t1)
    else: a("s_barrier")
    lg0 = a.lg
    for w in range(4):
        if w < 3:
            a(f"s_cmp_lg_u32 s{sW}, {w}")
            a(f"s_cbranch_scc1 {labs[w]}")
        a.lg = lg0
        for d in range(4):
            if d == w: continue
            tt = d >> 1; g0 = d & 1
            k = (w - d - 1) & 3
            for ft in range(3):
                for gh in range(2):
                    r = acc(ft, tt) + 4*(g0 + 2*gh)
                    off = d*18432 + k*6144 + (ft*2+gh)*1024
                    if off >= 65536: a.ds(f"ds_write_b128 v{t2}, v[{r}:{r+3}] offset:{off - 65536}")
                    else: a.ds(f"ds_write_b128 v{vZ}, v[{r}:{r+3}] offset:{off}")
        tt = w >> 1; g0 = w & 1
        for ft in range(3):
            for gh in range(2):
                r = acc(ft, tt) + 4*(g0 + 2*gh)
                for e in range(0, 4, 2):
                    a(f"v_pk_add_f32 {P(OWN + (ft*2+gh)*4 + e)}, {P(r+e)}, 0")
        if w < 3:
            a(f"s_branch {lend}")
            a.label(labs[w])
    a.label(lend)
    return_epi = True
    a("s_waitcnt lgkmcnt(0)")
    if FUSED: gsync(a, 0, gst, t0, t1)
    else: a("s_barrier")
    PT = ACC
    a(f"s_mul_i32 s{sT0}, s{sW}, 18432")
    a(f"v_add_u32 v{t0}, s{sT0}, v{vZ}")
    for k in range(3):
        for q in range(6):
            a.ds(f"ds_read_b128 v[{PT + (k*6+q)*4}:{PT + (k*6+q)*4 + 3}], v{t0} offset:{k*6144 + q*1024}")
    vSt = vWE
    a(f"v_lshrrev_b32 v{vSt}, 4, v{vL}")
    a(f"v_and_b32 v{vSt}, 1, v{vSt}")
    a(f"v_mul_u32_u24 v{vSt}, {24*1024}, v{vSt}")
    a(f"v_and_b32 v{t1}, 15, v{vL}")
    a(f"v_lshrrev_b32 v{t2}, 5, v{vL}")
    a(f"v_lshl_add_u32 v{t1}, v{t2}, 4, v{t1}")
    a(f"v_lshl_add_u32 v{vSt}, v{t1}, 4, v{vSt}")
    a(f"s_mul_i32 s{sT0}, s{sRB}, {4*24*1024}")
    a(f"s_lshr_b32 s{sT1}, s{sW}, 1")
    a(f"s_mul_i32 s{sT1}, s{sT1}, {2*24*1024}")
    a(f"s_add_u32 s{sT0}, s{sT0}, s{sT1}")
    a(f"s_mul_i32 s{sT1}, s{sJ}, 3072")
    a(f"s_add_u32 s{sT0}, s{sT0}, s{sT1}")
    a(f"s_and_b32 s{sT1}, s{sW}, 1")
    a(f"s_lshl_b32 s{sT1}, s{sT1}, 9")
    a(f"s_add_u32 s{sT0}, s{sT0}, s{sT1}")
    a(f"s_add_u32 s{sT0}, s{sT0}, {WS_PF}")
    a.wait_vm(ep['b'])
    vB2 = vWA[0] if vWA[0] % 2 == 0 else vWA[1]
    a(f"v_lshlrev_b32 v{vB2}, 16, v{vB}")
    ZU = PT + 72
    for i in range(12):
        a(f"v_lshlrev_b32 v{ZU+2*i}, 16, v{Z1+i}")
        a(f"v_and_b32 v{ZU+2*i+1}, 0xffff0000, v{Z1+i}")
    for k in range(3):
        a(f"s_waitcnt lgkmcnt({min(15, 12 - 6*k)})")
        for i in range(0, 24, 2):
            a(f"v_pk_add_f32 {P(OWN+i)}, {P(OWN+i)}, {P(PT+k*24+i)}")
    for i in range(0, 24, 2):
        a(f"v_pk_add_f32 {P(OWN+i)}, {P(OWN+i)}, {P(vB2)} op_sel_hi:[1,0]")
    for i in range(0, 24, 2):
        a(f"v_pk_mul_f32 {P(OWN+i)}, {P(OWN+i)}, {P(ZU+i)}")
    OUT = PT
    for ft in range(3):
        for i in range(4):
            a(f"v_cvt_pk_bf16_f32 v{OUT+4*ft+i}, v{OWN+8*ft+2*i}, v{OWN+8*ft+2*i+1}")
        a.vmem(f"buffer_store_dwordx4 v[{OUT+4*ft}:{OUT+4*ft+3}], v{vSt}, s[{sWS}:{sWS+3}], s{sT0} offen offset:{ft*1024}" + (" sc1" if "psc1" in K2X else ""))
    ST("g_end")
    ST.dump(sWS, sW, t0, t1, WS_DBG + 0x200000)

def gen_conv(a, V, ST, prof, name):
    sSSM, sWS, sDv, sWSP, sWO = 4, 8, 12, 16, 20
    sC, sW, sCH = 32, 34, 35
    sT0, sT1, sT2, sT3 = 40, 41, 42, 43
    a(f"s_load_dwordx2 s[{sSSM}:{sSSM+1}], s[0:1], {KA['ssmk']}")
    a(f"s_load_dwordx2 s[{sWS}:{sWS+1}], s[0:1], {KA['ws']}")
    a(f"s_load_dwordx2 s[{sDv}:{sDv+1}], s[0:1], {KA['ssmD']}")
    a(f"s_load_dwordx2 s[{sWSP}:{sWSP+1}], s[0:1], {KA['wsp']}")
    a(f"s_load_dwordx2 s[{sWO}:{sWO+1}], s[0:1], {KA['wout']}")
    vL = V(); vT = V(); t0, t1, t2 = V(), V(), V()
    if FUSED: a(f"v_subrev_u32 v0, 256, v0")
    cst = [0]
    def csync():
        if FUSED: gsync(a, 1, cst, t0, t1)
        else:
            a("s_waitcnt lgkmcnt(0)")
            a("s_barrier")
    a(f"v_lshrrev_b32 v{t0}, 6, v0")
    a(f"v_and_b32 v{vL}, 63, v0")
    a(f"v_readfirstlane_b32 s{sW}, v{t0}")
    for srd, size in ((sSSM, SZ_SSMK), (sWS, WS_SIZE_DBG if prof else WS_END), (sDv, 1280), (sWSP, SZ_WSP), (sWO, SZ_WOUT)):
        a(f"s_mov_b32 s{srd+2}, {size}")
        a(f"s_mov_b32 s{srd+3}, {SRD3:#x}")
    a(f"s_mov_b32 s{sC}, s2")
    a(f"v_lshlrev_b32 v{vT}, 4, v0")
    NCH = 3
    HR = V(8*NCH, 4); UR = V(4*NCH, 4); DR = V(NCH)
    vTm = V()
    FP = V(2, 2)
    a(f"v_subrev_u32 v{vTm}, 16, v{vT}")
    sCHN = [56, 57, 58]
    a(f"s_mov_b32 s{sCHN[0]}, s2")
    a(f"s_add_u32 s{sCHN[1]}, s2, 256")
    a(f"s_lshr_b32 s{sCHN[2]}, s2, 1")
    a(f"s_add_u32 s{sCHN[2]}, s{sCHN[2]}, 512")
    ld = {}
    def loads(i):
        a(f"s_lshl_b32 s{sT0}, s{sCHN[i]}, 12")
        a.vmem(f"buffer_load_dwordx4 v[{HR+8*i+4}:{HR+8*i+7}], v{vT}, s[{sSSM}:{sSSM+3}], s{sT0} offen")
        a.vmem(f"buffer_load_dwordx4 v[{HR+8*i}:{HR+8*i+3}], v{vTm}, s[{sSSM}:{sSSM+3}], s{sT0} offen")
        a(f"s_lshl_b32 s{sT1}, s{sCHN[i]}, 1")
        a(f"v_mov_b32 v{t0}, 0")
        a.vmem(f"buffer_load_ushort v{DR+i}, v{t0}, s[{sDv}:{sDv+3}], s{sT1} offen")
        if FUSED and i == 0:
            ld[i] = a.vm - 1
            return
        load_u(i)
    def load_u(i):
        a(f"s_lshl_b32 s{sT0}, s{sCHN[i]}, 12")
        a(f"s_add_u32 s{sT0}, s{sT0}, {WS_KVT}")
        ld[i] = a.vmem(f"buffer_load_dwordx4 v[{UR+4*i}:{UR+4*i+3}], v{vT}, s[{sWS}:{sWS+3}], s{sT0} offen" + (" sc1" if FUSED else ""))
    def poll_all():
        for i2 in range(NCH):
            a(f"s_mul_i32 s{sT1}, s{sCHN[i2]}, 820")
            a(f"s_lshr_b32 s{sT1}, s{sT1}, 16")
            a(f"s_lshl_b32 s{sT1}, s{sT1}, 8")
            a(f"s_add_u32 s{sT1}, s{sT1}, {WS_F1}")
            poll_flags(a, sWS, sT1, FP, t0)
    a("s_waitcnt lgkmcnt(0)")
    ST("c_kernarg")
    loads(0)
    vTW, vTZ, vDm = V(), V(), V()
    sU, sTWB, sTZB = 47, 52, 53
    a(f"s_lshr_b32 s{sU}, s2, 3")
    a(f"s_lshl_b32 s{sU}, s{sU}, 2")
    a(f"s_add_u32 s{sU}, s{sU}, s{sW}")
    a(f"s_mul_i32 s{sT0}, s{sU}, 12")
    a(f"v_add_u32 v{t0}, s{sT0}, v{vL}")
    a(f"v_mul_u32_u24 v{t1}, 43691, v{t0}")
    a(f"v_lshrrev_b32 v{t1}, 22, v{t1}")
    a(f"v_mul_u32_u24 v{t2}, 96, v{t1}")
    a(f"v_sub_u32 v{t0}, v{t0}, v{t2}")
    a(f"v_mul_u32_u24 v{t1}, 98304, v{t1}")
    a(f"v_lshl_add_u32 v{vTZ}, v{t0}, 7, v{t1}")
    a(f"s_and_b32 s{sT0}, s2, 7")
    a(f"s_lshr_b32 s{sTWB}, s{sT0}, 1")
    a(f"s_lshl_b32 s{sTWB}, s{sTWB}, 21")
    a(f"s_and_b32 s{sTZB}, s{sT0}, 1")
    a(f"s_mul_i32 s{sTZB}, s{sTZB}, {4*393216}")
    a(f"s_add_u32 s{sTZB}, s{sTZB}, {WS_Z2F}")
    a(f"s_lshl_b32 s{sT0}, s{sU}, 4")
    a(f"v_add_u32 v{t0}, s{sT0}, v{vL}")
    a(f"v_lshrrev_b32 v{t1}, 2, v{t0}")
    a(f"v_lshlrev_b32 v{t1}, 12, v{t1}")
    a(f"v_and_b32 v{t0}, 3, v{t0}")
    a(f"v_lshl_add_u32 v{vTW}, v{t0}, 10, v{t1}")
    def touch(c, w=True):
        if "notouch" in K2X: return
        a(f"s_add_u32 s{sT0}, s{sTZB}, {c*12288}")
        a(f"s_mov_b64 exec, 0xfff")
        a.vmem(f"buffer_load_dword v{vDm}, v{vTZ}, s[{sWS}:{sWS+3}], s{sT0} offen")
        if w and "notw" not in K2X:
            a(f"s_add_u32 s{sT0}, s{sTWB}, {c*128}")
            a(f"s_mov_b64 exec, 0xffff")
            a.vmem(f"buffer_load_dword v{vDm}, v{vTW}, s[{sWSP}:{sWSP+3}], s{sT0} offen")
        a(f"s_mov_b64 exec, -1")
    NUP = int(os.environ.get('NUP', '2'))
    for c_ in range(NUP): touch(c_)
    Zr = V(4, 4)
    for e in range(4): a(f"v_mov_b32 v{Zr+e}, 0")
    a(f"v_mul_u32_u24 v{t0}, {CS_}, v0")
    if TOEP: a(f"v_add_u32 v{t0}, {TOEP}, v{t0}")
    a(f"v_cmp_gt_u32 vcc, 64, v0")
    a(f"s_and_saveexec_b64 s[50:51], vcc")
    lz = a.newlabel("c_z")
    a(f"s_cbranch_execz {lz}")
    a(f"v_subrev_u32 v{t1}, {32*16 - UB}, v{vT}")
    a(f"v_cmp_gt_u32 vcc, 8, v0")
    a(f"v_cndmask_b32 v{t1}, v{t1}, v{t0}, vcc")
    a(f"v_add_u32 v{t2}, -8, v0")
    a(f"v_cmp_lt_u32 vcc, 23, v{t2}")
    a(f"s_and_b64 exec, exec, vcc")
    a.ds(f"ds_write_b128 v{t1}, v[{Zr}:{Zr+3}]")
    a.label(lz)
    a(f"s_mov_b64 exec, s[50:51]")
    vTW_ = V()
    a(f"v_add_u32 v{vTW_}, {OZ*16 + TOEP}, v{vT}")
    vUW = V()
    a(f"v_add_u32 v{vUW}, {UB + UZ*16}, v{vT}")
    vA = V()
    a(f"v_and_b32 v{t0}, 7, v{vL}")
    a(f"v_mul_u32_u24 v{t0}, {CS_}, v{t0}")
    a(f"v_bfe_u32 v{t1}, v{vL}, 3, 1")
    a(f"v_lshrrev_b32 v{t2}, 4, v{vL}")
    a(f"v_sub_u32 v{t1}, v{t1}, v{t2}")
    a(f"v_add_u32 v{t1}, 3, v{t1}")
    a(f"v_lshl_add_u32 v{vA}, v{t1}, 4, v{t0}")
    if TOEP: a(f"v_add_u32 v{vA}, {TOEP}, v{vA}")
    vBq = V()
    a(f"v_and_b32 v{t0}, 15, v{vL}")
    a(f"v_lshl_add_u32 v{t0}, v{t0}, 1, v{t2}")
    a(f"v_lshlrev_b32 v{vBq}, 4, v{t0}")
    a(f"v_add_u32 v{vBq}, {UB}, v{vBq}")
    DM = V(4, 4)
    a(f"v_and_b32 v{t0}, 15, v{vL}")
    a(f"v_lshlrev_b32 v{t1}, 3, v{t2}")
    a(f"v_sub_u32 v{t1}, v{t1}, v{t0}")
    a(f"v_add_u32 v{t1}, -9, v{t1}")
    vK0, vK1 = V(), V()
    a(f"v_mov_b32 v{vK0}, 0xffff"); a(f"v_mov_b32 v{vK1}, 0xffff0000")
    for dw in range(4):
        a(f"v_cmp_eq_u32 vcc, {2*dw}, v{t1}")
        a(f"v_cndmask_b32 v{DM+dw}, 0, v{vK0}, vcc")
        a(f"v_cmp_eq_u32 vcc, {2*dw + 1}, v{t1}")
        a(f"v_cndmask_b32 v{DM+dw}, v{DM+dw}, v{vK1}, vcc")
    vPW = V()
    a(f"v_and_b32 v{t0}, 15, v{vL}")
    a(f"v_lshlrev_b32 v{t0}, 6, v{t0}")
    a(f"v_lshl_add_u32 v{t0}, v{t2}, 4, v{t0}")
    a(f"s_lshl_b32 s{sT0}, s{sW}, 13")
    a(f"s_add_u32 s{sT0}, s{sT0}, {PB}")
    a(f"v_add_u32 v{vPW}, s{sT0}, v{t0}")
    vPR = V()
    a(f"v_lshlrev_b32 v{vPR}, 5, v0")
    a(f"v_add_u32 v{vPR}, {PB}, v{vPR}")
    ACC = V(32, 4)
    AF = V(12, 4); BF = V(64, 4)
    EW = V(8, 4); TQ = V(4, 4); DG = V(4, 4)

    def mfma_block(w, tiles, touches):
        tq = list(touches)
        started = set()
        seq = []
        for r in range(2):
            q0 = 2*w + r
            dmin = 0
            ips = [ip for ip in range(8) if any(T >= ip for T in tiles)]
            seq += [(r, ip) for ip in ips]
        bid = {}
        def need_d(r): return sorted({T - ip for (rr, ip) in seq if rr == r for T in tiles if T >= ip})
        def read_b(r):
            q0 = 2*w + r
            for d in need_d(r):
                m = 8*d - q0
                bid[(r, d)] = a.ds(f"ds_read_b128 v[{BF+(r*8+d)*4}:{BF+(r*8+d)*4+3}], v{vBq} offset:{(4*m - 2 + UZ)*16}")
        aid = {}
        def read_a(n):
            r, ip = seq[n]
            q = 2*w + r + 8*ip
            aid[n] = a.ds(f"ds_read_b128 v[{AF+(n%3)*4}:{AF+(n%3)*4+3}], v{vA} offset:{64*q}")
        read_a(0); read_b(0); read_a(1)
        for n, (r, ip) in enumerate(seq):
            if n + 2 < len(seq): read_a(n + 2)
            if n == 2: read_b(1)
            last = max([aid[n]] + [bid[(r, T - ip)] for T in tiles if T >= ip])
            a.wait_lg(last)
            q0 = 2*w + r
            for T in sorted(tiles, reverse=True):
                if T < ip: continue
                c = f"v[{ACC+4*T}:{ACC+4*T+3}]" if T in started else "0"; started.add(T)
                a(f"v_mfma_f32_16x16x32_bf16 v[{ACC+4*T}:{ACC+4*T+3}], v[{AF+(n%3)*4}:{AF+(n%3)*4+3}], v[{BF+(r*8+T-ip)*4}:{BF+(r*8+T-ip)*4+3}], {c}")
            if q0 == 0 and ip == 0:
                for T in tiles:
                    a(f"v_mfma_f32_16x16x32_bf16 v[{ACC+4*T}:{ACC+4*T+3}], v[{DG}:{DG+3}], v[{BF+(r*8+T)*4}:{BF+(r*8+T)*4+3}], v[{ACC+4*T}:{ACC+4*T+3}]")
            if tq and n % 2 == 1: touch(tq.pop(0))
        for T in tiles:
            a.ds(f"ds_write_b128 v{vPW}, v[{ACC+4*T}:{ACC+4*T+3}] offset:{T*1024}")
    def finalize(i, tiles):
        regs = [BF, BF+8, BF+16, BF+24]
        full = len(tiles) == 8
        if not full:
            lab = a.newlabel("c_fm")
            a(f"s_mov_b64 exec, 0")
            for w in range(4):
                lo = 0xffffffff if 2*w in tiles else 0
                hi = 0xffffffff if 2*w + 1 in tiles else 0
                a(f"s_cmp_eq_u32 s{sW}, {w}")
                a(f"s_cselect_b32 exec_lo, {lo if lo == 0 else -1}, exec_lo")
                a(f"s_cselect_b32 exec_hi, {hi if hi == 0 else -1}, exec_hi")
            lskip = a.newlabel("c_fskip")
            a(f"s_cbranch_execz {lskip}")
        for k in range(4):
            a.ds(f"ds_read_b128 v[{regs[k]}:{regs[k]+3}], v{vPR} offset:{k*PT_}")
            a.ds(f"ds_read_b128 v[{regs[k]+4}:{regs[k]+7}], v{vPR} offset:{k*PT_ + 16}")
        a(f"s_lshl_b32 s{sT0}, s{sCHN[i]}, 12")
        a(f"s_add_u32 s{sT0}, s{sT0}, {WS_YT}")
        a("s_waitcnt lgkmcnt(0)")
        for e in range(0, 8, 2):
            a(f"v_pk_add_f32 {P(regs[0]+e)}, {P(regs[0]+e)}, {P(regs[1]+e)}")
            a(f"v_pk_add_f32 {P(regs[2]+e)}, {P(regs[2]+e)}, {P(regs[3]+e)}")
        for e in range(0, 8, 2):
            a(f"v_pk_add_f32 {P(regs[0]+e)}, {P(regs[0]+e)}, {P(regs[2]+e)}")
        for e in range(4):
            a(f"v_cvt_pk_bf16_f32 v{TQ+e}, v{regs[0]+2*e}, v{regs[0]+2*e+1}")
        a(f"buffer_store_dwordx4 v[{TQ}:{TQ+3}], v{vT}, s[{sWS}:{sWS+3}], s{sT0} offen" + (" sc1" if "ysc1" in K2X else ""))
        a.vm -= 1
        if not full:
            a.label(lskip)
            a(f"s_mov_b64 exec, -1")
        a("s_nop 1")

    def per_wave(variants):
        lend = a.newlabel("c_pw_end"); labs = [a.newlabel("c_pw") for _ in range(4)]
        lg0, vm0 = a.lg, a.vm
        lgmax, vmmin = lg0, None
        for w in range(4):
            if w < 3:
                a(f"s_cmp_lg_u32 s{sW}, {w}")
                a(f"s_cbranch_scc1 {labs[w]}")
            a.lg, a.vm = lg0, vm0
            variants[w]()
            lgmax = max(lgmax, a.lg); vmmin = a.vm if vmmin is None else min(vmmin, a.vm)
            if w < 3:
                a(f"s_branch {lend}")
                a.label(labs[w])
        a.label(lend)
        a.lg, a.vm = lgmax, vmmin

    for i in range(NCH):
        a.comment(f"------- channel slot {i}")
        a.wait_vm(ld[i])
        ST(f"c{i}_ld")
        d = HR + 8*i
        a(f"v_cmp_ne_u32 vcc, 0, v0")
        for e in range(4): a(f"v_cndmask_b32 v{d+e}, 0, v{d+e}, vcc")
        for e in range(7): a(f"v_alignbit_b32 v{EW+e}, v{d+e+1}, v{d+e}, 16")
        for c in range(8):
            st = c + 1
            if st % 2 == 0: src = d + st//2
            else: src = EW + (st-1)//2
            if (src % 2) != 0:
                for e in range(4): a(f"v_mov_b32 v{TQ+e}, v{src+e}")
                src = TQ
            a.ds(f"ds_write_b128 v{vTW_}, v[{src}:{src+3}] offset:{c*CS_}")
            if src == TQ: a("s_nop 1")
        if FUSED and i == 0:
            poll_all()
            load_u(0)
            a.wait_vm(ld[0])
        a.ds(f"ds_write_b128 v{vUW}, v[{UR+4*i}:{UR+4*i+3}]")
        a(f"v_lshlrev_b32 v{t0}, 16, v{DR+i}")
        a(f"v_or_b32 v{t0}, v{t0}, v{DR+i}")
        for e in range(4): a(f"v_and_b32 v{DG+e}, v{DM+e}, v{t0}")
        if i == 0:
            sWJ = 54
            lwj = a.newlabel("c_wj")
            a(f"s_cmp_ge_u32 s2, 192")
            a(f"s_cbranch_scc1 {lwj}")
            a(f"s_mul_i32 s{sT0}, s2, 2731")
            a(f"s_lshr_b32 s{sT0}, s{sT0}, 16")
            a(f"s_mul_i32 s{sT1}, s{sT0}, 24")
            a(f"s_sub_u32 s{sT1}, s2, s{sT1}")
            a(f"s_mul_i32 s{sT1}, s{sT1}, {32*1280}")
            a(f"s_mul_i32 s{sT0}, s{sT0}, 160")
            a(f"s_add_u32 s{sWJ}, s{sT0}, s{sT1}")
            for r in range(2):
                l2 = None
                if r == 1:
                    l2 = a.newlabel("c_wj2")
                    a(f"s_cmp_lg_u32 s{sW}, 0")
                    a(f"s_cbranch_scc1 {l2}")
                if r == 0: a(f"v_mov_b32 v{t0}, v0")
                else: a(f"v_add_u32 v{t0}, 256, v{vL}")
                a(f"v_mul_u32_u24 v{t1}, 6554, v{t0}")
                a(f"v_lshrrev_b32 v{t1}, 16, v{t1}")
                a(f"v_mul_u32_u24 v{t2}, 10, v{t1}")
                a(f"v_sub_u32 v{t0}, v{t0}, v{t2}")
                a(f"v_lshlrev_b32 v{t0}, 4, v{t0}")
                a(f"v_mul_u32_u24 v{t1}, 1280, v{t1}")
                a(f"v_add_u32 v{t0}, v{t0}, v{t1}")
                if r == 0:
                    a(f"s_lshl_b32 s{sT0}, s{sW}, 10")
                    a(f"s_add_u32 m0, s{sT0}, {WJ}")
                else: a(f"s_mov_b32 m0, {WJ + 4096}")
                a(f"buffer_load_dwordx4 v{t0}, s[{sWO}:{sWO+3}], s{sWJ} offen lds")
                a.vm -= 1
                if l2: a.label(l2)
            a.label(lwj)
            for i_ in range(1, NCH): loads(i_)
        csync()
        ST(f"c{i}_built")
        if i == 1:
            lw3 = a.newlabel("c_wj3")
            a(f"s_cmp_ge_u32 s2, 192")
            a(f"s_cbranch_scc1 {lw3}")
            a(f"v_lshrrev_b32 v{t0}, 4, v{vL}")
            a(f"v_and_b32 v{t2}, 15, v{vL}")
            a(f"v_lshrrev_b32 v{t1}, 2, v{t2}")
            a(f"v_lshl_add_u32 v{t0}, v{t0}, 2, v{t1}")
            a(f"v_mul_u32_u24 v{t0}, 160, v{t0}")
            a(f"v_and_b32 v{t1}, 3, v{t2}")
            a(f"v_lshl_add_u32 v{t0}, v{t1}, 3, v{t0}")
            a(f"v_lshlrev_b32 v{t2}, 4, v{vL}")
            for r in range(2):
                l2 = None
                if r == 1:
                    l2 = a.newlabel("c_wj4")
                    a(f"s_cmp_lg_u32 s{sW}, 0")
                    a(f"s_cbranch_scc1 {l2}")
                if r == 0: a(f"s_lshl_b32 s{sT0}, s{sW}, 5")
                else: a(f"s_mov_b32 s{sT0}, 128")
                a(f"s_add_u32 s{sT1}, s{sT0}, {WJ}")
                a(f"v_add_u32 v{t1}, s{sT1}, v{t0}")
                a(f"ds_read_b64_tr_b16 v[{TQ}:{TQ+1}], v{t1}")
                a(f"ds_read_b64_tr_b16 v[{TQ+2}:{TQ+3}], v{t1} offset:2560")
                a(f"s_mul_i32 s{sT1}, s2, 5120")
                a(f"s_lshl_b32 s{sT0}, s{sT0}, 5")
                a(f"s_add_u32 s{sT1}, s{sT1}, s{sT0}")
                a(f"s_add_u32 s{sT1}, s{sT1}, {WS_WOF}")
                a("s_waitcnt lgkmcnt(0)")
                a(f"buffer_store_dwordx4 v[{TQ}:{TQ+3}], v{t2}, s[{sWS}:{sWS+3}], s{sT1} offen" + (" sc1" if "ysc1" in K2X else ""))
                a("s_nop 1")
                a.vm -= 1; a.lg -= 2
                if l2: a.label(l2)
            a.label(lw3)
        tch = list(range(NUP, 8)) if i == 0 else []
        def do_channel(tiles):
            per_wave([(lambda w=w: mfma_block(w, tiles, tch)) for w in range(4)])
            if i < 2: ST(f"c{i}_mfma")
            csync()
            finalize(i, tiles)
        if i < 2:
            do_channel(list(range(8)))
        else:
            labB = a.newlabel("c_halfB"); labE = a.newlabel("c_halfE")
            a(f"s_bitcmp1_b32 s2, 0")
            a(f"s_cbranch_scc1 {labB}")
            lg0, vm0, c0_ = a.lg, a.vm, cst[0]
            do_channel([2, 6, 7])
            a(f"s_branch {labE}")
            a.label(labB); a.lg, a.vm, cst[0] = lg0, vm0, c0_
            do_channel([0, 1, 3, 4, 5])
            a.label(labE)
        ST(f"c{i}_done")
    ST.dump(sWS, sW, t0, t1, WS_DBG + 0x400000)

def gen_k2(name="k2_kernel", prof=False):
    a = Asm()
    a.raw(f".globl {name}\n.p2align 8\n.type {name},@function\n{name}:")
    a(f"s_cmp_ge_u32 s2, 512")
    a(f"s_cbranch_scc1 {name}_end")
    a(f"s_cmp_lt_u32 s2, 256")
    a(f"s_cbranch_scc1 {name}_conv" if "noconv" not in K2X else f"s_cbranch_scc1 {name}_end")
    ST = Stamps(a, enabled=prof); ST("g_start")
    V = Alloc(1, 256, "v")
    gen_gemm(a, V, ST, prof)
    a("s_endpgm")
    hi = V.hi
    a.label(f"{name}_conv")
    a.vm = 0; a.lg = 0
    ST2 = Stamps(a, enabled=prof); ST2("c_start")
    V2 = Alloc(1, 256, "v")
    gen_conv(a, V2, ST2, prof, name)
    a.label(f"{name}_end")
    a("s_endpgm")
    gen_k2.stamp_names = {"k2g": ST.names, "k2c": ST2.names}
    return a.finish(), max(hi, V2.hi)


def gen_k12(name="k12_kernel", prof=False):
    import k1
    a, hi1, sW1 = k1.gen_k1(name=name, prof=prof, fused=True)
    a(f"s_cmp_ge_u32 s{sW1}, 4")
    a(f"s_cbranch_scc1 {name}_conv")
    a.vm = 0; a.lg = 0
    ST = Stamps(a, enabled=prof); ST("g_start")
    V = Alloc(1, 255, "v")
    gen_gemm(a, V, ST, prof)
    a("s_endpgm")
    hi = V.hi
    a.label(f"{name}_conv")
    a.vm = 0; a.lg = 0
    ST2 = Stamps(a, enabled=prof); ST2("c_start")
    V2 = Alloc(1, 255, "v")
    gen_conv(a, V2, ST2, prof, name)
    a.label(f"{name}_end")
    a("s_endpgm")
    gen_k12.stamp_names = {"k1": k1.gen_k1.stamp_names, "k2g": ST.names, "k2c": ST2.names}
    return a.finish(), max(hi1, hi, V2.hi)
```

```python
from dsl import *
from layout import *
from k1 import f32, Filler, run, mask, P, Z1L, SYNC
sTAGF = 100

def gsync(a, which, state, t0, t1):
    state[0] += 1
    a("s_waitcnt lgkmcnt(0)")
    a(f"v_mov_b32 v{t0}, {SYNC + 4*which}")
    a(f"v_mov_b32 v{t1}, 1")
    a("s_mov_b64 exec, 1")
    a(f"ds_add_u32 v{t0}, v{t1}")
    a("s_mov_b64 exec, -1")
    lp = a.newlabel("gsync"); le = a.newlabel("gsync_e")
    a("s_mov_b32 s67, 0")
    a.label(lp)
    a(f"ds_read_b32 v{t1}, v{t0}")
    a("s_add_u32 s67, s67, 1")
    a("s_waitcnt lgkmcnt(0)")
    a(f"v_readfirstlane_b32 s66, v{t1}")
    a("s_cmp_gt_u32 s67, 1000000")
    a(f"s_cbranch_scc1 {le}")
    a(f"s_cmp_lt_u32 s66, {4*state[0]}")
    a(f"s_cbranch_scc1 {lp}")
    a.label(le)
    a.lg -= 2

def poll_all_flags(a, sWS, F, t0):
    lp = a.newlabel("fpoll"); le = a.newlabel("fpoll_e")
    a(f"v_mbcnt_lo_u32_b32 v{t0}, -1, 0")
    a(f"v_mbcnt_hi_u32_b32 v{t0}, -1, v{t0}")
    a(f"v_lshlrev_b32 v{t0}, 4, v{t0}")
    a(f"s_mov_b32 s66, {WS_F1}")
    a("s_mov_b32 s67, 0")
    a.label(lp)
    a(f"buffer_load_dwordx4 v[{F}:{F+3}], v{t0}, s[{sWS}:{sWS+3}], s66 offen sc1")
    a(f"buffer_load_dwordx4 v[{F+4}:{F+7}], v{t0}, s[{sWS}:{sWS+3}], s66 offen offset:1024 sc1")
    a.vm -= 2
    a("s_add_u32 s67, s67, 1")
    a("s_waitcnt vmcnt(0)")
    a(f"v_cmp_ne_u32 vcc, s{sTAGF}, v{F}")
    for k in range(1, 8):
        a(f"v_cmp_ne_u32 s[64:65], s{sTAGF + (k & 1)}, v{F+k}")
        a("s_or_b64 vcc, vcc, s[64:65]")
    a("s_cmp_gt_u32 s67, 100000")
    a(f"s_cbranch_scc1 {le}")
    a("s_cmp_eq_u64 vcc, 0")
    a(f"s_cbranch_scc1 {le}")
    a("s_sleep 2")
    a(f"s_branch {lp}")
    a.label(le)

def poll_flags(a, sWS, sOff, F, t0):
    lp = a.newlabel("fpoll"); le = a.newlabel("fpoll_e")
    a(f"v_mbcnt_lo_u32_b32 v{t0}, -1, 0")
    a(f"v_mbcnt_hi_u32_b32 v{t0}, -1, v{t0}")
    a(f"v_and_b32 v{t0}, 31, v{t0}")
    a(f"v_lshlrev_b32 v{t0}, 3, v{t0}")
    a("s_mov_b32 s67, 0")
    a.label(lp)
    a(f"buffer_load_dwordx2 {P(F)}, v{t0}, s[{sWS}:{sWS+3}], s{sOff} offen sc1")
    a.vm -= 1
    a("s_add_u32 s67, s67, 1")
    a("s_waitcnt vmcnt(0)")
    a(f"v_cmp_ne_u32 vcc, s{sTAGF}, v{F}")
    a(f"v_cmp_ne_u32 s[64:65], s{sTAGF+1}, v{F+1}")
    a("s_or_b64 vcc, vcc, s[64:65]")
    a("s_cmp_gt_u32 s67, 100000")
    a(f"s_cbranch_scc1 {le}")
    a("s_cmp_eq_u64 vcc, 0")
    a(f"s_cbranch_scc1 {le}")
    a("s_sleep 2")
    a(f"s_branch {lp}")
    a.label(le)
import os
K2X = os.environ.get('K2X', '')

ZDEPTH = int(os.environ.get('ZD', '4'))
FUSED = bool(os.environ.get('FUSED'))
CB = 86016 if FUSED else 0
CS_ = 4160
TOEP = CB
OZ = 1
UZ = 32
UB = TOEP + 8 * CS_
PB = UB + 4608
PT_ = 8192
WJ = PB + 4*PT_
assert WJ + 5120 <= (161792 if FUSED else 81920)

def gen_gemm(a, V, ST, prof):
    sWSP, sWS, sBSP = 4, 8, 12
    sRB, sJ, sW = 32, 33, 34
    sT0, sT1, sT2, sT3 = 40, 41, 42, 43
    sZ, sWB, sLB = 44, 45, 46
    a(f"s_load_dwordx2 s[{sWSP}:{sWSP+1}], s[0:1], {KA['wsp']}")
    a(f"s_load_dwordx2 s[{sWS}:{sWS+1}], s[0:1], {KA['ws']}")
    a(f"s_load_dwordx2 s[{sBSP}:{sBSP+1}], s[0:1], {KA['bsp']}")
    vL = V(); t0, t1, t2 = V(), V(), V()
    a(f"v_lshrrev_b32 v{t0}, 6, v0")
    a(f"v_and_b32 v{vL}, 63, v0")
    a(f"v_readfirstlane_b32 s{sW}, v{t0}")
    for srd, size in ((sWSP, SZ_WSP), (sWS, WS_SIZE_DBG if prof else WS_END), (sBSP, 4096)):
        a(f"s_mov_b32 s{srd+2}, {size}")
        a(f"s_mov_b32 s{srd+3}, {SRD3:#x}")
    a(f"s_and_b32 s{sT0}, s2, 7")
    a(f"s_lshr_b32 s{sT1}, s2, 3")
    a(f"s_and_b32 s{sT1}, s{sT1}, 31")
    a(f"s_lshr_b32 s{sRB}, s{sT0}, 1")
    a(f"s_lshl_b32 s{sRB}, s{sRB}, 3")
    a(f"s_and_b32 s{sT2}, s{sT1}, 7")
    a(f"s_add_u32 s{sRB}, s{sRB}, s{sT2}")
    a(f"s_and_b32 s{sJ}, s{sT0}, 1")
    a(f"s_lshl_b32 s{sJ}, s{sJ}, 2")
    a(f"s_lshr_b32 s{sT2}, s{sT1}, 3")
    a(f"s_add_u32 s{sJ}, s{sJ}, s{sT2}")
    a(f"s_lshl_b32 s{sZ}, s{sJ}, 7")
    a(f"s_lshl_b32 s{sT0}, s{sW}, 5")
    a(f"s_add_u32 s{sZ}, s{sZ}, s{sT0}")
    a(f"s_mul_i32 s{sZ}, s{sZ}, 3072")
    a(f"s_add_u32 s{sZ}, s{sZ}, {WS_Z2F}")
    a(f"s_lshl_b32 s{sWB}, s{sRB}, 18")
    a(f"s_lshl_b32 s{sT0}, s{sW}, 10")
    a(f"s_add_u32 s{sWB}, s{sWB}, s{sT0}")
    a(f"s_lshl_b32 s{sLB}, s{sW}, 14")
    vZ = V()
    a(f"v_lshlrev_b32 v{vZ}, 4, v{vL}")
    vWE, vWO = V(), V()
    a(f"v_lshrrev_b32 v{t0}, 3, v{vL}")
    a(f"v_lshlrev_b32 v{t0}, 12, v{t0}")
    a(f"v_and_b32 v{t1}, 7, v{vL}")
    a(f"v_lshrrev_b32 v{t2}, 4, v{vL}")
    a(f"v_xor_b32 v{t1}, v{t1}, v{t2}")
    a(f"v_lshl_add_u32 v{vWE}, v{t1}, 4, v{t0}")
    a(f"v_xor_b32 v{vWO}, 64, v{vWE}")
    sROT = 50
    if "rot" in K2X:
        a(f"s_and_b32 s{sROT}, s{sJ}, 3")
        a(f"s_lshl_b32 s{sROT}, s{sROT}, 1")
        a(f"s_add_u32 s{sROT}, s{sROT}, s{sRB}")
        a(f"s_and_b32 s{sROT}, s{sROT}, 7")
    else: a(f"s_mov_b32 s{sROT}, 0")
    def chunk(c, dst):
        a(f"s_add_u32 s{dst}, s{sROT}, {c}")
        a(f"s_and_b32 s{dst}, s{dst}, 7")
    ACC = V(96, 4)
    def acc(ft, tt): return ACC + (ft*2 + tt)*16
    ZF = V((ZDEPTH+1)*12, 4)
    def zf(ks, ft): return ZF + ((ks % (ZDEPTH+1))*3 + ft)*4
    WFr = V(16, 4)
    def wfr(b, tt): return WFr + (b*2 + tt)*4
    z_id = {}; w_id = {}
    sZc = [52, 53]; sWc = [54, 55]
    def z_base(c):
        chunk(c, sZc[c & 1])
        a(f"s_mul_i32 s{sZc[c & 1]}, s{sZc[c & 1]}, 12288")
        a(f"s_add_u32 s{sZc[c & 1]}, s{sZc[c & 1]}, s{sZ}")
    def w_base(c):
        chunk(c, sWc[c & 1])
        a(f"s_lshl_b32 s{sWc[c & 1]}, s{sWc[c & 1]}, 7")
        a(f"s_add_u32 s{sWc[c & 1]}, s{sWc[c & 1]}, s{sWB}")
    def load_z_g(ks):
        c = ks // 4
        if ks % 4 == 0: z_base(c)
        for ft in range(3):
            so = sZc[c & 1]
            if ks % 4:
                a(f"s_add_u32 s{sT1}, s{sZc[c & 1]}, {(ks%4)*3072}"); so = sT1
            z_id[(ks, ft)] = a.vmem(f"buffer_load_dwordx4 v[{zf(ks,ft)}:{zf(ks,ft)+3}], v{vZ}, s[{sWS}:{sWS+3}], s{so} offen offset:{ft*1024}" + (" sc1" if FUSED else ""))
            yield
    def dma_w_g(c, lo, hi):
        sl = c & 1
        if lo == 0: w_base(c)
        for i in range(lo, hi):
            a(f"s_add_u32 s{sT2}, s{sWc[c & 1]}, {i*8*4096}")
            a(f"s_add_u32 m0, s{sLB}, {sl*8192 + i*1024}")
            w_id[c] = a.vmem(f"buffer_load_dwordx4 v{vWE if i % 2 == 0 else vWO}, s[{sWSP}:{sWSP+3}], s{sT2} offen lds")
            yield
    a("s_waitcnt lgkmcnt(0)")
    ST("g_kernarg")
    if FUSED:
        run(dma_w_g(0, 0, 8))
        a(f"s_lshl_b32 s{sT3}, s{sJ}, 8")
        a(f"s_add_u32 s{sT3}, s{sT3}, {WS_F1}")
        poll_flags(a, sWS, sT3, ZF, t0)
        ST("g_flags")
        for ks in range(ZDEPTH): run(load_z_g(ks))
    else:
        run(load_z_g(0)); run(dma_w_g(0, 0, 8))
        for ks in range(1, ZDEPTH): run(load_z_g(ks))
    vWA = [V() for _ in range(4)]
    a(f"v_and_b32 v{t0}, 31, v{vL}")
    a(f"v_lshrrev_b32 v{t1}, 1, v{t0}")
    a(f"v_and_b32 v{t1}, 7, v{t1}")
    a(f"v_lshrrev_b32 v{t2}, 5, v{vL}")
    a(f"v_xor_b32 v{t1}, v{t1}, v{t2}")
    a(f"v_lshl_add_u32 v{t0}, v{t0}, 7, s{sLB}")
    for kk in range(4):
        a(f"v_xor_b32 v{t2}, {2*kk}, v{t1}")
        a(f"v_lshl_add_u32 v{vWA[kk]}, v{t2}, 4, v{t0}")
    Z1 = V(12, 4); vB = V()
    ep = {}
    def epi_loads():
        a(f"s_lshl_b32 s{sT0}, s{sRB}, 3")
        a(f"s_add_u32 s{sT0}, s{sT0}, s{sJ}")
        a(f"s_lshl_b32 s{sT0}, s{sT0}, 2")
        a(f"s_add_u32 s{sT0}, s{sT0}, s{sW}")
        a(f"s_mul_i32 s{sT0}, s{sT0}, 3072")
        a(f"s_add_u32 s{sT0}, s{sT0}, {WS_Z1F}")
        for ft in range(3):
            if FUSED:
                if ft == 0:
                    a(f"s_mul_i32 s{sT0}, s{sW}, 3072")
                    a(f"s_add_u32 s{sT0}, s{sT0}, {Z1L}")
                    a(f"v_add_u32 v{t1}, s{sT0}, v{vZ}")
                a.ds(f"ds_read_b128 v[{Z1+4*ft}:{Z1+4*ft+3}], v{t1} offset:{ft*1024}")
            else:
                a.vmem(f"buffer_load_dwordx4 v[{Z1+4*ft}:{Z1+4*ft+3}], v{vZ}, s[{sWS}:{sWS+3}], s{sT0} offen offset:{ft*1024}")
            yield
        a(f"v_and_b32 v{t0}, 31, v{vL}")
        a(f"v_lshlrev_b32 v{t0}, 1, v{t0}")
        a(f"s_lshr_b32 s{sT0}, s{sW}, 1")
        a(f"s_lshl_b32 s{sT0}, s{sT0}, 6")
        a(f"s_lshl_b32 s{sT3}, s{sRB}, 7")
        a(f"s_add_u32 s{sT0}, s{sT0}, s{sT3}")
        ep['b'] = a.vmem(f"buffer_load_ushort v{vB}, v{t0}, s[{sBSP}:{sBSP+3}], s{sT0} offen")
        yield
    def read_w(ks):
        c = ks // 4; kk = ks % 4; b = ks & 1
        ids = []
        for tt in range(2):
            ids.append(a.ds(f"ds_read_b128 v[{wfr(b,tt)}:{wfr(b,tt)+3}], v{vWA[kk]} offset:{(c&1)*8192 + tt*4096}"))
        return ids[-1]
    a.wait_vm(w_id[0])
    ST("g_w0")
    if "noprio" not in K2X: a("s_setprio 2")
    rd = {0: read_w(0)}
    for ks in range(32):
        c = ks // 4
        if ks % 4 == 0 and "cst" in K2X: ST(f"c{c}")
        a.wait_vm(z_id[(ks, 2)])
        a.wait_lg(rd[ks])
        fl = Filler()
        def rdw(k=ks):
            if (k + 1) % 4 == 0: a.wait_vm(w_id[(k + 1)//4])
            rd[k + 1] = read_w(k + 1)
            yield
        if ks + 1 < 32: fl.add(rdw())
        if ks + ZDEPTH < 32: fl.add(load_z_g(ks + ZDEPTH))
        if ks == 0: fl.add(dma_w_g(1, 0, 4))
        if ks == 1: fl.add(dma_w_g(1, 4, 8))
        for n in range(2, 8):
            if ks == 4*(n-1) - 1: fl.add(dma_w_g(n, 0, 2))
            if ks == 4*(n-1): fl.add(dma_w_g(n, 2, 5))
            if ks == 4*(n-1) + 1: fl.add(dma_w_g(n, 5, 8))
        if ks == 30: fl.add(epi_loads())
        b = ks & 1
        for ft in range(3):
            for tt in range(2):
                cc = "0" if ks == 0 else f"v[{acc(ft,tt)}:{acc(ft,tt)+15}]"
                if not ("nomfma" in K2X and ks > 0):
                    a(f"v_mfma_f32_32x32x16_bf16 v[{acc(ft,tt)}:{acc(ft,tt)+15}], v[{zf(ks,ft)}:{zf(ks,ft)+3}], v[{wfr(b,tt)}:{wfr(b,tt)+3}], {cc}")
                fl.step(1)
        fl.drain()
    ST("g_loop")
    a("s_setprio 0")
    OWN = ZF
    lend = a.newlabel("g_epi_end")
    labs = [a.newlabel("g_epi") for _ in range(4)]
    a(f"v_add_u32 v{t2}, 0x10000, v{vZ}")
    a("s_nop 15")
    gst = [0]
    if FUSED: gsync(a, 0, gst, t0, t1)
    else: a("s_barrier")
    lg0 = a.lg
    for w in range(4):
        if w < 3:
            a(f"s_cmp_lg_u32 s{sW}, {w}")
            a(f"s_cbranch_scc1 {labs[w]}")
        a.lg = lg0
        for d in range(4):
            if d == w: continue
            tt = d >> 1; g0 = d & 1
            k = (w - d - 1) & 3
            for ft in range(3):
                for gh in range(2):
                    r = acc(ft, tt) + 4*(g0 + 2*gh)
                    off = d*18432 + k*6144 + (ft*2+gh)*1024
                    if off >= 65536: a.ds(f"ds_write_b128 v{t2}, v[{r}:{r+3}] offset:{off - 65536}")
                    else: a.ds(f"ds_write_b128 v{vZ}, v[{r}:{r+3}] offset:{off}")
        tt = w >> 1; g0 = w & 1
        for ft in range(3):
            for gh in range(2):
                r = acc(ft, tt) + 4*(g0 + 2*gh)
                for e in range(0, 4, 2):
                    a(f"v_pk_add_f32 {P(OWN + (ft*2+gh)*4 + e)}, {P(r+e)}, 0")
        if w < 3:
            a(f"s_branch {lend}")
            a.label(labs[w])
    a.label(lend)
    return_epi = True
    a("s_waitcnt lgkmcnt(0)")
    if FUSED: gsync(a, 0, gst, t0, t1)
    else: a("s_barrier")
    PT = ACC
    a(f"s_mul_i32 s{sT0}, s{sW}, 18432")
    a(f"v_add_u32 v{t0}, s{sT0}, v{vZ}")
    for k in range(3):
        for q in range(6):
            a.ds(f"ds_read_b128 v[{PT + (k*6+q)*4}:{PT + (k*6+q)*4 + 3}], v{t0} offset:{k*6144 + q*1024}")
    vSt = vWE
    a(f"v_lshrrev_b32 v{vSt}, 4, v{vL}")
    a(f"v_and_b32 v{vSt}, 1, v{vSt}")
    a(f"v_mul_u32_u24 v{vSt}, {24*1024}, v{vSt}")
    a(f"v_and_b32 v{t1}, 15, v{vL}")
    a(f"v_lshrrev_b32 v{t2}, 5, v{vL}")
    a(f"v_lshl_add_u32 v{t1}, v{t2}, 4, v{t1}")
    a(f"v_lshl_add_u32 v{vSt}, v{t1}, 4, v{vSt}")
    a(f"s_mul_i32 s{sT0}, s{sRB}, {4*24*1024}")
    a(f"s_lshr_b32 s{sT1}, s{sW}, 1")
    a(f"s_mul_i32 s{sT1}, s{sT1}, {2*24*1024}")
    a(f"s_add_u32 s{sT0}, s{sT0}, s{sT1}")
    a(f"s_mul_i32 s{sT1}, s{sJ}, 3072")
    a(f"s_add_u32 s{sT0}, s{sT0}, s{sT1}")
    a(f"s_and_b32 s{sT1}, s{sW}, 1")
    a(f"s_lshl_b32 s{sT1}, s{sT1}, 9")
    a(f"s_add_u32 s{sT0}, s{sT0}, s{sT1}")
    a(f"s_add_u32 s{sT0}, s{sT0}, {WS_PF}")
    a.wait_vm(ep['b'])
    vB2 = vWA[0] if vWA[0] % 2 == 0 else vWA[1]
    a(f"v_lshlrev_b32 v{vB2}, 16, v{vB}")
    ZU = PT + 72
    for i in range(12):
        a(f"v_lshlrev_b32 v{ZU+2*i}, 16, v{Z1+i}")
        a(f"v_and_b32 v{ZU+2*i+1}, 0xffff0000, v{Z1+i}")
    for k in range(3):
        a(f"s_waitcnt lgkmcnt({min(15, 12 - 6*k)})")
        for i in range(0, 24, 2):
            a(f"v_pk_add_f32 {P(OWN+i)}, {P(OWN+i)}, {P(PT+k*24+i)}")
    for i in range(0, 24, 2):
        a(f"v_pk_add_f32 {P(OWN+i)}, {P(OWN+i)}, {P(vB2)} op_sel_hi:[1,0]")
    for i in range(0, 24, 2):
        a(f"v_pk_mul_f32 {P(OWN+i)}, {P(OWN+i)}, {P(ZU+i)}")
    OUT = PT
    for ft in range(3):
        for i in range(4):
            a(f"v_cvt_pk_bf16_f32 v{OUT+4*ft+i}, v{OWN+8*ft+2*i}, v{OWN+8*ft+2*i+1}")
        a.vmem(f"buffer_store_dwordx4 v[{OUT+4*ft}:{OUT+4*ft+3}], v{vSt}, s[{sWS}:{sWS+3}], s{sT0} offen offset:{ft*1024}" + (" sc1" if "psc1" in K2X else ""))
    ST("g_end")
    ST.dump(sWS, sW, t0, t1, WS_DBG + 0x200000)

def gen_conv(a, V, ST, prof, name):
    sSSM, sWS, sDv, sWSP, sWO = 4, 8, 12, 16, 20
    sC, sW, sCH = 32, 34, 35
    sT0, sT1, sT2, sT3 = 40, 41, 42, 43
    a(f"s_load_dwordx2 s[{sSSM}:{sSSM+1}], s[0:1], {KA['ssmk']}")
    a(f"s_load_dwordx2 s[{sWS}:{sWS+1}], s[0:1], {KA['ws']}")
    a(f"s_load_dwordx2 s[{sDv}:{sDv+1}], s[0:1], {KA['ssmD']}")
    a(f"s_load_dwordx2 s[{sWSP}:{sWSP+1}], s[0:1], {KA['wsp']}")
    a(f"s_load_dwordx2 s[{sWO}:{sWO+1}], s[0:1], {KA['wout']}")
    vL = V(); vT = V(); t0, t1, t2 = V(), V(), V()
    if FUSED: a(f"v_subrev_u32 v0, 256, v0")
    cst = [0]
    def csync():
        if FUSED: gsync(a, 1, cst, t0, t1)
        else:
            a("s_waitcnt lgkmcnt(0)")
            a("s_barrier")
    a(f"v_lshrrev_b32 v{t0}, 6, v0")
    a(f"v_and_b32 v{vL}, 63, v0")
    a(f"v_readfirstlane_b32 s{sW}, v{t0}")
    for srd, size in ((sSSM, SZ_SSMK), (sWS, WS_SIZE_DBG if prof else WS_END), (sDv, 1280), (sWSP, SZ_WSP), (sWO, SZ_WOUT)):
        a(f"s_mov_b32 s{srd+2}, {size}")
        a(f"s_mov_b32 s{srd+3}, {SRD3:#x}")
    a(f"s_mov_b32 s{sC}, s2")
    a(f"v_lshlrev_b32 v{vT}, 4, v0")
    NCH = 3
    HR = V(8*NCH, 4); UR = V(4*NCH, 4); DR = V(NCH)
    vTm = V()
    FP = V(8, 4)
    a(f"v_subrev_u32 v{vTm}, 16, v{vT}")
    sCHN = [56, 57, 58]
    a(f"s_mov_b32 s{sCHN[0]}, s2")
    a(f"s_add_u32 s{sCHN[1]}, s2, 256")
    a(f"s_lshr_b32 s{sCHN[2]}, s2, 1")
    a(f"s_add_u32 s{sCHN[2]}, s{sCHN[2]}, 512")
    ld = {}
    def loads(i):
        a(f"s_lshl_b32 s{sT0}, s{sCHN[i]}, 12")
        a.vmem(f"buffer_load_dwordx4 v[{HR+8*i+4}:{HR+8*i+7}], v{vT}, s[{sSSM}:{sSSM+3}], s{sT0} offen")
        a.vmem(f"buffer_load_dwordx4 v[{HR+8*i}:{HR+8*i+3}], v{vTm}, s[{sSSM}:{sSSM+3}], s{sT0} offen")
        a(f"s_lshl_b32 s{sT1}, s{sCHN[i]}, 1")
        a(f"v_mov_b32 v{t0}, 0")
        a.vmem(f"buffer_load_ushort v{DR+i}, v{t0}, s[{sDv}:{sDv+3}], s{sT1} offen")
        if FUSED:
            ld[i] = a.vm - 1
            return
        load_u(i)
    def load_u(i):
        a(f"s_lshl_b32 s{sT0}, s{sCHN[i]}, 12")
        a(f"s_add_u32 s{sT0}, s{sT0}, {WS_KVT}")
        ld[i] = a.vmem(f"buffer_load_dwordx4 v[{UR+4*i}:{UR+4*i+3}], v{vT}, s[{sWS}:{sWS+3}], s{sT0} offen" + (" sc1" if FUSED else ""))
    def poll_all():
        poll_all_flags(a, sWS, FP, t0)
    a("s_waitcnt lgkmcnt(0)")
    ST("c_kernarg")
    loads(0)
    vTW, vTZ, vDm = V(), V(), V()
    sU, sTWB, sTZB = 47, 52, 53
    a(f"s_lshr_b32 s{sU}, s2, 3")
    a(f"s_lshl_b32 s{sU}, s{sU}, 2")
    a(f"s_add_u32 s{sU}, s{sU}, s{sW}")
    a(f"s_mul_i32 s{sT0}, s{sU}, 12")
    a(f"v_add_u32 v{t0}, s{sT0}, v{vL}")
    a(f"v_mul_u32_u24 v{t1}, 43691, v{t0}")
    a(f"v_lshrrev_b32 v{t1}, 22, v{t1}")
    a(f"v_mul_u32_u24 v{t2}, 96, v{t1}")
    a(f"v_sub_u32 v{t0}, v{t0}, v{t2}")
    a(f"v_mul_u32_u24 v{t1}, 98304, v{t1}")
    a(f"v_lshl_add_u32 v{vTZ}, v{t0}, 7, v{t1}")
    a(f"s_and_b32 s{sT0}, s2, 7")
    a(f"s_lshr_b32 s{sTWB}, s{sT0}, 1")
    a(f"s_lshl_b32 s{sTWB}, s{sTWB}, 21")
    a(f"s_and_b32 s{sTZB}, s{sT0}, 1")
    a(f"s_mul_i32 s{sTZB}, s{sTZB}, {4*393216}")
    a(f"s_add_u32 s{sTZB}, s{sTZB}, {WS_Z2F}")
    a(f"s_lshl_b32 s{sT0}, s{sU}, 4")
    a(f"v_add_u32 v{t0}, s{sT0}, v{vL}")
    a(f"v_lshrrev_b32 v{t1}, 2, v{t0}")
    a(f"v_lshlrev_b32 v{t1}, 12, v{t1}")
    a(f"v_and_b32 v{t0}, 3, v{t0}")
    a(f"v_lshl_add_u32 v{vTW}, v{t0}, 10, v{t1}")
    def touch(c, w=True):
        if "notouch" in K2X: return
        a(f"s_add_u32 s{sT0}, s{sTZB}, {c*12288}")
        a(f"s_mov_b64 exec, 0xfff")
        a.vmem(f"buffer_load_dword v{vDm}, v{vTZ}, s[{sWS}:{sWS+3}], s{sT0} offen")
        if w and "notw" not in K2X:
            a(f"s_add_u32 s{sT0}, s{sTWB}, {c*128}")
            a(f"s_mov_b64 exec, 0xffff")
            a.vmem(f"buffer_load_dword v{vDm}, v{vTW}, s[{sWSP}:{sWSP+3}], s{sT0} offen")
        a(f"s_mov_b64 exec, -1")
    NUP = int(os.environ.get('NUP', '2'))
    for c_ in range(NUP): touch(c_)
    def wof_job():
        sWJ = 54
        lwj = a.newlabel("c_wj")
        a(f"s_cmp_ge_u32 s2, 192")
        a(f"s_cbranch_scc1 {lwj}")
        a(f"s_mul_i32 s{sT0}, s2, 2731")
        a(f"s_lshr_b32 s{sT0}, s{sT0}, 16")
        a(f"s_mul_i32 s{sT1}, s{sT0}, 24")
        a(f"s_sub_u32 s{sT1}, s2, s{sT1}")
        a(f"s_mul_i32 s{sT1}, s{sT1}, {32*1280}")
        a(f"s_mul_i32 s{sT0}, s{sT0}, 160")
        a(f"s_add_u32 s{sWJ}, s{sT0}, s{sT1}")
        for r in range(2):
            l2 = None
            if r == 1:
                l2 = a.newlabel("c_wj2")
                a(f"s_cmp_lg_u32 s{sW}, 0")
                a(f"s_cbranch_scc1 {l2}")
            if r == 0: a(f"v_mov_b32 v{t0}, v0")
            else: a(f"v_add_u32 v{t0}, 256, v{vL}")
            a(f"v_mul_u32_u24 v{t1}, 6554, v{t0}")
            a(f"v_lshrrev_b32 v{t1}, 16, v{t1}")
            a(f"v_mul_u32_u24 v{t2}, 10, v{t1}")
            a(f"v_sub_u32 v{t0}, v{t0}, v{t2}")
            a(f"v_lshlrev_b32 v{t0}, 4, v{t0}")
            a(f"v_mul_u32_u24 v{t1}, 1280, v{t1}")
            a(f"v_add_u32 v{t0}, v{t0}, v{t1}")
            if r == 0:
                a(f"s_lshl_b32 s{sT0}, s{sW}, 10")
                a(f"s_add_u32 m0, s{sT0}, {WJ}")
            else: a(f"s_mov_b32 m0, {WJ + 4096}")
            a(f"buffer_load_dwordx4 v{t0}, s[{sWO}:{sWO+3}], s{sWJ} offen lds")
            a.vm -= 1
            if l2: a.label(l2)
        a.label(lwj)
        for i_ in range(1, NCH): loads(i_)
    if FUSED: wof_job()
    Zr = V(4, 4)
    for e in range(4): a(f"v_mov_b32 v{Zr+e}, 0")
    a(f"v_mul_u32_u24 v{t0}, {CS_}, v0")
    if TOEP: a(f"v_add_u32 v{t0}, {TOEP}, v{t0}")
    a(f"v_cmp_gt_u32 vcc, 64, v0")
    a(f"s_and_saveexec_b64 s[50:51], vcc")
    lz = a.newlabel("c_z")
    a(f"s_cbranch_execz {lz}")
    a(f"v_subrev_u32 v{t1}, {32*16 - UB}, v{vT}")
    a(f"v_cmp_gt_u32 vcc, 8, v0")
    a(f"v_cndmask_b32 v{t1}, v{t1}, v{t0}, vcc")
    a(f"v_add_u32 v{t2}, -8, v0")
    a(f"v_cmp_lt_u32 vcc, 23, v{t2}")
    a(f"s_and_b64 exec, exec, vcc")
    a.ds(f"ds_write_b128 v{t1}, v[{Zr}:{Zr+3}]")
    a.label(lz)
    a(f"s_mov_b64 exec, s[50:51]")
    vTW_ = V()
    a(f"v_add_u32 v{vTW_}, {OZ*16 + TOEP}, v{vT}")
    vUW = V()
    a(f"v_add_u32 v{vUW}, {UB + UZ*16}, v{vT}")
    vA = V()
    a(f"v_and_b32 v{t0}, 7, v{vL}")
    a(f"v_mul_u32_u24 v{t0}, {CS_}, v{t0}")
    a(f"v_bfe_u32 v{t1}, v{vL}, 3, 1")
    a(f"v_lshrrev_b32 v{t2}, 4, v{vL}")
    a(f"v_sub_u32 v{t1}, v{t1}, v{t2}")
    a(f"v_add_u32 v{t1}, 3, v{t1}")
    a(f"v_lshl_add_u32 v{vA}, v{t1}, 4, v{t0}")
    if TOEP: a(f"v_add_u32 v{vA}, {TOEP}, v{vA}")
    vBq = V()
    a(f"v_and_b32 v{t0}, 15, v{vL}")
    a(f"v_lshl_add_u32 v{t0}, v{t0}, 1, v{t2}")
    a(f"v_lshlrev_b32 v{vBq}, 4, v{t0}")
    a(f"v_add_u32 v{vBq}, {UB}, v{vBq}")
    DM = V(4, 4)
    a(f"v_and_b32 v{t0}, 15, v{vL}")
    a(f"v_lshlrev_b32 v{t1}, 3, v{t2}")
    a(f"v_sub_u32 v{t1}, v{t1}, v{t0}")
    a(f"v_add_u32 v{t1}, -9, v{t1}")
    vK0, vK1 = V(), V()
    a(f"v_mov_b32 v{vK0}, 0xffff"); a(f"v_mov_b32 v{vK1}, 0xffff0000")
    for dw in range(4):
        a(f"v_cmp_eq_u32 vcc, {2*dw}, v{t1}")
        a(f"v_cndmask_b32 v{DM+dw}, 0, v{vK0}, vcc")
        a(f"v_cmp_eq_u32 vcc, {2*dw + 1}, v{t1}")
        a(f"v_cndmask_b32 v{DM+dw}, v{DM+dw}, v{vK1}, vcc")
    vPW = V()
    a(f"v_and_b32 v{t0}, 15, v{vL}")
    a(f"v_lshlrev_b32 v{t0}, 6, v{t0}")
    a(f"v_lshl_add_u32 v{t0}, v{t2}, 4, v{t0}")
    a(f"s_lshl_b32 s{sT0}, s{sW}, 13")
    a(f"s_add_u32 s{sT0}, s{sT0}, {PB}")
    a(f"v_add_u32 v{vPW}, s{sT0}, v{t0}")
    vPR = V()
    a(f"v_lshlrev_b32 v{vPR}, 5, v0")
    a(f"v_add_u32 v{vPR}, {PB}, v{vPR}")
    ACC = V(32, 4)
    AF = V(12, 4); BF = V(64, 4)
    EW = V(8, 4); TQ = V(4, 4); DG = V(4, 4)

    def mfma_block(w, tiles, touches):
        tq = list(touches)
        started = set()
        seq = []
        for r in range(2):
            q0 = 2*w + r
            dmin = 0
            ips = [ip for ip in range(8) if any(T >= ip for T in tiles)]
            seq += [(r, ip) for ip in ips]
        bid = {}
        def need_d(r): return sorted({T - ip for (rr, ip) in seq if rr == r for T in tiles if T >= ip})
        def read_b(r):
            q0 = 2*w + r
            for d in need_d(r):
                m = 8*d - q0
                bid[(r, d)] = a.ds(f"ds_read_b128 v[{BF+(r*8+d)*4}:{BF+(r*8+d)*4+3}], v{vBq} offset:{(4*m - 2 + UZ)*16}")
        aid = {}
        def read_a(n):
            r, ip = seq[n]
            q = 2*w + r + 8*ip
            aid[n] = a.ds(f"ds_read_b128 v[{AF+(n%3)*4}:{AF+(n%3)*4+3}], v{vA} offset:{64*q}")
        read_a(0); read_b(0); read_a(1)
        for n, (r, ip) in enumerate(seq):
            if n + 2 < len(seq): read_a(n + 2)
            if n == 2: read_b(1)
            last = max([aid[n]] + [bid[(r, T - ip)] for T in tiles if T >= ip])
            a.wait_lg(last)
            q0 = 2*w + r
            for T in sorted(tiles, reverse=True):
                if T < ip: continue
                c = f"v[{ACC+4*T}:{ACC+4*T+3}]" if T in started else "0"; started.add(T)
                a(f"v_mfma_f32_16x16x32_bf16 v[{ACC+4*T}:{ACC+4*T+3}], v[{AF+(n%3)*4}:{AF+(n%3)*4+3}], v[{BF+(r*8+T-ip)*4}:{BF+(r*8+T-ip)*4+3}], {c}")
            if q0 == 0 and ip == 0:
                for T in tiles:
                    a(f"v_mfma_f32_16x16x32_bf16 v[{ACC+4*T}:{ACC+4*T+3}], v[{DG}:{DG+3}], v[{BF+(r*8+T)*4}:{BF+(r*8+T)*4+3}], v[{ACC+4*T}:{ACC+4*T+3}]")
            if tq and n % 2 == 1: touch(tq.pop(0))
        for T in tiles:
            a.ds(f"ds_write_b128 v{vPW}, v[{ACC+4*T}:{ACC+4*T+3}] offset:{T*1024}")
    def finalize(i, tiles):
        regs = [BF, BF+8, BF+16, BF+24]
        full = len(tiles) == 8
        if not full:
            lab = a.newlabel("c_fm")
            a(f"s_mov_b64 exec, 0")
            for w in range(4):
                lo = 0xffffffff if 2*w in tiles else 0
                hi = 0xffffffff if 2*w + 1 in tiles else 0
                a(f"s_cmp_eq_u32 s{sW}, {w}")
                a(f"s_cselect_b32 exec_lo, {lo if lo == 0 else -1}, exec_lo")
                a(f"s_cselect_b32 exec_hi, {hi if hi == 0 else -1}, exec_hi")
            lskip = a.newlabel("c_fskip")
            a(f"s_cbranch_execz {lskip}")
        for k in range(4):
            a.ds(f"ds_read_b128 v[{regs[k]}:{regs[k]+3}], v{vPR} offset:{k*PT_}")
            a.ds(f"ds_read_b128 v[{regs[k]+4}:{regs[k]+7}], v{vPR} offset:{k*PT_ + 16}")
        a(f"s_lshl_b32 s{sT0}, s{sCHN[i]}, 12")
        a(f"s_add_u32 s{sT0}, s{sT0}, {WS_YT}")
        a("s_waitcnt lgkmcnt(0)")
        for e in range(0, 8, 2):
            a(f"v_pk_add_f32 {P(regs[0]+e)}, {P(regs[0]+e)}, {P(regs[1]+e)}")
            a(f"v_pk_add_f32 {P(regs[2]+e)}, {P(regs[2]+e)}, {P(regs[3]+e)}")
        for e in range(0, 8, 2):
            a(f"v_pk_add_f32 {P(regs[0]+e)}, {P(regs[0]+e)}, {P(regs[2]+e)}")
        for e in range(4):
            a(f"v_cvt_pk_bf16_f32 v{TQ+e}, v{regs[0]+2*e}, v{regs[0]+2*e+1}")
        a(f"buffer_store_dwordx4 v[{TQ}:{TQ+3}], v{vT}, s[{sWS}:{sWS+3}], s{sT0} offen" + (" sc1" if "ysc1" in K2X else ""))
        a.vm -= 1
        if not full:
            a.label(lskip)
            a(f"s_mov_b64 exec, -1")
        a("s_nop 1")

    def per_wave(variants):
        lend = a.newlabel("c_pw_end"); labs = [a.newlabel("c_pw") for _ in range(4)]
        lg0, vm0 = a.lg, a.vm
        lgmax, vmmin = lg0, None
        for w in range(4):
            if w < 3:
                a(f"s_cmp_lg_u32 s{sW}, {w}")
                a(f"s_cbranch_scc1 {labs[w]}")
            a.lg, a.vm = lg0, vm0
            variants[w]()
            lgmax = max(lgmax, a.lg); vmmin = a.vm if vmmin is None else min(vmmin, a.vm)
            if w < 3:
                a(f"s_branch {lend}")
                a.label(labs[w])
        a.label(lend)
        a.lg, a.vm = lgmax, vmmin

    for i in range(NCH):
        a.comment(f"------- channel slot {i}")
        a.wait_vm(ld[i])
        ST(f"c{i}_ld")
        d = HR + 8*i
        a(f"v_cmp_ne_u32 vcc, 0, v0")
        for e in range(4): a(f"v_cndmask_b32 v{d+e}, 0, v{d+e}, vcc")
        for e in range(7): a(f"v_alignbit_b32 v{EW+e}, v{d+e+1}, v{d+e}, 16")
        for c in range(8):
            st = c + 1
            if st % 2 == 0: src = d + st//2
            else: src = EW + (st-1)//2
            if (src % 2) != 0:
                for e in range(4): a(f"v_mov_b32 v{TQ+e}, v{src+e}")
                src = TQ
            a.ds(f"ds_write_b128 v{vTW_}, v[{src}:{src+3}] offset:{c*CS_}")
            if src == TQ: a("s_nop 1")
        if FUSED and i == 0:
            poll_all()
            for i_ in range(NCH): load_u(i_)
            a.wait_vm(ld[0])
        a.ds(f"ds_write_b128 v{vUW}, v[{UR+4*i}:{UR+4*i+3}]")
        a(f"v_lshlrev_b32 v{t0}, 16, v{DR+i}")
        a(f"v_or_b32 v{t0}, v{t0}, v{DR+i}")
        for e in range(4): a(f"v_and_b32 v{DG+e}, v{DM+e}, v{t0}")
        if i == 0 and not FUSED: wof_job()
        csync()
        ST(f"c{i}_built")
        if i == 1:
            lw3 = a.newlabel("c_wj3")
            a(f"s_cmp_ge_u32 s2, 192")
            a(f"s_cbranch_scc1 {lw3}")
            a(f"v_lshrrev_b32 v{t0}, 4, v{vL}")
            a(f"v_and_b32 v{t2}, 15, v{vL}")
            a(f"v_lshrrev_b32 v{t1}, 2, v{t2}")
            a(f"v_lshl_add_u32 v{t0}, v{t0}, 2, v{t1}")
            a(f"v_mul_u32_u24 v{t0}, 160, v{t0}")
            a(f"v_and_b32 v{t1}, 3, v{t2}")
            a(f"v_lshl_add_u32 v{t0}, v{t1}, 3, v{t0}")
            a(f"v_lshlrev_b32 v{t2}, 4, v{vL}")
            for r in range(2):
                l2 = None
                if r == 1:
                    l2 = a.newlabel("c_wj4")
                    a(f"s_cmp_lg_u32 s{sW}, 0")
                    a(f"s_cbranch_scc1 {l2}")
                if r == 0: a(f"s_lshl_b32 s{sT0}, s{sW}, 5")
                else: a(f"s_mov_b32 s{sT0}, 128")
                a(f"s_add_u32 s{sT1}, s{sT0}, {WJ}")
                a(f"v_add_u32 v{t1}, s{sT1}, v{t0}")
                a(f"ds_read_b64_tr_b16 v[{TQ}:{TQ+1}], v{t1}")
                a(f"ds_read_b64_tr_b16 v[{TQ+2}:{TQ+3}], v{t1} offset:2560")
                a(f"s_mul_i32 s{sT1}, s2, 5120")
                a(f"s_lshl_b32 s{sT0}, s{sT0}, 5")
                a(f"s_add_u32 s{sT1}, s{sT1}, s{sT0}")
                a(f"s_add_u32 s{sT1}, s{sT1}, {WS_WOF}")
                a("s_waitcnt lgkmcnt(0)")
                a(f"buffer_store_dwordx4 v[{TQ}:{TQ+3}], v{t2}, s[{sWS}:{sWS+3}], s{sT1} offen" + (" sc1" if "ysc1" in K2X else ""))
                a("s_nop 1")
                a.vm -= 1; a.lg -= 2
                if l2: a.label(l2)
            a.label(lw3)
        tch = list(range(NUP, 8)) if i == 0 else []
        def do_channel(tiles):
            per_wave([(lambda w=w: mfma_block(w, tiles, tch)) for w in range(4)])
            if i < 2: ST(f"c{i}_mfma")
            csync()
            finalize(i, tiles)
        if i < 2:
            do_channel(list(range(8)))
        else:
            labB = a.newlabel("c_halfB"); labE = a.newlabel("c_halfE")
            a(f"s_bitcmp1_b32 s2, 0")
            a(f"s_cbranch_scc1 {labB}")
            lg0, vm0, c0_ = a.lg, a.vm, cst[0]
            do_channel([2, 6, 7])
            a(f"s_branch {labE}")
            a.label(labB); a.lg, a.vm, cst[0] = lg0, vm0, c0_
            do_channel([0, 1, 3, 4, 5])
            a.label(labE)
        ST(f"c{i}_done")
    ST.dump(sWS, sW, t0, t1, WS_DBG + 0x400000)

def gen_k2(name="k2_kernel", prof=False):
    a = Asm()
    a.raw(f".globl {name}\n.p2align 8\n.type {name},@function\n{name}:")
    a(f"s_cmp_ge_u32 s2, 512")
    a(f"s_cbranch_scc1 {name}_end")
    a(f"s_cmp_lt_u32 s2, 256")
    a(f"s_cbranch_scc1 {name}_conv" if "noconv" not in K2X else f"s_cbranch_scc1 {name}_end")
    ST = Stamps(a, enabled=prof); ST("g_start")
    V = Alloc(1, 256, "v")
    gen_gemm(a, V, ST, prof)
    a("s_endpgm")
    hi = V.hi
    a.label(f"{name}_conv")
    a.vm = 0; a.lg = 0
    ST2 = Stamps(a, enabled=prof); ST2("c_start")
    V2 = Alloc(1, 256, "v")
    gen_conv(a, V2, ST2, prof, name)
    a.label(f"{name}_end")
    a("s_endpgm")
    gen_k2.stamp_names = {"k2g": ST.names, "k2c": ST2.names}
    return a.finish(), max(hi, V2.hi)


def gen_k12(name="k12_kernel", prof=False):
    import k1
    a, hi1, sW1 = k1.gen_k1(name=name, prof=prof, fused=True)
    a(f"s_cmp_ge_u32 s{sW1}, 4")
    a(f"s_cbranch_scc1 {name}_conv")
    a.vm = 0; a.lg = 0
    ST = Stamps(a, enabled=prof); ST("g_start")
    V = Alloc(1, 255, "v")
    gen_gemm(a, V, ST, prof)
    a("s_endpgm")
    hi = V.hi
    a.label(f"{name}_conv")
    a.vm = 0; a.lg = 0
    ST2 = Stamps(a, enabled=prof); ST2("c_start")
    V2 = Alloc(1, 255, "v")
    gen_conv(a, V2, ST2, prof, name)
    a.label(f"{name}_end")
    a("s_endpgm")
    gen_k12.stamp_names = {"k1": k1.gen_k1.stamp_names, "k2g": ST.names, "k2c": ST2.names}
    return a.finish(), max(hi1, hi, V2.hi)
```

```python
from dsl import *
from layout import *
from k1 import f32, Filler, run, mask, P, Z1L, SYNC
sTAGF = 100

def gsync(a, which, state, t0, t1):
    state[0] += 1
    a("s_waitcnt lgkmcnt(0)")
    a(f"v_mov_b32 v{t0}, {SYNC + 4*which}")
    a(f"v_mov_b32 v{t1}, 1")
    a("s_mov_b64 exec, 1")
    a(f"ds_add_u32 v{t0}, v{t1}")
    a("s_mov_b64 exec, -1")
    lp = a.newlabel("gsync"); le = a.newlabel("gsync_e")
    a("s_mov_b32 s67, 0")
    a.label(lp)
    a(f"ds_read_b32 v{t1}, v{t0}")
    a("s_add_u32 s67, s67, 1")
    a("s_waitcnt lgkmcnt(0)")
    a(f"v_readfirstlane_b32 s66, v{t1}")
    a("s_cmp_gt_u32 s67, 1000000")
    a(f"s_cbranch_scc1 {le}")
    a(f"s_cmp_lt_u32 s66, {4*state[0]}")
    a(f"s_cbranch_scc1 {lp}")
    a.label(le)
    a.lg -= 2

def poll_all_flags(a, sWS, F, t0, base=None):
    lp = a.newlabel("fpoll"); le = a.newlabel("fpoll_e")
    a(f"v_mbcnt_lo_u32_b32 v{t0}, -1, 0")
    a(f"v_mbcnt_hi_u32_b32 v{t0}, -1, v{t0}")
    a(f"v_lshlrev_b32 v{t0}, 4, v{t0}")
    a(f"s_mov_b32 s66, {WS_F1 if base is None else base}")
    a("s_mov_b32 s67, 0")
    a.label(lp)
    a(f"buffer_load_dwordx4 v[{F}:{F+3}], v{t0}, s[{sWS}:{sWS+3}], s66 offen sc1")
    a(f"buffer_load_dwordx4 v[{F+4}:{F+7}], v{t0}, s[{sWS}:{sWS+3}], s66 offen offset:1024 sc1")
    a.vm -= 2
    a("s_add_u32 s67, s67, 1")
    a("s_waitcnt vmcnt(0)")
    a(f"v_cmp_ne_u32 vcc, s{sTAGF}, v{F}")
    for k in range(1, 8):
        a(f"v_cmp_ne_u32 s[64:65], s{sTAGF + (k & 1)}, v{F+k}")
        a("s_or_b64 vcc, vcc, s[64:65]")
    a("s_cmp_gt_u32 s67, 100000")
    a(f"s_cbranch_scc1 {le}")
    a("s_cmp_eq_u64 vcc, 0")
    a(f"s_cbranch_scc1 {le}")
    a("s_sleep 2")
    a(f"s_branch {lp}")
    a.label(le)

def poll_flags_n(a, sWS, sOff, n, F, t0):
    lp = a.newlabel("fpoll"); le = a.newlabel("fpoll_e")
    a(f"v_mbcnt_lo_u32_b32 v{t0}, -1, 0")
    a(f"v_mbcnt_hi_u32_b32 v{t0}, -1, v{t0}")
    a(f"v_min_u32 v{t0}, {n-1}, v{t0}")
    a(f"v_lshlrev_b32 v{t0}, 3, v{t0}")
    a("s_mov_b32 s67, 0")
    a.label(lp)
    a(f"buffer_load_dwordx2 {P(F)}, v{t0}, s[{sWS}:{sWS+3}], s{sOff} offen sc1")
    a.vm -= 1
    a("s_add_u32 s67, s67, 1")
    a("s_waitcnt vmcnt(0)")
    a(f"v_cmp_ne_u32 vcc, s{sTAGF}, v{F}")
    a(f"v_cmp_ne_u32 s[64:65], s{sTAGF+1}, v{F+1}")
    a("s_or_b64 vcc, vcc, s[64:65]")
    a("s_cmp_gt_u32 s67, 100000")
    a(f"s_cbranch_scc1 {le}")
    a("s_cmp_eq_u64 vcc, 0")
    a(f"s_cbranch_scc1 {le}")
    a("s_sleep 2")
    a(f"s_branch {lp}")
    a.label(le)

def poll_flags(a, sWS, sOff, F, t0):
    lp = a.newlabel("fpoll"); le = a.newlabel("fpoll_e")
    a(f"v_mbcnt_lo_u32_b32 v{t0}, -1, 0")
    a(f"v_mbcnt_hi_u32_b32 v{t0}, -1, v{t0}")
    a(f"v_and_b32 v{t0}, 31, v{t0}")
    a(f"v_lshlrev_b32 v{t0}, 3, v{t0}")
    a("s_mov_b32 s67, 0")
    a.label(lp)
    a(f"buffer_load_dwordx2 {P(F)}, v{t0}, s[{sWS}:{sWS+3}], s{sOff} offen sc1")
    a.vm -= 1
    a("s_add_u32 s67, s67, 1")
    a("s_waitcnt vmcnt(0)")
    a(f"v_cmp_ne_u32 vcc, s{sTAGF}, v{F}")
    a(f"v_cmp_ne_u32 s[64:65], s{sTAGF+1}, v{F+1}")
    a("s_or_b64 vcc, vcc, s[64:65]")
    a("s_cmp_gt_u32 s67, 100000")
    a(f"s_cbranch_scc1 {le}")
    a("s_cmp_eq_u64 vcc, 0")
    a(f"s_cbranch_scc1 {le}")
    a("s_sleep 2")
    a(f"s_branch {lp}")
    a.label(le)
import os
K2X = os.environ.get('K2X', '')

ZDEPTH = int(os.environ.get('ZD', '4'))
FUSED = bool(os.environ.get('FUSED'))
FULL = os.environ.get('FUSED') == '2'
CB = 86016 if FUSED else 0
CS_ = 4160
TOEP = CB
OZ = 1
UZ = 32
UB = TOEP + 8 * CS_
PB = UB + 4608
PT_ = 8192
WJ = PB + 4*PT_
assert WJ + 5120 <= (161792 if FUSED else 81920)

def gen_gemm(a, V, ST, prof):
    sWSP, sWS, sBSP = 4, 8, 12
    sRB, sJ, sW = 32, 33, 34
    sT0, sT1, sT2, sT3 = 40, 41, 42, 43
    sZ, sWB, sLB = 44, 45, 46
    a(f"s_load_dwordx2 s[{sWSP}:{sWSP+1}], s[0:1], {KA['wsp']}")
    a(f"s_load_dwordx2 s[{sWS}:{sWS+1}], s[0:1], {KA['ws']}")
    a(f"s_load_dwordx2 s[{sBSP}:{sBSP+1}], s[0:1], {KA['bsp']}")
    vL = V(); t0, t1, t2 = V(), V(), V()
    a(f"v_lshrrev_b32 v{t0}, 6, v0")
    a(f"v_and_b32 v{vL}, 63, v0")
    a(f"v_readfirstlane_b32 s{sW}, v{t0}")
    for srd, size in ((sWSP, SZ_WSP), (sWS, WS_SIZE_DBG if prof else WS_END), (sBSP, 4096)):
        a(f"s_mov_b32 s{srd+2}, {size}")
        a(f"s_mov_b32 s{srd+3}, {SRD3:#x}")
    a(f"s_and_b32 s{sT0}, s2, 7")
    a(f"s_lshr_b32 s{sT1}, s2, 3")
    a(f"s_and_b32 s{sT1}, s{sT1}, 31")
    a(f"s_lshr_b32 s{sRB}, s{sT0}, 1")
    a(f"s_lshl_b32 s{sRB}, s{sRB}, 3")
    a(f"s_and_b32 s{sT2}, s{sT1}, 7")
    a(f"s_add_u32 s{sRB}, s{sRB}, s{sT2}")
    a(f"s_and_b32 s{sJ}, s{sT0}, 1")
    a(f"s_lshl_b32 s{sJ}, s{sJ}, 2")
    a(f"s_lshr_b32 s{sT2}, s{sT1}, 3")
    a(f"s_add_u32 s{sJ}, s{sJ}, s{sT2}")
    a(f"s_lshl_b32 s{sZ}, s{sJ}, 7")
    a(f"s_lshl_b32 s{sT0}, s{sW}, 5")
    a(f"s_add_u32 s{sZ}, s{sZ}, s{sT0}")
    a(f"s_mul_i32 s{sZ}, s{sZ}, 3072")
    a(f"s_add_u32 s{sZ}, s{sZ}, {WS_Z2F}")
    a(f"s_lshl_b32 s{sWB}, s{sRB}, 18")
    a(f"s_lshl_b32 s{sT0}, s{sW}, 10")
    a(f"s_add_u32 s{sWB}, s{sWB}, s{sT0}")
    a(f"s_lshl_b32 s{sLB}, s{sW}, 14")
    vZ = V()
    a(f"v_lshlrev_b32 v{vZ}, 4, v{vL}")
    vWE, vWO = V(), V()
    a(f"v_lshrrev_b32 v{t0}, 3, v{vL}")
    a(f"v_lshlrev_b32 v{t0}, 12, v{t0}")
    a(f"v_and_b32 v{t1}, 7, v{vL}")
    a(f"v_lshrrev_b32 v{t2}, 4, v{vL}")
    a(f"v_xor_b32 v{t1}, v{t1}, v{t2}")
    a(f"v_lshl_add_u32 v{vWE}, v{t1}, 4, v{t0}")
    a(f"v_xor_b32 v{vWO}, 64, v{vWE}")
    sROT = 50
    if "rot" in K2X:
        a(f"s_and_b32 s{sROT}, s{sJ}, 3")
        a(f"s_lshl_b32 s{sROT}, s{sROT}, 1")
        a(f"s_add_u32 s{sROT}, s{sROT}, s{sRB}")
        a(f"s_and_b32 s{sROT}, s{sROT}, 7")
    else: a(f"s_mov_b32 s{sROT}, 0")
    def chunk(c, dst):
        a(f"s_add_u32 s{dst}, s{sROT}, {c}")
        a(f"s_and_b32 s{dst}, s{dst}, 7")
    ACC = V(96, 4)
    def acc(ft, tt): return ACC + (ft*2 + tt)*16
    ZF = V((ZDEPTH+1)*12, 4)
    def zf(ks, ft): return ZF + ((ks % (ZDEPTH+1))*3 + ft)*4
    WFr = V(16, 4)
    def wfr(b, tt): return WFr + (b*2 + tt)*4
    z_id = {}; w_id = {}
    sZc = [52, 53]; sWc = [54, 55]
    def z_base(c):
        chunk(c, sZc[c & 1])
        a(f"s_mul_i32 s{sZc[c & 1]}, s{sZc[c & 1]}, 12288")
        a(f"s_add_u32 s{sZc[c & 1]}, s{sZc[c & 1]}, s{sZ}")
    def w_base(c):
        chunk(c, sWc[c & 1])
        a(f"s_lshl_b32 s{sWc[c & 1]}, s{sWc[c & 1]}, 7")
        a(f"s_add_u32 s{sWc[c & 1]}, s{sWc[c & 1]}, s{sWB}")
    def load_z_g(ks):
        c = ks // 4
        if ks % 4 == 0: z_base(c)
        for ft in range(3):
            so = sZc[c & 1]
            if ks % 4:
                a(f"s_add_u32 s{sT1}, s{sZc[c & 1]}, {(ks%4)*3072}"); so = sT1
            z_id[(ks, ft)] = a.vmem(f"buffer_load_dwordx4 v[{zf(ks,ft)}:{zf(ks,ft)+3}], v{vZ}, s[{sWS}:{sWS+3}], s{so} offen offset:{ft*1024}" + (" sc1" if FUSED else ""))
            yield
    def dma_w_g(c, lo, hi):
        sl = c & 1
        if lo == 0: w_base(c)
        for i in range(lo, hi):
            a(f"s_add_u32 s{sT2}, s{sWc[c & 1]}, {i*8*4096}")
            a(f"s_add_u32 m0, s{sLB}, {sl*8192 + i*1024}")
            w_id[c] = a.vmem(f"buffer_load_dwordx4 v{vWE if i % 2 == 0 else vWO}, s[{sWSP}:{sWSP+3}], s{sT2} offen lds")
            yield
    a("s_waitcnt lgkmcnt(0)")
    ST("g_kernarg")
    if FUSED:
        run(dma_w_g(0, 0, 8))
        a(f"s_lshl_b32 s{sT3}, s{sJ}, 8")
        a(f"s_add_u32 s{sT3}, s{sT3}, {WS_F1}")
        poll_flags(a, sWS, sT3, ZF, t0)
        ST("g_flags")
        for ks in range(ZDEPTH): run(load_z_g(ks))
    else:
        run(load_z_g(0)); run(dma_w_g(0, 0, 8))
        for ks in range(1, ZDEPTH): run(load_z_g(ks))
    vWA = [V() for _ in range(4)]
    a(f"v_and_b32 v{t0}, 31, v{vL}")
    a(f"v_lshrrev_b32 v{t1}, 1, v{t0}")
    a(f"v_and_b32 v{t1}, 7, v{t1}")
    a(f"v_lshrrev_b32 v{t2}, 5, v{vL}")
    a(f"v_xor_b32 v{t1}, v{t1}, v{t2}")
    a(f"v_lshl_add_u32 v{t0}, v{t0}, 7, s{sLB}")
    for kk in range(4):
        a(f"v_xor_b32 v{t2}, {2*kk}, v{t1}")
        a(f"v_lshl_add_u32 v{vWA[kk]}, v{t2}, 4, v{t0}")
    Z1 = V(12, 4); vB = V()
    ep = {}
    def epi_loads():
        a(f"s_lshl_b32 s{sT0}, s{sRB}, 3")
        a(f"s_add_u32 s{sT0}, s{sT0}, s{sJ}")
        a(f"s_lshl_b32 s{sT0}, s{sT0}, 2")
        a(f"s_add_u32 s{sT0}, s{sT0}, s{sW}")
        a(f"s_mul_i32 s{sT0}, s{sT0}, 3072")
        a(f"s_add_u32 s{sT0}, s{sT0}, {WS_Z1F}")
        for ft in range(3):
            if FUSED:
                if ft == 0:
                    a(f"s_mul_i32 s{sT0}, s{sW}, 3072")
                    a(f"s_add_u32 s{sT0}, s{sT0}, {Z1L}")
                    a(f"v_add_u32 v{t1}, s{sT0}, v{vZ}")
                a.ds(f"ds_read_b128 v[{Z1+4*ft}:{Z1+4*ft+3}], v{t1} offset:{ft*1024}")
            else:
                a.vmem(f"buffer_load_dwordx4 v[{Z1+4*ft}:{Z1+4*ft+3}], v{vZ}, s[{sWS}:{sWS+3}], s{sT0} offen offset:{ft*1024}")
            yield
        a(f"v_and_b32 v{t0}, 31, v{vL}")
        a(f"v_lshlrev_b32 v{t0}, 1, v{t0}")
        a(f"s_lshr_b32 s{sT0}, s{sW}, 1")
        a(f"s_lshl_b32 s{sT0}, s{sT0}, 6")
        a(f"s_lshl_b32 s{sT3}, s{sRB}, 7")
        a(f"s_add_u32 s{sT0}, s{sT0}, s{sT3}")
        ep['b'] = a.vmem(f"buffer_load_ushort v{vB}, v{t0}, s[{sBSP}:{sBSP+3}], s{sT0} offen")
        yield
    def read_w(ks):
        c = ks // 4; kk = ks % 4; b = ks & 1
        ids = []
        for tt in range(2):
            ids.append(a.ds(f"ds_read_b128 v[{wfr(b,tt)}:{wfr(b,tt)+3}], v{vWA[kk]} offset:{(c&1)*8192 + tt*4096}"))
        return ids[-1]
    a.wait_vm(w_id[0])
    ST("g_w0")
    if "noprio" not in K2X: a("s_setprio 2")
    rd = {0: read_w(0)}
    for ks in range(32):
        c = ks // 4
        if ks % 4 == 0 and "cst" in K2X: ST(f"c{c}")
        if ks == int(os.environ.get("PSW", "99")): a("s_setprio 0")
        a.wait_vm(z_id[(ks, 2)])
        a.wait_lg(rd[ks])
        fl = Filler()
        def rdw(k=ks):
            if (k + 1) % 4 == 0: a.wait_vm(w_id[(k + 1)//4])
            rd[k + 1] = read_w(k + 1)
            yield
        if ks + 1 < 32: fl.add(rdw())
        if ks + ZDEPTH < 32: fl.add(load_z_g(ks + ZDEPTH))
        if ks == 0: fl.add(dma_w_g(1, 0, 4))
        if ks == 1: fl.add(dma_w_g(1, 4, 8))
        for n in range(2, 8):
            if ks == 4*(n-1) - 1: fl.add(dma_w_g(n, 0, 2))
            if ks == 4*(n-1): fl.add(dma_w_g(n, 2, 5))
            if ks == 4*(n-1) + 1: fl.add(dma_w_g(n, 5, 8))
        if ks == 30: fl.add(epi_loads())
        b = ks & 1
        for ft in range(3):
            for tt in range(2):
                cc = "0" if ks == 0 else f"v[{acc(ft,tt)}:{acc(ft,tt)+15}]"
                if not ("nomfma" in K2X and ks > 0):
                    a(f"v_mfma_f32_32x32x16_bf16 v[{acc(ft,tt)}:{acc(ft,tt)+15}], v[{zf(ks,ft)}:{zf(ks,ft)+3}], v[{wfr(b,tt)}:{wfr(b,tt)+3}], {cc}")
                fl.step(1)
        fl.drain()
    ST("g_loop")
    a("s_setprio 0")
    OWN = ZF
    lend = a.newlabel("g_epi_end")
    labs = [a.newlabel("g_epi") for _ in range(4)]
    a(f"v_add_u32 v{t2}, 0x10000, v{vZ}")
    a("s_nop 15")
    gst = [0]
    if FUSED: gsync(a, 0, gst, t0, t1)
    else: a("s_barrier")
    lg0 = a.lg
    for w in range(4):
        if w < 3:
            a(f"s_cmp_lg_u32 s{sW}, {w}")
            a(f"s_cbranch_scc1 {labs[w]}")
        a.lg = lg0
        for d in range(4):
            if d == w: continue
            tt = d >> 1; g0 = d & 1
            k = (w - d - 1) & 3
            for ft in range(3):
                for gh in range(2):
                    r = acc(ft, tt) + 4*(g0 + 2*gh)
                    off = d*18432 + k*6144 + (ft*2+gh)*1024
                    if off >= 65536: a.ds(f"ds_write_b128 v{t2}, v[{r}:{r+3}] offset:{off - 65536}")
                    else: a.ds(f"ds_write_b128 v{vZ}, v[{r}:{r+3}] offset:{off}")
        tt = w >> 1; g0 = w & 1
        for ft in range(3):
            for gh in range(2):
                r = acc(ft, tt) + 4*(g0 + 2*gh)
                for e in range(0, 4, 2):
                    a(f"v_pk_add_f32 {P(OWN + (ft*2+gh)*4 + e)}, {P(r+e)}, 0")
        if w < 3:
            a(f"s_branch {lend}")
            a.label(labs[w])
    a.label(lend)
    return_epi = True
    a("s_waitcnt lgkmcnt(0)")
    if FUSED: gsync(a, 0, gst, t0, t1)
    else: a("s_barrier")
    PT = ACC
    a(f"s_mul_i32 s{sT0}, s{sW}, 18432")
    a(f"v_add_u32 v{t0}, s{sT0}, v{vZ}")
    for k in range(3):
        for q in range(6):
            a.ds(f"ds_read_b128 v[{PT + (k*6+q)*4}:{PT + (k*6+q)*4 + 3}], v{t0} offset:{k*6144 + q*1024}")
    vSt = vWE
    a(f"v_lshrrev_b32 v{vSt}, 4, v{vL}")
    a(f"v_and_b32 v{vSt}, 1, v{vSt}")
    a(f"v_mul_u32_u24 v{vSt}, {24*1024}, v{vSt}")
    a(f"v_and_b32 v{t1}, 15, v{vL}")
    a(f"v_lshrrev_b32 v{t2}, 5, v{vL}")
    a(f"v_lshl_add_u32 v{t1}, v{t2}, 4, v{t1}")
    a(f"v_lshl_add_u32 v{vSt}, v{t1}, 4, v{vSt}")
    a(f"s_mul_i32 s{sT0}, s{sRB}, {4*24*1024}")
    a(f"s_lshr_b32 s{sT1}, s{sW}, 1")
    a(f"s_mul_i32 s{sT1}, s{sT1}, {2*24*1024}")
    a(f"s_add_u32 s{sT0}, s{sT0}, s{sT1}")
    a(f"s_mul_i32 s{sT1}, s{sJ}, 3072")
    a(f"s_add_u32 s{sT0}, s{sT0}, s{sT1}")
    a(f"s_and_b32 s{sT1}, s{sW}, 1")
    a(f"s_lshl_b32 s{sT1}, s{sT1}, 9")
    a(f"s_add_u32 s{sT0}, s{sT0}, s{sT1}")
    a(f"s_add_u32 s{sT0}, s{sT0}, {WS_PF}")
    a.wait_vm(ep['b'])
    vB2 = vWA[0] if vWA[0] % 2 == 0 else vWA[1]
    a(f"v_lshlrev_b32 v{vB2}, 16, v{vB}")
    ZU = PT + 72
    for i in range(12):
        a(f"v_lshlrev_b32 v{ZU+2*i}, 16, v{Z1+i}")
        a(f"v_and_b32 v{ZU+2*i+1}, 0xffff0000, v{Z1+i}")
    for k in range(3):
        a(f"s_waitcnt lgkmcnt({min(15, 12 - 6*k)})")
        for i in range(0, 24, 2):
            a(f"v_pk_add_f32 {P(OWN+i)}, {P(OWN+i)}, {P(PT+k*24+i)}")
    for i in range(0, 24, 2):
        a(f"v_pk_add_f32 {P(OWN+i)}, {P(OWN+i)}, {P(vB2)} op_sel_hi:[1,0]")
    for i in range(0, 24, 2):
        a(f"v_pk_mul_f32 {P(OWN+i)}, {P(OWN+i)}, {P(ZU+i)}")
    OUT = PT
    for ft in range(3):
        for i in range(4):
            a(f"v_cvt_pk_bf16_f32 v{OUT+4*ft+i}, v{OWN+8*ft+2*i}, v{OWN+8*ft+2*i+1}")
        a.vmem(f"buffer_store_dwordx4 v[{OUT+4*ft}:{OUT+4*ft+3}], v{vSt}, s[{sWS}:{sWS+3}], s{sT0} offen offset:{ft*1024}" + (" sc1" if "psc1" in K2X else ""))
    ST("g_end")
    ST.dump(sWS, sW, t0, t1, WS_DBG + 0x200000)

def gen_conv(a, V, ST, prof, name):
    sSSM, sWS, sDv, sWSP, sWO = 4, 8, 12, 16, 20
    sC, sW, sCH = 32, 34, 35
    sT0, sT1, sT2, sT3 = 40, 41, 42, 43
    a(f"s_load_dwordx2 s[{sSSM}:{sSSM+1}], s[0:1], {KA['ssmk']}")
    a(f"s_load_dwordx2 s[{sWS}:{sWS+1}], s[0:1], {KA['ws']}")
    a(f"s_load_dwordx2 s[{sDv}:{sDv+1}], s[0:1], {KA['ssmD']}")
    a(f"s_load_dwordx2 s[{sWSP}:{sWSP+1}], s[0:1], {KA['wsp']}")
    a(f"s_load_dwordx2 s[{sWO}:{sWO+1}], s[0:1], {KA['wout']}")
    vL = V(); vT = V(); t0, t1, t2 = V(), V(), V()
    if FUSED: a(f"v_subrev_u32 v0, 256, v0")
    if os.environ.get("CPRIO"): a(f"s_setprio {os.environ['CPRIO']}")
    cst = [0]
    def csync():
        if FUSED: gsync(a, 1, cst, t0, t1)
        else:
            a("s_waitcnt lgkmcnt(0)")
            a("s_barrier")
    a(f"v_lshrrev_b32 v{t0}, 6, v0")
    a(f"v_and_b32 v{vL}, 63, v0")
    a(f"v_readfirstlane_b32 s{sW}, v{t0}")
    for srd, size in ((sSSM, SZ_SSMK), (sWS, WS_SIZE_DBG if prof else WS_END), (sDv, 1280), (sWSP, SZ_WSP), (sWO, SZ_WOUT)):
        a(f"s_mov_b32 s{srd+2}, {size}")
        a(f"s_mov_b32 s{srd+3}, {SRD3:#x}")
    a(f"s_mov_b32 s{sC}, s2")
    a(f"v_lshlrev_b32 v{vT}, 4, v0")
    NCH = 3
    HR = V(8*NCH, 4); UR = V(4*NCH, 4); DR = V(NCH)
    vTm = V()
    FP = V(8, 4)
    a(f"v_subrev_u32 v{vTm}, 16, v{vT}")
    sCHN = [56, 57, 58]
    a(f"s_mov_b32 s{sCHN[0]}, s2")
    a(f"s_add_u32 s{sCHN[1]}, s2, 256")
    a(f"s_lshr_b32 s{sCHN[2]}, s2, 1")
    a(f"s_add_u32 s{sCHN[2]}, s{sCHN[2]}, 512")
    ld = {}
    def loads(i):
        a(f"s_lshl_b32 s{sT0}, s{sCHN[i]}, 12")
        a.vmem(f"buffer_load_dwordx4 v[{HR+8*i+4}:{HR+8*i+7}], v{vT}, s[{sSSM}:{sSSM+3}], s{sT0} offen")
        a.vmem(f"buffer_load_dwordx4 v[{HR+8*i}:{HR+8*i+3}], v{vTm}, s[{sSSM}:{sSSM+3}], s{sT0} offen")
        a(f"s_lshl_b32 s{sT1}, s{sCHN[i]}, 1")
        a(f"v_mov_b32 v{t0}, 0")
        a.vmem(f"buffer_load_ushort v{DR+i}, v{t0}, s[{sDv}:{sDv+3}], s{sT1} offen")
        if FUSED:
            ld[i] = a.vm - 1
            return
        load_u(i)
    def load_u(i):
        a(f"s_lshl_b32 s{sT0}, s{sCHN[i]}, 12")
        a(f"s_add_u32 s{sT0}, s{sT0}, {WS_KVT}")
        ld[i] = a.vmem(f"buffer_load_dwordx4 v[{UR+4*i}:{UR+4*i+3}], v{vT}, s[{sWS}:{sWS+3}], s{sT0} offen" + (" sc1" if FUSED else ""))
    def poll_all():
        poll_all_flags(a, sWS, FP, t0)
    a("s_waitcnt lgkmcnt(0)")
    ST("c_kernarg")
    loads(0)
    vTW, vTZ, vDm = V(), V(), V()
    sU, sTWB, sTZB = 47, 52, 53
    a(f"s_lshr_b32 s{sU}, s2, 3")
    a(f"s_lshl_b32 s{sU}, s{sU}, 2")
    a(f"s_add_u32 s{sU}, s{sU}, s{sW}")
    a(f"s_mul_i32 s{sT0}, s{sU}, 12")
    a(f"v_add_u32 v{t0}, s{sT0}, v{vL}")
    a(f"v_mul_u32_u24 v{t1}, 43691, v{t0}")
    a(f"v_lshrrev_b32 v{t1}, 22, v{t1}")
    a(f"v_mul_u32_u24 v{t2}, 96, v{t1}")
    a(f"v_sub_u32 v{t0}, v{t0}, v{t2}")
    a(f"v_mul_u32_u24 v{t1}, 98304, v{t1}")
    a(f"v_lshl_add_u32 v{vTZ}, v{t0}, 7, v{t1}")
    a(f"s_and_b32 s{sT0}, s2, 7")
    a(f"s_lshr_b32 s{sTWB}, s{sT0}, 1")
    a(f"s_lshl_b32 s{sTWB}, s{sTWB}, 21")
    a(f"s_and_b32 s{sTZB}, s{sT0}, 1")
    a(f"s_mul_i32 s{sTZB}, s{sTZB}, {4*393216}")
    a(f"s_add_u32 s{sTZB}, s{sTZB}, {WS_Z2F}")
    a(f"s_lshl_b32 s{sT0}, s{sU}, 4")
    a(f"v_add_u32 v{t0}, s{sT0}, v{vL}")
    a(f"v_lshrrev_b32 v{t1}, 2, v{t0}")
    a(f"v_lshlrev_b32 v{t1}, 12, v{t1}")
    a(f"v_and_b32 v{t0}, 3, v{t0}")
    a(f"v_lshl_add_u32 v{vTW}, v{t0}, 10, v{t1}")
    def touch(c, w=True):
        if "notouch" in K2X: return
        a(f"s_add_u32 s{sT0}, s{sTZB}, {c*12288}")
        a(f"s_mov_b64 exec, 0xfff")
        a.vmem(f"buffer_load_dword v{vDm}, v{vTZ}, s[{sWS}:{sWS+3}], s{sT0} offen")
        if w and "notw" not in K2X:
            a(f"s_add_u32 s{sT0}, s{sTWB}, {c*128}")
            a(f"s_mov_b64 exec, 0xffff")
            a.vmem(f"buffer_load_dword v{vDm}, v{vTW}, s[{sWSP}:{sWSP+3}], s{sT0} offen")
        a(f"s_mov_b64 exec, -1")
    NUP = int(os.environ.get('NUP', '2'))
    for c_ in range(NUP): touch(c_)
    def wof_job():
        sWJ = 54
        lwj = a.newlabel("c_wj")
        a(f"s_cmp_ge_u32 s2, 192")
        a(f"s_cbranch_scc1 {lwj}")
        a(f"s_mul_i32 s{sT0}, s2, 2731")
        a(f"s_lshr_b32 s{sT0}, s{sT0}, 16")
        a(f"s_mul_i32 s{sT1}, s{sT0}, 24")
        a(f"s_sub_u32 s{sT1}, s2, s{sT1}")
        a(f"s_mul_i32 s{sT1}, s{sT1}, {32*1280}")
        a(f"s_mul_i32 s{sT0}, s{sT0}, 160")
        a(f"s_add_u32 s{sWJ}, s{sT0}, s{sT1}")
        for r in range(2):
            l2 = None
            if r == 1:
                l2 = a.newlabel("c_wj2")
                a(f"s_cmp_lg_u32 s{sW}, 0")
                a(f"s_cbranch_scc1 {l2}")
            if r == 0: a(f"v_mov_b32 v{t0}, v0")
            else: a(f"v_add_u32 v{t0}, 256, v{vL}")
            a(f"v_mul_u32_u24 v{t1}, 6554, v{t0}")
            a(f"v_lshrrev_b32 v{t1}, 16, v{t1}")
            a(f"v_mul_u32_u24 v{t2}, 10, v{t1}")
            a(f"v_sub_u32 v{t0}, v{t0}, v{t2}")
            a(f"v_lshlrev_b32 v{t0}, 4, v{t0}")
            a(f"v_mul_u32_u24 v{t1}, 1280, v{t1}")
            a(f"v_add_u32 v{t0}, v{t0}, v{t1}")
            if r == 0:
                a(f"s_lshl_b32 s{sT0}, s{sW}, 10")
                a(f"s_add_u32 m0, s{sT0}, {WJ}")
            else: a(f"s_mov_b32 m0, {WJ + 4096}")
            a(f"buffer_load_dwordx4 v{t0}, s[{sWO}:{sWO+3}], s{sWJ} offen lds")
            a.vm -= 1
            if l2: a.label(l2)
        a.label(lwj)
        for i_ in range(1, NCH): loads(i_)
    if FUSED: wof_job()
    Zr = V(4, 4)
    for e in range(4): a(f"v_mov_b32 v{Zr+e}, 0")
    a(f"v_mul_u32_u24 v{t0}, {CS_}, v0")
    if TOEP: a(f"v_add_u32 v{t0}, {TOEP}, v{t0}")
    a(f"v_cmp_gt_u32 vcc, 64, v0")
    a(f"s_and_saveexec_b64 s[50:51], vcc")
    lz = a.newlabel("c_z")
    a(f"s_cbranch_execz {lz}")
    a(f"v_subrev_u32 v{t1}, {32*16 - UB}, v{vT}")
    a(f"v_cmp_gt_u32 vcc, 8, v0")
    a(f"v_cndmask_b32 v{t1}, v{t1}, v{t0}, vcc")
    a(f"v_add_u32 v{t2}, -8, v0")
    a(f"v_cmp_lt_u32 vcc, 23, v{t2}")
    a(f"s_and_b64 exec, exec, vcc")
    a.ds(f"ds_write_b128 v{t1}, v[{Zr}:{Zr+3}]")
    a.label(lz)
    a(f"s_mov_b64 exec, s[50:51]")
    vTW_ = V()
    a(f"v_add_u32 v{vTW_}, {OZ*16 + TOEP}, v{vT}")
    vUW = V()
    a(f"v_add_u32 v{vUW}, {UB + UZ*16}, v{vT}")
    vA = V()
    a(f"v_and_b32 v{t0}, 7, v{vL}")
    a(f"v_mul_u32_u24 v{t0}, {CS_}, v{t0}")
    a(f"v_bfe_u32 v{t1}, v{vL}, 3, 1")
    a(f"v_lshrrev_b32 v{t2}, 4, v{vL}")
    a(f"v_sub_u32 v{t1}, v{t1}, v{t2}")
    a(f"v_add_u32 v{t1}, 3, v{t1}")
    a(f"v_lshl_add_u32 v{vA}, v{t1}, 4, v{t0}")
    if TOEP: a(f"v_add_u32 v{vA}, {TOEP}, v{vA}")
    vBq = V()
    a(f"v_and_b32 v{t0}, 15, v{vL}")
    a(f"v_lshl_add_u32 v{t0}, v{t0}, 1, v{t2}")
    a(f"v_lshlrev_b32 v{vBq}, 4, v{t0}")
    a(f"v_add_u32 v{vBq}, {UB}, v{vBq}")
    DM = V(4, 4)
    a(f"v_and_b32 v{t0}, 15, v{vL}")
    a(f"v_lshlrev_b32 v{t1}, 3, v{t2}")
    a(f"v_sub_u32 v{t1}, v{t1}, v{t0}")
    a(f"v_add_u32 v{t1}, -9, v{t1}")
    vK0, vK1 = V(), V()
    a(f"v_mov_b32 v{vK0}, 0xffff"); a(f"v_mov_b32 v{vK1}, 0xffff0000")
    for dw in range(4):
        a(f"v_cmp_eq_u32 vcc, {2*dw}, v{t1}")
        a(f"v_cndmask_b32 v{DM+dw}, 0, v{vK0}, vcc")
        a(f"v_cmp_eq_u32 vcc, {2*dw + 1}, v{t1}")
        a(f"v_cndmask_b32 v{DM+dw}, v{DM+dw}, v{vK1}, vcc")
    vPW = V()
    a(f"v_and_b32 v{t0}, 15, v{vL}")
    a(f"v_lshlrev_b32 v{t0}, 6, v{t0}")
    a(f"v_lshl_add_u32 v{t0}, v{t2}, 4, v{t0}")
    a(f"s_lshl_b32 s{sT0}, s{sW}, 13")
    a(f"s_add_u32 s{sT0}, s{sT0}, {PB}")
    a(f"v_add_u32 v{vPW}, s{sT0}, v{t0}")
    vPR = V()
    a(f"v_lshlrev_b32 v{vPR}, 5, v0")
    a(f"v_add_u32 v{vPR}, {PB}, v{vPR}")
    ACC = V(32, 4)
    AF = V(12, 4); BF = V(64, 4)
    EW = V(8, 4); TQ = V(4, 4); DG = V(4, 4)

    def mfma_block(w, tiles, touches):
        tq = list(touches)
        started = set()
        seq = []
        for r in range(2):
            q0 = 2*w + r
            dmin = 0
            ips = [ip for ip in range(8) if any(T >= ip for T in tiles)]
            seq += [(r, ip) for ip in ips]
        bid = {}
        def need_d(r): return sorted({T - ip for (rr, ip) in seq if rr == r for T in tiles if T >= ip})
        def read_b(r):
            q0 = 2*w + r
            for d in need_d(r):
                m = 8*d - q0
                bid[(r, d)] = a.ds(f"ds_read_b128 v[{BF+(r*8+d)*4}:{BF+(r*8+d)*4+3}], v{vBq} offset:{(4*m - 2 + UZ)*16}")
        aid = {}
        def read_a(n):
            r, ip = seq[n]
            q = 2*w + r + 8*ip
            aid[n] = a.ds(f"ds_read_b128 v[{AF+(n%3)*4}:{AF+(n%3)*4+3}], v{vA} offset:{64*q}")
        read_a(0); read_b(0); read_a(1)
        for n, (r, ip) in enumerate(seq):
            if n + 2 < len(seq): read_a(n + 2)
            if n == 2: read_b(1)
            last = max([aid[n]] + [bid[(r, T - ip)] for T in tiles if T >= ip])
            a.wait_lg(last)
            q0 = 2*w + r
            for T in sorted(tiles, reverse=True):
                if T < ip: continue
                c = f"v[{ACC+4*T}:{ACC+4*T+3}]" if T in started else "0"; started.add(T)
                a(f"v_mfma_f32_16x16x32_bf16 v[{ACC+4*T}:{ACC+4*T+3}], v[{AF+(n%3)*4}:{AF+(n%3)*4+3}], v[{BF+(r*8+T-ip)*4}:{BF+(r*8+T-ip)*4+3}], {c}")
            if q0 == 0 and ip == 0:
                for T in tiles:
                    a(f"v_mfma_f32_16x16x32_bf16 v[{ACC+4*T}:{ACC+4*T+3}], v[{DG}:{DG+3}], v[{BF+(r*8+T)*4}:{BF+(r*8+T)*4+3}], v[{ACC+4*T}:{ACC+4*T+3}]")
            if tq and n % 2 == 1: touch(tq.pop(0))
        for T in tiles:
            a.ds(f"ds_write_b128 v{vPW}, v[{ACC+4*T}:{ACC+4*T+3}] offset:{T*1024}")
    def finalize(i, tiles):
        regs = [BF, BF+8, BF+16, BF+24]
        full = len(tiles) == 8
        if not full:
            lab = a.newlabel("c_fm")
            a(f"s_mov_b64 exec, 0")
            for w in range(4):
                lo = 0xffffffff if 2*w in tiles else 0
                hi = 0xffffffff if 2*w + 1 in tiles else 0
                a(f"s_cmp_eq_u32 s{sW}, {w}")
                a(f"s_cselect_b32 exec_lo, {lo if lo == 0 else -1}, exec_lo")
                a(f"s_cselect_b32 exec_hi, {hi if hi == 0 else -1}, exec_hi")
            lskip = a.newlabel("c_fskip")
            a(f"s_cbranch_execz {lskip}")
        for k in range(4):
            a.ds(f"ds_read_b128 v[{regs[k]}:{regs[k]+3}], v{vPR} offset:{k*PT_}")
            a.ds(f"ds_read_b128 v[{regs[k]+4}:{regs[k]+7}], v{vPR} offset:{k*PT_ + 16}")
        a(f"s_lshl_b32 s{sT0}, s{sCHN[i]}, 12")
        a(f"s_add_u32 s{sT0}, s{sT0}, {WS_YT}")
        a("s_waitcnt lgkmcnt(0)")
        for e in range(0, 8, 2):
            a(f"v_pk_add_f32 {P(regs[0]+e)}, {P(regs[0]+e)}, {P(regs[1]+e)}")
            a(f"v_pk_add_f32 {P(regs[2]+e)}, {P(regs[2]+e)}, {P(regs[3]+e)}")
        for e in range(0, 8, 2):
            a(f"v_pk_add_f32 {P(regs[0]+e)}, {P(regs[0]+e)}, {P(regs[2]+e)}")
        for e in range(4):
            a(f"v_cvt_pk_bf16_f32 v{TQ+e}, v{regs[0]+2*e}, v{regs[0]+2*e+1}")
        a(f"buffer_store_dwordx4 v[{TQ}:{TQ+3}], v{vT}, s[{sWS}:{sWS+3}], s{sT0} offen" + (" sc1" if "ysc1" in K2X else ""))
        a.vm -= 1
        if not full:
            a.label(lskip)
            a(f"s_mov_b64 exec, -1")
        a("s_nop 1")

    def per_wave(variants):
        lend = a.newlabel("c_pw_end"); labs = [a.newlabel("c_pw") for _ in range(4)]
        lg0, vm0 = a.lg, a.vm
        lgmax, vmmin = lg0, None
        for w in range(4):
            if w < 3:
                a(f"s_cmp_lg_u32 s{sW}, {w}")
                a(f"s_cbranch_scc1 {labs[w]}")
            a.lg, a.vm = lg0, vm0
            variants[w]()
            lgmax = max(lgmax, a.lg); vmmin = a.vm if vmmin is None else min(vmmin, a.vm)
            if w < 3:
                a(f"s_branch {lend}")
                a.label(labs[w])
        a.label(lend)
        a.lg, a.vm = lgmax, vmmin

    for i in range(NCH):
        a.comment(f"------- channel slot {i}")
        a.wait_vm(ld[i])
        ST(f"c{i}_ld")
        d = HR + 8*i
        a(f"v_cmp_ne_u32 vcc, 0, v0")
        for e in range(4): a(f"v_cndmask_b32 v{d+e}, 0, v{d+e}, vcc")
        for e in range(7): a(f"v_alignbit_b32 v{EW+e}, v{d+e+1}, v{d+e}, 16")
        for c in range(8):
            st = c + 1
            if st % 2 == 0: src = d + st//2
            else: src = EW + (st-1)//2
            if (src % 2) != 0:
                for e in range(4): a(f"v_mov_b32 v{TQ+e}, v{src+e}")
                src = TQ
            a.ds(f"ds_write_b128 v{vTW_}, v[{src}:{src+3}] offset:{c*CS_}")
            if src == TQ: a("s_nop 1")
        if FUSED and i == 0:
            poll_all()
            for i_ in range(NCH): load_u(i_)
            a.wait_vm(ld[0])
        a.ds(f"ds_write_b128 v{vUW}, v[{UR+4*i}:{UR+4*i+3}]")
        a(f"v_lshlrev_b32 v{t0}, 16, v{DR+i}")
        a(f"v_or_b32 v{t0}, v{t0}, v{DR+i}")
        for e in range(4): a(f"v_and_b32 v{DG+e}, v{DM+e}, v{t0}")
        if i == 0 and not FUSED: wof_job()
        csync()
        ST(f"c{i}_built")
        if i == 1:
            lw3 = a.newlabel("c_wj3")
            a(f"s_cmp_ge_u32 s2, 192")
            a(f"s_cbranch_scc1 {lw3}")
            a(f"v_lshrrev_b32 v{t0}, 4, v{vL}")
            a(f"v_and_b32 v{t2}, 15, v{vL}")
            a(f"v_lshrrev_b32 v{t1}, 2, v{t2}")
            a(f"v_lshl_add_u32 v{t0}, v{t0}, 2, v{t1}")
            a(f"v_mul_u32_u24 v{t0}, 160, v{t0}")
            a(f"v_and_b32 v{t1}, 3, v{t2}")
            a(f"v_lshl_add_u32 v{t0}, v{t1}, 3, v{t0}")
            a(f"v_lshlrev_b32 v{t2}, 4, v{vL}")
            for r in range(2):
                l2 = None
                if r == 1:
                    l2 = a.newlabel("c_wj4")
                    a(f"s_cmp_lg_u32 s{sW}, 0")
                    a(f"s_cbranch_scc1 {l2}")
                if r == 0: a(f"s_lshl_b32 s{sT0}, s{sW}, 5")
                else: a(f"s_mov_b32 s{sT0}, 128")
                a(f"s_add_u32 s{sT1}, s{sT0}, {WJ}")
                a(f"v_add_u32 v{t1}, s{sT1}, v{t0}")
                a(f"ds_read_b64_tr_b16 v[{TQ}:{TQ+1}], v{t1}")
                a(f"ds_read_b64_tr_b16 v[{TQ+2}:{TQ+3}], v{t1} offset:2560")
                a(f"s_mul_i32 s{sT1}, s2, 5120")
                a(f"s_lshl_b32 s{sT0}, s{sT0}, 5")
                a(f"s_add_u32 s{sT1}, s{sT1}, s{sT0}")
                a(f"s_add_u32 s{sT1}, s{sT1}, {WS_WOF}")
                a("s_waitcnt lgkmcnt(0)")
                a(f"buffer_store_dwordx4 v[{TQ}:{TQ+3}], v{t2}, s[{sWS}:{sWS+3}], s{sT1} offen" + (" sc1" if "ysc1" in K2X else ""))
                a("s_nop 1")
                a.vm -= 1; a.lg -= 2
                if l2: a.label(l2)
            a.label(lw3)
        tch = list(range(NUP, 8)) if i == 0 else []
        def do_channel(tiles):
            per_wave([(lambda w=w: mfma_block(w, tiles, tch)) for w in range(4)])
            if i < 2: ST(f"c{i}_mfma")
            if FULL and i == 1: a("s_waitcnt vmcnt(0)")
            csync()
            if FULL and i == 1:
                a(f"s_lshl_b32 s{sT0}, s2, 3")
                a(f"s_add_u32 s{sT0}, s{sT0}, {WS_F4}")
                a(f"v_mov_b32 v{FP}, s{sTAGF}"); a(f"v_mov_b32 v{FP+1}, s{sTAGF+1}")
                a(f"v_mov_b32 v{t0}, 0")
                a(f"s_cmp_eq_u32 s{sW}, 0")
                a(f"s_cselect_b64 exec, 1, 0")
                a(f"s_cmp_lt_u32 s2, 192")
                a(f"s_cselect_b64 exec, exec, 0")
                a(f"buffer_store_dwordx2 {P(FP)}, v{t0}, s[{sWS}:{sWS+3}], s{sT0} offen sc1")
                a.vm -= 1
                a(f"s_mov_b64 exec, -1")
            finalize(i, tiles)
        if i < 2:
            do_channel(list(range(8)))
        else:
            labB = a.newlabel("c_halfB"); labE = a.newlabel("c_halfE")
            a(f"s_bitcmp1_b32 s2, 0")
            a(f"s_cbranch_scc1 {labB}")
            lg0, vm0, c0_ = a.lg, a.vm, cst[0]
            do_channel([2, 6, 7])
            a(f"s_branch {labE}")
            a.label(labB); a.lg, a.vm, cst[0] = lg0, vm0, c0_
            do_channel([0, 1, 3, 4, 5])
            a.label(labE)
        ST(f"c{i}_done")
    ST.dump(sWS, sW, t0, t1, WS_DBG + 0x400000)

def gen_k2(name="k2_kernel", prof=False):
    a = Asm()
    a.raw(f".globl {name}\n.p2align 8\n.type {name},@function\n{name}:")
    a(f"s_cmp_ge_u32 s2, 512")
    a(f"s_cbranch_scc1 {name}_end")
    a(f"s_cmp_lt_u32 s2, 256")
    a(f"s_cbranch_scc1 {name}_conv" if "noconv" not in K2X else f"s_cbranch_scc1 {name}_end")
    ST = Stamps(a, enabled=prof); ST("g_start")
    V = Alloc(1, 256, "v")
    gen_gemm(a, V, ST, prof)
    a("s_endpgm")
    hi = V.hi
    a.label(f"{name}_conv")
    a.vm = 0; a.lg = 0
    ST2 = Stamps(a, enabled=prof); ST2("c_start")
    V2 = Alloc(1, 256, "v")
    gen_conv(a, V2, ST2, prof, name)
    a.label(f"{name}_end")
    a("s_endpgm")
    gen_k2.stamp_names = {"k2g": ST.names, "k2c": ST2.names}
    return a.finish(), max(hi, V2.hi)


def gen_k12(name="k12_kernel", prof=False):
    import k1, k3
    a, hi1, sW1 = k1.gen_k1(name=name, prof=prof, fused=True)
    a(f"s_cmp_ge_u32 s{sW1}, 4")
    a(f"s_cbranch_scc1 {name}_conv")
    a.vm = 0; a.lg = 0
    ST = Stamps(a, enabled=prof); ST("g_start")
    V = Alloc(1, 255, "v")
    gen_gemm(a, V, ST, prof)
    hi3 = 0
    if FULL:
        a("s_waitcnt vmcnt(0) lgkmcnt(0)")
        a("s_barrier")
        a(f"s_lshl_b32 s40, s2, 3")
        a(f"s_add_u32 s40, s40, {WS_F2}")
        a(f"v_mov_b32 v2, s{sTAGF}"); a(f"v_mov_b32 v3, s{sTAGF+1}")
        a(f"v_mov_b32 v1, 0")
        a(f"s_cmp_eq_u32 s34, 0")
        a(f"s_cselect_b64 exec, 1, 0")
        a(f"buffer_store_dwordx2 v[2:3], v1, s[8:11], s40 offen sc1")
        a(f"s_mov_b64 exec, -1")
        a.vm = 0; a.lg = 0
        hi3 = k3.gen_k3(prof=prof, fa=a)
    a("s_endpgm")
    hi = V.hi
    a.label(f"{name}_conv")
    a.vm = 0; a.lg = 0
    ST2 = Stamps(a, enabled=prof); ST2("c_start")
    V2 = Alloc(1, 255, "v")
    gen_conv(a, V2, ST2, prof, name)
    if FULL:
        a("s_waitcnt vmcnt(0) lgkmcnt(0)")
        a("s_barrier")
    a.label(f"{name}_end")
    a("s_endpgm")
    gen_k12.stamp_names = {"k1": k1.gen_k1.stamp_names, "k2g": ST.names, "k2c": ST2.names}
    if FULL: gen_k12.stamp_names["k3"] = k3.gen_k3.stamp_names
    return a.finish(), max(hi1, hi, V2.hi, hi3)
```

```python
from dsl import *
from layout import *
from k1 import f32, Filler, run, mask, P
import os
WO = 0; XT = 122880; YTL = 133120; OT = 143360; LDS = 153600
LOG2E = 1.4426950408889634

def gen_k3(name="k3_kernel", prof=False, fa=None):
    K3X = os.environ.get("K3X", "")
    F3 = fa is not None
    SC = " sc1" if F3 else ""
    a = fa if F3 else Asm()
    ST = Stamps(a, enabled=prof)
    V = Alloc(1, 255, "v")
    sX, sWS, sOUT = 8, 12, 16
    sRB, sDJ, sW = 32, 33, 34
    sT0, sT1, sT2, sT3 = 40, 41, 42, 43
    sCOL, sXB, sWB, sPB, sROT = 44, 45, 46, 47, 48
    if not F3:
        a.raw(f".globl {name}\n.p2align 8\n.type {name},@function\n{name}:")
        a(f"s_cmp_ge_u32 s2, 256")
        a(f"s_cbranch_scc1 {name}_end")
    a(f"s_load_dwordx2 s[{sWS}:{sWS+1}], s[0:1], {KA['ws']}")
    a(f"s_load_dwordx2 s[{sX}:{sX+1}], s[0:1], {KA['q']}")
    a(f"s_load_dwordx2 s[{sOUT}:{sOUT+1}], s[0:1], {KA['out']}")
    ST("start")
    for srd, size in ((sX, SZ_X), (sWS, WS_SIZE_DBG if prof else WS_END), (sOUT, SZ_X)):
        a(f"s_mov_b32 s{srd+2}, {size}")
        a(f"s_mov_b32 s{srd+3}, {SRD3:#x}")
    vL, vQ, vP = V(), V(), V(); t0, t1, t2 = V(), V(), V()
    a(f"v_lshrrev_b32 v{t0}, 6, v0")
    a(f"v_and_b32 v{vL}, 63, v0")
    a(f"v_readfirstlane_b32 s{sW}, v{t0}")
    vZ = V()
    a(f"v_lshlrev_b32 v{vZ}, 4, v{vL}")
    a(f"s_and_b32 s{sT0}, s2, 7")
    a(f"s_lshr_b32 s{sT1}, s2, 3")
    a(f"s_lshr_b32 s{sRB}, s{sT0}, 1")
    a(f"s_lshl_b32 s{sRB}, s{sRB}, 3")
    a(f"s_and_b32 s{sT2}, s{sT1}, 7")
    a(f"s_add_u32 s{sRB}, s{sRB}, s{sT2}")
    a(f"s_and_b32 s{sDJ}, s{sT0}, 1")
    a(f"s_lshl_b32 s{sDJ}, s{sDJ}, 2")
    a(f"s_lshr_b32 s{sT2}, s{sT1}, 3")
    a(f"s_add_u32 s{sDJ}, s{sDJ}, s{sT2}")
    a(f"s_add_u32 s{sT0}, s{sRB}, s{sDJ}")
    a(f"s_mul_i32 s{sT1}, s{sT0}, 43")
    a(f"s_lshr_b32 s{sT1}, s{sT1}, 8")
    a(f"s_mul_i32 s{sT1}, s{sT1}, 6")
    a(f"s_sub_u32 s{sROT}, s{sT0}, s{sT1}")
    if "norot" in K3X: a(f"s_mov_b32 s{sROT}, 0")
    a(f"s_mul_i32 s{sWB}, s{sDJ}, {24*5120}")
    a(f"s_add_u32 s{sWB}, s{sWB}, {WS_WOF}")
    a(f"s_mul_i32 s{sT0}, s{sW}, 5120")
    a(f"s_add_u32 s{sWB}, s{sWB}, s{sT0}")
    a(f"s_mul_i32 s{sPB}, s{sRB}, {4*24*1024}")
    a(f"s_mul_i32 s{sT1}, s{sW}, {24*1024}")
    a(f"s_add_u32 s{sPB}, s{sPB}, s{sT1}")
    a(f"s_add_u32 s{sPB}, s{sPB}, {WS_PF}")
    sG = [50, 51, 52, 53, 54, 55]
    for m in range(6):
        a(f"s_add_u32 s{sT0}, s{sROT}, {m}")
        a(f"s_sub_u32 s{sT1}, s{sT0}, 6")
        a(f"s_cmp_ge_u32 s{sT0}, 6")
        a(f"s_cselect_b32 s{sG[m]}, s{sT1}, s{sT0}")
    PFr = V(96, 4)
    a("s_waitcnt lgkmcnt(0)")
    ST("kernarg")
    p_id = {}; w_id = {}
    def dma_w_g(m):
        for r in range(5):
            a(f"s_mul_i32 s{sT0}, s{sG[m]}, {4*5120}")
            a(f"s_add_u32 s{sT0}, s{sT0}, s{sWB}")
            a(f"s_add_u32 s{sT0}, s{sT0}, {r*1024}")
            a(f"s_mul_i32 s{sT1}, s{sW}, 5120")
            a(f"s_add_u32 m0, s{sT1}, {WO + m*4*5120 + r*1024}")
            w_id[m] = a.vmem(f"buffer_load_dwordx4 v{vZ}, s[{sWS}:{sWS+3}], s{sT0} offen{SC} lds")
            yield
    def load_p_g(m):
        for k in range(4):
            ks = 4*m + k
            a(f"s_lshl_b32 s{sT2}, s{sG[m]}, 12")
            a(f"s_add_u32 s{sT2}, s{sT2}, s{sPB}")
            p_id[ks] = a.vmem(f"buffer_load_dwordx4 v[{PFr+4*ks}:{PFr+4*ks+3}], v{vZ}, s[{sWS}:{sWS+3}], s{sT2} offen offset:{k*1024}{SC}")
            yield
    if F3:
        from k2 import poll_flags_n, poll_all_flags
        a(f"s_mul_i32 s{sT0}, s{sDJ}, {24*8}")
        a(f"s_add_u32 s{sT0}, s{sT0}, {WS_F4}")
        poll_flags_n(a, sWS, sT0, 24, PFr, t0)
        ST("wflags")
        for m in range(6): run(dma_w_g(m))
        poll_all_flags(a, sWS, PFr, t0, WS_F2)
        ST("pflags")
        run(load_p_g(0)); run(load_p_g(1))
    else:
        run(dma_w_g(0)); run(load_p_g(0))
        a("s_barrier")
        run(dma_w_g(1)); run(load_p_g(1))
    a(f"s_mul_i32 s{sCOL}, s{sDJ}, 160")
    a(f"s_mul_i32 s{sXB}, s{sRB}, {64*1280}")
    a(f"s_add_u32 s{sXB}, s{sXB}, s{sCOL}")
    vO = [V() for _ in range(5)]
    for r in range(5):
        a(f"v_add_u32 v{t0}, {64*r}, v{vL}")
        a(f"v_mul_u32_u24 v{t1}, 6554, v{t0}")
        a(f"v_lshrrev_b32 v{t1}, 16, v{t1}")
        a(f"v_mul_u32_u24 v{t2}, 10, v{t1}")
        a(f"v_sub_u32 v{t0}, v{t0}, v{t2}")
        a(f"v_lshlrev_b32 v{t0}, 4, v{t0}")
        a(f"v_mul_u32_u24 v{t1}, 1280, v{t1}")
        a(f"v_add_u32 v{vO[r]}, v{t0}, v{t1}")
    XS = V(2, 2)
    vY = V()
    def xy_g():
        lx = a.newlabel("k3_y"); lx2 = a.newlabel("k3_xy")
        a(f"s_cmp_ge_u32 s{sW}, 2")
        a(f"s_cbranch_scc1 {lx}")
        a(f"s_mul_i32 s{sT0}, s{sW}, {32*1280}")
        a(f"s_add_u32 s{sT0}, s{sT0}, s{sXB}")
        a(f"s_mul_i32 s{sT1}, s{sW}, 5120")
        for r in range(5):
            a(f"s_add_u32 m0, s{sT1}, {XT + r*1024}")
            a(f"buffer_load_dwordx4 v{vO[r]}, s[{sX}:{sX+3}], s{sT0} offen lds")
        a(f"s_branch {lx2}")
        a.label(lx)
        a(f"v_lshrrev_b32 v{t0}, 3, v{vL}")
        a(f"v_lshlrev_b32 v{t0}, 12, v{t0}")
        a(f"v_and_b32 v{t1}, 7, v{vL}")
        a(f"v_lshl_add_u32 v{vY}, v{t1}, 4, v{t0}")
        a(f"s_sub_u32 s{sT2}, s{sW}, 2")
        a(f"s_mul_i32 s{sT0}, s{sT2}, 40")
        a(f"s_mul_i32 s{sT1}, s{sDJ}, 80")
        a(f"s_add_u32 s{sT0}, s{sT0}, s{sT1}")
        a(f"s_lshl_b32 s{sT0}, s{sT0}, 12")
        a(f"s_lshl_b32 s{sT1}, s{sRB}, 7")
        a(f"s_add_u32 s{sT0}, s{sT0}, s{sT1}")
        a(f"s_add_u32 s{sT0}, s{sT0}, {WS_YT}")
        a(f"s_mul_i32 s{sT1}, s{sT2}, 5120")
        for r in range(5):
            a(f"s_add_u32 m0, s{sT1}, {YTL + r*1024}")
            a(f"buffer_load_dwordx4 v{vY}, s[{sWS}:{sWS+3}], s{sT0} offen{SC} lds")
            a(f"s_add_u32 s{sT0}, s{sT0}, {8*4096}")
        a.label(lx2)
        a.vm -= 5
        a(f"s_lshl_b32 s{sT0}, s{sRB}, 9")
        a(f"s_lshl_b32 s{sT1}, s{sW}, 7")
        a(f"s_add_u32 s{sT0}, s{sT0}, s{sT1}")
        a(f"s_add_u32 s{sT0}, s{sT0}, {WS_XST}")
        a(f"v_lshlrev_b32 v{t0}, 3, v{vP}")
        a.vmem(f"buffer_load_dwordx2 {P(XS)}, v{t0}, s[{sWS}:{sWS+3}], s{sT0} offen{SC}")
        yield
    a(f"v_lshrrev_b32 v{vQ}, 4, v{vL}")
    a(f"v_and_b32 v{vP}, 15, v{vL}")
    vA = [V(), V()]
    a(f"v_mov_b32 v{vA[0]}, v{vZ}")
    a(f"v_add_u32 v{vA[1]}, {12*5120}, v{vZ}")
    ACC = V(20, 4)
    AF = V(40, 4)
    def read_a(ks):
        b = ks & 1; ids = []
        base = vA[0] if ks < 12 else vA[1]
        o = WO + (ks % 12)*5120
        for dt in range(5):
            r = AF + (b*5 + dt)*4
            ids.append(a.ds(f"ds_read_b128 v[{r}:{r+3}], v{base} offset:{o + dt*1024}"))
        return ids
    rd = {}
    for m in range(6):
        a.wait_vm(w_id[m])
        a("s_barrier")
        ST(f"m{m}")
        rd[4*m] = read_a(4*m)
        fl = Filler()
        if m + 2 < 6:
            if not F3: fl.add(dma_w_g(m + 2))
            fl.add(load_p_g(m + 2))
        if m == 3: fl.add(xy_g())
        for ks in range(4*m, 4*m + 4):
            if ks + 1 < 4*m + 4: rd[ks+1] = read_a(ks + 1)
            a.wait_vm(p_id[ks])
            b = ks & 1
            for dt in range(5):
                a.wait_lg(rd[ks][dt])
                r = AF + (b*5 + dt)*4
                c = "0" if ks == 0 else f"v[{ACC+4*dt}:{ACC+4*dt+3}]"
                a(f"v_mfma_f32_16x16x32_bf16 v[{ACC+4*dt}:{ACC+4*dt+3}], v[{r}:{r+3}], v[{PFr+4*ks}:{PFr+4*ks+3}], {c}")
                if dt % 2 == 0: fl.step(1)
        fl.drain()
    ST("loop")
    XV = AF; YV = AF + 10
    a(f"s_lshl_b32 s{sT0}, s{sW}, 4")
    a(f"v_add_u32 v{t0}, s{sT0}, v{vP}")
    a(f"v_mul_u32_u24 v{t0}, 160, v{t0}")
    vXA = V(); vX2 = V(); vYA = V()
    a(f"v_lshl_add_u32 v{vXA}, v{vQ}, 3, v{t0}")
    a(f"v_add_u32 v{vX2}, {XT}, v{vXA}")
    a(f"v_lshrrev_b32 v{t1}, 2, v{vP}")
    a(f"v_lshl_add_u32 v{t0}, v{vQ}, 2, v{t1}")
    a(f"v_lshlrev_b32 v{t0}, 7, v{t0}")
    a(f"v_and_b32 v{t1}, 3, v{vP}")
    a(f"v_lshl_add_u32 v{t0}, v{t1}, 3, v{t0}")
    a(f"s_lshl_b32 s{sT0}, s{sW}, 5")
    a(f"s_add_u32 s{sT0}, s{sT0}, {YTL}")
    a(f"v_add_u32 v{vYA}, s{sT0}, v{t0}")
    T = PFr
    sL = 46
    a(f"s_mov_b32 s{sL}, {f32(-LOG2E):#x}")
    a(f"s_mov_b32 s{sL+1}, {f32(-LOG2E):#x}")
    E = T
    for i in range(0, 20, 2): a(f"v_pk_mul_f32 {P(E+i)}, {P(ACC+i)}, s[{sL}:{sL+1}]")
    a("s_waitcnt vmcnt(0)")
    a("s_barrier")
    for dt in range(5):
        a.ds(f"ds_read_b64 v[{XV+2*dt}:{XV+2*dt+1}], v{vX2} offset:{dt*32}")
    for dt in range(5):
        a.ds(f"ds_read_b64_tr_b16 v[{YV+2*dt}:{YV+2*dt+1}], v{vYA} offset:{dt*2048}")
    for i in range(20): a(f"v_exp_f32 v{E+i}, v{E+i}")
    for i in range(0, 20, 2): a(f"v_pk_add_f32 {P(E+i)}, {P(E+i)}, 1.0 op_sel_hi:[1,0]")
    for i in range(20): a(f"v_rcp_f32 v{E+i}, v{E+i}")
    for i in range(0, 20, 2): a(f"v_pk_mul_f32 {P(E+i)}, {P(E+i)}, {P(ACC+i)}")
    a("s_waitcnt lgkmcnt(0)")
    XF_ = T + 20; YF = T + 40; N = T + 60
    for i in range(10):
        a(f"v_lshlrev_b32 v{XF_+2*i}, 16, v{XV+i}")
        a(f"v_and_b32 v{XF_+2*i+1}, 0xffff0000, v{XV+i}")
        a(f"v_lshlrev_b32 v{YF+2*i}, 16, v{YV+i}")
        a(f"v_and_b32 v{YF+2*i+1}, 0xffff0000, v{YV+i}")
    RB = V(2, 2)
    a(f"v_mov_b32 v{RB}, v{XS+1}")
    for i in range(0, 20, 2): a(f"v_pk_add_f32 {P(N+i)}, {P(XF_+i)}, {P(XS)} op_sel_hi:[1,0] neg_lo:[0,1] neg_hi:[0,1]")
    for i in range(0, 20, 2): a(f"v_pk_mul_f32 {P(N+i)}, {P(N+i)}, {P(RB)} op_sel_hi:[1,0]")
    for i in range(0, 20, 2): a(f"v_pk_mul_f32 {P(N+i)}, {P(N+i)}, {P(YF+i)}")
    for i in range(0, 20, 2): a(f"v_pk_fma_f32 {P(N+i)}, {P(N+i)}, {P(E+i)}, {P(XF_+i)}")
    OV = AF
    for i in range(10): a(f"v_cvt_pk_bf16_f32 v{OV+i}, v{N+2*i}, v{N+2*i+1}")
    vOW = V()
    a(f"v_add_u32 v{vOW}, {OT}, v{vXA}")
    for dt in range(5):
        a.ds(f"ds_write_b64 v{vOW}, v[{OV+2*dt}:{OV+2*dt+1}] offset:{dt*32}")
    a(f"s_mul_i32 s{sT0}, s{sW}, 2560")
    a(f"s_add_u32 s{sT0}, s{sT0}, {OT}")
    a(f"v_add_u32 v{t0}, s{sT0}, v{vZ}")
    a("s_waitcnt lgkmcnt(0)")
    for r in range(3):
        a.ds(f"ds_read_b128 v[{T+4*r}:{T+4*r+3}], v{t0} offset:{r*1024}")
    a(f"s_mul_i32 s{sT0}, s{sW}, {16*1280}")
    a(f"s_add_u32 s{sT0}, s{sT0}, s{sXB}")
    a("s_waitcnt lgkmcnt(0)")
    for r in range(3):
        if r == 2: a(f"s_mov_b32 exec_hi, 0")
        a.vmem(f"buffer_store_dwordx4 v[{T+4*r}:{T+4*r+3}], v{vO[r]}, s[{sOUT}:{sOUT+3}], s{sT0} offen" + (" sc1" if "osc1" in K3X else ""))
    a(f"s_mov_b64 exec, -1")
    ST("end")
    ST.dump(sWS, sW, t0, t1, WS_DBG + 0x600000)
    gen_k3.stamp_names = ST.names
    if F3: return V.hi
    a.label(f"{name}_end")
    a("s_endpgm")
    return a.finish(), V.hi
```

```python
import sys, os
sys.path.insert(0, 'gen')
from dsl import *
from layout import *
import k1
def build(kernels, path):
    hdr = open('recurrent_scan__ssm_conv_h3__mixer_gmlp__prompt.s.ref').read().split("; Override launch geometry")[0]
    out = hdr
    texts = []; descs = []
    seen = set()
    for (name, grid, block, lds, text, vg) in kernels:
        if os.environ.get('SINGLE'): out += f"; @launch grid=({grid},1,1) block=({block},1,1) lds={lds}\n"
        else: out += f"; @launch kernel={name} grid=({grid},1,1) block=({block},1,1) lds={lds}\n"
        if name in seen: continue
        seen.add(name)
        texts.append(text); descs.append(kernel_desc(name, vg))
    out += '.amdgcn_target "amdgcn-amd-amdhsa--gfx950"\n.text\n'
    out += "\n".join(texts)
    out += '.section .rodata,"a"\n' + "".join(descs)
    open(path, 'w').write(out)
if __name__ == "__main__":
    which = sys.argv[1] if len(sys.argv) > 1 else "all"
    path = sys.argv[2] if len(sys.argv) > 2 else "cur.s"
    ks = []
    prof = "--prof" in sys.argv
    if os.environ.get('FUSED'):
        import k2, k3
        full = os.environ.get('FUSED') == '2'
        kn = "recurrent_scan__ssm_conv_h3__mixer_gmlp__prompt_kernel" if (full and os.environ.get('SINGLE')) else "k12_kernel"
        t, vg = k2.gen_k12(name=kn, prof=prof); print("k12 vgprs", vg); ks.append((kn, 256, 512, 163840, t, vg))
        if not full:
            t, vg = k3.gen_k3(prof=prof); print("k3 vgprs", vg); ks.append(("k3_kernel", 256, 256, k3.LDS, t, vg))
        if prof or os.environ.get('HSTAMP'): ks = [(n, g, b, l, t, 256) for (n, g, b, l, t, v) in ks]
        if os.environ.get('DUPK1'): ks.insert(1, ks[0])
        if os.environ.get('DUPK3'): ks.append(ks[-1])
        if os.environ.get('PRE'):
            e = ".globl e_kernel\n.p2align 8\n.type e_kernel,@function\ne_kernel:\n    s_endpgm\n"
            ks = [("e_kernel", 256, 256, 0, e, 8)] * int(os.environ['PRE']) + ks
        build(ks, path)
        if prof:
            import json
            d = dict(k2.gen_k12.stamp_names)
            if 'k3' not in d: d['k3'] = k3.gen_k3.stamp_names
            json.dump(d, open(path + '.stamps.json', 'w'))
        sys.exit(0)
    t, vg = k1.gen_k1(prof=prof); print("k1 vgprs", vg); ks.append(("k1_kernel", 256, 512, 163840, t, max(vg, 8)))
    if which != "k1":
        import k2
        t, vg = k2.gen_k2(prof=prof); print("k2 vgprs", vg); ks.append(("k2_kernel", 512, 256, 81920, t, vg))
    if which == "all":
        import k3
        t, vg = k3.gen_k3(prof=prof); print("k3 vgprs", vg); ks.append(("k3_kernel", 256, 256, k3.LDS, t, vg))
    if prof: ks = [(n, g, b, l, t, 256) for (n, g, b, l, t, v) in ks]
    if os.environ.get('DUPK1'): ks.insert(1, ks[0])
    if os.environ.get('DUPK2'): ks.insert(2, ks[1])
    if os.environ.get('DUPK3'): ks.append(ks[-1])
    build(ks, path)
    if prof:
        import json
        d = {'k1': k1.gen_k1.stamp_names}
        if which != 'k1': d.update(k2.gen_k2.stamp_names)
        if which == 'all': d['k3'] = k3.gen_k3.stamp_names
        json.dump(d, open(path + '.stamps.json', 'w'))
```

```python
import re, os

def vr(a, n=1):
    return f"v{a}" if n == 1 else f"v[{a}:{a+n-1}]"
def sr(a, n=1):
    return f"s{a}" if n == 1 else f"s[{a}:{a+n-1}]"
def ar(a, n=1):
    return f"a{a}" if n == 1 else f"a[{a}:{a+n-1}]"

_REG = re.compile(r"^(-|abs\()?([vsa])(\d+)\)?$")
_RNG = re.compile(r"^(-)?([vsa])\[(\d+):(\d+)\]$")

def parse_reg(tok):
    tok = tok.strip()
    m = _REG.match(tok)
    if m: return [(m.group(2), int(m.group(3)))]
    m = _RNG.match(tok)
    if m: return [(m.group(2), i) for i in range(int(m.group(3)), int(m.group(4)) + 1)]
    if tok == "vcc": return [("s", "vcc")]
    if tok == "exec": return [("s", "exec")]
    if tok == "m0": return [("s", "m0")]
    if tok in ("vcc_lo", "vcc_hi"): return [("s", "vcc")]
    return []

TRANS = ("v_exp_f32", "v_log_f32", "v_rcp_f32", "v_rsq_f32", "v_sqrt_f32", "v_sin_f32", "v_cos_f32")

class Ins:
    __slots__ = ("text", "op", "kind", "rd", "wr", "dpp", "passes", "cregs", "storedata", "nop", "lds_dma", "sgpr_const")
    def __init__(self, text):
        self.text = text
        body = text.split(";")[0].strip()
        parts = body.split(None, 1)
        self.op = parts[0]
        rest = parts[1] if len(parts) > 1 else ""
        ops = []; depth = 0; cur = ""
        for ch in rest:
            if ch == "[": depth += 1
            if ch == "]": depth -= 1
            if ch == "," and depth == 0: ops.append(cur.strip()); cur = ""
            else: cur += ch
        if cur.strip(): ops.append(cur.strip())
        mods = ""
        clean = []
        for o in ops:
            t = o.split()
            clean.append(t[0] if t else "")
            if len(t) > 1: mods += " " + " ".join(t[1:])
        ops = clean
        self.rd = []; self.wr = []; self.dpp = False; self.passes = 0; self.cregs = []; self.storedata = []
        self.nop = 1; self.lds_dma = False
        op = self.op
        R = lambda i: parse_reg(ops[i]) if i < len(ops) else []
        if op == "s_nop":
            self.kind = "nop"; self.nop = int(ops[0], 0) + 1
        elif op.startswith("v_mfma"):
            self.kind = "mfma"
            self.wr = R(0); self.rd = R(1) + R(2) + R(3); self.cregs = R(3)
            self.passes = 8 if "32x32x16" in op else 4 if "16x16x32" in op else None
            assert self.passes
        elif op.startswith("v_cmp"):
            self.kind = "valu"; self.wr = R(0); self.rd = R(1) + R(2)
        elif op.startswith("v_readfirstlane") or op.startswith("v_readlane"):
            self.kind = "valu"; self.wr = R(0); self.rd = R(1) + R(2)
        elif op.startswith("v_writelane"):
            self.kind = "valu"; self.wr = R(0); self.rd = R(0) + R(1)
        elif op.startswith("v_permlane"):
            self.kind = "valu"; self.wr = R(0) + R(1); self.rd = R(0) + R(1)
        elif op.startswith("v_"):
            self.kind = "valu"
            self.wr = R(0)
            k = 1
            if op.startswith(("v_add_co", "v_sub_co", "v_addc_co", "v_subb_co")):
                self.wr += R(1); k = 2
            for i in range(k, len(ops)): self.rd += R(i)
            if op.startswith(("v_fmac", "v_dot2c", "v_pk_fmac")): self.rd += R(0)
            if "cndmask" in op and len(ops) == 3: self.rd += [("s", "vcc")]
            if "_dpp" in op or "quad_perm" in mods or "row_" in mods or "wave_" in mods:
                self.dpp = True
                self.rd += R(0)
        elif op.startswith(("buffer_load", "global_load")):
            self.kind = "vmem"
            if " lds" in (" " + body + " "):
                self.lds_dma = True
                for i in range(len(ops)): self.rd += R(i)
                self.rd += [("s", "m0")]
            else:
                self.wr = R(0)
                for i in range(1, len(ops)): self.rd += R(i)
        elif op.startswith(("buffer_store", "buffer_atomic", "global_store", "global_atomic")):
            self.kind = "vmem"
            for i in range(len(ops)): self.rd += R(i)
            if op.startswith("buffer_"):
                d = R(0)
            else:
                d = R(1)
            if len(d) >= 3: self.storedata = d
            if "atomic" in op and "sc0" in mods: self.wr = R(0)
        elif op.startswith("ds_"):
            self.kind = "ds"
            if op.startswith(("ds_read", "ds_bpermute", "ds_permute", "ds_swizzle")):
                self.wr = R(0)
                for i in range(1, len(ops)): self.rd += R(i)
            else:
                for i in range(len(ops)): self.rd += R(i)
        elif op.startswith("s_"):
            self.kind = "salu"
            if op.startswith(("s_cmp", "s_cbranch", "s_branch", "s_waitcnt", "s_barrier", "s_endpgm", "s_sleep", "s_setprio", "s_bitcmp")):
                for i in range(len(ops)): self.rd += R(i)
            else:
                self.wr = R(0)
                for i in range(1, len(ops)): self.rd += R(i)
                if "saveexec" in op: self.wr += [("s", "exec")]
        else:
            raise ValueError("unknown op " + text)

def required_gap(p, c):
    need = 0
    pw = set(p.wr)
    X = os.environ.get("HZX", "")
    if "A" in X and p.op in TRANS and c.kind == "mfma": need = max(need, 4)
    if "B" in X and p.op.startswith("v_dot2") and c.op.startswith("v_pk_"): need = max(need, 2)
    if "C" in X and p.kind == "mfma" and c.op in TRANS: need = max(need, 3)
    if "D" in X and p.op.startswith("v_dot2") and c.op in TRANS: need = max(need, 2)
    assert not (p.op.startswith("v_pk_") and " op_sel:" in p.text), p.text
    if "E" in X and p.op.startswith("v_pk_") and c.kind == "mfma": need = max(need, 2)
    if "F" in X and p.op in TRANS and c.op.startswith("v_dot2"): need = max(need, 4)
    if p.kind == "valu":
        vw = {r for r in pw if r[0] in "va"}
        sw = {r for r in pw if r[0] == "s"}
        if c.kind == "mfma" and vw & set(c.rd): need = max(need, 2)
        if c.kind == "valu":
            if c.dpp and vw & set(c.rd): need = max(need, 2)
            if c.op.startswith("v_permlane") and vw & set(c.rd): need = max(need, 2)
            if c.op.startswith(("v_readfirstlane", "v_readlane")) and vw & set(c.rd): need = max(need, 1)
            if p.op in TRANS and vw & set(c.rd) : need = max(need, 1)
            if sw & set(c.rd):
                need = max(need, 4 if c.op.startswith(("v_readlane", "v_writelane")) else 2)
            if ("s", "exec") in sw: need = max(need, 5 if c.dpp else 4)
        if c.kind == "vmem" and sw & set(c.rd): need = max(need, 5)
        if c.kind == "mfma" and ("s", "exec") in sw: need = max(need, 4)
        if c.kind == "salu" and sw & set(c.rd): need = max(need, 1)
    if p.kind == "valu" and p.op.startswith("v_dot2"):
        d = set(p.wr)
        if d & (set(c.rd) | set(c.wr)):
            same_c = (c.op == p.op and c.text.split(",")[-1].strip().split()[0] == p.text.split(",")[0].split()[-1].strip()
                      and sum(1 for r in c.rd if r in d) == 1)
            if not same_c: need = max(need, 3)
    if p.kind == "mfma":
        d = set(p.wr)
        big = {4: 8, 8: 12}[p.passes]
        if c.kind == "mfma":
            ab = set(c.rd) - set(c.cregs) if False else None
            cab = [r for r in c.rd if r not in c.cregs]
            if d & set(cab): need = max(need, big)
            cc = set(c.cregs)
            if d & cc:
                if list(c.cregs) == list(p.wr) and c.passes == p.passes: pass
                else: need = max(need, {4: 6, 8: 10}[p.passes])
            if d & set(c.wr) and list(c.wr) != list(p.wr): need = max(need, big)
        elif c.kind in ("valu", "vmem", "ds"):
            if d & set(c.rd) or d & set(c.wr): need = max(need, big)
        if c.kind == "valu" and set(p.cregs) & set(c.wr): need = max(need, {4: 3, 8: 7}[p.passes])
    if p.kind == "vmem" and p.storedata:
        if set(p.storedata) & set(c.wr): need = max(need, 2)
    if p.kind == "salu" and ("s", "m0") in pw and (c.lds_dma): need = max(need, 1)
    return need

class Asm:
    def __init__(self):
        self.items = []
        self.vm = 0
        self.lg = 0
        self.uid = 0
    def __call__(self, text):
        for line in text.strip().split("\n"):
            line = line.strip()
            if not line: continue
            if line.startswith(";"): self.items.append(("c", line)); continue
            if line.endswith(":"): self.items.append(("l", line[:-1])); continue
            op = line.split()[0]
            STF = os.environ.get("STFLAG", "")
            if STF and op.startswith("buffer_store") and " sc1" not in line and " sc0" not in line: line = line + " " + STF
            self.items.append(("i", line))
            if op.startswith(("buffer_", "global_")) and not op.startswith(("buffer_inv", "buffer_wbl2")): self.vm += 1
            if op.startswith("ds_"): self.lg += 1
        return self
    def vmem(self, text):
        self(text); return self.vm - 1
    def ds(self, text):
        self(text); return self.lg - 1
    def wait_vm(self, idx):
        n = self.vm - idx - 1
        assert n >= 0
        self(f"s_waitcnt vmcnt({min(n, 63)})")
    def wait_lg(self, idx):
        n = self.lg - idx - 1
        assert n >= 0
        self(f"s_waitcnt lgkmcnt({min(n, 15)})")
    def label(self, name): self.items.append(("l", name))
    def newlabel(self, base="L"):
        self.uid += 1; return f"{base}_{self.uid}"
    def comment(self, t): self.items.append(("c", "; " + t))
    def raw(self, t): self.items.append(("r", t))
    def finish(self, window=24):
        out = []; hist = []
        for kind, t in self.items:
            if kind == "c": out.append("    " + t); continue
            if kind == "r": out.append(t); hist = []; continue
            if kind == "l":
                out.append(t + ":")
                continue
            ins = Ins(t)
            need_extra = 0
            dist = 0
            for p in reversed(hist[-window:]):
                g = required_gap(p, ins)
                if g > dist: need_extra = max(need_extra, g - dist)
                dist += p.nop
                if dist > 20: break
            while need_extra > 0:
                k = min(need_extra, 16)
                nop = Ins(f"s_nop {k-1}")
                out.append(f"    s_nop {k-1}"); hist.append(nop); need_extra -= k
            out.append("    " + t); hist.append(ins)
        return "\n".join(out) + "\n"

class Stamps:
    def __init__(self, a, base=70, enabled=False):
        self.a = a; self.n = 0; self.enabled = enabled; self.names = []; self.v = 255
    HS = os.environ.get("HSTAMP", "").split(",") if os.environ.get("HSTAMP") else []
    hs_n = [0]
    def __call__(self, name):
        if name in Stamps.HS and not self.enabled:
            a = self.a
            a(f"s_memrealtime s[68:69]")
            a("s_waitcnt lgkmcnt(0)")
            a(f"v_writelane_b32 v254, s68, {Stamps.HS.index(name) + 1}")
            return
        if not self.enabled: return
        a = self.a
        if os.environ.get("RT"): a(f"s_memrealtime s[68:69]")
        else: a(f"s_memtime s[68:69]")
        a("s_waitcnt lgkmcnt(0)")
        a(f"v_writelane_b32 v{self.v}, s68, {self.n}")
        self.names.append(name); self.n += 1
        assert self.n <= 32
    def dump(self, srd, sWave, vt0, vt1, off):
        if not self.enabled: return
        a = self.a
        a(f"s_lshl_b32 s68, s2, 4")
        a(f"s_add_u32 s68, s68, s{sWave}")
        a(f"s_lshl_b32 s68, s68, 7")
        a(f"s_add_u32 s68, s68, {off}")
        a(f"v_mbcnt_lo_u32_b32 v{vt0}, -1, 0")
        a(f"v_mbcnt_hi_u32_b32 v{vt0}, -1, v{vt0}")
        a(f"v_lshlrev_b32 v{vt0}, 2, v{vt0}")
        a(f"s_mov_b64 exec, {(1 << self.n) - 1:#x}")
        a(f"buffer_store_dword v{self.v}, v{vt0}, s[{srd}:{srd+3}], s68 offen")
        a(f"s_mov_b64 exec, -1")

class Alloc:
    def __init__(self, start=0, limit=256, name="v"):
        self.next = start; self.limit = limit; self.name = name; self.hi = start
    def __call__(self, n=1, align=None):
        if align is None: align = 2 if n >= 2 else 1
        if self.name == "s" and n >= 4 and align < 4: align = 4
        a = (self.next + align - 1) // align * align
        self.next = a + n
        if os.environ.get("ALLOCDBG"): print("alloc", self.name, a, n)
        assert self.next <= self.limit, f"out of {self.name} regs: {self.next} > {self.limit}"
        self.hi = max(self.hi, self.next)
        return a
    def mark(self): return self.next
    def reset(self, m): self.next = m

def kernel_desc(name, vgpr, sgpr=102, accum=None):
    if accum is None: accum = (vgpr + 3) // 4 * 4
    return f""".p2align 6
.amdhsa_kernel {name}
  .amdhsa_next_free_vgpr {vgpr}
  .amdhsa_next_free_sgpr {sgpr}
  .amdhsa_accum_offset {accum}
  .amdhsa_group_segment_fixed_size 0
  .amdhsa_kernarg_size 112
  .amdhsa_user_sgpr_count 2
  .amdhsa_user_sgpr_kernarg_segment_ptr 1
  .amdhsa_system_sgpr_workgroup_id_x 1
.end_amdhsa_kernel
"""
```

```python
from dsl import *
from layout import *
from k1 import f32, Filler, run, mask, P
import os
WO = 0; XT = 122880; YTL = 133120; OT = 143360; LDS = 153600
LOG2E = 1.4426950408889634

def gen_k3(name="k3_kernel", prof=False, fa=None):
    K3X = os.environ.get("K3X", "")
    F3 = fa is not None
    SC = " sc1" if F3 else ""
    a = fa if F3 else Asm()
    ST = Stamps(a, enabled=prof)
    V = Alloc(1, 255, "v")
    sX, sWS, sOUT = 8, 12, 16
    sRB, sDJ, sW = 32, 33, 34
    sT0, sT1, sT2, sT3 = 40, 41, 42, 43
    sCOL, sXB, sWB, sPB, sROT = 44, 45, 46, 47, 48
    if not F3:
        a.raw(f".globl {name}\n.p2align 8\n.type {name},@function\n{name}:")
        a(f"s_cmp_ge_u32 s2, 256")
        a(f"s_cbranch_scc1 {name}_end")
    a(f"s_load_dwordx2 s[{sWS}:{sWS+1}], s[0:1], {KA['ws']}")
    a(f"s_load_dwordx2 s[{sX}:{sX+1}], s[0:1], {KA['q']}")
    a(f"s_load_dwordx2 s[{sOUT}:{sOUT+1}], s[0:1], {KA['out']}")
    ST("k3start")
    for srd, size in ((sX, SZ_X), (sWS, WS_SIZE_DBG if prof else WS_END), (sOUT, SZ_X)):
        a(f"s_mov_b32 s{srd+2}, {size}")
        a(f"s_mov_b32 s{srd+3}, {SRD3:#x}")
    vL, vQ, vP = V(), V(), V(); t0, t1, t2 = V(), V(), V()
    a(f"v_lshrrev_b32 v{t0}, 6, v0")
    a(f"v_and_b32 v{vL}, 63, v0")
    a(f"v_readfirstlane_b32 s{sW}, v{t0}")
    vZ = V()
    a(f"v_lshlrev_b32 v{vZ}, 4, v{vL}")
    a(f"s_and_b32 s{sT0}, s2, 7")
    a(f"s_lshr_b32 s{sT1}, s2, 3")
    a(f"s_lshr_b32 s{sRB}, s{sT0}, 1")
    a(f"s_lshl_b32 s{sRB}, s{sRB}, 3")
    a(f"s_and_b32 s{sT2}, s{sT1}, 7")
    a(f"s_add_u32 s{sRB}, s{sRB}, s{sT2}")
    a(f"s_and_b32 s{sDJ}, s{sT0}, 1")
    a(f"s_lshl_b32 s{sDJ}, s{sDJ}, 2")
    a(f"s_lshr_b32 s{sT2}, s{sT1}, 3")
    a(f"s_add_u32 s{sDJ}, s{sDJ}, s{sT2}")
    a(f"s_add_u32 s{sT0}, s{sRB}, s{sDJ}")
    a(f"s_mul_i32 s{sT1}, s{sT0}, 43")
    a(f"s_lshr_b32 s{sT1}, s{sT1}, 8")
    a(f"s_mul_i32 s{sT1}, s{sT1}, 6")
    a(f"s_sub_u32 s{sROT}, s{sT0}, s{sT1}")
    if "norot" in K3X: a(f"s_mov_b32 s{sROT}, 0")
    a(f"s_mul_i32 s{sWB}, s{sDJ}, {24*5120}")
    a(f"s_add_u32 s{sWB}, s{sWB}, {WS_WOF}")
    a(f"s_mul_i32 s{sT0}, s{sW}, 5120")
    a(f"s_add_u32 s{sWB}, s{sWB}, s{sT0}")
    a(f"s_mul_i32 s{sPB}, s{sRB}, {4*24*1024}")
    a(f"s_mul_i32 s{sT1}, s{sW}, {24*1024}")
    a(f"s_add_u32 s{sPB}, s{sPB}, s{sT1}")
    a(f"s_add_u32 s{sPB}, s{sPB}, {WS_PF}")
    sG = [50, 51, 52, 53, 54, 55]
    for m in range(6):
        a(f"s_add_u32 s{sT0}, s{sROT}, {m}")
        a(f"s_sub_u32 s{sT1}, s{sT0}, 6")
        a(f"s_cmp_ge_u32 s{sT0}, 6")
        a(f"s_cselect_b32 s{sG[m]}, s{sT1}, s{sT0}")
    PFr = V(96, 4)
    a("s_waitcnt lgkmcnt(0)")
    ST("kernarg")
    p_id = {}; w_id = {}
    def dma_w_g(m):
        for r in range(5):
            a(f"s_mul_i32 s{sT0}, s{sG[m]}, {4*5120}")
            a(f"s_add_u32 s{sT0}, s{sT0}, s{sWB}")
            a(f"s_add_u32 s{sT0}, s{sT0}, {r*1024}")
            a(f"s_mul_i32 s{sT1}, s{sW}, 5120")
            a(f"s_add_u32 m0, s{sT1}, {WO + m*4*5120 + r*1024}")
            w_id[m] = a.vmem(f"buffer_load_dwordx4 v{vZ}, s[{sWS}:{sWS+3}], s{sT0} offen{SC} lds")
            yield
    def load_p_g(m):
        for k in range(4):
            ks = 4*m + k
            a(f"s_lshl_b32 s{sT2}, s{sG[m]}, 12")
            a(f"s_add_u32 s{sT2}, s{sT2}, s{sPB}")
            p_id[ks] = a.vmem(f"buffer_load_dwordx4 v[{PFr+4*ks}:{PFr+4*ks+3}], v{vZ}, s[{sWS}:{sWS+3}], s{sT2} offen offset:{k*1024}{SC}")
            yield
    if F3:
        from k2 import poll_flags_n, poll_all_flags
        a(f"s_mul_i32 s{sT0}, s{sDJ}, {24*8}")
        a(f"s_add_u32 s{sT0}, s{sT0}, {WS_F4}")
        poll_flags_n(a, sWS, sT0, 24, PFr, t0)
        ST("wflags")
        for m in range(6): run(dma_w_g(m))
        poll_all_flags(a, sWS, PFr, t0, WS_F2)
        ST("pflags")
        run(load_p_g(0)); run(load_p_g(1))
    else:
        run(dma_w_g(0)); run(load_p_g(0))
        a("s_barrier")
        run(dma_w_g(1)); run(load_p_g(1))
    a(f"s_mul_i32 s{sCOL}, s{sDJ}, 160")
    a(f"s_mul_i32 s{sXB}, s{sRB}, {64*1280}")
    a(f"s_add_u32 s{sXB}, s{sXB}, s{sCOL}")
    vO = [V() for _ in range(5)]
    for r in range(5):
        a(f"v_add_u32 v{t0}, {64*r}, v{vL}")
        a(f"v_mul_u32_u24 v{t1}, 6554, v{t0}")
        a(f"v_lshrrev_b32 v{t1}, 16, v{t1}")
        a(f"v_mul_u32_u24 v{t2}, 10, v{t1}")
        a(f"v_sub_u32 v{t0}, v{t0}, v{t2}")
        a(f"v_lshlrev_b32 v{t0}, 4, v{t0}")
        a(f"v_mul_u32_u24 v{t1}, 1280, v{t1}")
        a(f"v_add_u32 v{vO[r]}, v{t0}, v{t1}")
    XS = V(2, 2)
    vY = V()
    def xy_g():
        lx = a.newlabel("k3_y"); lx2 = a.newlabel("k3_xy")
        a(f"s_cmp_ge_u32 s{sW}, 2")
        a(f"s_cbranch_scc1 {lx}")
        a(f"s_mul_i32 s{sT0}, s{sW}, {32*1280}")
        a(f"s_add_u32 s{sT0}, s{sT0}, s{sXB}")
        a(f"s_mul_i32 s{sT1}, s{sW}, 5120")
        for r in range(5):
            a(f"s_add_u32 m0, s{sT1}, {XT + r*1024}")
            a(f"buffer_load_dwordx4 v{vO[r]}, s[{sX}:{sX+3}], s{sT0} offen lds")
        a(f"s_branch {lx2}")
        a.label(lx)
        a(f"v_lshrrev_b32 v{t0}, 3, v{vL}")
        a(f"v_lshlrev_b32 v{t0}, 12, v{t0}")
        a(f"v_and_b32 v{t1}, 7, v{vL}")
        a(f"v_lshl_add_u32 v{vY}, v{t1}, 4, v{t0}")
        a(f"s_sub_u32 s{sT2}, s{sW}, 2")
        a(f"s_mul_i32 s{sT0}, s{sT2}, 40")
        a(f"s_mul_i32 s{sT1}, s{sDJ}, 80")
        a(f"s_add_u32 s{sT0}, s{sT0}, s{sT1}")
        a(f"s_lshl_b32 s{sT0}, s{sT0}, 12")
        a(f"s_lshl_b32 s{sT1}, s{sRB}, 7")
        a(f"s_add_u32 s{sT0}, s{sT0}, s{sT1}")
        a(f"s_add_u32 s{sT0}, s{sT0}, {WS_YT}")
        a(f"s_mul_i32 s{sT1}, s{sT2}, 5120")
        for r in range(5):
            a(f"s_add_u32 m0, s{sT1}, {YTL + r*1024}")
            a(f"buffer_load_dwordx4 v{vY}, s[{sWS}:{sWS+3}], s{sT0} offen{SC} lds")
            a(f"s_add_u32 s{sT0}, s{sT0}, {8*4096}")
        a.label(lx2)
        a.vm -= 5
        a(f"s_lshl_b32 s{sT0}, s{sRB}, 9")
        a(f"s_lshl_b32 s{sT1}, s{sW}, 7")
        a(f"s_add_u32 s{sT0}, s{sT0}, s{sT1}")
        a(f"s_add_u32 s{sT0}, s{sT0}, {WS_XST}")
        a(f"v_lshlrev_b32 v{t0}, 3, v{vP}")
        a.vmem(f"buffer_load_dwordx2 {P(XS)}, v{t0}, s[{sWS}:{sWS+3}], s{sT0} offen{SC}")
        yield
    a(f"v_lshrrev_b32 v{vQ}, 4, v{vL}")
    a(f"v_and_b32 v{vP}, 15, v{vL}")
    vA = [V(), V()]
    a(f"v_mov_b32 v{vA[0]}, v{vZ}")
    a(f"v_add_u32 v{vA[1]}, {12*5120}, v{vZ}")
    ACC = V(20, 4)
    AF = V(40, 4)
    def read_a(ks):
        b = ks & 1; ids = []
        base = vA[0] if ks < 12 else vA[1]
        o = WO + (ks % 12)*5120
        for dt in range(5):
            r = AF + (b*5 + dt)*4
            ids.append(a.ds(f"ds_read_b128 v[{r}:{r+3}], v{base} offset:{o + dt*1024}"))
        return ids
    rd = {}
    for m in range(6):
        a.wait_vm(w_id[m])
        a("s_barrier")
        ST(f"m{m}")
        rd[4*m] = read_a(4*m)
        fl = Filler()
        if m + 2 < 6:
            if not F3: fl.add(dma_w_g(m + 2))
            fl.add(load_p_g(m + 2))
        if m == 3: fl.add(xy_g())
        for ks in range(4*m, 4*m + 4):
            if ks + 1 < 4*m + 4: rd[ks+1] = read_a(ks + 1)
            a.wait_vm(p_id[ks])
            b = ks & 1
            for dt in range(5):
                a.wait_lg(rd[ks][dt])
                r = AF + (b*5 + dt)*4
                c = "0" if ks == 0 else f"v[{ACC+4*dt}:{ACC+4*dt+3}]"
                a(f"v_mfma_f32_16x16x32_bf16 v[{ACC+4*dt}:{ACC+4*dt+3}], v[{r}:{r+3}], v[{PFr+4*ks}:{PFr+4*ks+3}], {c}")
                if dt % 2 == 0: fl.step(1)
        fl.drain()
    ST("k3loop")
    XV = AF; YV = AF + 10
    a(f"s_lshl_b32 s{sT0}, s{sW}, 4")
    a(f"v_add_u32 v{t0}, s{sT0}, v{vP}")
    a(f"v_mul_u32_u24 v{t0}, 160, v{t0}")
    vXA = V(); vX2 = V(); vYA = V()
    a(f"v_lshl_add_u32 v{vXA}, v{vQ}, 3, v{t0}")
    a(f"v_add_u32 v{vX2}, {XT}, v{vXA}")
    a(f"v_lshrrev_b32 v{t1}, 2, v{vP}")
    a(f"v_lshl_add_u32 v{t0}, v{vQ}, 2, v{t1}")
    a(f"v_lshlrev_b32 v{t0}, 7, v{t0}")
    a(f"v_and_b32 v{t1}, 3, v{vP}")
    a(f"v_lshl_add_u32 v{t0}, v{t1}, 3, v{t0}")
    a(f"s_lshl_b32 s{sT0}, s{sW}, 5")
    a(f"s_add_u32 s{sT0}, s{sT0}, {YTL}")
    a(f"v_add_u32 v{vYA}, s{sT0}, v{t0}")
    T = PFr
    sL = 46
    a(f"s_mov_b32 s{sL}, {f32(-LOG2E):#x}")
    a(f"s_mov_b32 s{sL+1}, {f32(-LOG2E):#x}")
    E = T
    for i in range(0, 20, 2): a(f"v_pk_mul_f32 {P(E+i)}, {P(ACC+i)}, s[{sL}:{sL+1}]")
    a("s_waitcnt vmcnt(0)")
    a("s_barrier")
    for dt in range(5):
        a.ds(f"ds_read_b64 v[{XV+2*dt}:{XV+2*dt+1}], v{vX2} offset:{dt*32}")
    for dt in range(5):
        a.ds(f"ds_read_b64_tr_b16 v[{YV+2*dt}:{YV+2*dt+1}], v{vYA} offset:{dt*2048}")
    for i in range(20): a(f"v_exp_f32 v{E+i}, v{E+i}")
    for i in range(0, 20, 2): a(f"v_pk_add_f32 {P(E+i)}, {P(E+i)}, 1.0 op_sel_hi:[1,0]")
    for i in range(20): a(f"v_rcp_f32 v{E+i}, v{E+i}")
    for i in range(0, 20, 2): a(f"v_pk_mul_f32 {P(E+i)}, {P(E+i)}, {P(ACC+i)}")
    a("s_waitcnt lgkmcnt(0)")
    XF_ = T + 20; YF = T + 40; N = T + 60
    for i in range(10):
        a(f"v_lshlrev_b32 v{XF_+2*i}, 16, v{XV+i}")
        a(f"v_and_b32 v{XF_+2*i+1}, 0xffff0000, v{XV+i}")
        a(f"v_lshlrev_b32 v{YF+2*i}, 16, v{YV+i}")
        a(f"v_and_b32 v{YF+2*i+1}, 0xffff0000, v{YV+i}")
    RB = V(2, 2)
    a(f"v_mov_b32 v{RB}, v{XS+1}")
    for i in range(0, 20, 2): a(f"v_pk_add_f32 {P(N+i)}, {P(XF_+i)}, {P(XS)} op_sel_hi:[1,0] neg_lo:[0,1] neg_hi:[0,1]")
    for i in range(0, 20, 2): a(f"v_pk_mul_f32 {P(N+i)}, {P(N+i)}, {P(RB)} op_sel_hi:[1,0]")
    for i in range(0, 20, 2): a(f"v_pk_mul_f32 {P(N+i)}, {P(N+i)}, {P(YF+i)}")
    for i in range(0, 20, 2): a(f"v_pk_fma_f32 {P(N+i)}, {P(N+i)}, {P(E+i)}, {P(XF_+i)}")
    OV = AF
    for i in range(10): a(f"v_cvt_pk_bf16_f32 v{OV+i}, v{N+2*i}, v{N+2*i+1}")
    vOW = V()
    a(f"v_add_u32 v{vOW}, {OT}, v{vXA}")
    for dt in range(5):
        a.ds(f"ds_write_b64 v{vOW}, v[{OV+2*dt}:{OV+2*dt+1}] offset:{dt*32}")
    a(f"s_mul_i32 s{sT0}, s{sW}, 2560")
    a(f"s_add_u32 s{sT0}, s{sT0}, {OT}")
    a(f"v_add_u32 v{t0}, s{sT0}, v{vZ}")
    a("s_waitcnt lgkmcnt(0)")
    for r in range(3):
        a.ds(f"ds_read_b128 v[{T+4*r}:{T+4*r+3}], v{t0} offset:{r*1024}")
    a(f"s_mul_i32 s{sT0}, s{sW}, {16*1280}")
    a(f"s_add_u32 s{sT0}, s{sT0}, s{sXB}")
    a("s_waitcnt lgkmcnt(0)")
    for r in range(3):
        if r == 2: a(f"s_mov_b32 exec_hi, 0")
        a.vmem(f"buffer_store_dwordx4 v[{T+4*r}:{T+4*r+3}], v{vO[r]}, s[{sOUT}:{sOUT+3}], s{sT0} offen" + (" sc1" if "osc1" in K3X else ""))
    a(f"s_mov_b64 exec, -1")
    ST("k3end")
    ST.dump(sWS, sW, t0, t1, WS_DBG + 0x600000)
    gen_k3.stamp_names = ST.names
    if F3 and Stamps.HS:
        wg = int(os.environ.get("HSWG", "0"))
        lab = a.newlabel("hs_skip")
        a(f"s_cmp_lg_u32 s2, {wg}")
        a(f"s_cbranch_scc1 {lab}")
        a(f"s_cmp_lg_u32 s{sW}, 0")
        a(f"s_cbranch_scc1 {lab}")
        a(f"s_load_dwordx2 s[20:21], s[0:1], {KA['dbg']}")
        a(f"s_mov_b32 s22, 256"); a(f"s_mov_b32 s23, {SRD3:#x}")
        a(f"v_readlane_b32 s40, v254, 1")
        a(f"v_mbcnt_lo_u32_b32 v{t0}, -1, 0")
        a(f"v_mbcnt_hi_u32_b32 v{t0}, -1, v{t0}")
        a(f"v_lshlrev_b32 v{t0}, 2, v{t0}")
        a(f"v_subrev_u32 v254, s40, v254")
        a("s_waitcnt lgkmcnt(0)")
        a(f"s_mov_b64 exec, {((1 << (len(Stamps.HS) + 1)) - 1) & ~1:#x}")
        a(f"buffer_store_dword v254, v{t0}, s[20:23], 0 offen")
        a(f"s_mov_b64 exec, -1")
        a.label(lab)
    if F3: return V.hi
    a.label(f"{name}_end")
    a("s_endpgm")
    return a.finish(), V.hi
```

```python
from dsl import *
from layout import *
import os, struct

XR = 0; WR = 81920; SLOT = 24576
MISC = 155648
CSUM = MISC
XSUM = MISC + 3072
ZSUM = MISC + 4096
SHKL = MISC + 5120
EX = 16384
TB = 81920 + 24576
KS = 65536
VS = 49152
ZT = 0
C1 = 2.302208198144325
C2 = C1 * 0.044715

def f32(x): return struct.unpack("<I", struct.pack("<f", x))[0]
def P(r): return f"v[{r}:{r+1}]"

def pkop(a, kind, d, x, y, z=None, pk=True, bcast_y=False, neg_y=False, ys=None, zs=None):
    if pk:
        yo = f"s[{ys}:{ys+1}]" if ys is not None else P(y)
        mods = ""
        n = 3 if kind == "fma" else 2
        if bcast_y: mods += " op_sel_hi:[1,0" + (",1" if n == 3 else "") + "]"
        if neg_y: mods += " neg_lo:[0,1" + (",0" if n == 3 else "") + "] neg_hi:[0,1" + (",0" if n == 3 else "") + "]"
        if kind == "fma": a(f"v_pk_fma_f32 {P(d)}, {P(x)}, {yo}, {P(z)}{mods}")
        else: a(f"v_pk_{kind}_f32 {P(d)}, {P(x)}, {yo}{mods}")
        yield
    else:
        for h in range(2):
            yo = f"s{ys}" if ys is not None else f"v{y + (0 if bcast_y else h)}"
            if neg_y: yo = "-" + yo
            if kind == "fma": a(f"v_fma_f32 v{d+h}, v{x+h}, {yo}, v{z+h}")
            elif kind == "mul":
                if ys is not None: a(f"v_mul_f32 v{d+h}, {yo}, v{x+h}")
                else: a(f"v_mul_f32 v{d+h}, v{x+h}, {yo}")
            else:
                if neg_y: a(f"v_sub_f32 v{d+h}, v{x+h}, {yo[1:]}")
                else: a(f"v_add_f32 v{d+h}, v{x+h}, {yo}")
            yield

def reduce_g4_multi(a, xs, ts):
    for op in ("v_permlane16_swap_b32", "v_permlane32_swap_b32"):
        for x, t in zip(xs, ts): a(f"v_mov_b32 v{t}, v{x}"); yield
        for x, t in zip(xs, ts): a(f"{op} v{x}, v{t}"); yield
        for x, t in zip(xs, ts): a(f"v_add_f32 v{x}, v{x}, v{t}"); yield

def ln_finish_gen(a, mean, var, sEps):
    a(f"v_max_f32 v{var}, 0, v{var}"); yield
    a(f"v_cvt_pk_bf16_f32 v{var}, v{var}, v{mean}"); yield
    a(f"v_and_b32 v{mean}, 0xffff0000, v{var}"); yield
    a(f"v_lshlrev_b32 v{var}, 16, v{var}"); yield
    a(f"v_add_f32 v{var}, s{sEps}, v{var}"); yield
    a(f"v_cvt_pk_bf16_f32 v{var}, v{var}, v{var}"); yield
    a(f"v_and_b32 v{var}, 0xffff0000, v{var}"); yield
    a(f"v_sqrt_f32 v{var}, v{var}"); yield
    a(f"v_cvt_pk_bf16_f32 v{var}, v{var}, v{var}"); yield
    a(f"v_and_b32 v{var}, 0xffff0000, v{var}"); yield
    a(f"v_rcp_f32 v{var}, v{var}"); yield

def run(gen):
    for _ in gen: pass

class Filler:
    def __init__(self): self.q = []
    def add(self, g): self.q.append(g)
    def step(self, n=1):
        for _ in range(n):
            while self.q:
                try:
                    next(self.q[0]); break
                except StopIteration:
                    self.q.pop(0)
    def drain(self):
        while self.q:
            run(self.q.pop(0))

def mask(a, n):
    if n >= 64: a("s_mov_b64 exec, -1")
    elif n > 32:
        a("s_mov_b32 exec_lo, -1"); a(f"s_mov_b32 exec_hi, {(1 << (n-32)) - 1:#x}")
    elif n == 32:
        a("s_mov_b32 exec_lo, -1"); a("s_mov_b32 exec_hi, 0")
    else: a(f"s_mov_b64 exec, {(1 << n) - 1:#x}")

Z1L = 73728
SYNC = 161792

def gen_k1(name="k1_kernel", prof=False, fused=False):
    K1X = os.environ.get("K1X", "")
    a = Asm()
    ST = Stamps(a, enabled=prof)
    WSZ = WS_SIZE_DBG if prof else WS_END
    V = Alloc(1, 256, "v")
    sX, sWIN, sK, sV, sSHK, sWS, sDBG, sWSP, sSSM = 4, 8, 12, 16, 20, 24, 28, 32, 36
    sWOU = 84 if not prof else 84
    sRB, sJ, sW, sFH, sSH, sKH, sST0, sST = 40, 41, 42, 43, 44, 45, 46, 47
    sT0, sT1, sT2, sT3 = 48, 49, 50, 51
    sXOFF, sWOFF2, sWOFF1 = 52, 53, 54
    sEPS, sONES, sU = 55, 56, 57
    sNC2 = 58
    sM0X, sM0W = 60, 61
    sZ1B, sKKA, sKKB, sD0 = 62, 63, 64, 65
    sXC, sH = 66, 67
    (sEXW, sEXR, sCSW, sCSR, sXSW, sXSR, sZSW, sZPB, sZRB, sXST, sZ1S0, sZ1S1, sZ1S2, sKVB) = range(70, 84)
    sZ2L = [88, 63]; sZ2G = [64, 67]; sL2B = 66
    a.raw(f".globl {name}\n.p2align 8\n.type {name},@function\n{name}:")
    a(f"s_cmp_ge_u32 s2, 256")
    a(f"s_cbranch_scc1 {name}_end")
    srds = ((sX, 'q', SZ_X), (sWIN, 'win', SZ_WIN), (sK, 'k', SZ_X), (sV, 'v', SZ_X), (sSHK, 'shk', 5120), (sWS, 'ws', WSZ),
            (sDBG, 'dbg', 256), (sWSP, 'wsp', SZ_WSP), (sSSM, 'ssmk', SZ_SSMK), (sWOU, 'wout', SZ_WOUT))
    for srd, key, _ in srds:
        a(f"s_load_dwordx2 s[{srd}:{srd+1}], s[0:1], {KA[key]}")
    ST("start")
    vL = V(); vQ = V(); vP = V()
    t0, t1, t2 = V(), V(), V()
    vKV = V()
    a(f"v_lshrrev_b32 v{vQ}, 6, v0")
    a(f"v_and_b32 v{vL}, 63, v0")
    a(f"v_readfirstlane_b32 s{sW}, v{vQ}")
    a(f"v_lshrrev_b32 v{vQ}, 4, v{vL}")
    a(f"v_and_b32 v{vP}, 15, v{vL}")
    a(f"s_and_b32 s{sT0}, s2, 7")
    a(f"s_lshr_b32 s{sT1}, s2, 3")
    a(f"s_lshr_b32 s{sXC}, s{sT0}, 1")
    a(f"s_and_b32 s{sH}, s{sT0}, 1")
    a(f"s_lshl_b32 s{sRB}, s{sXC}, 3")
    a(f"s_and_b32 s{sT0}, s{sT1}, 7")
    a(f"s_add_u32 s{sRB}, s{sRB}, s{sT0}")
    a(f"s_lshl_b32 s{sJ}, s{sH}, 2")
    a(f"s_lshr_b32 s{sT0}, s{sT1}, 3")
    a(f"s_add_u32 s{sJ}, s{sJ}, s{sT0}")
    a(f"s_mul_i32 s{sXOFF}, s{sRB}, {64*1280}")
    a(f"s_mul_i32 s{sWOFF1}, s{sJ}, 192")
    a(f"s_add_u32 s{sWOFF2}, s{sWOFF1}, {768*2}")
    a(f"s_lshl_b32 s{sM0X}, s{sW}, 11")
    a(f"s_mul_i32 s{sM0W}, s{sW}, 3072")
    for srd, _, size in srds[:2]:
        a(f"s_mov_b32 s{srd+2}, {size}")
        a(f"s_mov_b32 s{srd+3}, {SRD3:#x}")
    TMP = V(28, 4)
    vTO = V()
    vDummy = V()
    vXD = [V(), V()]
    a(f"s_lshl_b32 s{sT0}, s{sW}, 3")
    for i in range(2):
        a(f"v_add_u32 v{t0}, s{sT0}, v{vQ}")
        if i: a(f"v_add_u32 v{t0}, 4, v{t0}")
        a(f"v_and_b32 v{t1}, 15, v{t0}")
        a(f"v_xor_b32 v{t1}, v{t1}, v{vP}")
        a(f"v_mul_u32_u24 v{t0}, 1280, v{t0}")
        a(f"v_lshl_add_u32 v{vXD[i]}, v{t1}, 4, v{t0}")
    vWD = [V(), V(), V()]
    a(f"s_mul_i32 s{sT0}, s{sW}, 192")
    for i in range(3):
        a(f"v_add_u32 v{t0}, s{sT0}, v{vL}")
        if i: a(f"v_add_u32 v{t0}, {64*i}, v{t0}")
        a(f"v_mul_u32_u24 v{t1}, 43691, v{t0}")
        a(f"v_lshrrev_b32 v{t1}, 19, v{t1}")
        a(f"v_mul_u32_u24 v{t2}, 12, v{t1}")
        a(f"v_sub_u32 v{t0}, v{t0}, v{t2}")
        a(f"v_lshrrev_b32 v{t2}, 2, v{t1}")
        a(f"v_and_b32 v{t2}, 2, v{t2}")
        a(f"v_xor_b32 v{t0}, v{t0}, v{t2}")
        a(f"v_mul_u32_u24 v{t1}, 3072, v{t1}")
        a(f"v_lshl_add_u32 v{vWD[i]}, v{t0}, 4, v{t1}")
    sSCX = [90, 91, 92, 93, 94]; sSCW = [95, 96, 97, 98, 99]
    a(f"s_add_u32 s{sT0}, s{sRB}, s{sJ}")
    a(f"s_mul_i32 s{sT1}, s{sT0}, 52")
    a(f"s_lshr_b32 s{sT1}, s{sT1}, 8")
    a(f"s_mul_i32 s{sT1}, s{sT1}, 5")
    a(f"s_sub_u32 s{sT3}, s{sT0}, s{sT1}")
    if "norot" in K1X: a(f"s_mov_b32 s{sT3}, 0")
    if "rot2" in K1X: a(f"s_and_b32 s{sT3}, s{sT0}, 1")
    if "rot4" in K1X: a(f"s_and_b32 s{sT3}, s{sT0}, 3")
    if "rotj" in K1X: a(f"s_and_b32 s{sT3}, s{sJ}, 3")
    if "rotr" in K1X:
        a(f"s_and_b32 s{sT3}, s{sRB}, 1")
        a(f"s_lshl_b32 s{sT3}, s{sT3}, 1")
    def sc_regs(p_):
        a(f"s_add_u32 s{sT1}, s{sT3}, {p_}")
        a(f"s_sub_u32 s{sT2}, s{sT1}, 5")
        a(f"s_cmp_ge_u32 s{sT1}, 5")
        a(f"s_cselect_b32 s{sT1}, s{sT2}, s{sT1}")
        a(f"s_lshl_b32 s{sSCX[p_]}, s{sT1}, 8")
        a(f"s_mul_i32 s{sSCW[p_]}, s{sT1}, {128*3072}")
    sc_regs(0); sc_regs(1)
    x_last = {}; w_last = {}
    def dma_x_g(sc):
        for i in range(2):
            a(f"s_add_u32 s{sD0}, s{sXOFF}, s{sSCX[sc]}")
            a(f"s_add_u32 m0, s{sM0X}, {XR + sc*16384 + i*1024}")
            x_last[sc] = a.vmem(f"buffer_load_dwordx4 v{vXD[i]}, s[{sX}:{sX+3}], s{sD0} offen lds")
            yield
    def wbase(q): return WR + (q % 3)*SLOT
    def dma_w_g(q):
        sc = q % 5
        for i in range(3):
            a(f"s_add_u32 s{sD0}, s{sWOFF2 if q < 5 else sWOFF1}, s{sSCW[sc]}")
            a(f"s_add_u32 m0, s{sM0W}, {wbase(q) + i*1024}")
            w_last[q] = a.vmem(f"buffer_load_dwordx4 v{vWD[i]}, s[{sWIN}:{sWIN+3}], s{sD0} offen lds")
            yield
    def dma_x(sc): run(dma_x_g(sc))
    def dma_w(q): run(dma_w_g(q))
    a("s_waitcnt lgkmcnt(0)")
    ST("kernarg")
    dma_x(0); dma_w(0)
    sTAG = 100
    a(f"s_mov_b32 s{sT0}, {WS_EPO}")
    a(f"s_load_dwordx2 s[{sTAG}:{sTAG+1}], s[{sWS}:{sWS+1}], s{sT0}")
    for p_ in range(2, 5): sc_regs(p_)
    for srd, _, size in srds[2:]:
        a(f"s_mov_b32 s{srd+2}, {size}")
        a(f"s_mov_b32 s{srd+3}, {SRD3:#x}")
    a(f"v_lshlrev_b32 v{vTO}, 7, v{vL}")
    if fused:
        a(f"v_mov_b32 v{t0}, {SYNC}")
        a(f"v_mov_b32 v{TMP}, 0"); a(f"v_mov_b32 v{TMP+1}, 0")
        a.ds(f"ds_write_b64 v{t0}, {P(TMP)}")
    a("s_barrier")
    dma_x(1); dma_w(1)
    def kv_dma():
        a(f"v_mul_u32_u24 v{t0}, 1280, v{vRP}")
        a(f"v_lshl_add_u32 v{t0}, v{vPP}, 4, v{t0}")
        a(f"s_mul_i32 s{sT3}, s{sJ}, 160")
        a(f"s_add_u32 s{sT3}, s{sT3}, s{sXOFF}")
        for rnd in range(3):
            n0 = 8*rnd
            if rnd == 0:
                a(f"s_mul_i32 s{sT0}, s{sW}, {6*1280}")
                a(f"s_add_u32 s{sT0}, s{sT0}, s{sT3}")
                a(f"s_sub_i32 s{sT0}, s{sT0}, {3*1280}")
                a(f"s_cmp_lt_i32 s{sT0}, 0")
                a(f"s_cselect_b32 s{sT1}, {3*1280}, 0")
                a(f"s_add_u32 s{sT0}, s{sT0}, s{sT1}")
                a(f"v_subrev_u32 v{t1}, s{sT1}, v{t0}")
                a(f"s_mul_i32 s{sT2}, s{sW}, 960")
                a(f"s_add_u32 m0, s{sT2}, {KS}")
                mask(a, 60)
                a.vmem(f"buffer_load_dwordx4 v{t1}, s[{sK}:{sK+3}], s{sT0} offen lds")
                mask(a, 64)
            elif rnd == 1:
                lv = a.newlabel("k1_kvv"); le = a.newlabel("k1_kve")
                a(f"s_cmp_ge_u32 s{sW}, 4")
                mask(a, 60)
                a(f"s_cbranch_scc1 {lv}")
                a(f"s_mul_i32 s{sT0}, s{sW}, {6*1280}")
                a(f"s_add_u32 s{sT0}, s{sT0}, s{sT3}")
                a(f"s_add_u32 s{sT0}, s{sT0}, {45*1280}")
                a(f"s_mul_i32 s{sT2}, s{sW}, 960")
                a(f"s_add_u32 m0, s{sT2}, {KS + 8*960}")
                a(f"buffer_load_dwordx4 v{t0}, s[{sK}:{sK+3}], s{sT0} offen lds")
                a(f"s_branch {le}")
                a.label(lv)
                a(f"s_sub_u32 s{sT1}, s{sW}, 4")
                a(f"s_mul_i32 s{sT0}, s{sT1}, {6*1280}")
                a(f"s_add_u32 s{sT0}, s{sT0}, s{sT3}")
                a(f"s_mul_i32 s{sT2}, s{sT1}, 960")
                a(f"s_add_u32 m0, s{sT2}, {VS}")
                a(f"buffer_load_dwordx4 v{t0}, s[{sV}:{sV+3}], s{sT0} offen lds")
                a.label(le)
                a.vm -= 1
                mask(a, 64)
            else:
                a(f"s_add_u32 s{sT1}, s{sW}, 4")
                a(f"s_mul_i32 s{sT0}, s{sT1}, {6*1280}")
                a(f"s_add_u32 s{sT0}, s{sT0}, s{sT3}")
                a(f"s_mul_i32 s{sT2}, s{sT1}, 960")
                a(f"s_add_u32 m0, s{sT2}, {VS}")
                mask(a, 60)
                a.vmem(f"buffer_load_dwordx4 v{t0}, s[{sV}:{sV+3}], s{sT0} offen lds")
                mask(a, 64)
            yield
    lab = a.newlabel("k1_shk")
    a(f"s_cmp_lg_u32 s{sW}, 7")
    a(f"s_cbranch_scc1 {lab}")
    a(f"v_lshlrev_b32 v{t0}, 4, v{vL}")
    a(f"s_mul_i32 s{sT0}, s{sJ}, 640")
    a(f"s_mov_b32 m0, {SHKL}")
    mask(a, 40)
    a(f"buffer_load_dwordx4 v{t0}, s[{sSHK}:{sSHK+3}], s{sT0} offen lds")
    a.vm -= 1
    mask(a, 64)
    a.label(lab)
    a(f"s_and_b32 s{sFH}, s{sW}, 1")
    a(f"s_lshr_b32 s{sSH}, s{sW}, 1")
    a(f"s_and_b32 s{sSH}, s{sSH}, 1")
    a(f"s_lshr_b32 s{sKH}, s{sW}, 2")
    a(f"s_xor_b32 s{sST0}, s{sFH}, s{sKH}")
    a(f"s_lshl_b32 s{sST}, s{sSH}, 1")
    a(f"s_add_u32 s{sST}, s{sST}, s{sST0}")
    a(f"s_mov_b32 s{sEPS}, {f32(1e-5):#x}")
    a(f"s_mov_b32 s{sONES}, 0x3f803f80")
    a(f"s_mov_b32 s{sNC2}, {f32(-C2):#x}")
    a(f"s_mov_b32 s{sNC2+1}, {f32(-C2):#x}")
    vRP = V(); vPP = V()
    _pre = [V(), V(), V()]
    XF = V(80, 4)
    def xf(sc, kk, sl): return XF + ((sc*2 + kk)*2 + sl)*4
    WF = V(48, 4)
    def wf(b, kk, ft): return WF + ((b*2 + kk)*3 + ft)*4
    ACC = V(24, 4)
    def acc(ft, sl): return ACC + (ft*2 + sl)*4
    Z2V = V(12, 4)
    KX = V(4, 4)
    KROW = [XF + 4*r for r in range(5)]
    VROW = [XF + 20, XF + 24]
    vXA = [[_pre[0], _pre[1]], [_pre[2], V()]]
    vWA = [[V(), V(), V()], [V(), V(), V()]]
    a(f"s_lshl_b32 s{sT0}, s{sKH}, 1")
    a(f"s_add_u32 s{sKKA}, s{sT0}, s{sSH}")
    a(f"s_xor_b32 s{sKKB}, s{sKKA}, 1")
    a(f"v_xor_b32 v{t0}, v{vQ}, v{vP}")
    a(f"v_lshlrev_b32 v{t2}, 8, v{vP}")
    a(f"s_lshl_b32 s{sT0}, s{sSH}, 13")
    a(f"s_lshl_b32 s{sT1}, s{sST0}, 12")
    a(f"s_add_u32 s{sT2}, s{sT0}, s{sT1}")
    a(f"s_xor_b32 s{sT1}, s{sT1}, 4096")
    a(f"s_add_u32 s{sT3}, s{sT0}, s{sT1}")
    for kkidx, sKK in ((0, sKKA), (1, sKKB)):
        a(f"s_lshl_b32 s{sT0}, s{sKK}, 2")
        a(f"v_xor_b32 v{t1}, s{sT0}, v{t0}")
        a(f"v_lshl_add_u32 v{t1}, v{t1}, 4, v{t2}")
        a(f"v_add_u32 v{vXA[kkidx][0]}, s{sT2}, v{t1}")
        a(f"v_add_u32 v{vXA[kkidx][1]}, s{sT3}, v{t1}")
    a(f"v_lshrrev_b32 v{t1}, 2, v{vP}")
    a(f"v_lshl_add_u32 v{t0}, v{vQ}, 3, v{t1}")
    a(f"v_mul_u32_u24 v{t0}, 192, v{t0}")
    a(f"v_and_b32 v{t1}, 3, v{vP}")
    a(f"v_lshl_add_u32 v{t0}, v{t1}, 3, v{t0}")
    a(f"v_and_b32 v{t1}, 1, v{vQ}")
    a(f"s_mul_i32 s{sT3}, s{sFH}, 3")
    a(f"s_mul_i32 s{sT1}, s{sKKA}, 6144")
    a(f"s_add_u32 s{sT1}, s{sT1}, {WR}")
    a(f"s_mul_i32 s{sT2}, s{sKKB}, 6144")
    a(f"s_add_u32 s{sT2}, s{sT2}, {WR}")
    for ft in range(3):
        a(f"s_add_u32 s{sT0}, s{sT3}, {ft}")
        a(f"v_xor_b32 v{t2}, s{sT0}, v{t1}")
        a(f"v_lshl_add_u32 v{t2}, v{t2}, 5, v{t0}")
        a(f"v_add_u32 v{vWA[0][ft]}, s{sT1}, v{t2}")
        a(f"v_add_u32 v{vWA[1][ft]}, s{sT2}, v{t2}")
    CSA = V(12, 4)
    XSA = V(4, 4); XQA = V(4, 4)
    ONE = V(4, 4)
    for i in range(4): a(f"v_mov_b32 v{ONE+i}, s{sONES}")
    vC1 = XSA + 2
    vMR = XQA; vM, vR = vMR, vMR + 1
    vRB = XQA + 2
    a(f"v_mul_u32_u24 v{vRP}, 205, v{vL}")
    a(f"v_lshrrev_b32 v{vRP}, 11, v{vRP}")
    a(f"v_mul_u32_u24 v{t0}, 10, v{vRP}")
    a(f"v_sub_u32 v{vPP}, v{vL}, v{t0}")
    a(f"s_lshl_b32 s{sT0}, s{sW}, 3")
    a(f"v_lshl_add_u32 v{t0}, v{vRP}, 1, s{sT0}")
    a(f"v_min_u32 v{t0}, 62, v{t0}")
    a(f"v_mul_u32_u24 v{t0}, 160, v{t0}")
    a(f"v_lshl_add_u32 v{vKV}, v{vPP}, 4, v{t0}")

    kv = {}
    zfin = {}
    EARLY = fused and 'late' not in K1X
    vTO2 = KX + 3
    a(f"v_lshlrev_b32 v{vTO2}, 10, v{vL}")
    def kv_loads():
        a(f"v_add_u32 v{t0}, {KS}, v{vKV}")
        for i in range(5):
            a.ds(f"ds_read_b128 v[{KROW[i]}:{KROW[i]+3}], v{t0} offset:{160*i}")
        a(f"v_add_u32 v{t0}, {VS}, v{vKV}")
        a.ds(f"ds_read_b128 v[{VROW[0]}:{VROW[0]+3}], v{t0}")
        kv['last'] = a.ds(f"ds_read_b128 v[{VROW[1]}:{VROW[1]+3}], v{t0} offset:160")

    def kv_compute():
        KT = XF + 28
        kf = KT; wp = KT + 10; r0 = KT + 18; r1 = KT + 20; vf0 = KT + 22; vf1 = KT + 24; o = KT + 26
        SK = KT + 28
        vTA = vKV
        a.wait_lg(kv['last']); yield
        a(f"v_mul_u32_u24 v{vTA}, {8*144}, v{vPP}"); yield
        a(f"v_lshlrev_b32 v{o}, 2, v{vRP}"); yield
        a(f"v_sub_u32 v{vTA}, v{vTA}, v{o}"); yield
        a(f"s_lshl_b32 s{sT0}, s{sW}, 4")
        a(f"s_add_u32 s{sT0}, s{sT0}, {TB + 12}")
        a(f"v_add_u32 v{vTA}, s{sT0}, v{vTA}"); yield
        a(f"v_lshlrev_b32 v{vPP}, 6, v{vPP}"); yield
        a(f"v_add_u32 v{vPP}, {SHKL}, v{vPP}"); yield
        for i in range(4):
            if i % 2 == 0:
                a.ds(f"ds_read_b128 v[{SK}:{SK+3}], v{vPP} offset:{(i//2)*32}")
                d = a.ds(f"ds_read_b128 v[{SK+4}:{SK+7}], v{vPP} offset:{(i//2)*32 + 16}"); yield
            for r in range(5):
                a(f"v_lshlrev_b32 v{kf+2*r}, 16, v{KROW[r]+i}"); yield
                a(f"v_and_b32 v{kf+2*r+1}, 0xffff0000, v{KROW[r]+i}"); yield
            if i % 2 == 0:
                a.wait_lg(d)
            for t in range(4):
                ra = SK + 2*(2*(i % 2)) + (t >> 1); rb_ = SK + 2*(2*(i % 2) + 1) + (t >> 1)
                if t & 1:
                    a(f"v_and_b32 v{wp+2*t}, 0xffff0000, v{ra}"); yield
                    a(f"v_and_b32 v{wp+2*t+1}, 0xffff0000, v{rb_}"); yield
                else:
                    a(f"v_lshlrev_b32 v{wp+2*t}, 16, v{ra}"); yield
                    a(f"v_lshlrev_b32 v{wp+2*t+1}, 16, v{rb_}"); yield
            for t in range(4):
                for (dst, top) in ((r0, 3), (r1, 4)):
                    if t == 0: yield from pkop(a, "mul", dst, kf+2*top, wp, pk=True)
                    else: yield from pkop(a, "fma", dst, kf+2*(top-t), wp+2*t, dst, pk=True)
            for (vf, rr) in ((vf0, 0), (vf1, 1)):
                a(f"v_lshlrev_b32 v{vf}, 16, v{VROW[rr]+i}"); yield
                a(f"v_and_b32 v{vf+1}, 0xffff0000, v{VROW[rr]+i}"); yield
            yield from pkop(a, "mul", r0, r0, vf0, pk=True)
            yield from pkop(a, "mul", r1, r1, vf1, pk=True)
            a(f"v_cvt_pk_bf16_f32 v{o}, v{r1}, v{r0}"); yield
            a(f"v_cvt_pk_bf16_f32 v{o+1}, v{r1+1}, v{r0+1}"); yield
            a(f"s_mov_b32 exec_hi, 0xff")
            a.ds(f"ds_write_b32 v{vTA}, v{o} offset:{(2*i)*144}")
            a.ds(f"ds_write_b32 v{vTA}, v{o+1} offset:{(2*i+1)*144}")
            a(f"s_mov_b32 exec_hi, -1"); yield

    def kv_store():
        for rnd in range(2):
            T4 = (TMP + 8 + 4*rnd) if EARLY else (XF + 72 + 4*rnd)
            a(f"s_lshl_b32 s{sT0}, s{sW}, 3")
            if rnd: a(f"s_add_u32 s{sT0}, s{sT0}, 64")
            a(f"v_lshrrev_b32 v{t0}, 3, v{vL}")
            a(f"v_add_u32 v{t0}, s{sT0}, v{t0}"); yield
            a(f"v_and_b32 v{t1}, 7, v{vL}")
            a(f"v_lshlrev_b32 v{t1}, 4, v{t1}"); yield
            a(f"v_mul_u32_u24 v{t2}, 144, v{t0}")
            a(f"v_add_u32 v{t2}, v{t2}, v{t1}")
            a(f"v_add_u32 v{t2}, {TB}, v{t2}"); yield
            d = a.ds(f"ds_read_b128 v[{T4}:{T4+3}], v{t2}"); yield
            a(f"v_lshlrev_b32 v{t0}, 12, v{t0}")
            a(f"v_add_u32 v{t0}, v{t0}, v{t1}"); yield
            a.wait_lg(d)
            if rnd == 0:
                a.vmem(f"buffer_store_dwordx4 v[{T4}:{T4+3}], v{t0}, s[{sWS}:{sWS+3}], s{sKVB} offen"); yield
            else:
                lab = a.newlabel("k1_kvskip")
                a(f"s_cmp_ge_u32 s{sW}, 2")
                a(f"s_cbranch_scc1 {lab}")
                a(f"buffer_store_dwordx4 v[{T4}:{T4+3}], v{t0}, s[{sWS}:{sWS+3}], s{sKVB} offen")
                a.vm -= 1
                a.label(lab); yield

    def reads_g(p):
        sc = p % 5; b = p & 1
        so = (p % 3)*SLOT
        for kk in range(2):
            for ft in range(3):
                r = wf(b, kk, ft)
                a.ds(f"ds_read_b64_tr_b16 v[{r}:{r+1}], v{vWA[kk][ft]} offset:{so}"); yield
                a.ds(f"ds_read_b64_tr_b16 v[{r+2}:{r+3}], v{vWA[kk][ft]} offset:{so + 768}"); yield
        if p < 5:
            if p == 4:
                for kk in range(2):
                    for sl in range(2):
                        a(f"v_add_u32 v{vXA[kk][sl]}, 0x10000, v{vXA[kk][sl]}")
            for kk in range(2):
                for sl in range(2):
                    off = XR + (sc*16384 if p < 4 else 0)
                    a.ds(f"ds_read_b128 v[{xf(sc,kk,sl)}:{xf(sc,kk,sl)+3}], v{vXA[kk][sl]} offset:{off}"); yield
    def reads(p): run(reads_g(p))

    def mfmas(p, fill, nfill, dmaf=None):
        sc = p % 5; b = p & 1
        first = (sc == 0)
        ops = []
        for kk in range(2):
            for ft in range(3):
                for sl in range(2):
                    c = "0" if (first and kk == 0) else f"v[{acc(ft,sl)}:{acc(ft,sl)+3}]"
                    ops.append(f"v_mfma_f32_16x16x32_bf16 v[{acc(ft,sl)}:{acc(ft,sl)+3}], v[{wf(b,kk,ft)}:{wf(b,kk,ft)+3}], v[{xf(sc,kk,sl)}:{xf(sc,kk,sl)+3}], {c}")
                if kk == 0:
                    c = "0" if first else f"v[{CSA+4*ft}:{CSA+4*ft+3}]"
                    ops.append(f"v_mfma_f32_16x16x32_bf16 v[{CSA+4*ft}:{CSA+4*ft+3}], v[{wf(b,0,ft)}:{wf(b,0,ft)+3}], v[{ONE}:{ONE+3}], {c}")
            if p < 5:
                x = xf(sc, kk, 0)
                c = "0" if (first and kk == 0) else f"v[{XSA}:{XSA+3}]"
                ops.append(f"v_mfma_f32_16x16x32_bf16 v[{XSA}:{XSA+3}], v[{ONE}:{ONE+3}], v[{x}:{x+3}], {c}")
                c = "0" if (first and kk == 0) else f"v[{XQA}:{XQA+3}]"
                ops.append(f"v_mfma_f32_16x16x32_bf16 v[{XQA}:{XQA+3}], v[{x}:{x+3}], v[{x}:{x+3}], {c}")
        nd = 0
        for oi, o in enumerate(ops):
            a(o)
            if dmaf is not None and oi % 3 == 1: dmaf.step(1)
            fill.step(nfill)
        if dmaf is not None: dmaf.drain()

    def exchange_write(ps, dst):
        T = TMP
        a(f"v_lshl_add_u32 v{t0}, v{vL}, 4, s{sEXW}")
        a(f"v_lshl_add_u32 v{t1}, v{vQ}, 4, s{sCSW}")
        for ft in range(3):
            a.ds(f"ds_write_b128 v{t0}, v[{acc(ft,1)}:{acc(ft,1)+3}] offset:{ft*1024}")
        a(f"s_mov_b32 exec_lo, 0x00010001")
        a(f"s_mov_b32 exec_hi, 0x00010001")
        for ft in range(3):
            a.ds(f"ds_write_b128 v{t1}, v[{CSA+4*ft}:{CSA+4*ft+3}] offset:{ps*1536 + ft*64}")
        a(f"s_mov_b64 exec, -1")
        if ps == 0:
            a(f"v_and_b32 v{T}, 3, v{vP}")
            a(f"v_cmp_eq_u32 vcc, 1, v{T}")
            a(f"v_cndmask_b32 v{XSA+1}, v{XQA}, v{XQA+1}, vcc")
            a(f"v_cmp_eq_u32 vcc, 2, v{T}")
            a(f"v_cndmask_b32 v{XSA+1}, v{XSA+1}, v{XQA+2}, vcc")
            a(f"v_cmp_eq_u32 vcc, 3, v{T}")
            a(f"v_cndmask_b32 v{XSA+1}, v{XSA+1}, v{XQA+3}, vcc")
            a(f"v_lshl_add_u32 v{t2}, v{vP}, 3, s{sXSW}")
            a(f"s_mov_b32 exec_lo, 0x00F0000F")
            a(f"s_mov_b32 exec_hi, 0xF0000F00")
            a.ds(f"ds_write_b64 v{t2}, {P(XSA)}")
            a(f"s_mov_b64 exec, -1")
        for ft in range(3):
            for h in range(2):
                a(f"v_pk_add_f32 {P(dst+4*ft+2*h)}, {P(acc(ft,0)+2*h)}, 0")
        if ps == 0:
            a(f"v_mov_b32 v{vC1}, {f32(-C1):#x}"); a(f"v_mov_b32 v{vC1+1}, {f32(-C1):#x}")

    def fold_gelu(ps, dst, E, X, C):
        a(f"v_lshl_add_u32 v{t0}, v{vL}, 4, s{sEXR}")
        if ps == 0:
            a(f"v_lshl_add_u32 v{t1}, v{vP}, 3, s{sXSR}")
            a.ds(f"ds_read_b64 {P(X)}, v{t1}")
            dx = a.ds(f"ds_read_b64 {P(X+2)}, v{t1} offset:128")
        ids = [a.ds(f"ds_read_b128 v[{E+4*ft}:{E+4*ft+3}], v{t0} offset:{ft*1024}") for ft in range(3)]
        a(f"v_lshl_add_u32 v{t2}, v{vQ}, 4, s{sCSR}")
        cid = []
        for q in range(4):
            for ft in range(3):
                cid.append(a.ds(f"ds_read_b128 v[{C[q]+4*ft}:{C[q]+4*ft+3}], v{t2} offset:{ps*1536 + q*192 + ft*64}"))
        if ps == 0:
            a.wait_lg(dx)
            a(f"v_pk_add_f32 {P(vMR)}, {P(X)}, {P(X+2)}")
            a(f"v_mul_f32 v{vM}, {f32(1.0/640):#x}, v{vM}")
            a(f"v_mul_f32 v{vR}, {f32(1.0/640):#x}, v{vR}")
            a(f"v_fma_f32 v{vR}, -v{vM}, v{vM}, v{vR}")
            run(ln_finish_gen(a, vM, vR, sEPS))
            a(f"v_mov_b32 v{vRB}, v{vR}")
        a.wait_lg(ids[2])
        for i in range(0, 12, 2): a(f"v_pk_add_f32 {P(dst+i)}, {P(dst+i)}, {P(E+i)}")
        a.wait_lg(cid[5])
        for i in range(0, 12, 2): a(f"v_pk_add_f32 {P(C[0]+i)}, {P(C[0]+i)}, {P(C[1]+i)}")
        a.wait_lg(cid[11])
        for i in range(0, 12, 2): a(f"v_pk_add_f32 {P(C[2]+i)}, {P(C[2]+i)}, {P(C[3]+i)}")
        for i in range(0, 12, 2): a(f"v_pk_add_f32 {P(C[0]+i)}, {P(C[0]+i)}, {P(C[2]+i)}")
        for i in range(0, 12, 2):
            a(f"v_pk_fma_f32 {P(dst+i)}, {P(C[0]+i)}, {P(vMR)}, {P(dst+i)} op_sel_hi:[1,0,1] neg_lo:[0,1,0] neg_hi:[0,1,0]")
        for i in range(0, 12, 2): a(f"v_pk_mul_f32 {P(dst+i)}, {P(dst+i)}, {P(vRB)} op_sel_hi:[1,0]")
        T = E
        for i in range(0, 12, 2): a(f"v_pk_mul_f32 {P(T+i)}, {P(dst+i)}, {P(dst+i)}")
        for i in range(0, 12, 2): a(f"v_pk_fma_f32 {P(T+i)}, {P(T+i)}, s[{sNC2}:{sNC2+1}], {P(vC1)}")
        for i in range(0, 12, 2): a(f"v_pk_mul_f32 {P(T+i)}, {P(T+i)}, {P(dst+i)}")
        for i in range(12): a(f"v_exp_f32 v{T+i}, v{T+i}")
        for i in range(0, 12, 2): a(f"v_pk_add_f32 {P(T+i)}, {P(T+i)}, 1.0 op_sel_hi:[1,0]")
        for i in range(12): a(f"v_rcp_f32 v{T+i}, v{T+i}")
        for i in range(0, 12, 2): a(f"v_pk_mul_f32 {P(dst+i)}, {P(dst+i)}, {P(T+i)}")

    def z2_stats():
        T = TMP
        a(f"v_pk_add_f32 {P(T+6)}, {P(Z2V)}, {P(Z2V+2)}"); yield
        a(f"v_pk_mul_f32 {P(T+8)}, {P(Z2V)}, {P(Z2V)}"); yield
        a(f"v_pk_add_f32 {P(T+10)}, {P(Z2V+4)}, {P(Z2V+6)}"); yield
        a(f"v_pk_fma_f32 {P(T+8)}, {P(Z2V+2)}, {P(Z2V+2)}, {P(T+8)}"); yield
        a(f"v_pk_add_f32 {P(T+12)}, {P(Z2V+8)}, {P(Z2V+10)}"); yield
        a(f"v_pk_fma_f32 {P(T+8)}, {P(Z2V+4)}, {P(Z2V+4)}, {P(T+8)}"); yield
        a(f"v_pk_add_f32 {P(T+6)}, {P(T+6)}, {P(T+10)}"); yield
        a(f"v_pk_fma_f32 {P(T+8)}, {P(Z2V+6)}, {P(Z2V+6)}, {P(T+8)}"); yield
        a(f"v_pk_add_f32 {P(T+6)}, {P(T+6)}, {P(T+12)}"); yield
        a(f"v_pk_fma_f32 {P(T+8)}, {P(Z2V+8)}, {P(Z2V+8)}, {P(T+8)}"); yield
        a(f"v_pk_fma_f32 {P(T+8)}, {P(Z2V+10)}, {P(Z2V+10)}, {P(T+8)}"); yield
        a(f"v_add_f32 v{T}, v{T+6}, v{T+7}"); yield
        a(f"v_add_f32 v{T+1}, v{T+8}, v{T+9}"); yield
        a(f"v_lshl_add_u32 v{t0}, v{vP}, 3, s{sZSW}"); yield
        yield from reduce_g4_multi(a, [T, T+1], [T+4, T+5])
        a(f"s_mov_b64 exec, 0xffff")
        a.ds(f"ds_write_b64 v{t0}, {P(T)}")
        a(f"s_mov_b64 exec, -1"); yield

    def xst_store():
        a(f"s_or_b32 s{sT0}, s{sJ}, s{sFH}")
        a(f"s_cmp_eq_u32 s{sT0}, 0")
        a(f"v_lshlrev_b32 v{t0}, 3, v{vP}")
        a(f"s_cselect_b64 exec, 0xffff, 0")
        a.vmem(f"buffer_store_dwordx2 {P(vMR)}, v{t0}, s[{sWS}:{sWS+3}], s{sXST} offen" + (" sc1" if fused else ""))
        a(f"s_mov_b64 exec, -1")
        yield

    sGU = 89
    a(f"s_lshl_b32 s{sGU}, s2, 3")
    a(f"s_add_u32 s{sGU}, s{sGU}, s{sW}")
    def mall_touch(srd, nper, first, count):
        if "nomall" in K1X: return
        a(f"s_mul_i32 s{sT0}, s{sGU}, {nper*128}")
        a(f"s_add_u32 s{sT0}, s{sT0}, {first*128}")
        mask(a, count)
        a.vmem(f"buffer_load_dword v{vDummy}, v{vTO}, s[{srd}:{srd+3}], s{sT0} offen")
        mask(a, 64)

    def l2_touch_wsp(i):
        a(f"s_add_u32 s{sT0}, s{sL2B}, {i*128}")
        mask(a, 8)
        a.vmem(f"buffer_load_dword v{vDummy}, v{vTO2}, s[{sWSP}:{sWSP+3}], s{sT0} offen")
        mask(a, 64)

    def epoch_load():
        a(f"v_mov_b32 v{KX+2}, {WS_EPO}")
        zfin['ep'] = a.vmem(f"buffer_load_dwordx2 {P(KX)}, v{KX+2}, s[{sWS}:{sWS+3}], 0 offen sc1")

    def gen1(f):
        f(); yield

    SP = TMP + 20
    vFA = vXD[0]
    vDummy2 = vPP
    def stats_load():
        a(f"v_lshlrev_b32 v{vFA}, 4, v{vP}")
        a(f"v_lshl_add_u32 v{vFA}, v{vQ}, 11, v{vFA}")
        a.vmem(f"buffer_load_dwordx4 v[{SP}:{SP+3}], v{vFA}, s[{sWS}:{sWS+3}], s{sZRB} offen sc1")
        zfin['sp'] = a.vmem(f"buffer_load_dwordx4 v[{SP+4}:{SP+7}], v{vFA}, s[{sWS}:{sWS+3}], s{sZRB} offen offset:1024 sc1")
    def stats_check():
        a.wait_vm(zfin['sp'])
        lp = a.newlabel("k1_poll"); lp2 = a.newlabel("k1_polled")
        a(f"s_mov_b32 s{sD0}, 0")
        a.label(lp)
        a(f"s_add_u32 s{sD0}, s{sD0}, 1")
        a(f"s_cmp_gt_u32 s{sD0}, 100000")
        a(f"s_cbranch_scc1 {lp2}")
        a(f"v_cmp_ne_u32 vcc, s{sTAG}, v{SP+2}")
        a(f"v_cmp_ne_u32 s[{sT2}:{sT2+1}], s{sTAG+1}, v{SP+3}")
        a(f"s_or_b64 vcc, vcc, s[{sT2}:{sT2+1}]")
        a(f"v_cmp_ne_u32 s[{sT2}:{sT2+1}], s{sTAG}, v{SP+6}")
        a(f"s_or_b64 vcc, vcc, s[{sT2}:{sT2+1}]")
        a(f"v_cmp_ne_u32 s[{sT2}:{sT2+1}], s{sTAG+1}, v{SP+7}")
        a(f"s_or_b64 vcc, vcc, s[{sT2}:{sT2+1}]")
        if 'nopoll' in K1X: a("s_mov_b64 vcc, 0")
        a(f"s_cmp_eq_u64 vcc, 0")
        a(f"s_cbranch_scc1 {lp2}")
        a("s_sleep 4")
        a(f"buffer_load_dwordx4 v[{SP}:{SP+3}], v{vFA}, s[{sWS}:{sWS+3}], s{sZRB} offen sc1")
        a(f"buffer_load_dwordx4 v[{SP+4}:{SP+7}], v{vFA}, s[{sWS}:{sWS+3}], s{sZRB} offen offset:1024 sc1")
        a.vm -= 2
        a("s_waitcnt vmcnt(0)")
        a(f"s_branch {lp}")
        a.label(lp2)
    def z2_normalize():
        vZW = vRP
        a(f"s_lshl_b32 s{sT0}, s{sST}, 4")
        a(f"v_add_u32 v{vZW}, s{sT0}, v{vP}")
        a(f"v_mul_u32_u24 v{vZW}, 200, v{vZW}")
        a(f"v_lshl_add_u32 v{vZW}, v{vQ}, 3, v{vZW}")
        a(f"s_mul_i32 s{sT0}, s{sFH}, 96")
        a(f"s_add_u32 s{sT0}, s{sT0}, {ZT}")
        a(f"v_add_u32 v{vZW}, s{sT0}, v{vZW}")
        stats_check()
        lab = a.newlabel("k1_ep")
        a(f"s_xor_b32 s{sT0}, s{sW}, 1")
        a(f"s_or_b32 s{sT0}, s{sT0}, s{sJ}")
        a(f"s_cmp_lg_u32 s{sT0}, 0")
        a(f"s_cbranch_scc1 {lab}")
        a(f"v_mov_b32 v{t0}, 0")
        a(f"v_mov_b32 v{vDummy2}, 1")
        a(f"s_mov_b64 exec, 1")
        a(f"buffer_atomic_add v{vDummy2}, v{t0}, s[{sDBG}:{sDBG+3}], 0 offen sc0")
        a(f"s_mov_b64 exec, -1")
        a.vm -= 1
        a.label(lab)
        mq = TMP
        a(f"v_pk_add_f32 {P(mq)}, {P(SP)}, {P(SP+4)}")
        run(reduce_g4_multi(a, [mq, mq+1], [TMP+2, TMP+3]))
        a(f"v_mul_f32 v{mq}, {f32(1.0/768):#x}, v{mq}")
        a(f"v_mul_f32 v{mq+1}, {f32(1.0/768):#x}, v{mq+1}")
        a(f"v_fma_f32 v{mq+1}, -v{mq}, v{mq}, v{mq+1}")
        run(ln_finish_gen(a, mq, mq+1, sEPS))
        a(f"v_mov_b32 v{TMP+2}, v{mq+1}")
        for i in range(0, 12, 2):
            a(f"v_pk_add_f32 {P(Z2V+i)}, {P(Z2V+i)}, {P(mq)} op_sel_hi:[1,0] neg_lo:[0,1] neg_hi:[0,1]")
        for i in range(0, 12, 2):
            a(f"v_pk_mul_f32 {P(Z2V+i)}, {P(Z2V+i)}, {P(TMP+2)} op_sel_hi:[1,0]")
        for ft in range(3):
            a(f"v_cvt_pk_bf16_f32 v{TMP+8+2*ft}, v{Z2V+4*ft}, v{Z2V+4*ft+1}")
            a(f"v_cvt_pk_bf16_f32 v{TMP+8+2*ft+1}, v{Z2V+4*ft+2}, v{Z2V+4*ft+3}")
            a.ds(f"ds_write_b64 v{vZW}, {P(TMP+8+2*ft)} offset:{32*ft}")

    PUB = int(os.environ.get("PUB", "6"))
    NF5 = int(os.environ.get("NF5", "5"))
    vZR = KX; vZS = KX + 1
    def z2_addr():
        pass
        a(f"v_lshrrev_b32 v{vZR}, 1, v{vQ}")
        a(f"v_lshrrev_b32 v{t1}, 2, v{vP}")
        a(f"v_lshl_add_u32 v{vZR}, v{vZR}, 3, v{t1}")
        a(f"v_mul_u32_u24 v{vZR}, 200, v{vZR}")
        a(f"v_and_b32 v{t1}, 1, v{vQ}")
        a(f"v_lshl_add_u32 v{vZR}, v{t1}, 5, v{vZR}")
        a(f"v_and_b32 v{t1}, 3, v{vP}")
        a(f"v_lshl_add_u32 v{vZR}, v{t1}, 3, v{vZR}")
        a(f"v_lshlrev_b32 v{vZS}, 4, v{vL}")
    def z2_frag_stores():
        for rnd in range(2):
            lab = None
            if rnd == 1:
                lab = a.newlabel("k1_fr")
                a(f"s_cmp_ge_u32 s{sW}, 4")
                a(f"s_cbranch_scc1 {lab}")
            a(f"v_add_u32 v{t1}, s{sZ2L[rnd]}, v{vZR}")
            Tq = TMP + 4*rnd
            a(f"ds_read_b64_tr_b16 {P(Tq)}, v{t1}")
            a(f"ds_read_b64_tr_b16 {P(Tq+2)}, v{t1} offset:800")
            a("s_waitcnt lgkmcnt(0)")
            a(f"buffer_store_dwordx4 v[{Tq}:{Tq+3}], v{vZS}, s[{sWS}:{sWS+3}], s{sZ2G[rnd]} offen")
            if lab: a.label(lab)
    def publish_f1():
        a(f"s_lshl_b32 s{sT0}, s{sJ}, 8")
        a(f"s_lshl_b32 s{sT1}, s{sRB}, 3")
        a(f"s_add_u32 s{sT0}, s{sT0}, s{sT1}")
        a(f"s_add_u32 s{sT0}, s{sT0}, {WS_F1}")
        a(f"v_mov_b32 v{TMP}, s{sTAG}")
        a(f"v_mov_b32 v{TMP+1}, s{sTAG+1}")
        a(f"v_mov_b32 v{t0}, 0")
        a(f"s_cmp_eq_u32 s{sW}, 0")
        a(f"s_cselect_b64 exec, 1, 0")
        a(f"buffer_store_dwordx2 {P(TMP)}, v{t0}, s[{sWS}:{sWS+3}], s{sT0} offen sc1")
        a(f"s_mov_b64 exec, -1")

    fill = Filler()
    A, B, C_ = sT0, sT1, sT2
    a(f"s_mul_i32 s{sEXW}, s{sW}, 3072"); a(f"s_add_u32 s{sEXW}, s{sEXW}, {EX}")
    a(f"s_xor_b32 s{A}, s{sW}, 4"); a(f"s_mul_i32 s{sEXR}, s{A}, 3072"); a(f"s_add_u32 s{sEXR}, s{sEXR}, {EX}")
    a(f"s_lshl_b32 s{A}, s{sFH}, 2"); a(f"s_lshl_b32 s{B}, s{sSH}, 1"); a(f"s_add_u32 s{A}, s{A}, s{B}"); a(f"s_add_u32 s{A}, s{A}, s{sKH}")
    a(f"s_mul_i32 s{sCSW}, s{A}, 192"); a(f"s_add_u32 s{sCSW}, s{sCSW}, {CSUM}")
    a(f"s_mul_i32 s{sCSR}, s{sFH}, 768"); a(f"s_add_u32 s{sCSR}, s{sCSR}, {CSUM}")
    a(f"s_lshl_b32 s{A}, s{sST}, 1"); a(f"s_add_u32 s{A}, s{A}, s{sKH}"); a(f"s_lshl_b32 s{A}, s{A}, 7"); a(f"s_add_u32 s{sXSW}, s{A}, {XSUM}")
    a(f"s_lshl_b32 s{A}, s{sST}, 8"); a(f"s_add_u32 s{sXSR}, s{A}, {XSUM}")
    a(f"s_lshl_b32 s{A}, s{sST}, 7"); a(f"s_lshl_b32 s{B}, s{sFH}, 9"); a(f"s_add_u32 s{A}, s{A}, s{B}"); a(f"s_add_u32 s{sZSW}, s{A}, {ZSUM}")
    a(f"s_lshl_b32 s{A}, s{sRB}, 3"); a(f"s_add_u32 s{A}, s{A}, s{sJ}"); a(f"s_lshl_b32 s{B}, s{A}, 10"); a(f"s_add_u32 s{sZPB}, s{B}, {WS_ZST}")
    if fused: a(f"s_mov_b32 s{A}, 0")
    else: a(f"s_mul_i32 s{A}, s{A}, 12288")
    a(f"s_lshr_b32 s{B}, s{sST}, 1"); a(f"s_mul_i32 s{B}, s{B}, 6144"); a(f"s_add_u32 s{A}, s{A}, s{B}")
    a(f"s_and_b32 s{B}, s{sST}, 1"); a(f"s_lshl_b32 s{B}, s{B}, 8"); a(f"s_add_u32 s{A}, s{A}, s{B}"); a(f"s_add_u32 s{A}, s{A}, {Z1L if fused else WS_Z1F}")
    for ft, dst in enumerate((sZ1S0, sZ1S1, sZ1S2)):
        a(f"s_mul_i32 s{B}, s{sFH}, 3"); a(f"s_add_u32 s{B}, s{B}, {ft}")
        a(f"s_lshr_b32 s{C_}, s{B}, 1"); a(f"s_lshl_b32 s{C_}, s{C_}, 10"); a(f"s_and_b32 s{B}, s{B}, 1"); a(f"s_lshl_b32 s{B}, s{B}, 3")
        a(f"s_add_u32 s{dst}, s{A}, s{B}"); a(f"s_add_u32 s{dst}, s{dst}, s{C_}")
    a(f"s_lshl_b32 s{A}, s{sRB}, 13"); a(f"s_lshl_b32 s{B}, s{sST}, 8"); a(f"s_add_u32 s{A}, s{A}, s{B}"); a(f"s_add_u32 s{sZRB}, s{A}, {WS_ZST}")
    a(f"s_lshl_b32 s{A}, s{sRB}, 9"); a(f"s_lshl_b32 s{B}, s{sST}, 7"); a(f"s_add_u32 s{A}, s{A}, s{B}"); a(f"s_add_u32 s{sXST}, s{A}, {WS_XST}")
    a(f"s_mul_i32 s{A}, s{sJ}, {80*4096}"); a(f"s_lshl_b32 s{B}, s{sRB}, 7"); a(f"s_add_u32 s{A}, s{A}, s{B}"); a(f"s_add_u32 s{sKVB}, s{A}, {WS_KVT}")
    a(f"s_lshr_b32 s{A}, s2, 3"); a(f"s_lshl_b32 s{A}, s{A}, 3"); a(f"s_add_u32 s{A}, s{A}, s{sW}"); a(f"s_lshl_b32 s{A}, s{A}, 13")
    a(f"s_lshl_b32 s{B}, s{sXC}, 21"); a(f"s_add_u32 s{sL2B}, s{A}, s{B}")
    for rnd in range(2):
        a(f"s_add_u32 s{sT3}, s{sW}, {8*rnd}")
        a(f"s_mul_i32 s{A}, s{sT3}, 43"); a(f"s_lshr_b32 s{A}, s{A}, 7")
        a(f"s_mul_i32 s{B}, s{A}, 3"); a(f"s_sub_u32 s{B}, s{sT3}, s{B}")
        a(f"s_mul_i32 s{A}, s{A}, {16*200}"); a(f"s_lshl_b32 s{B}, s{B}, 6"); a(f"s_add_u32 s{A}, s{A}, s{B}")
        a(f"s_add_u32 s{sZ2L[rnd]}, s{A}, {ZT}")
        a(f"s_lshl_b32 s{A}, s{sJ}, 7"); a(f"s_lshl_b32 s{B}, s{sRB}, 2"); a(f"s_add_u32 s{A}, s{A}, s{B}"); a(f"s_mul_i32 s{A}, s{A}, 3")
        a(f"s_add_u32 s{A}, s{A}, s{sT3}"); a(f"s_lshl_b32 s{A}, s{A}, 10"); a(f"s_add_u32 s{sZ2G[rnd]}, s{A}, {WS_Z2F}")
    if "pro" in K1X: ST("setup")
    a.wait_vm(max(w_last[0], x_last[0]))
    if "pro" in K1X: ST("w0arr")
    a("s_waitcnt lgkmcnt(0)")
    a(f"s_add_u32 s{sTAG}, s{sTAG}, 1")
    a(f"s_addc_u32 s{sTAG+1}, s{sTAG+1}, 0")
    a("s_barrier")
    ST("d0")
    reads(0)
    dma_x(2); dma_w(2)
    for p in range(10):
        a.comment(f"---------------- iteration {p}")
        if p + 1 < 10:
            need = w_last[p+1]
            if p + 1 < 5: need = max(need, x_last[p+1])
            a.wait_vm(need)
        if "f5" in K1X and p in (5, 6): ST(f"w{p}")
        a("s_waitcnt lgkmcnt(0)")
        a("s_barrier")
        if ("pro" not in K1X or p < 2) and ("pubst" not in K1X or p in (6, 7, 8, 9)): ST(f"i{p}")
        if p == PUB:
            lab = a.newlabel("k1_pub")
            a(f"s_cmp_lg_u32 s{sW}, 0")
            a(f"s_cbranch_scc1 {lab}")
            a(f"v_lshlrev_b32 v{t0}, 3, v{vL}")
            a(f"v_add_u32 v{t1}, {ZSUM}, v{t0}")
            a(f"ds_read_b64 {P(TMP)}, v{t1}")
            a(f"ds_read_b64 {P(TMP+4)}, v{t1} offset:512")
            a(f"v_lshlrev_b32 v{t0}, 4, v{vL}")
            a(f"v_mov_b32 v{TMP+2}, s{sTAG}")
            a(f"v_mov_b32 v{TMP+3}, s{sTAG+1}")
            a("s_waitcnt lgkmcnt(0)")
            a(f"v_pk_add_f32 {P(TMP)}, {P(TMP)}, {P(TMP+4)}")
            a.lg -= 2
            a.label(lab)
            a(f"s_cmp_eq_u32 s{sW}, 0")
            a(f"s_cselect_b64 exec, -1, 0")
            a.vmem(f"buffer_store_dwordx4 v[{TMP}:{TMP+3}], v{t0}, s[{sWS}:{sWS+3}], s{sZPB} offen sc1")
            a(f"s_mov_b64 exec, -1")
        if p + 1 < 10 and "nocomp" not in K1X:
            if "rdfirst" in K1X: reads(p + 1)
            else: fill.add(reads_g(p + 1))
        dmaf = Filler()
        if p + 3 < 5: dmaf.add(dma_x_g(p + 3))
        if p + 3 < 10: dmaf.add(dma_w_g(p + 3))
        if p == int(os.environ.get("KVD", "5")): dmaf.add(kv_dma())
        sched = {"a": {1:[0],2:[1],3:[2],4:[3],5:[4],6:[5],7:[6],8:[7]},
                 "b": {5:[0,1],6:[2,3],7:[4,5],8:[6,7]},
                 "c": {4:[0],5:[1],6:[2,3],7:[4,5],8:[6,7]},
                 "d": {6:[0,1,2],7:[3,4,5],8:[6,7]},
                 "e": {7:[0,1,2,3],8:[4,5,6,7]}}[os.environ.get("L2S", "a")]
        for i_ in sched.get(p, []):
            if "l2pf" in K1X: dmaf.add(gen1(lambda i_=i_: l2_touch_wsp(i_)))
            else: dmaf.add(gen1(lambda i_=i_: mall_touch(sWSP, 32, i_*4, 4)))
        if p in (2, 5): dmaf.add(gen1(lambda p=p: mall_touch(sSSM, 10, 0 if p == 2 else 5, 5)))
        if p == 7 and "nowo" not in K1X: dmaf.add(gen1(lambda: mall_touch(sWOU, 4, 0, 4)))
        if p == (8 if EARLY else int(os.environ.get('SLD', '9'))): stats_load()
        if p == 9 and EARLY:
            z2_frag_stores()
            run(kv_store())
        nf = 0 if "rdfirst" in K1X else 2
        if p == 5:
            if "f5" in K1X: ST("f5a")
            fold_gelu(0, Z2V, TMP, TMP+12, [TMP+16, ACC, ACC+12, CSA])
            if "f5" in K1X: ST("f5b")
            run(z2_stats()); run(xst_store())
            if "f5" in K1X: ST("f5c")
        if "nocomp" in K1X:
            dmaf.drain(); fill.q = []
        else:
            mfmas(p, fill, nf, dmaf)
            fill.drain()
        if "f5" in K1X and p in (4, 5): ST(f"f{p}m")
        if p == 4: exchange_write(0, Z2V)
        if p == 8 and EARLY:
            kv_loads()
            run(kv_compute())
            z2_normalize()
            z2_addr()
        if p == 9:
            if "f5" in K1X: ST("f9m")
            exchange_write(1, WF)
            if not EARLY:
                kv_loads()
                run(kv_compute())
                if "f5" in K1X: ST("f9k")
                z2_normalize()
    ST("loop")
    if not EARLY:
        z2_addr()
        a("s_waitcnt lgkmcnt(0)")
        a("s_barrier")
        ST("bar")
        z2_frag_stores()
        run(kv_store())
    else:
        a("s_waitcnt vmcnt(0) lgkmcnt(0)")
        a("s_barrier")
        ST("bar")
        publish_f1()
    Z1V = WF
    T2 = XF
    fold_gelu(1, Z1V, T2, T2+12, [T2+16, T2+28, T2+40, T2+52])
    a(f"v_lshrrev_b32 v{t0}, 1, v{vQ}")
    a(f"v_mul_u32_u24 v{t0}, 3072, v{t0}")
    a(f"v_and_b32 v{t1}, 1, v{vQ}")
    a(f"v_lshlrev_b32 v{t1}, 5, v{t1}")
    a(f"v_add_u32 v{t1}, v{t1}, v{vP}")
    a(f"v_lshl_add_u32 v{t0}, v{t1}, 4, v{t0}")
    for ft in range(3):
        a(f"v_cvt_pk_bf16_f32 v{T2+2*ft}, v{Z1V+4*ft}, v{Z1V+4*ft+1}")
        a(f"v_cvt_pk_bf16_f32 v{T2+2*ft+1}, v{Z1V+4*ft+2}, v{Z1V+4*ft+3}")
        if fused:
            a(f"v_add_u32 v{t1}, s{[sZ1S0, sZ1S1, sZ1S2][ft]}, v{t0}")
            a.ds(f"ds_write_b64 v{t1}, {P(T2+2*ft)}")
        else:
            a.vmem(f"buffer_store_dwordx2 {P(T2+2*ft)}, v{t0}, s[{sWS}:{sWS+3}], s{[sZ1S0, sZ1S1, sZ1S2][ft]} offen")
    lab = a.newlabel("k1_ep2")
    a(f"s_xor_b32 s{sT0}, s{sW}, 1")
    a(f"s_or_b32 s{sT0}, s{sT0}, s{sJ}")
    a(f"s_cmp_lg_u32 s{sT0}, 0")
    a(f"s_cbranch_scc1 {lab}")
    a("s_waitcnt vmcnt(0)")
    a(f"v_readfirstlane_b32 s{sT0}, v{vDummy2}")
    a(f"s_cmp_lg_u32 s{sT0}, 31")
    a(f"s_cbranch_scc1 {lab}")
    a(f"v_mov_b32 v{TMP}, s{sTAG}")
    a(f"v_mov_b32 v{TMP+1}, s{sTAG+1}")
    a(f"v_mov_b32 v{t0}, {WS_EPO}")
    a(f"s_mov_b64 exec, 1")
    a(f"buffer_store_dwordx2 {P(TMP)}, v{t0}, s[{sWS}:{sWS+3}], 0 offen sc1")
    a(f"s_mov_b64 exec, -1")
    a.label(lab)
    if fused and EARLY:
        a("s_waitcnt lgkmcnt(0)")
        a("s_barrier")
    if fused and not EARLY:
        a("s_waitcnt vmcnt(0) lgkmcnt(0)")
        a("s_barrier")
        a(f"s_lshl_b32 s{sT0}, s{sJ}, 8")
        a(f"s_lshl_b32 s{sT1}, s{sRB}, 3")
        a(f"s_add_u32 s{sT0}, s{sT0}, s{sT1}")
        a(f"s_add_u32 s{sT0}, s{sT0}, {WS_F1}")
        a(f"v_mov_b32 v{TMP}, s{sTAG}")
        a(f"v_mov_b32 v{TMP+1}, s{sTAG+1}")
        a(f"v_mov_b32 v{t0}, 0")
        a(f"s_cmp_eq_u32 s{sW}, 0")
        a(f"s_cselect_b64 exec, 1, 0")
        a(f"buffer_store_dwordx2 {P(TMP)}, v{t0}, s[{sWS}:{sWS+3}], s{sT0} offen sc1")
        a(f"s_mov_b64 exec, -1")
    ST("end")
    ST.dump(sWS, sW, t0, t1, WS_DBG)
    gen_k1.stamp_names = ST.names
    if fused:
        if "st2" not in K1X: raise SystemExit("fused needs st2")
        a.items = [(k, (t + " sc1") if (k == "i" and t.startswith("buffer_store_dwordx4") and " sc1" not in t) else t) for k, t in a.items]
        return a, V.hi, sW
    a.label(f"{name}_end")
    a("s_endpgm")
    if "st2" in K1X:
        a.items = [(k, (t + " sc1") if (k == "i" and t.startswith("buffer_store_dwordx4") and " sc1" not in t) else t) for k, t in a.items]
    if "st1" in K1X:
        a.items = [(k, (t + " sc1") if (k == "i" and t.startswith("buffer_store") and " sc1" not in t) else t) for k, t in a.items]
    gen_k1.ninstr = sum(1 for k, _ in a.items if k == "i")
    return a.finish(), V.hi
```

```python
from dsl import *
from layout import *
from k1 import f32, Filler, run, mask, P
import os
WO = 0; XT = 122880; YTL = 133120; OT = 143360; LDS = 153600
LOG2E = 1.4426950408889634

def gen_k3(name="k3_kernel", prof=False, fa=None):
    K3X = os.environ.get("K3X", "")
    F3 = fa is not None
    SC = " sc1" if F3 else ""
    a = fa if F3 else Asm()
    ST = Stamps(a, enabled=prof)
    V = Alloc(1, 255, "v")
    sX, sWS, sOUT = 8, 12, 16
    sRB, sDJ, sW = 32, 33, 34
    sT0, sT1, sT2, sT3 = 40, 41, 42, 43
    sCOL, sXB, sWB, sPB, sROT = 44, 45, 46, 47, 48
    if not F3:
        a.raw(f".globl {name}\n.p2align 8\n.type {name},@function\n{name}:")
        a(f"s_cmp_ge_u32 s2, 256")
        a(f"s_cbranch_scc1 {name}_end")
    a(f"s_load_dwordx2 s[{sWS}:{sWS+1}], s[0:1], {KA['ws']}")
    a(f"s_load_dwordx2 s[{sX}:{sX+1}], s[0:1], {KA['q']}")
    a(f"s_load_dwordx2 s[{sOUT}:{sOUT+1}], s[0:1], {KA['out']}")
    ST("k3start")
    for srd, size in ((sX, SZ_X), (sWS, WS_SIZE_DBG if prof else WS_END), (sOUT, SZ_X)):
        a(f"s_mov_b32 s{srd+2}, {size}")
        a(f"s_mov_b32 s{srd+3}, {SRD3:#x}")
    vL, vQ, vP = V(), V(), V(); t0, t1, t2 = V(), V(), V()
    a(f"v_lshrrev_b32 v{t0}, 6, v0")
    a(f"v_and_b32 v{vL}, 63, v0")
    a(f"v_readfirstlane_b32 s{sW}, v{t0}")
    vZ = V()
    a(f"v_lshlrev_b32 v{vZ}, 4, v{vL}")
    a(f"s_and_b32 s{sT0}, s2, 7")
    a(f"s_lshr_b32 s{sT1}, s2, 3")
    a(f"s_lshr_b32 s{sRB}, s{sT0}, 1")
    a(f"s_lshl_b32 s{sRB}, s{sRB}, 3")
    a(f"s_and_b32 s{sT2}, s{sT1}, 7")
    a(f"s_add_u32 s{sRB}, s{sRB}, s{sT2}")
    a(f"s_and_b32 s{sDJ}, s{sT0}, 1")
    a(f"s_lshl_b32 s{sDJ}, s{sDJ}, 2")
    a(f"s_lshr_b32 s{sT2}, s{sT1}, 3")
    a(f"s_add_u32 s{sDJ}, s{sDJ}, s{sT2}")
    a(f"s_add_u32 s{sT0}, s{sRB}, s{sDJ}")
    a(f"s_mul_i32 s{sT1}, s{sT0}, 43")
    a(f"s_lshr_b32 s{sT1}, s{sT1}, 8")
    a(f"s_mul_i32 s{sT1}, s{sT1}, 6")
    a(f"s_sub_u32 s{sROT}, s{sT0}, s{sT1}")
    if "norot" in K3X: a(f"s_mov_b32 s{sROT}, 0")
    a(f"s_mul_i32 s{sWB}, s{sDJ}, {24*5120}")
    a(f"s_add_u32 s{sWB}, s{sWB}, {WS_WOF}")
    a(f"s_mul_i32 s{sT0}, s{sW}, 5120")
    a(f"s_add_u32 s{sWB}, s{sWB}, s{sT0}")
    a(f"s_mul_i32 s{sPB}, s{sRB}, {4*24*1024}")
    a(f"s_mul_i32 s{sT1}, s{sW}, {24*1024}")
    a(f"s_add_u32 s{sPB}, s{sPB}, s{sT1}")
    a(f"s_add_u32 s{sPB}, s{sPB}, {WS_PF}")
    sG = [50, 51, 52, 53, 54, 55]
    for m in range(6):
        a(f"s_add_u32 s{sT0}, s{sROT}, {m}")
        a(f"s_sub_u32 s{sT1}, s{sT0}, 6")
        a(f"s_cmp_ge_u32 s{sT0}, 6")
        a(f"s_cselect_b32 s{sG[m]}, s{sT1}, s{sT0}")
    PFr = V(96, 4)
    a("s_waitcnt lgkmcnt(0)")
    ST("kernarg")
    p_id = {}; w_id = {}
    def dma_w_g(m):
        for r in range(5):
            a(f"s_mul_i32 s{sT0}, s{sG[m]}, {4*5120}")
            a(f"s_add_u32 s{sT0}, s{sT0}, s{sWB}")
            a(f"s_add_u32 s{sT0}, s{sT0}, {r*1024}")
            a(f"s_mul_i32 s{sT1}, s{sW}, 5120")
            a(f"s_add_u32 m0, s{sT1}, {WO + m*4*5120 + r*1024}")
            w_id[m] = a.vmem(f"buffer_load_dwordx4 v{vZ}, s[{sWS}:{sWS+3}], s{sT0} offen{SC} lds")
            yield
    def load_p_g(m):
        for k in range(4):
            ks = 4*m + k
            a(f"s_lshl_b32 s{sT2}, s{sG[m]}, 12")
            a(f"s_add_u32 s{sT2}, s{sT2}, s{sPB}")
            p_id[ks] = a.vmem(f"buffer_load_dwordx4 v[{PFr+4*ks}:{PFr+4*ks+3}], v{vZ}, s[{sWS}:{sWS+3}], s{sT2} offen offset:{k*1024}{SC}")
            yield
    if F3:
        from k2 import poll_flags_n, poll_all_flags
        a(f"s_mul_i32 s{sT0}, s{sDJ}, {24*8}")
        a(f"s_add_u32 s{sT0}, s{sT0}, {WS_F4}")
        poll_flags_n(a, sWS, sT0, 24, PFr, t0)
        ST("wflags")
        NW0 = int(os.environ.get("NW0", "6"))
        for m in range(NW0): run(dma_w_g(m))
        poll_all_flags(a, sWS, PFr, t0, WS_F2)
        ST("pflags")
        run(load_p_g(0)); run(load_p_g(1))
        for m in range(NW0, 6):
            run(dma_w_g(m))
            if m < 6 and os.environ.get("PALL"): run(load_p_g(m))
    else:
        run(dma_w_g(0)); run(load_p_g(0))
        a("s_barrier")
        run(dma_w_g(1)); run(load_p_g(1))
    a(f"s_mul_i32 s{sCOL}, s{sDJ}, 160")
    a(f"s_mul_i32 s{sXB}, s{sRB}, {64*1280}")
    a(f"s_add_u32 s{sXB}, s{sXB}, s{sCOL}")
    vO = [V() for _ in range(5)]
    for r in range(5):
        a(f"v_add_u32 v{t0}, {64*r}, v{vL}")
        a(f"v_mul_u32_u24 v{t1}, 6554, v{t0}")
        a(f"v_lshrrev_b32 v{t1}, 16, v{t1}")
        a(f"v_mul_u32_u24 v{t2}, 10, v{t1}")
        a(f"v_sub_u32 v{t0}, v{t0}, v{t2}")
        a(f"v_lshlrev_b32 v{t0}, 4, v{t0}")
        a(f"v_mul_u32_u24 v{t1}, 1280, v{t1}")
        a(f"v_add_u32 v{vO[r]}, v{t0}, v{t1}")
    XS = V(2, 2)
    vY = V()
    def xy_g():
        lx = a.newlabel("k3_y"); lx2 = a.newlabel("k3_xy")
        a(f"s_cmp_ge_u32 s{sW}, 2")
        a(f"s_cbranch_scc1 {lx}")
        a(f"s_mul_i32 s{sT0}, s{sW}, {32*1280}")
        a(f"s_add_u32 s{sT0}, s{sT0}, s{sXB}")
        a(f"s_mul_i32 s{sT1}, s{sW}, 5120")
        for r in range(5):
            a(f"s_add_u32 m0, s{sT1}, {XT + r*1024}")
            a(f"buffer_load_dwordx4 v{vO[r]}, s[{sX}:{sX+3}], s{sT0} offen lds")
        a(f"s_branch {lx2}")
        a.label(lx)
        a(f"v_lshrrev_b32 v{t0}, 3, v{vL}")
        a(f"v_lshlrev_b32 v{t0}, 12, v{t0}")
        a(f"v_and_b32 v{t1}, 7, v{vL}")
        a(f"v_lshl_add_u32 v{vY}, v{t1}, 4, v{t0}")
        a(f"s_sub_u32 s{sT2}, s{sW}, 2")
        a(f"s_mul_i32 s{sT0}, s{sT2}, 40")
        a(f"s_mul_i32 s{sT1}, s{sDJ}, 80")
        a(f"s_add_u32 s{sT0}, s{sT0}, s{sT1}")
        a(f"s_lshl_b32 s{sT0}, s{sT0}, 12")
        a(f"s_lshl_b32 s{sT1}, s{sRB}, 7")
        a(f"s_add_u32 s{sT0}, s{sT0}, s{sT1}")
        a(f"s_add_u32 s{sT0}, s{sT0}, {WS_YT}")
        a(f"s_mul_i32 s{sT1}, s{sT2}, 5120")
        for r in range(5):
            a(f"s_add_u32 m0, s{sT1}, {YTL + r*1024}")
            a(f"buffer_load_dwordx4 v{vY}, s[{sWS}:{sWS+3}], s{sT0} offen{SC} lds")
            a(f"s_add_u32 s{sT0}, s{sT0}, {8*4096}")
        a.label(lx2)
        a.vm -= 5
        a(f"s_lshl_b32 s{sT0}, s{sRB}, 9")
        a(f"s_lshl_b32 s{sT1}, s{sW}, 7")
        a(f"s_add_u32 s{sT0}, s{sT0}, s{sT1}")
        a(f"s_add_u32 s{sT0}, s{sT0}, {WS_XST}")
        a(f"v_lshlrev_b32 v{t0}, 3, v{vP}")
        a.vmem(f"buffer_load_dwordx2 {P(XS)}, v{t0}, s[{sWS}:{sWS+3}], s{sT0} offen{SC}")
        yield
    a(f"v_lshrrev_b32 v{vQ}, 4, v{vL}")
    a(f"v_and_b32 v{vP}, 15, v{vL}")
    vA = [V(), V()]
    a(f"v_mov_b32 v{vA[0]}, v{vZ}")
    a(f"v_add_u32 v{vA[1]}, {12*5120}, v{vZ}")
    ACC = V(20, 4)
    AF = V(40, 4)
    def read_a(ks):
        b = ks & 1; ids = []
        base = vA[0] if ks < 12 else vA[1]
        o = WO + (ks % 12)*5120
        for dt in range(5):
            r = AF + (b*5 + dt)*4
            ids.append(a.ds(f"ds_read_b128 v[{r}:{r+3}], v{base} offset:{o + dt*1024}"))
        return ids
    rd = {}
    for m in range(6):
        a.wait_vm(w_id[m])
        a("s_barrier")
        ST(f"m{m}")
        rd[4*m] = read_a(4*m)
        fl = Filler()
        if m + 2 < 6:
            if not F3: fl.add(dma_w_g(m + 2))
            if not (F3 and os.environ.get("PALL") and m + 2 >= int(os.environ.get("NW0", "6"))): fl.add(load_p_g(m + 2))
        if m == 3: fl.add(xy_g())
        for ks in range(4*m, 4*m + 4):
            if ks + 1 < 4*m + 4: rd[ks+1] = read_a(ks + 1)
            a.wait_vm(p_id[ks])
            b = ks & 1
            for dt in range(5):
                a.wait_lg(rd[ks][dt])
                r = AF + (b*5 + dt)*4
                c = "0" if ks == 0 else f"v[{ACC+4*dt}:{ACC+4*dt+3}]"
                a(f"v_mfma_f32_16x16x32_bf16 v[{ACC+4*dt}:{ACC+4*dt+3}], v[{r}:{r+3}], v[{PFr+4*ks}:{PFr+4*ks+3}], {c}")
                if dt % 2 == 0: fl.step(1)
        fl.drain()
    ST("k3loop")
    XV = AF; YV = AF + 10
    a(f"s_lshl_b32 s{sT0}, s{sW}, 4")
    a(f"v_add_u32 v{t0}, s{sT0}, v{vP}")
    a(f"v_mul_u32_u24 v{t0}, 160, v{t0}")
    vXA = V(); vX2 = V(); vYA = V()
    a(f"v_lshl_add_u32 v{vXA}, v{vQ}, 3, v{t0}")
    a(f"v_add_u32 v{vX2}, {XT}, v{vXA}")
    a(f"v_lshrrev_b32 v{t1}, 2, v{vP}")
    a(f"v_lshl_add_u32 v{t0}, v{vQ}, 2, v{t1}")
    a(f"v_lshlrev_b32 v{t0}, 7, v{t0}")
    a(f"v_and_b32 v{t1}, 3, v{vP}")
    a(f"v_lshl_add_u32 v{t0}, v{t1}, 3, v{t0}")
    a(f"s_lshl_b32 s{sT0}, s{sW}, 5")
    a(f"s_add_u32 s{sT0}, s{sT0}, {YTL}")
    a(f"v_add_u32 v{vYA}, s{sT0}, v{t0}")
    T = PFr
    sL = 46
    a(f"s_mov_b32 s{sL}, {f32(-LOG2E):#x}")
    a(f"s_mov_b32 s{sL+1}, {f32(-LOG2E):#x}")
    E = T
    for i in range(0, 20, 2): a(f"v_pk_mul_f32 {P(E+i)}, {P(ACC+i)}, s[{sL}:{sL+1}]")
    a("s_waitcnt vmcnt(0)")
    a("s_barrier")
    for dt in range(5):
        a.ds(f"ds_read_b64 v[{XV+2*dt}:{XV+2*dt+1}], v{vX2} offset:{dt*32}")
    for dt in range(5):
        a.ds(f"ds_read_b64_tr_b16 v[{YV+2*dt}:{YV+2*dt+1}], v{vYA} offset:{dt*2048}")
    for i in range(20): a(f"v_exp_f32 v{E+i}, v{E+i}")
    for i in range(0, 20, 2): a(f"v_pk_add_f32 {P(E+i)}, {P(E+i)}, 1.0 op_sel_hi:[1,0]")
    for i in range(20): a(f"v_rcp_f32 v{E+i}, v{E+i}")
    for i in range(0, 20, 2): a(f"v_pk_mul_f32 {P(E+i)}, {P(E+i)}, {P(ACC+i)}")
    a("s_waitcnt lgkmcnt(0)")
    XF_ = T + 20; YF = T + 40; N = T + 60
    for i in range(10):
        a(f"v_lshlrev_b32 v{XF_+2*i}, 16, v{XV+i}")
        a(f"v_and_b32 v{XF_+2*i+1}, 0xffff0000, v{XV+i}")
        a(f"v_lshlrev_b32 v{YF+2*i}, 16, v{YV+i}")
        a(f"v_and_b32 v{YF+2*i+1}, 0xffff0000, v{YV+i}")
    RB = V(2, 2)
    a(f"v_mov_b32 v{RB}, v{XS+1}")
    for i in range(0, 20, 2): a(f"v_pk_add_f32 {P(N+i)}, {P(XF_+i)}, {P(XS)} op_sel_hi:[1,0] neg_lo:[0,1] neg_hi:[0,1]")
    for i in range(0, 20, 2): a(f"v_pk_mul_f32 {P(N+i)}, {P(N+i)}, {P(RB)} op_sel_hi:[1,0]")
    for i in range(0, 20, 2): a(f"v_pk_mul_f32 {P(N+i)}, {P(N+i)}, {P(YF+i)}")
    for i in range(0, 20, 2): a(f"v_pk_fma_f32 {P(N+i)}, {P(N+i)}, {P(E+i)}, {P(XF_+i)}")
    OV = AF
    for i in range(10): a(f"v_cvt_pk_bf16_f32 v{OV+i}, v{N+2*i}, v{N+2*i+1}")
    vOW = V()
    a(f"v_add_u32 v{vOW}, {OT}, v{vXA}")
    for dt in range(5):
        a.ds(f"ds_write_b64 v{vOW}, v[{OV+2*dt}:{OV+2*dt+1}] offset:{dt*32}")
    a(f"s_mul_i32 s{sT0}, s{sW}, 2560")
    a(f"s_add_u32 s{sT0}, s{sT0}, {OT}")
    a(f"v_add_u32 v{t0}, s{sT0}, v{vZ}")
    a("s_waitcnt lgkmcnt(0)")
    for r in range(3):
        a.ds(f"ds_read_b128 v[{T+4*r}:{T+4*r+3}], v{t0} offset:{r*1024}")
    a(f"s_mul_i32 s{sT0}, s{sW}, {16*1280}")
    a(f"s_add_u32 s{sT0}, s{sT0}, s{sXB}")
    a("s_waitcnt lgkmcnt(0)")
    for r in range(3):
        if r == 2: a(f"s_mov_b32 exec_hi, 0")
        a.vmem(f"buffer_store_dwordx4 v[{T+4*r}:{T+4*r+3}], v{vO[r]}, s[{sOUT}:{sOUT+3}], s{sT0} offen" + (" sc1" if "osc1" in K3X else ""))
    a(f"s_mov_b64 exec, -1")
    ST("k3end")
    ST.dump(sWS, sW, t0, t1, WS_DBG + 0x600000)
    gen_k3.stamp_names = ST.names
    if F3 and Stamps.HS:
        wg = int(os.environ.get("HSWG", "0"))
        lab = a.newlabel("hs_skip")
        a(f"s_cmp_lg_u32 s2, {wg}")
        a(f"s_cbranch_scc1 {lab}")
        a(f"s_cmp_lg_u32 s{sW}, 0")
        a(f"s_cbranch_scc1 {lab}")
        a(f"s_load_dwordx2 s[20:21], s[0:1], {KA['dbg']}")
        a(f"s_mov_b32 s22, 256"); a(f"s_mov_b32 s23, {SRD3:#x}")
        a(f"v_readlane_b32 s40, v254, 1")
        a(f"v_mbcnt_lo_u32_b32 v{t0}, -1, 0")
        a(f"v_mbcnt_hi_u32_b32 v{t0}, -1, v{t0}")
        a(f"v_lshlrev_b32 v{t0}, 2, v{t0}")
        a(f"v_subrev_u32 v254, s40, v254")
        a("s_waitcnt lgkmcnt(0)")
        a(f"s_mov_b64 exec, {((1 << (len(Stamps.HS) + 1)) - 1) & ~1:#x}")
        a(f"buffer_store_dword v254, v{t0}, s[20:23], 0 offen")
        a(f"s_mov_b64 exec, -1")
        a.label(lab)
    if F3: return V.hi
    a.label(f"{name}_end")
    a("s_endpgm")
    return a.finish(), V.hi
```

```python
from dsl import *
from layout import *
import os, struct

XR = 0; WR = 81920; SLOT = 24576
MISC = 155648
CSUM = MISC
XSUM = MISC + 3072
ZSUM = MISC + 4096
SHKL = MISC + 5120
EX = 16384
TB = 81920 + 24576
KS = 65536
VS = 49152
ZT = 0
C1 = 2.302208198144325
C2 = C1 * 0.044715

def f32(x): return struct.unpack("<I", struct.pack("<f", x))[0]
def P(r): return f"v[{r}:{r+1}]"

def pkop(a, kind, d, x, y, z=None, pk=True, bcast_y=False, neg_y=False, ys=None, zs=None):
    if pk:
        yo = f"s[{ys}:{ys+1}]" if ys is not None else P(y)
        mods = ""
        n = 3 if kind == "fma" else 2
        if bcast_y: mods += " op_sel_hi:[1,0" + (",1" if n == 3 else "") + "]"
        if neg_y: mods += " neg_lo:[0,1" + (",0" if n == 3 else "") + "] neg_hi:[0,1" + (",0" if n == 3 else "") + "]"
        if kind == "fma": a(f"v_pk_fma_f32 {P(d)}, {P(x)}, {yo}, {P(z)}{mods}")
        else: a(f"v_pk_{kind}_f32 {P(d)}, {P(x)}, {yo}{mods}")
        yield
    else:
        for h in range(2):
            yo = f"s{ys}" if ys is not None else f"v{y + (0 if bcast_y else h)}"
            if neg_y: yo = "-" + yo
            if kind == "fma": a(f"v_fma_f32 v{d+h}, v{x+h}, {yo}, v{z+h}")
            elif kind == "mul":
                if ys is not None: a(f"v_mul_f32 v{d+h}, {yo}, v{x+h}")
                else: a(f"v_mul_f32 v{d+h}, v{x+h}, {yo}")
            else:
                if neg_y: a(f"v_sub_f32 v{d+h}, v{x+h}, {yo[1:]}")
                else: a(f"v_add_f32 v{d+h}, v{x+h}, {yo}")
            yield

def reduce_g4_multi(a, xs, ts):
    for op in ("v_permlane16_swap_b32", "v_permlane32_swap_b32"):
        for x, t in zip(xs, ts): a(f"v_mov_b32 v{t}, v{x}"); yield
        for x, t in zip(xs, ts): a(f"{op} v{x}, v{t}"); yield
        for x, t in zip(xs, ts): a(f"v_add_f32 v{x}, v{x}, v{t}"); yield

def ln_finish_gen(a, mean, var, sEps):
    a(f"v_max_f32 v{var}, 0, v{var}"); yield
    a(f"v_cvt_pk_bf16_f32 v{var}, v{var}, v{mean}"); yield
    a(f"v_and_b32 v{mean}, 0xffff0000, v{var}"); yield
    a(f"v_lshlrev_b32 v{var}, 16, v{var}"); yield
    a(f"v_add_f32 v{var}, s{sEps}, v{var}"); yield
    a(f"v_cvt_pk_bf16_f32 v{var}, v{var}, v{var}"); yield
    a(f"v_and_b32 v{var}, 0xffff0000, v{var}"); yield
    a(f"v_sqrt_f32 v{var}, v{var}"); yield
    a(f"v_cvt_pk_bf16_f32 v{var}, v{var}, v{var}"); yield
    a(f"v_and_b32 v{var}, 0xffff0000, v{var}"); yield
    a(f"v_rcp_f32 v{var}, v{var}"); yield

def run(gen):
    for _ in gen: pass

class Filler:
    def __init__(self): self.q = []
    def add(self, g): self.q.append(g)
    def step(self, n=1):
        for _ in range(n):
            while self.q:
                try:
                    next(self.q[0]); break
                except StopIteration:
                    self.q.pop(0)
    def drain(self):
        while self.q:
            run(self.q.pop(0))

def mask(a, n):
    if n >= 64: a("s_mov_b64 exec, -1")
    elif n > 32:
        a("s_mov_b32 exec_lo, -1"); a(f"s_mov_b32 exec_hi, {(1 << (n-32)) - 1:#x}")
    elif n == 32:
        a("s_mov_b32 exec_lo, -1"); a("s_mov_b32 exec_hi, 0")
    else: a(f"s_mov_b64 exec, {(1 << n) - 1:#x}")

Z1L = 73728
SYNC = 161792

def gen_k1(name="k1_kernel", prof=False, fused=False):
    K1X = os.environ.get("K1X", "")
    a = Asm()
    ST = Stamps(a, enabled=prof)
    WSZ = WS_SIZE_DBG if prof else WS_END
    V = Alloc(1, 256, "v")
    sX, sWIN, sK, sV, sSHK, sWS, sDBG, sWSP, sSSM = 4, 8, 12, 16, 20, 24, 28, 32, 36
    sWOU = 84 if not prof else 84
    sRB, sJ, sW, sFH, sSH, sKH, sST0, sST = 40, 41, 42, 43, 44, 45, 46, 47
    sT0, sT1, sT2, sT3 = 48, 49, 50, 51
    sXOFF, sWOFF2, sWOFF1 = 52, 53, 54
    sEPS, sONES, sU = 55, 56, 57
    sNC2 = 58
    sM0X, sM0W = 60, 61
    sZ1B, sKKA, sKKB, sD0 = 62, 63, 64, 65
    sXC, sH = 66, 67
    (sEXW, sEXR, sCSW, sCSR, sXSW, sXSR, sZSW, sZPB, sZRB, sXST, sZ1S0, sZ1S1, sZ1S2, sKVB) = range(70, 84)
    sZ2L = [88, 63]; sZ2G = [64, 67]; sL2B = 66
    a.raw(f".globl {name}\n.p2align 8\n.type {name},@function\n{name}:")
    a(f"s_cmp_ge_u32 s2, 256")
    a(f"s_cbranch_scc1 {name}_end")
    srds = ((sX, 'q', SZ_X), (sWIN, 'win', SZ_WIN), (sK, 'k', SZ_X), (sV, 'v', SZ_X), (sSHK, 'shk', 5120), (sWS, 'ws', WSZ),
            (sDBG, 'dbg', 256), (sWSP, 'wsp', SZ_WSP), (sSSM, 'ssmk', SZ_SSMK), (sWOU, 'wout', SZ_WOUT))
    for srd, key, _ in srds:
        a(f"s_load_dwordx2 s[{srd}:{srd+1}], s[0:1], {KA[key]}")
    ST("start")
    vL = V(); vQ = V(); vP = V()
    t0, t1, t2 = V(), V(), V()
    vKV = V()
    a(f"v_lshrrev_b32 v{vQ}, 6, v0")
    a(f"v_and_b32 v{vL}, 63, v0")
    a(f"v_readfirstlane_b32 s{sW}, v{vQ}")
    a(f"v_lshrrev_b32 v{vQ}, 4, v{vL}")
    a(f"v_and_b32 v{vP}, 15, v{vL}")
    a(f"s_and_b32 s{sT0}, s2, 7")
    a(f"s_lshr_b32 s{sT1}, s2, 3")
    a(f"s_lshr_b32 s{sXC}, s{sT0}, 1")
    a(f"s_and_b32 s{sH}, s{sT0}, 1")
    a(f"s_lshl_b32 s{sRB}, s{sXC}, 3")
    a(f"s_and_b32 s{sT0}, s{sT1}, 7")
    a(f"s_add_u32 s{sRB}, s{sRB}, s{sT0}")
    a(f"s_lshl_b32 s{sJ}, s{sH}, 2")
    a(f"s_lshr_b32 s{sT0}, s{sT1}, 3")
    a(f"s_add_u32 s{sJ}, s{sJ}, s{sT0}")
    a(f"s_mul_i32 s{sXOFF}, s{sRB}, {64*1280}")
    a(f"s_mul_i32 s{sWOFF1}, s{sJ}, 192")
    a(f"s_add_u32 s{sWOFF2}, s{sWOFF1}, {768*2}")
    a(f"s_lshl_b32 s{sM0X}, s{sW}, 11")
    a(f"s_mul_i32 s{sM0W}, s{sW}, 3072")
    for srd, _, size in srds[:2]:
        a(f"s_mov_b32 s{srd+2}, {size}")
        a(f"s_mov_b32 s{srd+3}, {SRD3:#x}")
    TMP = V(28, 4)
    vTO = V()
    vDummy = V()
    vXD = [V(), V()]
    a(f"s_lshl_b32 s{sT0}, s{sW}, 3")
    for i in range(2):
        a(f"v_add_u32 v{t0}, s{sT0}, v{vQ}")
        if i: a(f"v_add_u32 v{t0}, 4, v{t0}")
        a(f"v_and_b32 v{t1}, 15, v{t0}")
        a(f"v_xor_b32 v{t1}, v{t1}, v{vP}")
        a(f"v_mul_u32_u24 v{t0}, 1280, v{t0}")
        a(f"v_lshl_add_u32 v{vXD[i]}, v{t1}, 4, v{t0}")
    vWD = [V(), V(), V()]
    a(f"s_mul_i32 s{sT0}, s{sW}, 192")
    for i in range(3):
        a(f"v_add_u32 v{t0}, s{sT0}, v{vL}")
        if i: a(f"v_add_u32 v{t0}, {64*i}, v{t0}")
        a(f"v_mul_u32_u24 v{t1}, 43691, v{t0}")
        a(f"v_lshrrev_b32 v{t1}, 19, v{t1}")
        a(f"v_mul_u32_u24 v{t2}, 12, v{t1}")
        a(f"v_sub_u32 v{t0}, v{t0}, v{t2}")
        a(f"v_lshrrev_b32 v{t2}, 2, v{t1}")
        a(f"v_and_b32 v{t2}, 2, v{t2}")
        a(f"v_xor_b32 v{t0}, v{t0}, v{t2}")
        a(f"v_mul_u32_u24 v{t1}, 3072, v{t1}")
        a(f"v_lshl_add_u32 v{vWD[i]}, v{t0}, 4, v{t1}")
    sSCX = [90, 91, 92, 93, 94]; sSCW = [95, 96, 97, 98, 99]
    a(f"s_add_u32 s{sT0}, s{sRB}, s{sJ}")
    a(f"s_mul_i32 s{sT1}, s{sT0}, 52")
    a(f"s_lshr_b32 s{sT1}, s{sT1}, 8")
    a(f"s_mul_i32 s{sT1}, s{sT1}, 5")
    a(f"s_sub_u32 s{sT3}, s{sT0}, s{sT1}")
    if "norot" in K1X: a(f"s_mov_b32 s{sT3}, 0")
    if "rot2" in K1X: a(f"s_and_b32 s{sT3}, s{sT0}, 1")
    if "rot4" in K1X: a(f"s_and_b32 s{sT3}, s{sT0}, 3")
    if "rotj" in K1X: a(f"s_and_b32 s{sT3}, s{sJ}, 3")
    if "rotr" in K1X:
        a(f"s_and_b32 s{sT3}, s{sRB}, 1")
        a(f"s_lshl_b32 s{sT3}, s{sT3}, 1")
    def sc_regs(p_):
        a(f"s_add_u32 s{sT1}, s{sT3}, {p_}")
        a(f"s_sub_u32 s{sT2}, s{sT1}, 5")
        a(f"s_cmp_ge_u32 s{sT1}, 5")
        a(f"s_cselect_b32 s{sT1}, s{sT2}, s{sT1}")
        a(f"s_lshl_b32 s{sSCX[p_]}, s{sT1}, 8")
        a(f"s_mul_i32 s{sSCW[p_]}, s{sT1}, {128*3072}")
    sc_regs(0); sc_regs(1)
    x_last = {}; w_last = {}
    def dma_x_g(sc):
        for i in range(2):
            a(f"s_add_u32 s{sD0}, s{sXOFF}, s{sSCX[sc]}")
            a(f"s_add_u32 m0, s{sM0X}, {XR + sc*16384 + i*1024}")
            x_last[sc] = a.vmem(f"buffer_load_dwordx4 v{vXD[i]}, s[{sX}:{sX+3}], s{sD0} offen lds")
            yield
    def wbase(q): return WR + (q % 3)*SLOT
    def dma_w_g(q):
        sc = q % 5
        for i in range(3):
            a(f"s_add_u32 s{sD0}, s{sWOFF2 if q < 5 else sWOFF1}, s{sSCW[sc]}")
            a(f"s_add_u32 m0, s{sM0W}, {wbase(q) + i*1024}")
            w_last[q] = a.vmem(f"buffer_load_dwordx4 v{vWD[i]}, s[{sWIN}:{sWIN+3}], s{sD0} offen lds")
            yield
    def dma_x(sc): run(dma_x_g(sc))
    def dma_w(q): run(dma_w_g(q))
    a("s_waitcnt lgkmcnt(0)")
    ST("kernarg")
    dma_x(0); dma_w(0)
    sTAG = 100
    a(f"s_mov_b32 s{sT0}, {WS_EPO}")
    a(f"s_load_dwordx2 s[{sTAG}:{sTAG+1}], s[{sWS}:{sWS+1}], s{sT0}")
    for p_ in range(2, 5): sc_regs(p_)
    for srd, _, size in srds[2:]:
        a(f"s_mov_b32 s{srd+2}, {size}")
        a(f"s_mov_b32 s{srd+3}, {SRD3:#x}")
    a(f"v_lshlrev_b32 v{vTO}, 7, v{vL}")
    if fused:
        a(f"v_mov_b32 v{t0}, {SYNC}")
        a(f"v_mov_b32 v{TMP}, 0"); a(f"v_mov_b32 v{TMP+1}, 0")
        a.ds(f"ds_write_b64 v{t0}, {P(TMP)}")
    a("s_barrier")
    dma_x(1); dma_w(1)
    def kv_dma():
        a(f"v_mul_u32_u24 v{t0}, 1280, v{vRP}")
        a(f"v_lshl_add_u32 v{t0}, v{vPP}, 4, v{t0}")
        a(f"s_mul_i32 s{sT3}, s{sJ}, 160")
        a(f"s_add_u32 s{sT3}, s{sT3}, s{sXOFF}")
        for rnd in range(3):
            n0 = 8*rnd
            if rnd == 0:
                a(f"s_mul_i32 s{sT0}, s{sW}, {6*1280}")
                a(f"s_add_u32 s{sT0}, s{sT0}, s{sT3}")
                a(f"s_sub_i32 s{sT0}, s{sT0}, {3*1280}")
                a(f"s_cmp_lt_i32 s{sT0}, 0")
                a(f"s_cselect_b32 s{sT1}, {3*1280}, 0")
                a(f"s_add_u32 s{sT0}, s{sT0}, s{sT1}")
                a(f"v_subrev_u32 v{t1}, s{sT1}, v{t0}")
                a(f"s_mul_i32 s{sT2}, s{sW}, 960")
                a(f"s_add_u32 m0, s{sT2}, {KS}")
                mask(a, 60)
                a.vmem(f"buffer_load_dwordx4 v{t1}, s[{sK}:{sK+3}], s{sT0} offen lds")
                mask(a, 64)
            elif rnd == 1:
                lv = a.newlabel("k1_kvv"); le = a.newlabel("k1_kve")
                a(f"s_cmp_ge_u32 s{sW}, 4")
                mask(a, 60)
                a(f"s_cbranch_scc1 {lv}")
                a(f"s_mul_i32 s{sT0}, s{sW}, {6*1280}")
                a(f"s_add_u32 s{sT0}, s{sT0}, s{sT3}")
                a(f"s_add_u32 s{sT0}, s{sT0}, {45*1280}")
                a(f"s_mul_i32 s{sT2}, s{sW}, 960")
                a(f"s_add_u32 m0, s{sT2}, {KS + 8*960}")
                a(f"buffer_load_dwordx4 v{t0}, s[{sK}:{sK+3}], s{sT0} offen lds")
                a(f"s_branch {le}")
                a.label(lv)
                a(f"s_sub_u32 s{sT1}, s{sW}, 4")
                a(f"s_mul_i32 s{sT0}, s{sT1}, {6*1280}")
                a(f"s_add_u32 s{sT0}, s{sT0}, s{sT3}")
                a(f"s_mul_i32 s{sT2}, s{sT1}, 960")
                a(f"s_add_u32 m0, s{sT2}, {VS}")
                a(f"buffer_load_dwordx4 v{t0}, s[{sV}:{sV+3}], s{sT0} offen lds")
                a.label(le)
                a.vm -= 1
                mask(a, 64)
            else:
                a(f"s_add_u32 s{sT1}, s{sW}, 4")
                a(f"s_mul_i32 s{sT0}, s{sT1}, {6*1280}")
                a(f"s_add_u32 s{sT0}, s{sT0}, s{sT3}")
                a(f"s_mul_i32 s{sT2}, s{sT1}, 960")
                a(f"s_add_u32 m0, s{sT2}, {VS}")
                mask(a, 60)
                a.vmem(f"buffer_load_dwordx4 v{t0}, s[{sV}:{sV+3}], s{sT0} offen lds")
                mask(a, 64)
            yield
    lab = a.newlabel("k1_shk")
    a(f"s_cmp_lg_u32 s{sW}, 7")
    a(f"s_cbranch_scc1 {lab}")
    a(f"v_lshlrev_b32 v{t0}, 4, v{vL}")
    a(f"s_mul_i32 s{sT0}, s{sJ}, 640")
    a(f"s_mov_b32 m0, {SHKL}")
    mask(a, 40)
    a(f"buffer_load_dwordx4 v{t0}, s[{sSHK}:{sSHK+3}], s{sT0} offen lds")
    a.vm -= 1
    mask(a, 64)
    a.label(lab)
    a(f"s_and_b32 s{sFH}, s{sW}, 1")
    a(f"s_lshr_b32 s{sSH}, s{sW}, 1")
    a(f"s_and_b32 s{sSH}, s{sSH}, 1")
    a(f"s_lshr_b32 s{sKH}, s{sW}, 2")
    a(f"s_xor_b32 s{sST0}, s{sFH}, s{sKH}")
    a(f"s_lshl_b32 s{sST}, s{sSH}, 1")
    a(f"s_add_u32 s{sST}, s{sST}, s{sST0}")
    a(f"s_mov_b32 s{sEPS}, {f32(1e-5):#x}")
    a(f"s_mov_b32 s{sONES}, 0x3f803f80")
    a(f"s_mov_b32 s{sNC2}, {f32(-C2):#x}")
    a(f"s_mov_b32 s{sNC2+1}, {f32(-C2):#x}")
    vRP = V(); vPP = V()
    _pre = [V(), V(), V()]
    XF = V(80, 4)
    def xf(sc, kk, sl): return XF + ((sc*2 + kk)*2 + sl)*4
    WF = V(48, 4)
    def wf(b, kk, ft): return WF + ((b*2 + kk)*3 + ft)*4
    ACC = V(24, 4)
    def acc(ft, sl): return ACC + (ft*2 + sl)*4
    Z2V = V(12, 4)
    KX = V(4, 4)
    KROW = [XF + 4*r for r in range(5)]
    VROW = [XF + 20, XF + 24]
    vXA = [[_pre[0], _pre[1]], [_pre[2], V()]]
    vWA = [[V(), V(), V()], [V(), V(), V()]]
    a(f"s_lshl_b32 s{sT0}, s{sKH}, 1")
    a(f"s_add_u32 s{sKKA}, s{sT0}, s{sSH}")
    a(f"s_xor_b32 s{sKKB}, s{sKKA}, 1")
    a(f"v_xor_b32 v{t0}, v{vQ}, v{vP}")
    a(f"v_lshlrev_b32 v{t2}, 8, v{vP}")
    a(f"s_lshl_b32 s{sT0}, s{sSH}, 13")
    a(f"s_lshl_b32 s{sT1}, s{sST0}, 12")
    a(f"s_add_u32 s{sT2}, s{sT0}, s{sT1}")
    a(f"s_xor_b32 s{sT1}, s{sT1}, 4096")
    a(f"s_add_u32 s{sT3}, s{sT0}, s{sT1}")
    for kkidx, sKK in ((0, sKKA), (1, sKKB)):
        a(f"s_lshl_b32 s{sT0}, s{sKK}, 2")
        a(f"v_xor_b32 v{t1}, s{sT0}, v{t0}")
        a(f"v_lshl_add_u32 v{t1}, v{t1}, 4, v{t2}")
        a(f"v_add_u32 v{vXA[kkidx][0]}, s{sT2}, v{t1}")
        a(f"v_add_u32 v{vXA[kkidx][1]}, s{sT3}, v{t1}")
    a(f"v_lshrrev_b32 v{t1}, 2, v{vP}")
    a(f"v_lshl_add_u32 v{t0}, v{vQ}, 3, v{t1}")
    a(f"v_mul_u32_u24 v{t0}, 192, v{t0}")
    a(f"v_and_b32 v{t1}, 3, v{vP}")
    a(f"v_lshl_add_u32 v{t0}, v{t1}, 3, v{t0}")
    a(f"v_and_b32 v{t1}, 1, v{vQ}")
    a(f"s_mul_i32 s{sT3}, s{sFH}, 3")
    a(f"s_mul_i32 s{sT1}, s{sKKA}, 6144")
    a(f"s_add_u32 s{sT1}, s{sT1}, {WR}")
    a(f"s_mul_i32 s{sT2}, s{sKKB}, 6144")
    a(f"s_add_u32 s{sT2}, s{sT2}, {WR}")
    for ft in range(3):
        a(f"s_add_u32 s{sT0}, s{sT3}, {ft}")
        a(f"v_xor_b32 v{t2}, s{sT0}, v{t1}")
        a(f"v_lshl_add_u32 v{t2}, v{t2}, 5, v{t0}")
        a(f"v_add_u32 v{vWA[0][ft]}, s{sT1}, v{t2}")
        a(f"v_add_u32 v{vWA[1][ft]}, s{sT2}, v{t2}")
    CSA = V(12, 4)
    XSA = V(4, 4); XQA = V(4, 4)
    ONE = V(4, 4)
    for i in range(4): a(f"v_mov_b32 v{ONE+i}, s{sONES}")
    vC1 = XSA + 2
    vMR = XQA; vM, vR = vMR, vMR + 1
    vRB = XQA + 2
    a(f"v_mul_u32_u24 v{vRP}, 205, v{vL}")
    a(f"v_lshrrev_b32 v{vRP}, 11, v{vRP}")
    a(f"v_mul_u32_u24 v{t0}, 10, v{vRP}")
    a(f"v_sub_u32 v{vPP}, v{vL}, v{t0}")
    a(f"s_lshl_b32 s{sT0}, s{sW}, 3")
    a(f"v_lshl_add_u32 v{t0}, v{vRP}, 1, s{sT0}")
    a(f"v_min_u32 v{t0}, 62, v{t0}")
    a(f"v_mul_u32_u24 v{t0}, 160, v{t0}")
    a(f"v_lshl_add_u32 v{vKV}, v{vPP}, 4, v{t0}")

    kv = {}
    zfin = {}
    EARLY = fused and 'late' not in K1X
    vTO2 = KX + 3
    a(f"v_lshlrev_b32 v{vTO2}, 10, v{vL}")
    def kv_loads():
        a(f"v_add_u32 v{t0}, {KS}, v{vKV}")
        for i in range(5):
            a.ds(f"ds_read_b128 v[{KROW[i]}:{KROW[i]+3}], v{t0} offset:{160*i}")
        a(f"v_add_u32 v{t0}, {VS}, v{vKV}")
        a.ds(f"ds_read_b128 v[{VROW[0]}:{VROW[0]+3}], v{t0}")
        kv['last'] = a.ds(f"ds_read_b128 v[{VROW[1]}:{VROW[1]+3}], v{t0} offset:160")

    def kv_compute():
        KT = XF + 28
        kf = KT; wp = KT + 10; r0 = KT + 18; r1 = KT + 20; vf0 = KT + 22; vf1 = KT + 24; o = KT + 26
        SK = KT + 28
        vTA = vKV
        a.wait_lg(kv['last']); yield
        a(f"v_mul_u32_u24 v{vTA}, {8*144}, v{vPP}"); yield
        a(f"v_lshlrev_b32 v{o}, 2, v{vRP}"); yield
        a(f"v_sub_u32 v{vTA}, v{vTA}, v{o}"); yield
        a(f"s_lshl_b32 s{sT0}, s{sW}, 4")
        a(f"s_add_u32 s{sT0}, s{sT0}, {TB + 12}")
        a(f"v_add_u32 v{vTA}, s{sT0}, v{vTA}"); yield
        a(f"v_lshlrev_b32 v{vPP}, 6, v{vPP}"); yield
        a(f"v_add_u32 v{vPP}, {SHKL}, v{vPP}"); yield
        for i in range(4):
            if i % 2 == 0:
                a.ds(f"ds_read_b128 v[{SK}:{SK+3}], v{vPP} offset:{(i//2)*32}")
                d = a.ds(f"ds_read_b128 v[{SK+4}:{SK+7}], v{vPP} offset:{(i//2)*32 + 16}"); yield
            for r in range(5):
                a(f"v_lshlrev_b32 v{kf+2*r}, 16, v{KROW[r]+i}"); yield
                a(f"v_and_b32 v{kf+2*r+1}, 0xffff0000, v{KROW[r]+i}"); yield
            if i % 2 == 0:
                a.wait_lg(d)
            for t in range(4):
                ra = SK + 2*(2*(i % 2)) + (t >> 1); rb_ = SK + 2*(2*(i % 2) + 1) + (t >> 1)
                if t & 1:
                    a(f"v_and_b32 v{wp+2*t}, 0xffff0000, v{ra}"); yield
                    a(f"v_and_b32 v{wp+2*t+1}, 0xffff0000, v{rb_}"); yield
                else:
                    a(f"v_lshlrev_b32 v{wp+2*t}, 16, v{ra}"); yield
                    a(f"v_lshlrev_b32 v{wp+2*t+1}, 16, v{rb_}"); yield
            for t in range(4):
                for (dst, top) in ((r0, 3), (r1, 4)):
                    if t == 0: yield from pkop(a, "mul", dst, kf+2*top, wp, pk=True)
                    else: yield from pkop(a, "fma", dst, kf+2*(top-t), wp+2*t, dst, pk=True)
            for (vf, rr) in ((vf0, 0), (vf1, 1)):
                a(f"v_lshlrev_b32 v{vf}, 16, v{VROW[rr]+i}"); yield
                a(f"v_and_b32 v{vf+1}, 0xffff0000, v{VROW[rr]+i}"); yield
            yield from pkop(a, "mul", r0, r0, vf0, pk=True)
            yield from pkop(a, "mul", r1, r1, vf1, pk=True)
            a(f"v_cvt_pk_bf16_f32 v{o}, v{r1}, v{r0}"); yield
            a(f"v_cvt_pk_bf16_f32 v{o+1}, v{r1+1}, v{r0+1}"); yield
            a(f"s_mov_b32 exec_hi, 0xff")
            a.ds(f"ds_write_b32 v{vTA}, v{o} offset:{(2*i)*144}")
            a.ds(f"ds_write_b32 v{vTA}, v{o+1} offset:{(2*i+1)*144}")
            a(f"s_mov_b32 exec_hi, -1"); yield

    def kv_store():
        for rnd in range(2):
            T4 = (TMP + 8 + 4*rnd) if EARLY else (XF + 72 + 4*rnd)
            a(f"s_lshl_b32 s{sT0}, s{sW}, 3")
            if rnd: a(f"s_add_u32 s{sT0}, s{sT0}, 64")
            a(f"v_lshrrev_b32 v{t0}, 3, v{vL}")
            a(f"v_add_u32 v{t0}, s{sT0}, v{t0}"); yield
            a(f"v_and_b32 v{t1}, 7, v{vL}")
            a(f"v_lshlrev_b32 v{t1}, 4, v{t1}"); yield
            a(f"v_mul_u32_u24 v{t2}, 144, v{t0}")
            a(f"v_add_u32 v{t2}, v{t2}, v{t1}")
            a(f"v_add_u32 v{t2}, {TB}, v{t2}"); yield
            d = a.ds(f"ds_read_b128 v[{T4}:{T4+3}], v{t2}"); yield
            a(f"v_lshlrev_b32 v{t0}, 12, v{t0}")
            a(f"v_add_u32 v{t0}, v{t0}, v{t1}"); yield
            a.wait_lg(d)
            if rnd == 0:
                a.vmem(f"buffer_store_dwordx4 v[{T4}:{T4+3}], v{t0}, s[{sWS}:{sWS+3}], s{sKVB} offen"); yield
            else:
                lab = a.newlabel("k1_kvskip")
                a(f"s_cmp_ge_u32 s{sW}, 2")
                a(f"s_cbranch_scc1 {lab}")
                a(f"buffer_store_dwordx4 v[{T4}:{T4+3}], v{t0}, s[{sWS}:{sWS+3}], s{sKVB} offen")
                a.vm -= 1
                a.label(lab); yield

    def reads_g(p):
        sc = p % 5; b = p & 1
        so = (p % 3)*SLOT
        for kk in range(2):
            for ft in range(3):
                r = wf(b, kk, ft)
                a.ds(f"ds_read_b64_tr_b16 v[{r}:{r+1}], v{vWA[kk][ft]} offset:{so}"); yield
                a.ds(f"ds_read_b64_tr_b16 v[{r+2}:{r+3}], v{vWA[kk][ft]} offset:{so + 768}"); yield
        if p < 5:
            if p == 4:
                for kk in range(2):
                    for sl in range(2):
                        a(f"v_add_u32 v{vXA[kk][sl]}, 0x10000, v{vXA[kk][sl]}")
            for kk in range(2):
                for sl in range(2):
                    off = XR + (sc*16384 if p < 4 else 0)
                    a.ds(f"ds_read_b128 v[{xf(sc,kk,sl)}:{xf(sc,kk,sl)+3}], v{vXA[kk][sl]} offset:{off}"); yield
    def reads(p): run(reads_g(p))

    def mfmas(p, fill, nfill, dmaf=None):
        sc = p % 5; b = p & 1
        first = (sc == 0)
        ops = []
        for kk in range(2):
            for ft in range(3):
                for sl in range(2):
                    c = "0" if (first and kk == 0) else f"v[{acc(ft,sl)}:{acc(ft,sl)+3}]"
                    ops.append(f"v_mfma_f32_16x16x32_bf16 v[{acc(ft,sl)}:{acc(ft,sl)+3}], v[{wf(b,kk,ft)}:{wf(b,kk,ft)+3}], v[{xf(sc,kk,sl)}:{xf(sc,kk,sl)+3}], {c}")
                if kk == 0 and "nostat" not in K1X:
                    c = "0" if first else f"v[{CSA+4*ft}:{CSA+4*ft+3}]"
                    ops.append(f"v_mfma_f32_16x16x32_bf16 v[{CSA+4*ft}:{CSA+4*ft+3}], v[{wf(b,0,ft)}:{wf(b,0,ft)+3}], v[{ONE}:{ONE+3}], {c}")
            if p < 5 and "nostat" not in K1X:
                x = xf(sc, kk, 0)
                c = "0" if (first and kk == 0) else f"v[{XSA}:{XSA+3}]"
                ops.append(f"v_mfma_f32_16x16x32_bf16 v[{XSA}:{XSA+3}], v[{ONE}:{ONE+3}], v[{x}:{x+3}], {c}")
                c = "0" if (first and kk == 0) else f"v[{XQA}:{XQA+3}]"
                ops.append(f"v_mfma_f32_16x16x32_bf16 v[{XQA}:{XQA+3}], v[{x}:{x+3}], v[{x}:{x+3}], {c}")
        nd = 0
        for oi, o in enumerate(ops):
            a(o)
            if dmaf is not None and oi % 3 == 1: dmaf.step(1)
            fill.step(nfill)
        if dmaf is not None: dmaf.drain()

    def exchange_write(ps, dst):
        T = TMP
        a(f"v_lshl_add_u32 v{t0}, v{vL}, 4, s{sEXW}")
        a(f"v_lshl_add_u32 v{t1}, v{vQ}, 4, s{sCSW}")
        for ft in range(3):
            a.ds(f"ds_write_b128 v{t0}, v[{acc(ft,1)}:{acc(ft,1)+3}] offset:{ft*1024}")
        a(f"s_mov_b32 exec_lo, 0x00010001")
        a(f"s_mov_b32 exec_hi, 0x00010001")
        for ft in range(3):
            a.ds(f"ds_write_b128 v{t1}, v[{CSA+4*ft}:{CSA+4*ft+3}] offset:{ps*1536 + ft*64}")
        a(f"s_mov_b64 exec, -1")
        if ps == 0:
            a(f"v_and_b32 v{T}, 3, v{vP}")
            a(f"v_cmp_eq_u32 vcc, 1, v{T}")
            a(f"v_cndmask_b32 v{XSA+1}, v{XQA}, v{XQA+1}, vcc")
            a(f"v_cmp_eq_u32 vcc, 2, v{T}")
            a(f"v_cndmask_b32 v{XSA+1}, v{XSA+1}, v{XQA+2}, vcc")
            a(f"v_cmp_eq_u32 vcc, 3, v{T}")
            a(f"v_cndmask_b32 v{XSA+1}, v{XSA+1}, v{XQA+3}, vcc")
            a(f"v_lshl_add_u32 v{t2}, v{vP}, 3, s{sXSW}")
            a(f"s_mov_b32 exec_lo, 0x00F0000F")
            a(f"s_mov_b32 exec_hi, 0xF0000F00")
            a.ds(f"ds_write_b64 v{t2}, {P(XSA)}")
            a(f"s_mov_b64 exec, -1")
        for ft in range(3):
            for h in range(2):
                a(f"v_pk_add_f32 {P(dst+4*ft+2*h)}, {P(acc(ft,0)+2*h)}, 0")
        if ps == 0:
            a(f"v_mov_b32 v{vC1}, {f32(-C1):#x}"); a(f"v_mov_b32 v{vC1+1}, {f32(-C1):#x}")

    def fold_gelu(ps, dst, E, X, C):
        a(f"v_lshl_add_u32 v{t0}, v{vL}, 4, s{sEXR}")
        if ps == 0:
            a(f"v_lshl_add_u32 v{t1}, v{vP}, 3, s{sXSR}")
            a.ds(f"ds_read_b64 {P(X)}, v{t1}")
            dx = a.ds(f"ds_read_b64 {P(X+2)}, v{t1} offset:128")
        ids = [a.ds(f"ds_read_b128 v[{E+4*ft}:{E+4*ft+3}], v{t0} offset:{ft*1024}") for ft in range(3)]
        a(f"v_lshl_add_u32 v{t2}, v{vQ}, 4, s{sCSR}")
        cid = []
        for q in range(4):
            for ft in range(3):
                cid.append(a.ds(f"ds_read_b128 v[{C[q]+4*ft}:{C[q]+4*ft+3}], v{t2} offset:{ps*1536 + q*192 + ft*64}"))
        if ps == 0:
            a.wait_lg(dx)
            a(f"v_pk_add_f32 {P(vMR)}, {P(X)}, {P(X+2)}")
            a(f"v_mul_f32 v{vM}, {f32(1.0/640):#x}, v{vM}")
            a(f"v_mul_f32 v{vR}, {f32(1.0/640):#x}, v{vR}")
            a(f"v_fma_f32 v{vR}, -v{vM}, v{vM}, v{vR}")
            run(ln_finish_gen(a, vM, vR, sEPS))
            a(f"v_mov_b32 v{vRB}, v{vR}")
        a.wait_lg(ids[2])
        for i in range(0, 12, 2): a(f"v_pk_add_f32 {P(dst+i)}, {P(dst+i)}, {P(E+i)}")
        a.wait_lg(cid[5])
        for i in range(0, 12, 2): a(f"v_pk_add_f32 {P(C[0]+i)}, {P(C[0]+i)}, {P(C[1]+i)}")
        a.wait_lg(cid[11])
        for i in range(0, 12, 2): a(f"v_pk_add_f32 {P(C[2]+i)}, {P(C[2]+i)}, {P(C[3]+i)}")
        for i in range(0, 12, 2): a(f"v_pk_add_f32 {P(C[0]+i)}, {P(C[0]+i)}, {P(C[2]+i)}")
        for i in range(0, 12, 2):
            a(f"v_pk_fma_f32 {P(dst+i)}, {P(C[0]+i)}, {P(vMR)}, {P(dst+i)} op_sel_hi:[1,0,1] neg_lo:[0,1,0] neg_hi:[0,1,0]")
        for i in range(0, 12, 2): a(f"v_pk_mul_f32 {P(dst+i)}, {P(dst+i)}, {P(vRB)} op_sel_hi:[1,0]")
        T = E
        for i in range(0, 12, 2): a(f"v_pk_mul_f32 {P(T+i)}, {P(dst+i)}, {P(dst+i)}")
        for i in range(0, 12, 2): a(f"v_pk_fma_f32 {P(T+i)}, {P(T+i)}, s[{sNC2}:{sNC2+1}], {P(vC1)}")
        for i in range(0, 12, 2): a(f"v_pk_mul_f32 {P(T+i)}, {P(T+i)}, {P(dst+i)}")
        for i in range(12): a(f"v_exp_f32 v{T+i}, v{T+i}")
        for i in range(0, 12, 2): a(f"v_pk_add_f32 {P(T+i)}, {P(T+i)}, 1.0 op_sel_hi:[1,0]")
        for i in range(12): a(f"v_rcp_f32 v{T+i}, v{T+i}")
        for i in range(0, 12, 2): a(f"v_pk_mul_f32 {P(dst+i)}, {P(dst+i)}, {P(T+i)}")

    def z2_stats():
        T = TMP
        a(f"v_pk_add_f32 {P(T+6)}, {P(Z2V)}, {P(Z2V+2)}"); yield
        a(f"v_pk_mul_f32 {P(T+8)}, {P(Z2V)}, {P(Z2V)}"); yield
        a(f"v_pk_add_f32 {P(T+10)}, {P(Z2V+4)}, {P(Z2V+6)}"); yield
        a(f"v_pk_fma_f32 {P(T+8)}, {P(Z2V+2)}, {P(Z2V+2)}, {P(T+8)}"); yield
        a(f"v_pk_add_f32 {P(T+12)}, {P(Z2V+8)}, {P(Z2V+10)}"); yield
        a(f"v_pk_fma_f32 {P(T+8)}, {P(Z2V+4)}, {P(Z2V+4)}, {P(T+8)}"); yield
        a(f"v_pk_add_f32 {P(T+6)}, {P(T+6)}, {P(T+10)}"); yield
        a(f"v_pk_fma_f32 {P(T+8)}, {P(Z2V+6)}, {P(Z2V+6)}, {P(T+8)}"); yield
        a(f"v_pk_add_f32 {P(T+6)}, {P(T+6)}, {P(T+12)}"); yield
        a(f"v_pk_fma_f32 {P(T+8)}, {P(Z2V+8)}, {P(Z2V+8)}, {P(T+8)}"); yield
        a(f"v_pk_fma_f32 {P(T+8)}, {P(Z2V+10)}, {P(Z2V+10)}, {P(T+8)}"); yield
        a(f"v_add_f32 v{T}, v{T+6}, v{T+7}"); yield
        a(f"v_add_f32 v{T+1}, v{T+8}, v{T+9}"); yield
        a(f"v_lshl_add_u32 v{t0}, v{vP}, 3, s{sZSW}"); yield
        yield from reduce_g4_multi(a, [T, T+1], [T+4, T+5])
        a(f"s_mov_b64 exec, 0xffff")
        a.ds(f"ds_write_b64 v{t0}, {P(T)}")
        a(f"s_mov_b64 exec, -1"); yield

    def xst_store():
        a(f"s_or_b32 s{sT0}, s{sJ}, s{sFH}")
        a(f"s_cmp_eq_u32 s{sT0}, 0")
        a(f"v_lshlrev_b32 v{t0}, 3, v{vP}")
        a(f"s_cselect_b64 exec, 0xffff, 0")
        a.vmem(f"buffer_store_dwordx2 {P(vMR)}, v{t0}, s[{sWS}:{sWS+3}], s{sXST} offen" + (" sc1" if fused else ""))
        a(f"s_mov_b64 exec, -1")
        yield

    sGU = 89
    a(f"s_lshl_b32 s{sGU}, s2, 3")
    a(f"s_add_u32 s{sGU}, s{sGU}, s{sW}")
    def mall_touch(srd, nper, first, count):
        if "nomall" in K1X: return
        a(f"s_mul_i32 s{sT0}, s{sGU}, {nper*128}")
        a(f"s_add_u32 s{sT0}, s{sT0}, {first*128}")
        mask(a, count)
        a.vmem(f"buffer_load_dword v{vDummy}, v{vTO}, s[{srd}:{srd+3}], s{sT0} offen")
        mask(a, 64)

    def l2_touch_wsp(i):
        a(f"s_add_u32 s{sT0}, s{sL2B}, {i*128}")
        mask(a, 8)
        a.vmem(f"buffer_load_dword v{vDummy}, v{vTO2}, s[{sWSP}:{sWSP+3}], s{sT0} offen")
        mask(a, 64)

    def epoch_load():
        a(f"v_mov_b32 v{KX+2}, {WS_EPO}")
        zfin['ep'] = a.vmem(f"buffer_load_dwordx2 {P(KX)}, v{KX+2}, s[{sWS}:{sWS+3}], 0 offen sc1")

    def gen1(f):
        f(); yield

    SP = TMP + 20
    vFA = vXD[0]
    vDummy2 = vPP
    def stats_load():
        a(f"v_lshlrev_b32 v{vFA}, 4, v{vP}")
        a(f"v_lshl_add_u32 v{vFA}, v{vQ}, 11, v{vFA}")
        a.vmem(f"buffer_load_dwordx4 v[{SP}:{SP+3}], v{vFA}, s[{sWS}:{sWS+3}], s{sZRB} offen sc1")
        zfin['sp'] = a.vmem(f"buffer_load_dwordx4 v[{SP+4}:{SP+7}], v{vFA}, s[{sWS}:{sWS+3}], s{sZRB} offen offset:1024 sc1")
    def stats_check():
        a.wait_vm(zfin['sp'])
        lp = a.newlabel("k1_poll"); lp2 = a.newlabel("k1_polled")
        a(f"s_mov_b32 s{sD0}, 0")
        a.label(lp)
        a(f"s_add_u32 s{sD0}, s{sD0}, 1")
        a(f"s_cmp_gt_u32 s{sD0}, 100000")
        a(f"s_cbranch_scc1 {lp2}")
        a(f"v_cmp_ne_u32 vcc, s{sTAG}, v{SP+2}")
        a(f"v_cmp_ne_u32 s[{sT2}:{sT2+1}], s{sTAG+1}, v{SP+3}")
        a(f"s_or_b64 vcc, vcc, s[{sT2}:{sT2+1}]")
        a(f"v_cmp_ne_u32 s[{sT2}:{sT2+1}], s{sTAG}, v{SP+6}")
        a(f"s_or_b64 vcc, vcc, s[{sT2}:{sT2+1}]")
        a(f"v_cmp_ne_u32 s[{sT2}:{sT2+1}], s{sTAG+1}, v{SP+7}")
        a(f"s_or_b64 vcc, vcc, s[{sT2}:{sT2+1}]")
        if 'nopoll' in K1X: a("s_mov_b64 vcc, 0")
        a(f"s_cmp_eq_u64 vcc, 0")
        a(f"s_cbranch_scc1 {lp2}")
        a("s_sleep 4")
        a(f"buffer_load_dwordx4 v[{SP}:{SP+3}], v{vFA}, s[{sWS}:{sWS+3}], s{sZRB} offen sc1")
        a(f"buffer_load_dwordx4 v[{SP+4}:{SP+7}], v{vFA}, s[{sWS}:{sWS+3}], s{sZRB} offen offset:1024 sc1")
        a.vm -= 2
        a("s_waitcnt vmcnt(0)")
        a(f"s_branch {lp}")
        a.label(lp2)
    def z2_normalize():
        vZW = vRP
        a(f"s_lshl_b32 s{sT0}, s{sST}, 4")
        a(f"v_add_u32 v{vZW}, s{sT0}, v{vP}")
        a(f"v_mul_u32_u24 v{vZW}, 200, v{vZW}")
        a(f"v_lshl_add_u32 v{vZW}, v{vQ}, 3, v{vZW}")
        a(f"s_mul_i32 s{sT0}, s{sFH}, 96")
        a(f"s_add_u32 s{sT0}, s{sT0}, {ZT}")
        a(f"v_add_u32 v{vZW}, s{sT0}, v{vZW}")
        stats_check()
        lab = a.newlabel("k1_ep")
        a(f"s_xor_b32 s{sT0}, s{sW}, 1")
        a(f"s_or_b32 s{sT0}, s{sT0}, s{sJ}")
        a(f"s_cmp_lg_u32 s{sT0}, 0")
        a(f"s_cbranch_scc1 {lab}")
        a(f"v_mov_b32 v{t0}, 0")
        a(f"v_mov_b32 v{vDummy2}, 1")
        a(f"s_mov_b64 exec, 1")
        a(f"buffer_atomic_add v{vDummy2}, v{t0}, s[{sDBG}:{sDBG+3}], 0 offen sc0")
        a(f"s_mov_b64 exec, -1")
        a.vm -= 1
        a.label(lab)
        mq = TMP
        a(f"v_pk_add_f32 {P(mq)}, {P(SP)}, {P(SP+4)}")
        run(reduce_g4_multi(a, [mq, mq+1], [TMP+2, TMP+3]))
        a(f"v_mul_f32 v{mq}, {f32(1.0/768):#x}, v{mq}")
        a(f"v_mul_f32 v{mq+1}, {f32(1.0/768):#x}, v{mq+1}")
        a(f"v_fma_f32 v{mq+1}, -v{mq}, v{mq}, v{mq+1}")
        run(ln_finish_gen(a, mq, mq+1, sEPS))
        a(f"v_mov_b32 v{TMP+2}, v{mq+1}")
        for i in range(0, 12, 2):
            a(f"v_pk_add_f32 {P(Z2V+i)}, {P(Z2V+i)}, {P(mq)} op_sel_hi:[1,0] neg_lo:[0,1] neg_hi:[0,1]")
        for i in range(0, 12, 2):
            a(f"v_pk_mul_f32 {P(Z2V+i)}, {P(Z2V+i)}, {P(TMP+2)} op_sel_hi:[1,0]")
        for ft in range(3):
            a(f"v_cvt_pk_bf16_f32 v{TMP+8+2*ft}, v{Z2V+4*ft}, v{Z2V+4*ft+1}")
            a(f"v_cvt_pk_bf16_f32 v{TMP+8+2*ft+1}, v{Z2V+4*ft+2}, v{Z2V+4*ft+3}")
            a.ds(f"ds_write_b64 v{vZW}, {P(TMP+8+2*ft)} offset:{32*ft}")

    PUB = int(os.environ.get("PUB", "6"))
    NF5 = int(os.environ.get("NF5", "5"))
    vZR = KX; vZS = KX + 1
    def z2_addr():
        pass
        a(f"v_lshrrev_b32 v{vZR}, 1, v{vQ}")
        a(f"v_lshrrev_b32 v{t1}, 2, v{vP}")
        a(f"v_lshl_add_u32 v{vZR}, v{vZR}, 3, v{t1}")
        a(f"v_mul_u32_u24 v{vZR}, 200, v{vZR}")
        a(f"v_and_b32 v{t1}, 1, v{vQ}")
        a(f"v_lshl_add_u32 v{vZR}, v{t1}, 5, v{vZR}")
        a(f"v_and_b32 v{t1}, 3, v{vP}")
        a(f"v_lshl_add_u32 v{vZR}, v{t1}, 3, v{vZR}")
        a(f"v_lshlrev_b32 v{vZS}, 4, v{vL}")
    def z2_frag_stores():
        for rnd in range(2):
            lab = None
            if rnd == 1:
                lab = a.newlabel("k1_fr")
                a(f"s_cmp_ge_u32 s{sW}, 4")
                a(f"s_cbranch_scc1 {lab}")
            a(f"v_add_u32 v{t1}, s{sZ2L[rnd]}, v{vZR}")
            Tq = TMP + 4*rnd
            a(f"ds_read_b64_tr_b16 {P(Tq)}, v{t1}")
            a(f"ds_read_b64_tr_b16 {P(Tq+2)}, v{t1} offset:800")
            a("s_waitcnt lgkmcnt(0)")
            a(f"buffer_store_dwordx4 v[{Tq}:{Tq+3}], v{vZS}, s[{sWS}:{sWS+3}], s{sZ2G[rnd]} offen")
            if lab: a.label(lab)
    def publish_f1():
        a(f"s_lshl_b32 s{sT0}, s{sJ}, 8")
        a(f"s_lshl_b32 s{sT1}, s{sRB}, 3")
        a(f"s_add_u32 s{sT0}, s{sT0}, s{sT1}")
        a(f"s_add_u32 s{sT0}, s{sT0}, {WS_F1}")
        a(f"v_mov_b32 v{TMP}, s{sTAG}")
        a(f"v_mov_b32 v{TMP+1}, s{sTAG+1}")
        a(f"v_mov_b32 v{t0}, 0")
        a(f"s_cmp_eq_u32 s{sW}, 0")
        a(f"s_cselect_b64 exec, 1, 0")
        a(f"buffer_store_dwordx2 {P(TMP)}, v{t0}, s[{sWS}:{sWS+3}], s{sT0} offen sc1")
        a(f"s_mov_b64 exec, -1")

    fill = Filler()
    A, B, C_ = sT0, sT1, sT2
    a(f"s_mul_i32 s{sEXW}, s{sW}, 3072"); a(f"s_add_u32 s{sEXW}, s{sEXW}, {EX}")
    a(f"s_xor_b32 s{A}, s{sW}, 4"); a(f"s_mul_i32 s{sEXR}, s{A}, 3072"); a(f"s_add_u32 s{sEXR}, s{sEXR}, {EX}")
    a(f"s_lshl_b32 s{A}, s{sFH}, 2"); a(f"s_lshl_b32 s{B}, s{sSH}, 1"); a(f"s_add_u32 s{A}, s{A}, s{B}"); a(f"s_add_u32 s{A}, s{A}, s{sKH}")
    a(f"s_mul_i32 s{sCSW}, s{A}, 192"); a(f"s_add_u32 s{sCSW}, s{sCSW}, {CSUM}")
    a(f"s_mul_i32 s{sCSR}, s{sFH}, 768"); a(f"s_add_u32 s{sCSR}, s{sCSR}, {CSUM}")
    a(f"s_lshl_b32 s{A}, s{sST}, 1"); a(f"s_add_u32 s{A}, s{A}, s{sKH}"); a(f"s_lshl_b32 s{A}, s{A}, 7"); a(f"s_add_u32 s{sXSW}, s{A}, {XSUM}")
    a(f"s_lshl_b32 s{A}, s{sST}, 8"); a(f"s_add_u32 s{sXSR}, s{A}, {XSUM}")
    a(f"s_lshl_b32 s{A}, s{sST}, 7"); a(f"s_lshl_b32 s{B}, s{sFH}, 9"); a(f"s_add_u32 s{A}, s{A}, s{B}"); a(f"s_add_u32 s{sZSW}, s{A}, {ZSUM}")
    a(f"s_lshl_b32 s{A}, s{sRB}, 3"); a(f"s_add_u32 s{A}, s{A}, s{sJ}"); a(f"s_lshl_b32 s{B}, s{A}, 10"); a(f"s_add_u32 s{sZPB}, s{B}, {WS_ZST}")
    if fused: a(f"s_mov_b32 s{A}, 0")
    else: a(f"s_mul_i32 s{A}, s{A}, 12288")
    a(f"s_lshr_b32 s{B}, s{sST}, 1"); a(f"s_mul_i32 s{B}, s{B}, 6144"); a(f"s_add_u32 s{A}, s{A}, s{B}")
    a(f"s_and_b32 s{B}, s{sST}, 1"); a(f"s_lshl_b32 s{B}, s{B}, 8"); a(f"s_add_u32 s{A}, s{A}, s{B}"); a(f"s_add_u32 s{A}, s{A}, {Z1L if fused else WS_Z1F}")
    for ft, dst in enumerate((sZ1S0, sZ1S1, sZ1S2)):
        a(f"s_mul_i32 s{B}, s{sFH}, 3"); a(f"s_add_u32 s{B}, s{B}, {ft}")
        a(f"s_lshr_b32 s{C_}, s{B}, 1"); a(f"s_lshl_b32 s{C_}, s{C_}, 10"); a(f"s_and_b32 s{B}, s{B}, 1"); a(f"s_lshl_b32 s{B}, s{B}, 3")
        a(f"s_add_u32 s{dst}, s{A}, s{B}"); a(f"s_add_u32 s{dst}, s{dst}, s{C_}")
    a(f"s_lshl_b32 s{A}, s{sRB}, 13"); a(f"s_lshl_b32 s{B}, s{sST}, 8"); a(f"s_add_u32 s{A}, s{A}, s{B}"); a(f"s_add_u32 s{sZRB}, s{A}, {WS_ZST}")
    a(f"s_lshl_b32 s{A}, s{sRB}, 9"); a(f"s_lshl_b32 s{B}, s{sST}, 7"); a(f"s_add_u32 s{A}, s{A}, s{B}"); a(f"s_add_u32 s{sXST}, s{A}, {WS_XST}")
    a(f"s_mul_i32 s{A}, s{sJ}, {80*4096}"); a(f"s_lshl_b32 s{B}, s{sRB}, 7"); a(f"s_add_u32 s{A}, s{A}, s{B}"); a(f"s_add_u32 s{sKVB}, s{A}, {WS_KVT}")
    a(f"s_lshr_b32 s{A}, s2, 3"); a(f"s_lshl_b32 s{A}, s{A}, 3"); a(f"s_add_u32 s{A}, s{A}, s{sW}"); a(f"s_lshl_b32 s{A}, s{A}, 13")
    a(f"s_lshl_b32 s{B}, s{sXC}, 21"); a(f"s_add_u32 s{sL2B}, s{A}, s{B}")
    for rnd in range(2):
        a(f"s_add_u32 s{sT3}, s{sW}, {8*rnd}")
        a(f"s_mul_i32 s{A}, s{sT3}, 43"); a(f"s_lshr_b32 s{A}, s{A}, 7")
        a(f"s_mul_i32 s{B}, s{A}, 3"); a(f"s_sub_u32 s{B}, s{sT3}, s{B}")
        a(f"s_mul_i32 s{A}, s{A}, {16*200}"); a(f"s_lshl_b32 s{B}, s{B}, 6"); a(f"s_add_u32 s{A}, s{A}, s{B}")
        a(f"s_add_u32 s{sZ2L[rnd]}, s{A}, {ZT}")
        a(f"s_lshl_b32 s{A}, s{sJ}, 7"); a(f"s_lshl_b32 s{B}, s{sRB}, 2"); a(f"s_add_u32 s{A}, s{A}, s{B}"); a(f"s_mul_i32 s{A}, s{A}, 3")
        a(f"s_add_u32 s{A}, s{A}, s{sT3}"); a(f"s_lshl_b32 s{A}, s{A}, 10"); a(f"s_add_u32 s{sZ2G[rnd]}, s{A}, {WS_Z2F}")
    if "pro" in K1X: ST("setup")
    a.wait_vm(max(w_last[0], x_last[0]))
    if "pro" in K1X: ST("w0arr")
    a("s_waitcnt lgkmcnt(0)")
    a(f"s_add_u32 s{sTAG}, s{sTAG}, 1")
    a(f"s_addc_u32 s{sTAG+1}, s{sTAG+1}, 0")
    a("s_barrier")
    ST("d0")
    reads(0)
    dma_x(2); dma_w(2)
    for p in range(10):
        a.comment(f"---------------- iteration {p}")
        if p + 1 < 10:
            need = w_last[p+1]
            if p + 1 < 5: need = max(need, x_last[p+1])
            a.wait_vm(need)
        if "f5" in K1X and p in (5, 6): ST(f"w{p}")
        a("s_waitcnt lgkmcnt(0)")
        a("s_barrier")
        if ("pro" not in K1X or p < 2) and ("pubst" not in K1X or p in (6, 7, 8, 9)): ST(f"i{p}")
        if p == PUB:
            lab = a.newlabel("k1_pub")
            a(f"s_cmp_lg_u32 s{sW}, 0")
            a(f"s_cbranch_scc1 {lab}")
            a(f"v_lshlrev_b32 v{t0}, 3, v{vL}")
            a(f"v_add_u32 v{t1}, {ZSUM}, v{t0}")
            a(f"ds_read_b64 {P(TMP)}, v{t1}")
            a(f"ds_read_b64 {P(TMP+4)}, v{t1} offset:512")
            a(f"v_lshlrev_b32 v{t0}, 4, v{vL}")
            a(f"v_mov_b32 v{TMP+2}, s{sTAG}")
            a(f"v_mov_b32 v{TMP+3}, s{sTAG+1}")
            a("s_waitcnt lgkmcnt(0)")
            a(f"v_pk_add_f32 {P(TMP)}, {P(TMP)}, {P(TMP+4)}")
            a.lg -= 2
            a.label(lab)
            a(f"s_cmp_eq_u32 s{sW}, 0")
            a(f"s_cselect_b64 exec, -1, 0")
            a.vmem(f"buffer_store_dwordx4 v[{TMP}:{TMP+3}], v{t0}, s[{sWS}:{sWS+3}], s{sZPB} offen sc1")
            a(f"s_mov_b64 exec, -1")
        if p + 1 < 10 and "nocomp" not in K1X:
            if "rdfirst" in K1X: reads(p + 1)
            else: fill.add(reads_g(p + 1))
        dmaf = Filler()
        if p + 3 < 5: dmaf.add(dma_x_g(p + 3))
        if p + 3 < 10: dmaf.add(dma_w_g(p + 3))
        if p == int(os.environ.get("KVD", "5")): dmaf.add(kv_dma())
        sched = {"a": {1:[0],2:[1],3:[2],4:[3],5:[4],6:[5],7:[6],8:[7]},
                 "b": {5:[0,1],6:[2,3],7:[4,5],8:[6,7]},
                 "c": {4:[0],5:[1],6:[2,3],7:[4,5],8:[6,7]},
                 "d": {6:[0,1,2],7:[3,4,5],8:[6,7]},
                 "e": {7:[0,1,2,3],8:[4,5,6,7]},
                 "f": {}, "g": {8:[0,1,2,3]}, "h": {9:[0,1,2,3]}, "i": {7:[0,1], 8:[2,3,4], 9:[5,6,7]}}[os.environ.get("L2S", "a")]
        for i_ in sched.get(p, []):
            if "l2pf" in K1X: dmaf.add(gen1(lambda i_=i_: l2_touch_wsp(i_)))
            else: dmaf.add(gen1(lambda i_=i_: mall_touch(sWSP, 32, i_*4, 4)))
        if p in (2, 5): dmaf.add(gen1(lambda p=p: mall_touch(sSSM, 10, 0 if p == 2 else 5, 5)))
        if p == 7 and "nowo" not in K1X: dmaf.add(gen1(lambda: mall_touch(sWOU, 4, 0, 4)))
        if p == (8 if EARLY else int(os.environ.get('SLD', '9'))): stats_load()
        if p == 9 and EARLY:
            z2_frag_stores()
            run(kv_store())
        nf = 0 if "rdfirst" in K1X else 2
        if p == 5:
            if "f5" in K1X: ST("f5a")
            fold_gelu(0, Z2V, TMP, TMP+12, [TMP+16, ACC, ACC+12, CSA])
            if "f5" in K1X: ST("f5b")
            run(z2_stats()); run(xst_store())
            if "f5" in K1X: ST("f5c")
        if "nocomp" in K1X:
            dmaf.drain(); fill.q = []
        else:
            mfmas(p, fill, nf, dmaf)
            fill.drain()
        if "f5" in K1X and p in (4, 5): ST(f"f{p}m")
        if p == 4: exchange_write(0, Z2V)
        if p == 8 and EARLY:
            kv_loads()
            run(kv_compute())
            z2_normalize()
            z2_addr()
        if p == 9:
            if "f5" in K1X: ST("f9m")
            exchange_write(1, WF)
            if not EARLY:
                kv_loads()
                run(kv_compute())
                if "f5" in K1X: ST("f9k")
                z2_normalize()
    ST("loop")
    if not EARLY:
        z2_addr()
        a("s_waitcnt lgkmcnt(0)")
        a("s_barrier")
        ST("bar")
        z2_frag_stores()
        run(kv_store())
    else:
        a("s_waitcnt vmcnt(0) lgkmcnt(0)")
        a("s_barrier")
        ST("bar")
        publish_f1()
        if "l2pf" in K1X:
            L2S_ = os.environ.get("L2S", "a")
            for i_ in {"f": range(8), "g": range(4, 8), "h": range(4, 8)}.get(L2S_, []): l2_touch_wsp(i_)
    Z1V = WF
    T2 = XF
    fold_gelu(1, Z1V, T2, T2+12, [T2+16, T2+28, T2+40, T2+52])
    a(f"v_lshrrev_b32 v{t0}, 1, v{vQ}")
    a(f"v_mul_u32_u24 v{t0}, 3072, v{t0}")
    a(f"v_and_b32 v{t1}, 1, v{vQ}")
    a(f"v_lshlrev_b32 v{t1}, 5, v{t1}")
    a(f"v_add_u32 v{t1}, v{t1}, v{vP}")
    a(f"v_lshl_add_u32 v{t0}, v{t1}, 4, v{t0}")
    for ft in range(3):
        a(f"v_cvt_pk_bf16_f32 v{T2+2*ft}, v{Z1V+4*ft}, v{Z1V+4*ft+1}")
        a(f"v_cvt_pk_bf16_f32 v{T2+2*ft+1}, v{Z1V+4*ft+2}, v{Z1V+4*ft+3}")
        if fused:
            a(f"v_add_u32 v{t1}, s{[sZ1S0, sZ1S1, sZ1S2][ft]}, v{t0}")
            a.ds(f"ds_write_b64 v{t1}, {P(T2+2*ft)}")
        else:
            a.vmem(f"buffer_store_dwordx2 {P(T2+2*ft)}, v{t0}, s[{sWS}:{sWS+3}], s{[sZ1S0, sZ1S1, sZ1S2][ft]} offen")
    lab = a.newlabel("k1_ep2")
    a(f"s_xor_b32 s{sT0}, s{sW}, 1")
    a(f"s_or_b32 s{sT0}, s{sT0}, s{sJ}")
    a(f"s_cmp_lg_u32 s{sT0}, 0")
    a(f"s_cbranch_scc1 {lab}")
    a("s_waitcnt vmcnt(0)")
    a(f"v_readfirstlane_b32 s{sT0}, v{vDummy2}")
    a(f"s_cmp_lg_u32 s{sT0}, 31")
    a(f"s_cbranch_scc1 {lab}")
    a(f"v_mov_b32 v{TMP}, s{sTAG}")
    a(f"v_mov_b32 v{TMP+1}, s{sTAG+1}")
    a(f"v_mov_b32 v{t0}, {WS_EPO}")
    a(f"s_mov_b64 exec, 1")
    a(f"buffer_store_dwordx2 {P(TMP)}, v{t0}, s[{sWS}:{sWS+3}], 0 offen sc1")
    a(f"s_mov_b64 exec, -1")
    a.label(lab)
    if fused and EARLY:
        a("s_waitcnt lgkmcnt(0)")
        a("s_barrier")
    if fused and not EARLY:
        a("s_waitcnt vmcnt(0) lgkmcnt(0)")
        a("s_barrier")
        a(f"s_lshl_b32 s{sT0}, s{sJ}, 8")
        a(f"s_lshl_b32 s{sT1}, s{sRB}, 3")
        a(f"s_add_u32 s{sT0}, s{sT0}, s{sT1}")
        a(f"s_add_u32 s{sT0}, s{sT0}, {WS_F1}")
        a(f"v_mov_b32 v{TMP}, s{sTAG}")
        a(f"v_mov_b32 v{TMP+1}, s{sTAG+1}")
        a(f"v_mov_b32 v{t0}, 0")
        a(f"s_cmp_eq_u32 s{sW}, 0")
        a(f"s_cselect_b64 exec, 1, 0")
        a(f"buffer_store_dwordx2 {P(TMP)}, v{t0}, s[{sWS}:{sWS+3}], s{sT0} offen sc1")
        a(f"s_mov_b64 exec, -1")
    ST("end")
    ST.dump(sWS, sW, t0, t1, WS_DBG)
    gen_k1.stamp_names = ST.names
    if fused:
        if "st2" not in K1X: raise SystemExit("fused needs st2")
        a.items = [(k, (t + " sc1") if (k == "i" and t.startswith("buffer_store_dwordx4") and " sc1" not in t) else t) for k, t in a.items]
        return a, V.hi, sW
    a.label(f"{name}_end")
    a("s_endpgm")
    if "st2" in K1X:
        a.items = [(k, (t + " sc1") if (k == "i" and t.startswith("buffer_store_dwordx4") and " sc1" not in t) else t) for k, t in a.items]
    if "st1" in K1X:
        a.items = [(k, (t + " sc1") if (k == "i" and t.startswith("buffer_store") and " sc1" not in t) else t) for k, t in a.items]
    gen_k1.ninstr = sum(1 for k, _ in a.items if k == "i")
    return a.finish(), V.hi
```

```python
from dsl import *
from layout import *
from k1 import f32, Filler, run, mask, P, Z1L, SYNC
sTAGF = 100

def gsync(a, which, state, t0, t1):
    state[0] += 1
    a("s_waitcnt lgkmcnt(0)")
    a(f"v_mov_b32 v{t0}, {SYNC + 4*which}")
    a(f"v_mov_b32 v{t1}, 1")
    a("s_mov_b64 exec, 1")
    a(f"ds_add_u32 v{t0}, v{t1}")
    a("s_mov_b64 exec, -1")
    lp = a.newlabel("gsync"); le = a.newlabel("gsync_e")
    a("s_mov_b32 s67, 0")
    a.label(lp)
    a(f"ds_read_b32 v{t1}, v{t0}")
    a("s_add_u32 s67, s67, 1")
    a("s_waitcnt lgkmcnt(0)")
    a(f"v_readfirstlane_b32 s66, v{t1}")
    a("s_cmp_gt_u32 s67, 1000000")
    a(f"s_cbranch_scc1 {le}")
    a(f"s_cmp_lt_u32 s66, {4*state[0]}")
    a(f"s_cbranch_scc1 {lp}")
    a.label(le)
    a.lg -= 2

def poll_all_flags(a, sWS, F, t0, base=None):
    lp = a.newlabel("fpoll"); le = a.newlabel("fpoll_e")
    a(f"v_mbcnt_lo_u32_b32 v{t0}, -1, 0")
    a(f"v_mbcnt_hi_u32_b32 v{t0}, -1, v{t0}")
    a(f"v_lshlrev_b32 v{t0}, 4, v{t0}")
    a(f"s_mov_b32 s66, {WS_F1 if base is None else base}")
    a("s_mov_b32 s67, 0")
    a.label(lp)
    a(f"buffer_load_dwordx4 v[{F}:{F+3}], v{t0}, s[{sWS}:{sWS+3}], s66 offen sc1")
    a(f"buffer_load_dwordx4 v[{F+4}:{F+7}], v{t0}, s[{sWS}:{sWS+3}], s66 offen offset:1024 sc1")
    a.vm -= 2
    a("s_add_u32 s67, s67, 1")
    a("s_waitcnt vmcnt(0)")
    a(f"v_cmp_ne_u32 vcc, s{sTAGF}, v{F}")
    for k in range(1, 8):
        a(f"v_cmp_ne_u32 s[64:65], s{sTAGF + (k & 1)}, v{F+k}")
        a("s_or_b64 vcc, vcc, s[64:65]")
    a("s_cmp_gt_u32 s67, 100000")
    a(f"s_cbranch_scc1 {le}")
    a("s_cmp_eq_u64 vcc, 0")
    a(f"s_cbranch_scc1 {le}")
    a("s_sleep 2")
    a(f"s_branch {lp}")
    a.label(le)

def poll_flags_n(a, sWS, sOff, n, F, t0):
    lp = a.newlabel("fpoll"); le = a.newlabel("fpoll_e")
    a(f"v_mbcnt_lo_u32_b32 v{t0}, -1, 0")
    a(f"v_mbcnt_hi_u32_b32 v{t0}, -1, v{t0}")
    a(f"v_min_u32 v{t0}, {n-1}, v{t0}")
    a(f"v_lshlrev_b32 v{t0}, 3, v{t0}")
    a("s_mov_b32 s67, 0")
    a.label(lp)
    a(f"buffer_load_dwordx2 {P(F)}, v{t0}, s[{sWS}:{sWS+3}], s{sOff} offen sc1")
    a.vm -= 1
    a("s_add_u32 s67, s67, 1")
    a("s_waitcnt vmcnt(0)")
    a(f"v_cmp_ne_u32 vcc, s{sTAGF}, v{F}")
    a(f"v_cmp_ne_u32 s[64:65], s{sTAGF+1}, v{F+1}")
    a("s_or_b64 vcc, vcc, s[64:65]")
    a("s_cmp_gt_u32 s67, 100000")
    a(f"s_cbranch_scc1 {le}")
    a("s_cmp_eq_u64 vcc, 0")
    a(f"s_cbranch_scc1 {le}")
    a("s_sleep 2")
    a(f"s_branch {lp}")
    a.label(le)

def poll_flags(a, sWS, sOff, F, t0):
    lp = a.newlabel("fpoll"); le = a.newlabel("fpoll_e")
    a(f"v_mbcnt_lo_u32_b32 v{t0}, -1, 0")
    a(f"v_mbcnt_hi_u32_b32 v{t0}, -1, v{t0}")
    a(f"v_and_b32 v{t0}, 31, v{t0}")
    a(f"v_lshlrev_b32 v{t0}, 3, v{t0}")
    a("s_mov_b32 s67, 0")
    a.label(lp)
    a(f"buffer_load_dwordx2 {P(F)}, v{t0}, s[{sWS}:{sWS+3}], s{sOff} offen sc1")
    a.vm -= 1
    a("s_add_u32 s67, s67, 1")
    a("s_waitcnt vmcnt(0)")
    a(f"v_cmp_ne_u32 vcc, s{sTAGF}, v{F}")
    a(f"v_cmp_ne_u32 s[64:65], s{sTAGF+1}, v{F+1}")
    a("s_or_b64 vcc, vcc, s[64:65]")
    a("s_cmp_gt_u32 s67, 100000")
    a(f"s_cbranch_scc1 {le}")
    a("s_cmp_eq_u64 vcc, 0")
    a(f"s_cbranch_scc1 {le}")
    a("s_sleep 2")
    a(f"s_branch {lp}")
    a.label(le)
import os
K2X = os.environ.get('K2X', '')

ZDEPTH = int(os.environ.get('ZD', '4'))
FUSED = bool(os.environ.get('FUSED'))
FULL = os.environ.get('FUSED') == '2'
CB = 86016 if FUSED else 0
CS_ = 4160
TOEP = CB
OZ = 1
UZ = 32
UB = TOEP + 8 * CS_
PB = UB + 4608
PT_ = 8192
WJ = PB + 4*PT_
assert WJ + 5120 <= (161792 if FUSED else 81920)

def gen_gemm(a, V, ST, prof):
    sWSP, sWS, sBSP = 4, 8, 12
    sRB, sJ, sW = 32, 33, 34
    sT0, sT1, sT2, sT3 = 40, 41, 42, 43
    sZ, sWB, sLB = 44, 45, 46
    a(f"s_load_dwordx2 s[{sWSP}:{sWSP+1}], s[0:1], {KA['wsp']}")
    a(f"s_load_dwordx2 s[{sWS}:{sWS+1}], s[0:1], {KA['ws']}")
    a(f"s_load_dwordx2 s[{sBSP}:{sBSP+1}], s[0:1], {KA['bsp']}")
    vL = V(); t0, t1, t2 = V(), V(), V()
    a(f"v_lshrrev_b32 v{t0}, 6, v0")
    a(f"v_and_b32 v{vL}, 63, v0")
    a(f"v_readfirstlane_b32 s{sW}, v{t0}")
    for srd, size in ((sWSP, SZ_WSP), (sWS, WS_SIZE_DBG if prof else WS_END), (sBSP, 4096)):
        a(f"s_mov_b32 s{srd+2}, {size}")
        a(f"s_mov_b32 s{srd+3}, {SRD3:#x}")
    a(f"s_and_b32 s{sT0}, s2, 7")
    a(f"s_lshr_b32 s{sT1}, s2, 3")
    a(f"s_and_b32 s{sT1}, s{sT1}, 31")
    a(f"s_lshr_b32 s{sRB}, s{sT0}, 1")
    a(f"s_lshl_b32 s{sRB}, s{sRB}, 3")
    a(f"s_and_b32 s{sT2}, s{sT1}, 7")
    a(f"s_add_u32 s{sRB}, s{sRB}, s{sT2}")
    a(f"s_and_b32 s{sJ}, s{sT0}, 1")
    a(f"s_lshl_b32 s{sJ}, s{sJ}, 2")
    a(f"s_lshr_b32 s{sT2}, s{sT1}, 3")
    a(f"s_add_u32 s{sJ}, s{sJ}, s{sT2}")
    a(f"s_lshl_b32 s{sZ}, s{sJ}, 7")
    a(f"s_lshl_b32 s{sT0}, s{sW}, 5")
    a(f"s_add_u32 s{sZ}, s{sZ}, s{sT0}")
    a(f"s_mul_i32 s{sZ}, s{sZ}, 3072")
    a(f"s_add_u32 s{sZ}, s{sZ}, {WS_Z2F}")
    a(f"s_lshl_b32 s{sWB}, s{sRB}, 18")
    a(f"s_lshl_b32 s{sT0}, s{sW}, 10")
    a(f"s_add_u32 s{sWB}, s{sWB}, s{sT0}")
    a(f"s_lshl_b32 s{sLB}, s{sW}, 14")
    vZ = V()
    a(f"v_lshlrev_b32 v{vZ}, 4, v{vL}")
    vWE, vWO = V(), V()
    a(f"v_lshrrev_b32 v{t0}, 3, v{vL}")
    a(f"v_lshlrev_b32 v{t0}, 12, v{t0}")
    a(f"v_and_b32 v{t1}, 7, v{vL}")
    a(f"v_lshrrev_b32 v{t2}, 4, v{vL}")
    a(f"v_xor_b32 v{t1}, v{t1}, v{t2}")
    a(f"v_lshl_add_u32 v{vWE}, v{t1}, 4, v{t0}")
    a(f"v_xor_b32 v{vWO}, 64, v{vWE}")
    sROT = 50
    if "rot" in K2X:
        a(f"s_and_b32 s{sROT}, s{sJ}, 3")
        a(f"s_lshl_b32 s{sROT}, s{sROT}, 1")
        a(f"s_add_u32 s{sROT}, s{sROT}, s{sRB}")
        a(f"s_and_b32 s{sROT}, s{sROT}, 7")
    else: a(f"s_mov_b32 s{sROT}, 0")
    def chunk(c, dst):
        a(f"s_add_u32 s{dst}, s{sROT}, {c}")
        a(f"s_and_b32 s{dst}, s{dst}, 7")
    ACC = V(96, 4)
    def acc(ft, tt): return ACC + (ft*2 + tt)*16
    ZF = V((ZDEPTH+1)*12, 4)
    def zf(ks, ft): return ZF + ((ks % (ZDEPTH+1))*3 + ft)*4
    WFr = V(16, 4)
    def wfr(b, tt): return WFr + (b*2 + tt)*4
    z_id = {}; w_id = {}
    sZc = [52, 53]; sWc = [54, 55]
    def z_base(c):
        chunk(c, sZc[c & 1])
        a(f"s_mul_i32 s{sZc[c & 1]}, s{sZc[c & 1]}, 12288")
        a(f"s_add_u32 s{sZc[c & 1]}, s{sZc[c & 1]}, s{sZ}")
    def w_base(c):
        chunk(c, sWc[c & 1])
        a(f"s_lshl_b32 s{sWc[c & 1]}, s{sWc[c & 1]}, 7")
        a(f"s_add_u32 s{sWc[c & 1]}, s{sWc[c & 1]}, s{sWB}")
    def load_z_g(ks):
        c = ks // 4
        if ks % 4 == 0: z_base(c)
        for ft in range(3):
            so = sZc[c & 1]
            if ks % 4:
                a(f"s_add_u32 s{sT1}, s{sZc[c & 1]}, {(ks%4)*3072}"); so = sT1
            z_id[(ks, ft)] = a.vmem(f"buffer_load_dwordx4 v[{zf(ks,ft)}:{zf(ks,ft)+3}], v{vZ}, s[{sWS}:{sWS+3}], s{so} offen offset:{ft*1024}" + (" sc1" if FUSED else ""))
            yield
    def dma_w_g(c, lo, hi):
        sl = c & 1
        if lo == 0: w_base(c)
        for i in range(lo, hi):
            a(f"s_add_u32 s{sT2}, s{sWc[c & 1]}, {i*8*4096}")
            a(f"s_add_u32 m0, s{sLB}, {sl*8192 + i*1024}")
            w_id[c] = a.vmem(f"buffer_load_dwordx4 v{vWE if i % 2 == 0 else vWO}, s[{sWSP}:{sWSP+3}], s{sT2} offen lds")
            yield
    a("s_waitcnt lgkmcnt(0)")
    ST("g_kernarg")
    if FUSED:
        run(dma_w_g(0, 0, 8))
        a(f"s_lshl_b32 s{sT3}, s{sJ}, 8")
        a(f"s_add_u32 s{sT3}, s{sT3}, {WS_F1}")
        poll_flags(a, sWS, sT3, ZF, t0)
        ST("g_flags")
        for ks in range(ZDEPTH): run(load_z_g(ks))
    else:
        run(load_z_g(0)); run(dma_w_g(0, 0, 8))
        for ks in range(1, ZDEPTH): run(load_z_g(ks))
    vWA = [V() for _ in range(4)]
    a(f"v_and_b32 v{t0}, 31, v{vL}")
    a(f"v_lshrrev_b32 v{t1}, 1, v{t0}")
    a(f"v_and_b32 v{t1}, 7, v{t1}")
    a(f"v_lshrrev_b32 v{t2}, 5, v{vL}")
    a(f"v_xor_b32 v{t1}, v{t1}, v{t2}")
    a(f"v_lshl_add_u32 v{t0}, v{t0}, 7, s{sLB}")
    for kk in range(4):
        a(f"v_xor_b32 v{t2}, {2*kk}, v{t1}")
        a(f"v_lshl_add_u32 v{vWA[kk]}, v{t2}, 4, v{t0}")
    Z1 = V(12, 4); vB = V()
    ep = {}
    def epi_loads():
        a(f"s_lshl_b32 s{sT0}, s{sRB}, 3")
        a(f"s_add_u32 s{sT0}, s{sT0}, s{sJ}")
        a(f"s_lshl_b32 s{sT0}, s{sT0}, 2")
        a(f"s_add_u32 s{sT0}, s{sT0}, s{sW}")
        a(f"s_mul_i32 s{sT0}, s{sT0}, 3072")
        a(f"s_add_u32 s{sT0}, s{sT0}, {WS_Z1F}")
        for ft in range(3):
            if FUSED:
                if ft == 0:
                    a(f"s_mul_i32 s{sT0}, s{sW}, 3072")
                    a(f"s_add_u32 s{sT0}, s{sT0}, {Z1L}")
                    a(f"v_add_u32 v{t1}, s{sT0}, v{vZ}")
                a.ds(f"ds_read_b128 v[{Z1+4*ft}:{Z1+4*ft+3}], v{t1} offset:{ft*1024}")
            else:
                a.vmem(f"buffer_load_dwordx4 v[{Z1+4*ft}:{Z1+4*ft+3}], v{vZ}, s[{sWS}:{sWS+3}], s{sT0} offen offset:{ft*1024}")
            yield
        a(f"v_and_b32 v{t0}, 31, v{vL}")
        a(f"v_lshlrev_b32 v{t0}, 1, v{t0}")
        a(f"s_lshr_b32 s{sT0}, s{sW}, 1")
        a(f"s_lshl_b32 s{sT0}, s{sT0}, 6")
        a(f"s_lshl_b32 s{sT3}, s{sRB}, 7")
        a(f"s_add_u32 s{sT0}, s{sT0}, s{sT3}")
        ep['b'] = a.vmem(f"buffer_load_ushort v{vB}, v{t0}, s[{sBSP}:{sBSP+3}], s{sT0} offen")
        yield
    def read_w(ks):
        c = ks // 4; kk = ks % 4; b = ks & 1
        ids = []
        for tt in range(2):
            ids.append(a.ds(f"ds_read_b128 v[{wfr(b,tt)}:{wfr(b,tt)+3}], v{vWA[kk]} offset:{(c&1)*8192 + tt*4096}"))
        return ids[-1]
    a.wait_vm(w_id[0])
    ST("g_w0")
    if "noprio" not in K2X: a("s_setprio 2")
    rd = {0: read_w(0)}
    for ks in range(32):
        c = ks // 4
        if ks % 4 == 0 and "cst" in K2X: ST(f"c{c}")
        if ks == int(os.environ.get("PSW", "99")): a("s_setprio 0")
        a.wait_vm(z_id[(ks, 2)])
        a.wait_lg(rd[ks])
        fl = Filler()
        def rdw(k=ks):
            if (k + 1) % 4 == 0: a.wait_vm(w_id[(k + 1)//4])
            rd[k + 1] = read_w(k + 1)
            yield
        if ks + 1 < 32: fl.add(rdw())
        if ks + ZDEPTH < 32: fl.add(load_z_g(ks + ZDEPTH))
        if ks == 0: fl.add(dma_w_g(1, 0, 4))
        if ks == 1: fl.add(dma_w_g(1, 4, 8))
        for n in range(2, 8):
            if ks == 4*(n-1) - 1: fl.add(dma_w_g(n, 0, 2))
            if ks == 4*(n-1): fl.add(dma_w_g(n, 2, 5))
            if ks == 4*(n-1) + 1: fl.add(dma_w_g(n, 5, 8))
        if ks == 30: fl.add(epi_loads())
        b = ks & 1
        for ft in range(3):
            for tt in range(2):
                cc = "0" if ks == 0 else f"v[{acc(ft,tt)}:{acc(ft,tt)+15}]"
                if not ("nomfma" in K2X and ks > 0):
                    a(f"v_mfma_f32_32x32x16_bf16 v[{acc(ft,tt)}:{acc(ft,tt)+15}], v[{zf(ks,ft)}:{zf(ks,ft)+3}], v[{wfr(b,tt)}:{wfr(b,tt)+3}], {cc}")
                fl.step(1)
        fl.drain()
    ST("g_loop")
    a("s_setprio 0")
    OWN = ZF
    lend = a.newlabel("g_epi_end")
    labs = [a.newlabel("g_epi") for _ in range(4)]
    a(f"v_add_u32 v{t2}, 0x10000, v{vZ}")
    a("s_nop 15")
    gst = [0]
    if FUSED: gsync(a, 0, gst, t0, t1)
    else: a("s_barrier")
    lg0 = a.lg
    for w in range(4):
        if w < 3:
            a(f"s_cmp_lg_u32 s{sW}, {w}")
            a(f"s_cbranch_scc1 {labs[w]}")
        a.lg = lg0
        for d in range(4):
            if d == w: continue
            tt = d >> 1; g0 = d & 1
            k = (w - d - 1) & 3
            for ft in range(3):
                for gh in range(2):
                    r = acc(ft, tt) + 4*(g0 + 2*gh)
                    off = d*18432 + k*6144 + (ft*2+gh)*1024
                    if off >= 65536: a.ds(f"ds_write_b128 v{t2}, v[{r}:{r+3}] offset:{off - 65536}")
                    else: a.ds(f"ds_write_b128 v{vZ}, v[{r}:{r+3}] offset:{off}")
        tt = w >> 1; g0 = w & 1
        for ft in range(3):
            for gh in range(2):
                r = acc(ft, tt) + 4*(g0 + 2*gh)
                for e in range(0, 4, 2):
                    a(f"v_pk_add_f32 {P(OWN + (ft*2+gh)*4 + e)}, {P(r+e)}, 0")
        if w < 3:
            a(f"s_branch {lend}")
            a.label(labs[w])
    a.label(lend)
    return_epi = True
    a("s_waitcnt lgkmcnt(0)")
    if FUSED: gsync(a, 0, gst, t0, t1)
    else: a("s_barrier")
    PT = ACC
    a(f"s_mul_i32 s{sT0}, s{sW}, 18432")
    a(f"v_add_u32 v{t0}, s{sT0}, v{vZ}")
    for k in range(3):
        for q in range(6):
            a.ds(f"ds_read_b128 v[{PT + (k*6+q)*4}:{PT + (k*6+q)*4 + 3}], v{t0} offset:{k*6144 + q*1024}")
    vSt = vWE
    a(f"v_lshrrev_b32 v{vSt}, 4, v{vL}")
    a(f"v_and_b32 v{vSt}, 1, v{vSt}")
    a(f"v_mul_u32_u24 v{vSt}, {24*1024}, v{vSt}")
    a(f"v_and_b32 v{t1}, 15, v{vL}")
    a(f"v_lshrrev_b32 v{t2}, 5, v{vL}")
    a(f"v_lshl_add_u32 v{t1}, v{t2}, 4, v{t1}")
    a(f"v_lshl_add_u32 v{vSt}, v{t1}, 4, v{vSt}")
    a(f"s_mul_i32 s{sT0}, s{sRB}, {4*24*1024}")
    a(f"s_lshr_b32 s{sT1}, s{sW}, 1")
    a(f"s_mul_i32 s{sT1}, s{sT1}, {2*24*1024}")
    a(f"s_add_u32 s{sT0}, s{sT0}, s{sT1}")
    a(f"s_mul_i32 s{sT1}, s{sJ}, 3072")
    a(f"s_add_u32 s{sT0}, s{sT0}, s{sT1}")
    a(f"s_and_b32 s{sT1}, s{sW}, 1")
    a(f"s_lshl_b32 s{sT1}, s{sT1}, 9")
    a(f"s_add_u32 s{sT0}, s{sT0}, s{sT1}")
    a(f"s_add_u32 s{sT0}, s{sT0}, {WS_PF}")
    a.wait_vm(ep['b'])
    vB2 = vWA[0] if vWA[0] % 2 == 0 else vWA[1]
    a(f"v_lshlrev_b32 v{vB2}, 16, v{vB}")
    ZU = PT + 72
    for i in range(12):
        a(f"v_lshlrev_b32 v{ZU+2*i}, 16, v{Z1+i}")
        a(f"v_and_b32 v{ZU+2*i+1}, 0xffff0000, v{Z1+i}")
    for k in range(3):
        a(f"s_waitcnt lgkmcnt({min(15, 12 - 6*k)})")
        for i in range(0, 24, 2):
            a(f"v_pk_add_f32 {P(OWN+i)}, {P(OWN+i)}, {P(PT+k*24+i)}")
    for i in range(0, 24, 2):
        a(f"v_pk_add_f32 {P(OWN+i)}, {P(OWN+i)}, {P(vB2)} op_sel_hi:[1,0]")
    for i in range(0, 24, 2):
        a(f"v_pk_mul_f32 {P(OWN+i)}, {P(OWN+i)}, {P(ZU+i)}")
    OUT = PT
    for ft in range(3):
        for i in range(4):
            a(f"v_cvt_pk_bf16_f32 v{OUT+4*ft+i}, v{OWN+8*ft+2*i}, v{OWN+8*ft+2*i+1}")
        a.vmem(f"buffer_store_dwordx4 v[{OUT+4*ft}:{OUT+4*ft+3}], v{vSt}, s[{sWS}:{sWS+3}], s{sT0} offen offset:{ft*1024}" + (" sc1" if "psc1" in K2X else ""))
    ST("g_end")
    ST.dump(sWS, sW, t0, t1, WS_DBG + 0x200000)

def gen_conv(a, V, ST, prof, name):
    sSSM, sWS, sDv, sWSP, sWO = 4, 8, 12, 16, 20
    sC, sW, sCH = 32, 34, 35
    sT0, sT1, sT2, sT3 = 40, 41, 42, 43
    a(f"s_load_dwordx2 s[{sSSM}:{sSSM+1}], s[0:1], {KA['ssmk']}")
    a(f"s_load_dwordx2 s[{sWS}:{sWS+1}], s[0:1], {KA['ws']}")
    a(f"s_load_dwordx2 s[{sDv}:{sDv+1}], s[0:1], {KA['ssmD']}")
    a(f"s_load_dwordx2 s[{sWSP}:{sWSP+1}], s[0:1], {KA['wsp']}")
    a(f"s_load_dwordx2 s[{sWO}:{sWO+1}], s[0:1], {KA['wout']}")
    vL = V(); vT = V(); t0, t1, t2 = V(), V(), V()
    if FUSED: a(f"v_subrev_u32 v0, 256, v0")
    if os.environ.get("CPRIO"): a(f"s_setprio {os.environ['CPRIO']}")
    cst = [0]
    def csync():
        if FUSED: gsync(a, 1, cst, t0, t1)
        else:
            a("s_waitcnt lgkmcnt(0)")
            a("s_barrier")
    a(f"v_lshrrev_b32 v{t0}, 6, v0")
    a(f"v_and_b32 v{vL}, 63, v0")
    a(f"v_readfirstlane_b32 s{sW}, v{t0}")
    for srd, size in ((sSSM, SZ_SSMK), (sWS, WS_SIZE_DBG if prof else WS_END), (sDv, 1280), (sWSP, SZ_WSP), (sWO, SZ_WOUT)):
        a(f"s_mov_b32 s{srd+2}, {size}")
        a(f"s_mov_b32 s{srd+3}, {SRD3:#x}")
    a(f"s_mov_b32 s{sC}, s2")
    a(f"v_lshlrev_b32 v{vT}, 4, v0")
    NCH = 3
    HR = V(8*NCH, 4); UR = V(4*NCH, 4); DR = V(NCH)
    vTm = V()
    FP = V(8, 4)
    a(f"v_subrev_u32 v{vTm}, 16, v{vT}")
    sCHN = [56, 57, 58]
    a(f"s_mov_b32 s{sCHN[0]}, s2")
    a(f"s_add_u32 s{sCHN[1]}, s2, 256")
    a(f"s_lshr_b32 s{sCHN[2]}, s2, 1")
    a(f"s_add_u32 s{sCHN[2]}, s{sCHN[2]}, 512")
    ld = {}
    def loads(i):
        a(f"s_lshl_b32 s{sT0}, s{sCHN[i]}, 12")
        a.vmem(f"buffer_load_dwordx4 v[{HR+8*i+4}:{HR+8*i+7}], v{vT}, s[{sSSM}:{sSSM+3}], s{sT0} offen")
        a.vmem(f"buffer_load_dwordx4 v[{HR+8*i}:{HR+8*i+3}], v{vTm}, s[{sSSM}:{sSSM+3}], s{sT0} offen")
        a(f"s_lshl_b32 s{sT1}, s{sCHN[i]}, 1")
        a(f"v_mov_b32 v{t0}, 0")
        a.vmem(f"buffer_load_ushort v{DR+i}, v{t0}, s[{sDv}:{sDv+3}], s{sT1} offen")
        if FUSED:
            ld[i] = a.vm - 1
            return
        load_u(i)
    def load_u(i):
        a(f"s_lshl_b32 s{sT0}, s{sCHN[i]}, 12")
        a(f"s_add_u32 s{sT0}, s{sT0}, {WS_KVT}")
        ld[i] = a.vmem(f"buffer_load_dwordx4 v[{UR+4*i}:{UR+4*i+3}], v{vT}, s[{sWS}:{sWS+3}], s{sT0} offen" + (" sc1" if FUSED else ""))
    def poll_all():
        poll_all_flags(a, sWS, FP, t0)
    a("s_waitcnt lgkmcnt(0)")
    ST("c_kernarg")
    loads(0)
    vTW, vTZ, vDm = V(), V(), V()
    sU, sTWB, sTZB = 47, 52, 53
    a(f"s_lshr_b32 s{sU}, s2, 3")
    a(f"s_lshl_b32 s{sU}, s{sU}, 2")
    a(f"s_add_u32 s{sU}, s{sU}, s{sW}")
    a(f"s_mul_i32 s{sT0}, s{sU}, 12")
    a(f"v_add_u32 v{t0}, s{sT0}, v{vL}")
    a(f"v_mul_u32_u24 v{t1}, 43691, v{t0}")
    a(f"v_lshrrev_b32 v{t1}, 22, v{t1}")
    a(f"v_mul_u32_u24 v{t2}, 96, v{t1}")
    a(f"v_sub_u32 v{t0}, v{t0}, v{t2}")
    a(f"v_mul_u32_u24 v{t1}, 98304, v{t1}")
    a(f"v_lshl_add_u32 v{vTZ}, v{t0}, 7, v{t1}")
    a(f"s_and_b32 s{sT0}, s2, 7")
    a(f"s_lshr_b32 s{sTWB}, s{sT0}, 1")
    a(f"s_lshl_b32 s{sTWB}, s{sTWB}, 21")
    a(f"s_and_b32 s{sTZB}, s{sT0}, 1")
    a(f"s_mul_i32 s{sTZB}, s{sTZB}, {4*393216}")
    a(f"s_add_u32 s{sTZB}, s{sTZB}, {WS_Z2F}")
    a(f"s_lshl_b32 s{sT0}, s{sU}, 4")
    a(f"v_add_u32 v{t0}, s{sT0}, v{vL}")
    a(f"v_lshrrev_b32 v{t1}, 2, v{t0}")
    a(f"v_lshlrev_b32 v{t1}, 12, v{t1}")
    a(f"v_and_b32 v{t0}, 3, v{t0}")
    a(f"v_lshl_add_u32 v{vTW}, v{t0}, 10, v{t1}")
    def touch(c, w=True):
        if "notouch" in K2X: return
        a(f"s_add_u32 s{sT0}, s{sTZB}, {c*12288}")
        a(f"s_mov_b64 exec, 0xfff")
        a.vmem(f"buffer_load_dword v{vDm}, v{vTZ}, s[{sWS}:{sWS+3}], s{sT0} offen")
        if w and "notw" not in K2X:
            a(f"s_add_u32 s{sT0}, s{sTWB}, {c*128}")
            a(f"s_mov_b64 exec, 0xffff")
            a.vmem(f"buffer_load_dword v{vDm}, v{vTW}, s[{sWSP}:{sWSP+3}], s{sT0} offen")
        a(f"s_mov_b64 exec, -1")
    NUP = int(os.environ.get('NUP', '2'))
    for c_ in range(NUP): touch(c_)
    def wof_job():
        sWJ = 54
        lwj = a.newlabel("c_wj")
        a(f"s_cmp_ge_u32 s2, 192")
        a(f"s_cbranch_scc1 {lwj}")
        a(f"s_mul_i32 s{sT0}, s2, 2731")
        a(f"s_lshr_b32 s{sT0}, s{sT0}, 16")
        a(f"s_mul_i32 s{sT1}, s{sT0}, 24")
        a(f"s_sub_u32 s{sT1}, s2, s{sT1}")
        a(f"s_mul_i32 s{sT1}, s{sT1}, {32*1280}")
        a(f"s_mul_i32 s{sT0}, s{sT0}, 160")
        a(f"s_add_u32 s{sWJ}, s{sT0}, s{sT1}")
        for r in range(2):
            l2 = None
            if r == 1:
                l2 = a.newlabel("c_wj2")
                a(f"s_cmp_lg_u32 s{sW}, 0")
                a(f"s_cbranch_scc1 {l2}")
            if r == 0: a(f"v_mov_b32 v{t0}, v0")
            else: a(f"v_add_u32 v{t0}, 256, v{vL}")
            a(f"v_mul_u32_u24 v{t1}, 6554, v{t0}")
            a(f"v_lshrrev_b32 v{t1}, 16, v{t1}")
            a(f"v_mul_u32_u24 v{t2}, 10, v{t1}")
            a(f"v_sub_u32 v{t0}, v{t0}, v{t2}")
            a(f"v_lshlrev_b32 v{t0}, 4, v{t0}")
            a(f"v_mul_u32_u24 v{t1}, 1280, v{t1}")
            a(f"v_add_u32 v{t0}, v{t0}, v{t1}")
            if r == 0:
                a(f"s_lshl_b32 s{sT0}, s{sW}, 10")
                a(f"s_add_u32 m0, s{sT0}, {WJ}")
            else: a(f"s_mov_b32 m0, {WJ + 4096}")
            a(f"buffer_load_dwordx4 v{t0}, s[{sWO}:{sWO+3}], s{sWJ} offen lds")
            a.vm -= 1
            if l2: a.label(l2)
        a.label(lwj)
        for i_ in range(1, NCH): loads(i_)
    if FUSED: wof_job()
    Zr = V(4, 4)
    for e in range(4): a(f"v_mov_b32 v{Zr+e}, 0")
    a(f"v_mul_u32_u24 v{t0}, {CS_}, v0")
    if TOEP: a(f"v_add_u32 v{t0}, {TOEP}, v{t0}")
    a(f"v_cmp_gt_u32 vcc, 64, v0")
    a(f"s_and_saveexec_b64 s[50:51], vcc")
    lz = a.newlabel("c_z")
    a(f"s_cbranch_execz {lz}")
    a(f"v_subrev_u32 v{t1}, {32*16 - UB}, v{vT}")
    a(f"v_cmp_gt_u32 vcc, 8, v0")
    a(f"v_cndmask_b32 v{t1}, v{t1}, v{t0}, vcc")
    a(f"v_add_u32 v{t2}, -8, v0")
    a(f"v_cmp_lt_u32 vcc, 23, v{t2}")
    a(f"s_and_b64 exec, exec, vcc")
    a.ds(f"ds_write_b128 v{t1}, v[{Zr}:{Zr+3}]")
    a.label(lz)
    a(f"s_mov_b64 exec, s[50:51]")
    vTW_ = V()
    a(f"v_add_u32 v{vTW_}, {OZ*16 + TOEP}, v{vT}")
    vUW = V()
    a(f"v_add_u32 v{vUW}, {UB + UZ*16}, v{vT}")
    vA = V()
    a(f"v_and_b32 v{t0}, 7, v{vL}")
    a(f"v_mul_u32_u24 v{t0}, {CS_}, v{t0}")
    a(f"v_bfe_u32 v{t1}, v{vL}, 3, 1")
    a(f"v_lshrrev_b32 v{t2}, 4, v{vL}")
    a(f"v_sub_u32 v{t1}, v{t1}, v{t2}")
    a(f"v_add_u32 v{t1}, 3, v{t1}")
    a(f"v_lshl_add_u32 v{vA}, v{t1}, 4, v{t0}")
    if TOEP: a(f"v_add_u32 v{vA}, {TOEP}, v{vA}")
    vBq = V()
    a(f"v_and_b32 v{t0}, 15, v{vL}")
    a(f"v_lshl_add_u32 v{t0}, v{t0}, 1, v{t2}")
    a(f"v_lshlrev_b32 v{vBq}, 4, v{t0}")
    a(f"v_add_u32 v{vBq}, {UB}, v{vBq}")
    DM = V(4, 4)
    a(f"v_and_b32 v{t0}, 15, v{vL}")
    a(f"v_lshlrev_b32 v{t1}, 3, v{t2}")
    a(f"v_sub_u32 v{t1}, v{t1}, v{t0}")
    a(f"v_add_u32 v{t1}, -9, v{t1}")
    vK0, vK1 = V(), V()
    a(f"v_mov_b32 v{vK0}, 0xffff"); a(f"v_mov_b32 v{vK1}, 0xffff0000")
    for dw in range(4):
        a(f"v_cmp_eq_u32 vcc, {2*dw}, v{t1}")
        a(f"v_cndmask_b32 v{DM+dw}, 0, v{vK0}, vcc")
        a(f"v_cmp_eq_u32 vcc, {2*dw + 1}, v{t1}")
        a(f"v_cndmask_b32 v{DM+dw}, v{DM+dw}, v{vK1}, vcc")
    vPW = V()
    a(f"v_and_b32 v{t0}, 15, v{vL}")
    a(f"v_lshlrev_b32 v{t0}, 6, v{t0}")
    a(f"v_lshl_add_u32 v{t0}, v{t2}, 4, v{t0}")
    a(f"s_lshl_b32 s{sT0}, s{sW}, 13")
    a(f"s_add_u32 s{sT0}, s{sT0}, {PB}")
    a(f"v_add_u32 v{vPW}, s{sT0}, v{t0}")
    vPR = V()
    a(f"v_lshlrev_b32 v{vPR}, 5, v0")
    a(f"v_add_u32 v{vPR}, {PB}, v{vPR}")
    ACC = V(32, 4)
    AF = V(12, 4); BF = V(64, 4)
    EW = V(8, 4); TQ = V(4, 4); DG = V(4, 4)

    def mfma_block(w, tiles, touches):
        tq = list(touches)
        started = set()
        seq = []
        for r in range(2):
            q0 = 2*w + r
            dmin = 0
            ips = [ip for ip in range(8) if any(T >= ip for T in tiles)]
            seq += [(r, ip) for ip in ips]
        bid = {}
        def need_d(r): return sorted({T - ip for (rr, ip) in seq if rr == r for T in tiles if T >= ip})
        def read_b(r):
            q0 = 2*w + r
            for d in need_d(r):
                m = 8*d - q0
                bid[(r, d)] = a.ds(f"ds_read_b128 v[{BF+(r*8+d)*4}:{BF+(r*8+d)*4+3}], v{vBq} offset:{(4*m - 2 + UZ)*16}")
        aid = {}
        def read_a(n):
            r, ip = seq[n]
            q = 2*w + r + 8*ip
            aid[n] = a.ds(f"ds_read_b128 v[{AF+(n%3)*4}:{AF+(n%3)*4+3}], v{vA} offset:{64*q}")
        read_a(0); read_b(0); read_a(1)
        for n, (r, ip) in enumerate(seq):
            if n + 2 < len(seq): read_a(n + 2)
            if n == 2: read_b(1)
            last = max([aid[n]] + [bid[(r, T - ip)] for T in tiles if T >= ip])
            a.wait_lg(last)
            q0 = 2*w + r
            for T in sorted(tiles, reverse=True):
                if T < ip: continue
                c = f"v[{ACC+4*T}:{ACC+4*T+3}]" if T in started else "0"; started.add(T)
                a(f"v_mfma_f32_16x16x32_bf16 v[{ACC+4*T}:{ACC+4*T+3}], v[{AF+(n%3)*4}:{AF+(n%3)*4+3}], v[{BF+(r*8+T-ip)*4}:{BF+(r*8+T-ip)*4+3}], {c}")
            if q0 == 0 and ip == 0:
                for T in tiles:
                    a(f"v_mfma_f32_16x16x32_bf16 v[{ACC+4*T}:{ACC+4*T+3}], v[{DG}:{DG+3}], v[{BF+(r*8+T)*4}:{BF+(r*8+T)*4+3}], v[{ACC+4*T}:{ACC+4*T+3}]")
            if tq and n % 2 == 1: touch(tq.pop(0))
        for T in tiles:
            a.ds(f"ds_write_b128 v{vPW}, v[{ACC+4*T}:{ACC+4*T+3}] offset:{T*1024}")
    def finalize(i, tiles):
        regs = [BF, BF+8, BF+16, BF+24]
        full = len(tiles) == 8
        if not full:
            lab = a.newlabel("c_fm")
            a(f"s_mov_b64 exec, 0")
            for w in range(4):
                lo = 0xffffffff if 2*w in tiles else 0
                hi = 0xffffffff if 2*w + 1 in tiles else 0
                a(f"s_cmp_eq_u32 s{sW}, {w}")
                a(f"s_cselect_b32 exec_lo, {lo if lo == 0 else -1}, exec_lo")
                a(f"s_cselect_b32 exec_hi, {hi if hi == 0 else -1}, exec_hi")
            lskip = a.newlabel("c_fskip")
            a(f"s_cbranch_execz {lskip}")
        for k in range(4):
            a.ds(f"ds_read_b128 v[{regs[k]}:{regs[k]+3}], v{vPR} offset:{k*PT_}")
            a.ds(f"ds_read_b128 v[{regs[k]+4}:{regs[k]+7}], v{vPR} offset:{k*PT_ + 16}")
        a(f"s_lshl_b32 s{sT0}, s{sCHN[i]}, 12")
        a(f"s_add_u32 s{sT0}, s{sT0}, {WS_YT}")
        a("s_waitcnt lgkmcnt(0)")
        for e in range(0, 8, 2):
            a(f"v_pk_add_f32 {P(regs[0]+e)}, {P(regs[0]+e)}, {P(regs[1]+e)}")
            a(f"v_pk_add_f32 {P(regs[2]+e)}, {P(regs[2]+e)}, {P(regs[3]+e)}")
        for e in range(0, 8, 2):
            a(f"v_pk_add_f32 {P(regs[0]+e)}, {P(regs[0]+e)}, {P(regs[2]+e)}")
        for e in range(4):
            a(f"v_cvt_pk_bf16_f32 v{TQ+e}, v{regs[0]+2*e}, v{regs[0]+2*e+1}")
        a(f"buffer_store_dwordx4 v[{TQ}:{TQ+3}], v{vT}, s[{sWS}:{sWS+3}], s{sT0} offen" + (" sc1" if "ysc1" in K2X else ""))
        a.vm -= 1
        if not full:
            a.label(lskip)
            a(f"s_mov_b64 exec, -1")
        a("s_nop 1")

    def per_wave(variants):
        lend = a.newlabel("c_pw_end"); labs = [a.newlabel("c_pw") for _ in range(4)]
        lg0, vm0 = a.lg, a.vm
        lgmax, vmmin = lg0, None
        for w in range(4):
            if w < 3:
                a(f"s_cmp_lg_u32 s{sW}, {w}")
                a(f"s_cbranch_scc1 {labs[w]}")
            a.lg, a.vm = lg0, vm0
            variants[w]()
            lgmax = max(lgmax, a.lg); vmmin = a.vm if vmmin is None else min(vmmin, a.vm)
            if w < 3:
                a(f"s_branch {lend}")
                a.label(labs[w])
        a.label(lend)
        a.lg, a.vm = lgmax, vmmin

    for i in range(NCH):
        a.comment(f"------- channel slot {i}")
        a.wait_vm(ld[i])
        ST(f"c{i}_ld")
        d = HR + 8*i
        a(f"v_cmp_ne_u32 vcc, 0, v0")
        for e in range(4): a(f"v_cndmask_b32 v{d+e}, 0, v{d+e}, vcc")
        for e in range(7): a(f"v_alignbit_b32 v{EW+e}, v{d+e+1}, v{d+e}, 16")
        for c in range(8):
            st = c + 1
            if st % 2 == 0: src = d + st//2
            else: src = EW + (st-1)//2
            if (src % 2) != 0:
                for e in range(4): a(f"v_mov_b32 v{TQ+e}, v{src+e}")
                src = TQ
            a.ds(f"ds_write_b128 v{vTW_}, v[{src}:{src+3}] offset:{c*CS_}")
            if src == TQ: a("s_nop 1")
        if FUSED and i == 0:
            poll_all()
            for i_ in range(NCH): load_u(i_)
            a.wait_vm(ld[0])
        a.ds(f"ds_write_b128 v{vUW}, v[{UR+4*i}:{UR+4*i+3}]")
        a(f"v_lshlrev_b32 v{t0}, 16, v{DR+i}")
        a(f"v_or_b32 v{t0}, v{t0}, v{DR+i}")
        for e in range(4): a(f"v_and_b32 v{DG+e}, v{DM+e}, v{t0}")
        if i == 0 and not FUSED: wof_job()
        csync()
        ST(f"c{i}_built")
        if i == 1:
            lw3 = a.newlabel("c_wj3")
            a(f"s_cmp_ge_u32 s2, 192")
            a(f"s_cbranch_scc1 {lw3}")
            a(f"v_lshrrev_b32 v{t0}, 4, v{vL}")
            a(f"v_and_b32 v{t2}, 15, v{vL}")
            a(f"v_lshrrev_b32 v{t1}, 2, v{t2}")
            a(f"v_lshl_add_u32 v{t0}, v{t0}, 2, v{t1}")
            a(f"v_mul_u32_u24 v{t0}, 160, v{t0}")
            a(f"v_and_b32 v{t1}, 3, v{t2}")
            a(f"v_lshl_add_u32 v{t0}, v{t1}, 3, v{t0}")
            a(f"v_lshlrev_b32 v{t2}, 4, v{vL}")
            for r in range(2):
                l2 = None
                if r == 1:
                    l2 = a.newlabel("c_wj4")
                    a(f"s_cmp_lg_u32 s{sW}, 0")
                    a(f"s_cbranch_scc1 {l2}")
                if r == 0: a(f"s_lshl_b32 s{sT0}, s{sW}, 5")
                else: a(f"s_mov_b32 s{sT0}, 128")
                a(f"s_add_u32 s{sT1}, s{sT0}, {WJ}")
                a(f"v_add_u32 v{t1}, s{sT1}, v{t0}")
                a(f"ds_read_b64_tr_b16 v[{TQ}:{TQ+1}], v{t1}")
                a(f"ds_read_b64_tr_b16 v[{TQ+2}:{TQ+3}], v{t1} offset:2560")
                a(f"s_mul_i32 s{sT1}, s2, 5120")
                a(f"s_lshl_b32 s{sT0}, s{sT0}, 5")
                a(f"s_add_u32 s{sT1}, s{sT1}, s{sT0}")
                a(f"s_add_u32 s{sT1}, s{sT1}, {WS_WOF}")
                a("s_waitcnt lgkmcnt(0)")
                a(f"buffer_store_dwordx4 v[{TQ}:{TQ+3}], v{t2}, s[{sWS}:{sWS+3}], s{sT1} offen" + (" sc1" if "ysc1" in K2X else ""))
                a("s_nop 1")
                a.vm -= 1; a.lg -= 2
                if l2: a.label(l2)
            a.label(lw3)
        tch = list(range(NUP, 8)) if i == 0 else []
        def do_channel(tiles):
            per_wave([(lambda w=w: mfma_block(w, tiles, tch)) for w in range(4)])
            if i < 2: ST(f"c{i}_mfma")
            if FULL and i == 1: a("s_waitcnt vmcnt(0)")
            csync()
            if FULL and i == 1:
                a(f"s_lshl_b32 s{sT0}, s2, 3")
                a(f"s_add_u32 s{sT0}, s{sT0}, {WS_F4}")
                a(f"v_mov_b32 v{FP}, s{sTAGF}"); a(f"v_mov_b32 v{FP+1}, s{sTAGF+1}")
                a(f"v_mov_b32 v{t0}, 0")
                a(f"s_cmp_eq_u32 s{sW}, 0")
                a(f"s_cselect_b64 exec, 1, 0")
                a(f"s_cmp_lt_u32 s2, 192")
                a(f"s_cselect_b64 exec, exec, 0")
                a(f"buffer_store_dwordx2 {P(FP)}, v{t0}, s[{sWS}:{sWS+3}], s{sT0} offen sc1")
                a.vm -= 1
                a(f"s_mov_b64 exec, -1")
            finalize(i, tiles)
        if i < 2:
            do_channel(list(range(8)))
        else:
            labB = a.newlabel("c_halfB"); labE = a.newlabel("c_halfE")
            a(f"s_bitcmp1_b32 s2, 0")
            a(f"s_cbranch_scc1 {labB}")
            lg0, vm0, c0_ = a.lg, a.vm, cst[0]
            do_channel([2, 6, 7])
            a(f"s_branch {labE}")
            a.label(labB); a.lg, a.vm, cst[0] = lg0, vm0, c0_
            do_channel([0, 1, 3, 4, 5])
            a.label(labE)
        ST(f"c{i}_done")
    ST.dump(sWS, sW, t0, t1, WS_DBG + 0x400000)

def gen_k2(name="k2_kernel", prof=False):
    a = Asm()
    a.raw(f".globl {name}\n.p2align 8\n.type {name},@function\n{name}:")
    a(f"s_cmp_ge_u32 s2, 512")
    a(f"s_cbranch_scc1 {name}_end")
    a(f"s_cmp_lt_u32 s2, 256")
    a(f"s_cbranch_scc1 {name}_conv" if "noconv" not in K2X else f"s_cbranch_scc1 {name}_end")
    ST = Stamps(a, enabled=prof); ST("g_start")
    V = Alloc(1, 256, "v")
    gen_gemm(a, V, ST, prof)
    a("s_endpgm")
    hi = V.hi
    a.label(f"{name}_conv")
    a.vm = 0; a.lg = 0
    ST2 = Stamps(a, enabled=prof); ST2("c_start")
    V2 = Alloc(1, 256, "v")
    gen_conv(a, V2, ST2, prof, name)
    a.label(f"{name}_end")
    a("s_endpgm")
    gen_k2.stamp_names = {"k2g": ST.names, "k2c": ST2.names}
    return a.finish(), max(hi, V2.hi)


def gen_k12(name="k12_kernel", prof=False):
    import k1, k3, k3f
    P8 = FULL and "p4" not in os.environ.get("K3X", "")
    a, hi1, sW1 = k1.gen_k1(name=name, prof=prof, fused=True)
    if P8: a("v_mov_b32 v253, v0")
    a(f"s_cmp_ge_u32 s{sW1}, 4")
    a(f"s_cbranch_scc1 {name}_conv")
    a.vm = 0; a.lg = 0
    ST = Stamps(a, enabled=prof); ST("g_start")
    V = Alloc(1, 253, "v")
    gen_gemm(a, V, ST, prof)
    hi3 = 0
    def publish_f2(srd, sWv):
        a(f"s_lshl_b32 s40, s2, 3")
        a(f"s_add_u32 s40, s40, {WS_F2}")
        a(f"v_mov_b32 v2, s{sTAGF}"); a(f"v_mov_b32 v3, s{sTAGF+1}")
        a(f"v_mov_b32 v1, 0")
        a(f"s_cmp_eq_u32 s{sWv}, 0")
        a(f"s_cselect_b64 exec, 1, 0")
        a(f"buffer_store_dwordx2 v[2:3], v1, s[{srd}:{srd+3}], s40 offen sc1")
        a(f"s_mov_b64 exec, -1")
    if FULL:
        a("s_waitcnt vmcnt(0) lgkmcnt(0)")
        a("s_barrier")
        publish_f2(8, 34)
        a.vm = 0; a.lg = 0
        if P8: a(f"s_branch {name}_p3")
        else: hi3 = k3.gen_k3(prof=prof, fa=a)
    if not P8: a("s_endpgm")
    hi = V.hi
    a.label(f"{name}_conv")
    a.vm = 0; a.lg = 0
    ST2 = Stamps(a, enabled=prof); ST2("c_start")
    V2 = Alloc(1, 253, "v")
    gen_conv(a, V2, ST2, prof, name)
    if FULL:
        a("s_waitcnt vmcnt(0) lgkmcnt(0)")
        a("s_barrier")
    if P8:
        a.label(f"{name}_p3")
        a.vm = 0; a.lg = 0
        hi3 = k3f.gen_phase3(a, prof, poll_flags_n, poll_all_flags, sTAGF)
    a.label(f"{name}_end")
    a("s_endpgm")
    gen_k12.stamp_names = {"k1": k1.gen_k1.stamp_names, "k2g": ST.names, "k2c": ST2.names}
    if FULL: gen_k12.stamp_names["k3"] = k3f.gen_phase3.stamp_names if P8 else k3.gen_k3.stamp_names
    return a.finish(), max(hi1, hi, V2.hi, hi3, 254 if P8 else 0)
```

```python
from dsl import *
from layout import *
from k1 import f32, Filler, run, mask, P
import os
WO = 0; XT = 122880; YTL = 133120; OT = 143360; EXB = 143360 + 10240
EXB = 153600
LOG2E = 1.4426950408889634

def gen_phase3(a, prof, poll_flags_n, poll_all_flags, sTAG):
    ST = Stamps(a, enabled=prof)
    V = Alloc(1, 254, "v")
    sX, sWS, sOUT = 8, 12, 16
    sRB, sDJ, sW, sTT, sKH = 32, 33, 34, 35, 36
    sT0, sT1, sT2, sT3 = 40, 41, 42, 43
    sCOL, sXB, sWB, sPB, sROT = 44, 45, 46, 47, 48
    a(f"s_load_dwordx2 s[{sWS}:{sWS+1}], s[0:1], {KA['ws']}")
    a(f"s_load_dwordx2 s[{sX}:{sX+1}], s[0:1], {KA['q']}")
    a(f"s_load_dwordx2 s[{sOUT}:{sOUT+1}], s[0:1], {KA['out']}")
    ST("k3start")
    for srd, size in ((sX, SZ_X), (sWS, WS_SIZE_DBG if prof else WS_END), (sOUT, SZ_X)):
        a(f"s_mov_b32 s{srd+2}, {size}")
        a(f"s_mov_b32 s{srd+3}, {SRD3:#x}")
    vL, vQ, vP = V(), V(), V(); t0, t1, t2 = V(), V(), V()
    a(f"v_lshrrev_b32 v{t0}, 6, v253")
    a(f"v_and_b32 v{vL}, 63, v253")
    a(f"v_readfirstlane_b32 s{sW}, v{t0}")
    vZ = V()
    a(f"v_lshlrev_b32 v{vZ}, 4, v{vL}")
    a(f"v_lshrrev_b32 v{vQ}, 4, v{vL}")
    a(f"v_and_b32 v{vP}, 15, v{vL}")
    a(f"s_and_b32 s{sTT}, s{sW}, 3")
    a(f"s_lshr_b32 s{sKH}, s{sW}, 2")
    a(f"s_and_b32 s{sT0}, s2, 7")
    a(f"s_lshr_b32 s{sT1}, s2, 3")
    a(f"s_lshr_b32 s{sRB}, s{sT0}, 1")
    a(f"s_lshl_b32 s{sRB}, s{sRB}, 3")
    a(f"s_and_b32 s{sT2}, s{sT1}, 7")
    a(f"s_add_u32 s{sRB}, s{sRB}, s{sT2}")
    a(f"s_and_b32 s{sDJ}, s{sT0}, 1")
    a(f"s_lshl_b32 s{sDJ}, s{sDJ}, 2")
    a(f"s_lshr_b32 s{sT2}, s{sT1}, 3")
    a(f"s_add_u32 s{sDJ}, s{sDJ}, s{sT2}")
    a(f"s_add_u32 s{sT0}, s{sRB}, s{sDJ}")
    a(f"s_mul_i32 s{sT1}, s{sT0}, 86")
    a(f"s_lshr_b32 s{sT1}, s{sT1}, 8")
    a(f"s_mul_i32 s{sT1}, s{sT1}, 3")
    a(f"s_sub_u32 s{sROT}, s{sT0}, s{sT1}")
    sG = [50, 51, 52]
    a(f"s_mul_i32 s{sT2}, s{sKH}, 3")
    for m in range(3):
        a(f"s_add_u32 s{sT0}, s{sROT}, {m}")
        a(f"s_sub_u32 s{sT1}, s{sT0}, 3")
        a(f"s_cmp_ge_u32 s{sT0}, 3")
        a(f"s_cselect_b32 s{sG[m]}, s{sT1}, s{sT0}")
        a(f"s_add_u32 s{sG[m]}, s{sG[m]}, s{sT2}")
    a(f"s_mul_i32 s{sWB}, s{sDJ}, {24*5120}")
    a(f"s_add_u32 s{sWB}, s{sWB}, {WS_WOF}")
    a(f"s_mul_i32 s{sPB}, s{sRB}, {4*24*1024}")
    a(f"s_mul_i32 s{sT1}, s{sTT}, {24*1024}")
    a(f"s_add_u32 s{sPB}, s{sPB}, s{sT1}")
    a(f"s_add_u32 s{sPB}, s{sPB}, {WS_PF}")
    a(f"s_mul_i32 s{sCOL}, s{sDJ}, 160")
    a(f"s_mul_i32 s{sXB}, s{sRB}, {64*1280}")
    a(f"s_add_u32 s{sXB}, s{sXB}, s{sCOL}")
    PFr = V(48, 4)
    a("s_waitcnt lgkmcnt(0)")
    vO = [V() for _ in range(5)]
    for r in range(5):
        a(f"v_add_u32 v{t0}, {64*r}, v{vL}")
        a(f"v_mul_u32_u24 v{t1}, 6554, v{t0}")
        a(f"v_lshrrev_b32 v{t1}, 16, v{t1}")
        a(f"v_mul_u32_u24 v{t2}, 10, v{t1}")
        a(f"v_sub_u32 v{t0}, v{t0}, v{t2}")
        a(f"v_mul_u32_u24 v{t1}, 1280, v{t1}")
        a(f"v_lshl_add_u32 v{vO[r]}, v{t0}, 4, v{t1}")
    a(f"s_mul_i32 s{sT0}, s{sDJ}, {24*8}")
    a(f"s_add_u32 s{sT0}, s{sT0}, {WS_F4}")
    poll_flags_n(a, sWS, sT0, 24, PFr, t0)
    ST("wflags")
    for k in range(3):
        for r in range(5):
            a(f"s_mul_i32 s{sT0}, s{sW}, {3*5120}")
            a(f"s_add_u32 m0, s{sT0}, {WO + k*5120 + r*1024}")
            a(f"s_add_u32 s{sT0}, s{sT0}, s{sWB}")
            a(f"s_add_u32 s{sT0}, s{sT0}, {k*5120 + r*1024}")
            a.vmem(f"buffer_load_dwordx4 v{vZ}, s[{sWS}:{sWS+3}], s{sT0} offen sc1 lds")
    lx = a.newlabel("k3_nx")
    a(f"s_cmp_ge_u32 s{sW}, 2")
    a(f"s_cbranch_scc1 {lx}")
    a(f"s_mul_i32 s{sT0}, s{sW}, {32*1280}")
    a(f"s_add_u32 s{sT0}, s{sT0}, s{sXB}")
    a(f"s_mul_i32 s{sT1}, s{sW}, 5120")
    for r in range(5):
        a(f"s_add_u32 m0, s{sT1}, {XT + r*1024}")
        a(f"buffer_load_dwordx4 v{vO[r]}, s[{sX}:{sX+3}], s{sT0} offen lds")
    a.vm -= 5
    a.label(lx)
    poll_all_flags(a, sWS, PFr, t0, WS_F2)
    ST("pflags")
    p_id = {}
    for m in range(3):
        for k in range(4):
            ks = 4*m + k
            a(f"s_lshl_b32 s{sT2}, s{sG[m]}, 12")
            a(f"s_add_u32 s{sT2}, s{sT2}, s{sPB}")
            p_id[ks] = a.vmem(f"buffer_load_dwordx4 v[{PFr+4*ks}:{PFr+4*ks+3}], v{vZ}, s[{sWS}:{sWS+3}], s{sT2} offen offset:{k*1024} sc1")
    XS = V(2, 2); vY = V()
    ly = a.newlabel("k3_ny")
    a(f"s_sub_u32 s{sT2}, s{sW}, 2")
    a(f"s_cmp_ge_u32 s{sT2}, 2")
    a(f"s_cbranch_scc1 {ly}")
    a(f"v_lshrrev_b32 v{t0}, 3, v{vL}")
    a(f"v_lshlrev_b32 v{t0}, 12, v{t0}")
    a(f"v_and_b32 v{t1}, 7, v{vL}")
    a(f"v_lshl_add_u32 v{vY}, v{t1}, 4, v{t0}")
    a(f"s_mul_i32 s{sT0}, s{sT2}, 40")
    a(f"s_mul_i32 s{sT1}, s{sDJ}, 80")
    a(f"s_add_u32 s{sT0}, s{sT0}, s{sT1}")
    a(f"s_lshl_b32 s{sT0}, s{sT0}, 12")
    a(f"s_lshl_b32 s{sT1}, s{sRB}, 7")
    a(f"s_add_u32 s{sT0}, s{sT0}, s{sT1}")
    a(f"s_add_u32 s{sT0}, s{sT0}, {WS_YT}")
    a(f"s_mul_i32 s{sT1}, s{sT2}, 5120")
    for r in range(5):
        a(f"s_add_u32 m0, s{sT1}, {YTL + r*1024}")
        a(f"buffer_load_dwordx4 v{vY}, s[{sWS}:{sWS+3}], s{sT0} offen sc1 lds")
        a(f"s_add_u32 s{sT0}, s{sT0}, {8*4096}")
    a.vm -= 5
    a.label(ly)
    a(f"s_lshl_b32 s{sT0}, s{sRB}, 9")
    a(f"s_lshl_b32 s{sT1}, s{sTT}, 7")
    a(f"s_add_u32 s{sT0}, s{sT0}, s{sT1}")
    a(f"s_add_u32 s{sT0}, s{sT0}, {WS_XST}")
    a(f"v_lshlrev_b32 v{t0}, 3, v{vP}")
    a.vmem(f"buffer_load_dwordx2 {P(XS)}, v{t0}, s[{sWS}:{sWS+3}], s{sT0} offen sc1")
    a("s_barrier")
    vA = [V(), V(), V()]
    for m in range(3):
        a(f"s_mul_i32 s{sT0}, s{sG[m]}, {4*5120}")
        a(f"v_add_u32 v{vA[m]}, s{sT0}, v{vZ}")
    ACC = V(20, 4)
    AF = V(40, 4)
    def read_a(ks):
        b = ks & 1; ids = []
        m = ks // 4; k = ks % 4
        for dt in range(5):
            r = AF + (b*5 + dt)*4
            ids.append(a.ds(f"ds_read_b128 v[{r}:{r+3}], v{vA[m]} offset:{WO + k*5120 + dt*1024}"))
        return ids
    rd = {0: read_a(0)}
    for ks in range(12):
        if ks + 1 < 12: rd[ks+1] = read_a(ks + 1)
        a.wait_vm(p_id[ks])
        b = ks & 1
        for dt in range(5):
            a.wait_lg(rd[ks][dt])
            r = AF + (b*5 + dt)*4
            c = "0" if ks == 0 else f"v[{ACC+4*dt}:{ACC+4*dt+3}]"
            a(f"v_mfma_f32_16x16x32_bf16 v[{ACC+4*dt}:{ACC+4*dt+3}], v[{r}:{r+3}], v[{PFr+4*ks}:{PFr+4*ks+3}], {c}")
    ST("k3loop")
    a("s_waitcnt vmcnt(0)")
    a("s_barrier")
    a(f"s_mul_i32 s{sT0}, s{sW}, 3072")
    a(f"v_add_u32 v{t0}, s{sT0}, v{vZ}")
    a(f"s_xor_b32 s{sT1}, s{sW}, 4")
    a(f"s_mul_i32 s{sT1}, s{sT1}, 3072")
    a(f"v_add_u32 v{t1}, s{sT1}, v{vZ}")
    lk1 = a.newlabel("k3_kh1"); lke = a.newlabel("k3_khe")
    OWNB = V(12, 4)
    lg0 = a.lg
    a(f"s_cmp_lg_u32 s{sKH}, 0")
    a(f"s_cbranch_scc1 {lk1}")
    for i, dt in enumerate((3, 4)):
        a.ds(f"ds_write_b128 v{t0}, v[{ACC+4*dt}:{ACC+4*dt+3}] offset:{WO + i*1024}")
    for i in range(0, 12, 2): a(f"v_pk_add_f32 {P(OWNB+i)}, {P(ACC+i)}, 0")
    a(f"s_branch {lke}")
    a.label(lk1)
    a.lg = lg0
    for i, dt in enumerate((0, 1, 2)):
        a.ds(f"ds_write_b128 v{t0}, v[{ACC+4*dt}:{ACC+4*dt+3}] offset:{WO + i*1024}")
    for i in range(0, 8, 2): a(f"v_pk_add_f32 {P(OWNB+i)}, {P(ACC+12+i)}, 0")
    for i in range(8, 12): a(f"v_mov_b32 v{OWNB+i}, 0")
    a.label(lke)
    a("s_waitcnt lgkmcnt(0)")
    a("s_barrier")
    PB = AF
    for i in range(3):
        a.ds(f"ds_read_b128 v[{PB+4*i}:{PB+4*i+3}], v{t1} offset:{WO + i*1024}")
    XV = AF + 12; YV = AF + 18
    a(f"s_lshl_b32 s{sT0}, s{sTT}, 4")
    a(f"v_add_u32 v{t0}, s{sT0}, v{vP}")
    a(f"v_mul_u32_u24 v{t0}, 160, v{t0}")
    vXA = V(); vX2 = V(); vYA = V()
    a(f"v_lshl_add_u32 v{vXA}, v{vQ}, 3, v{t0}")
    a(f"s_mul_i32 s{sT3}, s{sKH}, 96")
    a(f"v_add_u32 v{vXA}, s{sT3}, v{vXA}")
    a(f"v_add_u32 v{vX2}, {XT}, v{vXA}")
    a(f"v_lshrrev_b32 v{t2}, 2, v{vP}")
    a(f"v_lshl_add_u32 v{t0}, v{vQ}, 2, v{t2}")
    a(f"v_lshlrev_b32 v{t0}, 7, v{t0}")
    a(f"v_and_b32 v{t2}, 3, v{vP}")
    a(f"v_lshl_add_u32 v{t0}, v{t2}, 3, v{t0}")
    a(f"s_lshl_b32 s{sT0}, s{sTT}, 5")
    a(f"s_mul_i32 s{sT1}, s{sKH}, {3*2048}")
    a(f"s_add_u32 s{sT0}, s{sT0}, s{sT1}")
    a(f"s_add_u32 s{sT0}, s{sT0}, {YTL}")
    a(f"v_add_u32 v{vYA}, s{sT0}, v{t0}")
    for i in range(3):
        a.ds(f"ds_read_b64 v[{XV+2*i}:{XV+2*i+1}], v{vX2} offset:{i*32}")
    for i in range(3):
        a.ds(f"ds_read_b64_tr_b16 v[{YV+2*i}:{YV+2*i+1}], v{vYA} offset:{i*2048}")
    sL = 46
    a(f"s_mov_b32 s{sL}, {f32(-LOG2E):#x}")
    a(f"s_mov_b32 s{sL+1}, {f32(-LOG2E):#x}")
    a(f"s_waitcnt lgkmcnt(6)")
    B_ = OWNB
    for i in range(0, 12, 2): a(f"v_pk_add_f32 {P(B_+i)}, {P(B_+i)}, {P(PB+i)}")
    T = PFr
    E = T
    for i in range(0, 12, 2): a(f"v_pk_mul_f32 {P(E+i)}, {P(B_+i)}, s[{sL}:{sL+1}]")
    for i in range(12): a(f"v_exp_f32 v{E+i}, v{E+i}")
    for i in range(0, 12, 2): a(f"v_pk_add_f32 {P(E+i)}, {P(E+i)}, 1.0 op_sel_hi:[1,0]")
    for i in range(12): a(f"v_rcp_f32 v{E+i}, v{E+i}")
    for i in range(0, 12, 2): a(f"v_pk_mul_f32 {P(E+i)}, {P(E+i)}, {P(B_+i)}")
    a("s_waitcnt lgkmcnt(0)")
    XF_ = T + 12; YF = T + 24; N = T + 36
    for i in range(6):
        a(f"v_lshlrev_b32 v{XF_+2*i}, 16, v{XV+i}")
        a(f"v_and_b32 v{XF_+2*i+1}, 0xffff0000, v{XV+i}")
        a(f"v_lshlrev_b32 v{YF+2*i}, 16, v{YV+i}")
        a(f"v_and_b32 v{YF+2*i+1}, 0xffff0000, v{YV+i}")
    RB = V(2, 2)
    a(f"v_mov_b32 v{RB}, v{XS+1}")
    for i in range(0, 12, 2): a(f"v_pk_add_f32 {P(N+i)}, {P(XF_+i)}, {P(XS)} op_sel_hi:[1,0] neg_lo:[0,1] neg_hi:[0,1]")
    for i in range(0, 12, 2): a(f"v_pk_mul_f32 {P(N+i)}, {P(N+i)}, {P(RB)} op_sel_hi:[1,0]")
    for i in range(0, 12, 2): a(f"v_pk_mul_f32 {P(N+i)}, {P(N+i)}, {P(YF+i)}")
    for i in range(0, 12, 2): a(f"v_pk_fma_f32 {P(N+i)}, {P(N+i)}, {P(E+i)}, {P(XF_+i)}")
    OV = AF
    for i in range(6): a(f"v_cvt_pk_bf16_f32 v{OV+i}, v{N+2*i}, v{N+2*i+1}")
    vOW = V()
    a(f"v_add_u32 v{vOW}, {OT}, v{vXA}")
    for i in range(2):
        a.ds(f"ds_write_b64 v{vOW}, v[{OV+2*i}:{OV+2*i+1}] offset:{i*32}")
    a(f"s_cmp_eq_u32 s{sKH}, 0")
    a(f"s_cselect_b64 exec, -1, 0")
    a.ds(f"ds_write_b64 v{vOW}, v[{OV+4}:{OV+5}] offset:64")
    a(f"s_mov_b64 exec, -1")
    a("s_waitcnt lgkmcnt(0)")
    a("s_barrier")
    a(f"s_mul_i32 s{sT0}, s{sW}, 1280")
    a(f"s_add_u32 s{sT0}, s{sT0}, {OT}")
    a(f"v_add_u32 v{t0}, s{sT0}, v{vZ}")
    a.ds(f"ds_read_b128 v[{T}:{T+3}], v{t0}")
    a.ds(f"ds_read_b128 v[{T+4}:{T+7}], v{t0} offset:1024")
    a(f"s_mul_i32 s{sT0}, s{sW}, {8*1280}")
    a(f"s_add_u32 s{sT0}, s{sT0}, s{sXB}")
    a("s_waitcnt lgkmcnt(0)")
    a.vmem(f"buffer_store_dwordx4 v[{T}:{T+3}], v{vO[0]}, s[{sOUT}:{sOUT+3}], s{sT0} offen")
    a(f"s_mov_b64 exec, 0xffff")
    a.vmem(f"buffer_store_dwordx4 v[{T+4}:{T+7}], v{vO[1]}, s[{sOUT}:{sOUT+3}], s{sT0} offen")
    a(f"s_mov_b64 exec, -1")
    ST("k3end")
    ST.dump(sWS, sW, t0, t1, WS_DBG + 0x600000)
    gen_phase3.stamp_names = ST.names
    if Stamps.HS:
        wg = int(os.environ.get("HSWG", "0"))
        lab = a.newlabel("hs_skip")
        a(f"s_cmp_lg_u32 s2, {wg}")
        a(f"s_cbranch_scc1 {lab}")
        a(f"s_cmp_lg_u32 s{sW}, 0")
        a(f"s_cbranch_scc1 {lab}")
        a(f"s_load_dwordx2 s[20:21], s[0:1], {KA['dbg']}")
        a(f"s_mov_b32 s22, 256"); a(f"s_mov_b32 s23, {SRD3:#x}")
        a(f"v_readlane_b32 s40, v254, 1")
        a(f"v_mbcnt_lo_u32_b32 v{t0}, -1, 0")
        a(f"v_mbcnt_hi_u32_b32 v{t0}, -1, v{t0}")
        a(f"v_lshlrev_b32 v{t0}, 2, v{t0}")
        a(f"v_subrev_u32 v254, s40, v254")
        a("s_waitcnt lgkmcnt(0)")
        a(f"s_mov_b64 exec, {((1 << (len(Stamps.HS) + 1)) - 1) & ~1:#x}")
        a(f"buffer_store_dword v254, v{t0}, s[20:23], 0 offen")
        a(f"s_mov_b64 exec, -1")
        a.label(lab)
    return V.hi
```

```python
from dsl import *
from layout import *
from k1 import f32, Filler, run, mask, P, Z1L, SYNC
sTAGF = 100

def gsync(a, which, state, t0, t1):
    state[0] += 1
    a("s_waitcnt lgkmcnt(0)")
    a(f"v_mov_b32 v{t0}, {SYNC + 4*which}")
    a(f"v_mov_b32 v{t1}, 1")
    a("s_mov_b64 exec, 1")
    a(f"ds_add_u32 v{t0}, v{t1}")
    a("s_mov_b64 exec, -1")
    lp = a.newlabel("gsync"); le = a.newlabel("gsync_e")
    a("s_mov_b32 s67, 0")
    a.label(lp)
    a(f"ds_read_b32 v{t1}, v{t0}")
    a("s_add_u32 s67, s67, 1")
    a("s_waitcnt lgkmcnt(0)")
    a(f"v_readfirstlane_b32 s66, v{t1}")
    a("s_cmp_gt_u32 s67, 1000000")
    a(f"s_cbranch_scc1 {le}")
    a(f"s_cmp_lt_u32 s66, {4*state[0]}")
    a(f"s_cbranch_scc1 {lp}")
    a.label(le)
    a.lg -= 2

def poll_all_flags(a, sWS, F, t0, base=None):
    lp = a.newlabel("fpoll"); le = a.newlabel("fpoll_e")
    a(f"v_mbcnt_lo_u32_b32 v{t0}, -1, 0")
    a(f"v_mbcnt_hi_u32_b32 v{t0}, -1, v{t0}")
    a(f"v_lshlrev_b32 v{t0}, 4, v{t0}")
    a(f"s_mov_b32 s66, {WS_F1 if base is None else base}")
    a("s_mov_b32 s67, 0")
    a.label(lp)
    a(f"buffer_load_dwordx4 v[{F}:{F+3}], v{t0}, s[{sWS}:{sWS+3}], s66 offen sc1")
    a(f"buffer_load_dwordx4 v[{F+4}:{F+7}], v{t0}, s[{sWS}:{sWS+3}], s66 offen offset:1024 sc1")
    a.vm -= 2
    a("s_add_u32 s67, s67, 1")
    a("s_waitcnt vmcnt(0)")
    a(f"v_cmp_ne_u32 vcc, s{sTAGF}, v{F}")
    for k in range(1, 8):
        a(f"v_cmp_ne_u32 s[64:65], s{sTAGF + (k & 1)}, v{F+k}")
        a("s_or_b64 vcc, vcc, s[64:65]")
    a("s_cmp_gt_u32 s67, 100000")
    a(f"s_cbranch_scc1 {le}")
    a("s_cmp_eq_u64 vcc, 0")
    a(f"s_cbranch_scc1 {le}")
    a("s_sleep 2")
    a(f"s_branch {lp}")
    a.label(le)

def poll_flags_n(a, sWS, sOff, n, F, t0):
    lp = a.newlabel("fpoll"); le = a.newlabel("fpoll_e")
    a(f"v_mbcnt_lo_u32_b32 v{t0}, -1, 0")
    a(f"v_mbcnt_hi_u32_b32 v{t0}, -1, v{t0}")
    a(f"v_min_u32 v{t0}, {n-1}, v{t0}")
    a(f"v_lshlrev_b32 v{t0}, 3, v{t0}")
    a("s_mov_b32 s67, 0")
    a.label(lp)
    a(f"buffer_load_dwordx2 {P(F)}, v{t0}, s[{sWS}:{sWS+3}], s{sOff} offen sc1")
    a.vm -= 1
    a("s_add_u32 s67, s67, 1")
    a("s_waitcnt vmcnt(0)")
    a(f"v_cmp_ne_u32 vcc, s{sTAGF}, v{F}")
    a(f"v_cmp_ne_u32 s[64:65], s{sTAGF+1}, v{F+1}")
    a("s_or_b64 vcc, vcc, s[64:65]")
    a("s_cmp_gt_u32 s67, 100000")
    a(f"s_cbranch_scc1 {le}")
    a("s_cmp_eq_u64 vcc, 0")
    a(f"s_cbranch_scc1 {le}")
    a("s_sleep 2")
    a(f"s_branch {lp}")
    a.label(le)

def poll_flags(a, sWS, sOff, F, t0):
    lp = a.newlabel("fpoll"); le = a.newlabel("fpoll_e")
    a(f"v_mbcnt_lo_u32_b32 v{t0}, -1, 0")
    a(f"v_mbcnt_hi_u32_b32 v{t0}, -1, v{t0}")
    a(f"v_and_b32 v{t0}, 31, v{t0}")
    a(f"v_lshlrev_b32 v{t0}, 3, v{t0}")
    a("s_mov_b32 s67, 0")
    a.label(lp)
    a(f"buffer_load_dwordx2 {P(F)}, v{t0}, s[{sWS}:{sWS+3}], s{sOff} offen sc1")
    a.vm -= 1
    a("s_add_u32 s67, s67, 1")
    a("s_waitcnt vmcnt(0)")
    a(f"v_cmp_ne_u32 vcc, s{sTAGF}, v{F}")
    a(f"v_cmp_ne_u32 s[64:65], s{sTAGF+1}, v{F+1}")
    a("s_or_b64 vcc, vcc, s[64:65]")
    a("s_cmp_gt_u32 s67, 100000")
    a(f"s_cbranch_scc1 {le}")
    a("s_cmp_eq_u64 vcc, 0")
    a(f"s_cbranch_scc1 {le}")
    a("s_sleep 2")
    a(f"s_branch {lp}")
    a.label(le)
import os
K2X = os.environ.get('K2X', '')

ZDEPTH = int(os.environ.get('ZD', '4'))
FUSED = bool(os.environ.get('FUSED'))
FULL = os.environ.get('FUSED') == '2'
CB = 86016 if FUSED else 0
CS_ = 4160
TOEP = CB
OZ = 1
UZ = 32
UB = TOEP + 8 * CS_
PB = UB + 4608
PT_ = 8192
WJ = PB + 4*PT_
assert WJ + 5120 <= (161792 if FUSED else 81920)

def gen_gemm(a, V, ST, prof):
    sWSP, sWS, sBSP = 4, 8, 12
    sRB, sJ, sW = 32, 33, 34
    sT0, sT1, sT2, sT3 = 40, 41, 42, 43
    sZ, sWB, sLB = 44, 45, 46
    a(f"s_load_dwordx2 s[{sWSP}:{sWSP+1}], s[0:1], {KA['wsp']}")
    a(f"s_load_dwordx2 s[{sWS}:{sWS+1}], s[0:1], {KA['ws']}")
    a(f"s_load_dwordx2 s[{sBSP}:{sBSP+1}], s[0:1], {KA['bsp']}")
    vL = V(); t0, t1, t2 = V(), V(), V()
    a(f"v_lshrrev_b32 v{t0}, 6, v0")
    a(f"v_and_b32 v{vL}, 63, v0")
    a(f"v_readfirstlane_b32 s{sW}, v{t0}")
    for srd, size in ((sWSP, SZ_WSP), (sWS, WS_SIZE_DBG if prof else WS_END), (sBSP, 4096)):
        a(f"s_mov_b32 s{srd+2}, {size}")
        a(f"s_mov_b32 s{srd+3}, {SRD3:#x}")
    a(f"s_and_b32 s{sT0}, s2, 7")
    a(f"s_lshr_b32 s{sT1}, s2, 3")
    a(f"s_and_b32 s{sT1}, s{sT1}, 31")
    a(f"s_lshr_b32 s{sRB}, s{sT0}, 1")
    a(f"s_lshl_b32 s{sRB}, s{sRB}, 3")
    a(f"s_and_b32 s{sT2}, s{sT1}, 7")
    a(f"s_add_u32 s{sRB}, s{sRB}, s{sT2}")
    a(f"s_and_b32 s{sJ}, s{sT0}, 1")
    a(f"s_lshl_b32 s{sJ}, s{sJ}, 2")
    a(f"s_lshr_b32 s{sT2}, s{sT1}, 3")
    a(f"s_add_u32 s{sJ}, s{sJ}, s{sT2}")
    a(f"s_lshl_b32 s{sZ}, s{sJ}, 7")
    a(f"s_lshl_b32 s{sT0}, s{sW}, 5")
    a(f"s_add_u32 s{sZ}, s{sZ}, s{sT0}")
    a(f"s_mul_i32 s{sZ}, s{sZ}, 3072")
    a(f"s_add_u32 s{sZ}, s{sZ}, {WS_Z2F}")
    a(f"s_lshl_b32 s{sWB}, s{sRB}, 18")
    a(f"s_lshl_b32 s{sT0}, s{sW}, 10")
    a(f"s_add_u32 s{sWB}, s{sWB}, s{sT0}")
    a(f"s_lshl_b32 s{sLB}, s{sW}, 14")
    vZ = V()
    a(f"v_lshlrev_b32 v{vZ}, 4, v{vL}")
    vWE, vWO = V(), V()
    a(f"v_lshrrev_b32 v{t0}, 3, v{vL}")
    a(f"v_lshlrev_b32 v{t0}, 12, v{t0}")
    a(f"v_and_b32 v{t1}, 7, v{vL}")
    a(f"v_lshrrev_b32 v{t2}, 4, v{vL}")
    a(f"v_xor_b32 v{t1}, v{t1}, v{t2}")
    a(f"v_lshl_add_u32 v{vWE}, v{t1}, 4, v{t0}")
    a(f"v_xor_b32 v{vWO}, 64, v{vWE}")
    sROT = 50
    if "rot" in K2X:
        a(f"s_and_b32 s{sROT}, s{sJ}, 3")
        a(f"s_lshl_b32 s{sROT}, s{sROT}, 1")
        a(f"s_add_u32 s{sROT}, s{sROT}, s{sRB}")
        a(f"s_and_b32 s{sROT}, s{sROT}, 7")
    else: a(f"s_mov_b32 s{sROT}, 0")
    def chunk(c, dst):
        a(f"s_add_u32 s{dst}, s{sROT}, {c}")
        a(f"s_and_b32 s{dst}, s{dst}, 7")
    ACC = V(96, 4)
    def acc(ft, tt): return ACC + (ft*2 + tt)*16
    ZF = V((ZDEPTH+1)*12, 4)
    def zf(ks, ft): return ZF + ((ks % (ZDEPTH+1))*3 + ft)*4
    WFr = V(16, 4)
    def wfr(b, tt): return WFr + (b*2 + tt)*4
    z_id = {}; w_id = {}
    sZc = [52, 53]; sWc = [54, 55]
    def z_base(c):
        chunk(c, sZc[c & 1])
        a(f"s_mul_i32 s{sZc[c & 1]}, s{sZc[c & 1]}, 12288")
        a(f"s_add_u32 s{sZc[c & 1]}, s{sZc[c & 1]}, s{sZ}")
    def w_base(c):
        chunk(c, sWc[c & 1])
        a(f"s_lshl_b32 s{sWc[c & 1]}, s{sWc[c & 1]}, 7")
        a(f"s_add_u32 s{sWc[c & 1]}, s{sWc[c & 1]}, s{sWB}")
    def load_z_g(ks):
        c = ks // 4
        if ks % 4 == 0: z_base(c)
        for ft in range(3):
            so = sZc[c & 1]
            if ks % 4:
                a(f"s_add_u32 s{sT1}, s{sZc[c & 1]}, {(ks%4)*3072}"); so = sT1
            z_id[(ks, ft)] = a.vmem(f"buffer_load_dwordx4 v[{zf(ks,ft)}:{zf(ks,ft)+3}], v{vZ}, s[{sWS}:{sWS+3}], s{so} offen offset:{ft*1024}" + (" sc1" if FUSED else ""))
            yield
    def dma_w_g(c, lo, hi):
        sl = c & 1
        if lo == 0: w_base(c)
        for i in range(lo, hi):
            a(f"s_add_u32 s{sT2}, s{sWc[c & 1]}, {i*8*4096}")
            a(f"s_add_u32 m0, s{sLB}, {sl*8192 + i*1024}")
            w_id[c] = a.vmem(f"buffer_load_dwordx4 v{vWE if i % 2 == 0 else vWO}, s[{sWSP}:{sWSP+3}], s{sT2} offen lds")
            yield
    a("s_waitcnt lgkmcnt(0)")
    ST("g_kernarg")
    if FUSED:
        run(dma_w_g(0, 0, 8))
        a(f"s_lshl_b32 s{sT3}, s{sJ}, 8")
        a(f"s_add_u32 s{sT3}, s{sT3}, {WS_F1}")
        poll_flags(a, sWS, sT3, ZF, t0)
        ST("g_flags")
        for ks in range(ZDEPTH): run(load_z_g(ks))
    else:
        run(load_z_g(0)); run(dma_w_g(0, 0, 8))
        for ks in range(1, ZDEPTH): run(load_z_g(ks))
    vWA = [V() for _ in range(4)]
    a(f"v_and_b32 v{t0}, 31, v{vL}")
    a(f"v_lshrrev_b32 v{t1}, 1, v{t0}")
    a(f"v_and_b32 v{t1}, 7, v{t1}")
    a(f"v_lshrrev_b32 v{t2}, 5, v{vL}")
    a(f"v_xor_b32 v{t1}, v{t1}, v{t2}")
    a(f"v_lshl_add_u32 v{t0}, v{t0}, 7, s{sLB}")
    for kk in range(4):
        a(f"v_xor_b32 v{t2}, {2*kk}, v{t1}")
        a(f"v_lshl_add_u32 v{vWA[kk]}, v{t2}, 4, v{t0}")
    Z1 = V(12, 4); vB = V()
    ep = {}
    def epi_loads():
        a(f"s_lshl_b32 s{sT0}, s{sRB}, 3")
        a(f"s_add_u32 s{sT0}, s{sT0}, s{sJ}")
        a(f"s_lshl_b32 s{sT0}, s{sT0}, 2")
        a(f"s_add_u32 s{sT0}, s{sT0}, s{sW}")
        a(f"s_mul_i32 s{sT0}, s{sT0}, 3072")
        a(f"s_add_u32 s{sT0}, s{sT0}, {WS_Z1F}")
        for ft in range(3):
            if FUSED:
                if ft == 0:
                    a(f"s_mul_i32 s{sT0}, s{sW}, 3072")
                    a(f"s_add_u32 s{sT0}, s{sT0}, {Z1L}")
                    a(f"v_add_u32 v{t1}, s{sT0}, v{vZ}")
                a.ds(f"ds_read_b128 v[{Z1+4*ft}:{Z1+4*ft+3}], v{t1} offset:{ft*1024}")
            else:
                a.vmem(f"buffer_load_dwordx4 v[{Z1+4*ft}:{Z1+4*ft+3}], v{vZ}, s[{sWS}:{sWS+3}], s{sT0} offen offset:{ft*1024}")
            yield
        a(f"v_and_b32 v{t0}, 31, v{vL}")
        a(f"v_lshlrev_b32 v{t0}, 1, v{t0}")
        a(f"s_lshr_b32 s{sT0}, s{sW}, 1")
        a(f"s_lshl_b32 s{sT0}, s{sT0}, 6")
        a(f"s_lshl_b32 s{sT3}, s{sRB}, 7")
        a(f"s_add_u32 s{sT0}, s{sT0}, s{sT3}")
        ep['b'] = a.vmem(f"buffer_load_ushort v{vB}, v{t0}, s[{sBSP}:{sBSP+3}], s{sT0} offen")
        yield
    def read_w(ks):
        c = ks // 4; kk = ks % 4; b = ks & 1
        ids = []
        for tt in range(2):
            ids.append(a.ds(f"ds_read_b128 v[{wfr(b,tt)}:{wfr(b,tt)+3}], v{vWA[kk]} offset:{(c&1)*8192 + tt*4096}"))
        return ids[-1]
    a.wait_vm(w_id[0])
    ST("g_w0")
    if "noprio" not in K2X: a("s_setprio 2")
    rd = {0: read_w(0)}
    for ks in range(32):
        c = ks // 4
        if ks % 4 == 0 and "cst" in K2X: ST(f"c{c}")
        if ks == int(os.environ.get("PSW", "99")): a("s_setprio 0")
        a.wait_vm(z_id[(ks, 2)])
        a.wait_lg(rd[ks])
        fl = Filler()
        def rdw(k=ks):
            if (k + 1) % 4 == 0: a.wait_vm(w_id[(k + 1)//4])
            rd[k + 1] = read_w(k + 1)
            yield
        if ks + 1 < 32: fl.add(rdw())
        if ks + ZDEPTH < 32: fl.add(load_z_g(ks + ZDEPTH))
        if ks == 0: fl.add(dma_w_g(1, 0, 4))
        if ks == 1: fl.add(dma_w_g(1, 4, 8))
        for n in range(2, 8):
            if ks == 4*(n-1) - 1: fl.add(dma_w_g(n, 0, 2))
            if ks == 4*(n-1): fl.add(dma_w_g(n, 2, 5))
            if ks == 4*(n-1) + 1: fl.add(dma_w_g(n, 5, 8))
        if ks == 30: fl.add(epi_loads())
        b = ks & 1
        for ft in range(3):
            for tt in range(2):
                cc = "0" if ks == 0 else f"v[{acc(ft,tt)}:{acc(ft,tt)+15}]"
                if not ("nomfma" in K2X and ks > 0):
                    a(f"v_mfma_f32_32x32x16_bf16 v[{acc(ft,tt)}:{acc(ft,tt)+15}], v[{zf(ks,ft)}:{zf(ks,ft)+3}], v[{wfr(b,tt)}:{wfr(b,tt)+3}], {cc}")
                fl.step(1)
        fl.drain()
    ST("g_loop")
    a("s_setprio 0")
    OWN = ZF
    lend = a.newlabel("g_epi_end")
    labs = [a.newlabel("g_epi") for _ in range(4)]
    a(f"v_add_u32 v{t2}, 0x10000, v{vZ}")
    a("s_nop 15")
    gst = [0]
    if FUSED: gsync(a, 0, gst, t0, t1)
    else: a("s_barrier")
    lg0 = a.lg
    for w in range(4):
        if w < 3:
            a(f"s_cmp_lg_u32 s{sW}, {w}")
            a(f"s_cbranch_scc1 {labs[w]}")
        a.lg = lg0
        for d in range(4):
            if d == w: continue
            tt = d >> 1; g0 = d & 1
            k = (w - d - 1) & 3
            for ft in range(3):
                for gh in range(2):
                    r = acc(ft, tt) + 4*(g0 + 2*gh)
                    off = d*18432 + k*6144 + (ft*2+gh)*1024
                    if off >= 65536: a.ds(f"ds_write_b128 v{t2}, v[{r}:{r+3}] offset:{off - 65536}")
                    else: a.ds(f"ds_write_b128 v{vZ}, v[{r}:{r+3}] offset:{off}")
        tt = w >> 1; g0 = w & 1
        for ft in range(3):
            for gh in range(2):
                r = acc(ft, tt) + 4*(g0 + 2*gh)
                for e in range(0, 4, 2):
                    a(f"v_pk_add_f32 {P(OWN + (ft*2+gh)*4 + e)}, {P(r+e)}, 0")
        if w < 3:
            a(f"s_branch {lend}")
            a.label(labs[w])
    a.label(lend)
    return_epi = True
    a("s_waitcnt lgkmcnt(0)")
    if FUSED: gsync(a, 0, gst, t0, t1)
    else: a("s_barrier")
    PT = ACC
    a(f"s_mul_i32 s{sT0}, s{sW}, 18432")
    a(f"v_add_u32 v{t0}, s{sT0}, v{vZ}")
    for k in range(3):
        for q in range(6):
            a.ds(f"ds_read_b128 v[{PT + (k*6+q)*4}:{PT + (k*6+q)*4 + 3}], v{t0} offset:{k*6144 + q*1024}")
    vSt = vWE
    a(f"v_lshrrev_b32 v{vSt}, 4, v{vL}")
    a(f"v_and_b32 v{vSt}, 1, v{vSt}")
    a(f"v_mul_u32_u24 v{vSt}, {24*1024}, v{vSt}")
    a(f"v_and_b32 v{t1}, 15, v{vL}")
    a(f"v_lshrrev_b32 v{t2}, 5, v{vL}")
    a(f"v_lshl_add_u32 v{t1}, v{t2}, 4, v{t1}")
    a(f"v_lshl_add_u32 v{vSt}, v{t1}, 4, v{vSt}")
    a(f"s_mul_i32 s{sT0}, s{sRB}, {4*24*1024}")
    a(f"s_lshr_b32 s{sT1}, s{sW}, 1")
    a(f"s_mul_i32 s{sT1}, s{sT1}, {2*24*1024}")
    a(f"s_add_u32 s{sT0}, s{sT0}, s{sT1}")
    a(f"s_mul_i32 s{sT1}, s{sJ}, 3072")
    a(f"s_add_u32 s{sT0}, s{sT0}, s{sT1}")
    a(f"s_and_b32 s{sT1}, s{sW}, 1")
    a(f"s_lshl_b32 s{sT1}, s{sT1}, 9")
    a(f"s_add_u32 s{sT0}, s{sT0}, s{sT1}")
    a(f"s_add_u32 s{sT0}, s{sT0}, {WS_PF}")
    a.wait_vm(ep['b'])
    vB2 = vWA[0] if vWA[0] % 2 == 0 else vWA[1]
    a(f"v_lshlrev_b32 v{vB2}, 16, v{vB}")
    ZU = PT + 72
    for i in range(12):
        a(f"v_lshlrev_b32 v{ZU+2*i}, 16, v{Z1+i}")
        a(f"v_and_b32 v{ZU+2*i+1}, 0xffff0000, v{Z1+i}")
    for k in range(3):
        a(f"s_waitcnt lgkmcnt({min(15, 12 - 6*k)})")
        for i in range(0, 24, 2):
            a(f"v_pk_add_f32 {P(OWN+i)}, {P(OWN+i)}, {P(PT+k*24+i)}")
    for i in range(0, 24, 2):
        a(f"v_pk_add_f32 {P(OWN+i)}, {P(OWN+i)}, {P(vB2)} op_sel_hi:[1,0]")
    for i in range(0, 24, 2):
        a(f"v_pk_mul_f32 {P(OWN+i)}, {P(OWN+i)}, {P(ZU+i)}")
    OUT = PT
    for ft in range(3):
        for i in range(4):
            a(f"v_cvt_pk_bf16_f32 v{OUT+4*ft+i}, v{OWN+8*ft+2*i}, v{OWN+8*ft+2*i+1}")
        a.vmem(f"buffer_store_dwordx4 v[{OUT+4*ft}:{OUT+4*ft+3}], v{vSt}, s[{sWS}:{sWS+3}], s{sT0} offen offset:{ft*1024}" + (" sc1" if "psc1" in K2X else ""))
    ST("g_end")
    ST.dump(sWS, sW, t0, t1, WS_DBG + 0x200000)

def gen_conv(a, V, ST, prof, name):
    sSSM, sWS, sDv, sWSP, sWO = 4, 8, 12, 16, 20
    sC, sW, sCH = 32, 34, 35
    sT0, sT1, sT2, sT3 = 40, 41, 42, 43
    a(f"s_load_dwordx2 s[{sSSM}:{sSSM+1}], s[0:1], {KA['ssmk']}")
    a(f"s_load_dwordx2 s[{sWS}:{sWS+1}], s[0:1], {KA['ws']}")
    a(f"s_load_dwordx2 s[{sDv}:{sDv+1}], s[0:1], {KA['ssmD']}")
    a(f"s_load_dwordx2 s[{sWSP}:{sWSP+1}], s[0:1], {KA['wsp']}")
    a(f"s_load_dwordx2 s[{sWO}:{sWO+1}], s[0:1], {KA['wout']}")
    vL = V(); vT = V(); t0, t1, t2 = V(), V(), V()
    if FUSED: a(f"v_subrev_u32 v0, 256, v0")
    if os.environ.get("CPRIO"): a(f"s_setprio {os.environ['CPRIO']}")
    cst = [0]
    def csync():
        if FUSED: gsync(a, 1, cst, t0, t1)
        else:
            a("s_waitcnt lgkmcnt(0)")
            a("s_barrier")
    a(f"v_lshrrev_b32 v{t0}, 6, v0")
    a(f"v_and_b32 v{vL}, 63, v0")
    a(f"v_readfirstlane_b32 s{sW}, v{t0}")
    for srd, size in ((sSSM, SZ_SSMK), (sWS, WS_SIZE_DBG if prof else WS_END), (sDv, 1280), (sWSP, SZ_WSP), (sWO, SZ_WOUT)):
        a(f"s_mov_b32 s{srd+2}, {size}")
        a(f"s_mov_b32 s{srd+3}, {SRD3:#x}")
    a(f"s_mov_b32 s{sC}, s2")
    a(f"v_lshlrev_b32 v{vT}, 4, v0")
    NCH = 3
    HR = V(8*NCH, 4); UR = V(4*NCH, 4); DR = V(NCH)
    vTm = V()
    FP = V(8, 4)
    a(f"v_subrev_u32 v{vTm}, 16, v{vT}")
    sCHN = [56, 57, 58]
    a(f"s_mov_b32 s{sCHN[0]}, s2")
    a(f"s_add_u32 s{sCHN[1]}, s2, 256")
    a(f"s_lshr_b32 s{sCHN[2]}, s2, 1")
    a(f"s_add_u32 s{sCHN[2]}, s{sCHN[2]}, 512")
    ld = {}
    def loads(i):
        a(f"s_lshl_b32 s{sT0}, s{sCHN[i]}, 12")
        a.vmem(f"buffer_load_dwordx4 v[{HR+8*i+4}:{HR+8*i+7}], v{vT}, s[{sSSM}:{sSSM+3}], s{sT0} offen")
        a.vmem(f"buffer_load_dwordx4 v[{HR+8*i}:{HR+8*i+3}], v{vTm}, s[{sSSM}:{sSSM+3}], s{sT0} offen")
        a(f"s_lshl_b32 s{sT1}, s{sCHN[i]}, 1")
        a(f"v_mov_b32 v{t0}, 0")
        a.vmem(f"buffer_load_ushort v{DR+i}, v{t0}, s[{sDv}:{sDv+3}], s{sT1} offen")
        if FUSED:
            ld[i] = a.vm - 1
            return
        load_u(i)
    def load_u(i):
        a(f"s_lshl_b32 s{sT0}, s{sCHN[i]}, 12")
        a(f"s_add_u32 s{sT0}, s{sT0}, {WS_KVT}")
        ld[i] = a.vmem(f"buffer_load_dwordx4 v[{UR+4*i}:{UR+4*i+3}], v{vT}, s[{sWS}:{sWS+3}], s{sT0} offen" + (" sc1" if FUSED else ""))
    def poll_all():
        poll_all_flags(a, sWS, FP, t0)
    a("s_waitcnt lgkmcnt(0)")
    ST("c_kernarg")
    loads(0)
    vTW, vTZ, vDm = V(), V(), V()
    sU, sTWB, sTZB = 47, 52, 53
    a(f"s_lshr_b32 s{sU}, s2, 3")
    a(f"s_lshl_b32 s{sU}, s{sU}, 2")
    a(f"s_add_u32 s{sU}, s{sU}, s{sW}")
    a(f"s_mul_i32 s{sT0}, s{sU}, 12")
    a(f"v_add_u32 v{t0}, s{sT0}, v{vL}")
    a(f"v_mul_u32_u24 v{t1}, 43691, v{t0}")
    a(f"v_lshrrev_b32 v{t1}, 22, v{t1}")
    a(f"v_mul_u32_u24 v{t2}, 96, v{t1}")
    a(f"v_sub_u32 v{t0}, v{t0}, v{t2}")
    a(f"v_mul_u32_u24 v{t1}, 98304, v{t1}")
    a(f"v_lshl_add_u32 v{vTZ}, v{t0}, 7, v{t1}")
    a(f"s_and_b32 s{sT0}, s2, 7")
    a(f"s_lshr_b32 s{sTWB}, s{sT0}, 1")
    a(f"s_lshl_b32 s{sTWB}, s{sTWB}, 21")
    a(f"s_and_b32 s{sTZB}, s{sT0}, 1")
    a(f"s_mul_i32 s{sTZB}, s{sTZB}, {4*393216}")
    a(f"s_add_u32 s{sTZB}, s{sTZB}, {WS_Z2F}")
    a(f"s_lshl_b32 s{sT0}, s{sU}, 4")
    a(f"v_add_u32 v{t0}, s{sT0}, v{vL}")
    a(f"v_lshrrev_b32 v{t1}, 2, v{t0}")
    a(f"v_lshlrev_b32 v{t1}, 12, v{t1}")
    a(f"v_and_b32 v{t0}, 3, v{t0}")
    a(f"v_lshl_add_u32 v{vTW}, v{t0}, 10, v{t1}")
    def touch(c, w=True):
        if "notouch" in K2X: return
        a(f"s_add_u32 s{sT0}, s{sTZB}, {c*12288}")
        a(f"s_mov_b64 exec, 0xfff")
        a.vmem(f"buffer_load_dword v{vDm}, v{vTZ}, s[{sWS}:{sWS+3}], s{sT0} offen" + (" sc1" if FUSED else ""))
        if w and "notw" not in K2X:
            a(f"s_add_u32 s{sT0}, s{sTWB}, {c*128}")
            a(f"s_mov_b64 exec, 0xffff")
            a.vmem(f"buffer_load_dword v{vDm}, v{vTW}, s[{sWSP}:{sWSP+3}], s{sT0} offen")
        a(f"s_mov_b64 exec, -1")
    NUP = int(os.environ.get('NUP', '2'))
    if not FUSED:
        for c_ in range(NUP): touch(c_)
    def wof_job():
        sWJ = 54
        lwj = a.newlabel("c_wj")
        a(f"s_cmp_ge_u32 s2, 192")
        a(f"s_cbranch_scc1 {lwj}")
        a(f"s_mul_i32 s{sT0}, s2, 2731")
        a(f"s_lshr_b32 s{sT0}, s{sT0}, 16")
        a(f"s_mul_i32 s{sT1}, s{sT0}, 24")
        a(f"s_sub_u32 s{sT1}, s2, s{sT1}")
        a(f"s_mul_i32 s{sT1}, s{sT1}, {32*1280}")
        a(f"s_mul_i32 s{sT0}, s{sT0}, 160")
        a(f"s_add_u32 s{sWJ}, s{sT0}, s{sT1}")
        for r in range(2):
            l2 = None
            if r == 1:
                l2 = a.newlabel("c_wj2")
                a(f"s_cmp_lg_u32 s{sW}, 0")
                a(f"s_cbranch_scc1 {l2}")
            if r == 0: a(f"v_mov_b32 v{t0}, v0")
            else: a(f"v_add_u32 v{t0}, 256, v{vL}")
            a(f"v_mul_u32_u24 v{t1}, 6554, v{t0}")
            a(f"v_lshrrev_b32 v{t1}, 16, v{t1}")
            a(f"v_mul_u32_u24 v{t2}, 10, v{t1}")
            a(f"v_sub_u32 v{t0}, v{t0}, v{t2}")
            a(f"v_lshlrev_b32 v{t0}, 4, v{t0}")
            a(f"v_mul_u32_u24 v{t1}, 1280, v{t1}")
            a(f"v_add_u32 v{t0}, v{t0}, v{t1}")
            if r == 0:
                a(f"s_lshl_b32 s{sT0}, s{sW}, 10")
                a(f"s_add_u32 m0, s{sT0}, {WJ}")
            else: a(f"s_mov_b32 m0, {WJ + 4096}")
            a(f"buffer_load_dwordx4 v{t0}, s[{sWO}:{sWO+3}], s{sWJ} offen lds")
            a.vm -= 1
            if l2: a.label(l2)
        a.label(lwj)
        for i_ in range(1, NCH): loads(i_)
    if FUSED: wof_job()
    Zr = V(4, 4)
    for e in range(4): a(f"v_mov_b32 v{Zr+e}, 0")
    a(f"v_mul_u32_u24 v{t0}, {CS_}, v0")
    if TOEP: a(f"v_add_u32 v{t0}, {TOEP}, v{t0}")
    a(f"v_cmp_gt_u32 vcc, 64, v0")
    a(f"s_and_saveexec_b64 s[50:51], vcc")
    lz = a.newlabel("c_z")
    a(f"s_cbranch_execz {lz}")
    a(f"v_subrev_u32 v{t1}, {32*16 - UB}, v{vT}")
    a(f"v_cmp_gt_u32 vcc, 8, v0")
    a(f"v_cndmask_b32 v{t1}, v{t1}, v{t0}, vcc")
    a(f"v_add_u32 v{t2}, -8, v0")
    a(f"v_cmp_lt_u32 vcc, 23, v{t2}")
    a(f"s_and_b64 exec, exec, vcc")
    a.ds(f"ds_write_b128 v{t1}, v[{Zr}:{Zr+3}]")
    a.label(lz)
    a(f"s_mov_b64 exec, s[50:51]")
    vTW_ = V()
    a(f"v_add_u32 v{vTW_}, {OZ*16 + TOEP}, v{vT}")
    vUW = V()
    a(f"v_add_u32 v{vUW}, {UB + UZ*16}, v{vT}")
    vA = V()
    a(f"v_and_b32 v{t0}, 7, v{vL}")
    a(f"v_mul_u32_u24 v{t0}, {CS_}, v{t0}")
    a(f"v_bfe_u32 v{t1}, v{vL}, 3, 1")
    a(f"v_lshrrev_b32 v{t2}, 4, v{vL}")
    a(f"v_sub_u32 v{t1}, v{t1}, v{t2}")
    a(f"v_add_u32 v{t1}, 3, v{t1}")
    a(f"v_lshl_add_u32 v{vA}, v{t1}, 4, v{t0}")
    if TOEP: a(f"v_add_u32 v{vA}, {TOEP}, v{vA}")
    vBq = V()
    a(f"v_and_b32 v{t0}, 15, v{vL}")
    a(f"v_lshl_add_u32 v{t0}, v{t0}, 1, v{t2}")
    a(f"v_lshlrev_b32 v{vBq}, 4, v{t0}")
    a(f"v_add_u32 v{vBq}, {UB}, v{vBq}")
    DM = V(4, 4)
    a(f"v_and_b32 v{t0}, 15, v{vL}")
    a(f"v_lshlrev_b32 v{t1}, 3, v{t2}")
    a(f"v_sub_u32 v{t1}, v{t1}, v{t0}")
    a(f"v_add_u32 v{t1}, -9, v{t1}")
    vK0, vK1 = V(), V()
    a(f"v_mov_b32 v{vK0}, 0xffff"); a(f"v_mov_b32 v{vK1}, 0xffff0000")
    for dw in range(4):
        a(f"v_cmp_eq_u32 vcc, {2*dw}, v{t1}")
        a(f"v_cndmask_b32 v{DM+dw}, 0, v{vK0}, vcc")
        a(f"v_cmp_eq_u32 vcc, {2*dw + 1}, v{t1}")
        a(f"v_cndmask_b32 v{DM+dw}, v{DM+dw}, v{vK1}, vcc")
    vPW = V()
    a(f"v_and_b32 v{t0}, 15, v{vL}")
    a(f"v_lshlrev_b32 v{t0}, 6, v{t0}")
    a(f"v_lshl_add_u32 v{t0}, v{t2}, 4, v{t0}")
    a(f"s_lshl_b32 s{sT0}, s{sW}, 13")
    a(f"s_add_u32 s{sT0}, s{sT0}, {PB}")
    a(f"v_add_u32 v{vPW}, s{sT0}, v{t0}")
    vPR = V()
    a(f"v_lshlrev_b32 v{vPR}, 5, v0")
    a(f"v_add_u32 v{vPR}, {PB}, v{vPR}")
    ACC = V(32, 4)
    AF = V(12, 4); BF = V(64, 4)
    EW = V(8, 4); TQ = V(4, 4); DG = V(4, 4)

    def mfma_block(w, tiles, touches):
        tq = list(touches)
        started = set()
        seq = []
        for r in range(2):
            q0 = 2*w + r
            dmin = 0
            ips = [ip for ip in range(8) if any(T >= ip for T in tiles)]
            seq += [(r, ip) for ip in ips]
        bid = {}
        def need_d(r): return sorted({T - ip for (rr, ip) in seq if rr == r for T in tiles if T >= ip})
        def read_b(r):
            q0 = 2*w + r
            for d in need_d(r):
                m = 8*d - q0
                bid[(r, d)] = a.ds(f"ds_read_b128 v[{BF+(r*8+d)*4}:{BF+(r*8+d)*4+3}], v{vBq} offset:{(4*m - 2 + UZ)*16}")
        aid = {}
        def read_a(n):
            r, ip = seq[n]
            q = 2*w + r + 8*ip
            aid[n] = a.ds(f"ds_read_b128 v[{AF+(n%3)*4}:{AF+(n%3)*4+3}], v{vA} offset:{64*q}")
        read_a(0); read_b(0); read_a(1)
        for n, (r, ip) in enumerate(seq):
            if n + 2 < len(seq): read_a(n + 2)
            if n == 2: read_b(1)
            last = max([aid[n]] + [bid[(r, T - ip)] for T in tiles if T >= ip])
            a.wait_lg(last)
            q0 = 2*w + r
            for T in sorted(tiles, reverse=True):
                if T < ip: continue
                c = f"v[{ACC+4*T}:{ACC+4*T+3}]" if T in started else "0"; started.add(T)
                a(f"v_mfma_f32_16x16x32_bf16 v[{ACC+4*T}:{ACC+4*T+3}], v[{AF+(n%3)*4}:{AF+(n%3)*4+3}], v[{BF+(r*8+T-ip)*4}:{BF+(r*8+T-ip)*4+3}], {c}")
            if q0 == 0 and ip == 0:
                for T in tiles:
                    a(f"v_mfma_f32_16x16x32_bf16 v[{ACC+4*T}:{ACC+4*T+3}], v[{DG}:{DG+3}], v[{BF+(r*8+T)*4}:{BF+(r*8+T)*4+3}], v[{ACC+4*T}:{ACC+4*T+3}]")
            if tq and n % 2 == 1: touch(tq.pop(0))
        for T in tiles:
            a.ds(f"ds_write_b128 v{vPW}, v[{ACC+4*T}:{ACC+4*T+3}] offset:{T*1024}")
    def finalize(i, tiles):
        regs = [BF, BF+8, BF+16, BF+24]
        full = len(tiles) == 8
        if not full:
            lab = a.newlabel("c_fm")
            a(f"s_mov_b64 exec, 0")
            for w in range(4):
                lo = 0xffffffff if 2*w in tiles else 0
                hi = 0xffffffff if 2*w + 1 in tiles else 0
                a(f"s_cmp_eq_u32 s{sW}, {w}")
                a(f"s_cselect_b32 exec_lo, {lo if lo == 0 else -1}, exec_lo")
                a(f"s_cselect_b32 exec_hi, {hi if hi == 0 else -1}, exec_hi")
            lskip = a.newlabel("c_fskip")
            a(f"s_cbranch_execz {lskip}")
        for k in range(4):
            a.ds(f"ds_read_b128 v[{regs[k]}:{regs[k]+3}], v{vPR} offset:{k*PT_}")
            a.ds(f"ds_read_b128 v[{regs[k]+4}:{regs[k]+7}], v{vPR} offset:{k*PT_ + 16}")
        a(f"s_lshl_b32 s{sT0}, s{sCHN[i]}, 12")
        a(f"s_add_u32 s{sT0}, s{sT0}, {WS_YT}")
        a("s_waitcnt lgkmcnt(0)")
        for e in range(0, 8, 2):
            a(f"v_pk_add_f32 {P(regs[0]+e)}, {P(regs[0]+e)}, {P(regs[1]+e)}")
            a(f"v_pk_add_f32 {P(regs[2]+e)}, {P(regs[2]+e)}, {P(regs[3]+e)}")
        for e in range(0, 8, 2):
            a(f"v_pk_add_f32 {P(regs[0]+e)}, {P(regs[0]+e)}, {P(regs[2]+e)}")
        for e in range(4):
            a(f"v_cvt_pk_bf16_f32 v{TQ+e}, v{regs[0]+2*e}, v{regs[0]+2*e+1}")
        a(f"buffer_store_dwordx4 v[{TQ}:{TQ+3}], v{vT}, s[{sWS}:{sWS+3}], s{sT0} offen" + (" sc1" if "ysc1" in K2X else ""))
        a.vm -= 1
        if not full:
            a.label(lskip)
            a(f"s_mov_b64 exec, -1")
        a("s_nop 1")

    def per_wave(variants):
        lend = a.newlabel("c_pw_end"); labs = [a.newlabel("c_pw") for _ in range(4)]
        lg0, vm0 = a.lg, a.vm
        lgmax, vmmin = lg0, None
        for w in range(4):
            if w < 3:
                a(f"s_cmp_lg_u32 s{sW}, {w}")
                a(f"s_cbranch_scc1 {labs[w]}")
            a.lg, a.vm = lg0, vm0
            variants[w]()
            lgmax = max(lgmax, a.lg); vmmin = a.vm if vmmin is None else min(vmmin, a.vm)
            if w < 3:
                a(f"s_branch {lend}")
                a.label(labs[w])
        a.label(lend)
        a.lg, a.vm = lgmax, vmmin

    for i in range(NCH):
        a.comment(f"------- channel slot {i}")
        a.wait_vm(ld[i])
        ST(f"c{i}_ld")
        d = HR + 8*i
        a(f"v_cmp_ne_u32 vcc, 0, v0")
        for e in range(4): a(f"v_cndmask_b32 v{d+e}, 0, v{d+e}, vcc")
        for e in range(7): a(f"v_alignbit_b32 v{EW+e}, v{d+e+1}, v{d+e}, 16")
        for c in range(8):
            st = c + 1
            if st % 2 == 0: src = d + st//2
            else: src = EW + (st-1)//2
            if (src % 2) != 0:
                for e in range(4): a(f"v_mov_b32 v{TQ+e}, v{src+e}")
                src = TQ
            a.ds(f"ds_write_b128 v{vTW_}, v[{src}:{src+3}] offset:{c*CS_}")
            if src == TQ: a("s_nop 1")
        if FUSED and i == 0:
            poll_all()
            load_u(0)
            for c_ in range(NUP): touch(c_)
            for i_ in range(1, NCH): load_u(i_)
            a.wait_vm(ld[0])
        a.ds(f"ds_write_b128 v{vUW}, v[{UR+4*i}:{UR+4*i+3}]")
        a(f"v_lshlrev_b32 v{t0}, 16, v{DR+i}")
        a(f"v_or_b32 v{t0}, v{t0}, v{DR+i}")
        for e in range(4): a(f"v_and_b32 v{DG+e}, v{DM+e}, v{t0}")
        if i == 0 and not FUSED: wof_job()
        csync()
        ST(f"c{i}_built")
        if i == 1:
            lw3 = a.newlabel("c_wj3")
            a(f"s_cmp_ge_u32 s2, 192")
            a(f"s_cbranch_scc1 {lw3}")
            a(f"v_lshrrev_b32 v{t0}, 4, v{vL}")
            a(f"v_and_b32 v{t2}, 15, v{vL}")
            a(f"v_lshrrev_b32 v{t1}, 2, v{t2}")
            a(f"v_lshl_add_u32 v{t0}, v{t0}, 2, v{t1}")
            a(f"v_mul_u32_u24 v{t0}, 160, v{t0}")
            a(f"v_and_b32 v{t1}, 3, v{t2}")
            a(f"v_lshl_add_u32 v{t0}, v{t1}, 3, v{t0}")
            a(f"v_lshlrev_b32 v{t2}, 4, v{vL}")
            for r in range(2):
                l2 = None
                if r == 1:
                    l2 = a.newlabel("c_wj4")
                    a(f"s_cmp_lg_u32 s{sW}, 0")
                    a(f"s_cbranch_scc1 {l2}")
                if r == 0: a(f"s_lshl_b32 s{sT0}, s{sW}, 5")
                else: a(f"s_mov_b32 s{sT0}, 128")
                a(f"s_add_u32 s{sT1}, s{sT0}, {WJ}")
                a(f"v_add_u32 v{t1}, s{sT1}, v{t0}")
                a(f"ds_read_b64_tr_b16 v[{TQ}:{TQ+1}], v{t1}")
                a(f"ds_read_b64_tr_b16 v[{TQ+2}:{TQ+3}], v{t1} offset:2560")
                a(f"s_mul_i32 s{sT1}, s2, 5120")
                a(f"s_lshl_b32 s{sT0}, s{sT0}, 5")
                a(f"s_add_u32 s{sT1}, s{sT1}, s{sT0}")
                a(f"s_add_u32 s{sT1}, s{sT1}, {WS_WOF}")
                a("s_waitcnt lgkmcnt(0)")
                a(f"buffer_store_dwordx4 v[{TQ}:{TQ+3}], v{t2}, s[{sWS}:{sWS+3}], s{sT1} offen" + (" sc1" if "ysc1" in K2X else ""))
                a("s_nop 1")
                a.vm -= 1; a.lg -= 2
                if l2: a.label(l2)
            a.label(lw3)
        tch = list(range(NUP, 8)) if i == 0 else []
        def do_channel(tiles):
            per_wave([(lambda w=w: mfma_block(w, tiles, tch)) for w in range(4)])
            if i < 2: ST(f"c{i}_mfma")
            if FULL and i == 1: a("s_waitcnt vmcnt(0)")
            csync()
            if FULL and i == 1:
                a(f"s_lshl_b32 s{sT0}, s2, 3")
                a(f"s_add_u32 s{sT0}, s{sT0}, {WS_F4}")
                a(f"v_mov_b32 v{FP}, s{sTAGF}"); a(f"v_mov_b32 v{FP+1}, s{sTAGF+1}")
                a(f"v_mov_b32 v{t0}, 0")
                a(f"s_cmp_eq_u32 s{sW}, 0")
                a(f"s_cselect_b64 exec, 1, 0")
                a(f"s_cmp_lt_u32 s2, 192")
                a(f"s_cselect_b64 exec, exec, 0")
                a(f"buffer_store_dwordx2 {P(FP)}, v{t0}, s[{sWS}:{sWS+3}], s{sT0} offen sc1")
                a.vm -= 1
                a(f"s_mov_b64 exec, -1")
            finalize(i, tiles)
        if i < 2:
            do_channel(list(range(8)))
        else:
            labB = a.newlabel("c_halfB"); labE = a.newlabel("c_halfE")
            a(f"s_bitcmp1_b32 s2, 0")
            a(f"s_cbranch_scc1 {labB}")
            lg0, vm0, c0_ = a.lg, a.vm, cst[0]
            do_channel([2, 6, 7])
            a(f"s_branch {labE}")
            a.label(labB); a.lg, a.vm, cst[0] = lg0, vm0, c0_
            do_channel([0, 1, 3, 4, 5])
            a.label(labE)
        ST(f"c{i}_done")
    ST.dump(sWS, sW, t0, t1, WS_DBG + 0x400000)

def gen_k2(name="k2_kernel", prof=False):
    a = Asm()
    a.raw(f".globl {name}\n.p2align 8\n.type {name},@function\n{name}:")
    a(f"s_cmp_ge_u32 s2, 512")
    a(f"s_cbranch_scc1 {name}_end")
    a(f"s_cmp_lt_u32 s2, 256")
    a(f"s_cbranch_scc1 {name}_conv" if "noconv" not in K2X else f"s_cbranch_scc1 {name}_end")
    ST = Stamps(a, enabled=prof); ST("g_start")
    V = Alloc(1, 256, "v")
    gen_gemm(a, V, ST, prof)
    a("s_endpgm")
    hi = V.hi
    a.label(f"{name}_conv")
    a.vm = 0; a.lg = 0
    ST2 = Stamps(a, enabled=prof); ST2("c_start")
    V2 = Alloc(1, 256, "v")
    gen_conv(a, V2, ST2, prof, name)
    a.label(f"{name}_end")
    a("s_endpgm")
    gen_k2.stamp_names = {"k2g": ST.names, "k2c": ST2.names}
    return a.finish(), max(hi, V2.hi)


def gen_k12(name="k12_kernel", prof=False):
    import k1, k3, k3f
    P8 = FULL and "p4" not in os.environ.get("K3X", "")
    a, hi1, sW1 = k1.gen_k1(name=name, prof=prof, fused=True)
    if P8: a("v_mov_b32 v253, v0")
    a(f"s_cmp_ge_u32 s{sW1}, 4")
    a(f"s_cbranch_scc1 {name}_conv")
    a.vm = 0; a.lg = 0
    ST = Stamps(a, enabled=prof); ST("g_start")
    V = Alloc(1, 253, "v")
    gen_gemm(a, V, ST, prof)
    hi3 = 0
    def publish_f2(srd, sWv):
        a(f"s_lshl_b32 s40, s2, 3")
        a(f"s_add_u32 s40, s40, {WS_F2}")
        a(f"v_mov_b32 v2, s{sTAGF}"); a(f"v_mov_b32 v3, s{sTAGF+1}")
        a(f"v_mov_b32 v1, 0")
        a(f"s_cmp_eq_u32 s{sWv}, 0")
        a(f"s_cselect_b64 exec, 1, 0")
        a(f"buffer_store_dwordx2 v[2:3], v1, s[{srd}:{srd+3}], s40 offen sc1")
        a(f"s_mov_b64 exec, -1")
    if FULL:
        a("s_waitcnt vmcnt(0) lgkmcnt(0)")
        a("s_barrier")
        publish_f2(8, 34)
        a.vm = 0; a.lg = 0
        if P8: a(f"s_branch {name}_p3")
        else: hi3 = k3.gen_k3(prof=prof, fa=a)
    if not P8: a("s_endpgm")
    hi = V.hi
    a.label(f"{name}_conv")
    a.vm = 0; a.lg = 0
    ST2 = Stamps(a, enabled=prof); ST2("c_start")
    V2 = Alloc(1, 253, "v")
    gen_conv(a, V2, ST2, prof, name)
    if FULL:
        a("s_waitcnt vmcnt(0) lgkmcnt(0)")
        a("s_barrier")
    if P8:
        a.label(f"{name}_p3")
        a.vm = 0; a.lg = 0
        hi3 = k3f.gen_phase3(a, prof, poll_flags_n, poll_all_flags, sTAGF)
    a.label(f"{name}_end")
    a("s_endpgm")
    gen_k12.stamp_names = {"k1": k1.gen_k1.stamp_names, "k2g": ST.names, "k2c": ST2.names}
    if FULL: gen_k12.stamp_names["k3"] = k3f.gen_phase3.stamp_names if P8 else k3.gen_k3.stamp_names
    return a.finish(), max(hi1, hi, V2.hi, hi3, 254 if P8 else 0)
```

```python
from dsl import *
from layout import *
from k1 import f32, Filler, run, mask, P, Z1L, SYNC
sTAGF = 100

def gsync(a, which, state, t0, t1):
    state[0] += 1
    a("s_waitcnt lgkmcnt(0)")
    a(f"v_mov_b32 v{t0}, {SYNC + 4*which}")
    a(f"v_mov_b32 v{t1}, 1")
    a("s_mov_b64 exec, 1")
    a(f"ds_add_u32 v{t0}, v{t1}")
    a("s_mov_b64 exec, -1")
    lp = a.newlabel("gsync"); le = a.newlabel("gsync_e")
    a("s_mov_b32 s67, 0")
    a.label(lp)
    a(f"ds_read_b32 v{t1}, v{t0}")
    a("s_add_u32 s67, s67, 1")
    a("s_waitcnt lgkmcnt(0)")
    a(f"v_readfirstlane_b32 s66, v{t1}")
    a("s_cmp_gt_u32 s67, 1000000")
    a(f"s_cbranch_scc1 {le}")
    a(f"s_cmp_lt_u32 s66, {4*state[0]}")
    a(f"s_cbranch_scc1 {lp}")
    a.label(le)
    a.lg -= 2

def poll_all_flags(a, sWS, F, t0, base=None):
    lp = a.newlabel("fpoll"); le = a.newlabel("fpoll_e")
    a(f"v_mbcnt_lo_u32_b32 v{t0}, -1, 0")
    a(f"v_mbcnt_hi_u32_b32 v{t0}, -1, v{t0}")
    a(f"v_lshlrev_b32 v{t0}, 4, v{t0}")
    a(f"s_mov_b32 s66, {WS_F1 if base is None else base}")
    a("s_mov_b32 s67, 0")
    a.label(lp)
    a(f"buffer_load_dwordx4 v[{F}:{F+3}], v{t0}, s[{sWS}:{sWS+3}], s66 offen sc1")
    a(f"buffer_load_dwordx4 v[{F+4}:{F+7}], v{t0}, s[{sWS}:{sWS+3}], s66 offen offset:1024 sc1")
    a.vm -= 2
    a("s_add_u32 s67, s67, 1")
    a("s_waitcnt vmcnt(0)")
    a(f"v_cmp_ne_u32 vcc, s{sTAGF}, v{F}")
    for k in range(1, 8):
        a(f"v_cmp_ne_u32 s[64:65], s{sTAGF + (k & 1)}, v{F+k}")
        a("s_or_b64 vcc, vcc, s[64:65]")
    a("s_cmp_gt_u32 s67, 100000")
    a(f"s_cbranch_scc1 {le}")
    a("s_cmp_eq_u64 vcc, 0")
    a(f"s_cbranch_scc1 {le}")
    a("s_sleep 2")
    a(f"s_branch {lp}")
    a.label(le)

def poll_flags_n(a, sWS, sOff, n, F, t0):
    lp = a.newlabel("fpoll"); le = a.newlabel("fpoll_e")
    a(f"v_mbcnt_lo_u32_b32 v{t0}, -1, 0")
    a(f"v_mbcnt_hi_u32_b32 v{t0}, -1, v{t0}")
    a(f"v_min_u32 v{t0}, {n-1}, v{t0}")
    a(f"v_lshlrev_b32 v{t0}, 3, v{t0}")
    a("s_mov_b32 s67, 0")
    a.label(lp)
    a(f"buffer_load_dwordx2 {P(F)}, v{t0}, s[{sWS}:{sWS+3}], s{sOff} offen sc1")
    a.vm -= 1
    a("s_add_u32 s67, s67, 1")
    a("s_waitcnt vmcnt(0)")
    a(f"v_cmp_ne_u32 vcc, s{sTAGF}, v{F}")
    a(f"v_cmp_ne_u32 s[64:65], s{sTAGF+1}, v{F+1}")
    a("s_or_b64 vcc, vcc, s[64:65]")
    a("s_cmp_gt_u32 s67, 100000")
    a(f"s_cbranch_scc1 {le}")
    a("s_cmp_eq_u64 vcc, 0")
    a(f"s_cbranch_scc1 {le}")
    a("s_sleep 2")
    a(f"s_branch {lp}")
    a.label(le)

def poll_flags(a, sWS, sOff, F, t0):
    lp = a.newlabel("fpoll"); le = a.newlabel("fpoll_e")
    a(f"v_mbcnt_lo_u32_b32 v{t0}, -1, 0")
    a(f"v_mbcnt_hi_u32_b32 v{t0}, -1, v{t0}")
    a(f"v_and_b32 v{t0}, 31, v{t0}")
    a(f"v_lshlrev_b32 v{t0}, 3, v{t0}")
    a("s_mov_b32 s67, 0")
    a.label(lp)
    a(f"buffer_load_dwordx2 {P(F)}, v{t0}, s[{sWS}:{sWS+3}], s{sOff} offen sc1")
    a.vm -= 1
    a("s_add_u32 s67, s67, 1")
    a("s_waitcnt vmcnt(0)")
    a(f"v_cmp_ne_u32 vcc, s{sTAGF}, v{F}")
    a(f"v_cmp_ne_u32 s[64:65], s{sTAGF+1}, v{F+1}")
    a("s_or_b64 vcc, vcc, s[64:65]")
    a("s_cmp_gt_u32 s67, 100000")
    a(f"s_cbranch_scc1 {le}")
    a("s_cmp_eq_u64 vcc, 0")
    a(f"s_cbranch_scc1 {le}")
    a("s_sleep 2")
    a(f"s_branch {lp}")
    a.label(le)
import os
K2X = os.environ.get('K2X', '')

ZDEPTH = int(os.environ.get('ZD', '4'))
FUSED = bool(os.environ.get('FUSED'))
FULL = os.environ.get('FUSED') == '2'
CB = 86016 if FUSED else 0
CS_ = 4160
TOEP = CB
OZ = 1
UZ = 32
UB = TOEP + 8 * CS_
PB = UB + 4608
PT_ = 8192
WJ = PB + 4*PT_
assert WJ + 5120 <= (161792 if FUSED else 81920)

def gen_gemm(a, V, ST, prof):
    sWSP, sWS, sBSP = 4, 8, 12
    sRB, sJ, sW = 32, 33, 34
    sT0, sT1, sT2, sT3 = 40, 41, 42, 43
    sZ, sWB, sLB = 44, 45, 46
    a(f"s_load_dwordx2 s[{sWSP}:{sWSP+1}], s[0:1], {KA['wsp']}")
    a(f"s_load_dwordx2 s[{sWS}:{sWS+1}], s[0:1], {KA['ws']}")
    a(f"s_load_dwordx2 s[{sBSP}:{sBSP+1}], s[0:1], {KA['bsp']}")
    vL = V(); t0, t1, t2 = V(), V(), V()
    a(f"v_lshrrev_b32 v{t0}, 6, v0")
    a(f"v_and_b32 v{vL}, 63, v0")
    a(f"v_readfirstlane_b32 s{sW}, v{t0}")
    for srd, size in ((sWSP, SZ_WSP), (sWS, WS_SIZE_DBG if prof else WS_END), (sBSP, 4096)):
        a(f"s_mov_b32 s{srd+2}, {size}")
        a(f"s_mov_b32 s{srd+3}, {SRD3:#x}")
    a(f"s_and_b32 s{sT0}, s2, 7")
    a(f"s_lshr_b32 s{sT1}, s2, 3")
    a(f"s_and_b32 s{sT1}, s{sT1}, 31")
    a(f"s_lshr_b32 s{sRB}, s{sT0}, 1")
    a(f"s_lshl_b32 s{sRB}, s{sRB}, 3")
    a(f"s_and_b32 s{sT2}, s{sT1}, 7")
    a(f"s_add_u32 s{sRB}, s{sRB}, s{sT2}")
    a(f"s_and_b32 s{sJ}, s{sT0}, 1")
    a(f"s_lshl_b32 s{sJ}, s{sJ}, 2")
    a(f"s_lshr_b32 s{sT2}, s{sT1}, 3")
    a(f"s_add_u32 s{sJ}, s{sJ}, s{sT2}")
    a(f"s_lshl_b32 s{sZ}, s{sJ}, 7")
    a(f"s_lshl_b32 s{sT0}, s{sW}, 5")
    a(f"s_add_u32 s{sZ}, s{sZ}, s{sT0}")
    a(f"s_mul_i32 s{sZ}, s{sZ}, 3072")
    a(f"s_add_u32 s{sZ}, s{sZ}, {WS_Z2F}")
    a(f"s_lshl_b32 s{sWB}, s{sRB}, 18")
    a(f"s_lshl_b32 s{sT0}, s{sW}, 10")
    a(f"s_add_u32 s{sWB}, s{sWB}, s{sT0}")
    a(f"s_lshl_b32 s{sLB}, s{sW}, 14")
    vZ = V()
    a(f"v_lshlrev_b32 v{vZ}, 4, v{vL}")
    vWE, vWO = V(), V()
    a(f"v_lshrrev_b32 v{t0}, 3, v{vL}")
    a(f"v_lshlrev_b32 v{t0}, 12, v{t0}")
    a(f"v_and_b32 v{t1}, 7, v{vL}")
    a(f"v_lshrrev_b32 v{t2}, 4, v{vL}")
    a(f"v_xor_b32 v{t1}, v{t1}, v{t2}")
    a(f"v_lshl_add_u32 v{vWE}, v{t1}, 4, v{t0}")
    a(f"v_xor_b32 v{vWO}, 64, v{vWE}")
    sROT = 50
    if "rot" in K2X:
        a(f"s_and_b32 s{sROT}, s{sJ}, 3")
        a(f"s_lshl_b32 s{sROT}, s{sROT}, 1")
        a(f"s_add_u32 s{sROT}, s{sROT}, s{sRB}")
        a(f"s_and_b32 s{sROT}, s{sROT}, 7")
    else: a(f"s_mov_b32 s{sROT}, 0")
    def chunk(c, dst):
        a(f"s_add_u32 s{dst}, s{sROT}, {c}")
        a(f"s_and_b32 s{dst}, s{dst}, 7")
    ACC = V(96, 4)
    def acc(ft, tt): return ACC + (ft*2 + tt)*16
    ZF = V((ZDEPTH+1)*12, 4)
    def zf(ks, ft): return ZF + ((ks % (ZDEPTH+1))*3 + ft)*4
    WFr = V(16, 4)
    def wfr(b, tt): return WFr + (b*2 + tt)*4
    z_id = {}; w_id = {}
    sZc = [52, 53]; sWc = [54, 55]
    def z_base(c):
        chunk(c, sZc[c & 1])
        a(f"s_mul_i32 s{sZc[c & 1]}, s{sZc[c & 1]}, 12288")
        a(f"s_add_u32 s{sZc[c & 1]}, s{sZc[c & 1]}, s{sZ}")
    def w_base(c):
        chunk(c, sWc[c & 1])
        a(f"s_lshl_b32 s{sWc[c & 1]}, s{sWc[c & 1]}, 7")
        a(f"s_add_u32 s{sWc[c & 1]}, s{sWc[c & 1]}, s{sWB}")
    def load_z_g(ks):
        c = ks // 4
        if ks % 4 == 0: z_base(c)
        for ft in range(3):
            so = sZc[c & 1]
            if ks % 4:
                a(f"s_add_u32 s{sT1}, s{sZc[c & 1]}, {(ks%4)*3072}"); so = sT1
            z_id[(ks, ft)] = a.vmem(f"buffer_load_dwordx4 v[{zf(ks,ft)}:{zf(ks,ft)+3}], v{vZ}, s[{sWS}:{sWS+3}], s{so} offen offset:{ft*1024}" + (" sc1" if FUSED else ""))
            yield
    def dma_w_g(c, lo, hi):
        sl = c & 1
        if lo == 0: w_base(c)
        for i in range(lo, hi):
            a(f"s_add_u32 s{sT2}, s{sWc[c & 1]}, {i*8*4096}")
            a(f"s_add_u32 m0, s{sLB}, {sl*8192 + i*1024}")
            w_id[c] = a.vmem(f"buffer_load_dwordx4 v{vWE if i % 2 == 0 else vWO}, s[{sWSP}:{sWSP+3}], s{sT2} offen lds")
            yield
    a("s_waitcnt lgkmcnt(0)")
    ST("g_kernarg")
    if FUSED:
        run(dma_w_g(0, 0, 8))
        a(f"s_lshl_b32 s{sT3}, s{sJ}, 8")
        a(f"s_add_u32 s{sT3}, s{sT3}, {WS_F1}")
        poll_flags(a, sWS, sT3, ZF, t0)
        ST("g_flags")
        for ks in range(ZDEPTH): run(load_z_g(ks))
    else:
        run(load_z_g(0)); run(dma_w_g(0, 0, 8))
        for ks in range(1, ZDEPTH): run(load_z_g(ks))
    vWA = [V() for _ in range(4)]
    a(f"v_and_b32 v{t0}, 31, v{vL}")
    a(f"v_lshrrev_b32 v{t1}, 1, v{t0}")
    a(f"v_and_b32 v{t1}, 7, v{t1}")
    a(f"v_lshrrev_b32 v{t2}, 5, v{vL}")
    a(f"v_xor_b32 v{t1}, v{t1}, v{t2}")
    a(f"v_lshl_add_u32 v{t0}, v{t0}, 7, s{sLB}")
    for kk in range(4):
        a(f"v_xor_b32 v{t2}, {2*kk}, v{t1}")
        a(f"v_lshl_add_u32 v{vWA[kk]}, v{t2}, 4, v{t0}")
    Z1 = V(12, 4); vB = V()
    ep = {}
    def epi_loads():
        a(f"s_lshl_b32 s{sT0}, s{sRB}, 3")
        a(f"s_add_u32 s{sT0}, s{sT0}, s{sJ}")
        a(f"s_lshl_b32 s{sT0}, s{sT0}, 2")
        a(f"s_add_u32 s{sT0}, s{sT0}, s{sW}")
        a(f"s_mul_i32 s{sT0}, s{sT0}, 3072")
        a(f"s_add_u32 s{sT0}, s{sT0}, {WS_Z1F}")
        for ft in range(3):
            if FUSED:
                if ft == 0:
                    a(f"s_mul_i32 s{sT0}, s{sW}, 3072")
                    a(f"s_add_u32 s{sT0}, s{sT0}, {Z1L}")
                    a(f"v_add_u32 v{t1}, s{sT0}, v{vZ}")
                a.ds(f"ds_read_b128 v[{Z1+4*ft}:{Z1+4*ft+3}], v{t1} offset:{ft*1024}")
            else:
                a.vmem(f"buffer_load_dwordx4 v[{Z1+4*ft}:{Z1+4*ft+3}], v{vZ}, s[{sWS}:{sWS+3}], s{sT0} offen offset:{ft*1024}")
            yield
        a(f"v_and_b32 v{t0}, 31, v{vL}")
        a(f"v_lshlrev_b32 v{t0}, 1, v{t0}")
        a(f"s_lshr_b32 s{sT0}, s{sW}, 1")
        a(f"s_lshl_b32 s{sT0}, s{sT0}, 6")
        a(f"s_lshl_b32 s{sT3}, s{sRB}, 7")
        a(f"s_add_u32 s{sT0}, s{sT0}, s{sT3}")
        ep['b'] = a.vmem(f"buffer_load_ushort v{vB}, v{t0}, s[{sBSP}:{sBSP+3}], s{sT0} offen")
        yield
    def read_w(ks):
        c = ks // 4; kk = ks % 4; b = ks & 1
        ids = []
        for tt in range(2):
            ids.append(a.ds(f"ds_read_b128 v[{wfr(b,tt)}:{wfr(b,tt)+3}], v{vWA[kk]} offset:{(c&1)*8192 + tt*4096}"))
        return ids[-1]
    a.wait_vm(w_id[0])
    ST("g_w0")
    if "noprio" not in K2X: a("s_setprio 2")
    rd = {0: read_w(0)}
    for ks in range(32):
        c = ks // 4
        if ks % 4 == 0 and "cst" in K2X: ST(f"c{c}")
        if ks == int(os.environ.get("PSW", "99")): a("s_setprio 0")
        a.wait_vm(z_id[(ks, 2)])
        a.wait_lg(rd[ks])
        fl = Filler()
        def rdw(k=ks):
            if (k + 1) % 4 == 0: a.wait_vm(w_id[(k + 1)//4])
            rd[k + 1] = read_w(k + 1)
            yield
        if ks + 1 < 32: fl.add(rdw())
        if ks + ZDEPTH < 32: fl.add(load_z_g(ks + ZDEPTH))
        if ks == 0: fl.add(dma_w_g(1, 0, 4))
        if ks == 1: fl.add(dma_w_g(1, 4, 8))
        for n in range(2, 8):
            if ks == 4*(n-1) - 1: fl.add(dma_w_g(n, 0, 2))
            if ks == 4*(n-1): fl.add(dma_w_g(n, 2, 5))
            if ks == 4*(n-1) + 1: fl.add(dma_w_g(n, 5, 8))
        if ks == 30: fl.add(epi_loads())
        b = ks & 1
        for ft in range(3):
            for tt in range(2):
                cc = "0" if ks == 0 else f"v[{acc(ft,tt)}:{acc(ft,tt)+15}]"
                if not ("nomfma" in K2X and ks > 0):
                    a(f"v_mfma_f32_32x32x16_bf16 v[{acc(ft,tt)}:{acc(ft,tt)+15}], v[{zf(ks,ft)}:{zf(ks,ft)+3}], v[{wfr(b,tt)}:{wfr(b,tt)+3}], {cc}")
                fl.step(1)
        fl.drain()
    ST("g_loop")
    a("s_setprio 0")
    OWN = ZF
    lend = a.newlabel("g_epi_end")
    labs = [a.newlabel("g_epi") for _ in range(4)]
    a(f"v_add_u32 v{t2}, 0x10000, v{vZ}")
    a("s_nop 15")
    gst = [0]
    gen_gemm.gst = gst
    if FUSED: gsync(a, 0, gst, t0, t1)
    else: a("s_barrier")
    lg0 = a.lg
    for w in range(4):
        if w < 3:
            a(f"s_cmp_lg_u32 s{sW}, {w}")
            a(f"s_cbranch_scc1 {labs[w]}")
        a.lg = lg0
        for d in range(4):
            if d == w: continue
            tt = d >> 1; g0 = d & 1
            k = (w - d - 1) & 3
            for ft in range(3):
                for gh in range(2):
                    r = acc(ft, tt) + 4*(g0 + 2*gh)
                    off = d*18432 + k*6144 + (ft*2+gh)*1024
                    if off >= 65536: a.ds(f"ds_write_b128 v{t2}, v[{r}:{r+3}] offset:{off - 65536}")
                    else: a.ds(f"ds_write_b128 v{vZ}, v[{r}:{r+3}] offset:{off}")
        tt = w >> 1; g0 = w & 1
        for ft in range(3):
            for gh in range(2):
                r = acc(ft, tt) + 4*(g0 + 2*gh)
                for e in range(0, 4, 2):
                    a(f"v_pk_add_f32 {P(OWN + (ft*2+gh)*4 + e)}, {P(r+e)}, 0")
        if w < 3:
            a(f"s_branch {lend}")
            a.label(labs[w])
    a.label(lend)
    return_epi = True
    a("s_waitcnt lgkmcnt(0)")
    if FUSED: gsync(a, 0, gst, t0, t1)
    else: a("s_barrier")
    PT = ACC
    a(f"s_mul_i32 s{sT0}, s{sW}, 18432")
    a(f"v_add_u32 v{t0}, s{sT0}, v{vZ}")
    for k in range(3):
        for q in range(6):
            a.ds(f"ds_read_b128 v[{PT + (k*6+q)*4}:{PT + (k*6+q)*4 + 3}], v{t0} offset:{k*6144 + q*1024}")
    vSt = vWE
    a(f"v_lshrrev_b32 v{vSt}, 4, v{vL}")
    a(f"v_and_b32 v{vSt}, 1, v{vSt}")
    a(f"v_mul_u32_u24 v{vSt}, {24*1024}, v{vSt}")
    a(f"v_and_b32 v{t1}, 15, v{vL}")
    a(f"v_lshrrev_b32 v{t2}, 5, v{vL}")
    a(f"v_lshl_add_u32 v{t1}, v{t2}, 4, v{t1}")
    a(f"v_lshl_add_u32 v{vSt}, v{t1}, 4, v{vSt}")
    a(f"s_mul_i32 s{sT0}, s{sRB}, {4*24*1024}")
    a(f"s_lshr_b32 s{sT1}, s{sW}, 1")
    a(f"s_mul_i32 s{sT1}, s{sT1}, {2*24*1024}")
    a(f"s_add_u32 s{sT0}, s{sT0}, s{sT1}")
    a(f"s_mul_i32 s{sT1}, s{sJ}, 3072")
    a(f"s_add_u32 s{sT0}, s{sT0}, s{sT1}")
    a(f"s_and_b32 s{sT1}, s{sW}, 1")
    a(f"s_lshl_b32 s{sT1}, s{sT1}, 9")
    a(f"s_add_u32 s{sT0}, s{sT0}, s{sT1}")
    a(f"s_add_u32 s{sT0}, s{sT0}, {WS_PF}")
    a.wait_vm(ep['b'])
    vB2 = vWA[0] if vWA[0] % 2 == 0 else vWA[1]
    a(f"v_lshlrev_b32 v{vB2}, 16, v{vB}")
    ZU = PT + 72
    for i in range(12):
        a(f"v_lshlrev_b32 v{ZU+2*i}, 16, v{Z1+i}")
        a(f"v_and_b32 v{ZU+2*i+1}, 0xffff0000, v{Z1+i}")
    for k in range(3):
        a(f"s_waitcnt lgkmcnt({min(15, 12 - 6*k)})")
        for i in range(0, 24, 2):
            a(f"v_pk_add_f32 {P(OWN+i)}, {P(OWN+i)}, {P(PT+k*24+i)}")
    for i in range(0, 24, 2):
        a(f"v_pk_add_f32 {P(OWN+i)}, {P(OWN+i)}, {P(vB2)} op_sel_hi:[1,0]")
    for i in range(0, 24, 2):
        a(f"v_pk_mul_f32 {P(OWN+i)}, {P(OWN+i)}, {P(ZU+i)}")
    OUT = PT
    for ft in range(3):
        for i in range(4):
            a(f"v_cvt_pk_bf16_f32 v{OUT+4*ft+i}, v{OWN+8*ft+2*i}, v{OWN+8*ft+2*i+1}")
        a.vmem(f"buffer_store_dwordx4 v[{OUT+4*ft}:{OUT+4*ft+3}], v{vSt}, s[{sWS}:{sWS+3}], s{sT0} offen offset:{ft*1024}" + (" sc1" if "psc1" in K2X else ""))
    ST("g_end")
    ST.dump(sWS, sW, t0, t1, WS_DBG + 0x200000)

def gen_conv(a, V, ST, prof, name):
    sSSM, sWS, sDv, sWSP, sWO = 4, 8, 12, 16, 20
    sC, sW, sCH = 32, 34, 35
    sT0, sT1, sT2, sT3 = 40, 41, 42, 43
    a(f"s_load_dwordx2 s[{sSSM}:{sSSM+1}], s[0:1], {KA['ssmk']}")
    a(f"s_load_dwordx2 s[{sWS}:{sWS+1}], s[0:1], {KA['ws']}")
    a(f"s_load_dwordx2 s[{sDv}:{sDv+1}], s[0:1], {KA['ssmD']}")
    a(f"s_load_dwordx2 s[{sWSP}:{sWSP+1}], s[0:1], {KA['wsp']}")
    a(f"s_load_dwordx2 s[{sWO}:{sWO+1}], s[0:1], {KA['wout']}")
    vL = V(); vT = V(); t0, t1, t2 = V(), V(), V()
    if FUSED: a(f"v_subrev_u32 v0, 256, v0")
    if os.environ.get("CPRIO"): a(f"s_setprio {os.environ['CPRIO']}")
    cst = [0]
    def csync():
        if FUSED: gsync(a, 1, cst, t0, t1)
        else:
            a("s_waitcnt lgkmcnt(0)")
            a("s_barrier")
    a(f"v_lshrrev_b32 v{t0}, 6, v0")
    a(f"v_and_b32 v{vL}, 63, v0")
    a(f"v_readfirstlane_b32 s{sW}, v{t0}")
    for srd, size in ((sSSM, SZ_SSMK), (sWS, WS_SIZE_DBG if prof else WS_END), (sDv, 1280), (sWSP, SZ_WSP), (sWO, SZ_WOUT)):
        a(f"s_mov_b32 s{srd+2}, {size}")
        a(f"s_mov_b32 s{srd+3}, {SRD3:#x}")
    a(f"s_mov_b32 s{sC}, s2")
    a(f"v_lshlrev_b32 v{vT}, 4, v0")
    NCH = 3
    HR = V(8*NCH, 4); UR = V(4*NCH, 4); DR = V(NCH)
    vTm = V()
    FP = V(8, 4)
    a(f"v_subrev_u32 v{vTm}, 16, v{vT}")
    sCHN = [56, 57, 58]
    a(f"s_mov_b32 s{sCHN[0]}, s2")
    a(f"s_add_u32 s{sCHN[1]}, s2, 256")
    a(f"s_lshr_b32 s{sCHN[2]}, s2, 1")
    a(f"s_add_u32 s{sCHN[2]}, s{sCHN[2]}, 512")
    ld = {}
    def loads(i):
        a(f"s_lshl_b32 s{sT0}, s{sCHN[i]}, 12")
        a.vmem(f"buffer_load_dwordx4 v[{HR+8*i+4}:{HR+8*i+7}], v{vT}, s[{sSSM}:{sSSM+3}], s{sT0} offen")
        a.vmem(f"buffer_load_dwordx4 v[{HR+8*i}:{HR+8*i+3}], v{vTm}, s[{sSSM}:{sSSM+3}], s{sT0} offen")
        a(f"s_lshl_b32 s{sT1}, s{sCHN[i]}, 1")
        a(f"v_mov_b32 v{t0}, 0")
        a.vmem(f"buffer_load_ushort v{DR+i}, v{t0}, s[{sDv}:{sDv+3}], s{sT1} offen")
        if FUSED:
            ld[i] = a.vm - 1
            return
        load_u(i)
    def load_u(i):
        a(f"s_lshl_b32 s{sT0}, s{sCHN[i]}, 12")
        a(f"s_add_u32 s{sT0}, s{sT0}, {WS_KVT}")
        ld[i] = a.vmem(f"buffer_load_dwordx4 v[{UR+4*i}:{UR+4*i+3}], v{vT}, s[{sWS}:{sWS+3}], s{sT0} offen" + (" sc1" if FUSED else ""))
    def poll_all():
        poll_all_flags(a, sWS, FP, t0)
    a("s_waitcnt lgkmcnt(0)")
    ST("c_kernarg")
    loads(0)
    vTW, vTZ, vDm = V(), V(), V()
    sU, sTWB, sTZB = 47, 52, 53
    a(f"s_lshr_b32 s{sU}, s2, 3")
    a(f"s_lshl_b32 s{sU}, s{sU}, 2")
    a(f"s_add_u32 s{sU}, s{sU}, s{sW}")
    a(f"s_mul_i32 s{sT0}, s{sU}, 12")
    a(f"v_add_u32 v{t0}, s{sT0}, v{vL}")
    a(f"v_mul_u32_u24 v{t1}, 43691, v{t0}")
    a(f"v_lshrrev_b32 v{t1}, 22, v{t1}")
    a(f"v_mul_u32_u24 v{t2}, 96, v{t1}")
    a(f"v_sub_u32 v{t0}, v{t0}, v{t2}")
    a(f"v_mul_u32_u24 v{t1}, 98304, v{t1}")
    a(f"v_lshl_add_u32 v{vTZ}, v{t0}, 7, v{t1}")
    a(f"s_and_b32 s{sT0}, s2, 7")
    a(f"s_lshr_b32 s{sTWB}, s{sT0}, 1")
    a(f"s_lshl_b32 s{sTWB}, s{sTWB}, 21")
    a(f"s_and_b32 s{sTZB}, s{sT0}, 1")
    a(f"s_mul_i32 s{sTZB}, s{sTZB}, {4*393216}")
    a(f"s_add_u32 s{sTZB}, s{sTZB}, {WS_Z2F}")
    a(f"s_lshl_b32 s{sT0}, s{sU}, 4")
    a(f"v_add_u32 v{t0}, s{sT0}, v{vL}")
    a(f"v_lshrrev_b32 v{t1}, 2, v{t0}")
    a(f"v_lshlrev_b32 v{t1}, 12, v{t1}")
    a(f"v_and_b32 v{t0}, 3, v{t0}")
    a(f"v_lshl_add_u32 v{vTW}, v{t0}, 10, v{t1}")
    def touch(c, w=True):
        if "notouch" in K2X: return
        a(f"s_add_u32 s{sT0}, s{sTZB}, {c*12288}")
        a(f"s_mov_b64 exec, 0xfff")
        a.vmem(f"buffer_load_dword v{vDm}, v{vTZ}, s[{sWS}:{sWS+3}], s{sT0} offen" + (" sc1" if FUSED else ""))
        if w and "notw" not in K2X:
            a(f"s_add_u32 s{sT0}, s{sTWB}, {c*128}")
            a(f"s_mov_b64 exec, 0xffff")
            a.vmem(f"buffer_load_dword v{vDm}, v{vTW}, s[{sWSP}:{sWSP+3}], s{sT0} offen")
        a(f"s_mov_b64 exec, -1")
    NUP = int(os.environ.get('NUP', '2'))
    if not FUSED:
        for c_ in range(NUP): touch(c_)
    def wof_job():
        sWJ = 54
        lwj = a.newlabel("c_wj")
        a(f"s_cmp_ge_u32 s2, 192")
        a(f"s_cbranch_scc1 {lwj}")
        a(f"s_mul_i32 s{sT0}, s2, 2731")
        a(f"s_lshr_b32 s{sT0}, s{sT0}, 16")
        a(f"s_mul_i32 s{sT1}, s{sT0}, 24")
        a(f"s_sub_u32 s{sT1}, s2, s{sT1}")
        a(f"s_mul_i32 s{sT1}, s{sT1}, {32*1280}")
        a(f"s_mul_i32 s{sT0}, s{sT0}, 160")
        a(f"s_add_u32 s{sWJ}, s{sT0}, s{sT1}")
        for r in range(2):
            l2 = None
            if r == 1:
                l2 = a.newlabel("c_wj2")
                a(f"s_cmp_lg_u32 s{sW}, 0")
                a(f"s_cbranch_scc1 {l2}")
            if r == 0: a(f"v_mov_b32 v{t0}, v0")
            else: a(f"v_add_u32 v{t0}, 256, v{vL}")
            a(f"v_mul_u32_u24 v{t1}, 6554, v{t0}")
            a(f"v_lshrrev_b32 v{t1}, 16, v{t1}")
            a(f"v_mul_u32_u24 v{t2}, 10, v{t1}")
            a(f"v_sub_u32 v{t0}, v{t0}, v{t2}")
            a(f"v_lshlrev_b32 v{t0}, 4, v{t0}")
            a(f"v_mul_u32_u24 v{t1}, 1280, v{t1}")
            a(f"v_add_u32 v{t0}, v{t0}, v{t1}")
            if r == 0:
                a(f"s_lshl_b32 s{sT0}, s{sW}, 10")
                a(f"s_add_u32 m0, s{sT0}, {WJ}")
            else: a(f"s_mov_b32 m0, {WJ + 4096}")
            a(f"buffer_load_dwordx4 v{t0}, s[{sWO}:{sWO+3}], s{sWJ} offen lds")
            a.vm -= 1
            if l2: a.label(l2)
        a.label(lwj)
        for i_ in range(1, NCH): loads(i_)
    if FUSED: wof_job()
    Zr = V(4, 4)
    for e in range(4): a(f"v_mov_b32 v{Zr+e}, 0")
    a(f"v_mul_u32_u24 v{t0}, {CS_}, v0")
    if TOEP: a(f"v_add_u32 v{t0}, {TOEP}, v{t0}")
    a(f"v_cmp_gt_u32 vcc, 64, v0")
    a(f"s_and_saveexec_b64 s[50:51], vcc")
    lz = a.newlabel("c_z")
    a(f"s_cbranch_execz {lz}")
    a(f"v_subrev_u32 v{t1}, {32*16 - UB}, v{vT}")
    a(f"v_cmp_gt_u32 vcc, 8, v0")
    a(f"v_cndmask_b32 v{t1}, v{t1}, v{t0}, vcc")
    a(f"v_add_u32 v{t2}, -8, v0")
    a(f"v_cmp_lt_u32 vcc, 23, v{t2}")
    a(f"s_and_b64 exec, exec, vcc")
    a.ds(f"ds_write_b128 v{t1}, v[{Zr}:{Zr+3}]")
    a.label(lz)
    a(f"s_mov_b64 exec, s[50:51]")
    vTW_ = V()
    a(f"v_add_u32 v{vTW_}, {OZ*16 + TOEP}, v{vT}")
    vUW = V()
    a(f"v_add_u32 v{vUW}, {UB + UZ*16}, v{vT}")
    vA = V()
    a(f"v_and_b32 v{t0}, 7, v{vL}")
    a(f"v_mul_u32_u24 v{t0}, {CS_}, v{t0}")
    a(f"v_bfe_u32 v{t1}, v{vL}, 3, 1")
    a(f"v_lshrrev_b32 v{t2}, 4, v{vL}")
    a(f"v_sub_u32 v{t1}, v{t1}, v{t2}")
    a(f"v_add_u32 v{t1}, 3, v{t1}")
    a(f"v_lshl_add_u32 v{vA}, v{t1}, 4, v{t0}")
    if TOEP: a(f"v_add_u32 v{vA}, {TOEP}, v{vA}")
    vBq = V()
    a(f"v_and_b32 v{t0}, 15, v{vL}")
    a(f"v_lshl_add_u32 v{t0}, v{t0}, 1, v{t2}")
    a(f"v_lshlrev_b32 v{vBq}, 4, v{t0}")
    a(f"v_add_u32 v{vBq}, {UB}, v{vBq}")
    DM = V(4, 4)
    a(f"v_and_b32 v{t0}, 15, v{vL}")
    a(f"v_lshlrev_b32 v{t1}, 3, v{t2}")
    a(f"v_sub_u32 v{t1}, v{t1}, v{t0}")
    a(f"v_add_u32 v{t1}, -9, v{t1}")
    vK0, vK1 = V(), V()
    a(f"v_mov_b32 v{vK0}, 0xffff"); a(f"v_mov_b32 v{vK1}, 0xffff0000")
    for dw in range(4):
        a(f"v_cmp_eq_u32 vcc, {2*dw}, v{t1}")
        a(f"v_cndmask_b32 v{DM+dw}, 0, v{vK0}, vcc")
        a(f"v_cmp_eq_u32 vcc, {2*dw + 1}, v{t1}")
        a(f"v_cndmask_b32 v{DM+dw}, v{DM+dw}, v{vK1}, vcc")
    vPW = V()
    a(f"v_and_b32 v{t0}, 15, v{vL}")
    a(f"v_lshlrev_b32 v{t0}, 6, v{t0}")
    a(f"v_lshl_add_u32 v{t0}, v{t2}, 4, v{t0}")
    a(f"s_lshl_b32 s{sT0}, s{sW}, 13")
    a(f"s_add_u32 s{sT0}, s{sT0}, {PB}")
    a(f"v_add_u32 v{vPW}, s{sT0}, v{t0}")
    vPR = V()
    a(f"v_lshlrev_b32 v{vPR}, 5, v0")
    a(f"v_add_u32 v{vPR}, {PB}, v{vPR}")
    ACC = V(32, 4)
    AF = V(12, 4); BF = V(64, 4)
    EW = V(8, 4); TQ = V(4, 4); DG = V(4, 4)

    def mfma_block(w, tiles, touches):
        tq = list(touches)
        started = set()
        seq = []
        for r in range(2):
            q0 = 2*w + r
            dmin = 0
            ips = [ip for ip in range(8) if any(T >= ip for T in tiles)]
            seq += [(r, ip) for ip in ips]
        bid = {}
        def need_d(r): return sorted({T - ip for (rr, ip) in seq if rr == r for T in tiles if T >= ip})
        def read_b(r):
            q0 = 2*w + r
            for d in need_d(r):
                m = 8*d - q0
                bid[(r, d)] = a.ds(f"ds_read_b128 v[{BF+(r*8+d)*4}:{BF+(r*8+d)*4+3}], v{vBq} offset:{(4*m - 2 + UZ)*16}")
        aid = {}
        def read_a(n):
            r, ip = seq[n]
            q = 2*w + r + 8*ip
            aid[n] = a.ds(f"ds_read_b128 v[{AF+(n%3)*4}:{AF+(n%3)*4+3}], v{vA} offset:{64*q}")
        read_a(0); read_b(0); read_a(1)
        for n, (r, ip) in enumerate(seq):
            if n + 2 < len(seq): read_a(n + 2)
            if n == 2: read_b(1)
            last = max([aid[n]] + [bid[(r, T - ip)] for T in tiles if T >= ip])
            a.wait_lg(last)
            q0 = 2*w + r
            for T in sorted(tiles, reverse=True):
                if T < ip: continue
                c = f"v[{ACC+4*T}:{ACC+4*T+3}]" if T in started else "0"; started.add(T)
                a(f"v_mfma_f32_16x16x32_bf16 v[{ACC+4*T}:{ACC+4*T+3}], v[{AF+(n%3)*4}:{AF+(n%3)*4+3}], v[{BF+(r*8+T-ip)*4}:{BF+(r*8+T-ip)*4+3}], {c}")
            if q0 == 0 and ip == 0:
                for T in tiles:
                    a(f"v_mfma_f32_16x16x32_bf16 v[{ACC+4*T}:{ACC+4*T+3}], v[{DG}:{DG+3}], v[{BF+(r*8+T)*4}:{BF+(r*8+T)*4+3}], v[{ACC+4*T}:{ACC+4*T+3}]")
            if tq and n % 2 == 1: touch(tq.pop(0))
        for T in tiles:
            a.ds(f"ds_write_b128 v{vPW}, v[{ACC+4*T}:{ACC+4*T+3}] offset:{T*1024}")
    def finalize(i, tiles):
        regs = [BF, BF+8, BF+16, BF+24]
        full = len(tiles) == 8
        if not full:
            lab = a.newlabel("c_fm")
            a(f"s_mov_b64 exec, 0")
            for w in range(4):
                lo = 0xffffffff if 2*w in tiles else 0
                hi = 0xffffffff if 2*w + 1 in tiles else 0
                a(f"s_cmp_eq_u32 s{sW}, {w}")
                a(f"s_cselect_b32 exec_lo, {lo if lo == 0 else -1}, exec_lo")
                a(f"s_cselect_b32 exec_hi, {hi if hi == 0 else -1}, exec_hi")
            lskip = a.newlabel("c_fskip")
            a(f"s_cbranch_execz {lskip}")
        for k in range(4):
            a.ds(f"ds_read_b128 v[{regs[k]}:{regs[k]+3}], v{vPR} offset:{k*PT_}")
            a.ds(f"ds_read_b128 v[{regs[k]+4}:{regs[k]+7}], v{vPR} offset:{k*PT_ + 16}")
        a(f"s_lshl_b32 s{sT0}, s{sCHN[i]}, 12")
        a(f"s_add_u32 s{sT0}, s{sT0}, {WS_YT}")
        a("s_waitcnt lgkmcnt(0)")
        for e in range(0, 8, 2):
            a(f"v_pk_add_f32 {P(regs[0]+e)}, {P(regs[0]+e)}, {P(regs[1]+e)}")
            a(f"v_pk_add_f32 {P(regs[2]+e)}, {P(regs[2]+e)}, {P(regs[3]+e)}")
        for e in range(0, 8, 2):
            a(f"v_pk_add_f32 {P(regs[0]+e)}, {P(regs[0]+e)}, {P(regs[2]+e)}")
        for e in range(4):
            a(f"v_cvt_pk_bf16_f32 v{TQ+e}, v{regs[0]+2*e}, v{regs[0]+2*e+1}")
        a(f"buffer_store_dwordx4 v[{TQ}:{TQ+3}], v{vT}, s[{sWS}:{sWS+3}], s{sT0} offen" + (" sc1" if "ysc1" in K2X else ""))
        a.vm -= 1
        if not full:
            a.label(lskip)
            a(f"s_mov_b64 exec, -1")
        a("s_nop 1")

    def per_wave(variants):
        lend = a.newlabel("c_pw_end"); labs = [a.newlabel("c_pw") for _ in range(4)]
        lg0, vm0 = a.lg, a.vm
        lgmax, vmmin = lg0, None
        for w in range(4):
            if w < 3:
                a(f"s_cmp_lg_u32 s{sW}, {w}")
                a(f"s_cbranch_scc1 {labs[w]}")
            a.lg, a.vm = lg0, vm0
            variants[w]()
            lgmax = max(lgmax, a.lg); vmmin = a.vm if vmmin is None else min(vmmin, a.vm)
            if w < 3:
                a(f"s_branch {lend}")
                a.label(labs[w])
        a.label(lend)
        a.lg, a.vm = lgmax, vmmin

    for i in range(NCH):
        a.comment(f"------- channel slot {i}")
        a.wait_vm(ld[i])
        ST(f"c{i}_ld")
        d = HR + 8*i
        a(f"v_cmp_ne_u32 vcc, 0, v0")
        for e in range(4): a(f"v_cndmask_b32 v{d+e}, 0, v{d+e}, vcc")
        for e in range(7): a(f"v_alignbit_b32 v{EW+e}, v{d+e+1}, v{d+e}, 16")
        for c in range(8):
            st = c + 1
            if st % 2 == 0: src = d + st//2
            else: src = EW + (st-1)//2
            if (src % 2) != 0:
                for e in range(4): a(f"v_mov_b32 v{TQ+e}, v{src+e}")
                src = TQ
            a.ds(f"ds_write_b128 v{vTW_}, v[{src}:{src+3}] offset:{c*CS_}")
            if src == TQ: a("s_nop 1")
        if FUSED and i == 0:
            poll_all()
            load_u(0)
            for c_ in range(NUP): touch(c_)
            for i_ in range(1, NCH): load_u(i_)
            a.wait_vm(ld[0])
        a.ds(f"ds_write_b128 v{vUW}, v[{UR+4*i}:{UR+4*i+3}]")
        a(f"v_lshlrev_b32 v{t0}, 16, v{DR+i}")
        a(f"v_or_b32 v{t0}, v{t0}, v{DR+i}")
        for e in range(4): a(f"v_and_b32 v{DG+e}, v{DM+e}, v{t0}")
        if i == 0 and not FUSED: wof_job()
        csync()
        ST(f"c{i}_built")
        if i == 1:
            lw3 = a.newlabel("c_wj3")
            a(f"s_cmp_ge_u32 s2, 192")
            a(f"s_cbranch_scc1 {lw3}")
            a(f"v_lshrrev_b32 v{t0}, 4, v{vL}")
            a(f"v_and_b32 v{t2}, 15, v{vL}")
            a(f"v_lshrrev_b32 v{t1}, 2, v{t2}")
            a(f"v_lshl_add_u32 v{t0}, v{t0}, 2, v{t1}")
            a(f"v_mul_u32_u24 v{t0}, 160, v{t0}")
            a(f"v_and_b32 v{t1}, 3, v{t2}")
            a(f"v_lshl_add_u32 v{t0}, v{t1}, 3, v{t0}")
            a(f"v_lshlrev_b32 v{t2}, 4, v{vL}")
            for r in range(2):
                l2 = None
                if r == 1:
                    l2 = a.newlabel("c_wj4")
                    a(f"s_cmp_lg_u32 s{sW}, 0")
                    a(f"s_cbranch_scc1 {l2}")
                if r == 0: a(f"s_lshl_b32 s{sT0}, s{sW}, 5")
                else: a(f"s_mov_b32 s{sT0}, 128")
                a(f"s_add_u32 s{sT1}, s{sT0}, {WJ}")
                a(f"v_add_u32 v{t1}, s{sT1}, v{t0}")
                a(f"ds_read_b64_tr_b16 v[{TQ}:{TQ+1}], v{t1}")
                a(f"ds_read_b64_tr_b16 v[{TQ+2}:{TQ+3}], v{t1} offset:2560")
                a(f"s_mul_i32 s{sT1}, s2, 5120")
                a(f"s_lshl_b32 s{sT0}, s{sT0}, 5")
                a(f"s_add_u32 s{sT1}, s{sT1}, s{sT0}")
                a(f"s_add_u32 s{sT1}, s{sT1}, {WS_WOF}")
                a("s_waitcnt lgkmcnt(0)")
                a(f"buffer_store_dwordx4 v[{TQ}:{TQ+3}], v{t2}, s[{sWS}:{sWS+3}], s{sT1} offen" + (" sc1" if "ysc1" in K2X else ""))
                a("s_nop 1")
                a.vm -= 1; a.lg -= 2
                if l2: a.label(l2)
            a.label(lw3)
        tch = list(range(NUP, 8)) if i == 0 else []
        def do_channel(tiles):
            per_wave([(lambda w=w: mfma_block(w, tiles, tch)) for w in range(4)])
            if i < 2: ST(f"c{i}_mfma")
            if FULL and i == 1: a("s_waitcnt vmcnt(0)")
            csync()
            if FULL and i == 1:
                a(f"s_lshl_b32 s{sT0}, s2, 3")
                a(f"s_add_u32 s{sT0}, s{sT0}, {WS_F4}")
                a(f"v_mov_b32 v{FP}, s{sTAGF}"); a(f"v_mov_b32 v{FP+1}, s{sTAGF+1}")
                a(f"v_mov_b32 v{t0}, 0")
                a(f"s_cmp_eq_u32 s{sW}, 0")
                a(f"s_cselect_b64 exec, 1, 0")
                a(f"s_cmp_lt_u32 s2, 192")
                a(f"s_cselect_b64 exec, exec, 0")
                a(f"buffer_store_dwordx2 {P(FP)}, v{t0}, s[{sWS}:{sWS+3}], s{sT0} offen sc1")
                a.vm -= 1
                a(f"s_mov_b64 exec, -1")
            finalize(i, tiles)
        if i < 2:
            do_channel(list(range(8)))
        else:
            labB = a.newlabel("c_halfB"); labE = a.newlabel("c_halfE")
            a(f"s_bitcmp1_b32 s2, 0")
            a(f"s_cbranch_scc1 {labB}")
            lg0, vm0, c0_ = a.lg, a.vm, cst[0]
            do_channel([2, 6, 7])
            a(f"s_branch {labE}")
            a.label(labB); a.lg, a.vm, cst[0] = lg0, vm0, c0_
            do_channel([0, 1, 3, 4, 5])
            a.label(labE)
        ST(f"c{i}_done")
    ST.dump(sWS, sW, t0, t1, WS_DBG + 0x400000)

def gen_k2(name="k2_kernel", prof=False):
    a = Asm()
    a.raw(f".globl {name}\n.p2align 8\n.type {name},@function\n{name}:")
    a(f"s_cmp_ge_u32 s2, 512")
    a(f"s_cbranch_scc1 {name}_end")
    a(f"s_cmp_lt_u32 s2, 256")
    a(f"s_cbranch_scc1 {name}_conv" if "noconv" not in K2X else f"s_cbranch_scc1 {name}_end")
    ST = Stamps(a, enabled=prof); ST("g_start")
    V = Alloc(1, 256, "v")
    gen_gemm(a, V, ST, prof)
    a("s_endpgm")
    hi = V.hi
    a.label(f"{name}_conv")
    a.vm = 0; a.lg = 0
    ST2 = Stamps(a, enabled=prof); ST2("c_start")
    V2 = Alloc(1, 256, "v")
    gen_conv(a, V2, ST2, prof, name)
    a.label(f"{name}_end")
    a("s_endpgm")
    gen_k2.stamp_names = {"k2g": ST.names, "k2c": ST2.names}
    return a.finish(), max(hi, V2.hi)


def gen_k12(name="k12_kernel", prof=False):
    import k1, k3, k3f
    P8 = FULL and "p4" not in os.environ.get("K3X", "")
    a, hi1, sW1 = k1.gen_k1(name=name, prof=prof, fused=True)
    if P8: a("v_mov_b32 v253, v0")
    a(f"s_cmp_ge_u32 s{sW1}, 4")
    a(f"s_cbranch_scc1 {name}_conv")
    a.vm = 0; a.lg = 0
    ST = Stamps(a, enabled=prof); ST("g_start")
    V = Alloc(1, 253, "v")
    gen_gemm(a, V, ST, prof)
    hi3 = 0
    def publish_f2(srd, sWv):
        a(f"s_lshl_b32 s58, s2, 3")
        a(f"s_add_u32 s58, s58, {WS_F2}")
        a(f"v_mov_b32 v250, s{sTAGF}"); a(f"v_mov_b32 v251, s{sTAGF+1}")
        a(f"v_mov_b32 v252, 0")
        a(f"s_cmp_eq_u32 s{sWv}, 0")
        a(f"s_cselect_b64 exec, 1, 0")
        a(f"buffer_store_dwordx2 v[250:251], v252, s[{srd}:{srd+3}], s58 offen sc1")
        a(f"s_mov_b64 exec, -1")
    if FULL and not P8 and "nomid" not in os.environ.get("K3X", ""):
        gsync(a, 0, gen_gemm.gst, 1, 2)
        a.vm = 0; a.lg = 0
        def mid(srd, sWv):
            a("s_barrier")
            publish_f2(srd, sWv)
        hi3 = k3.gen_k3(prof=prof, fa=a, mid=mid)
    elif FULL:
        a("s_waitcnt vmcnt(0) lgkmcnt(0)")
        a("s_barrier")
        publish_f2(8, 34)
        a.vm = 0; a.lg = 0
        if P8: a(f"s_branch {name}_p3")
        else: hi3 = k3.gen_k3(prof=prof, fa=a)
    if not P8: a("s_endpgm")
    hi = V.hi
    a.label(f"{name}_conv")
    a.vm = 0; a.lg = 0
    ST2 = Stamps(a, enabled=prof); ST2("c_start")
    V2 = Alloc(1, 253, "v")
    gen_conv(a, V2, ST2, prof, name)
    if FULL:
        a("s_waitcnt vmcnt(0) lgkmcnt(0)")
        a("s_barrier")
    if P8:
        a.label(f"{name}_p3")
        a.vm = 0; a.lg = 0
        hi3 = k3f.gen_phase3(a, prof, poll_flags_n, poll_all_flags, sTAGF)
    a.label(f"{name}_end")
    a("s_endpgm")
    gen_k12.stamp_names = {"k1": k1.gen_k1.stamp_names, "k2g": ST.names, "k2c": ST2.names}
    if FULL: gen_k12.stamp_names["k3"] = k3f.gen_phase3.stamp_names if P8 else k3.gen_k3.stamp_names
    return a.finish(), max(hi1, hi, V2.hi, hi3, 254 if FULL else 0)
```

```python
from dsl import *
from layout import *
from k1 import f32, Filler, run, mask, P
import os
WO = 0; XT = 122880; YTL = 133120; OT = 143360; LDS = 153600
LOG2E = 1.4426950408889634

def gen_k3(name="k3_kernel", prof=False, fa=None, mid=None):
    K3X = os.environ.get("K3X", "")
    F3 = fa is not None
    SC = " sc1" if F3 else ""
    a = fa if F3 else Asm()
    ST = Stamps(a, enabled=prof)
    V = Alloc(1, 255, "v")
    sX, sWS, sOUT = 8, 12, 16
    sRB, sDJ, sW = 32, 33, 34
    sT0, sT1, sT2, sT3 = 40, 41, 42, 43
    sCOL, sXB, sWB, sPB, sROT = 44, 45, 46, 47, 48
    if not F3:
        a.raw(f".globl {name}\n.p2align 8\n.type {name},@function\n{name}:")
        a(f"s_cmp_ge_u32 s2, 256")
        a(f"s_cbranch_scc1 {name}_end")
    a(f"s_load_dwordx2 s[{sWS}:{sWS+1}], s[0:1], {KA['ws']}")
    a(f"s_load_dwordx2 s[{sX}:{sX+1}], s[0:1], {KA['q']}")
    a(f"s_load_dwordx2 s[{sOUT}:{sOUT+1}], s[0:1], {KA['out']}")
    ST("k3start")
    for srd, size in ((sX, SZ_X), (sWS, WS_SIZE_DBG if prof else WS_END), (sOUT, SZ_X)):
        a(f"s_mov_b32 s{srd+2}, {size}")
        a(f"s_mov_b32 s{srd+3}, {SRD3:#x}")
    vL, vQ, vP = V(), V(), V(); t0, t1, t2 = V(), V(), V()
    a(f"v_lshrrev_b32 v{t0}, 6, v0")
    a(f"v_and_b32 v{vL}, 63, v0")
    a(f"v_readfirstlane_b32 s{sW}, v{t0}")
    vZ = V()
    a(f"v_lshlrev_b32 v{vZ}, 4, v{vL}")
    a(f"s_and_b32 s{sT0}, s2, 7")
    a(f"s_lshr_b32 s{sT1}, s2, 3")
    a(f"s_lshr_b32 s{sRB}, s{sT0}, 1")
    a(f"s_lshl_b32 s{sRB}, s{sRB}, 3")
    a(f"s_and_b32 s{sT2}, s{sT1}, 7")
    a(f"s_add_u32 s{sRB}, s{sRB}, s{sT2}")
    a(f"s_and_b32 s{sDJ}, s{sT0}, 1")
    a(f"s_lshl_b32 s{sDJ}, s{sDJ}, 2")
    a(f"s_lshr_b32 s{sT2}, s{sT1}, 3")
    a(f"s_add_u32 s{sDJ}, s{sDJ}, s{sT2}")
    a(f"s_add_u32 s{sT0}, s{sRB}, s{sDJ}")
    a(f"s_mul_i32 s{sT1}, s{sT0}, 43")
    a(f"s_lshr_b32 s{sT1}, s{sT1}, 8")
    a(f"s_mul_i32 s{sT1}, s{sT1}, 6")
    a(f"s_sub_u32 s{sROT}, s{sT0}, s{sT1}")
    if "norot" in K3X: a(f"s_mov_b32 s{sROT}, 0")
    a(f"s_mul_i32 s{sWB}, s{sDJ}, {24*5120}")
    a(f"s_add_u32 s{sWB}, s{sWB}, {WS_WOF}")
    a(f"s_mul_i32 s{sT0}, s{sW}, 5120")
    a(f"s_add_u32 s{sWB}, s{sWB}, s{sT0}")
    a(f"s_mul_i32 s{sPB}, s{sRB}, {4*24*1024}")
    a(f"s_mul_i32 s{sT1}, s{sW}, {24*1024}")
    a(f"s_add_u32 s{sPB}, s{sPB}, s{sT1}")
    a(f"s_add_u32 s{sPB}, s{sPB}, {WS_PF}")
    sG = [50, 51, 52, 53, 54, 55]
    for m in range(6):
        a(f"s_add_u32 s{sT0}, s{sROT}, {m}")
        a(f"s_sub_u32 s{sT1}, s{sT0}, 6")
        a(f"s_cmp_ge_u32 s{sT0}, 6")
        a(f"s_cselect_b32 s{sG[m]}, s{sT1}, s{sT0}")
    PFr = V(96, 4)
    a("s_waitcnt lgkmcnt(0)")
    ST("kernarg")
    p_id = {}; w_id = {}
    def dma_w_g(m):
        for r in range(5):
            a(f"s_mul_i32 s{sT0}, s{sG[m]}, {4*5120}")
            a(f"s_add_u32 s{sT0}, s{sT0}, s{sWB}")
            a(f"s_add_u32 s{sT0}, s{sT0}, {r*1024}")
            a(f"s_mul_i32 s{sT1}, s{sW}, 5120")
            a(f"s_add_u32 m0, s{sT1}, {WO + m*4*5120 + r*1024}")
            w_id[m] = a.vmem(f"buffer_load_dwordx4 v{vZ}, s[{sWS}:{sWS+3}], s{sT0} offen{SC} lds")
            yield
    def load_p_g(m):
        for k in range(4):
            ks = 4*m + k
            a(f"s_lshl_b32 s{sT2}, s{sG[m]}, 12")
            a(f"s_add_u32 s{sT2}, s{sT2}, s{sPB}")
            p_id[ks] = a.vmem(f"buffer_load_dwordx4 v[{PFr+4*ks}:{PFr+4*ks+3}], v{vZ}, s[{sWS}:{sWS+3}], s{sT2} offen offset:{k*1024}{SC}")
            yield
    if F3:
        from k2 import poll_flags_n, poll_all_flags
        a(f"s_mul_i32 s{sT0}, s{sDJ}, {24*8}")
        a(f"s_add_u32 s{sT0}, s{sT0}, {WS_F4}")
        poll_flags_n(a, sWS, sT0, 24, PFr, t0)
        ST("wflags")
        NW0 = int(os.environ.get("NW0", "6"))
        if mid is not None:
            for m in range(4): run(dma_w_g(m))
            mid(sWS, sW)
            for m in range(4, 6): run(dma_w_g(m))
        else:
            for m in range(NW0): run(dma_w_g(m))
        poll_all_flags(a, sWS, PFr, t0, WS_F2)
        ST("pflags")
        run(load_p_g(0)); run(load_p_g(1))
        for m in range(NW0, 6):
            run(dma_w_g(m))
            if m < 6 and os.environ.get("PALL"): run(load_p_g(m))
    else:
        run(dma_w_g(0)); run(load_p_g(0))
        a("s_barrier")
        run(dma_w_g(1)); run(load_p_g(1))
    a(f"s_mul_i32 s{sCOL}, s{sDJ}, 160")
    a(f"s_mul_i32 s{sXB}, s{sRB}, {64*1280}")
    a(f"s_add_u32 s{sXB}, s{sXB}, s{sCOL}")
    vO = [V() for _ in range(5)]
    for r in range(5):
        a(f"v_add_u32 v{t0}, {64*r}, v{vL}")
        a(f"v_mul_u32_u24 v{t1}, 6554, v{t0}")
        a(f"v_lshrrev_b32 v{t1}, 16, v{t1}")
        a(f"v_mul_u32_u24 v{t2}, 10, v{t1}")
        a(f"v_sub_u32 v{t0}, v{t0}, v{t2}")
        a(f"v_lshlrev_b32 v{t0}, 4, v{t0}")
        a(f"v_mul_u32_u24 v{t1}, 1280, v{t1}")
        a(f"v_add_u32 v{vO[r]}, v{t0}, v{t1}")
    XS = V(2, 2)
    vY = V()
    def xy_g():
        lx = a.newlabel("k3_y"); lx2 = a.newlabel("k3_xy")
        a(f"s_cmp_ge_u32 s{sW}, 2")
        a(f"s_cbranch_scc1 {lx}")
        a(f"s_mul_i32 s{sT0}, s{sW}, {32*1280}")
        a(f"s_add_u32 s{sT0}, s{sT0}, s{sXB}")
        a(f"s_mul_i32 s{sT1}, s{sW}, 5120")
        for r in range(5):
            a(f"s_add_u32 m0, s{sT1}, {XT + r*1024}")
            a(f"buffer_load_dwordx4 v{vO[r]}, s[{sX}:{sX+3}], s{sT0} offen lds")
        a(f"s_branch {lx2}")
        a.label(lx)
        a(f"v_lshrrev_b32 v{t0}, 3, v{vL}")
        a(f"v_lshlrev_b32 v{t0}, 12, v{t0}")
        a(f"v_and_b32 v{t1}, 7, v{vL}")
        a(f"v_lshl_add_u32 v{vY}, v{t1}, 4, v{t0}")
        a(f"s_sub_u32 s{sT2}, s{sW}, 2")
        a(f"s_mul_i32 s{sT0}, s{sT2}, 40")
        a(f"s_mul_i32 s{sT1}, s{sDJ}, 80")
        a(f"s_add_u32 s{sT0}, s{sT0}, s{sT1}")
        a(f"s_lshl_b32 s{sT0}, s{sT0}, 12")
        a(f"s_lshl_b32 s{sT1}, s{sRB}, 7")
        a(f"s_add_u32 s{sT0}, s{sT0}, s{sT1}")
        a(f"s_add_u32 s{sT0}, s{sT0}, {WS_YT}")
        a(f"s_mul_i32 s{sT1}, s{sT2}, 5120")
        for r in range(5):
            a(f"s_add_u32 m0, s{sT1}, {YTL + r*1024}")
            a(f"buffer_load_dwordx4 v{vY}, s[{sWS}:{sWS+3}], s{sT0} offen{SC} lds")
            a(f"s_add_u32 s{sT0}, s{sT0}, {8*4096}")
        a.label(lx2)
        a.vm -= 5
        a(f"s_lshl_b32 s{sT0}, s{sRB}, 9")
        a(f"s_lshl_b32 s{sT1}, s{sW}, 7")
        a(f"s_add_u32 s{sT0}, s{sT0}, s{sT1}")
        a(f"s_add_u32 s{sT0}, s{sT0}, {WS_XST}")
        a(f"v_lshlrev_b32 v{t0}, 3, v{vP}")
        a.vmem(f"buffer_load_dwordx2 {P(XS)}, v{t0}, s[{sWS}:{sWS+3}], s{sT0} offen{SC}")
        yield
    a(f"v_lshrrev_b32 v{vQ}, 4, v{vL}")
    a(f"v_and_b32 v{vP}, 15, v{vL}")
    vA = [V(), V()]
    a(f"v_mov_b32 v{vA[0]}, v{vZ}")
    a(f"v_add_u32 v{vA[1]}, {12*5120}, v{vZ}")
    ACC = V(20, 4)
    AF = V(40, 4)
    def read_a(ks):
        b = ks & 1; ids = []
        base = vA[0] if ks < 12 else vA[1]
        o = WO + (ks % 12)*5120
        for dt in range(5):
            r = AF + (b*5 + dt)*4
            ids.append(a.ds(f"ds_read_b128 v[{r}:{r+3}], v{base} offset:{o + dt*1024}"))
        return ids
    rd = {}
    for m in range(6):
        a.wait_vm(w_id[m])
        a("s_barrier")
        ST(f"m{m}")
        rd[4*m] = read_a(4*m)
        fl = Filler()
        if m + 2 < 6:
            if not F3: fl.add(dma_w_g(m + 2))
            if not (F3 and os.environ.get("PALL") and m + 2 >= int(os.environ.get("NW0", "6"))): fl.add(load_p_g(m + 2))
        if m == 3: fl.add(xy_g())
        for ks in range(4*m, 4*m + 4):
            if ks + 1 < 4*m + 4: rd[ks+1] = read_a(ks + 1)
            a.wait_vm(p_id[ks])
            b = ks & 1
            for dt in range(5):
                a.wait_lg(rd[ks][dt])
                r = AF + (b*5 + dt)*4
                c = "0" if ks == 0 else f"v[{ACC+4*dt}:{ACC+4*dt+3}]"
                a(f"v_mfma_f32_16x16x32_bf16 v[{ACC+4*dt}:{ACC+4*dt+3}], v[{r}:{r+3}], v[{PFr+4*ks}:{PFr+4*ks+3}], {c}")
                if dt % 2 == 0: fl.step(1)
        fl.drain()
    ST("k3loop")
    XV = AF; YV = AF + 10
    a(f"s_lshl_b32 s{sT0}, s{sW}, 4")
    a(f"v_add_u32 v{t0}, s{sT0}, v{vP}")
    a(f"v_mul_u32_u24 v{t0}, 160, v{t0}")
    vXA = V(); vX2 = V(); vYA = V()
    a(f"v_lshl_add_u32 v{vXA}, v{vQ}, 3, v{t0}")
    a(f"v_add_u32 v{vX2}, {XT}, v{vXA}")
    a(f"v_lshrrev_b32 v{t1}, 2, v{vP}")
    a(f"v_lshl_add_u32 v{t0}, v{vQ}, 2, v{t1}")
    a(f"v_lshlrev_b32 v{t0}, 7, v{t0}")
    a(f"v_and_b32 v{t1}, 3, v{vP}")
    a(f"v_lshl_add_u32 v{t0}, v{t1}, 3, v{t0}")
    a(f"s_lshl_b32 s{sT0}, s{sW}, 5")
    a(f"s_add_u32 s{sT0}, s{sT0}, {YTL}")
    a(f"v_add_u32 v{vYA}, s{sT0}, v{t0}")
    T = PFr
    sL = 46
    a(f"s_mov_b32 s{sL}, {f32(-LOG2E):#x}")
    a(f"s_mov_b32 s{sL+1}, {f32(-LOG2E):#x}")
    E = T
    for i in range(0, 20, 2): a(f"v_pk_mul_f32 {P(E+i)}, {P(ACC+i)}, s[{sL}:{sL+1}]")
    a("s_waitcnt vmcnt(0)")
    a("s_barrier")
    for dt in range(5):
        a.ds(f"ds_read_b64 v[{XV+2*dt}:{XV+2*dt+1}], v{vX2} offset:{dt*32}")
    for dt in range(5):
        a.ds(f"ds_read_b64_tr_b16 v[{YV+2*dt}:{YV+2*dt+1}], v{vYA} offset:{dt*2048}")
    for i in range(20): a(f"v_exp_f32 v{E+i}, v{E+i}")
    for i in range(0, 20, 2): a(f"v_pk_add_f32 {P(E+i)}, {P(E+i)}, 1.0 op_sel_hi:[1,0]")
    for i in range(20): a(f"v_rcp_f32 v{E+i}, v{E+i}")
    for i in range(0, 20, 2): a(f"v_pk_mul_f32 {P(E+i)}, {P(E+i)}, {P(ACC+i)}")
    a("s_waitcnt lgkmcnt(0)")
    XF_ = T + 20; YF = T + 40; N = T + 60
    for i in range(10):
        a(f"v_lshlrev_b32 v{XF_+2*i}, 16, v{XV+i}")
        a(f"v_and_b32 v{XF_+2*i+1}, 0xffff0000, v{XV+i}")
        a(f"v_lshlrev_b32 v{YF+2*i}, 16, v{YV+i}")
        a(f"v_and_b32 v{YF+2*i+1}, 0xffff0000, v{YV+i}")
    RB = V(2, 2)
    a(f"v_mov_b32 v{RB}, v{XS+1}")
    for i in range(0, 20, 2): a(f"v_pk_add_f32 {P(N+i)}, {P(XF_+i)}, {P(XS)} op_sel_hi:[1,0] neg_lo:[0,1] neg_hi:[0,1]")
    for i in range(0, 20, 2): a(f"v_pk_mul_f32 {P(N+i)}, {P(N+i)}, {P(RB)} op_sel_hi:[1,0]")
    for i in range(0, 20, 2): a(f"v_pk_mul_f32 {P(N+i)}, {P(N+i)}, {P(YF+i)}")
    for i in range(0, 20, 2): a(f"v_pk_fma_f32 {P(N+i)}, {P(N+i)}, {P(E+i)}, {P(XF_+i)}")
    OV = AF
    for i in range(10): a(f"v_cvt_pk_bf16_f32 v{OV+i}, v{N+2*i}, v{N+2*i+1}")
    vOW = V()
    a(f"v_add_u32 v{vOW}, {OT}, v{vXA}")
    for dt in range(5):
        a.ds(f"ds_write_b64 v{vOW}, v[{OV+2*dt}:{OV+2*dt+1}] offset:{dt*32}")
    a(f"s_mul_i32 s{sT0}, s{sW}, 2560")
    a(f"s_add_u32 s{sT0}, s{sT0}, {OT}")
    a(f"v_add_u32 v{t0}, s{sT0}, v{vZ}")
    a("s_waitcnt lgkmcnt(0)")
    for r in range(3):
        a.ds(f"ds_read_b128 v[{T+4*r}:{T+4*r+3}], v{t0} offset:{r*1024}")
    a(f"s_mul_i32 s{sT0}, s{sW}, {16*1280}")
    a(f"s_add_u32 s{sT0}, s{sT0}, s{sXB}")
    a("s_waitcnt lgkmcnt(0)")
    for r in range(3):
        if r == 2: a(f"s_mov_b32 exec_hi, 0")
        a.vmem(f"buffer_store_dwordx4 v[{T+4*r}:{T+4*r+3}], v{vO[r]}, s[{sOUT}:{sOUT+3}], s{sT0} offen" + (" sc1" if "osc1" in K3X else ""))
    a(f"s_mov_b64 exec, -1")
    ST("k3end")
    ST.dump(sWS, sW, t0, t1, WS_DBG + 0x600000)
    gen_k3.stamp_names = ST.names
    if F3 and Stamps.HS:
        wg = int(os.environ.get("HSWG", "0"))
        lab = a.newlabel("hs_skip")
        a(f"s_cmp_lg_u32 s2, {wg}")
        a(f"s_cbranch_scc1 {lab}")
        a(f"s_cmp_lg_u32 s{sW}, 0")
        a(f"s_cbranch_scc1 {lab}")
        a(f"s_load_dwordx2 s[20:21], s[0:1], {KA['dbg']}")
        a(f"s_mov_b32 s22, 256"); a(f"s_mov_b32 s23, {SRD3:#x}")
        a(f"v_readlane_b32 s40, v254, 1")
        a(f"v_mbcnt_lo_u32_b32 v{t0}, -1, 0")
        a(f"v_mbcnt_hi_u32_b32 v{t0}, -1, v{t0}")
        a(f"v_lshlrev_b32 v{t0}, 2, v{t0}")
        a(f"v_subrev_u32 v254, s40, v254")
        a("s_waitcnt lgkmcnt(0)")
        a(f"s_mov_b64 exec, {((1 << (len(Stamps.HS) + 1)) - 1) & ~1:#x}")
        a(f"buffer_store_dword v254, v{t0}, s[20:23], 0 offen")
        a(f"s_mov_b64 exec, -1")
        a.label(lab)
    if F3: return V.hi
    a.label(f"{name}_end")
    a("s_endpgm")
    return a.finish(), V.hi
```

```python
from dsl import *
from layout import *
import os, struct

XR = 0; WR = 81920; SLOT = 24576
MISC = 155648
CSUM = MISC
XSUM = MISC + 3072
ZSUM = MISC + 4096
SHKL = MISC + 5120
EX = 16384
TB = 81920 + 24576
KS = 65536
VS = 49152
ZT = 0
C1 = 2.302208198144325
C2 = C1 * 0.044715

def f32(x): return struct.unpack("<I", struct.pack("<f", x))[0]
def P(r): return f"v[{r}:{r+1}]"

def pkop(a, kind, d, x, y, z=None, pk=True, bcast_y=False, neg_y=False, ys=None, zs=None):
    if pk:
        yo = f"s[{ys}:{ys+1}]" if ys is not None else P(y)
        mods = ""
        n = 3 if kind == "fma" else 2
        if bcast_y: mods += " op_sel_hi:[1,0" + (",1" if n == 3 else "") + "]"
        if neg_y: mods += " neg_lo:[0,1" + (",0" if n == 3 else "") + "] neg_hi:[0,1" + (",0" if n == 3 else "") + "]"
        if kind == "fma": a(f"v_pk_fma_f32 {P(d)}, {P(x)}, {yo}, {P(z)}{mods}")
        else: a(f"v_pk_{kind}_f32 {P(d)}, {P(x)}, {yo}{mods}")
        yield
    else:
        for h in range(2):
            yo = f"s{ys}" if ys is not None else f"v{y + (0 if bcast_y else h)}"
            if neg_y: yo = "-" + yo
            if kind == "fma": a(f"v_fma_f32 v{d+h}, v{x+h}, {yo}, v{z+h}")
            elif kind == "mul":
                if ys is not None: a(f"v_mul_f32 v{d+h}, {yo}, v{x+h}")
                else: a(f"v_mul_f32 v{d+h}, v{x+h}, {yo}")
            else:
                if neg_y: a(f"v_sub_f32 v{d+h}, v{x+h}, {yo[1:]}")
                else: a(f"v_add_f32 v{d+h}, v{x+h}, {yo}")
            yield

def reduce_g4_multi(a, xs, ts):
    for op in ("v_permlane16_swap_b32", "v_permlane32_swap_b32"):
        for x, t in zip(xs, ts): a(f"v_mov_b32 v{t}, v{x}"); yield
        for x, t in zip(xs, ts): a(f"{op} v{x}, v{t}"); yield
        for x, t in zip(xs, ts): a(f"v_add_f32 v{x}, v{x}, v{t}"); yield

def ln_finish_gen(a, mean, var, sEps):
    a(f"v_max_f32 v{var}, 0, v{var}"); yield
    a(f"v_cvt_pk_bf16_f32 v{var}, v{var}, v{mean}"); yield
    a(f"v_and_b32 v{mean}, 0xffff0000, v{var}"); yield
    a(f"v_lshlrev_b32 v{var}, 16, v{var}"); yield
    a(f"v_add_f32 v{var}, s{sEps}, v{var}"); yield
    a(f"v_cvt_pk_bf16_f32 v{var}, v{var}, v{var}"); yield
    a(f"v_and_b32 v{var}, 0xffff0000, v{var}"); yield
    a(f"v_sqrt_f32 v{var}, v{var}"); yield
    a(f"v_cvt_pk_bf16_f32 v{var}, v{var}, v{var}"); yield
    a(f"v_and_b32 v{var}, 0xffff0000, v{var}"); yield
    a(f"v_rcp_f32 v{var}, v{var}"); yield

def run(gen):
    for _ in gen: pass

class Filler:
    def __init__(self): self.q = []
    def add(self, g): self.q.append(g)
    def step(self, n=1):
        for _ in range(n):
            while self.q:
                try:
                    next(self.q[0]); break
                except StopIteration:
                    self.q.pop(0)
    def drain(self):
        while self.q:
            run(self.q.pop(0))

def mask(a, n):
    if n >= 64: a("s_mov_b64 exec, -1")
    elif n > 32:
        a("s_mov_b32 exec_lo, -1"); a(f"s_mov_b32 exec_hi, {(1 << (n-32)) - 1:#x}")
    elif n == 32:
        a("s_mov_b32 exec_lo, -1"); a("s_mov_b32 exec_hi, 0")
    else: a(f"s_mov_b64 exec, {(1 << n) - 1:#x}")

Z1L = 73728
SYNC = 161792

def gen_k1(name="k1_kernel", prof=False, fused=False):
    K1X = os.environ.get("K1X", "")
    a = Asm()
    ST = Stamps(a, enabled=prof)
    WSZ = WS_SIZE_DBG if prof else WS_END
    V = Alloc(1, 256, "v")
    sX, sWIN, sK, sV, sSHK, sWS, sDBG, sWSP, sSSM = 4, 8, 12, 16, 20, 24, 28, 32, 36
    sWOU = 84 if not prof else 84
    sRB, sJ, sW, sFH, sSH, sKH, sST0, sST = 40, 41, 42, 43, 44, 45, 46, 47
    sT0, sT1, sT2, sT3 = 48, 49, 50, 51
    sXOFF, sWOFF2, sWOFF1 = 52, 53, 54
    sEPS, sONES, sU = 55, 56, 57
    sNC2 = 58
    sM0X, sM0W = 60, 61
    sZ1B, sKKA, sKKB, sD0 = 62, 63, 64, 65
    sXC, sH = 66, 67
    (sEXW, sEXR, sCSW, sCSR, sXSW, sXSR, sZSW, sZPB, sZRB, sXST, sZ1S0, sZ1S1, sZ1S2, sKVB) = range(70, 84)
    sZ2L = [88, 63]; sZ2G = [64, 67]; sL2B = 66
    a.raw(f".globl {name}\n.p2align 8\n.type {name},@function\n{name}:")
    a(f"s_cmp_ge_u32 s2, 256")
    a(f"s_cbranch_scc1 {name}_end")
    srds = ((sX, 'q', SZ_X), (sWIN, 'win', SZ_WIN), (sK, 'k', SZ_X), (sV, 'v', SZ_X), (sSHK, 'shk', 5120), (sWS, 'ws', WSZ),
            (sDBG, 'dbg', 256), (sWSP, 'wsp', SZ_WSP), (sSSM, 'ssmk', SZ_SSMK), (sWOU, 'wout', SZ_WOUT))
    for srd, key, _ in srds:
        a(f"s_load_dwordx2 s[{srd}:{srd+1}], s[0:1], {KA[key]}")
    ST("start")
    vL = V(); vQ = V(); vP = V()
    t0, t1, t2 = V(), V(), V()
    vKV = V()
    a(f"v_lshrrev_b32 v{vQ}, 6, v0")
    a(f"v_and_b32 v{vL}, 63, v0")
    a(f"v_readfirstlane_b32 s{sW}, v{vQ}")
    a(f"v_lshrrev_b32 v{vQ}, 4, v{vL}")
    a(f"v_and_b32 v{vP}, 15, v{vL}")
    a(f"s_and_b32 s{sT0}, s2, 7")
    a(f"s_lshr_b32 s{sT1}, s2, 3")
    a(f"s_lshr_b32 s{sXC}, s{sT0}, 1")
    a(f"s_and_b32 s{sH}, s{sT0}, 1")
    a(f"s_lshl_b32 s{sRB}, s{sXC}, 3")
    a(f"s_and_b32 s{sT0}, s{sT1}, 7")
    a(f"s_add_u32 s{sRB}, s{sRB}, s{sT0}")
    a(f"s_lshl_b32 s{sJ}, s{sH}, 2")
    a(f"s_lshr_b32 s{sT0}, s{sT1}, 3")
    a(f"s_add_u32 s{sJ}, s{sJ}, s{sT0}")
    a(f"s_mul_i32 s{sXOFF}, s{sRB}, {64*1280}")
    a(f"s_mul_i32 s{sWOFF1}, s{sJ}, 192")
    a(f"s_add_u32 s{sWOFF2}, s{sWOFF1}, {768*2}")
    a(f"s_lshl_b32 s{sM0X}, s{sW}, 11")
    a(f"s_mul_i32 s{sM0W}, s{sW}, 3072")
    for srd, _, size in srds[:2]:
        a(f"s_mov_b32 s{srd+2}, {size}")
        a(f"s_mov_b32 s{srd+3}, {SRD3:#x}")
    TMP = V(28, 4)
    vTO = V()
    vDummy = V()
    vXD = [V(), V()]
    a(f"s_lshl_b32 s{sT0}, s{sW}, 3")
    for i in range(2):
        a(f"v_add_u32 v{t0}, s{sT0}, v{vQ}")
        if i: a(f"v_add_u32 v{t0}, 4, v{t0}")
        a(f"v_and_b32 v{t1}, 15, v{t0}")
        a(f"v_xor_b32 v{t1}, v{t1}, v{vP}")
        a(f"v_mul_u32_u24 v{t0}, 1280, v{t0}")
        a(f"v_lshl_add_u32 v{vXD[i]}, v{t1}, 4, v{t0}")
    vWD = [V(), V(), V()]
    a(f"s_mul_i32 s{sT0}, s{sW}, 192")
    for i in range(3):
        a(f"v_add_u32 v{t0}, s{sT0}, v{vL}")
        if i: a(f"v_add_u32 v{t0}, {64*i}, v{t0}")
        a(f"v_mul_u32_u24 v{t1}, 43691, v{t0}")
        a(f"v_lshrrev_b32 v{t1}, 19, v{t1}")
        a(f"v_mul_u32_u24 v{t2}, 12, v{t1}")
        a(f"v_sub_u32 v{t0}, v{t0}, v{t2}")
        a(f"v_lshrrev_b32 v{t2}, 2, v{t1}")
        a(f"v_and_b32 v{t2}, 2, v{t2}")
        a(f"v_xor_b32 v{t0}, v{t0}, v{t2}")
        a(f"v_mul_u32_u24 v{t1}, 3072, v{t1}")
        a(f"v_lshl_add_u32 v{vWD[i]}, v{t0}, 4, v{t1}")
    sSCX = [90, 91, 92, 93, 94]; sSCW = [95, 96, 97, 98, 99]
    a(f"s_add_u32 s{sT0}, s{sRB}, s{sJ}")
    a(f"s_mul_i32 s{sT1}, s{sT0}, 52")
    a(f"s_lshr_b32 s{sT1}, s{sT1}, 8")
    a(f"s_mul_i32 s{sT1}, s{sT1}, 5")
    a(f"s_sub_u32 s{sT3}, s{sT0}, s{sT1}")
    if "norot" in K1X: a(f"s_mov_b32 s{sT3}, 0")
    if "rot2" in K1X: a(f"s_and_b32 s{sT3}, s{sT0}, 1")
    if "rot4" in K1X: a(f"s_and_b32 s{sT3}, s{sT0}, 3")
    if "rotj" in K1X: a(f"s_and_b32 s{sT3}, s{sJ}, 3")
    if "rotr" in K1X:
        a(f"s_and_b32 s{sT3}, s{sRB}, 1")
        a(f"s_lshl_b32 s{sT3}, s{sT3}, 1")
    def sc_regs(p_):
        a(f"s_add_u32 s{sT1}, s{sT3}, {p_}")
        a(f"s_sub_u32 s{sT2}, s{sT1}, 5")
        a(f"s_cmp_ge_u32 s{sT1}, 5")
        a(f"s_cselect_b32 s{sT1}, s{sT2}, s{sT1}")
        a(f"s_lshl_b32 s{sSCX[p_]}, s{sT1}, 8")
        a(f"s_mul_i32 s{sSCW[p_]}, s{sT1}, {128*3072}")
    sc_regs(0); sc_regs(1)
    x_last = {}; w_last = {}
    def dma_x_g(sc):
        for i in range(2):
            a(f"s_add_u32 s{sD0}, s{sXOFF}, s{sSCX[sc]}")
            a(f"s_add_u32 m0, s{sM0X}, {XR + sc*16384 + i*1024}")
            x_last[sc] = a.vmem(f"buffer_load_dwordx4 v{vXD[i]}, s[{sX}:{sX+3}], s{sD0} offen lds")
            yield
    def wbase(q): return WR + (q % 3)*SLOT
    def dma_w_g(q):
        sc = q % 5
        for i in range(3):
            a(f"s_add_u32 s{sD0}, s{sWOFF2 if q < 5 else sWOFF1}, s{sSCW[sc]}")
            a(f"s_add_u32 m0, s{sM0W}, {wbase(q) + i*1024}")
            w_last[q] = a.vmem(f"buffer_load_dwordx4 v{vWD[i]}, s[{sWIN}:{sWIN+3}], s{sD0} offen lds")
            yield
    def dma_x(sc): run(dma_x_g(sc))
    def dma_w(q): run(dma_w_g(q))
    a("s_waitcnt lgkmcnt(0)")
    ST("kernarg")
    dma_x(0); dma_w(0)
    sTAG = 100
    a(f"s_mov_b32 s{sT0}, {WS_EPO}")
    a(f"s_load_dwordx2 s[{sTAG}:{sTAG+1}], s[{sWS}:{sWS+1}], s{sT0}")
    for p_ in range(2, 5): sc_regs(p_)
    for srd, _, size in srds[2:]:
        a(f"s_mov_b32 s{srd+2}, {size}")
        a(f"s_mov_b32 s{srd+3}, {SRD3:#x}")
    a(f"v_lshlrev_b32 v{vTO}, 7, v{vL}")
    if fused:
        a(f"v_mov_b32 v{t0}, {SYNC}")
        a(f"v_mov_b32 v{TMP}, 0"); a(f"v_mov_b32 v{TMP+1}, 0")
        a.ds(f"ds_write_b64 v{t0}, {P(TMP)}")
    if "late1" not in K1X:
        a("s_barrier")
        dma_x(1); dma_w(1)
    def kv_dma():
        a(f"v_mul_u32_u24 v{t0}, 1280, v{vRP}")
        a(f"v_lshl_add_u32 v{t0}, v{vPP}, 4, v{t0}")
        a(f"s_mul_i32 s{sT3}, s{sJ}, 160")
        a(f"s_add_u32 s{sT3}, s{sT3}, s{sXOFF}")
        for rnd in range(3):
            n0 = 8*rnd
            if rnd == 0:
                a(f"s_mul_i32 s{sT0}, s{sW}, {6*1280}")
                a(f"s_add_u32 s{sT0}, s{sT0}, s{sT3}")
                a(f"s_sub_i32 s{sT0}, s{sT0}, {3*1280}")
                a(f"s_cmp_lt_i32 s{sT0}, 0")
                a(f"s_cselect_b32 s{sT1}, {3*1280}, 0")
                a(f"s_add_u32 s{sT0}, s{sT0}, s{sT1}")
                a(f"v_subrev_u32 v{t1}, s{sT1}, v{t0}")
                a(f"s_mul_i32 s{sT2}, s{sW}, 960")
                a(f"s_add_u32 m0, s{sT2}, {KS}")
                mask(a, 60)
                a.vmem(f"buffer_load_dwordx4 v{t1}, s[{sK}:{sK+3}], s{sT0} offen lds")
                mask(a, 64)
            elif rnd == 1:
                lv = a.newlabel("k1_kvv"); le = a.newlabel("k1_kve")
                a(f"s_cmp_ge_u32 s{sW}, 4")
                mask(a, 60)
                a(f"s_cbranch_scc1 {lv}")
                a(f"s_mul_i32 s{sT0}, s{sW}, {6*1280}")
                a(f"s_add_u32 s{sT0}, s{sT0}, s{sT3}")
                a(f"s_add_u32 s{sT0}, s{sT0}, {45*1280}")
                a(f"s_mul_i32 s{sT2}, s{sW}, 960")
                a(f"s_add_u32 m0, s{sT2}, {KS + 8*960}")
                a(f"buffer_load_dwordx4 v{t0}, s[{sK}:{sK+3}], s{sT0} offen lds")
                a(f"s_branch {le}")
                a.label(lv)
                a(f"s_sub_u32 s{sT1}, s{sW}, 4")
                a(f"s_mul_i32 s{sT0}, s{sT1}, {6*1280}")
                a(f"s_add_u32 s{sT0}, s{sT0}, s{sT3}")
                a(f"s_mul_i32 s{sT2}, s{sT1}, 960")
                a(f"s_add_u32 m0, s{sT2}, {VS}")
                a(f"buffer_load_dwordx4 v{t0}, s[{sV}:{sV+3}], s{sT0} offen lds")
                a.label(le)
                a.vm -= 1
                mask(a, 64)
            else:
                a(f"s_add_u32 s{sT1}, s{sW}, 4")
                a(f"s_mul_i32 s{sT0}, s{sT1}, {6*1280}")
                a(f"s_add_u32 s{sT0}, s{sT0}, s{sT3}")
                a(f"s_mul_i32 s{sT2}, s{sT1}, 960")
                a(f"s_add_u32 m0, s{sT2}, {VS}")
                mask(a, 60)
                a.vmem(f"buffer_load_dwordx4 v{t0}, s[{sV}:{sV+3}], s{sT0} offen lds")
                mask(a, 64)
            yield
    lab = a.newlabel("k1_shk")
    a(f"s_cmp_lg_u32 s{sW}, 7")
    a(f"s_cbranch_scc1 {lab}")
    a(f"v_lshlrev_b32 v{t0}, 4, v{vL}")
    a(f"s_mul_i32 s{sT0}, s{sJ}, 640")
    a(f"s_mov_b32 m0, {SHKL}")
    mask(a, 40)
    a(f"buffer_load_dwordx4 v{t0}, s[{sSHK}:{sSHK+3}], s{sT0} offen lds")
    a.vm -= 1
    mask(a, 64)
    a.label(lab)
    a(f"s_and_b32 s{sFH}, s{sW}, 1")
    a(f"s_lshr_b32 s{sSH}, s{sW}, 1")
    a(f"s_and_b32 s{sSH}, s{sSH}, 1")
    a(f"s_lshr_b32 s{sKH}, s{sW}, 2")
    a(f"s_xor_b32 s{sST0}, s{sFH}, s{sKH}")
    a(f"s_lshl_b32 s{sST}, s{sSH}, 1")
    a(f"s_add_u32 s{sST}, s{sST}, s{sST0}")
    a(f"s_mov_b32 s{sEPS}, {f32(1e-5):#x}")
    a(f"s_mov_b32 s{sONES}, 0x3f803f80")
    a(f"s_mov_b32 s{sNC2}, {f32(-C2):#x}")
    a(f"s_mov_b32 s{sNC2+1}, {f32(-C2):#x}")
    vRP = V(); vPP = V()
    _pre = [V(), V(), V()]
    XF = V(80, 4)
    def xf(sc, kk, sl): return XF + ((sc*2 + kk)*2 + sl)*4
    WF = V(48, 4)
    def wf(b, kk, ft): return WF + ((b*2 + kk)*3 + ft)*4
    ACC = V(24, 4)
    def acc(ft, sl): return ACC + (ft*2 + sl)*4
    Z2V = V(12, 4)
    KX = V(4, 4)
    KROW = [XF + 4*r for r in range(5)]
    VROW = [XF + 20, XF + 24]
    vXA = [[_pre[0], _pre[1]], [_pre[2], V()]]
    vWA = [[V(), V(), V()], [V(), V(), V()]]
    a(f"s_lshl_b32 s{sT0}, s{sKH}, 1")
    a(f"s_add_u32 s{sKKA}, s{sT0}, s{sSH}")
    a(f"s_xor_b32 s{sKKB}, s{sKKA}, 1")
    a(f"v_xor_b32 v{t0}, v{vQ}, v{vP}")
    a(f"v_lshlrev_b32 v{t2}, 8, v{vP}")
    a(f"s_lshl_b32 s{sT0}, s{sSH}, 13")
    a(f"s_lshl_b32 s{sT1}, s{sST0}, 12")
    a(f"s_add_u32 s{sT2}, s{sT0}, s{sT1}")
    a(f"s_xor_b32 s{sT1}, s{sT1}, 4096")
    a(f"s_add_u32 s{sT3}, s{sT0}, s{sT1}")
    for kkidx, sKK in ((0, sKKA), (1, sKKB)):
        a(f"s_lshl_b32 s{sT0}, s{sKK}, 2")
        a(f"v_xor_b32 v{t1}, s{sT0}, v{t0}")
        a(f"v_lshl_add_u32 v{t1}, v{t1}, 4, v{t2}")
        a(f"v_add_u32 v{vXA[kkidx][0]}, s{sT2}, v{t1}")
        a(f"v_add_u32 v{vXA[kkidx][1]}, s{sT3}, v{t1}")
    a(f"v_lshrrev_b32 v{t1}, 2, v{vP}")
    a(f"v_lshl_add_u32 v{t0}, v{vQ}, 3, v{t1}")
    a(f"v_mul_u32_u24 v{t0}, 192, v{t0}")
    a(f"v_and_b32 v{t1}, 3, v{vP}")
    a(f"v_lshl_add_u32 v{t0}, v{t1}, 3, v{t0}")
    a(f"v_and_b32 v{t1}, 1, v{vQ}")
    a(f"s_mul_i32 s{sT3}, s{sFH}, 3")
    a(f"s_mul_i32 s{sT1}, s{sKKA}, 6144")
    a(f"s_add_u32 s{sT1}, s{sT1}, {WR}")
    a(f"s_mul_i32 s{sT2}, s{sKKB}, 6144")
    a(f"s_add_u32 s{sT2}, s{sT2}, {WR}")
    for ft in range(3):
        a(f"s_add_u32 s{sT0}, s{sT3}, {ft}")
        a(f"v_xor_b32 v{t2}, s{sT0}, v{t1}")
        a(f"v_lshl_add_u32 v{t2}, v{t2}, 5, v{t0}")
        a(f"v_add_u32 v{vWA[0][ft]}, s{sT1}, v{t2}")
        a(f"v_add_u32 v{vWA[1][ft]}, s{sT2}, v{t2}")
    CSA = V(12, 4)
    XSA = V(4, 4); XQA = V(4, 4)
    ONE = V(4, 4)
    for i in range(4): a(f"v_mov_b32 v{ONE+i}, s{sONES}")
    vC1 = XSA + 2
    vMR = XQA; vM, vR = vMR, vMR + 1
    vRB = XQA + 2
    a(f"v_mul_u32_u24 v{vRP}, 205, v{vL}")
    a(f"v_lshrrev_b32 v{vRP}, 11, v{vRP}")
    a(f"v_mul_u32_u24 v{t0}, 10, v{vRP}")
    a(f"v_sub_u32 v{vPP}, v{vL}, v{t0}")
    a(f"s_lshl_b32 s{sT0}, s{sW}, 3")
    a(f"v_lshl_add_u32 v{t0}, v{vRP}, 1, s{sT0}")
    a(f"v_min_u32 v{t0}, 62, v{t0}")
    a(f"v_mul_u32_u24 v{t0}, 160, v{t0}")
    a(f"v_lshl_add_u32 v{vKV}, v{vPP}, 4, v{t0}")

    kv = {}
    zfin = {}
    EARLY = fused and 'late' not in K1X
    vTO2 = KX + 3
    a(f"v_lshlrev_b32 v{vTO2}, 10, v{vL}")
    def kv_loads():
        a(f"v_add_u32 v{t0}, {KS}, v{vKV}")
        for i in range(5):
            a.ds(f"ds_read_b128 v[{KROW[i]}:{KROW[i]+3}], v{t0} offset:{160*i}")
        a(f"v_add_u32 v{t0}, {VS}, v{vKV}")
        a.ds(f"ds_read_b128 v[{VROW[0]}:{VROW[0]+3}], v{t0}")
        kv['last'] = a.ds(f"ds_read_b128 v[{VROW[1]}:{VROW[1]+3}], v{t0} offset:160")

    def kv_compute():
        KT = XF + 28
        kf = KT; wp = KT + 10; r0 = KT + 18; r1 = KT + 20; vf0 = KT + 22; vf1 = KT + 24; o = KT + 26
        SK = KT + 28
        vTA = vKV
        a.wait_lg(kv['last']); yield
        a(f"v_mul_u32_u24 v{vTA}, {8*144}, v{vPP}"); yield
        a(f"v_lshlrev_b32 v{o}, 2, v{vRP}"); yield
        a(f"v_sub_u32 v{vTA}, v{vTA}, v{o}"); yield
        a(f"s_lshl_b32 s{sT0}, s{sW}, 4")
        a(f"s_add_u32 s{sT0}, s{sT0}, {TB + 12}")
        a(f"v_add_u32 v{vTA}, s{sT0}, v{vTA}"); yield
        a(f"v_lshlrev_b32 v{vPP}, 6, v{vPP}"); yield
        a(f"v_add_u32 v{vPP}, {SHKL}, v{vPP}"); yield
        for i in range(4):
            if i % 2 == 0:
                a.ds(f"ds_read_b128 v[{SK}:{SK+3}], v{vPP} offset:{(i//2)*32}")
                d = a.ds(f"ds_read_b128 v[{SK+4}:{SK+7}], v{vPP} offset:{(i//2)*32 + 16}"); yield
            for r in range(5):
                a(f"v_lshlrev_b32 v{kf+2*r}, 16, v{KROW[r]+i}"); yield
                a(f"v_and_b32 v{kf+2*r+1}, 0xffff0000, v{KROW[r]+i}"); yield
            if i % 2 == 0:
                a.wait_lg(d)
            for t in range(4):
                ra = SK + 2*(2*(i % 2)) + (t >> 1); rb_ = SK + 2*(2*(i % 2) + 1) + (t >> 1)
                if t & 1:
                    a(f"v_and_b32 v{wp+2*t}, 0xffff0000, v{ra}"); yield
                    a(f"v_and_b32 v{wp+2*t+1}, 0xffff0000, v{rb_}"); yield
                else:
                    a(f"v_lshlrev_b32 v{wp+2*t}, 16, v{ra}"); yield
                    a(f"v_lshlrev_b32 v{wp+2*t+1}, 16, v{rb_}"); yield
            for t in range(4):
                for (dst, top) in ((r0, 3), (r1, 4)):
                    if t == 0: yield from pkop(a, "mul", dst, kf+2*top, wp, pk=True)
                    else: yield from pkop(a, "fma", dst, kf+2*(top-t), wp+2*t, dst, pk=True)
            for (vf, rr) in ((vf0, 0), (vf1, 1)):
                a(f"v_lshlrev_b32 v{vf}, 16, v{VROW[rr]+i}"); yield
                a(f"v_and_b32 v{vf+1}, 0xffff0000, v{VROW[rr]+i}"); yield
            yield from pkop(a, "mul", r0, r0, vf0, pk=True)
            yield from pkop(a, "mul", r1, r1, vf1, pk=True)
            a(f"v_cvt_pk_bf16_f32 v{o}, v{r1}, v{r0}"); yield
            a(f"v_cvt_pk_bf16_f32 v{o+1}, v{r1+1}, v{r0+1}"); yield
            a(f"s_mov_b32 exec_hi, 0xff")
            a.ds(f"ds_write_b32 v{vTA}, v{o} offset:{(2*i)*144}")
            a.ds(f"ds_write_b32 v{vTA}, v{o+1} offset:{(2*i+1)*144}")
            a(f"s_mov_b32 exec_hi, -1"); yield

    def kv_store():
        for rnd in range(2):
            T4 = (TMP + 8 + 4*rnd) if EARLY else (XF + 72 + 4*rnd)
            a(f"s_lshl_b32 s{sT0}, s{sW}, 3")
            if rnd: a(f"s_add_u32 s{sT0}, s{sT0}, 64")
            a(f"v_lshrrev_b32 v{t0}, 3, v{vL}")
            a(f"v_add_u32 v{t0}, s{sT0}, v{t0}"); yield
            a(f"v_and_b32 v{t1}, 7, v{vL}")
            a(f"v_lshlrev_b32 v{t1}, 4, v{t1}"); yield
            a(f"v_mul_u32_u24 v{t2}, 144, v{t0}")
            a(f"v_add_u32 v{t2}, v{t2}, v{t1}")
            a(f"v_add_u32 v{t2}, {TB}, v{t2}"); yield
            d = a.ds(f"ds_read_b128 v[{T4}:{T4+3}], v{t2}"); yield
            a(f"v_lshlrev_b32 v{t0}, 12, v{t0}")
            a(f"v_add_u32 v{t0}, v{t0}, v{t1}"); yield
            a.wait_lg(d)
            if rnd == 0:
                a.vmem(f"buffer_store_dwordx4 v[{T4}:{T4+3}], v{t0}, s[{sWS}:{sWS+3}], s{sKVB} offen"); yield
            else:
                lab = a.newlabel("k1_kvskip")
                a(f"s_cmp_ge_u32 s{sW}, 2")
                a(f"s_cbranch_scc1 {lab}")
                a(f"buffer_store_dwordx4 v[{T4}:{T4+3}], v{t0}, s[{sWS}:{sWS+3}], s{sKVB} offen")
                a.vm -= 1
                a.label(lab); yield

    def reads_g(p):
        sc = p % 5; b = p & 1
        so = (p % 3)*SLOT
        for kk in range(2):
            for ft in range(3):
                r = wf(b, kk, ft)
                a.ds(f"ds_read_b64_tr_b16 v[{r}:{r+1}], v{vWA[kk][ft]} offset:{so}"); yield
                a.ds(f"ds_read_b64_tr_b16 v[{r+2}:{r+3}], v{vWA[kk][ft]} offset:{so + 768}"); yield
        if p < 5:
            if p == 4:
                for kk in range(2):
                    for sl in range(2):
                        a(f"v_add_u32 v{vXA[kk][sl]}, 0x10000, v{vXA[kk][sl]}")
            for kk in range(2):
                for sl in range(2):
                    off = XR + (sc*16384 if p < 4 else 0)
                    a.ds(f"ds_read_b128 v[{xf(sc,kk,sl)}:{xf(sc,kk,sl)+3}], v{vXA[kk][sl]} offset:{off}"); yield
    def reads(p): run(reads_g(p))

    def mfmas(p, fill, nfill, dmaf=None):
        sc = p % 5; b = p & 1
        first = (sc == 0)
        ops = []
        for kk in range(2):
            for ft in range(3):
                for sl in range(2):
                    c = "0" if (first and kk == 0) else f"v[{acc(ft,sl)}:{acc(ft,sl)+3}]"
                    ops.append(f"v_mfma_f32_16x16x32_bf16 v[{acc(ft,sl)}:{acc(ft,sl)+3}], v[{wf(b,kk,ft)}:{wf(b,kk,ft)+3}], v[{xf(sc,kk,sl)}:{xf(sc,kk,sl)+3}], {c}")
                if kk == 0 and "nostat" not in K1X:
                    c = "0" if first else f"v[{CSA+4*ft}:{CSA+4*ft+3}]"
                    ops.append(f"v_mfma_f32_16x16x32_bf16 v[{CSA+4*ft}:{CSA+4*ft+3}], v[{wf(b,0,ft)}:{wf(b,0,ft)+3}], v[{ONE}:{ONE+3}], {c}")
            if p < 5 and "nostat" not in K1X:
                x = xf(sc, kk, 0)
                c = "0" if (first and kk == 0) else f"v[{XSA}:{XSA+3}]"
                ops.append(f"v_mfma_f32_16x16x32_bf16 v[{XSA}:{XSA+3}], v[{ONE}:{ONE+3}], v[{x}:{x+3}], {c}")
                c = "0" if (first and kk == 0) else f"v[{XQA}:{XQA+3}]"
                ops.append(f"v_mfma_f32_16x16x32_bf16 v[{XQA}:{XQA+3}], v[{x}:{x+3}], v[{x}:{x+3}], {c}")
        nd = 0
        for oi, o in enumerate(ops):
            a(o)
            if dmaf is not None and oi % 3 == 1: dmaf.step(1)
            fill.step(nfill)
        if dmaf is not None: dmaf.drain()

    def exchange_write(ps, dst):
        T = TMP
        a(f"v_lshl_add_u32 v{t0}, v{vL}, 4, s{sEXW}")
        a(f"v_lshl_add_u32 v{t1}, v{vQ}, 4, s{sCSW}")
        for ft in range(3):
            a.ds(f"ds_write_b128 v{t0}, v[{acc(ft,1)}:{acc(ft,1)+3}] offset:{ft*1024}")
        a(f"s_mov_b32 exec_lo, 0x00010001")
        a(f"s_mov_b32 exec_hi, 0x00010001")
        for ft in range(3):
            a.ds(f"ds_write_b128 v{t1}, v[{CSA+4*ft}:{CSA+4*ft+3}] offset:{ps*1536 + ft*64}")
        a(f"s_mov_b64 exec, -1")
        if ps == 0:
            a(f"v_and_b32 v{T}, 3, v{vP}")
            a(f"v_cmp_eq_u32 vcc, 1, v{T}")
            a(f"v_cndmask_b32 v{XSA+1}, v{XQA}, v{XQA+1}, vcc")
            a(f"v_cmp_eq_u32 vcc, 2, v{T}")
            a(f"v_cndmask_b32 v{XSA+1}, v{XSA+1}, v{XQA+2}, vcc")
            a(f"v_cmp_eq_u32 vcc, 3, v{T}")
            a(f"v_cndmask_b32 v{XSA+1}, v{XSA+1}, v{XQA+3}, vcc")
            a(f"v_lshl_add_u32 v{t2}, v{vP}, 3, s{sXSW}")
            a(f"s_mov_b32 exec_lo, 0x00F0000F")
            a(f"s_mov_b32 exec_hi, 0xF0000F00")
            a.ds(f"ds_write_b64 v{t2}, {P(XSA)}")
            a(f"s_mov_b64 exec, -1")
        for ft in range(3):
            for h in range(2):
                a(f"v_pk_add_f32 {P(dst+4*ft+2*h)}, {P(acc(ft,0)+2*h)}, 0")
        if ps == 0:
            a(f"v_mov_b32 v{vC1}, {f32(-C1):#x}"); a(f"v_mov_b32 v{vC1+1}, {f32(-C1):#x}")

    def fold_gelu(ps, dst, E, X, C):
        a(f"v_lshl_add_u32 v{t0}, v{vL}, 4, s{sEXR}")
        if ps == 0:
            a(f"v_lshl_add_u32 v{t1}, v{vP}, 3, s{sXSR}")
            a.ds(f"ds_read_b64 {P(X)}, v{t1}")
            dx = a.ds(f"ds_read_b64 {P(X+2)}, v{t1} offset:128")
        ids = [a.ds(f"ds_read_b128 v[{E+4*ft}:{E+4*ft+3}], v{t0} offset:{ft*1024}") for ft in range(3)]
        a(f"v_lshl_add_u32 v{t2}, v{vQ}, 4, s{sCSR}")
        cid = []
        for q in range(4):
            for ft in range(3):
                cid.append(a.ds(f"ds_read_b128 v[{C[q]+4*ft}:{C[q]+4*ft+3}], v{t2} offset:{ps*1536 + q*192 + ft*64}"))
        if ps == 0:
            a.wait_lg(dx)
            a(f"v_pk_add_f32 {P(vMR)}, {P(X)}, {P(X+2)}")
            a(f"v_mul_f32 v{vM}, {f32(1.0/640):#x}, v{vM}")
            a(f"v_mul_f32 v{vR}, {f32(1.0/640):#x}, v{vR}")
            a(f"v_fma_f32 v{vR}, -v{vM}, v{vM}, v{vR}")
            run(ln_finish_gen(a, vM, vR, sEPS))
            a(f"v_mov_b32 v{vRB}, v{vR}")
        a.wait_lg(ids[2])
        for i in range(0, 12, 2): a(f"v_pk_add_f32 {P(dst+i)}, {P(dst+i)}, {P(E+i)}")
        a.wait_lg(cid[5])
        for i in range(0, 12, 2): a(f"v_pk_add_f32 {P(C[0]+i)}, {P(C[0]+i)}, {P(C[1]+i)}")
        a.wait_lg(cid[11])
        for i in range(0, 12, 2): a(f"v_pk_add_f32 {P(C[2]+i)}, {P(C[2]+i)}, {P(C[3]+i)}")
        for i in range(0, 12, 2): a(f"v_pk_add_f32 {P(C[0]+i)}, {P(C[0]+i)}, {P(C[2]+i)}")
        for i in range(0, 12, 2):
            a(f"v_pk_fma_f32 {P(dst+i)}, {P(C[0]+i)}, {P(vMR)}, {P(dst+i)} op_sel_hi:[1,0,1] neg_lo:[0,1,0] neg_hi:[0,1,0]")
        for i in range(0, 12, 2): a(f"v_pk_mul_f32 {P(dst+i)}, {P(dst+i)}, {P(vRB)} op_sel_hi:[1,0]")
        T = E
        for i in range(0, 12, 2): a(f"v_pk_mul_f32 {P(T+i)}, {P(dst+i)}, {P(dst+i)}")
        for i in range(0, 12, 2): a(f"v_pk_fma_f32 {P(T+i)}, {P(T+i)}, s[{sNC2}:{sNC2+1}], {P(vC1)}")
        for i in range(0, 12, 2): a(f"v_pk_mul_f32 {P(T+i)}, {P(T+i)}, {P(dst+i)}")
        for i in range(12): a(f"v_exp_f32 v{T+i}, v{T+i}")
        for i in range(0, 12, 2): a(f"v_pk_add_f32 {P(T+i)}, {P(T+i)}, 1.0 op_sel_hi:[1,0]")
        for i in range(12): a(f"v_rcp_f32 v{T+i}, v{T+i}")
        for i in range(0, 12, 2): a(f"v_pk_mul_f32 {P(dst+i)}, {P(dst+i)}, {P(T+i)}")

    def z2_stats():
        T = TMP
        a(f"v_pk_add_f32 {P(T+6)}, {P(Z2V)}, {P(Z2V+2)}"); yield
        a(f"v_pk_mul_f32 {P(T+8)}, {P(Z2V)}, {P(Z2V)}"); yield
        a(f"v_pk_add_f32 {P(T+10)}, {P(Z2V+4)}, {P(Z2V+6)}"); yield
        a(f"v_pk_fma_f32 {P(T+8)}, {P(Z2V+2)}, {P(Z2V+2)}, {P(T+8)}"); yield
        a(f"v_pk_add_f32 {P(T+12)}, {P(Z2V+8)}, {P(Z2V+10)}"); yield
        a(f"v_pk_fma_f32 {P(T+8)}, {P(Z2V+4)}, {P(Z2V+4)}, {P(T+8)}"); yield
        a(f"v_pk_add_f32 {P(T+6)}, {P(T+6)}, {P(T+10)}"); yield
        a(f"v_pk_fma_f32 {P(T+8)}, {P(Z2V+6)}, {P(Z2V+6)}, {P(T+8)}"); yield
        a(f"v_pk_add_f32 {P(T+6)}, {P(T+6)}, {P(T+12)}"); yield
        a(f"v_pk_fma_f32 {P(T+8)}, {P(Z2V+8)}, {P(Z2V+8)}, {P(T+8)}"); yield
        a(f"v_pk_fma_f32 {P(T+8)}, {P(Z2V+10)}, {P(Z2V+10)}, {P(T+8)}"); yield
        a(f"v_add_f32 v{T}, v{T+6}, v{T+7}"); yield
        a(f"v_add_f32 v{T+1}, v{T+8}, v{T+9}"); yield
        a(f"v_lshl_add_u32 v{t0}, v{vP}, 3, s{sZSW}"); yield
        yield from reduce_g4_multi(a, [T, T+1], [T+4, T+5])
        a(f"s_mov_b64 exec, 0xffff")
        a.ds(f"ds_write_b64 v{t0}, {P(T)}")
        a(f"s_mov_b64 exec, -1"); yield

    def xst_store():
        a(f"s_or_b32 s{sT0}, s{sJ}, s{sFH}")
        a(f"s_cmp_eq_u32 s{sT0}, 0")
        a(f"v_lshlrev_b32 v{t0}, 3, v{vP}")
        a(f"s_cselect_b64 exec, 0xffff, 0")
        a.vmem(f"buffer_store_dwordx2 {P(vMR)}, v{t0}, s[{sWS}:{sWS+3}], s{sXST} offen" + (" sc1" if fused else ""))
        a(f"s_mov_b64 exec, -1")
        yield

    sGU = 89
    a(f"s_lshl_b32 s{sGU}, s2, 3")
    a(f"s_add_u32 s{sGU}, s{sGU}, s{sW}")
    def mall_touch(srd, nper, first, count):
        if "nomall" in K1X: return
        a(f"s_mul_i32 s{sT0}, s{sGU}, {nper*128}")
        a(f"s_add_u32 s{sT0}, s{sT0}, {first*128}")
        mask(a, count)
        a.vmem(f"buffer_load_dword v{vDummy}, v{vTO}, s[{srd}:{srd+3}], s{sT0} offen")
        mask(a, 64)

    def l2_touch_wsp(i):
        a(f"s_add_u32 s{sT0}, s{sL2B}, {i*128}")
        mask(a, 8)
        a.vmem(f"buffer_load_dword v{vDummy}, v{vTO2}, s[{sWSP}:{sWSP+3}], s{sT0} offen")
        mask(a, 64)

    def epoch_load():
        a(f"v_mov_b32 v{KX+2}, {WS_EPO}")
        zfin['ep'] = a.vmem(f"buffer_load_dwordx2 {P(KX)}, v{KX+2}, s[{sWS}:{sWS+3}], 0 offen sc1")

    def gen1(f):
        f(); yield

    SP = TMP + 20
    vFA = vXD[0]
    vDummy2 = vPP
    def stats_load():
        a(f"v_lshlrev_b32 v{vFA}, 4, v{vP}")
        a(f"v_lshl_add_u32 v{vFA}, v{vQ}, 11, v{vFA}")
        a.vmem(f"buffer_load_dwordx4 v[{SP}:{SP+3}], v{vFA}, s[{sWS}:{sWS+3}], s{sZRB} offen sc1")
        zfin['sp'] = a.vmem(f"buffer_load_dwordx4 v[{SP+4}:{SP+7}], v{vFA}, s[{sWS}:{sWS+3}], s{sZRB} offen offset:1024 sc1")
    def stats_check():
        a.wait_vm(zfin['sp'])
        lp = a.newlabel("k1_poll"); lp2 = a.newlabel("k1_polled")
        a(f"s_mov_b32 s{sD0}, 0")
        a.label(lp)
        a(f"s_add_u32 s{sD0}, s{sD0}, 1")
        a(f"s_cmp_gt_u32 s{sD0}, 100000")
        a(f"s_cbranch_scc1 {lp2}")
        a(f"v_cmp_ne_u32 vcc, s{sTAG}, v{SP+2}")
        a(f"v_cmp_ne_u32 s[{sT2}:{sT2+1}], s{sTAG+1}, v{SP+3}")
        a(f"s_or_b64 vcc, vcc, s[{sT2}:{sT2+1}]")
        a(f"v_cmp_ne_u32 s[{sT2}:{sT2+1}], s{sTAG}, v{SP+6}")
        a(f"s_or_b64 vcc, vcc, s[{sT2}:{sT2+1}]")
        a(f"v_cmp_ne_u32 s[{sT2}:{sT2+1}], s{sTAG+1}, v{SP+7}")
        a(f"s_or_b64 vcc, vcc, s[{sT2}:{sT2+1}]")
        if 'nopoll' in K1X: a("s_mov_b64 vcc, 0")
        a(f"s_cmp_eq_u64 vcc, 0")
        a(f"s_cbranch_scc1 {lp2}")
        a("s_sleep 4")
        a(f"buffer_load_dwordx4 v[{SP}:{SP+3}], v{vFA}, s[{sWS}:{sWS+3}], s{sZRB} offen sc1")
        a(f"buffer_load_dwordx4 v[{SP+4}:{SP+7}], v{vFA}, s[{sWS}:{sWS+3}], s{sZRB} offen offset:1024 sc1")
        a.vm -= 2
        a("s_waitcnt vmcnt(0)")
        a(f"s_branch {lp}")
        a.label(lp2)
    def z2_normalize():
        vZW = vRP
        a(f"s_lshl_b32 s{sT0}, s{sST}, 4")
        a(f"v_add_u32 v{vZW}, s{sT0}, v{vP}")
        a(f"v_mul_u32_u24 v{vZW}, 200, v{vZW}")
        a(f"v_lshl_add_u32 v{vZW}, v{vQ}, 3, v{vZW}")
        a(f"s_mul_i32 s{sT0}, s{sFH}, 96")
        a(f"s_add_u32 s{sT0}, s{sT0}, {ZT}")
        a(f"v_add_u32 v{vZW}, s{sT0}, v{vZW}")
        stats_check()
        lab = a.newlabel("k1_ep")
        a(f"s_xor_b32 s{sT0}, s{sW}, 1")
        a(f"s_or_b32 s{sT0}, s{sT0}, s{sJ}")
        a(f"s_cmp_lg_u32 s{sT0}, 0")
        a(f"s_cbranch_scc1 {lab}")
        a(f"v_mov_b32 v{t0}, 0")
        a(f"v_mov_b32 v{vDummy2}, 1")
        a(f"s_mov_b64 exec, 1")
        a(f"buffer_atomic_add v{vDummy2}, v{t0}, s[{sDBG}:{sDBG+3}], 0 offen sc0")
        a(f"s_mov_b64 exec, -1")
        a.vm -= 1
        a.label(lab)
        mq = TMP
        a(f"v_pk_add_f32 {P(mq)}, {P(SP)}, {P(SP+4)}")
        run(reduce_g4_multi(a, [mq, mq+1], [TMP+2, TMP+3]))
        a(f"v_mul_f32 v{mq}, {f32(1.0/768):#x}, v{mq}")
        a(f"v_mul_f32 v{mq+1}, {f32(1.0/768):#x}, v{mq+1}")
        a(f"v_fma_f32 v{mq+1}, -v{mq}, v{mq}, v{mq+1}")
        run(ln_finish_gen(a, mq, mq+1, sEPS))
        a(f"v_mov_b32 v{TMP+2}, v{mq+1}")
        for i in range(0, 12, 2):
            a(f"v_pk_add_f32 {P(Z2V+i)}, {P(Z2V+i)}, {P(mq)} op_sel_hi:[1,0] neg_lo:[0,1] neg_hi:[0,1]")
        for i in range(0, 12, 2):
            a(f"v_pk_mul_f32 {P(Z2V+i)}, {P(Z2V+i)}, {P(TMP+2)} op_sel_hi:[1,0]")
        for ft in range(3):
            a(f"v_cvt_pk_bf16_f32 v{TMP+8+2*ft}, v{Z2V+4*ft}, v{Z2V+4*ft+1}")
            a(f"v_cvt_pk_bf16_f32 v{TMP+8+2*ft+1}, v{Z2V+4*ft+2}, v{Z2V+4*ft+3}")
            a.ds(f"ds_write_b64 v{vZW}, {P(TMP+8+2*ft)} offset:{32*ft}")

    PUB = int(os.environ.get("PUB", "6"))
    NF5 = int(os.environ.get("NF5", "5"))
    vZR = KX; vZS = KX + 1
    def z2_addr():
        pass
        a(f"v_lshrrev_b32 v{vZR}, 1, v{vQ}")
        a(f"v_lshrrev_b32 v{t1}, 2, v{vP}")
        a(f"v_lshl_add_u32 v{vZR}, v{vZR}, 3, v{t1}")
        a(f"v_mul_u32_u24 v{vZR}, 200, v{vZR}")
        a(f"v_and_b32 v{t1}, 1, v{vQ}")
        a(f"v_lshl_add_u32 v{vZR}, v{t1}, 5, v{vZR}")
        a(f"v_and_b32 v{t1}, 3, v{vP}")
        a(f"v_lshl_add_u32 v{vZR}, v{t1}, 3, v{vZR}")
        a(f"v_lshlrev_b32 v{vZS}, 4, v{vL}")
    def z2_frag_stores():
        for rnd in range(2):
            lab = None
            if rnd == 1:
                lab = a.newlabel("k1_fr")
                a(f"s_cmp_ge_u32 s{sW}, 4")
                a(f"s_cbranch_scc1 {lab}")
            a(f"v_add_u32 v{t1}, s{sZ2L[rnd]}, v{vZR}")
            Tq = TMP + 4*rnd
            a(f"ds_read_b64_tr_b16 {P(Tq)}, v{t1}")
            a(f"ds_read_b64_tr_b16 {P(Tq+2)}, v{t1} offset:800")
            a("s_waitcnt lgkmcnt(0)")
            a(f"buffer_store_dwordx4 v[{Tq}:{Tq+3}], v{vZS}, s[{sWS}:{sWS+3}], s{sZ2G[rnd]} offen")
            if lab: a.label(lab)
    def publish_f1():
        a(f"s_lshl_b32 s{sT0}, s{sJ}, 8")
        a(f"s_lshl_b32 s{sT1}, s{sRB}, 3")
        a(f"s_add_u32 s{sT0}, s{sT0}, s{sT1}")
        a(f"s_add_u32 s{sT0}, s{sT0}, {WS_F1}")
        a(f"v_mov_b32 v{TMP}, s{sTAG}")
        a(f"v_mov_b32 v{TMP+1}, s{sTAG+1}")
        a(f"v_mov_b32 v{t0}, 0")
        a(f"s_cmp_eq_u32 s{sW}, 0")
        a(f"s_cselect_b64 exec, 1, 0")
        a(f"buffer_store_dwordx2 {P(TMP)}, v{t0}, s[{sWS}:{sWS+3}], s{sT0} offen sc1")
        a(f"s_mov_b64 exec, -1")

    fill = Filler()
    A, B, C_ = sT0, sT1, sT2
    a(f"s_mul_i32 s{sEXW}, s{sW}, 3072"); a(f"s_add_u32 s{sEXW}, s{sEXW}, {EX}")
    a(f"s_xor_b32 s{A}, s{sW}, 4"); a(f"s_mul_i32 s{sEXR}, s{A}, 3072"); a(f"s_add_u32 s{sEXR}, s{sEXR}, {EX}")
    a(f"s_lshl_b32 s{A}, s{sFH}, 2"); a(f"s_lshl_b32 s{B}, s{sSH}, 1"); a(f"s_add_u32 s{A}, s{A}, s{B}"); a(f"s_add_u32 s{A}, s{A}, s{sKH}")
    a(f"s_mul_i32 s{sCSW}, s{A}, 192"); a(f"s_add_u32 s{sCSW}, s{sCSW}, {CSUM}")
    a(f"s_mul_i32 s{sCSR}, s{sFH}, 768"); a(f"s_add_u32 s{sCSR}, s{sCSR}, {CSUM}")
    a(f"s_lshl_b32 s{A}, s{sST}, 1"); a(f"s_add_u32 s{A}, s{A}, s{sKH}"); a(f"s_lshl_b32 s{A}, s{A}, 7"); a(f"s_add_u32 s{sXSW}, s{A}, {XSUM}")
    a(f"s_lshl_b32 s{A}, s{sST}, 8"); a(f"s_add_u32 s{sXSR}, s{A}, {XSUM}")
    a(f"s_lshl_b32 s{A}, s{sST}, 7"); a(f"s_lshl_b32 s{B}, s{sFH}, 9"); a(f"s_add_u32 s{A}, s{A}, s{B}"); a(f"s_add_u32 s{sZSW}, s{A}, {ZSUM}")
    a(f"s_lshl_b32 s{A}, s{sRB}, 3"); a(f"s_add_u32 s{A}, s{A}, s{sJ}"); a(f"s_lshl_b32 s{B}, s{A}, 10"); a(f"s_add_u32 s{sZPB}, s{B}, {WS_ZST}")
    if fused: a(f"s_mov_b32 s{A}, 0")
    else: a(f"s_mul_i32 s{A}, s{A}, 12288")
    a(f"s_lshr_b32 s{B}, s{sST}, 1"); a(f"s_mul_i32 s{B}, s{B}, 6144"); a(f"s_add_u32 s{A}, s{A}, s{B}")
    a(f"s_and_b32 s{B}, s{sST}, 1"); a(f"s_lshl_b32 s{B}, s{B}, 8"); a(f"s_add_u32 s{A}, s{A}, s{B}"); a(f"s_add_u32 s{A}, s{A}, {Z1L if fused else WS_Z1F}")
    for ft, dst in enumerate((sZ1S0, sZ1S1, sZ1S2)):
        a(f"s_mul_i32 s{B}, s{sFH}, 3"); a(f"s_add_u32 s{B}, s{B}, {ft}")
        a(f"s_lshr_b32 s{C_}, s{B}, 1"); a(f"s_lshl_b32 s{C_}, s{C_}, 10"); a(f"s_and_b32 s{B}, s{B}, 1"); a(f"s_lshl_b32 s{B}, s{B}, 3")
        a(f"s_add_u32 s{dst}, s{A}, s{B}"); a(f"s_add_u32 s{dst}, s{dst}, s{C_}")
    a(f"s_lshl_b32 s{A}, s{sRB}, 13"); a(f"s_lshl_b32 s{B}, s{sST}, 8"); a(f"s_add_u32 s{A}, s{A}, s{B}"); a(f"s_add_u32 s{sZRB}, s{A}, {WS_ZST}")
    a(f"s_lshl_b32 s{A}, s{sRB}, 9"); a(f"s_lshl_b32 s{B}, s{sST}, 7"); a(f"s_add_u32 s{A}, s{A}, s{B}"); a(f"s_add_u32 s{sXST}, s{A}, {WS_XST}")
    a(f"s_mul_i32 s{A}, s{sJ}, {80*4096}"); a(f"s_lshl_b32 s{B}, s{sRB}, 7"); a(f"s_add_u32 s{A}, s{A}, s{B}"); a(f"s_add_u32 s{sKVB}, s{A}, {WS_KVT}")
    a(f"s_lshr_b32 s{A}, s2, 3"); a(f"s_lshl_b32 s{A}, s{A}, 3"); a(f"s_add_u32 s{A}, s{A}, s{sW}"); a(f"s_lshl_b32 s{A}, s{A}, 13")
    a(f"s_lshl_b32 s{B}, s{sXC}, 21"); a(f"s_add_u32 s{sL2B}, s{A}, s{B}")
    for rnd in range(2):
        a(f"s_add_u32 s{sT3}, s{sW}, {8*rnd}")
        a(f"s_mul_i32 s{A}, s{sT3}, 43"); a(f"s_lshr_b32 s{A}, s{A}, 7")
        a(f"s_mul_i32 s{B}, s{A}, 3"); a(f"s_sub_u32 s{B}, s{sT3}, s{B}")
        a(f"s_mul_i32 s{A}, s{A}, {16*200}"); a(f"s_lshl_b32 s{B}, s{B}, 6"); a(f"s_add_u32 s{A}, s{A}, s{B}")
        a(f"s_add_u32 s{sZ2L[rnd]}, s{A}, {ZT}")
        a(f"s_lshl_b32 s{A}, s{sJ}, 7"); a(f"s_lshl_b32 s{B}, s{sRB}, 2"); a(f"s_add_u32 s{A}, s{A}, s{B}"); a(f"s_mul_i32 s{A}, s{A}, 3")
        a(f"s_add_u32 s{A}, s{A}, s{sT3}"); a(f"s_lshl_b32 s{A}, s{A}, 10"); a(f"s_add_u32 s{sZ2G[rnd]}, s{A}, {WS_Z2F}")
    if "pro" in K1X: ST("setup")
    a.wait_vm(max(w_last[0], x_last[0]))
    if "pro" in K1X: ST("w0arr")
    a("s_waitcnt lgkmcnt(0)")
    a(f"s_add_u32 s{sTAG}, s{sTAG}, 1")
    a(f"s_addc_u32 s{sTAG+1}, s{sTAG+1}, 0")
    a("s_barrier")
    ST("d0")
    reads(0)
    if "late1" in K1X: dma_x(1); dma_w(1)
    dma_x(2); dma_w(2)
    for p in range(10):
        a.comment(f"---------------- iteration {p}")
        if p + 1 < 10:
            need = w_last[p+1]
            if p + 1 < 5: need = max(need, x_last[p+1])
            a.wait_vm(need)
        if "f5" in K1X and p in (5, 6): ST(f"w{p}")
        a("s_waitcnt lgkmcnt(0)")
        a("s_barrier")
        if ("pro" not in K1X or p < 2) and ("pubst" not in K1X or p in (6, 7, 8, 9)): ST(f"i{p}")
        if p == PUB:
            lab = a.newlabel("k1_pub")
            a(f"s_cmp_lg_u32 s{sW}, 0")
            a(f"s_cbranch_scc1 {lab}")
            a(f"v_lshlrev_b32 v{t0}, 3, v{vL}")
            a(f"v_add_u32 v{t1}, {ZSUM}, v{t0}")
            a(f"ds_read_b64 {P(TMP)}, v{t1}")
            a(f"ds_read_b64 {P(TMP+4)}, v{t1} offset:512")
            a(f"v_lshlrev_b32 v{t0}, 4, v{vL}")
            a(f"v_mov_b32 v{TMP+2}, s{sTAG}")
            a(f"v_mov_b32 v{TMP+3}, s{sTAG+1}")
            a("s_waitcnt lgkmcnt(0)")
            a(f"v_pk_add_f32 {P(TMP)}, {P(TMP)}, {P(TMP+4)}")
            a.lg -= 2
            a.label(lab)
            a(f"s_cmp_eq_u32 s{sW}, 0")
            a(f"s_cselect_b64 exec, -1, 0")
            a.vmem(f"buffer_store_dwordx4 v[{TMP}:{TMP+3}], v{t0}, s[{sWS}:{sWS+3}], s{sZPB} offen sc1")
            a(f"s_mov_b64 exec, -1")
        if p + 1 < 10 and "nocomp" not in K1X:
            if "rdfirst" in K1X: reads(p + 1)
            else: fill.add(reads_g(p + 1))
        dmaf = Filler()
        if p + 3 < 5: dmaf.add(dma_x_g(p + 3))
        if p + 3 < 10: dmaf.add(dma_w_g(p + 3))
        if p == int(os.environ.get("KVD", "5")): dmaf.add(kv_dma())
        sched = {"a": {1:[0],2:[1],3:[2],4:[3],5:[4],6:[5],7:[6],8:[7]},
                 "b": {5:[0,1],6:[2,3],7:[4,5],8:[6,7]},
                 "c": {4:[0],5:[1],6:[2,3],7:[4,5],8:[6,7]},
                 "d": {6:[0,1,2],7:[3,4,5],8:[6,7]},
                 "e": {7:[0,1,2,3],8:[4,5,6,7]},
                 "f": {}, "g": {8:[0,1,2,3]}, "h": {9:[0,1,2,3]}, "i": {7:[0,1], 8:[2,3,4], 9:[5,6,7]}}[os.environ.get("L2S", "a")]
        for i_ in sched.get(p, []):
            if "l2pf" in K1X: dmaf.add(gen1(lambda i_=i_: l2_touch_wsp(i_)))
            else: dmaf.add(gen1(lambda i_=i_: mall_touch(sWSP, 32, i_*4, 4)))
        if p in (2, 5): dmaf.add(gen1(lambda p=p: mall_touch(sSSM, 10, 0 if p == 2 else 5, 5)))
        if p == 7 and "nowo" not in K1X: dmaf.add(gen1(lambda: mall_touch(sWOU, 4, 0, 4)))
        if p == (8 if EARLY else int(os.environ.get('SLD', '9'))): stats_load()
        if p == 9 and EARLY:
            z2_frag_stores()
            run(kv_store())
        nf = 0 if "rdfirst" in K1X else 2
        if p == 5:
            if "f5" in K1X: ST("f5a")
            fold_gelu(0, Z2V, TMP, TMP+12, [TMP+16, ACC, ACC+12, CSA])
            if "f5" in K1X: ST("f5b")
            run(z2_stats()); run(xst_store())
            if "f5" in K1X: ST("f5c")
        if "nocomp" in K1X:
            dmaf.drain(); fill.q = []
        else:
            mfmas(p, fill, nf, dmaf)
            fill.drain()
        if "f5" in K1X and p in (4, 5): ST(f"f{p}m")
        if p == 4: exchange_write(0, Z2V)
        if p == 8 and EARLY:
            kv_loads()
            run(kv_compute())
            z2_normalize()
            z2_addr()
        if p == 9:
            if "f5" in K1X: ST("f9m")
            exchange_write(1, WF)
            if not EARLY:
                kv_loads()
                run(kv_compute())
                if "f5" in K1X: ST("f9k")
                z2_normalize()
    ST("loop")
    if not EARLY:
        z2_addr()
        a("s_waitcnt lgkmcnt(0)")
        a("s_barrier")
        ST("bar")
        z2_frag_stores()
        run(kv_store())
    else:
        a("s_waitcnt vmcnt(0) lgkmcnt(0)")
        a("s_barrier")
        ST("bar")
        publish_f1()
        if "l2pf" in K1X:
            L2S_ = os.environ.get("L2S", "a")
            for i_ in {"f": range(8), "g": range(4, 8), "h": range(4, 8)}.get(L2S_, []): l2_touch_wsp(i_)
    Z1V = WF
    T2 = XF
    fold_gelu(1, Z1V, T2, T2+12, [T2+16, T2+28, T2+40, T2+52])
    a(f"v_lshrrev_b32 v{t0}, 1, v{vQ}")
    a(f"v_mul_u32_u24 v{t0}, 3072, v{t0}")
    a(f"v_and_b32 v{t1}, 1, v{vQ}")
    a(f"v_lshlrev_b32 v{t1}, 5, v{t1}")
    a(f"v_add_u32 v{t1}, v{t1}, v{vP}")
    a(f"v_lshl_add_u32 v{t0}, v{t1}, 4, v{t0}")
    for ft in range(3):
        a(f"v_cvt_pk_bf16_f32 v{T2+2*ft}, v{Z1V+4*ft}, v{Z1V+4*ft+1}")
        a(f"v_cvt_pk_bf16_f32 v{T2+2*ft+1}, v{Z1V+4*ft+2}, v{Z1V+4*ft+3}")
        if fused:
            a(f"v_add_u32 v{t1}, s{[sZ1S0, sZ1S1, sZ1S2][ft]}, v{t0}")
            a.ds(f"ds_write_b64 v{t1}, {P(T2+2*ft)}")
        else:
            a.vmem(f"buffer_store_dwordx2 {P(T2+2*ft)}, v{t0}, s[{sWS}:{sWS+3}], s{[sZ1S0, sZ1S1, sZ1S2][ft]} offen")
    lab = a.newlabel("k1_ep2")
    a(f"s_xor_b32 s{sT0}, s{sW}, 1")
    a(f"s_or_b32 s{sT0}, s{sT0}, s{sJ}")
    a(f"s_cmp_lg_u32 s{sT0}, 0")
    a(f"s_cbranch_scc1 {lab}")
    a("s_waitcnt vmcnt(0)")
    a(f"v_readfirstlane_b32 s{sT0}, v{vDummy2}")
    a(f"s_cmp_lg_u32 s{sT0}, 31")
    a(f"s_cbranch_scc1 {lab}")
    a(f"v_mov_b32 v{TMP}, s{sTAG}")
    a(f"v_mov_b32 v{TMP+1}, s{sTAG+1}")
    a(f"v_mov_b32 v{t0}, {WS_EPO}")
    a(f"s_mov_b64 exec, 1")
    a(f"buffer_store_dwordx2 {P(TMP)}, v{t0}, s[{sWS}:{sWS+3}], 0 offen sc1")
    a(f"s_mov_b64 exec, -1")
    a.label(lab)
    if fused and EARLY:
        a("s_waitcnt lgkmcnt(0)")
        a("s_barrier")
    if fused and not EARLY:
        a("s_waitcnt vmcnt(0) lgkmcnt(0)")
        a("s_barrier")
        a(f"s_lshl_b32 s{sT0}, s{sJ}, 8")
        a(f"s_lshl_b32 s{sT1}, s{sRB}, 3")
        a(f"s_add_u32 s{sT0}, s{sT0}, s{sT1}")
        a(f"s_add_u32 s{sT0}, s{sT0}, {WS_F1}")
        a(f"v_mov_b32 v{TMP}, s{sTAG}")
        a(f"v_mov_b32 v{TMP+1}, s{sTAG+1}")
        a(f"v_mov_b32 v{t0}, 0")
        a(f"s_cmp_eq_u32 s{sW}, 0")
        a(f"s_cselect_b64 exec, 1, 0")
        a(f"buffer_store_dwordx2 {P(TMP)}, v{t0}, s[{sWS}:{sWS+3}], s{sT0} offen sc1")
        a(f"s_mov_b64 exec, -1")
    ST("end")
    ST.dump(sWS, sW, t0, t1, WS_DBG)
    gen_k1.stamp_names = ST.names
    if fused:
        if "st2" not in K1X: raise SystemExit("fused needs st2")
        a.items = [(k, (t + " sc1") if (k == "i" and t.startswith("buffer_store_dwordx4") and " sc1" not in t) else t) for k, t in a.items]
        return a, V.hi, sW
    a.label(f"{name}_end")
    a("s_endpgm")
    if "st2" in K1X:
        a.items = [(k, (t + " sc1") if (k == "i" and t.startswith("buffer_store_dwordx4") and " sc1" not in t) else t) for k, t in a.items]
    if "st1" in K1X:
        a.items = [(k, (t + " sc1") if (k == "i" and t.startswith("buffer_store") and " sc1" not in t) else t) for k, t in a.items]
    gen_k1.ninstr = sum(1 for k, _ in a.items if k == "i")
    return a.finish(), V.hi
```

```python
from dsl import *
from layout import *
import os, struct

XR = 0; WR = 81920; SLOT = 24576
MISC = 155648
CSUM = MISC
XSUM = MISC + 3072
ZSUM = MISC + 4096
SHKL = MISC + 5120
EX = 16384
TB = 81920 + 24576
KS = 65536
VS = 49152
ZT = 0
C1 = 2.302208198144325
C2 = C1 * 0.044715

def f32(x): return struct.unpack("<I", struct.pack("<f", x))[0]
def P(r): return f"v[{r}:{r+1}]"

def pkop(a, kind, d, x, y, z=None, pk=True, bcast_y=False, neg_y=False, ys=None, zs=None):
    if pk:
        yo = f"s[{ys}:{ys+1}]" if ys is not None else P(y)
        mods = ""
        n = 3 if kind == "fma" else 2
        if bcast_y: mods += " op_sel_hi:[1,0" + (",1" if n == 3 else "") + "]"
        if neg_y: mods += " neg_lo:[0,1" + (",0" if n == 3 else "") + "] neg_hi:[0,1" + (",0" if n == 3 else "") + "]"
        if kind == "fma": a(f"v_pk_fma_f32 {P(d)}, {P(x)}, {yo}, {P(z)}{mods}")
        else: a(f"v_pk_{kind}_f32 {P(d)}, {P(x)}, {yo}{mods}")
        yield
    else:
        for h in range(2):
            yo = f"s{ys}" if ys is not None else f"v{y + (0 if bcast_y else h)}"
            if neg_y: yo = "-" + yo
            if kind == "fma": a(f"v_fma_f32 v{d+h}, v{x+h}, {yo}, v{z+h}")
            elif kind == "mul":
                if ys is not None: a(f"v_mul_f32 v{d+h}, {yo}, v{x+h}")
                else: a(f"v_mul_f32 v{d+h}, v{x+h}, {yo}")
            else:
                if neg_y: a(f"v_sub_f32 v{d+h}, v{x+h}, {yo[1:]}")
                else: a(f"v_add_f32 v{d+h}, v{x+h}, {yo}")
            yield

def reduce_g4_multi(a, xs, ts):
    for op in ("v_permlane16_swap_b32", "v_permlane32_swap_b32"):
        for x, t in zip(xs, ts): a(f"v_mov_b32 v{t}, v{x}"); yield
        for x, t in zip(xs, ts): a(f"{op} v{x}, v{t}"); yield
        for x, t in zip(xs, ts): a(f"v_add_f32 v{x}, v{x}, v{t}"); yield

def ln_finish_gen(a, mean, var, sEps):
    a(f"v_max_f32 v{var}, 0, v{var}"); yield
    a(f"v_cvt_pk_bf16_f32 v{var}, v{var}, v{mean}"); yield
    a(f"v_and_b32 v{mean}, 0xffff0000, v{var}"); yield
    a(f"v_lshlrev_b32 v{var}, 16, v{var}"); yield
    a(f"v_add_f32 v{var}, s{sEps}, v{var}"); yield
    a(f"v_cvt_pk_bf16_f32 v{var}, v{var}, v{var}"); yield
    a(f"v_and_b32 v{var}, 0xffff0000, v{var}"); yield
    a(f"v_sqrt_f32 v{var}, v{var}"); yield
    a(f"v_cvt_pk_bf16_f32 v{var}, v{var}, v{var}"); yield
    a(f"v_and_b32 v{var}, 0xffff0000, v{var}"); yield
    a(f"v_rcp_f32 v{var}, v{var}"); yield

def run(gen):
    for _ in gen: pass

class Filler:
    def __init__(self): self.q = []
    def add(self, g): self.q.append(g)
    def step(self, n=1):
        for _ in range(n):
            while self.q:
                try:
                    next(self.q[0]); break
                except StopIteration:
                    self.q.pop(0)
    def drain(self):
        while self.q:
            run(self.q.pop(0))

def mask(a, n):
    if n >= 64: a("s_mov_b64 exec, -1")
    elif n > 32:
        a("s_mov_b32 exec_lo, -1"); a(f"s_mov_b32 exec_hi, {(1 << (n-32)) - 1:#x}")
    elif n == 32:
        a("s_mov_b32 exec_lo, -1"); a("s_mov_b32 exec_hi, 0")
    else: a(f"s_mov_b64 exec, {(1 << n) - 1:#x}")

Z1L = 73728
SYNC = 161792

def gen_k1(name="k1_kernel", prof=False, fused=False):
    K1X = os.environ.get("K1X", "")
    a = Asm()
    ST = Stamps(a, enabled=prof)
    WSZ = WS_SIZE_DBG if prof else WS_END
    V = Alloc(1, 256, "v")
    sX, sWIN, sK, sV, sSHK, sWS, sDBG, sWSP, sSSM = 4, 8, 12, 16, 20, 24, 28, 32, 36
    sWOU = 84 if not prof else 84
    sRB, sJ, sW, sFH, sSH, sKH, sST0, sST = 40, 41, 42, 43, 44, 45, 46, 47
    sT0, sT1, sT2, sT3 = 48, 49, 50, 51
    sXOFF, sWOFF2, sWOFF1 = 52, 53, 54
    sEPS, sONES, sU = 55, 56, 57
    sNC2 = 58
    sM0X, sM0W = 60, 61
    sZ1B, sKKA, sKKB, sD0 = 62, 63, 64, 65
    sXC, sH = 66, 67
    (sEXW, sEXR, sCSW, sCSR, sXSW, sXSR, sZSW, sZPB, sZRB, sXST, sZ1S0, sZ1S1, sZ1S2, sKVB) = range(70, 84)
    sZ2L = [88, 63]; sZ2G = [64, 67]; sL2B = 66
    a.raw(f".globl {name}\n.p2align 8\n.type {name},@function\n{name}:")
    a(f"s_cmp_ge_u32 s2, 256")
    a(f"s_cbranch_scc1 {name}_end")
    srds = ((sX, 'q', SZ_X), (sWIN, 'win', SZ_WIN), (sK, 'k', SZ_X), (sV, 'v', SZ_X), (sSHK, 'shk', 5120), (sWS, 'ws', WSZ),
            (sDBG, 'dbg', 256), (sWSP, 'wsp', SZ_WSP), (sSSM, 'ssmk', SZ_SSMK), (sWOU, 'wout', SZ_WOUT))
    for srd, key, _ in srds:
        a(f"s_load_dwordx2 s[{srd}:{srd+1}], s[0:1], {KA[key]}")
    ST("start")
    vL = V(); vQ = V(); vP = V()
    t0, t1, t2 = V(), V(), V()
    vKV = V()
    a(f"v_lshrrev_b32 v{vQ}, 6, v0")
    a(f"v_and_b32 v{vL}, 63, v0")
    a(f"v_readfirstlane_b32 s{sW}, v{vQ}")
    a(f"v_lshrrev_b32 v{vQ}, 4, v{vL}")
    a(f"v_and_b32 v{vP}, 15, v{vL}")
    a(f"s_and_b32 s{sT0}, s2, 7")
    a(f"s_lshr_b32 s{sT1}, s2, 3")
    a(f"s_lshr_b32 s{sXC}, s{sT0}, 1")
    a(f"s_and_b32 s{sH}, s{sT0}, 1")
    a(f"s_lshl_b32 s{sRB}, s{sXC}, 3")
    a(f"s_and_b32 s{sT0}, s{sT1}, 7")
    a(f"s_add_u32 s{sRB}, s{sRB}, s{sT0}")
    a(f"s_lshl_b32 s{sJ}, s{sH}, 2")
    a(f"s_lshr_b32 s{sT0}, s{sT1}, 3")
    a(f"s_add_u32 s{sJ}, s{sJ}, s{sT0}")
    a(f"s_mul_i32 s{sXOFF}, s{sRB}, {64*1280}")
    a(f"s_mul_i32 s{sWOFF1}, s{sJ}, 192")
    a(f"s_add_u32 s{sWOFF2}, s{sWOFF1}, {768*2}")
    a(f"s_lshl_b32 s{sM0X}, s{sW}, 11")
    a(f"s_mul_i32 s{sM0W}, s{sW}, 3072")
    for srd, _, size in srds[:2]:
        a(f"s_mov_b32 s{srd+2}, {size}")
        a(f"s_mov_b32 s{srd+3}, {SRD3:#x}")
    TMP = V(28, 4)
    vTO = V()
    vDummy = V()
    vXD = [V(), V()]
    a(f"s_lshl_b32 s{sT0}, s{sW}, 3")
    for i in range(2):
        a(f"v_add_u32 v{t0}, s{sT0}, v{vQ}")
        if i: a(f"v_add_u32 v{t0}, 4, v{t0}")
        a(f"v_and_b32 v{t1}, 15, v{t0}")
        a(f"v_xor_b32 v{t1}, v{t1}, v{vP}")
        a(f"v_mul_u32_u24 v{t0}, 1280, v{t0}")
        a(f"v_lshl_add_u32 v{vXD[i]}, v{t1}, 4, v{t0}")
    vWD = [V(), V(), V()]
    a(f"s_mul_i32 s{sT0}, s{sW}, 192")
    for i in range(3):
        a(f"v_add_u32 v{t0}, s{sT0}, v{vL}")
        if i: a(f"v_add_u32 v{t0}, {64*i}, v{t0}")
        a(f"v_mul_u32_u24 v{t1}, 43691, v{t0}")
        a(f"v_lshrrev_b32 v{t1}, 19, v{t1}")
        a(f"v_mul_u32_u24 v{t2}, 12, v{t1}")
        a(f"v_sub_u32 v{t0}, v{t0}, v{t2}")
        a(f"v_lshrrev_b32 v{t2}, 2, v{t1}")
        a(f"v_and_b32 v{t2}, 2, v{t2}")
        a(f"v_xor_b32 v{t0}, v{t0}, v{t2}")
        a(f"v_mul_u32_u24 v{t1}, 3072, v{t1}")
        a(f"v_lshl_add_u32 v{vWD[i]}, v{t0}, 4, v{t1}")
    sSCX = [90, 91, 92, 93, 94]; sSCW = [95, 96, 97, 98, 99]
    a(f"s_add_u32 s{sT0}, s{sRB}, s{sJ}")
    a(f"s_mul_i32 s{sT1}, s{sT0}, 52")
    a(f"s_lshr_b32 s{sT1}, s{sT1}, 8")
    a(f"s_mul_i32 s{sT1}, s{sT1}, 5")
    a(f"s_sub_u32 s{sT3}, s{sT0}, s{sT1}")
    if "norot" in K1X: a(f"s_mov_b32 s{sT3}, 0")
    if "rot2" in K1X: a(f"s_and_b32 s{sT3}, s{sT0}, 1")
    if "rot4" in K1X: a(f"s_and_b32 s{sT3}, s{sT0}, 3")
    if "rotj" in K1X: a(f"s_and_b32 s{sT3}, s{sJ}, 3")
    if "rotr" in K1X:
        a(f"s_and_b32 s{sT3}, s{sRB}, 1")
        a(f"s_lshl_b32 s{sT3}, s{sT3}, 1")
    def sc_regs(p_):
        a(f"s_add_u32 s{sT1}, s{sT3}, {p_}")
        a(f"s_sub_u32 s{sT2}, s{sT1}, 5")
        a(f"s_cmp_ge_u32 s{sT1}, 5")
        a(f"s_cselect_b32 s{sT1}, s{sT2}, s{sT1}")
        a(f"s_lshl_b32 s{sSCX[p_]}, s{sT1}, 8")
        a(f"s_mul_i32 s{sSCW[p_]}, s{sT1}, {128*3072}")
    sc_regs(0); sc_regs(1)
    x_last = {}; w_last = {}
    def dma_x_g(sc):
        for i in range(2):
            a(f"s_add_u32 s{sD0}, s{sXOFF}, s{sSCX[sc]}")
            a(f"s_add_u32 m0, s{sM0X}, {XR + sc*16384 + i*1024}")
            x_last[sc] = a.vmem(f"buffer_load_dwordx4 v{vXD[i]}, s[{sX}:{sX+3}], s{sD0} offen lds")
            yield
    def wbase(q): return WR + (q % 3)*SLOT
    def dma_w_g(q):
        sc = q % 5
        for i in range(3):
            a(f"s_add_u32 s{sD0}, s{sWOFF2 if q < 5 else sWOFF1}, s{sSCW[sc]}")
            a(f"s_add_u32 m0, s{sM0W}, {wbase(q) + i*1024}")
            w_last[q] = a.vmem(f"buffer_load_dwordx4 v{vWD[i]}, s[{sWIN}:{sWIN+3}], s{sD0} offen lds")
            yield
    def dma_x(sc): run(dma_x_g(sc))
    def dma_w(q): run(dma_w_g(q))
    a("s_waitcnt lgkmcnt(0)")
    ST("kernarg")
    dma_x(0); dma_w(0)
    sTAG = 100
    a(f"s_mov_b32 s{sT0}, {WS_EPO}")
    a(f"s_load_dwordx2 s[{sTAG}:{sTAG+1}], s[{sWS}:{sWS+1}], s{sT0}")
    for p_ in range(2, 5): sc_regs(p_)
    for srd, _, size in srds[2:]:
        a(f"s_mov_b32 s{srd+2}, {size}")
        a(f"s_mov_b32 s{srd+3}, {SRD3:#x}")
    a(f"v_lshlrev_b32 v{vTO}, 7, v{vL}")
    if fused:
        a(f"v_mov_b32 v{t0}, {SYNC}")
        a(f"v_mov_b32 v{TMP}, 0"); a(f"v_mov_b32 v{TMP+1}, 0")
        a.ds(f"ds_write_b64 v{t0}, {P(TMP)}")
    if "late1" not in K1X:
        a("s_barrier")
        dma_x(1); dma_w(1)
    def kv_dma():
        a(f"v_mul_u32_u24 v{t0}, 1280, v{vRP}")
        a(f"v_lshl_add_u32 v{t0}, v{vPP}, 4, v{t0}")
        a(f"s_mul_i32 s{sT3}, s{sJ}, 160")
        a(f"s_add_u32 s{sT3}, s{sT3}, s{sXOFF}")
        for rnd in range(3):
            n0 = 8*rnd
            if rnd == 0:
                a(f"s_mul_i32 s{sT0}, s{sW}, {6*1280}")
                a(f"s_add_u32 s{sT0}, s{sT0}, s{sT3}")
                a(f"s_sub_i32 s{sT0}, s{sT0}, {3*1280}")
                a(f"s_cmp_lt_i32 s{sT0}, 0")
                a(f"s_cselect_b32 s{sT1}, {3*1280}, 0")
                a(f"s_add_u32 s{sT0}, s{sT0}, s{sT1}")
                a(f"v_subrev_u32 v{t1}, s{sT1}, v{t0}")
                a(f"s_mul_i32 s{sT2}, s{sW}, 960")
                a(f"s_add_u32 m0, s{sT2}, {KS}")
                mask(a, 60)
                a.vmem(f"buffer_load_dwordx4 v{t1}, s[{sK}:{sK+3}], s{sT0} offen lds")
                mask(a, 64)
            elif rnd == 1:
                lv = a.newlabel("k1_kvv"); le = a.newlabel("k1_kve")
                a(f"s_cmp_ge_u32 s{sW}, 4")
                mask(a, 60)
                a(f"s_cbranch_scc1 {lv}")
                a(f"s_mul_i32 s{sT0}, s{sW}, {6*1280}")
                a(f"s_add_u32 s{sT0}, s{sT0}, s{sT3}")
                a(f"s_add_u32 s{sT0}, s{sT0}, {45*1280}")
                a(f"s_mul_i32 s{sT2}, s{sW}, 960")
                a(f"s_add_u32 m0, s{sT2}, {KS + 8*960}")
                a(f"buffer_load_dwordx4 v{t0}, s[{sK}:{sK+3}], s{sT0} offen lds")
                a(f"s_branch {le}")
                a.label(lv)
                a(f"s_sub_u32 s{sT1}, s{sW}, 4")
                a(f"s_mul_i32 s{sT0}, s{sT1}, {6*1280}")
                a(f"s_add_u32 s{sT0}, s{sT0}, s{sT3}")
                a(f"s_mul_i32 s{sT2}, s{sT1}, 960")
                a(f"s_add_u32 m0, s{sT2}, {VS}")
                a(f"buffer_load_dwordx4 v{t0}, s[{sV}:{sV+3}], s{sT0} offen lds")
                a.label(le)
                a.vm -= 1
                mask(a, 64)
            else:
                a(f"s_add_u32 s{sT1}, s{sW}, 4")
                a(f"s_mul_i32 s{sT0}, s{sT1}, {6*1280}")
                a(f"s_add_u32 s{sT0}, s{sT0}, s{sT3}")
                a(f"s_mul_i32 s{sT2}, s{sT1}, 960")
                a(f"s_add_u32 m0, s{sT2}, {VS}")
                mask(a, 60)
                a.vmem(f"buffer_load_dwordx4 v{t0}, s[{sV}:{sV+3}], s{sT0} offen lds")
                mask(a, 64)
            yield
    lab = a.newlabel("k1_shk")
    a(f"s_cmp_lg_u32 s{sW}, 7")
    a(f"s_cbranch_scc1 {lab}")
    a(f"v_lshlrev_b32 v{t0}, 4, v{vL}")
    a(f"s_mul_i32 s{sT0}, s{sJ}, 640")
    a(f"s_mov_b32 m0, {SHKL}")
    mask(a, 40)
    a(f"buffer_load_dwordx4 v{t0}, s[{sSHK}:{sSHK+3}], s{sT0} offen lds")
    a.vm -= 1
    mask(a, 64)
    a.label(lab)
    a(f"s_and_b32 s{sFH}, s{sW}, 1")
    a(f"s_lshr_b32 s{sSH}, s{sW}, 1")
    a(f"s_and_b32 s{sSH}, s{sSH}, 1")
    a(f"s_lshr_b32 s{sKH}, s{sW}, 2")
    a(f"s_xor_b32 s{sST0}, s{sFH}, s{sKH}")
    a(f"s_lshl_b32 s{sST}, s{sSH}, 1")
    a(f"s_add_u32 s{sST}, s{sST}, s{sST0}")
    a(f"s_mov_b32 s{sEPS}, {f32(1e-5):#x}")
    a(f"s_mov_b32 s{sONES}, 0x3f803f80")
    a(f"s_mov_b32 s{sNC2}, {f32(-C2):#x}")
    a(f"s_mov_b32 s{sNC2+1}, {f32(-C2):#x}")
    vRP = V(); vPP = V()
    _pre = [V(), V(), V()]
    XF = V(80, 4)
    def xf(sc, kk, sl): return XF + ((sc*2 + kk)*2 + sl)*4
    WF = V(48, 4)
    def wf(b, kk, ft): return WF + ((b*2 + kk)*3 + ft)*4
    ACC = V(24, 4)
    def acc(ft, sl): return ACC + (ft*2 + sl)*4
    Z2V = V(12, 4)
    KX = V(4, 4)
    KROW = [XF + 4*r for r in range(5)]
    VROW = [XF + 20, XF + 24]
    vXA = [[_pre[0], _pre[1]], [_pre[2], V()]]
    vWA = [[V(), V(), V()], [V(), V(), V()]]
    a(f"s_lshl_b32 s{sT0}, s{sKH}, 1")
    a(f"s_add_u32 s{sKKA}, s{sT0}, s{sSH}")
    a(f"s_xor_b32 s{sKKB}, s{sKKA}, 1")
    a(f"v_xor_b32 v{t0}, v{vQ}, v{vP}")
    a(f"v_lshlrev_b32 v{t2}, 8, v{vP}")
    a(f"s_lshl_b32 s{sT0}, s{sSH}, 13")
    a(f"s_lshl_b32 s{sT1}, s{sST0}, 12")
    a(f"s_add_u32 s{sT2}, s{sT0}, s{sT1}")
    a(f"s_xor_b32 s{sT1}, s{sT1}, 4096")
    a(f"s_add_u32 s{sT3}, s{sT0}, s{sT1}")
    for kkidx, sKK in ((0, sKKA), (1, sKKB)):
        a(f"s_lshl_b32 s{sT0}, s{sKK}, 2")
        a(f"v_xor_b32 v{t1}, s{sT0}, v{t0}")
        a(f"v_lshl_add_u32 v{t1}, v{t1}, 4, v{t2}")
        a(f"v_add_u32 v{vXA[kkidx][0]}, s{sT2}, v{t1}")
        a(f"v_add_u32 v{vXA[kkidx][1]}, s{sT3}, v{t1}")
    a(f"v_lshrrev_b32 v{t1}, 2, v{vP}")
    a(f"v_lshl_add_u32 v{t0}, v{vQ}, 3, v{t1}")
    a(f"v_mul_u32_u24 v{t0}, 192, v{t0}")
    a(f"v_and_b32 v{t1}, 3, v{vP}")
    a(f"v_lshl_add_u32 v{t0}, v{t1}, 3, v{t0}")
    a(f"v_and_b32 v{t1}, 1, v{vQ}")
    a(f"s_mul_i32 s{sT3}, s{sFH}, 3")
    a(f"s_mul_i32 s{sT1}, s{sKKA}, 6144")
    a(f"s_add_u32 s{sT1}, s{sT1}, {WR}")
    a(f"s_mul_i32 s{sT2}, s{sKKB}, 6144")
    a(f"s_add_u32 s{sT2}, s{sT2}, {WR}")
    for ft in range(3):
        a(f"s_add_u32 s{sT0}, s{sT3}, {ft}")
        a(f"v_xor_b32 v{t2}, s{sT0}, v{t1}")
        a(f"v_lshl_add_u32 v{t2}, v{t2}, 5, v{t0}")
        a(f"v_add_u32 v{vWA[0][ft]}, s{sT1}, v{t2}")
        a(f"v_add_u32 v{vWA[1][ft]}, s{sT2}, v{t2}")
    CSA = V(12, 4)
    XSA = V(4, 4); XQA = V(4, 4)
    ONE = V(4, 4)
    for i in range(4): a(f"v_mov_b32 v{ONE+i}, s{sONES}")
    vC1 = XSA + 2
    vMR = XQA; vM, vR = vMR, vMR + 1
    vRB = XQA + 2
    a(f"v_mul_u32_u24 v{vRP}, 205, v{vL}")
    a(f"v_lshrrev_b32 v{vRP}, 11, v{vRP}")
    a(f"v_mul_u32_u24 v{t0}, 10, v{vRP}")
    a(f"v_sub_u32 v{vPP}, v{vL}, v{t0}")
    a(f"s_lshl_b32 s{sT0}, s{sW}, 3")
    a(f"v_lshl_add_u32 v{t0}, v{vRP}, 1, s{sT0}")
    a(f"v_min_u32 v{t0}, 62, v{t0}")
    a(f"v_mul_u32_u24 v{t0}, 160, v{t0}")
    a(f"v_lshl_add_u32 v{vKV}, v{vPP}, 4, v{t0}")

    kv = {}
    zfin = {}
    EARLY = fused and 'late' not in K1X
    vTO2 = KX + 3
    a(f"v_lshlrev_b32 v{vTO2}, 10, v{vL}")
    def kv_loads():
        a(f"v_add_u32 v{t0}, {KS}, v{vKV}")
        for i in range(5):
            a.ds(f"ds_read_b128 v[{KROW[i]}:{KROW[i]+3}], v{t0} offset:{160*i}")
        a(f"v_add_u32 v{t0}, {VS}, v{vKV}")
        a.ds(f"ds_read_b128 v[{VROW[0]}:{VROW[0]+3}], v{t0}")
        kv['last'] = a.ds(f"ds_read_b128 v[{VROW[1]}:{VROW[1]+3}], v{t0} offset:160")

    def kv_compute():
        KT = XF + 28
        kf = KT; wp = KT + 10; r0 = KT + 18; r1 = KT + 20; vf0 = KT + 22; vf1 = KT + 24; o = KT + 26
        SK = KT + 28
        vTA = vKV
        a.wait_lg(kv['last']); yield
        a(f"v_mul_u32_u24 v{vTA}, {8*144}, v{vPP}"); yield
        a(f"v_lshlrev_b32 v{o}, 2, v{vRP}"); yield
        a(f"v_sub_u32 v{vTA}, v{vTA}, v{o}"); yield
        a(f"s_lshl_b32 s{sT0}, s{sW}, 4")
        a(f"s_add_u32 s{sT0}, s{sT0}, {TB + 12}")
        a(f"v_add_u32 v{vTA}, s{sT0}, v{vTA}"); yield
        a(f"v_lshlrev_b32 v{vPP}, 6, v{vPP}"); yield
        a(f"v_add_u32 v{vPP}, {SHKL}, v{vPP}"); yield
        for i in range(4):
            if i % 2 == 0:
                a.ds(f"ds_read_b128 v[{SK}:{SK+3}], v{vPP} offset:{(i//2)*32}")
                d = a.ds(f"ds_read_b128 v[{SK+4}:{SK+7}], v{vPP} offset:{(i//2)*32 + 16}"); yield
            for r in range(5):
                a(f"v_lshlrev_b32 v{kf+2*r}, 16, v{KROW[r]+i}"); yield
                a(f"v_and_b32 v{kf+2*r+1}, 0xffff0000, v{KROW[r]+i}"); yield
            if i % 2 == 0:
                a.wait_lg(d)
            for t in range(4):
                ra = SK + 2*(2*(i % 2)) + (t >> 1); rb_ = SK + 2*(2*(i % 2) + 1) + (t >> 1)
                if t & 1:
                    a(f"v_and_b32 v{wp+2*t}, 0xffff0000, v{ra}"); yield
                    a(f"v_and_b32 v{wp+2*t+1}, 0xffff0000, v{rb_}"); yield
                else:
                    a(f"v_lshlrev_b32 v{wp+2*t}, 16, v{ra}"); yield
                    a(f"v_lshlrev_b32 v{wp+2*t+1}, 16, v{rb_}"); yield
            for t in range(4):
                for (dst, top) in ((r0, 3), (r1, 4)):
                    if t == 0: yield from pkop(a, "mul", dst, kf+2*top, wp, pk=True)
                    else: yield from pkop(a, "fma", dst, kf+2*(top-t), wp+2*t, dst, pk=True)
            for (vf, rr) in ((vf0, 0), (vf1, 1)):
                a(f"v_lshlrev_b32 v{vf}, 16, v{VROW[rr]+i}"); yield
                a(f"v_and_b32 v{vf+1}, 0xffff0000, v{VROW[rr]+i}"); yield
            yield from pkop(a, "mul", r0, r0, vf0, pk=True)
            yield from pkop(a, "mul", r1, r1, vf1, pk=True)
            a(f"v_cvt_pk_bf16_f32 v{o}, v{r1}, v{r0}"); yield
            a(f"v_cvt_pk_bf16_f32 v{o+1}, v{r1+1}, v{r0+1}"); yield
            a(f"s_mov_b32 exec_hi, 0xff")
            a.ds(f"ds_write_b32 v{vTA}, v{o} offset:{(2*i)*144}")
            a.ds(f"ds_write_b32 v{vTA}, v{o+1} offset:{(2*i+1)*144}")
            a(f"s_mov_b32 exec_hi, -1"); yield

    def kv_store():
        for rnd in range(2):
            T4 = (TMP + 8 + 4*rnd) if EARLY else (XF + 72 + 4*rnd)
            a(f"s_lshl_b32 s{sT0}, s{sW}, 3")
            if rnd: a(f"s_add_u32 s{sT0}, s{sT0}, 64")
            a(f"v_lshrrev_b32 v{t0}, 3, v{vL}")
            a(f"v_add_u32 v{t0}, s{sT0}, v{t0}"); yield
            a(f"v_and_b32 v{t1}, 7, v{vL}")
            a(f"v_lshlrev_b32 v{t1}, 4, v{t1}"); yield
            a(f"v_mul_u32_u24 v{t2}, 144, v{t0}")
            a(f"v_add_u32 v{t2}, v{t2}, v{t1}")
            a(f"v_add_u32 v{t2}, {TB}, v{t2}"); yield
            d = a.ds(f"ds_read_b128 v[{T4}:{T4+3}], v{t2}"); yield
            a(f"v_lshlrev_b32 v{t0}, 12, v{t0}")
            a(f"v_add_u32 v{t0}, v{t0}, v{t1}"); yield
            a.wait_lg(d)
            if rnd == 0:
                a.vmem(f"buffer_store_dwordx4 v[{T4}:{T4+3}], v{t0}, s[{sWS}:{sWS+3}], s{sKVB} offen"); yield
            else:
                lab = a.newlabel("k1_kvskip")
                a(f"s_cmp_ge_u32 s{sW}, 2")
                a(f"s_cbranch_scc1 {lab}")
                a(f"buffer_store_dwordx4 v[{T4}:{T4+3}], v{t0}, s[{sWS}:{sWS+3}], s{sKVB} offen")
                a.vm -= 1
                a.label(lab); yield

    def reads_g(p):
        sc = p % 5; b = p & 1
        so = (p % 3)*SLOT
        for kk in range(2):
            for ft in range(3):
                r = wf(b, kk, ft)
                a.ds(f"ds_read_b64_tr_b16 v[{r}:{r+1}], v{vWA[kk][ft]} offset:{so}"); yield
                a.ds(f"ds_read_b64_tr_b16 v[{r+2}:{r+3}], v{vWA[kk][ft]} offset:{so + 768}"); yield
        if p < 5:
            if p == 4:
                for kk in range(2):
                    for sl in range(2):
                        a(f"v_add_u32 v{vXA[kk][sl]}, 0x10000, v{vXA[kk][sl]}")
            for kk in range(2):
                for sl in range(2):
                    off = XR + (sc*16384 if p < 4 else 0)
                    a.ds(f"ds_read_b128 v[{xf(sc,kk,sl)}:{xf(sc,kk,sl)+3}], v{vXA[kk][sl]} offset:{off}"); yield
    def reads(p): run(reads_g(p))

    def mfmas(p, fill, nfill, dmaf=None):
        sc = p % 5; b = p & 1
        first = (sc == 0)
        ops = []
        for kk in range(2):
            for ft in range(3):
                for sl in range(2):
                    c = "0" if (first and kk == 0) else f"v[{acc(ft,sl)}:{acc(ft,sl)+3}]"
                    ops.append(f"v_mfma_f32_16x16x32_bf16 v[{acc(ft,sl)}:{acc(ft,sl)+3}], v[{wf(b,kk,ft)}:{wf(b,kk,ft)+3}], v[{xf(sc,kk,sl)}:{xf(sc,kk,sl)+3}], {c}")
                if kk == 0 and "nostat" not in K1X:
                    c = "0" if first else f"v[{CSA+4*ft}:{CSA+4*ft+3}]"
                    ops.append(f"v_mfma_f32_16x16x32_bf16 v[{CSA+4*ft}:{CSA+4*ft+3}], v[{wf(b,0,ft)}:{wf(b,0,ft)+3}], v[{ONE}:{ONE+3}], {c}")
            if p < 5 and "nostat" not in K1X:
                x = xf(sc, kk, 0)
                c = "0" if (first and kk == 0) else f"v[{XSA}:{XSA+3}]"
                ops.append(f"v_mfma_f32_16x16x32_bf16 v[{XSA}:{XSA+3}], v[{ONE}:{ONE+3}], v[{x}:{x+3}], {c}")
                c = "0" if (first and kk == 0) else f"v[{XQA}:{XQA+3}]"
                ops.append(f"v_mfma_f32_16x16x32_bf16 v[{XQA}:{XQA+3}], v[{x}:{x+3}], v[{x}:{x+3}], {c}")
        nd = 0
        for oi, o in enumerate(ops):
            a(o)
            if dmaf is not None and oi % 3 == 1: dmaf.step(1)
            fill.step(nfill)
        if dmaf is not None: dmaf.drain()

    def exchange_write(ps, dst):
        T = TMP
        a(f"v_lshl_add_u32 v{t0}, v{vL}, 4, s{sEXW}")
        a(f"v_lshl_add_u32 v{t1}, v{vQ}, 4, s{sCSW}")
        for ft in range(3):
            a.ds(f"ds_write_b128 v{t0}, v[{acc(ft,1)}:{acc(ft,1)+3}] offset:{ft*1024}")
        a(f"s_mov_b32 exec_lo, 0x00010001")
        a(f"s_mov_b32 exec_hi, 0x00010001")
        for ft in range(3):
            a.ds(f"ds_write_b128 v{t1}, v[{CSA+4*ft}:{CSA+4*ft+3}] offset:{ps*1536 + ft*64}")
        a(f"s_mov_b64 exec, -1")
        if ps == 0:
            a(f"v_and_b32 v{T}, 3, v{vP}")
            a(f"v_cmp_eq_u32 vcc, 1, v{T}")
            a(f"v_cndmask_b32 v{XSA+1}, v{XQA}, v{XQA+1}, vcc")
            a(f"v_cmp_eq_u32 vcc, 2, v{T}")
            a(f"v_cndmask_b32 v{XSA+1}, v{XSA+1}, v{XQA+2}, vcc")
            a(f"v_cmp_eq_u32 vcc, 3, v{T}")
            a(f"v_cndmask_b32 v{XSA+1}, v{XSA+1}, v{XQA+3}, vcc")
            a(f"v_lshl_add_u32 v{t2}, v{vP}, 3, s{sXSW}")
            a(f"s_mov_b32 exec_lo, 0x00F0000F")
            a(f"s_mov_b32 exec_hi, 0xF0000F00")
            a.ds(f"ds_write_b64 v{t2}, {P(XSA)}")
            a(f"s_mov_b64 exec, -1")
        for ft in range(3):
            for h in range(2):
                a(f"v_pk_add_f32 {P(dst+4*ft+2*h)}, {P(acc(ft,0)+2*h)}, 0")
        if ps == 0:
            a(f"v_mov_b32 v{vC1}, {f32(-C1):#x}"); a(f"v_mov_b32 v{vC1+1}, {f32(-C1):#x}")

    def fold_gelu(ps, dst, E, X, C):
        a(f"v_lshl_add_u32 v{t0}, v{vL}, 4, s{sEXR}")
        if ps == 0:
            a(f"v_lshl_add_u32 v{t1}, v{vP}, 3, s{sXSR}")
            a.ds(f"ds_read_b64 {P(X)}, v{t1}")
            dx = a.ds(f"ds_read_b64 {P(X+2)}, v{t1} offset:128")
        ids = [a.ds(f"ds_read_b128 v[{E+4*ft}:{E+4*ft+3}], v{t0} offset:{ft*1024}") for ft in range(3)]
        a(f"v_lshl_add_u32 v{t2}, v{vQ}, 4, s{sCSR}")
        cid = []
        for q in range(4):
            for ft in range(3):
                cid.append(a.ds(f"ds_read_b128 v[{C[q]+4*ft}:{C[q]+4*ft+3}], v{t2} offset:{ps*1536 + q*192 + ft*64}"))
        if ps == 0:
            a.wait_lg(dx)
            a(f"v_pk_add_f32 {P(vMR)}, {P(X)}, {P(X+2)}")
            a(f"v_mul_f32 v{vM}, {f32(1.0/640):#x}, v{vM}")
            a(f"v_mul_f32 v{vR}, {f32(1.0/640):#x}, v{vR}")
            a(f"v_fma_f32 v{vR}, -v{vM}, v{vM}, v{vR}")
            run(ln_finish_gen(a, vM, vR, sEPS))
            a(f"v_mov_b32 v{vRB}, v{vR}")
        a.wait_lg(ids[2])
        for i in range(0, 12, 2): a(f"v_pk_add_f32 {P(dst+i)}, {P(dst+i)}, {P(E+i)}")
        a.wait_lg(cid[5])
        for i in range(0, 12, 2): a(f"v_pk_add_f32 {P(C[0]+i)}, {P(C[0]+i)}, {P(C[1]+i)}")
        a.wait_lg(cid[11])
        for i in range(0, 12, 2): a(f"v_pk_add_f32 {P(C[2]+i)}, {P(C[2]+i)}, {P(C[3]+i)}")
        for i in range(0, 12, 2): a(f"v_pk_add_f32 {P(C[0]+i)}, {P(C[0]+i)}, {P(C[2]+i)}")
        for i in range(0, 12, 2):
            a(f"v_pk_fma_f32 {P(dst+i)}, {P(C[0]+i)}, {P(vMR)}, {P(dst+i)} op_sel_hi:[1,0,1] neg_lo:[0,1,0] neg_hi:[0,1,0]")
        for i in range(0, 12, 2): a(f"v_pk_mul_f32 {P(dst+i)}, {P(dst+i)}, {P(vRB)} op_sel_hi:[1,0]")
        T = E
        for i in range(0, 12, 2): a(f"v_pk_mul_f32 {P(T+i)}, {P(dst+i)}, {P(dst+i)}")
        for i in range(0, 12, 2): a(f"v_pk_fma_f32 {P(T+i)}, {P(T+i)}, s[{sNC2}:{sNC2+1}], {P(vC1)}")
        for i in range(0, 12, 2): a(f"v_pk_mul_f32 {P(T+i)}, {P(T+i)}, {P(dst+i)}")
        for i in range(12): a(f"v_exp_f32 v{T+i}, v{T+i}")
        for i in range(0, 12, 2): a(f"v_pk_add_f32 {P(T+i)}, {P(T+i)}, 1.0 op_sel_hi:[1,0]")
        for i in range(12): a(f"v_rcp_f32 v{T+i}, v{T+i}")
        for i in range(0, 12, 2): a(f"v_pk_mul_f32 {P(dst+i)}, {P(dst+i)}, {P(T+i)}")

    def z2_stats():
        T = TMP
        a(f"v_pk_add_f32 {P(T+6)}, {P(Z2V)}, {P(Z2V+2)}"); yield
        a(f"v_pk_mul_f32 {P(T+8)}, {P(Z2V)}, {P(Z2V)}"); yield
        a(f"v_pk_add_f32 {P(T+10)}, {P(Z2V+4)}, {P(Z2V+6)}"); yield
        a(f"v_pk_fma_f32 {P(T+8)}, {P(Z2V+2)}, {P(Z2V+2)}, {P(T+8)}"); yield
        a(f"v_pk_add_f32 {P(T+12)}, {P(Z2V+8)}, {P(Z2V+10)}"); yield
        a(f"v_pk_fma_f32 {P(T+8)}, {P(Z2V+4)}, {P(Z2V+4)}, {P(T+8)}"); yield
        a(f"v_pk_add_f32 {P(T+6)}, {P(T+6)}, {P(T+10)}"); yield
        a(f"v_pk_fma_f32 {P(T+8)}, {P(Z2V+6)}, {P(Z2V+6)}, {P(T+8)}"); yield
        a(f"v_pk_add_f32 {P(T+6)}, {P(T+6)}, {P(T+12)}"); yield
        a(f"v_pk_fma_f32 {P(T+8)}, {P(Z2V+8)}, {P(Z2V+8)}, {P(T+8)}"); yield
        a(f"v_pk_fma_f32 {P(T+8)}, {P(Z2V+10)}, {P(Z2V+10)}, {P(T+8)}"); yield
        a(f"v_add_f32 v{T}, v{T+6}, v{T+7}"); yield
        a(f"v_add_f32 v{T+1}, v{T+8}, v{T+9}"); yield
        a(f"v_lshl_add_u32 v{t0}, v{vP}, 3, s{sZSW}"); yield
        yield from reduce_g4_multi(a, [T, T+1], [T+4, T+5])
        a(f"s_mov_b64 exec, 0xffff")
        a.ds(f"ds_write_b64 v{t0}, {P(T)}")
        a(f"s_mov_b64 exec, -1"); yield

    def xst_store():
        a(f"s_or_b32 s{sT0}, s{sJ}, s{sFH}")
        a(f"s_cmp_eq_u32 s{sT0}, 0")
        a(f"v_lshlrev_b32 v{t0}, 3, v{vP}")
        a(f"s_cselect_b64 exec, 0xffff, 0")
        a.vmem(f"buffer_store_dwordx2 {P(vMR)}, v{t0}, s[{sWS}:{sWS+3}], s{sXST} offen" + (" sc1" if fused else ""))
        a(f"s_mov_b64 exec, -1")
        yield

    sGU = 89
    a(f"s_lshl_b32 s{sGU}, s2, 3")
    a(f"s_add_u32 s{sGU}, s{sGU}, s{sW}")
    def mall_touch(srd, nper, first, count):
        if "nomall" in K1X: return
        a(f"s_mul_i32 s{sT0}, s{sGU}, {nper*128}")
        a(f"s_add_u32 s{sT0}, s{sT0}, {first*128}")
        mask(a, count)
        a.vmem(f"buffer_load_dword v{vDummy}, v{vTO}, s[{srd}:{srd+3}], s{sT0} offen")
        mask(a, 64)

    def l2_touch_wsp(i):
        a(f"s_add_u32 s{sT0}, s{sL2B}, {i*128}")
        mask(a, 8)
        a.vmem(f"buffer_load_dword v{vDummy}, v{vTO2}, s[{sWSP}:{sWSP+3}], s{sT0} offen")
        mask(a, 64)

    def epoch_load():
        a(f"v_mov_b32 v{KX+2}, {WS_EPO}")
        zfin['ep'] = a.vmem(f"buffer_load_dwordx2 {P(KX)}, v{KX+2}, s[{sWS}:{sWS+3}], 0 offen sc1")

    def gen1(f):
        f(); yield

    SP = TMP + 20
    vFA = vXD[0]
    vDummy2 = vPP
    def stats_load():
        a(f"v_lshlrev_b32 v{vFA}, 4, v{vP}")
        a(f"v_lshl_add_u32 v{vFA}, v{vQ}, 11, v{vFA}")
        a.vmem(f"buffer_load_dwordx4 v[{SP}:{SP+3}], v{vFA}, s[{sWS}:{sWS+3}], s{sZRB} offen sc1")
        zfin['sp'] = a.vmem(f"buffer_load_dwordx4 v[{SP+4}:{SP+7}], v{vFA}, s[{sWS}:{sWS+3}], s{sZRB} offen offset:1024 sc1")
    def stats_check():
        a.wait_vm(zfin['sp'])
        lp = a.newlabel("k1_poll"); lp2 = a.newlabel("k1_polled")
        a(f"s_mov_b32 s{sD0}, 0")
        a.label(lp)
        a(f"s_add_u32 s{sD0}, s{sD0}, 1")
        a(f"s_cmp_gt_u32 s{sD0}, 100000")
        a(f"s_cbranch_scc1 {lp2}")
        a(f"v_cmp_ne_u32 vcc, s{sTAG}, v{SP+2}")
        a(f"v_cmp_ne_u32 s[{sT2}:{sT2+1}], s{sTAG+1}, v{SP+3}")
        a(f"s_or_b64 vcc, vcc, s[{sT2}:{sT2+1}]")
        a(f"v_cmp_ne_u32 s[{sT2}:{sT2+1}], s{sTAG}, v{SP+6}")
        a(f"s_or_b64 vcc, vcc, s[{sT2}:{sT2+1}]")
        a(f"v_cmp_ne_u32 s[{sT2}:{sT2+1}], s{sTAG+1}, v{SP+7}")
        a(f"s_or_b64 vcc, vcc, s[{sT2}:{sT2+1}]")
        if 'nopoll' in K1X: a("s_mov_b64 vcc, 0")
        a(f"s_cmp_eq_u64 vcc, 0")
        a(f"s_cbranch_scc1 {lp2}")
        a("s_sleep 4")
        a(f"buffer_load_dwordx4 v[{SP}:{SP+3}], v{vFA}, s[{sWS}:{sWS+3}], s{sZRB} offen sc1")
        a(f"buffer_load_dwordx4 v[{SP+4}:{SP+7}], v{vFA}, s[{sWS}:{sWS+3}], s{sZRB} offen offset:1024 sc1")
        a.vm -= 2
        a("s_waitcnt vmcnt(0)")
        a(f"s_branch {lp}")
        a.label(lp2)
    def z2_normalize():
        vZW = vRP
        a(f"s_lshl_b32 s{sT0}, s{sST}, 4")
        a(f"v_add_u32 v{vZW}, s{sT0}, v{vP}")
        a(f"v_mul_u32_u24 v{vZW}, 200, v{vZW}")
        a(f"v_lshl_add_u32 v{vZW}, v{vQ}, 3, v{vZW}")
        a(f"s_mul_i32 s{sT0}, s{sFH}, 96")
        a(f"s_add_u32 s{sT0}, s{sT0}, {ZT}")
        a(f"v_add_u32 v{vZW}, s{sT0}, v{vZW}")
        stats_check()
        lab = a.newlabel("k1_ep")
        a(f"s_xor_b32 s{sT0}, s{sW}, 1")
        a(f"s_or_b32 s{sT0}, s{sT0}, s{sJ}")
        a(f"s_cmp_lg_u32 s{sT0}, 0")
        a(f"s_cbranch_scc1 {lab}")
        a(f"v_mov_b32 v{t0}, 0")
        a(f"v_mov_b32 v{vDummy2}, 1")
        a(f"s_mov_b64 exec, 1")
        a(f"buffer_atomic_add v{vDummy2}, v{t0}, s[{sDBG}:{sDBG+3}], 0 offen sc0")
        a(f"s_mov_b64 exec, -1")
        a.vm -= 1
        a.label(lab)
        mq = TMP
        a(f"v_pk_add_f32 {P(mq)}, {P(SP)}, {P(SP+4)}")
        run(reduce_g4_multi(a, [mq, mq+1], [TMP+2, TMP+3]))
        a(f"v_mul_f32 v{mq}, {f32(1.0/768):#x}, v{mq}")
        a(f"v_mul_f32 v{mq+1}, {f32(1.0/768):#x}, v{mq+1}")
        a(f"v_fma_f32 v{mq+1}, -v{mq}, v{mq}, v{mq+1}")
        run(ln_finish_gen(a, mq, mq+1, sEPS))
        a(f"v_mov_b32 v{TMP+2}, v{mq+1}")
        for i in range(0, 12, 2):
            a(f"v_pk_add_f32 {P(Z2V+i)}, {P(Z2V+i)}, {P(mq)} op_sel_hi:[1,0] neg_lo:[0,1] neg_hi:[0,1]")
        for i in range(0, 12, 2):
            a(f"v_pk_mul_f32 {P(Z2V+i)}, {P(Z2V+i)}, {P(TMP+2)} op_sel_hi:[1,0]")
        for ft in range(3):
            a(f"v_cvt_pk_bf16_f32 v{TMP+8+2*ft}, v{Z2V+4*ft}, v{Z2V+4*ft+1}")
            a(f"v_cvt_pk_bf16_f32 v{TMP+8+2*ft+1}, v{Z2V+4*ft+2}, v{Z2V+4*ft+3}")
            a.ds(f"ds_write_b64 v{vZW}, {P(TMP+8+2*ft)} offset:{32*ft}")

    PUB = int(os.environ.get("PUB", "6"))
    NF5 = int(os.environ.get("NF5", "5"))
    vZR = KX; vZS = KX + 1
    def z2_addr():
        pass
        a(f"v_lshrrev_b32 v{vZR}, 1, v{vQ}")
        a(f"v_lshrrev_b32 v{t1}, 2, v{vP}")
        a(f"v_lshl_add_u32 v{vZR}, v{vZR}, 3, v{t1}")
        a(f"v_mul_u32_u24 v{vZR}, 200, v{vZR}")
        a(f"v_and_b32 v{t1}, 1, v{vQ}")
        a(f"v_lshl_add_u32 v{vZR}, v{t1}, 5, v{vZR}")
        a(f"v_and_b32 v{t1}, 3, v{vP}")
        a(f"v_lshl_add_u32 v{vZR}, v{t1}, 3, v{vZR}")
        a(f"v_lshlrev_b32 v{vZS}, 4, v{vL}")
    def z2_frag_stores():
        for rnd in range(2):
            lab = None
            if rnd == 1:
                lab = a.newlabel("k1_fr")
                a(f"s_cmp_ge_u32 s{sW}, 4")
                a(f"s_cbranch_scc1 {lab}")
            a(f"v_add_u32 v{t1}, s{sZ2L[rnd]}, v{vZR}")
            Tq = TMP + 4*rnd
            a(f"ds_read_b64_tr_b16 {P(Tq)}, v{t1}")
            a(f"ds_read_b64_tr_b16 {P(Tq+2)}, v{t1} offset:800")
            a("s_waitcnt lgkmcnt(0)")
            a(f"buffer_store_dwordx4 v[{Tq}:{Tq+3}], v{vZS}, s[{sWS}:{sWS+3}], s{sZ2G[rnd]} offen")
            if lab: a.label(lab)
    def publish_f1():
        a(f"s_lshl_b32 s{sT0}, s{sJ}, 8")
        a(f"s_lshl_b32 s{sT1}, s{sRB}, 3")
        a(f"s_add_u32 s{sT0}, s{sT0}, s{sT1}")
        a(f"s_add_u32 s{sT0}, s{sT0}, {WS_F1}")
        a(f"v_mov_b32 v{TMP}, s{sTAG}")
        a(f"v_mov_b32 v{TMP+1}, s{sTAG+1}")
        a(f"v_mov_b32 v{t0}, 0")
        a(f"s_cmp_eq_u32 s{sW}, 0")
        a(f"s_cselect_b64 exec, 1, 0")
        a(f"buffer_store_dwordx2 {P(TMP)}, v{t0}, s[{sWS}:{sWS+3}], s{sT0} offen sc1")
        a(f"s_mov_b64 exec, -1")

    def publish_stats():
        lab = a.newlabel("k1_pub")
        a(f"s_cmp_lg_u32 s{sW}, 0")
        a(f"s_cbranch_scc1 {lab}")
        a(f"v_lshlrev_b32 v{t0}, 3, v{vL}")
        a(f"v_add_u32 v{t1}, {ZSUM}, v{t0}")
        a(f"ds_read_b64 {P(TMP)}, v{t1}")
        a(f"ds_read_b64 {P(TMP+4)}, v{t1} offset:512")
        a(f"v_lshlrev_b32 v{t0}, 4, v{vL}")
        a(f"v_mov_b32 v{TMP+2}, s{sTAG}")
        a(f"v_mov_b32 v{TMP+3}, s{sTAG+1}")
        a("s_waitcnt lgkmcnt(0)")
        a(f"v_pk_add_f32 {P(TMP)}, {P(TMP)}, {P(TMP+4)}")
        a.lg -= 2
        a.label(lab)
        a(f"s_cmp_eq_u32 s{sW}, 0")
        a(f"s_cselect_b64 exec, -1, 0")
        a.vmem(f"buffer_store_dwordx4 v[{TMP}:{TMP+3}], v{t0}, s[{sWS}:{sWS+3}], s{sZPB} offen sc1")
        a(f"s_mov_b64 exec, -1")

    fill = Filler()
    A, B, C_ = sT0, sT1, sT2
    a(f"s_mul_i32 s{sEXW}, s{sW}, 3072"); a(f"s_add_u32 s{sEXW}, s{sEXW}, {EX}")
    a(f"s_xor_b32 s{A}, s{sW}, 4"); a(f"s_mul_i32 s{sEXR}, s{A}, 3072"); a(f"s_add_u32 s{sEXR}, s{sEXR}, {EX}")
    a(f"s_lshl_b32 s{A}, s{sFH}, 2"); a(f"s_lshl_b32 s{B}, s{sSH}, 1"); a(f"s_add_u32 s{A}, s{A}, s{B}"); a(f"s_add_u32 s{A}, s{A}, s{sKH}")
    a(f"s_mul_i32 s{sCSW}, s{A}, 192"); a(f"s_add_u32 s{sCSW}, s{sCSW}, {CSUM}")
    a(f"s_mul_i32 s{sCSR}, s{sFH}, 768"); a(f"s_add_u32 s{sCSR}, s{sCSR}, {CSUM}")
    a(f"s_lshl_b32 s{A}, s{sST}, 1"); a(f"s_add_u32 s{A}, s{A}, s{sKH}"); a(f"s_lshl_b32 s{A}, s{A}, 7"); a(f"s_add_u32 s{sXSW}, s{A}, {XSUM}")
    a(f"s_lshl_b32 s{A}, s{sST}, 8"); a(f"s_add_u32 s{sXSR}, s{A}, {XSUM}")
    a(f"s_lshl_b32 s{A}, s{sST}, 7"); a(f"s_lshl_b32 s{B}, s{sFH}, 9"); a(f"s_add_u32 s{A}, s{A}, s{B}"); a(f"s_add_u32 s{sZSW}, s{A}, {ZSUM}")
    a(f"s_lshl_b32 s{A}, s{sRB}, 3"); a(f"s_add_u32 s{A}, s{A}, s{sJ}"); a(f"s_lshl_b32 s{B}, s{A}, 10"); a(f"s_add_u32 s{sZPB}, s{B}, {WS_ZST}")
    if fused: a(f"s_mov_b32 s{A}, 0")
    else: a(f"s_mul_i32 s{A}, s{A}, 12288")
    a(f"s_lshr_b32 s{B}, s{sST}, 1"); a(f"s_mul_i32 s{B}, s{B}, 6144"); a(f"s_add_u32 s{A}, s{A}, s{B}")
    a(f"s_and_b32 s{B}, s{sST}, 1"); a(f"s_lshl_b32 s{B}, s{B}, 8"); a(f"s_add_u32 s{A}, s{A}, s{B}"); a(f"s_add_u32 s{A}, s{A}, {Z1L if fused else WS_Z1F}")
    for ft, dst in enumerate((sZ1S0, sZ1S1, sZ1S2)):
        a(f"s_mul_i32 s{B}, s{sFH}, 3"); a(f"s_add_u32 s{B}, s{B}, {ft}")
        a(f"s_lshr_b32 s{C_}, s{B}, 1"); a(f"s_lshl_b32 s{C_}, s{C_}, 10"); a(f"s_and_b32 s{B}, s{B}, 1"); a(f"s_lshl_b32 s{B}, s{B}, 3")
        a(f"s_add_u32 s{dst}, s{A}, s{B}"); a(f"s_add_u32 s{dst}, s{dst}, s{C_}")
    a(f"s_lshl_b32 s{A}, s{sRB}, 13"); a(f"s_lshl_b32 s{B}, s{sST}, 8"); a(f"s_add_u32 s{A}, s{A}, s{B}"); a(f"s_add_u32 s{sZRB}, s{A}, {WS_ZST}")
    a(f"s_lshl_b32 s{A}, s{sRB}, 9"); a(f"s_lshl_b32 s{B}, s{sST}, 7"); a(f"s_add_u32 s{A}, s{A}, s{B}"); a(f"s_add_u32 s{sXST}, s{A}, {WS_XST}")
    a(f"s_mul_i32 s{A}, s{sJ}, {80*4096}"); a(f"s_lshl_b32 s{B}, s{sRB}, 7"); a(f"s_add_u32 s{A}, s{A}, s{B}"); a(f"s_add_u32 s{sKVB}, s{A}, {WS_KVT}")
    a(f"s_lshr_b32 s{A}, s2, 3"); a(f"s_lshl_b32 s{A}, s{A}, 3"); a(f"s_add_u32 s{A}, s{A}, s{sW}"); a(f"s_lshl_b32 s{A}, s{A}, 13")
    a(f"s_lshl_b32 s{B}, s{sXC}, 21"); a(f"s_add_u32 s{sL2B}, s{A}, s{B}")
    for rnd in range(2):
        a(f"s_add_u32 s{sT3}, s{sW}, {8*rnd}")
        a(f"s_mul_i32 s{A}, s{sT3}, 43"); a(f"s_lshr_b32 s{A}, s{A}, 7")
        a(f"s_mul_i32 s{B}, s{A}, 3"); a(f"s_sub_u32 s{B}, s{sT3}, s{B}")
        a(f"s_mul_i32 s{A}, s{A}, {16*200}"); a(f"s_lshl_b32 s{B}, s{B}, 6"); a(f"s_add_u32 s{A}, s{A}, s{B}")
        a(f"s_add_u32 s{sZ2L[rnd]}, s{A}, {ZT}")
        a(f"s_lshl_b32 s{A}, s{sJ}, 7"); a(f"s_lshl_b32 s{B}, s{sRB}, 2"); a(f"s_add_u32 s{A}, s{A}, s{B}"); a(f"s_mul_i32 s{A}, s{A}, 3")
        a(f"s_add_u32 s{A}, s{A}, s{sT3}"); a(f"s_lshl_b32 s{A}, s{A}, 10"); a(f"s_add_u32 s{sZ2G[rnd]}, s{A}, {WS_Z2F}")
    if "pro" in K1X: ST("setup")
    a.wait_vm(max(w_last[0], x_last[0]))
    if "pro" in K1X: ST("w0arr")
    a("s_waitcnt lgkmcnt(0)")
    a(f"s_add_u32 s{sTAG}, s{sTAG}, 1")
    a(f"s_addc_u32 s{sTAG+1}, s{sTAG+1}, 0")
    a("s_barrier")
    ST("d0")
    reads(0)
    if "late1" in K1X: dma_x(1); dma_w(1)
    dma_x(2); dma_w(2)
    for p in range(10):
        a.comment(f"---------------- iteration {p}")
        if p + 1 < 10:
            need = w_last[p+1]
            if p + 1 < 5: need = max(need, x_last[p+1])
            a.wait_vm(need)
        if "f5" in K1X and p in (5, 6): ST(f"w{p}")
        a("s_waitcnt lgkmcnt(0)")
        a("s_barrier")
        if ("pro" not in K1X or p < 2) and ("pubst" not in K1X or p in (6, 7, 8, 9)): ST(f"i{p}")
        if p == PUB and "pub5" not in K1X: publish_stats()
        if p + 1 < 10 and "nocomp" not in K1X:
            if "rdfirst" in K1X: reads(p + 1)
            else: fill.add(reads_g(p + 1))
        dmaf = Filler()
        if p + 3 < 5: dmaf.add(dma_x_g(p + 3))
        if p + 3 < 10: dmaf.add(dma_w_g(p + 3))
        if p == int(os.environ.get("KVD", "5")): dmaf.add(kv_dma())
        sched = {"a": {1:[0],2:[1],3:[2],4:[3],5:[4],6:[5],7:[6],8:[7]},
                 "b": {5:[0,1],6:[2,3],7:[4,5],8:[6,7]},
                 "c": {4:[0],5:[1],6:[2,3],7:[4,5],8:[6,7]},
                 "d": {6:[0,1,2],7:[3,4,5],8:[6,7]},
                 "e": {7:[0,1,2,3],8:[4,5,6,7]},
                 "f": {}, "g": {8:[0,1,2,3]}, "h": {9:[0,1,2,3]}, "i": {7:[0,1], 8:[2,3,4], 9:[5,6,7]}}[os.environ.get("L2S", "a")]
        for i_ in sched.get(p, []):
            if "l2pf" in K1X: dmaf.add(gen1(lambda i_=i_: l2_touch_wsp(i_)))
            else: dmaf.add(gen1(lambda i_=i_: mall_touch(sWSP, 32, i_*4, 4)))
        if p in (2, 5): dmaf.add(gen1(lambda p=p: mall_touch(sSSM, 10, 0 if p == 2 else 5, 5)))
        if p == 7 and "nowo" not in K1X: dmaf.add(gen1(lambda: mall_touch(sWOU, 4, 0, 4)))
        if p == (8 if EARLY else int(os.environ.get('SLD', '9'))): stats_load()
        if p == 9 and EARLY:
            z2_frag_stores()
            run(kv_store())
        nf = 0 if "rdfirst" in K1X else 2
        if p == 5:
            if "f5" in K1X: ST("f5a")
            fold_gelu(0, Z2V, TMP, TMP+12, [TMP+16, ACC, ACC+12, CSA])
            if "f5" in K1X: ST("f5b")
            run(z2_stats())
            if "pub5" in K1X:
                a("s_waitcnt lgkmcnt(0)")
                a("s_barrier")
                publish_stats()
            run(xst_store())
            if "f5" in K1X: ST("f5c")
        if "nocomp" in K1X:
            dmaf.drain(); fill.q = []
        else:
            mfmas(p, fill, nf, dmaf)
            fill.drain()
        if "f5" in K1X and p in (4, 5): ST(f"f{p}m")
        if p == 4: exchange_write(0, Z2V)
        if p == 8 and EARLY:
            kv_loads()
            run(kv_compute())
            z2_normalize()
            z2_addr()
        if p == 9:
            if "f5" in K1X: ST("f9m")
            exchange_write(1, WF)
            if not EARLY:
                kv_loads()
                run(kv_compute())
                if "f5" in K1X: ST("f9k")
                z2_normalize()
    ST("loop")
    if not EARLY:
        z2_addr()
        a("s_waitcnt lgkmcnt(0)")
        a("s_barrier")
        ST("bar")
        z2_frag_stores()
        run(kv_store())
    else:
        a("s_waitcnt vmcnt(0) lgkmcnt(0)")
        a("s_barrier")
        ST("bar")
        publish_f1()
        if "l2pf" in K1X:
            L2S_ = os.environ.get("L2S", "a")
            for i_ in {"f": range(8), "g": range(4, 8), "h": range(4, 8)}.get(L2S_, []): l2_touch_wsp(i_)
    Z1V = WF
    T2 = XF
    fold_gelu(1, Z1V, T2, T2+12, [T2+16, T2+28, T2+40, T2+52])
    a(f"v_lshrrev_b32 v{t0}, 1, v{vQ}")
    a(f"v_mul_u32_u24 v{t0}, 3072, v{t0}")
    a(f"v_and_b32 v{t1}, 1, v{vQ}")
    a(f"v_lshlrev_b32 v{t1}, 5, v{t1}")
    a(f"v_add_u32 v{t1}, v{t1}, v{vP}")
    a(f"v_lshl_add_u32 v{t0}, v{t1}, 4, v{t0}")
    for ft in range(3):
        a(f"v_cvt_pk_bf16_f32 v{T2+2*ft}, v{Z1V+4*ft}, v{Z1V+4*ft+1}")
        a(f"v_cvt_pk_bf16_f32 v{T2+2*ft+1}, v{Z1V+4*ft+2}, v{Z1V+4*ft+3}")
        if fused:
            a(f"v_add_u32 v{t1}, s{[sZ1S0, sZ1S1, sZ1S2][ft]}, v{t0}")
            a.ds(f"ds_write_b64 v{t1}, {P(T2+2*ft)}")
        else:
            a.vmem(f"buffer_store_dwordx2 {P(T2+2*ft)}, v{t0}, s[{sWS}:{sWS+3}], s{[sZ1S0, sZ1S1, sZ1S2][ft]} offen")
    lab = a.newlabel("k1_ep2")
    a(f"s_xor_b32 s{sT0}, s{sW}, 1")
    a(f"s_or_b32 s{sT0}, s{sT0}, s{sJ}")
    a(f"s_cmp_lg_u32 s{sT0}, 0")
    a(f"s_cbranch_scc1 {lab}")
    a("s_waitcnt vmcnt(0)")
    a(f"v_readfirstlane_b32 s{sT0}, v{vDummy2}")
    a(f"s_cmp_lg_u32 s{sT0}, 31")
    a(f"s_cbranch_scc1 {lab}")
    a(f"v_mov_b32 v{TMP}, s{sTAG}")
    a(f"v_mov_b32 v{TMP+1}, s{sTAG+1}")
    a(f"v_mov_b32 v{t0}, {WS_EPO}")
    a(f"s_mov_b64 exec, 1")
    a(f"buffer_store_dwordx2 {P(TMP)}, v{t0}, s[{sWS}:{sWS+3}], 0 offen sc1")
    a(f"s_mov_b64 exec, -1")
    a.label(lab)
    if fused and EARLY:
        a("s_waitcnt lgkmcnt(0)")
        a("s_barrier")
    if fused and not EARLY:
        a("s_waitcnt vmcnt(0) lgkmcnt(0)")
        a("s_barrier")
        a(f"s_lshl_b32 s{sT0}, s{sJ}, 8")
        a(f"s_lshl_b32 s{sT1}, s{sRB}, 3")
        a(f"s_add_u32 s{sT0}, s{sT0}, s{sT1}")
        a(f"s_add_u32 s{sT0}, s{sT0}, {WS_F1}")
        a(f"v_mov_b32 v{TMP}, s{sTAG}")
        a(f"v_mov_b32 v{TMP+1}, s{sTAG+1}")
        a(f"v_mov_b32 v{t0}, 0")
        a(f"s_cmp_eq_u32 s{sW}, 0")
        a(f"s_cselect_b64 exec, 1, 0")
        a(f"buffer_store_dwordx2 {P(TMP)}, v{t0}, s[{sWS}:{sWS+3}], s{sT0} offen sc1")
        a(f"s_mov_b64 exec, -1")
    ST("end")
    ST.dump(sWS, sW, t0, t1, WS_DBG)
    gen_k1.stamp_names = ST.names
    if fused:
        if "st2" not in K1X: raise SystemExit("fused needs st2")
        a.items = [(k, (t + " sc1") if (k == "i" and t.startswith("buffer_store_dwordx4") and " sc1" not in t) else t) for k, t in a.items]
        return a, V.hi, sW
    a.label(f"{name}_end")
    a("s_endpgm")
    if "st2" in K1X:
        a.items = [(k, (t + " sc1") if (k == "i" and t.startswith("buffer_store_dwordx4") and " sc1" not in t) else t) for k, t in a.items]
    if "st1" in K1X:
        a.items = [(k, (t + " sc1") if (k == "i" and t.startswith("buffer_store") and " sc1" not in t) else t) for k, t in a.items]
    gen_k1.ninstr = sum(1 for k, _ in a.items if k == "i")
    return a.finish(), V.hi
```

```python
from dsl import *
from layout import *
from k1 import f32, Filler, run, mask, P, Z1L, SYNC
sTAGF = 100

def gsync(a, which, state, t0, t1):
    state[0] += 1
    a("s_waitcnt lgkmcnt(0)")
    a(f"v_mov_b32 v{t0}, {SYNC + 4*which}")
    a(f"v_mov_b32 v{t1}, 1")
    a("s_mov_b64 exec, 1")
    a(f"ds_add_u32 v{t0}, v{t1}")
    a("s_mov_b64 exec, -1")
    lp = a.newlabel("gsync"); le = a.newlabel("gsync_e")
    a("s_mov_b32 s67, 0")
    a.label(lp)
    a(f"ds_read_b32 v{t1}, v{t0}")
    a("s_add_u32 s67, s67, 1")
    a("s_waitcnt lgkmcnt(0)")
    a(f"v_readfirstlane_b32 s66, v{t1}")
    a("s_cmp_gt_u32 s67, 1000000")
    a(f"s_cbranch_scc1 {le}")
    a(f"s_cmp_lt_u32 s66, {4*state[0]}")
    a(f"s_cbranch_scc1 {lp}")
    a.label(le)
    a.lg -= 2

def poll_all_flags(a, sWS, F, t0, base=None):
    lp = a.newlabel("fpoll"); le = a.newlabel("fpoll_e")
    a(f"v_mbcnt_lo_u32_b32 v{t0}, -1, 0")
    a(f"v_mbcnt_hi_u32_b32 v{t0}, -1, v{t0}")
    a(f"v_lshlrev_b32 v{t0}, 4, v{t0}")
    a(f"s_mov_b32 s66, {WS_F1 if base is None else base}")
    a("s_mov_b32 s67, 0")
    a.label(lp)
    a(f"buffer_load_dwordx4 v[{F}:{F+3}], v{t0}, s[{sWS}:{sWS+3}], s66 offen sc1")
    a(f"buffer_load_dwordx4 v[{F+4}:{F+7}], v{t0}, s[{sWS}:{sWS+3}], s66 offen offset:1024 sc1")
    a.vm -= 2
    a("s_add_u32 s67, s67, 1")
    a("s_waitcnt vmcnt(0)")
    a(f"v_cmp_ne_u32 vcc, s{sTAGF}, v{F}")
    for k in range(1, 8):
        a(f"v_cmp_ne_u32 s[64:65], s{sTAGF + (k & 1)}, v{F+k}")
        a("s_or_b64 vcc, vcc, s[64:65]")
    a("s_cmp_gt_u32 s67, 100000")
    a(f"s_cbranch_scc1 {le}")
    a("s_cmp_eq_u64 vcc, 0")
    a(f"s_cbranch_scc1 {le}")
    a("s_sleep 2")
    a(f"s_branch {lp}")
    a.label(le)

def poll_flags_n(a, sWS, sOff, n, F, t0):
    lp = a.newlabel("fpoll"); le = a.newlabel("fpoll_e")
    a(f"v_mbcnt_lo_u32_b32 v{t0}, -1, 0")
    a(f"v_mbcnt_hi_u32_b32 v{t0}, -1, v{t0}")
    a(f"v_min_u32 v{t0}, {n-1}, v{t0}")
    a(f"v_lshlrev_b32 v{t0}, 3, v{t0}")
    a("s_mov_b32 s67, 0")
    a.label(lp)
    a(f"buffer_load_dwordx2 {P(F)}, v{t0}, s[{sWS}:{sWS+3}], s{sOff} offen sc1")
    a.vm -= 1
    a("s_add_u32 s67, s67, 1")
    a("s_waitcnt vmcnt(0)")
    a(f"v_cmp_ne_u32 vcc, s{sTAGF}, v{F}")
    a(f"v_cmp_ne_u32 s[64:65], s{sTAGF+1}, v{F+1}")
    a("s_or_b64 vcc, vcc, s[64:65]")
    a("s_cmp_gt_u32 s67, 100000")
    a(f"s_cbranch_scc1 {le}")
    a("s_cmp_eq_u64 vcc, 0")
    a(f"s_cbranch_scc1 {le}")
    a("s_sleep 2")
    a(f"s_branch {lp}")
    a.label(le)

def poll_flags(a, sWS, sOff, F, t0):
    lp = a.newlabel("fpoll"); le = a.newlabel("fpoll_e")
    a(f"v_mbcnt_lo_u32_b32 v{t0}, -1, 0")
    a(f"v_mbcnt_hi_u32_b32 v{t0}, -1, v{t0}")
    a(f"v_and_b32 v{t0}, 31, v{t0}")
    a(f"v_lshlrev_b32 v{t0}, 3, v{t0}")
    a("s_mov_b32 s67, 0")
    a.label(lp)
    a(f"buffer_load_dwordx2 {P(F)}, v{t0}, s[{sWS}:{sWS+3}], s{sOff} offen sc1")
    a.vm -= 1
    a("s_add_u32 s67, s67, 1")
    a("s_waitcnt vmcnt(0)")
    a(f"v_cmp_ne_u32 vcc, s{sTAGF}, v{F}")
    a(f"v_cmp_ne_u32 s[64:65], s{sTAGF+1}, v{F+1}")
    a("s_or_b64 vcc, vcc, s[64:65]")
    a("s_cmp_gt_u32 s67, 100000")
    a(f"s_cbranch_scc1 {le}")
    a("s_cmp_eq_u64 vcc, 0")
    a(f"s_cbranch_scc1 {le}")
    a("s_sleep 2")
    a(f"s_branch {lp}")
    a.label(le)
import os
K2X = os.environ.get('K2X', '')

ZDEPTH = int(os.environ.get('ZD', '4'))
FUSED = bool(os.environ.get('FUSED'))
FULL = os.environ.get('FUSED') == '2'
CB = 86016 if FUSED else 0
CS_ = 4160
TOEP = CB
OZ = 1
UZ = 32
UB = TOEP + 8 * CS_
PB = UB + 4608
PT_ = 8192
WJ = PB + 4*PT_
assert WJ + 5120 <= (161792 if FUSED else 81920)

def gen_gemm(a, V, ST, prof):
    sWSP, sWS, sBSP = 4, 8, 12
    sRB, sJ, sW = 32, 33, 34
    sT0, sT1, sT2, sT3 = 40, 41, 42, 43
    sZ, sWB, sLB = 44, 45, 46
    a(f"s_load_dwordx2 s[{sWSP}:{sWSP+1}], s[0:1], {KA['wsp']}")
    a(f"s_load_dwordx2 s[{sWS}:{sWS+1}], s[0:1], {KA['ws']}")
    a(f"s_load_dwordx2 s[{sBSP}:{sBSP+1}], s[0:1], {KA['bsp']}")
    vL = V(); t0, t1, t2 = V(), V(), V()
    a(f"v_lshrrev_b32 v{t0}, 6, v0")
    a(f"v_and_b32 v{vL}, 63, v0")
    a(f"v_readfirstlane_b32 s{sW}, v{t0}")
    for srd, size in ((sWSP, SZ_WSP), (sWS, WS_SIZE_DBG if prof else WS_END), (sBSP, 4096)):
        a(f"s_mov_b32 s{srd+2}, {size}")
        a(f"s_mov_b32 s{srd+3}, {SRD3:#x}")
    a(f"s_and_b32 s{sT0}, s2, 7")
    a(f"s_lshr_b32 s{sT1}, s2, 3")
    a(f"s_and_b32 s{sT1}, s{sT1}, 31")
    a(f"s_lshr_b32 s{sRB}, s{sT0}, 1")
    a(f"s_lshl_b32 s{sRB}, s{sRB}, 3")
    a(f"s_and_b32 s{sT2}, s{sT1}, 7")
    a(f"s_add_u32 s{sRB}, s{sRB}, s{sT2}")
    a(f"s_and_b32 s{sJ}, s{sT0}, 1")
    a(f"s_lshl_b32 s{sJ}, s{sJ}, 2")
    a(f"s_lshr_b32 s{sT2}, s{sT1}, 3")
    a(f"s_add_u32 s{sJ}, s{sJ}, s{sT2}")
    a(f"s_lshl_b32 s{sZ}, s{sJ}, 7")
    a(f"s_lshl_b32 s{sT0}, s{sW}, 5")
    a(f"s_add_u32 s{sZ}, s{sZ}, s{sT0}")
    a(f"s_mul_i32 s{sZ}, s{sZ}, 3072")
    a(f"s_add_u32 s{sZ}, s{sZ}, {WS_Z2F}")
    a(f"s_lshl_b32 s{sWB}, s{sRB}, 18")
    a(f"s_lshl_b32 s{sT0}, s{sW}, 10")
    a(f"s_add_u32 s{sWB}, s{sWB}, s{sT0}")
    a(f"s_lshl_b32 s{sLB}, s{sW}, 14")
    vZ = V()
    a(f"v_lshlrev_b32 v{vZ}, 4, v{vL}")
    vWE, vWO = V(), V()
    a(f"v_lshrrev_b32 v{t0}, 3, v{vL}")
    a(f"v_lshlrev_b32 v{t0}, 12, v{t0}")
    a(f"v_and_b32 v{t1}, 7, v{vL}")
    a(f"v_lshrrev_b32 v{t2}, 4, v{vL}")
    a(f"v_xor_b32 v{t1}, v{t1}, v{t2}")
    a(f"v_lshl_add_u32 v{vWE}, v{t1}, 4, v{t0}")
    a(f"v_xor_b32 v{vWO}, 64, v{vWE}")
    sROT = 50
    if "rot" in K2X:
        a(f"s_and_b32 s{sROT}, s{sJ}, 3")
        a(f"s_lshl_b32 s{sROT}, s{sROT}, 1")
        a(f"s_add_u32 s{sROT}, s{sROT}, s{sRB}")
        a(f"s_and_b32 s{sROT}, s{sROT}, 7")
    else: a(f"s_mov_b32 s{sROT}, 0")
    def chunk(c, dst):
        a(f"s_add_u32 s{dst}, s{sROT}, {c}")
        a(f"s_and_b32 s{dst}, s{dst}, 7")
    ACC = V(96, 4)
    def acc(ft, tt): return ACC + (ft*2 + tt)*16
    ZF = V((ZDEPTH+1)*12, 4)
    def zf(ks, ft): return ZF + ((ks % (ZDEPTH+1))*3 + ft)*4
    WFr = V(16, 4)
    def wfr(b, tt): return WFr + (b*2 + tt)*4
    z_id = {}; w_id = {}
    sZc = [52, 53]; sWc = [54, 55]
    def z_base(c):
        chunk(c, sZc[c & 1])
        a(f"s_mul_i32 s{sZc[c & 1]}, s{sZc[c & 1]}, 12288")
        a(f"s_add_u32 s{sZc[c & 1]}, s{sZc[c & 1]}, s{sZ}")
    def w_base(c):
        chunk(c, sWc[c & 1])
        a(f"s_lshl_b32 s{sWc[c & 1]}, s{sWc[c & 1]}, 7")
        a(f"s_add_u32 s{sWc[c & 1]}, s{sWc[c & 1]}, s{sWB}")
    def load_z_g(ks):
        c = ks // 4
        if ks % 4 == 0: z_base(c)
        for ft in range(3):
            so = sZc[c & 1]
            if ks % 4:
                a(f"s_add_u32 s{sT1}, s{sZc[c & 1]}, {(ks%4)*3072}"); so = sT1
            z_id[(ks, ft)] = a.vmem(f"buffer_load_dwordx4 v[{zf(ks,ft)}:{zf(ks,ft)+3}], v{vZ}, s[{sWS}:{sWS+3}], s{so} offen offset:{ft*1024}" + (" sc1" if FUSED else ""))
            yield
    def dma_w_g(c, lo, hi):
        sl = c & 1
        if lo == 0: w_base(c)
        for i in range(lo, hi):
            a(f"s_add_u32 s{sT2}, s{sWc[c & 1]}, {i*8*4096}")
            a(f"s_add_u32 m0, s{sLB}, {sl*8192 + i*1024}")
            w_id[c] = a.vmem(f"buffer_load_dwordx4 v{vWE if i % 2 == 0 else vWO}, s[{sWSP}:{sWSP+3}], s{sT2} offen lds")
            yield
    a("s_waitcnt lgkmcnt(0)")
    ST("g_kernarg")
    if FUSED:
        run(dma_w_g(0, 0, 8))
        a(f"s_lshl_b32 s{sT3}, s{sJ}, 8")
        a(f"s_add_u32 s{sT3}, s{sT3}, {WS_F1}")
        poll_flags(a, sWS, sT3, ZF, t0)
        ST("g_flags")
        for ks in range(ZDEPTH): run(load_z_g(ks))
    else:
        run(load_z_g(0)); run(dma_w_g(0, 0, 8))
        for ks in range(1, ZDEPTH): run(load_z_g(ks))
    vWA = [V() for _ in range(4)]
    a(f"v_and_b32 v{t0}, 31, v{vL}")
    a(f"v_lshrrev_b32 v{t1}, 1, v{t0}")
    a(f"v_and_b32 v{t1}, 7, v{t1}")
    a(f"v_lshrrev_b32 v{t2}, 5, v{vL}")
    a(f"v_xor_b32 v{t1}, v{t1}, v{t2}")
    a(f"v_lshl_add_u32 v{t0}, v{t0}, 7, s{sLB}")
    for kk in range(4):
        a(f"v_xor_b32 v{t2}, {2*kk}, v{t1}")
        a(f"v_lshl_add_u32 v{vWA[kk]}, v{t2}, 4, v{t0}")
    Z1 = V(12, 4); vB = V()
    ep = {}
    def epi_loads():
        a(f"s_lshl_b32 s{sT0}, s{sRB}, 3")
        a(f"s_add_u32 s{sT0}, s{sT0}, s{sJ}")
        a(f"s_lshl_b32 s{sT0}, s{sT0}, 2")
        a(f"s_add_u32 s{sT0}, s{sT0}, s{sW}")
        a(f"s_mul_i32 s{sT0}, s{sT0}, 3072")
        a(f"s_add_u32 s{sT0}, s{sT0}, {WS_Z1F}")
        for ft in range(3):
            if FUSED:
                if ft == 0:
                    a(f"s_mul_i32 s{sT0}, s{sW}, 3072")
                    a(f"s_add_u32 s{sT0}, s{sT0}, {Z1L}")
                    a(f"v_add_u32 v{t1}, s{sT0}, v{vZ}")
                a.ds(f"ds_read_b128 v[{Z1+4*ft}:{Z1+4*ft+3}], v{t1} offset:{ft*1024}")
            else:
                a.vmem(f"buffer_load_dwordx4 v[{Z1+4*ft}:{Z1+4*ft+3}], v{vZ}, s[{sWS}:{sWS+3}], s{sT0} offen offset:{ft*1024}")
            yield
        a(f"v_and_b32 v{t0}, 31, v{vL}")
        a(f"v_lshlrev_b32 v{t0}, 1, v{t0}")
        a(f"s_lshr_b32 s{sT0}, s{sW}, 1")
        a(f"s_lshl_b32 s{sT0}, s{sT0}, 6")
        a(f"s_lshl_b32 s{sT3}, s{sRB}, 7")
        a(f"s_add_u32 s{sT0}, s{sT0}, s{sT3}")
        ep['b'] = a.vmem(f"buffer_load_ushort v{vB}, v{t0}, s[{sBSP}:{sBSP+3}], s{sT0} offen")
        yield
    def read_w(ks):
        c = ks // 4; kk = ks % 4; b = ks & 1
        ids = []
        for tt in range(2):
            ids.append(a.ds(f"ds_read_b128 v[{wfr(b,tt)}:{wfr(b,tt)+3}], v{vWA[kk]} offset:{(c&1)*8192 + tt*4096}"))
        return ids[-1]
    a.wait_vm(w_id[0])
    ST("g_w0")
    if "noprio" not in K2X: a("s_setprio 2")
    rd = {0: read_w(0)}
    for ks in range(32):
        c = ks // 4
        if ks % 4 == 0 and "cst" in K2X: ST(f"c{c}")
        if ks == int(os.environ.get("PSW", "99")): a("s_setprio 0")
        a.wait_vm(z_id[(ks, 2)])
        a.wait_lg(rd[ks])
        fl = Filler()
        def rdw(k=ks):
            if (k + 1) % 4 == 0: a.wait_vm(w_id[(k + 1)//4])
            rd[k + 1] = read_w(k + 1)
            yield
        if ks + 1 < 32: fl.add(rdw())
        if ks + ZDEPTH < 32: fl.add(load_z_g(ks + ZDEPTH))
        if ks == 0: fl.add(dma_w_g(1, 0, 4))
        if ks == 1: fl.add(dma_w_g(1, 4, 8))
        for n in range(2, 8):
            if ks == 4*(n-1) - 1: fl.add(dma_w_g(n, 0, 2))
            if ks == 4*(n-1): fl.add(dma_w_g(n, 2, 5))
            if ks == 4*(n-1) + 1: fl.add(dma_w_g(n, 5, 8))
        if ks == 30: fl.add(epi_loads())
        b = ks & 1
        for ft in range(3):
            for tt in range(2):
                cc = "0" if ks == 0 else f"v[{acc(ft,tt)}:{acc(ft,tt)+15}]"
                if not ("nomfma" in K2X and ks > 0):
                    a(f"v_mfma_f32_32x32x16_bf16 v[{acc(ft,tt)}:{acc(ft,tt)+15}], v[{zf(ks,ft)}:{zf(ks,ft)+3}], v[{wfr(b,tt)}:{wfr(b,tt)+3}], {cc}")
                fl.step(1)
        fl.drain()
    ST("g_loop")
    a("s_setprio 0")
    OWN = ZF
    lend = a.newlabel("g_epi_end")
    labs = [a.newlabel("g_epi") for _ in range(4)]
    a(f"v_add_u32 v{t2}, 0x10000, v{vZ}")
    a("s_nop 15")
    gst = [0]
    gen_gemm.gst = gst
    if FUSED: gsync(a, 0, gst, t0, t1)
    else: a("s_barrier")
    lg0 = a.lg
    for w in range(4):
        if w < 3:
            a(f"s_cmp_lg_u32 s{sW}, {w}")
            a(f"s_cbranch_scc1 {labs[w]}")
        a.lg = lg0
        for d in range(4):
            if d == w: continue
            tt = d >> 1; g0 = d & 1
            k = (w - d - 1) & 3
            for ft in range(3):
                for gh in range(2):
                    r = acc(ft, tt) + 4*(g0 + 2*gh)
                    off = d*18432 + k*6144 + (ft*2+gh)*1024
                    if off >= 65536: a.ds(f"ds_write_b128 v{t2}, v[{r}:{r+3}] offset:{off - 65536}")
                    else: a.ds(f"ds_write_b128 v{vZ}, v[{r}:{r+3}] offset:{off}")
        tt = w >> 1; g0 = w & 1
        for ft in range(3):
            for gh in range(2):
                r = acc(ft, tt) + 4*(g0 + 2*gh)
                for e in range(0, 4, 2):
                    a(f"v_pk_add_f32 {P(OWN + (ft*2+gh)*4 + e)}, {P(r+e)}, 0")
        if w < 3:
            a(f"s_branch {lend}")
            a.label(labs[w])
    a.label(lend)
    return_epi = True
    a("s_waitcnt lgkmcnt(0)")
    if FUSED: gsync(a, 0, gst, t0, t1)
    else: a("s_barrier")
    PT = ACC
    a(f"s_mul_i32 s{sT0}, s{sW}, 18432")
    a(f"v_add_u32 v{t0}, s{sT0}, v{vZ}")
    for k in range(3):
        for q in range(6):
            a.ds(f"ds_read_b128 v[{PT + (k*6+q)*4}:{PT + (k*6+q)*4 + 3}], v{t0} offset:{k*6144 + q*1024}")
    vSt = vWE
    a(f"v_lshrrev_b32 v{vSt}, 4, v{vL}")
    a(f"v_and_b32 v{vSt}, 1, v{vSt}")
    a(f"v_mul_u32_u24 v{vSt}, {24*1024}, v{vSt}")
    a(f"v_and_b32 v{t1}, 15, v{vL}")
    a(f"v_lshrrev_b32 v{t2}, 5, v{vL}")
    a(f"v_lshl_add_u32 v{t1}, v{t2}, 4, v{t1}")
    a(f"v_lshl_add_u32 v{vSt}, v{t1}, 4, v{vSt}")
    a(f"s_mul_i32 s{sT0}, s{sRB}, {4*24*1024}")
    a(f"s_lshr_b32 s{sT1}, s{sW}, 1")
    a(f"s_mul_i32 s{sT1}, s{sT1}, {2*24*1024}")
    a(f"s_add_u32 s{sT0}, s{sT0}, s{sT1}")
    a(f"s_mul_i32 s{sT1}, s{sJ}, 3072")
    a(f"s_add_u32 s{sT0}, s{sT0}, s{sT1}")
    a(f"s_and_b32 s{sT1}, s{sW}, 1")
    a(f"s_lshl_b32 s{sT1}, s{sT1}, 9")
    a(f"s_add_u32 s{sT0}, s{sT0}, s{sT1}")
    a(f"s_add_u32 s{sT0}, s{sT0}, {WS_PF}")
    a.wait_vm(ep['b'])
    vB2 = vWA[0] if vWA[0] % 2 == 0 else vWA[1]
    a(f"v_lshlrev_b32 v{vB2}, 16, v{vB}")
    ZU = PT + 72
    for i in range(12):
        a(f"v_lshlrev_b32 v{ZU+2*i}, 16, v{Z1+i}")
        a(f"v_and_b32 v{ZU+2*i+1}, 0xffff0000, v{Z1+i}")
    for k in range(3):
        a(f"s_waitcnt lgkmcnt({min(15, 12 - 6*k)})")
        for i in range(0, 24, 2):
            a(f"v_pk_add_f32 {P(OWN+i)}, {P(OWN+i)}, {P(PT+k*24+i)}")
    for i in range(0, 24, 2):
        a(f"v_pk_add_f32 {P(OWN+i)}, {P(OWN+i)}, {P(vB2)} op_sel_hi:[1,0]")
    for i in range(0, 24, 2):
        a(f"v_pk_mul_f32 {P(OWN+i)}, {P(OWN+i)}, {P(ZU+i)}")
    OUT = PT
    for ft in range(3):
        for i in range(4):
            a(f"v_cvt_pk_bf16_f32 v{OUT+4*ft+i}, v{OWN+8*ft+2*i}, v{OWN+8*ft+2*i+1}")
        a.vmem(f"buffer_store_dwordx4 v[{OUT+4*ft}:{OUT+4*ft+3}], v{vSt}, s[{sWS}:{sWS+3}], s{sT0} offen offset:{ft*1024}" + (" sc1" if "psc1" in K2X else ""))
    ST("g_end")
    ST.dump(sWS, sW, t0, t1, WS_DBG + 0x200000)

def gen_conv(a, V, ST, prof, name):
    sSSM, sWS, sDv, sWSP, sWO = 4, 8, 12, 16, 20
    sC, sW, sCH = 32, 34, 35
    sT0, sT1, sT2, sT3 = 40, 41, 42, 43
    a(f"s_load_dwordx2 s[{sSSM}:{sSSM+1}], s[0:1], {KA['ssmk']}")
    a(f"s_load_dwordx2 s[{sWS}:{sWS+1}], s[0:1], {KA['ws']}")
    a(f"s_load_dwordx2 s[{sDv}:{sDv+1}], s[0:1], {KA['ssmD']}")
    a(f"s_load_dwordx2 s[{sWSP}:{sWSP+1}], s[0:1], {KA['wsp']}")
    a(f"s_load_dwordx2 s[{sWO}:{sWO+1}], s[0:1], {KA['wout']}")
    vL = V(); vT = V(); t0, t1, t2 = V(), V(), V()
    if FUSED: a(f"v_subrev_u32 v0, 256, v0")
    if os.environ.get("CPRIO"): a(f"s_setprio {os.environ['CPRIO']}")
    cst = [0]
    gen_conv.cst = cst
    def csync():
        if FUSED: gsync(a, 1, cst, t0, t1)
        else:
            a("s_waitcnt lgkmcnt(0)")
            a("s_barrier")
    a(f"v_lshrrev_b32 v{t0}, 6, v0")
    a(f"v_and_b32 v{vL}, 63, v0")
    a(f"v_readfirstlane_b32 s{sW}, v{t0}")
    for srd, size in ((sSSM, SZ_SSMK), (sWS, WS_SIZE_DBG if prof else WS_END), (sDv, 1280), (sWSP, SZ_WSP), (sWO, SZ_WOUT)):
        a(f"s_mov_b32 s{srd+2}, {size}")
        a(f"s_mov_b32 s{srd+3}, {SRD3:#x}")
    a(f"s_mov_b32 s{sC}, s2")
    a(f"v_lshlrev_b32 v{vT}, 4, v0")
    NCH = 3
    HR = V(8*NCH, 4); UR = V(4*NCH, 4); DR = V(NCH)
    vTm = V()
    FP = V(8, 4)
    a(f"v_subrev_u32 v{vTm}, 16, v{vT}")
    sCHN = [56, 57, 58]
    a(f"s_mov_b32 s{sCHN[0]}, s2")
    a(f"s_add_u32 s{sCHN[1]}, s2, 256")
    a(f"s_lshr_b32 s{sCHN[2]}, s2, 1")
    a(f"s_add_u32 s{sCHN[2]}, s{sCHN[2]}, 512")
    ld = {}
    def loads(i):
        a(f"s_lshl_b32 s{sT0}, s{sCHN[i]}, 12")
        a.vmem(f"buffer_load_dwordx4 v[{HR+8*i+4}:{HR+8*i+7}], v{vT}, s[{sSSM}:{sSSM+3}], s{sT0} offen")
        a.vmem(f"buffer_load_dwordx4 v[{HR+8*i}:{HR+8*i+3}], v{vTm}, s[{sSSM}:{sSSM+3}], s{sT0} offen")
        a(f"s_lshl_b32 s{sT1}, s{sCHN[i]}, 1")
        a(f"v_mov_b32 v{t0}, 0")
        a.vmem(f"buffer_load_ushort v{DR+i}, v{t0}, s[{sDv}:{sDv+3}], s{sT1} offen")
        if FUSED:
            ld[i] = a.vm - 1
            return
        load_u(i)
    def load_u(i):
        a(f"s_lshl_b32 s{sT0}, s{sCHN[i]}, 12")
        a(f"s_add_u32 s{sT0}, s{sT0}, {WS_KVT}")
        ld[i] = a.vmem(f"buffer_load_dwordx4 v[{UR+4*i}:{UR+4*i+3}], v{vT}, s[{sWS}:{sWS+3}], s{sT0} offen" + (" sc1" if FUSED else ""))
    def poll_all():
        poll_all_flags(a, sWS, FP, t0)
    a("s_waitcnt lgkmcnt(0)")
    ST("c_kernarg")
    loads(0)
    vTW, vTZ, vDm = V(), V(), V()
    sU, sTWB, sTZB = 47, 52, 53
    a(f"s_lshr_b32 s{sU}, s2, 3")
    a(f"s_lshl_b32 s{sU}, s{sU}, 2")
    a(f"s_add_u32 s{sU}, s{sU}, s{sW}")
    a(f"s_mul_i32 s{sT0}, s{sU}, 12")
    a(f"v_add_u32 v{t0}, s{sT0}, v{vL}")
    a(f"v_mul_u32_u24 v{t1}, 43691, v{t0}")
    a(f"v_lshrrev_b32 v{t1}, 22, v{t1}")
    a(f"v_mul_u32_u24 v{t2}, 96, v{t1}")
    a(f"v_sub_u32 v{t0}, v{t0}, v{t2}")
    a(f"v_mul_u32_u24 v{t1}, 98304, v{t1}")
    a(f"v_lshl_add_u32 v{vTZ}, v{t0}, 7, v{t1}")
    a(f"s_and_b32 s{sT0}, s2, 7")
    a(f"s_lshr_b32 s{sTWB}, s{sT0}, 1")
    a(f"s_lshl_b32 s{sTWB}, s{sTWB}, 21")
    a(f"s_and_b32 s{sTZB}, s{sT0}, 1")
    a(f"s_mul_i32 s{sTZB}, s{sTZB}, {4*393216}")
    a(f"s_add_u32 s{sTZB}, s{sTZB}, {WS_Z2F}")
    a(f"s_lshl_b32 s{sT0}, s{sU}, 4")
    a(f"v_add_u32 v{t0}, s{sT0}, v{vL}")
    a(f"v_lshrrev_b32 v{t1}, 2, v{t0}")
    a(f"v_lshlrev_b32 v{t1}, 12, v{t1}")
    a(f"v_and_b32 v{t0}, 3, v{t0}")
    a(f"v_lshl_add_u32 v{vTW}, v{t0}, 10, v{t1}")
    def touch(c, w=True):
        if "notouch" in K2X: return
        a(f"s_add_u32 s{sT0}, s{sTZB}, {c*12288}")
        a(f"s_mov_b64 exec, 0xfff")
        a.vmem(f"buffer_load_dword v{vDm}, v{vTZ}, s[{sWS}:{sWS+3}], s{sT0} offen" + (" sc1" if FUSED else ""))
        if w and "notw" not in K2X:
            a(f"s_add_u32 s{sT0}, s{sTWB}, {c*128}")
            a(f"s_mov_b64 exec, 0xffff")
            a.vmem(f"buffer_load_dword v{vDm}, v{vTW}, s[{sWSP}:{sWSP+3}], s{sT0} offen")
        a(f"s_mov_b64 exec, -1")
    NUP = int(os.environ.get('NUP', '2'))
    if not FUSED:
        for c_ in range(NUP): touch(c_)
    def wof_job():
        sWJ = 54
        lwj = a.newlabel("c_wj")
        a(f"s_cmp_ge_u32 s2, 192")
        a(f"s_cbranch_scc1 {lwj}")
        a(f"s_mul_i32 s{sT0}, s2, 2731")
        a(f"s_lshr_b32 s{sT0}, s{sT0}, 16")
        a(f"s_mul_i32 s{sT1}, s{sT0}, 24")
        a(f"s_sub_u32 s{sT1}, s2, s{sT1}")
        a(f"s_mul_i32 s{sT1}, s{sT1}, {32*1280}")
        a(f"s_mul_i32 s{sT0}, s{sT0}, 160")
        a(f"s_add_u32 s{sWJ}, s{sT0}, s{sT1}")
        for r in range(2):
            l2 = None
            if r == 1:
                l2 = a.newlabel("c_wj2")
                a(f"s_cmp_lg_u32 s{sW}, 0")
                a(f"s_cbranch_scc1 {l2}")
            if r == 0: a(f"v_mov_b32 v{t0}, v0")
            else: a(f"v_add_u32 v{t0}, 256, v{vL}")
            a(f"v_mul_u32_u24 v{t1}, 6554, v{t0}")
            a(f"v_lshrrev_b32 v{t1}, 16, v{t1}")
            a(f"v_mul_u32_u24 v{t2}, 10, v{t1}")
            a(f"v_sub_u32 v{t0}, v{t0}, v{t2}")
            a(f"v_lshlrev_b32 v{t0}, 4, v{t0}")
            a(f"v_mul_u32_u24 v{t1}, 1280, v{t1}")
            a(f"v_add_u32 v{t0}, v{t0}, v{t1}")
            if r == 0:
                a(f"s_lshl_b32 s{sT0}, s{sW}, 10")
                a(f"s_add_u32 m0, s{sT0}, {WJ}")
            else: a(f"s_mov_b32 m0, {WJ + 4096}")
            a(f"buffer_load_dwordx4 v{t0}, s[{sWO}:{sWO+3}], s{sWJ} offen lds")
            a.vm -= 1
            if l2: a.label(l2)
        a.label(lwj)
        for i_ in range(1, NCH): loads(i_)
    if FUSED: wof_job()
    Zr = V(4, 4)
    for e in range(4): a(f"v_mov_b32 v{Zr+e}, 0")
    a(f"v_mul_u32_u24 v{t0}, {CS_}, v0")
    if TOEP: a(f"v_add_u32 v{t0}, {TOEP}, v{t0}")
    a(f"v_cmp_gt_u32 vcc, 64, v0")
    a(f"s_and_saveexec_b64 s[50:51], vcc")
    lz = a.newlabel("c_z")
    a(f"s_cbranch_execz {lz}")
    a(f"v_subrev_u32 v{t1}, {32*16 - UB}, v{vT}")
    a(f"v_cmp_gt_u32 vcc, 8, v0")
    a(f"v_cndmask_b32 v{t1}, v{t1}, v{t0}, vcc")
    a(f"v_add_u32 v{t2}, -8, v0")
    a(f"v_cmp_lt_u32 vcc, 23, v{t2}")
    a(f"s_and_b64 exec, exec, vcc")
    a.ds(f"ds_write_b128 v{t1}, v[{Zr}:{Zr+3}]")
    a.label(lz)
    a(f"s_mov_b64 exec, s[50:51]")
    vTW_ = V()
    a(f"v_add_u32 v{vTW_}, {OZ*16 + TOEP}, v{vT}")
    vUW = V()
    a(f"v_add_u32 v{vUW}, {UB + UZ*16}, v{vT}")
    vA = V()
    a(f"v_and_b32 v{t0}, 7, v{vL}")
    a(f"v_mul_u32_u24 v{t0}, {CS_}, v{t0}")
    a(f"v_bfe_u32 v{t1}, v{vL}, 3, 1")
    a(f"v_lshrrev_b32 v{t2}, 4, v{vL}")
    a(f"v_sub_u32 v{t1}, v{t1}, v{t2}")
    a(f"v_add_u32 v{t1}, 3, v{t1}")
    a(f"v_lshl_add_u32 v{vA}, v{t1}, 4, v{t0}")
    if TOEP: a(f"v_add_u32 v{vA}, {TOEP}, v{vA}")
    vBq = V()
    a(f"v_and_b32 v{t0}, 15, v{vL}")
    a(f"v_lshl_add_u32 v{t0}, v{t0}, 1, v{t2}")
    a(f"v_lshlrev_b32 v{vBq}, 4, v{t0}")
    a(f"v_add_u32 v{vBq}, {UB}, v{vBq}")
    DM = V(4, 4)
    a(f"v_and_b32 v{t0}, 15, v{vL}")
    a(f"v_lshlrev_b32 v{t1}, 3, v{t2}")
    a(f"v_sub_u32 v{t1}, v{t1}, v{t0}")
    a(f"v_add_u32 v{t1}, -9, v{t1}")
    vK0, vK1 = V(), V()
    a(f"v_mov_b32 v{vK0}, 0xffff"); a(f"v_mov_b32 v{vK1}, 0xffff0000")
    for dw in range(4):
        a(f"v_cmp_eq_u32 vcc, {2*dw}, v{t1}")
        a(f"v_cndmask_b32 v{DM+dw}, 0, v{vK0}, vcc")
        a(f"v_cmp_eq_u32 vcc, {2*dw + 1}, v{t1}")
        a(f"v_cndmask_b32 v{DM+dw}, v{DM+dw}, v{vK1}, vcc")
    vPW = V()
    a(f"v_and_b32 v{t0}, 15, v{vL}")
    a(f"v_lshlrev_b32 v{t0}, 6, v{t0}")
    a(f"v_lshl_add_u32 v{t0}, v{t2}, 4, v{t0}")
    a(f"s_lshl_b32 s{sT0}, s{sW}, 13")
    a(f"s_add_u32 s{sT0}, s{sT0}, {PB}")
    a(f"v_add_u32 v{vPW}, s{sT0}, v{t0}")
    vPR = V()
    a(f"v_lshlrev_b32 v{vPR}, 5, v0")
    a(f"v_add_u32 v{vPR}, {PB}, v{vPR}")
    ACC = V(32, 4)
    AF = V(12, 4); BF = V(64, 4)
    EW = V(8, 4); TQ = V(4, 4); DG = V(4, 4)

    def mfma_block(w, tiles, touches):
        tq = list(touches)
        started = set()
        seq = []
        for r in range(2):
            q0 = 2*w + r
            dmin = 0
            ips = [ip for ip in range(8) if any(T >= ip for T in tiles)]
            seq += [(r, ip) for ip in ips]
        bid = {}
        def need_d(r): return sorted({T - ip for (rr, ip) in seq if rr == r for T in tiles if T >= ip})
        def read_b(r):
            q0 = 2*w + r
            for d in need_d(r):
                m = 8*d - q0
                bid[(r, d)] = a.ds(f"ds_read_b128 v[{BF+(r*8+d)*4}:{BF+(r*8+d)*4+3}], v{vBq} offset:{(4*m - 2 + UZ)*16}")
        aid = {}
        def read_a(n):
            r, ip = seq[n]
            q = 2*w + r + 8*ip
            aid[n] = a.ds(f"ds_read_b128 v[{AF+(n%3)*4}:{AF+(n%3)*4+3}], v{vA} offset:{64*q}")
        read_a(0); read_b(0); read_a(1)
        for n, (r, ip) in enumerate(seq):
            if n + 2 < len(seq): read_a(n + 2)
            if n == 2: read_b(1)
            last = max([aid[n]] + [bid[(r, T - ip)] for T in tiles if T >= ip])
            a.wait_lg(last)
            q0 = 2*w + r
            for T in sorted(tiles, reverse=True):
                if T < ip: continue
                c = f"v[{ACC+4*T}:{ACC+4*T+3}]" if T in started else "0"; started.add(T)
                a(f"v_mfma_f32_16x16x32_bf16 v[{ACC+4*T}:{ACC+4*T+3}], v[{AF+(n%3)*4}:{AF+(n%3)*4+3}], v[{BF+(r*8+T-ip)*4}:{BF+(r*8+T-ip)*4+3}], {c}")
            if q0 == 0 and ip == 0:
                for T in tiles:
                    a(f"v_mfma_f32_16x16x32_bf16 v[{ACC+4*T}:{ACC+4*T+3}], v[{DG}:{DG+3}], v[{BF+(r*8+T)*4}:{BF+(r*8+T)*4+3}], v[{ACC+4*T}:{ACC+4*T+3}]")
            if tq and n % 2 == 1: touch(tq.pop(0))
        for T in tiles:
            a.ds(f"ds_write_b128 v{vPW}, v[{ACC+4*T}:{ACC+4*T+3}] offset:{T*1024}")
    def finalize(i, tiles):
        regs = [BF, BF+8, BF+16, BF+24]
        full = len(tiles) == 8
        if not full:
            lab = a.newlabel("c_fm")
            a(f"s_mov_b64 exec, 0")
            for w in range(4):
                lo = 0xffffffff if 2*w in tiles else 0
                hi = 0xffffffff if 2*w + 1 in tiles else 0
                a(f"s_cmp_eq_u32 s{sW}, {w}")
                a(f"s_cselect_b32 exec_lo, {lo if lo == 0 else -1}, exec_lo")
                a(f"s_cselect_b32 exec_hi, {hi if hi == 0 else -1}, exec_hi")
            lskip = a.newlabel("c_fskip")
            a(f"s_cbranch_execz {lskip}")
        for k in range(4):
            a.ds(f"ds_read_b128 v[{regs[k]}:{regs[k]+3}], v{vPR} offset:{k*PT_}")
            a.ds(f"ds_read_b128 v[{regs[k]+4}:{regs[k]+7}], v{vPR} offset:{k*PT_ + 16}")
        a(f"s_lshl_b32 s{sT0}, s{sCHN[i]}, 12")
        a(f"s_add_u32 s{sT0}, s{sT0}, {WS_YT}")
        a("s_waitcnt lgkmcnt(0)")
        for e in range(0, 8, 2):
            a(f"v_pk_add_f32 {P(regs[0]+e)}, {P(regs[0]+e)}, {P(regs[1]+e)}")
            a(f"v_pk_add_f32 {P(regs[2]+e)}, {P(regs[2]+e)}, {P(regs[3]+e)}")
        for e in range(0, 8, 2):
            a(f"v_pk_add_f32 {P(regs[0]+e)}, {P(regs[0]+e)}, {P(regs[2]+e)}")
        for e in range(4):
            a(f"v_cvt_pk_bf16_f32 v{TQ+e}, v{regs[0]+2*e}, v{regs[0]+2*e+1}")
        a(f"buffer_store_dwordx4 v[{TQ}:{TQ+3}], v{vT}, s[{sWS}:{sWS+3}], s{sT0} offen" + (" sc1" if "ysc1" in K2X else ""))
        a.vm -= 1
        if not full:
            a.label(lskip)
            a(f"s_mov_b64 exec, -1")
        a("s_nop 1")

    def per_wave(variants):
        lend = a.newlabel("c_pw_end"); labs = [a.newlabel("c_pw") for _ in range(4)]
        lg0, vm0 = a.lg, a.vm
        lgmax, vmmin = lg0, None
        for w in range(4):
            if w < 3:
                a(f"s_cmp_lg_u32 s{sW}, {w}")
                a(f"s_cbranch_scc1 {labs[w]}")
            a.lg, a.vm = lg0, vm0
            variants[w]()
            lgmax = max(lgmax, a.lg); vmmin = a.vm if vmmin is None else min(vmmin, a.vm)
            if w < 3:
                a(f"s_branch {lend}")
                a.label(labs[w])
        a.label(lend)
        a.lg, a.vm = lgmax, vmmin

    for i in range(NCH):
        a.comment(f"------- channel slot {i}")
        a.wait_vm(ld[i])
        ST(f"c{i}_ld")
        d = HR + 8*i
        a(f"v_cmp_ne_u32 vcc, 0, v0")
        for e in range(4): a(f"v_cndmask_b32 v{d+e}, 0, v{d+e}, vcc")
        for e in range(7): a(f"v_alignbit_b32 v{EW+e}, v{d+e+1}, v{d+e}, 16")
        for c in range(8):
            st = c + 1
            if st % 2 == 0: src = d + st//2
            else: src = EW + (st-1)//2
            if (src % 2) != 0:
                for e in range(4): a(f"v_mov_b32 v{TQ+e}, v{src+e}")
                src = TQ
            a.ds(f"ds_write_b128 v{vTW_}, v[{src}:{src+3}] offset:{c*CS_}")
            if src == TQ: a("s_nop 1")
        if FUSED and i == 0:
            poll_all()
            load_u(0)
            for c_ in range(NUP): touch(c_)
            for i_ in range(1, NCH): load_u(i_)
            a.wait_vm(ld[0])
        a.ds(f"ds_write_b128 v{vUW}, v[{UR+4*i}:{UR+4*i+3}]")
        a(f"v_lshlrev_b32 v{t0}, 16, v{DR+i}")
        a(f"v_or_b32 v{t0}, v{t0}, v{DR+i}")
        for e in range(4): a(f"v_and_b32 v{DG+e}, v{DM+e}, v{t0}")
        if i == 0 and not FUSED: wof_job()
        csync()
        ST(f"c{i}_built")
        if i == 1:
            lw3 = a.newlabel("c_wj3")
            a(f"s_cmp_ge_u32 s2, 192")
            a(f"s_cbranch_scc1 {lw3}")
            a(f"v_lshrrev_b32 v{t0}, 4, v{vL}")
            a(f"v_and_b32 v{t2}, 15, v{vL}")
            a(f"v_lshrrev_b32 v{t1}, 2, v{t2}")
            a(f"v_lshl_add_u32 v{t0}, v{t0}, 2, v{t1}")
            a(f"v_mul_u32_u24 v{t0}, 160, v{t0}")
            a(f"v_and_b32 v{t1}, 3, v{t2}")
            a(f"v_lshl_add_u32 v{t0}, v{t1}, 3, v{t0}")
            a(f"v_lshlrev_b32 v{t2}, 4, v{vL}")
            for r in range(2):
                l2 = None
                if r == 1:
                    l2 = a.newlabel("c_wj4")
                    a(f"s_cmp_lg_u32 s{sW}, 0")
                    a(f"s_cbranch_scc1 {l2}")
                if r == 0: a(f"s_lshl_b32 s{sT0}, s{sW}, 5")
                else: a(f"s_mov_b32 s{sT0}, 128")
                a(f"s_add_u32 s{sT1}, s{sT0}, {WJ}")
                a(f"v_add_u32 v{t1}, s{sT1}, v{t0}")
                a(f"ds_read_b64_tr_b16 v[{TQ}:{TQ+1}], v{t1}")
                a(f"ds_read_b64_tr_b16 v[{TQ+2}:{TQ+3}], v{t1} offset:2560")
                a(f"s_mul_i32 s{sT1}, s2, 5120")
                a(f"s_lshl_b32 s{sT0}, s{sT0}, 5")
                a(f"s_add_u32 s{sT1}, s{sT1}, s{sT0}")
                a(f"s_add_u32 s{sT1}, s{sT1}, {WS_WOF}")
                a("s_waitcnt lgkmcnt(0)")
                a(f"buffer_store_dwordx4 v[{TQ}:{TQ+3}], v{t2}, s[{sWS}:{sWS+3}], s{sT1} offen" + (" sc1" if "ysc1" in K2X else ""))
                a("s_nop 1")
                a.vm -= 1; a.lg -= 2
                if l2: a.label(l2)
            a.label(lw3)
        tch = list(range(NUP, 8)) if i == 0 else []
        def do_channel(tiles):
            per_wave([(lambda w=w: mfma_block(w, tiles, tch)) for w in range(4)])
            if i < 2: ST(f"c{i}_mfma")
            if FULL and i == 1: a("s_waitcnt vmcnt(0)")
            csync()
            if FULL and i == 1:
                a(f"s_lshl_b32 s{sT0}, s2, 3")
                a(f"s_add_u32 s{sT0}, s{sT0}, {WS_F4}")
                a(f"v_mov_b32 v{FP}, s{sTAGF}"); a(f"v_mov_b32 v{FP+1}, s{sTAGF+1}")
                a(f"v_mov_b32 v{t0}, 0")
                a(f"s_cmp_eq_u32 s{sW}, 0")
                a(f"s_cselect_b64 exec, 1, 0")
                a(f"s_cmp_lt_u32 s2, 192")
                a(f"s_cselect_b64 exec, exec, 0")
                a(f"buffer_store_dwordx2 {P(FP)}, v{t0}, s[{sWS}:{sWS+3}], s{sT0} offen sc1")
                a.vm -= 1
                a(f"s_mov_b64 exec, -1")
            finalize(i, tiles)
        if i < 2:
            do_channel(list(range(8)))
        else:
            labB = a.newlabel("c_halfB"); labE = a.newlabel("c_halfE")
            a(f"s_bitcmp1_b32 s2, 0")
            a(f"s_cbranch_scc1 {labB}")
            lg0, vm0, c0_ = a.lg, a.vm, cst[0]
            do_channel([2, 6, 7])
            a(f"s_branch {labE}")
            a.label(labB); a.lg, a.vm, cst[0] = lg0, vm0, c0_
            do_channel([0, 1, 3, 4, 5])
            a.label(labE)
        ST(f"c{i}_done")
    ST.dump(sWS, sW, t0, t1, WS_DBG + 0x400000)

def gen_k2(name="k2_kernel", prof=False):
    a = Asm()
    a.raw(f".globl {name}\n.p2align 8\n.type {name},@function\n{name}:")
    a(f"s_cmp_ge_u32 s2, 512")
    a(f"s_cbranch_scc1 {name}_end")
    a(f"s_cmp_lt_u32 s2, 256")
    a(f"s_cbranch_scc1 {name}_conv" if "noconv" not in K2X else f"s_cbranch_scc1 {name}_end")
    ST = Stamps(a, enabled=prof); ST("g_start")
    V = Alloc(1, 256, "v")
    gen_gemm(a, V, ST, prof)
    a("s_endpgm")
    hi = V.hi
    a.label(f"{name}_conv")
    a.vm = 0; a.lg = 0
    ST2 = Stamps(a, enabled=prof); ST2("c_start")
    V2 = Alloc(1, 256, "v")
    gen_conv(a, V2, ST2, prof, name)
    a.label(f"{name}_end")
    a("s_endpgm")
    gen_k2.stamp_names = {"k2g": ST.names, "k2c": ST2.names}
    return a.finish(), max(hi, V2.hi)


def gen_k12(name="k12_kernel", prof=False):
    import k1, k3, k3f
    P8 = FULL and "p4" not in os.environ.get("K3X", "")
    a, hi1, sW1 = k1.gen_k1(name=name, prof=prof, fused=True)
    if P8: a("v_mov_b32 v253, v0")
    a(f"s_cmp_ge_u32 s{sW1}, 4")
    a(f"s_cbranch_scc1 {name}_conv")
    a.vm = 0; a.lg = 0
    ST = Stamps(a, enabled=prof); ST("g_start")
    V = Alloc(1, 253, "v")
    gen_gemm(a, V, ST, prof)
    hi3 = 0
    def publish_f2(srd, sWv):
        a(f"s_lshl_b32 s58, s2, 3")
        a(f"s_add_u32 s58, s58, {WS_F2}")
        a(f"v_mov_b32 v250, s{sTAGF}"); a(f"v_mov_b32 v251, s{sTAGF+1}")
        a(f"v_mov_b32 v252, 0")
        a(f"s_cmp_eq_u32 s{sWv}, 0")
        a(f"s_cselect_b64 exec, 1, 0")
        a(f"buffer_store_dwordx2 v[250:251], v252, s[{srd}:{srd+3}], s58 offen sc1")
        a(f"s_mov_b64 exec, -1")
    if FULL and not P8 and "split" in os.environ.get("K3X", ""):
        a("s_waitcnt vmcnt(0)")
        gsync(a, 0, gen_gemm.gst, 1, 2)
        a(f"s_lshl_b32 s58, s32, 6")
        a(f"s_lshl_b32 s59, s33, 3")
        a(f"s_add_u32 s58, s58, s59")
        a(f"s_add_u32 s58, s58, {WS_F5}")
        a(f"v_mov_b32 v250, s{sTAGF}"); a(f"v_mov_b32 v251, s{sTAGF+1}")
        a(f"v_mov_b32 v252, 0")
        a(f"s_cmp_eq_u32 s34, 0")
        a(f"s_cselect_b64 exec, 1, 0")
        a(f"buffer_store_dwordx2 v[250:251], v252, s[8:11], s58 offen sc1")
        a(f"s_mov_b64 exec, -1")
        a.vm = 0; a.lg = 0
        hi3 = k3.gen_k3(prof=prof, fa=a, split={'gsync': lambda: gsync(a, 0, gen_gemm.gst, 251, 252)})
    elif FULL and not P8 and "nomid" not in os.environ.get("K3X", ""):
        gsync(a, 0, gen_gemm.gst, 1, 2)
        a.vm = 0; a.lg = 0
        def mid(srd, sWv):
            a("s_barrier")
            publish_f2(srd, sWv)
        hi3 = k3.gen_k3(prof=prof, fa=a, mid=mid)
    elif FULL:
        a("s_waitcnt vmcnt(0) lgkmcnt(0)")
        a("s_barrier")
        publish_f2(8, 34)
        a.vm = 0; a.lg = 0
        if P8: a(f"s_branch {name}_p3")
        else: hi3 = k3.gen_k3(prof=prof, fa=a)
    if not P8: a("s_endpgm")
    hi = V.hi
    a.label(f"{name}_conv")
    a.vm = 0; a.lg = 0
    ST2 = Stamps(a, enabled=prof); ST2("c_start")
    V2 = Alloc(1, 253, "v")
    gen_conv(a, V2, ST2, prof, name)
    if FULL and "split" in os.environ.get("K3X", ""):
        a("s_waitcnt vmcnt(0) lgkmcnt(0)")
        gsync(a, 1, gen_conv.cst, 251, 252)
        publish_f2(8, 34)
        if "split2" not in os.environ.get("K3X", ""): a("s_barrier")
    elif FULL:
        a("s_waitcnt vmcnt(0) lgkmcnt(0)")
        a("s_barrier")
    if P8:
        a.label(f"{name}_p3")
        a.vm = 0; a.lg = 0
        hi3 = k3f.gen_phase3(a, prof, poll_flags_n, poll_all_flags, sTAGF)
    a.label(f"{name}_end")
    a("s_endpgm")
    gen_k12.stamp_names = {"k1": k1.gen_k1.stamp_names, "k2g": ST.names, "k2c": ST2.names}
    if FULL: gen_k12.stamp_names["k3"] = k3f.gen_phase3.stamp_names if P8 else k3.gen_k3.stamp_names
    return a.finish(), max(hi1, hi, V2.hi, hi3, 254 if FULL else 0)
```

```python
from dsl import *
from layout import *
from k1 import f32, Filler, run, mask, P
import os
WO = 0; XT = 122880; YTL = 133120; OT = 143360; LDS = 153600
LOG2E = 1.4426950408889634

def gen_k3(name="k3_kernel", prof=False, fa=None, mid=None, split=None):
    K3X = os.environ.get("K3X", "")
    F3 = fa is not None
    SC = " sc1" if F3 else ""
    a = fa if F3 else Asm()
    ST = Stamps(a, enabled=prof)
    V = Alloc(1, 255, "v")
    sX, sWS, sOUT = 8, 12, 16
    sRB, sDJ, sW = 32, 33, 34
    sT0, sT1, sT2, sT3 = 40, 41, 42, 43
    sCOL, sXB, sWB, sPB, sROT = 44, 45, 46, 47, 48
    if not F3:
        a.raw(f".globl {name}\n.p2align 8\n.type {name},@function\n{name}:")
        a(f"s_cmp_ge_u32 s2, 256")
        a(f"s_cbranch_scc1 {name}_end")
    a(f"s_load_dwordx2 s[{sWS}:{sWS+1}], s[0:1], {KA['ws']}")
    a(f"s_load_dwordx2 s[{sX}:{sX+1}], s[0:1], {KA['q']}")
    a(f"s_load_dwordx2 s[{sOUT}:{sOUT+1}], s[0:1], {KA['out']}")
    ST("k3start")
    for srd, size in ((sX, SZ_X), (sWS, WS_SIZE_DBG if prof else WS_END), (sOUT, SZ_X)):
        a(f"s_mov_b32 s{srd+2}, {size}")
        a(f"s_mov_b32 s{srd+3}, {SRD3:#x}")
    vL, vQ, vP = V(), V(), V(); t0, t1, t2 = V(), V(), V()
    a(f"v_lshrrev_b32 v{t0}, 6, v0")
    a(f"v_and_b32 v{vL}, 63, v0")
    a(f"v_readfirstlane_b32 s{sW}, v{t0}")
    vZ = V()
    a(f"v_lshlrev_b32 v{vZ}, 4, v{vL}")
    a(f"s_and_b32 s{sT0}, s2, 7")
    a(f"s_lshr_b32 s{sT1}, s2, 3")
    a(f"s_lshr_b32 s{sRB}, s{sT0}, 1")
    a(f"s_lshl_b32 s{sRB}, s{sRB}, 3")
    a(f"s_and_b32 s{sT2}, s{sT1}, 7")
    a(f"s_add_u32 s{sRB}, s{sRB}, s{sT2}")
    a(f"s_and_b32 s{sDJ}, s{sT0}, 1")
    a(f"s_lshl_b32 s{sDJ}, s{sDJ}, 2")
    a(f"s_lshr_b32 s{sT2}, s{sT1}, 3")
    a(f"s_add_u32 s{sDJ}, s{sDJ}, s{sT2}")
    a(f"s_add_u32 s{sT0}, s{sRB}, s{sDJ}")
    a(f"s_mul_i32 s{sT1}, s{sT0}, 43")
    a(f"s_lshr_b32 s{sT1}, s{sT1}, 8")
    a(f"s_mul_i32 s{sT1}, s{sT1}, 6")
    a(f"s_sub_u32 s{sROT}, s{sT0}, s{sT1}")
    if "norot" in K3X: a(f"s_mov_b32 s{sROT}, 0")
    a(f"s_mul_i32 s{sWB}, s{sDJ}, {24*5120}")
    a(f"s_add_u32 s{sWB}, s{sWB}, {WS_WOF}")
    a(f"s_mul_i32 s{sT0}, s{sW}, 5120")
    a(f"s_add_u32 s{sWB}, s{sWB}, s{sT0}")
    a(f"s_mul_i32 s{sPB}, s{sRB}, {4*24*1024}")
    a(f"s_mul_i32 s{sT1}, s{sW}, {24*1024}")
    a(f"s_add_u32 s{sPB}, s{sPB}, s{sT1}")
    a(f"s_add_u32 s{sPB}, s{sPB}, {WS_PF}")
    sG = [50, 51, 52, 53, 54, 55]
    for m in range(6):
        a(f"s_add_u32 s{sT0}, s{sROT}, {m}")
        a(f"s_sub_u32 s{sT1}, s{sT0}, 6")
        a(f"s_cmp_ge_u32 s{sT0}, 6")
        a(f"s_cselect_b32 s{sG[m]}, s{sT1}, s{sT0}")
    PFr = V(96, 4)
    a("s_waitcnt lgkmcnt(0)")
    ST("kernarg")
    p_id = {}; w_id = {}
    def dma_w_g(m):
        for r in range(5):
            a(f"s_mul_i32 s{sT0}, s{sG[m]}, {4*5120}")
            a(f"s_add_u32 s{sT0}, s{sT0}, s{sWB}")
            a(f"s_add_u32 s{sT0}, s{sT0}, {r*1024}")
            a(f"s_mul_i32 s{sT1}, s{sW}, 5120")
            a(f"s_add_u32 m0, s{sT1}, {WO + m*4*5120 + r*1024}")
            w_id[m] = a.vmem(f"buffer_load_dwordx4 v{vZ}, s[{sWS}:{sWS+3}], s{sT0} offen{SC} lds")
            yield
    def load_p_g(m):
        for k in range(4):
            ks = 4*m + k
            a(f"s_lshl_b32 s{sT2}, s{sG[m]}, 12")
            a(f"s_add_u32 s{sT2}, s{sT2}, s{sPB}")
            p_id[ks] = a.vmem(f"buffer_load_dwordx4 v[{PFr+4*ks}:{PFr+4*ks+3}], v{vZ}, s[{sWS}:{sWS+3}], s{sT2} offen offset:{k*1024}{SC}")
            yield
    if F3:
        from k2 import poll_flags_n, poll_all_flags
        a(f"s_mul_i32 s{sT0}, s{sDJ}, {24*8}")
        a(f"s_add_u32 s{sT0}, s{sT0}, {WS_F4}")
        poll_flags_n(a, sWS, sT0, 24, PFr, t0)
        ST("wflags")
        NW0 = int(os.environ.get("NW0", "6"))
        if split is not None:
            for m in range(4): run(dma_w_g(m))
            a(f"s_lshl_b32 s{sT0}, s{sRB}, 6")
            a(f"s_add_u32 s{sT0}, s{sT0}, {WS_F5}")
            poll_flags_n(a, sWS, sT0, 8, PFr, t0)
            ST("pflags")
            run(load_p_g(0)); run(load_p_g(1))
            split['gsync']()
        elif mid is not None:
            for m in range(4): run(dma_w_g(m))
            mid(sWS, sW)
            for m in range(4, 6): run(dma_w_g(m))
        else:
            for m in range(NW0): run(dma_w_g(m))
        if split is None:
            poll_all_flags(a, sWS, PFr, t0, WS_F2)
            ST("pflags")
            run(load_p_g(0)); run(load_p_g(1))
            for m in range(NW0, 6):
                run(dma_w_g(m))
                if m < 6 and os.environ.get("PALL"): run(load_p_g(m))
    else:
        run(dma_w_g(0)); run(load_p_g(0))
        a("s_barrier")
        run(dma_w_g(1)); run(load_p_g(1))
    a(f"s_mul_i32 s{sCOL}, s{sDJ}, 160")
    a(f"s_mul_i32 s{sXB}, s{sRB}, {64*1280}")
    a(f"s_add_u32 s{sXB}, s{sXB}, s{sCOL}")
    vO = [V() for _ in range(5)]
    for r in range(5):
        a(f"v_add_u32 v{t0}, {64*r}, v{vL}")
        a(f"v_mul_u32_u24 v{t1}, 6554, v{t0}")
        a(f"v_lshrrev_b32 v{t1}, 16, v{t1}")
        a(f"v_mul_u32_u24 v{t2}, 10, v{t1}")
        a(f"v_sub_u32 v{t0}, v{t0}, v{t2}")
        a(f"v_lshlrev_b32 v{t0}, 4, v{t0}")
        a(f"v_mul_u32_u24 v{t1}, 1280, v{t1}")
        a(f"v_add_u32 v{vO[r]}, v{t0}, v{t1}")
    XS = V(2, 2)
    vY = V()
    def xy_g():
        lx = a.newlabel("k3_y"); lx2 = a.newlabel("k3_xy")
        a(f"s_cmp_ge_u32 s{sW}, 2")
        a(f"s_cbranch_scc1 {lx}")
        a(f"s_mul_i32 s{sT0}, s{sW}, {32*1280}")
        a(f"s_add_u32 s{sT0}, s{sT0}, s{sXB}")
        a(f"s_mul_i32 s{sT1}, s{sW}, 5120")
        for r in range(5):
            a(f"s_add_u32 m0, s{sT1}, {XT + r*1024}")
            a(f"buffer_load_dwordx4 v{vO[r]}, s[{sX}:{sX+3}], s{sT0} offen lds")
        a(f"s_branch {lx2}")
        a.label(lx)
        a(f"v_lshrrev_b32 v{t0}, 3, v{vL}")
        a(f"v_lshlrev_b32 v{t0}, 12, v{t0}")
        a(f"v_and_b32 v{t1}, 7, v{vL}")
        a(f"v_lshl_add_u32 v{vY}, v{t1}, 4, v{t0}")
        a(f"s_sub_u32 s{sT2}, s{sW}, 2")
        a(f"s_mul_i32 s{sT0}, s{sT2}, 40")
        a(f"s_mul_i32 s{sT1}, s{sDJ}, 80")
        a(f"s_add_u32 s{sT0}, s{sT0}, s{sT1}")
        a(f"s_lshl_b32 s{sT0}, s{sT0}, 12")
        a(f"s_lshl_b32 s{sT1}, s{sRB}, 7")
        a(f"s_add_u32 s{sT0}, s{sT0}, s{sT1}")
        a(f"s_add_u32 s{sT0}, s{sT0}, {WS_YT}")
        a(f"s_mul_i32 s{sT1}, s{sT2}, 5120")
        for r in range(5):
            a(f"s_add_u32 m0, s{sT1}, {YTL + r*1024}")
            a(f"buffer_load_dwordx4 v{vY}, s[{sWS}:{sWS+3}], s{sT0} offen{SC} lds")
            a(f"s_add_u32 s{sT0}, s{sT0}, {8*4096}")
        a.label(lx2)
        a.vm -= 5
        a(f"s_lshl_b32 s{sT0}, s{sRB}, 9")
        a(f"s_lshl_b32 s{sT1}, s{sW}, 7")
        a(f"s_add_u32 s{sT0}, s{sT0}, s{sT1}")
        a(f"s_add_u32 s{sT0}, s{sT0}, {WS_XST}")
        a(f"v_lshlrev_b32 v{t0}, 3, v{vP}")
        a.vmem(f"buffer_load_dwordx2 {P(XS)}, v{t0}, s[{sWS}:{sWS+3}], s{sT0} offen{SC}")
        yield
    a(f"v_lshrrev_b32 v{vQ}, 4, v{vL}")
    a(f"v_and_b32 v{vP}, 15, v{vL}")
    vA = [V(), V()]
    a(f"v_mov_b32 v{vA[0]}, v{vZ}")
    a(f"v_add_u32 v{vA[1]}, {12*5120}, v{vZ}")
    ACC = V(20, 4)
    AF = V(40, 4)
    TMPF = V(8, 4)
    def read_a(ks):
        b = ks & 1; ids = []
        base = vA[0] if ks < 12 else vA[1]
        o = WO + (ks % 12)*5120
        for dt in range(5):
            r = AF + (b*5 + dt)*4
            ids.append(a.ds(f"ds_read_b128 v[{r}:{r+3}], v{base} offset:{o + dt*1024}"))
        return ids
    rd = {}
    for m in range(6):
        if split is not None:
            if m == 4:
                a("s_barrier")
                run(dma_w_g(4)); run(dma_w_g(5))
                poll_all_flags(a, sWS, AF + 40 - 8 if False else TMPF, t0, WS_F2)
                run(xy_g())
                a("s_barrier")
        else:
            a.wait_vm(w_id[m])
            a("s_barrier")
        ST(f"m{m}")
        rd[4*m] = read_a(4*m)
        fl = Filler()
        if m + 2 < 6:
            if not F3: fl.add(dma_w_g(m + 2))
            if not (F3 and os.environ.get("PALL") and m + 2 >= int(os.environ.get("NW0", "6"))): fl.add(load_p_g(m + 2))
        if m == 3 and split is None: fl.add(xy_g())
        for ks in range(4*m, 4*m + 4):
            if ks + 1 < 4*m + 4: rd[ks+1] = read_a(ks + 1)
            a.wait_vm(p_id[ks])
            b = ks & 1
            for dt in range(5):
                a.wait_lg(rd[ks][dt])
                r = AF + (b*5 + dt)*4
                c = "0" if ks == 0 else f"v[{ACC+4*dt}:{ACC+4*dt+3}]"
                a(f"v_mfma_f32_16x16x32_bf16 v[{ACC+4*dt}:{ACC+4*dt+3}], v[{r}:{r+3}], v[{PFr+4*ks}:{PFr+4*ks+3}], {c}")
                if dt % 2 == 0: fl.step(1)
        fl.drain()
    ST("k3loop")
    XV = AF; YV = AF + 10
    a(f"s_lshl_b32 s{sT0}, s{sW}, 4")
    a(f"v_add_u32 v{t0}, s{sT0}, v{vP}")
    a(f"v_mul_u32_u24 v{t0}, 160, v{t0}")
    vXA = V(); vX2 = V(); vYA = V()
    a(f"v_lshl_add_u32 v{vXA}, v{vQ}, 3, v{t0}")
    a(f"v_add_u32 v{vX2}, {XT}, v{vXA}")
    a(f"v_lshrrev_b32 v{t1}, 2, v{vP}")
    a(f"v_lshl_add_u32 v{t0}, v{vQ}, 2, v{t1}")
    a(f"v_lshlrev_b32 v{t0}, 7, v{t0}")
    a(f"v_and_b32 v{t1}, 3, v{vP}")
    a(f"v_lshl_add_u32 v{t0}, v{t1}, 3, v{t0}")
    a(f"s_lshl_b32 s{sT0}, s{sW}, 5")
    a(f"s_add_u32 s{sT0}, s{sT0}, {YTL}")
    a(f"v_add_u32 v{vYA}, s{sT0}, v{t0}")
    T = PFr
    sL = 46
    a(f"s_mov_b32 s{sL}, {f32(-LOG2E):#x}")
    a(f"s_mov_b32 s{sL+1}, {f32(-LOG2E):#x}")
    E = T
    for i in range(0, 20, 2): a(f"v_pk_mul_f32 {P(E+i)}, {P(ACC+i)}, s[{sL}:{sL+1}]")
    a("s_waitcnt vmcnt(0)")
    a("s_barrier")
    for dt in range(5):
        a.ds(f"ds_read_b64 v[{XV+2*dt}:{XV+2*dt+1}], v{vX2} offset:{dt*32}")
    for dt in range(5):
        a.ds(f"ds_read_b64_tr_b16 v[{YV+2*dt}:{YV+2*dt+1}], v{vYA} offset:{dt*2048}")
    for i in range(20): a(f"v_exp_f32 v{E+i}, v{E+i}")
    for i in range(0, 20, 2): a(f"v_pk_add_f32 {P(E+i)}, {P(E+i)}, 1.0 op_sel_hi:[1,0]")
    for i in range(20): a(f"v_rcp_f32 v{E+i}, v{E+i}")
    for i in range(0, 20, 2): a(f"v_pk_mul_f32 {P(E+i)}, {P(E+i)}, {P(ACC+i)}")
    a("s_waitcnt lgkmcnt(0)")
    XF_ = T + 20; YF = T + 40; N = T + 60
    for i in range(10):
        a(f"v_lshlrev_b32 v{XF_+2*i}, 16, v{XV+i}")
        a(f"v_and_b32 v{XF_+2*i+1}, 0xffff0000, v{XV+i}")
        a(f"v_lshlrev_b32 v{YF+2*i}, 16, v{YV+i}")
        a(f"v_and_b32 v{YF+2*i+1}, 0xffff0000, v{YV+i}")
    RB = V(2, 2)
    a(f"v_mov_b32 v{RB}, v{XS+1}")
    for i in range(0, 20, 2): a(f"v_pk_add_f32 {P(N+i)}, {P(XF_+i)}, {P(XS)} op_sel_hi:[1,0] neg_lo:[0,1] neg_hi:[0,1]")
    for i in range(0, 20, 2): a(f"v_pk_mul_f32 {P(N+i)}, {P(N+i)}, {P(RB)} op_sel_hi:[1,0]")
    for i in range(0, 20, 2): a(f"v_pk_mul_f32 {P(N+i)}, {P(N+i)}, {P(YF+i)}")
    for i in range(0, 20, 2): a(f"v_pk_fma_f32 {P(N+i)}, {P(N+i)}, {P(E+i)}, {P(XF_+i)}")
    OV = AF
    for i in range(10): a(f"v_cvt_pk_bf16_f32 v{OV+i}, v{N+2*i}, v{N+2*i+1}")
    vOW = V()
    a(f"v_add_u32 v{vOW}, {OT}, v{vXA}")
    for dt in range(5):
        a.ds(f"ds_write_b64 v{vOW}, v[{OV+2*dt}:{OV+2*dt+1}] offset:{dt*32}")
    a(f"s_mul_i32 s{sT0}, s{sW}, 2560")
    a(f"s_add_u32 s{sT0}, s{sT0}, {OT}")
    a(f"v_add_u32 v{t0}, s{sT0}, v{vZ}")
    a("s_waitcnt lgkmcnt(0)")
    for r in range(3):
        a.ds(f"ds_read_b128 v[{T+4*r}:{T+4*r+3}], v{t0} offset:{r*1024}")
    a(f"s_mul_i32 s{sT0}, s{sW}, {16*1280}")
    a(f"s_add_u32 s{sT0}, s{sT0}, s{sXB}")
    a("s_waitcnt lgkmcnt(0)")
    for r in range(3):
        if r == 2: a(f"s_mov_b32 exec_hi, 0")
        a.vmem(f"buffer_store_dwordx4 v[{T+4*r}:{T+4*r+3}], v{vO[r]}, s[{sOUT}:{sOUT+3}], s{sT0} offen" + (" sc1" if "osc1" in K3X else ""))
    a(f"s_mov_b64 exec, -1")
    ST("k3end")
    ST.dump(sWS, sW, t0, t1, WS_DBG + 0x600000)
    gen_k3.stamp_names = ST.names
    if F3 and Stamps.HS:
        wg = int(os.environ.get("HSWG", "0"))
        lab = a.newlabel("hs_skip")
        a(f"s_cmp_lg_u32 s2, {wg}")
        a(f"s_cbranch_scc1 {lab}")
        a(f"s_cmp_lg_u32 s{sW}, 0")
        a(f"s_cbranch_scc1 {lab}")
        a(f"s_load_dwordx2 s[20:21], s[0:1], {KA['dbg']}")
        a(f"s_mov_b32 s22, 256"); a(f"s_mov_b32 s23, {SRD3:#x}")
        a(f"v_readlane_b32 s40, v254, 1")
        a(f"v_mbcnt_lo_u32_b32 v{t0}, -1, 0")
        a(f"v_mbcnt_hi_u32_b32 v{t0}, -1, v{t0}")
        a(f"v_lshlrev_b32 v{t0}, 2, v{t0}")
        a(f"v_subrev_u32 v254, s40, v254")
        a("s_waitcnt lgkmcnt(0)")
        a(f"s_mov_b64 exec, {((1 << (len(Stamps.HS) + 1)) - 1) & ~1:#x}")
        a(f"buffer_store_dword v254, v{t0}, s[20:23], 0 offen")
        a(f"s_mov_b64 exec, -1")
        a.label(lab)
    if F3: return V.hi
    a.label(f"{name}_end")
    a("s_endpgm")
    return a.finish(), V.hi
```

```python
from dsl import *
from layout import *
from k1 import f32, Filler, run, mask, P
import os
WO = 0; XT = 122880; YTL = 133120; OT = 143360; LDS = 153600
LOG2E = 1.4426950408889634

def gen_k3(name="k3_kernel", prof=False, fa=None, mid=None, split=None):
    K3X = os.environ.get("K3X", "")
    F3 = fa is not None
    SC = " sc1" if F3 else ""
    S2 = split is not None and "split2" in K3X
    XT_, YT_, OT_ = (40960, 51200, 61440) if S2 else (XT, YTL, OT)
    def wpos(m): return (m if m < 4 else m - 4)*20480 if S2 else m*20480
    a = fa if F3 else Asm()
    ST = Stamps(a, enabled=prof)
    V = Alloc(1, 255, "v")
    sX, sWS, sOUT = 8, 12, 16
    sRB, sDJ, sW = 32, 33, 34
    sT0, sT1, sT2, sT3 = 40, 41, 42, 43
    sCOL, sXB, sWB, sPB, sROT = 44, 45, 46, 47, 48
    if not F3:
        a.raw(f".globl {name}\n.p2align 8\n.type {name},@function\n{name}:")
        a(f"s_cmp_ge_u32 s2, 256")
        a(f"s_cbranch_scc1 {name}_end")
    a(f"s_load_dwordx2 s[{sWS}:{sWS+1}], s[0:1], {KA['ws']}")
    a(f"s_load_dwordx2 s[{sX}:{sX+1}], s[0:1], {KA['q']}")
    a(f"s_load_dwordx2 s[{sOUT}:{sOUT+1}], s[0:1], {KA['out']}")
    ST("k3start")
    for srd, size in ((sX, SZ_X), (sWS, WS_SIZE_DBG if prof else WS_END), (sOUT, SZ_X)):
        a(f"s_mov_b32 s{srd+2}, {size}")
        a(f"s_mov_b32 s{srd+3}, {SRD3:#x}")
    vL, vQ, vP = V(), V(), V(); t0, t1, t2 = V(), V(), V()
    a(f"v_lshrrev_b32 v{t0}, 6, v0")
    a(f"v_and_b32 v{vL}, 63, v0")
    a(f"v_readfirstlane_b32 s{sW}, v{t0}")
    vZ = V()
    a(f"v_lshlrev_b32 v{vZ}, 4, v{vL}")
    a(f"s_and_b32 s{sT0}, s2, 7")
    a(f"s_lshr_b32 s{sT1}, s2, 3")
    a(f"s_lshr_b32 s{sRB}, s{sT0}, 1")
    a(f"s_lshl_b32 s{sRB}, s{sRB}, 3")
    a(f"s_and_b32 s{sT2}, s{sT1}, 7")
    a(f"s_add_u32 s{sRB}, s{sRB}, s{sT2}")
    a(f"s_and_b32 s{sDJ}, s{sT0}, 1")
    a(f"s_lshl_b32 s{sDJ}, s{sDJ}, 2")
    a(f"s_lshr_b32 s{sT2}, s{sT1}, 3")
    a(f"s_add_u32 s{sDJ}, s{sDJ}, s{sT2}")
    a(f"s_add_u32 s{sT0}, s{sRB}, s{sDJ}")
    a(f"s_mul_i32 s{sT1}, s{sT0}, 43")
    a(f"s_lshr_b32 s{sT1}, s{sT1}, 8")
    a(f"s_mul_i32 s{sT1}, s{sT1}, 6")
    a(f"s_sub_u32 s{sROT}, s{sT0}, s{sT1}")
    if "norot" in K3X: a(f"s_mov_b32 s{sROT}, 0")
    a(f"s_mul_i32 s{sWB}, s{sDJ}, {24*5120}")
    a(f"s_add_u32 s{sWB}, s{sWB}, {WS_WOF}")
    a(f"s_mul_i32 s{sT0}, s{sW}, 5120")
    a(f"s_add_u32 s{sWB}, s{sWB}, s{sT0}")
    a(f"s_mul_i32 s{sPB}, s{sRB}, {4*24*1024}")
    a(f"s_mul_i32 s{sT1}, s{sW}, {24*1024}")
    a(f"s_add_u32 s{sPB}, s{sPB}, s{sT1}")
    a(f"s_add_u32 s{sPB}, s{sPB}, {WS_PF}")
    sG = [50, 51, 52, 53, 54, 55]
    for m in range(6):
        a(f"s_add_u32 s{sT0}, s{sROT}, {m}")
        a(f"s_sub_u32 s{sT1}, s{sT0}, 6")
        a(f"s_cmp_ge_u32 s{sT0}, 6")
        a(f"s_cselect_b32 s{sG[m]}, s{sT1}, s{sT0}")
    PFr = V(96, 4)
    a("s_waitcnt lgkmcnt(0)")
    ST("kernarg")
    p_id = {}; w_id = {}
    def dma_w_g(m):
        for r in range(5):
            a(f"s_mul_i32 s{sT0}, s{sG[m]}, {4*5120}")
            a(f"s_add_u32 s{sT0}, s{sT0}, s{sWB}")
            a(f"s_add_u32 s{sT0}, s{sT0}, {r*1024}")
            a(f"s_mul_i32 s{sT1}, s{sW}, 5120")
            a(f"s_add_u32 m0, s{sT1}, {WO + wpos(m) + r*1024}")
            w_id[m] = a.vmem(f"buffer_load_dwordx4 v{vZ}, s[{sWS}:{sWS+3}], s{sT0} offen{SC} lds")
            yield
    def load_p_g(m):
        for k in range(4):
            ks = 4*m + k
            a(f"s_lshl_b32 s{sT2}, s{sG[m]}, 12")
            a(f"s_add_u32 s{sT2}, s{sT2}, s{sPB}")
            p_id[ks] = a.vmem(f"buffer_load_dwordx4 v[{PFr+4*ks}:{PFr+4*ks+3}], v{vZ}, s[{sWS}:{sWS+3}], s{sT2} offen offset:{k*1024}{SC}")
            yield
    if F3:
        from k2 import poll_flags_n, poll_all_flags
        a(f"s_mul_i32 s{sT0}, s{sDJ}, {24*8}")
        a(f"s_add_u32 s{sT0}, s{sT0}, {WS_F4}")
        poll_flags_n(a, sWS, sT0, 24, PFr, t0)
        ST("wflags")
        NW0 = int(os.environ.get("NW0", "6"))
        if split is not None:
            for m in range(4): run(dma_w_g(m))
            a(f"s_lshl_b32 s{sT0}, s{sRB}, 6")
            a(f"s_add_u32 s{sT0}, s{sT0}, {WS_F5}")
            poll_flags_n(a, sWS, sT0, 8, PFr, t0)
            ST("pflags")
            run(load_p_g(0)); run(load_p_g(1))
            split['gsync']()
        elif mid is not None:
            for m in range(4): run(dma_w_g(m))
            mid(sWS, sW)
            for m in range(4, 6): run(dma_w_g(m))
        else:
            for m in range(NW0): run(dma_w_g(m))
        if split is None:
            poll_all_flags(a, sWS, PFr, t0, WS_F2)
            ST("pflags")
            run(load_p_g(0)); run(load_p_g(1))
            for m in range(NW0, 6):
                run(dma_w_g(m))
                if m < 6 and os.environ.get("PALL"): run(load_p_g(m))
    else:
        run(dma_w_g(0)); run(load_p_g(0))
        a("s_barrier")
        run(dma_w_g(1)); run(load_p_g(1))
    a(f"s_mul_i32 s{sCOL}, s{sDJ}, 160")
    a(f"s_mul_i32 s{sXB}, s{sRB}, {64*1280}")
    a(f"s_add_u32 s{sXB}, s{sXB}, s{sCOL}")
    vO = [V() for _ in range(5)]
    for r in range(5):
        a(f"v_add_u32 v{t0}, {64*r}, v{vL}")
        a(f"v_mul_u32_u24 v{t1}, 6554, v{t0}")
        a(f"v_lshrrev_b32 v{t1}, 16, v{t1}")
        a(f"v_mul_u32_u24 v{t2}, 10, v{t1}")
        a(f"v_sub_u32 v{t0}, v{t0}, v{t2}")
        a(f"v_lshlrev_b32 v{t0}, 4, v{t0}")
        a(f"v_mul_u32_u24 v{t1}, 1280, v{t1}")
        a(f"v_add_u32 v{vO[r]}, v{t0}, v{t1}")
    XS = V(2, 2)
    vY = V()
    def xy_x():
        lx = a.newlabel("k3_x2")
        a(f"s_cmp_ge_u32 s{sW}, 2")
        a(f"s_cbranch_scc1 {lx}")
        a(f"s_mul_i32 s{sT0}, s{sW}, {32*1280}")
        a(f"s_add_u32 s{sT0}, s{sT0}, s{sXB}")
        a(f"s_mul_i32 s{sT1}, s{sW}, 5120")
        for r in range(5):
            a(f"s_add_u32 m0, s{sT1}, {XT_ + r*1024}")
            a(f"buffer_load_dwordx4 v{vO[r]}, s[{sX}:{sX+3}], s{sT0} offen lds")
        a.vm -= 5
        a.label(lx)
        a(f"s_lshl_b32 s{sT0}, s{sRB}, 9")
        a(f"s_lshl_b32 s{sT1}, s{sW}, 7")
        a(f"s_add_u32 s{sT0}, s{sT0}, s{sT1}")
        a(f"s_add_u32 s{sT0}, s{sT0}, {WS_XST}")
        a(f"v_lshlrev_b32 v{t0}, 3, v{vP}")
        a.vmem(f"buffer_load_dwordx2 {P(XS)}, v{t0}, s[{sWS}:{sWS+3}], s{sT0} offen{SC}")
    def xy_y():
        from k2 import poll_all_flags
        poll_all_flags(a, sWS, TMPF, t0, WS_F2)
        a(f"v_lshrrev_b32 v{t0}, 3, v{vL}")
        a(f"v_lshlrev_b32 v{t0}, 12, v{t0}")
        a(f"v_and_b32 v{t1}, 7, v{vL}")
        a(f"v_lshl_add_u32 v{vY}, v{t1}, 4, v{t0}")
        for rnd in range(3):
            a(f"s_add_u32 s{sT2}, s{sW}, {4*rnd}")
            a(f"s_lshl_b32 s{sT0}, s{sT2}, 3")
            a(f"s_mul_i32 s{sT1}, s{sDJ}, 80")
            a(f"s_add_u32 s{sT0}, s{sT0}, s{sT1}")
            a(f"s_lshl_b32 s{sT0}, s{sT0}, 12")
            a(f"s_lshl_b32 s{sT1}, s{sRB}, 7")
            a(f"s_add_u32 s{sT0}, s{sT0}, s{sT1}")
            a(f"s_add_u32 s{sT0}, s{sT0}, {WS_YT}")
            a(f"s_lshl_b32 s{sT1}, s{sT2}, 10")
            a(f"s_add_u32 m0, s{sT1}, {YT_}")
            a(f"s_cmp_lt_u32 s{sT2}, 10")
            a(f"s_cselect_b64 exec, -1, 0")
            a.vmem(f"buffer_load_dwordx4 v{vY}, s[{sWS}:{sWS+3}], s{sT0} offen{SC} lds")
            a(f"s_mov_b64 exec, -1")
    def xy_g():
        lx = a.newlabel("k3_y"); lx2 = a.newlabel("k3_xy")
        a(f"s_cmp_ge_u32 s{sW}, 2")
        a(f"s_cbranch_scc1 {lx}")
        a(f"s_mul_i32 s{sT0}, s{sW}, {32*1280}")
        a(f"s_add_u32 s{sT0}, s{sT0}, s{sXB}")
        a(f"s_mul_i32 s{sT1}, s{sW}, 5120")
        for r in range(5):
            a(f"s_add_u32 m0, s{sT1}, {XT_ + r*1024}")
            a(f"buffer_load_dwordx4 v{vO[r]}, s[{sX}:{sX+3}], s{sT0} offen lds")
        a(f"s_branch {lx2}")
        a.label(lx)
        a(f"v_lshrrev_b32 v{t0}, 3, v{vL}")
        a(f"v_lshlrev_b32 v{t0}, 12, v{t0}")
        a(f"v_and_b32 v{t1}, 7, v{vL}")
        a(f"v_lshl_add_u32 v{vY}, v{t1}, 4, v{t0}")
        a(f"s_sub_u32 s{sT2}, s{sW}, 2")
        a(f"s_mul_i32 s{sT0}, s{sT2}, 40")
        a(f"s_mul_i32 s{sT1}, s{sDJ}, 80")
        a(f"s_add_u32 s{sT0}, s{sT0}, s{sT1}")
        a(f"s_lshl_b32 s{sT0}, s{sT0}, 12")
        a(f"s_lshl_b32 s{sT1}, s{sRB}, 7")
        a(f"s_add_u32 s{sT0}, s{sT0}, s{sT1}")
        a(f"s_add_u32 s{sT0}, s{sT0}, {WS_YT}")
        a(f"s_mul_i32 s{sT1}, s{sT2}, 5120")
        for r in range(5):
            a(f"s_add_u32 m0, s{sT1}, {YT_ + r*1024}")
            a(f"buffer_load_dwordx4 v{vY}, s[{sWS}:{sWS+3}], s{sT0} offen{SC} lds")
            a(f"s_add_u32 s{sT0}, s{sT0}, {8*4096}")
        a.label(lx2)
        a.vm -= 5
        a(f"s_lshl_b32 s{sT0}, s{sRB}, 9")
        a(f"s_lshl_b32 s{sT1}, s{sW}, 7")
        a(f"s_add_u32 s{sT0}, s{sT0}, s{sT1}")
        a(f"s_add_u32 s{sT0}, s{sT0}, {WS_XST}")
        a(f"v_lshlrev_b32 v{t0}, 3, v{vP}")
        a.vmem(f"buffer_load_dwordx2 {P(XS)}, v{t0}, s[{sWS}:{sWS+3}], s{sT0} offen{SC}")
        yield
    a(f"v_lshrrev_b32 v{vQ}, 4, v{vL}")
    a(f"v_and_b32 v{vP}, 15, v{vL}")
    vA = [V(), V()]
    a(f"v_mov_b32 v{vA[0]}, v{vZ}")
    a(f"v_add_u32 v{vA[1]}, {12*5120}, v{vZ}")
    ACC = V(20, 4)
    AF = V(40, 4)
    TMPF = V(8, 4)
    def read_a(ks):
        b = ks & 1; ids = []
        lo = wpos(ks // 4) + (ks % 4)*5120
        base = vA[0] if lo < 12*5120 else vA[1]
        o = WO + (lo if lo < 12*5120 else lo - 12*5120)
        for dt in range(5):
            r = AF + (b*5 + dt)*4
            ids.append(a.ds(f"ds_read_b128 v[{r}:{r+3}], v{base} offset:{o + dt*1024}"))
        return ids
    rd = {}
    for m in range(6):
        if S2:
            if m == 2:
                split['gsync']()
                run(dma_w_g(4)); run(dma_w_g(5))
            if m == 4:
                a.wait_vm(w_id[5])
                split['gsync']()
                xy_x()
        elif split is not None:
            if m == 4:
                a("s_barrier")
                run(dma_w_g(4)); run(dma_w_g(5))
                poll_all_flags(a, sWS, AF + 40 - 8 if False else TMPF, t0, WS_F2)
                run(xy_g())
                a("s_barrier")
        else:
            a.wait_vm(w_id[m])
            a("s_barrier")
        ST(f"m{m}")
        rd[4*m] = read_a(4*m)
        fl = Filler()
        if m + 2 < 6:
            if not F3: fl.add(dma_w_g(m + 2))
            if not (F3 and os.environ.get("PALL") and m + 2 >= int(os.environ.get("NW0", "6"))): fl.add(load_p_g(m + 2))
        if m == 3 and split is None: fl.add(xy_g())
        for ks in range(4*m, 4*m + 4):
            if ks + 1 < 4*m + 4: rd[ks+1] = read_a(ks + 1)
            a.wait_vm(p_id[ks])
            b = ks & 1
            for dt in range(5):
                a.wait_lg(rd[ks][dt])
                r = AF + (b*5 + dt)*4
                c = "0" if ks == 0 else f"v[{ACC+4*dt}:{ACC+4*dt+3}]"
                a(f"v_mfma_f32_16x16x32_bf16 v[{ACC+4*dt}:{ACC+4*dt+3}], v[{r}:{r+3}], v[{PFr+4*ks}:{PFr+4*ks+3}], {c}")
                if dt % 2 == 0: fl.step(1)
        fl.drain()
    ST("k3loop")
    if S2: xy_y()
    XV = AF; YV = AF + 10
    a(f"s_lshl_b32 s{sT0}, s{sW}, 4")
    a(f"v_add_u32 v{t0}, s{sT0}, v{vP}")
    a(f"v_mul_u32_u24 v{t0}, 160, v{t0}")
    vXA = V(); vX2 = V(); vYA = V()
    a(f"v_lshl_add_u32 v{vXA}, v{vQ}, 3, v{t0}")
    a(f"v_add_u32 v{vX2}, {XT_}, v{vXA}")
    a(f"v_lshrrev_b32 v{t1}, 2, v{vP}")
    a(f"v_lshl_add_u32 v{t0}, v{vQ}, 2, v{t1}")
    a(f"v_lshlrev_b32 v{t0}, 7, v{t0}")
    a(f"v_and_b32 v{t1}, 3, v{vP}")
    a(f"v_lshl_add_u32 v{t0}, v{t1}, 3, v{t0}")
    a(f"s_lshl_b32 s{sT0}, s{sW}, 5")
    a(f"s_add_u32 s{sT0}, s{sT0}, {YT_}")
    a(f"v_add_u32 v{vYA}, s{sT0}, v{t0}")
    T = PFr
    sL = 46
    a(f"s_mov_b32 s{sL}, {f32(-LOG2E):#x}")
    a(f"s_mov_b32 s{sL+1}, {f32(-LOG2E):#x}")
    E = T
    for i in range(0, 20, 2): a(f"v_pk_mul_f32 {P(E+i)}, {P(ACC+i)}, s[{sL}:{sL+1}]")
    for i in range(20): a(f"v_exp_f32 v{E+i}, v{E+i}") if S2 else None
    a("s_waitcnt vmcnt(0)")
    if S2: split['gsync']()
    else: a("s_barrier")
    for dt in range(5):
        a.ds(f"ds_read_b64 v[{XV+2*dt}:{XV+2*dt+1}], v{vX2} offset:{dt*32}")
    for dt in range(5):
        a.ds(f"ds_read_b64_tr_b16 v[{YV+2*dt}:{YV+2*dt+1}], v{vYA} offset:{dt*2048}")
    for i in range(20): a(f"v_exp_f32 v{E+i}, v{E+i}") if not S2 else None
    for i in range(0, 20, 2): a(f"v_pk_add_f32 {P(E+i)}, {P(E+i)}, 1.0 op_sel_hi:[1,0]")
    for i in range(20): a(f"v_rcp_f32 v{E+i}, v{E+i}")
    for i in range(0, 20, 2): a(f"v_pk_mul_f32 {P(E+i)}, {P(E+i)}, {P(ACC+i)}")
    a("s_waitcnt lgkmcnt(0)")
    XF_ = T + 20; YF = T + 40; N = T + 60
    for i in range(10):
        a(f"v_lshlrev_b32 v{XF_+2*i}, 16, v{XV+i}")
        a(f"v_and_b32 v{XF_+2*i+1}, 0xffff0000, v{XV+i}")
        a(f"v_lshlrev_b32 v{YF+2*i}, 16, v{YV+i}")
        a(f"v_and_b32 v{YF+2*i+1}, 0xffff0000, v{YV+i}")
    RB = V(2, 2)
    a(f"v_mov_b32 v{RB}, v{XS+1}")
    for i in range(0, 20, 2): a(f"v_pk_add_f32 {P(N+i)}, {P(XF_+i)}, {P(XS)} op_sel_hi:[1,0] neg_lo:[0,1] neg_hi:[0,1]")
    for i in range(0, 20, 2): a(f"v_pk_mul_f32 {P(N+i)}, {P(N+i)}, {P(RB)} op_sel_hi:[1,0]")
    for i in range(0, 20, 2): a(f"v_pk_mul_f32 {P(N+i)}, {P(N+i)}, {P(YF+i)}")
    for i in range(0, 20, 2): a(f"v_pk_fma_f32 {P(N+i)}, {P(N+i)}, {P(E+i)}, {P(XF_+i)}")
    OV = AF
    for i in range(10): a(f"v_cvt_pk_bf16_f32 v{OV+i}, v{N+2*i}, v{N+2*i+1}")
    vOW = V()
    a(f"v_add_u32 v{vOW}, {OT_}, v{vXA}")
    for dt in range(5):
        a.ds(f"ds_write_b64 v{vOW}, v[{OV+2*dt}:{OV+2*dt+1}] offset:{dt*32}")
    a(f"s_mul_i32 s{sT0}, s{sW}, 2560")
    a(f"s_add_u32 s{sT0}, s{sT0}, {OT_}")
    a(f"v_add_u32 v{t0}, s{sT0}, v{vZ}")
    a("s_waitcnt lgkmcnt(0)")
    for r in range(3):
        a.ds(f"ds_read_b128 v[{T+4*r}:{T+4*r+3}], v{t0} offset:{r*1024}")
    a(f"s_mul_i32 s{sT0}, s{sW}, {16*1280}")
    a(f"s_add_u32 s{sT0}, s{sT0}, s{sXB}")
    a("s_waitcnt lgkmcnt(0)")
    for r in range(3):
        if r == 2: a(f"s_mov_b32 exec_hi, 0")
        a.vmem(f"buffer_store_dwordx4 v[{T+4*r}:{T+4*r+3}], v{vO[r]}, s[{sOUT}:{sOUT+3}], s{sT0} offen" + (" sc1" if "osc1" in K3X else ""))
    a(f"s_mov_b64 exec, -1")
    ST("k3end")
    ST.dump(sWS, sW, t0, t1, WS_DBG + 0x600000)
    gen_k3.stamp_names = ST.names
    if F3 and Stamps.HS:
        wg = int(os.environ.get("HSWG", "0"))
        lab = a.newlabel("hs_skip")
        a(f"s_cmp_lg_u32 s2, {wg}")
        a(f"s_cbranch_scc1 {lab}")
        a(f"s_cmp_lg_u32 s{sW}, 0")
        a(f"s_cbranch_scc1 {lab}")
        a(f"s_load_dwordx2 s[20:21], s[0:1], {KA['dbg']}")
        a(f"s_mov_b32 s22, 256"); a(f"s_mov_b32 s23, {SRD3:#x}")
        a(f"v_readlane_b32 s40, v254, 1")
        a(f"v_mbcnt_lo_u32_b32 v{t0}, -1, 0")
        a(f"v_mbcnt_hi_u32_b32 v{t0}, -1, v{t0}")
        a(f"v_lshlrev_b32 v{t0}, 2, v{t0}")
        a(f"v_subrev_u32 v254, s40, v254")
        a("s_waitcnt lgkmcnt(0)")
        a(f"s_mov_b64 exec, {((1 << (len(Stamps.HS) + 1)) - 1) & ~1:#x}")
        a(f"buffer_store_dword v254, v{t0}, s[20:23], 0 offen")
        a(f"s_mov_b64 exec, -1")
        a.label(lab)
    if F3: return V.hi
    a.label(f"{name}_end")
    a("s_endpgm")
    return a.finish(), V.hi
```

```python
from dsl import *
from layout import *
from k1 import f32, Filler, run, mask, P, Z1L, SYNC
sTAGF = 100

def gsync(a, which, state, t0, t1):
    state[0] += 1
    a("s_waitcnt lgkmcnt(0)")
    a(f"v_mov_b32 v{t0}, {SYNC + 4*which}")
    a(f"v_mov_b32 v{t1}, 1")
    a("s_mov_b64 exec, 1")
    a(f"ds_add_u32 v{t0}, v{t1}")
    a("s_mov_b64 exec, -1")
    lp = a.newlabel("gsync"); le = a.newlabel("gsync_e")
    a("s_mov_b32 s67, 0")
    a.label(lp)
    a(f"ds_read_b32 v{t1}, v{t0}")
    a("s_add_u32 s67, s67, 1")
    a("s_waitcnt lgkmcnt(0)")
    a(f"v_readfirstlane_b32 s66, v{t1}")
    a("s_cmp_gt_u32 s67, 1000000")
    a(f"s_cbranch_scc1 {le}")
    a(f"s_cmp_lt_u32 s66, {4*state[0]}")
    a(f"s_cbranch_scc1 {lp}")
    a.label(le)
    a.lg -= 2

def poll_all_flags(a, sWS, F, t0, base=None):
    lp = a.newlabel("fpoll"); le = a.newlabel("fpoll_e")
    a(f"v_mbcnt_lo_u32_b32 v{t0}, -1, 0")
    a(f"v_mbcnt_hi_u32_b32 v{t0}, -1, v{t0}")
    a(f"v_lshlrev_b32 v{t0}, 4, v{t0}")
    a(f"s_mov_b32 s66, {WS_F1 if base is None else base}")
    a("s_mov_b32 s67, 0")
    a.label(lp)
    a(f"buffer_load_dwordx4 v[{F}:{F+3}], v{t0}, s[{sWS}:{sWS+3}], s66 offen sc1")
    a(f"buffer_load_dwordx4 v[{F+4}:{F+7}], v{t0}, s[{sWS}:{sWS+3}], s66 offen offset:1024 sc1")
    a.vm -= 2
    a("s_add_u32 s67, s67, 1")
    a("s_waitcnt vmcnt(0)")
    a(f"v_cmp_ne_u32 vcc, s{sTAGF}, v{F}")
    for k in range(1, 8):
        a(f"v_cmp_ne_u32 s[64:65], s{sTAGF + (k & 1)}, v{F+k}")
        a("s_or_b64 vcc, vcc, s[64:65]")
    a("s_cmp_gt_u32 s67, 100000")
    a(f"s_cbranch_scc1 {le}")
    a("s_cmp_eq_u64 vcc, 0")
    a(f"s_cbranch_scc1 {le}")
    a("s_sleep 2")
    a(f"s_branch {lp}")
    a.label(le)

def poll_flags_n(a, sWS, sOff, n, F, t0):
    lp = a.newlabel("fpoll"); le = a.newlabel("fpoll_e")
    a(f"v_mbcnt_lo_u32_b32 v{t0}, -1, 0")
    a(f"v_mbcnt_hi_u32_b32 v{t0}, -1, v{t0}")
    a(f"v_min_u32 v{t0}, {n-1}, v{t0}")
    a(f"v_lshlrev_b32 v{t0}, 3, v{t0}")
    a("s_mov_b32 s67, 0")
    a.label(lp)
    a(f"buffer_load_dwordx2 {P(F)}, v{t0}, s[{sWS}:{sWS+3}], s{sOff} offen sc1")
    a.vm -= 1
    a("s_add_u32 s67, s67, 1")
    a("s_waitcnt vmcnt(0)")
    a(f"v_cmp_ne_u32 vcc, s{sTAGF}, v{F}")
    a(f"v_cmp_ne_u32 s[64:65], s{sTAGF+1}, v{F+1}")
    a("s_or_b64 vcc, vcc, s[64:65]")
    a("s_cmp_gt_u32 s67, 100000")
    a(f"s_cbranch_scc1 {le}")
    a("s_cmp_eq_u64 vcc, 0")
    a(f"s_cbranch_scc1 {le}")
    a("s_sleep 2")
    a(f"s_branch {lp}")
    a.label(le)

def poll_flags(a, sWS, sOff, F, t0):
    lp = a.newlabel("fpoll"); le = a.newlabel("fpoll_e")
    a(f"v_mbcnt_lo_u32_b32 v{t0}, -1, 0")
    a(f"v_mbcnt_hi_u32_b32 v{t0}, -1, v{t0}")
    a(f"v_and_b32 v{t0}, 31, v{t0}")
    a(f"v_lshlrev_b32 v{t0}, 3, v{t0}")
    a("s_mov_b32 s67, 0")
    a.label(lp)
    a(f"buffer_load_dwordx2 {P(F)}, v{t0}, s[{sWS}:{sWS+3}], s{sOff} offen sc1")
    a.vm -= 1
    a("s_add_u32 s67, s67, 1")
    a("s_waitcnt vmcnt(0)")
    a(f"v_cmp_ne_u32 vcc, s{sTAGF}, v{F}")
    a(f"v_cmp_ne_u32 s[64:65], s{sTAGF+1}, v{F+1}")
    a("s_or_b64 vcc, vcc, s[64:65]")
    a("s_cmp_gt_u32 s67, 100000")
    a(f"s_cbranch_scc1 {le}")
    a("s_cmp_eq_u64 vcc, 0")
    a(f"s_cbranch_scc1 {le}")
    a("s_sleep 2")
    a(f"s_branch {lp}")
    a.label(le)
import os
K2X = os.environ.get('K2X', '')

ZDEPTH = int(os.environ.get('ZD', '4'))
FUSED = bool(os.environ.get('FUSED'))
FULL = os.environ.get('FUSED') == '2'
CB = 86016 if FUSED else 0
CS_ = 4160
TOEP = CB
OZ = 1
UZ = 32
UB = TOEP + 8 * CS_
PB = UB + 4608
PT_ = 8192
WJ = PB + 4*PT_
assert WJ + 5120 <= (161792 if FUSED else 81920)

def gen_gemm(a, V, ST, prof):
    sWSP, sWS, sBSP = 4, 8, 12
    sRB, sJ, sW = 32, 33, 34
    sT0, sT1, sT2, sT3 = 40, 41, 42, 43
    sZ, sWB, sLB = 44, 45, 46
    a(f"s_load_dwordx2 s[{sWSP}:{sWSP+1}], s[0:1], {KA['wsp']}")
    a(f"s_load_dwordx2 s[{sWS}:{sWS+1}], s[0:1], {KA['ws']}")
    a(f"s_load_dwordx2 s[{sBSP}:{sBSP+1}], s[0:1], {KA['bsp']}")
    vL = V(); t0, t1, t2 = V(), V(), V()
    a(f"v_lshrrev_b32 v{t0}, 6, v0")
    a(f"v_and_b32 v{vL}, 63, v0")
    a(f"v_readfirstlane_b32 s{sW}, v{t0}")
    for srd, size in ((sWSP, SZ_WSP), (sWS, WS_SIZE_DBG if prof else WS_END), (sBSP, 4096)):
        a(f"s_mov_b32 s{srd+2}, {size}")
        a(f"s_mov_b32 s{srd+3}, {SRD3:#x}")
    a(f"s_and_b32 s{sT0}, s2, 7")
    a(f"s_lshr_b32 s{sT1}, s2, 3")
    a(f"s_and_b32 s{sT1}, s{sT1}, 31")
    a(f"s_lshr_b32 s{sRB}, s{sT0}, 1")
    a(f"s_lshl_b32 s{sRB}, s{sRB}, 3")
    a(f"s_and_b32 s{sT2}, s{sT1}, 7")
    a(f"s_add_u32 s{sRB}, s{sRB}, s{sT2}")
    a(f"s_and_b32 s{sJ}, s{sT0}, 1")
    a(f"s_lshl_b32 s{sJ}, s{sJ}, 2")
    a(f"s_lshr_b32 s{sT2}, s{sT1}, 3")
    a(f"s_add_u32 s{sJ}, s{sJ}, s{sT2}")
    a(f"s_lshl_b32 s{sZ}, s{sJ}, 7")
    a(f"s_lshl_b32 s{sT0}, s{sW}, 5")
    a(f"s_add_u32 s{sZ}, s{sZ}, s{sT0}")
    a(f"s_mul_i32 s{sZ}, s{sZ}, 3072")
    a(f"s_add_u32 s{sZ}, s{sZ}, {WS_Z2F}")
    a(f"s_lshl_b32 s{sWB}, s{sRB}, 18")
    a(f"s_lshl_b32 s{sT0}, s{sW}, 10")
    a(f"s_add_u32 s{sWB}, s{sWB}, s{sT0}")
    a(f"s_lshl_b32 s{sLB}, s{sW}, 14")
    vZ = V()
    a(f"v_lshlrev_b32 v{vZ}, 4, v{vL}")
    vWE, vWO = V(), V()
    a(f"v_lshrrev_b32 v{t0}, 3, v{vL}")
    a(f"v_lshlrev_b32 v{t0}, 12, v{t0}")
    a(f"v_and_b32 v{t1}, 7, v{vL}")
    a(f"v_lshrrev_b32 v{t2}, 4, v{vL}")
    a(f"v_xor_b32 v{t1}, v{t1}, v{t2}")
    a(f"v_lshl_add_u32 v{vWE}, v{t1}, 4, v{t0}")
    a(f"v_xor_b32 v{vWO}, 64, v{vWE}")
    sROT = 50
    if "rot" in K2X:
        a(f"s_and_b32 s{sROT}, s{sJ}, 3")
        a(f"s_lshl_b32 s{sROT}, s{sROT}, 1")
        a(f"s_add_u32 s{sROT}, s{sROT}, s{sRB}")
        a(f"s_and_b32 s{sROT}, s{sROT}, 7")
    else: a(f"s_mov_b32 s{sROT}, 0")
    def chunk(c, dst):
        a(f"s_add_u32 s{dst}, s{sROT}, {c}")
        a(f"s_and_b32 s{dst}, s{dst}, 7")
    ACC = V(96, 4)
    def acc(ft, tt): return ACC + (ft*2 + tt)*16
    ZF = V((ZDEPTH+1)*12, 4)
    def zf(ks, ft): return ZF + ((ks % (ZDEPTH+1))*3 + ft)*4
    WFr = V(16, 4)
    def wfr(b, tt): return WFr + (b*2 + tt)*4
    z_id = {}; w_id = {}
    sZc = [52, 53]; sWc = [54, 55]
    def z_base(c):
        chunk(c, sZc[c & 1])
        a(f"s_mul_i32 s{sZc[c & 1]}, s{sZc[c & 1]}, 12288")
        a(f"s_add_u32 s{sZc[c & 1]}, s{sZc[c & 1]}, s{sZ}")
    def w_base(c):
        chunk(c, sWc[c & 1])
        a(f"s_lshl_b32 s{sWc[c & 1]}, s{sWc[c & 1]}, 7")
        a(f"s_add_u32 s{sWc[c & 1]}, s{sWc[c & 1]}, s{sWB}")
    def load_z_g(ks):
        c = ks // 4
        if ks % 4 == 0: z_base(c)
        for ft in range(3):
            so = sZc[c & 1]
            if ks % 4:
                a(f"s_add_u32 s{sT1}, s{sZc[c & 1]}, {(ks%4)*3072}"); so = sT1
            z_id[(ks, ft)] = a.vmem(f"buffer_load_dwordx4 v[{zf(ks,ft)}:{zf(ks,ft)+3}], v{vZ}, s[{sWS}:{sWS+3}], s{so} offen offset:{ft*1024}" + (" sc1" if FUSED else ""))
            yield
    def dma_w_g(c, lo, hi):
        sl = c & 1
        if lo == 0: w_base(c)
        for i in range(lo, hi):
            a(f"s_add_u32 s{sT2}, s{sWc[c & 1]}, {i*8*4096}")
            a(f"s_add_u32 m0, s{sLB}, {sl*8192 + i*1024}")
            w_id[c] = a.vmem(f"buffer_load_dwordx4 v{vWE if i % 2 == 0 else vWO}, s[{sWSP}:{sWSP+3}], s{sT2} offen lds")
            yield
    a("s_waitcnt lgkmcnt(0)")
    ST("g_kernarg")
    if FUSED:
        run(dma_w_g(0, 0, 8))
        a(f"s_lshl_b32 s{sT3}, s{sJ}, 8")
        a(f"s_add_u32 s{sT3}, s{sT3}, {WS_F1}")
        poll_flags(a, sWS, sT3, ZF, t0)
        ST("g_flags")
        for ks in range(ZDEPTH): run(load_z_g(ks))
    else:
        run(load_z_g(0)); run(dma_w_g(0, 0, 8))
        for ks in range(1, ZDEPTH): run(load_z_g(ks))
    vWA = [V() for _ in range(4)]
    a(f"v_and_b32 v{t0}, 31, v{vL}")
    a(f"v_lshrrev_b32 v{t1}, 1, v{t0}")
    a(f"v_and_b32 v{t1}, 7, v{t1}")
    a(f"v_lshrrev_b32 v{t2}, 5, v{vL}")
    a(f"v_xor_b32 v{t1}, v{t1}, v{t2}")
    a(f"v_lshl_add_u32 v{t0}, v{t0}, 7, s{sLB}")
    for kk in range(4):
        a(f"v_xor_b32 v{t2}, {2*kk}, v{t1}")
        a(f"v_lshl_add_u32 v{vWA[kk]}, v{t2}, 4, v{t0}")
    Z1 = V(12, 4); vB = V()
    ep = {}
    def epi_loads():
        a(f"s_lshl_b32 s{sT0}, s{sRB}, 3")
        a(f"s_add_u32 s{sT0}, s{sT0}, s{sJ}")
        a(f"s_lshl_b32 s{sT0}, s{sT0}, 2")
        a(f"s_add_u32 s{sT0}, s{sT0}, s{sW}")
        a(f"s_mul_i32 s{sT0}, s{sT0}, 3072")
        a(f"s_add_u32 s{sT0}, s{sT0}, {WS_Z1F}")
        for ft in range(3):
            if FUSED:
                if ft == 0:
                    a(f"s_mul_i32 s{sT0}, s{sW}, 3072")
                    a(f"s_add_u32 s{sT0}, s{sT0}, {Z1L}")
                    a(f"v_add_u32 v{t1}, s{sT0}, v{vZ}")
                a.ds(f"ds_read_b128 v[{Z1+4*ft}:{Z1+4*ft+3}], v{t1} offset:{ft*1024}")
            else:
                a.vmem(f"buffer_load_dwordx4 v[{Z1+4*ft}:{Z1+4*ft+3}], v{vZ}, s[{sWS}:{sWS+3}], s{sT0} offen offset:{ft*1024}")
            yield
        a(f"v_and_b32 v{t0}, 31, v{vL}")
        a(f"v_lshlrev_b32 v{t0}, 1, v{t0}")
        a(f"s_lshr_b32 s{sT0}, s{sW}, 1")
        a(f"s_lshl_b32 s{sT0}, s{sT0}, 6")
        a(f"s_lshl_b32 s{sT3}, s{sRB}, 7")
        a(f"s_add_u32 s{sT0}, s{sT0}, s{sT3}")
        ep['b'] = a.vmem(f"buffer_load_ushort v{vB}, v{t0}, s[{sBSP}:{sBSP+3}], s{sT0} offen")
        yield
    def read_w(ks):
        c = ks // 4; kk = ks % 4; b = ks & 1
        ids = []
        for tt in range(2):
            ids.append(a.ds(f"ds_read_b128 v[{wfr(b,tt)}:{wfr(b,tt)+3}], v{vWA[kk]} offset:{(c&1)*8192 + tt*4096}"))
        return ids[-1]
    a.wait_vm(w_id[0])
    ST("g_w0")
    if "noprio" not in K2X: a("s_setprio 2")
    rd = {0: read_w(0)}
    for ks in range(32):
        c = ks // 4
        if ks % 4 == 0 and "cst" in K2X: ST(f"c{c}")
        if ks == int(os.environ.get("PSW", "99")): a("s_setprio 0")
        a.wait_vm(z_id[(ks, 2)])
        a.wait_lg(rd[ks])
        fl = Filler()
        def rdw(k=ks):
            if (k + 1) % 4 == 0: a.wait_vm(w_id[(k + 1)//4])
            rd[k + 1] = read_w(k + 1)
            yield
        if ks + 1 < 32: fl.add(rdw())
        if ks + ZDEPTH < 32: fl.add(load_z_g(ks + ZDEPTH))
        if ks == 0: fl.add(dma_w_g(1, 0, 4))
        if ks == 1: fl.add(dma_w_g(1, 4, 8))
        for n in range(2, 8):
            if ks == 4*(n-1) - 1: fl.add(dma_w_g(n, 0, 2))
            if ks == 4*(n-1): fl.add(dma_w_g(n, 2, 5))
            if ks == 4*(n-1) + 1: fl.add(dma_w_g(n, 5, 8))
        if ks == 30: fl.add(epi_loads())
        b = ks & 1
        for ft in range(3):
            for tt in range(2):
                cc = "0" if ks == 0 else f"v[{acc(ft,tt)}:{acc(ft,tt)+15}]"
                if not ("nomfma" in K2X and ks > 0):
                    a(f"v_mfma_f32_32x32x16_bf16 v[{acc(ft,tt)}:{acc(ft,tt)+15}], v[{zf(ks,ft)}:{zf(ks,ft)+3}], v[{wfr(b,tt)}:{wfr(b,tt)+3}], {cc}")
                fl.step(1)
        fl.drain()
    ST("g_loop")
    a("s_setprio 0")
    OWN = ZF
    lend = a.newlabel("g_epi_end")
    labs = [a.newlabel("g_epi") for _ in range(4)]
    a(f"v_add_u32 v{t2}, 0x10000, v{vZ}")
    a("s_nop 15")
    gst = [0]
    gen_gemm.gst = gst
    OWNRING = "ownring" in K2X
    if not OWNRING:
        if FUSED: gsync(a, 0, gst, t0, t1)
        else: a("s_barrier")
    lg0 = a.lg
    for w in range(4):
        if w < 3:
            a(f"s_cmp_lg_u32 s{sW}, {w}")
            a(f"s_cbranch_scc1 {labs[w]}")
        a.lg = lg0
        for d in range(4):
            if d == w: continue
            tt = d >> 1; g0 = d & 1
            k = (w - d - 1) & 3
            for ft in range(3):
                for gh in range(2):
                    r = acc(ft, tt) + 4*(g0 + 2*gh)
                    off = d*18432 + k*6144 + (ft*2+gh)*1024
                    if OWNRING:
                        idx = k*6 + ft*2 + gh
                        off = w*16384 + idx*1024 if idx < 16 else 65536 + w*2048 + (idx - 16)*1024
                    if off >= 65536: a.ds(f"ds_write_b128 v{t2}, v[{r}:{r+3}] offset:{off - 65536}")
                    else: a.ds(f"ds_write_b128 v{vZ}, v[{r}:{r+3}] offset:{off}")
        tt = w >> 1; g0 = w & 1
        for ft in range(3):
            for gh in range(2):
                r = acc(ft, tt) + 4*(g0 + 2*gh)
                for e in range(0, 4, 2):
                    a(f"v_pk_add_f32 {P(OWN + (ft*2+gh)*4 + e)}, {P(r+e)}, 0")
        if w < 3:
            a(f"s_branch {lend}")
            a.label(labs[w])
    a.label(lend)
    return_epi = True
    a("s_waitcnt lgkmcnt(0)")
    if FUSED: gsync(a, 0, gst, t0, t1)
    else: a("s_barrier")
    PT = ACC
    if OWNRING:
        for k in range(3):
            a(f"s_add_u32 s{sT0}, s{sW}, {k + 1}")
            a(f"s_and_b32 s{sT0}, s{sT0}, 3")
            a(f"s_lshl_b32 s{sT1}, s{sT0}, 14")
            a(f"v_add_u32 v{t0}, s{sT1}, v{vZ}")
            if k == 2:
                a(f"s_lshl_b32 s{sT1}, s{sT0}, 11")
                a(f"s_add_u32 s{sT1}, s{sT1}, 65536")
                a(f"v_add_u32 v{t1}, s{sT1}, v{vZ}")
            for q in range(6):
                idx = k*6 + q
                if idx < 16: a.ds(f"ds_read_b128 v[{PT + idx*4}:{PT + idx*4 + 3}], v{t0} offset:{idx*1024}")
                else: a.ds(f"ds_read_b128 v[{PT + idx*4}:{PT + idx*4 + 3}], v{t1} offset:{(idx-16)*1024}")
    else:
        a(f"s_mul_i32 s{sT0}, s{sW}, 18432")
        a(f"v_add_u32 v{t0}, s{sT0}, v{vZ}")
        for k in range(3):
            for q in range(6):
                a.ds(f"ds_read_b128 v[{PT + (k*6+q)*4}:{PT + (k*6+q)*4 + 3}], v{t0} offset:{k*6144 + q*1024}")
    vSt = vWE
    a(f"v_lshrrev_b32 v{vSt}, 4, v{vL}")
    a(f"v_and_b32 v{vSt}, 1, v{vSt}")
    a(f"v_mul_u32_u24 v{vSt}, {24*1024}, v{vSt}")
    a(f"v_and_b32 v{t1}, 15, v{vL}")
    a(f"v_lshrrev_b32 v{t2}, 5, v{vL}")
    a(f"v_lshl_add_u32 v{t1}, v{t2}, 4, v{t1}")
    a(f"v_lshl_add_u32 v{vSt}, v{t1}, 4, v{vSt}")
    a(f"s_mul_i32 s{sT0}, s{sRB}, {4*24*1024}")
    a(f"s_lshr_b32 s{sT1}, s{sW}, 1")
    a(f"s_mul_i32 s{sT1}, s{sT1}, {2*24*1024}")
    a(f"s_add_u32 s{sT0}, s{sT0}, s{sT1}")
    a(f"s_mul_i32 s{sT1}, s{sJ}, 3072")
    a(f"s_add_u32 s{sT0}, s{sT0}, s{sT1}")
    a(f"s_and_b32 s{sT1}, s{sW}, 1")
    a(f"s_lshl_b32 s{sT1}, s{sT1}, 9")
    a(f"s_add_u32 s{sT0}, s{sT0}, s{sT1}")
    a(f"s_add_u32 s{sT0}, s{sT0}, {WS_PF}")
    a.wait_vm(ep['b'])
    vB2 = vWA[0] if vWA[0] % 2 == 0 else vWA[1]
    a(f"v_lshlrev_b32 v{vB2}, 16, v{vB}")
    ZU = PT + 72
    for i in range(12):
        a(f"v_lshlrev_b32 v{ZU+2*i}, 16, v{Z1+i}")
        a(f"v_and_b32 v{ZU+2*i+1}, 0xffff0000, v{Z1+i}")
    for k in range(3):
        a(f"s_waitcnt lgkmcnt({min(15, 12 - 6*k)})")
        for i in range(0, 24, 2):
            a(f"v_pk_add_f32 {P(OWN+i)}, {P(OWN+i)}, {P(PT+k*24+i)}")
    for i in range(0, 24, 2):
        a(f"v_pk_add_f32 {P(OWN+i)}, {P(OWN+i)}, {P(vB2)} op_sel_hi:[1,0]")
    for i in range(0, 24, 2):
        a(f"v_pk_mul_f32 {P(OWN+i)}, {P(OWN+i)}, {P(ZU+i)}")
    OUT = PT
    for ft in range(3):
        for i in range(4):
            a(f"v_cvt_pk_bf16_f32 v{OUT+4*ft+i}, v{OWN+8*ft+2*i}, v{OWN+8*ft+2*i+1}")
        a.vmem(f"buffer_store_dwordx4 v[{OUT+4*ft}:{OUT+4*ft+3}], v{vSt}, s[{sWS}:{sWS+3}], s{sT0} offen offset:{ft*1024}" + (" sc1" if "psc1" in K2X else ""))
    ST("g_end")
    ST.dump(sWS, sW, t0, t1, WS_DBG + 0x200000)

def gen_conv(a, V, ST, prof, name):
    sSSM, sWS, sDv, sWSP, sWO = 4, 8, 12, 16, 20
    sC, sW, sCH = 32, 34, 35
    sT0, sT1, sT2, sT3 = 40, 41, 42, 43
    a(f"s_load_dwordx2 s[{sSSM}:{sSSM+1}], s[0:1], {KA['ssmk']}")
    a(f"s_load_dwordx2 s[{sWS}:{sWS+1}], s[0:1], {KA['ws']}")
    a(f"s_load_dwordx2 s[{sDv}:{sDv+1}], s[0:1], {KA['ssmD']}")
    a(f"s_load_dwordx2 s[{sWSP}:{sWSP+1}], s[0:1], {KA['wsp']}")
    a(f"s_load_dwordx2 s[{sWO}:{sWO+1}], s[0:1], {KA['wout']}")
    vL = V(); vT = V(); t0, t1, t2 = V(), V(), V()
    if FUSED: a(f"v_subrev_u32 v0, 256, v0")
    if os.environ.get("CPRIO"): a(f"s_setprio {os.environ['CPRIO']}")
    cst = [0]
    gen_conv.cst = cst
    def csync():
        if FUSED: gsync(a, 1, cst, t0, t1)
        else:
            a("s_waitcnt lgkmcnt(0)")
            a("s_barrier")
    a(f"v_lshrrev_b32 v{t0}, 6, v0")
    a(f"v_and_b32 v{vL}, 63, v0")
    a(f"v_readfirstlane_b32 s{sW}, v{t0}")
    for srd, size in ((sSSM, SZ_SSMK), (sWS, WS_SIZE_DBG if prof else WS_END), (sDv, 1280), (sWSP, SZ_WSP), (sWO, SZ_WOUT)):
        a(f"s_mov_b32 s{srd+2}, {size}")
        a(f"s_mov_b32 s{srd+3}, {SRD3:#x}")
    a(f"s_mov_b32 s{sC}, s2")
    a(f"v_lshlrev_b32 v{vT}, 4, v0")
    NCH = 3
    HR = V(8*NCH, 4); UR = V(4*NCH, 4); DR = V(NCH)
    vTm = V()
    FP = V(8, 4)
    a(f"v_subrev_u32 v{vTm}, 16, v{vT}")
    sCHN = [56, 57, 58]
    a(f"s_mov_b32 s{sCHN[0]}, s2")
    a(f"s_add_u32 s{sCHN[1]}, s2, 256")
    a(f"s_lshr_b32 s{sCHN[2]}, s2, 1")
    a(f"s_add_u32 s{sCHN[2]}, s{sCHN[2]}, 512")
    ld = {}
    def loads(i):
        a(f"s_lshl_b32 s{sT0}, s{sCHN[i]}, 12")
        a.vmem(f"buffer_load_dwordx4 v[{HR+8*i+4}:{HR+8*i+7}], v{vT}, s[{sSSM}:{sSSM+3}], s{sT0} offen")
        a.vmem(f"buffer_load_dwordx4 v[{HR+8*i}:{HR+8*i+3}], v{vTm}, s[{sSSM}:{sSSM+3}], s{sT0} offen")
        a(f"s_lshl_b32 s{sT1}, s{sCHN[i]}, 1")
        a(f"v_mov_b32 v{t0}, 0")
        a.vmem(f"buffer_load_ushort v{DR+i}, v{t0}, s[{sDv}:{sDv+3}], s{sT1} offen")
        if FUSED:
            ld[i] = a.vm - 1
            return
        load_u(i)
    def load_u(i):
        a(f"s_lshl_b32 s{sT0}, s{sCHN[i]}, 12")
        a(f"s_add_u32 s{sT0}, s{sT0}, {WS_KVT}")
        ld[i] = a.vmem(f"buffer_load_dwordx4 v[{UR+4*i}:{UR+4*i+3}], v{vT}, s[{sWS}:{sWS+3}], s{sT0} offen" + (" sc1" if FUSED else ""))
    def poll_all():
        poll_all_flags(a, sWS, FP, t0)
    a("s_waitcnt lgkmcnt(0)")
    ST("c_kernarg")
    loads(0)
    vTW, vTZ, vDm = V(), V(), V()
    sU, sTWB, sTZB = 47, 52, 53
    a(f"s_lshr_b32 s{sU}, s2, 3")
    a(f"s_lshl_b32 s{sU}, s{sU}, 2")
    a(f"s_add_u32 s{sU}, s{sU}, s{sW}")
    a(f"s_mul_i32 s{sT0}, s{sU}, 12")
    a(f"v_add_u32 v{t0}, s{sT0}, v{vL}")
    a(f"v_mul_u32_u24 v{t1}, 43691, v{t0}")
    a(f"v_lshrrev_b32 v{t1}, 22, v{t1}")
    a(f"v_mul_u32_u24 v{t2}, 96, v{t1}")
    a(f"v_sub_u32 v{t0}, v{t0}, v{t2}")
    a(f"v_mul_u32_u24 v{t1}, 98304, v{t1}")
    a(f"v_lshl_add_u32 v{vTZ}, v{t0}, 7, v{t1}")
    a(f"s_and_b32 s{sT0}, s2, 7")
    a(f"s_lshr_b32 s{sTWB}, s{sT0}, 1")
    a(f"s_lshl_b32 s{sTWB}, s{sTWB}, 21")
    a(f"s_and_b32 s{sTZB}, s{sT0}, 1")
    a(f"s_mul_i32 s{sTZB}, s{sTZB}, {4*393216}")
    a(f"s_add_u32 s{sTZB}, s{sTZB}, {WS_Z2F}")
    a(f"s_lshl_b32 s{sT0}, s{sU}, 4")
    a(f"v_add_u32 v{t0}, s{sT0}, v{vL}")
    a(f"v_lshrrev_b32 v{t1}, 2, v{t0}")
    a(f"v_lshlrev_b32 v{t1}, 12, v{t1}")
    a(f"v_and_b32 v{t0}, 3, v{t0}")
    a(f"v_lshl_add_u32 v{vTW}, v{t0}, 10, v{t1}")
    def touch(c, w=True):
        if "notouch" in K2X: return
        a(f"s_add_u32 s{sT0}, s{sTZB}, {c*12288}")
        a(f"s_mov_b64 exec, 0xfff")
        a.vmem(f"buffer_load_dword v{vDm}, v{vTZ}, s[{sWS}:{sWS+3}], s{sT0} offen" + (" sc1" if FUSED else ""))
        if w and "notw" not in K2X:
            a(f"s_add_u32 s{sT0}, s{sTWB}, {c*128}")
            a(f"s_mov_b64 exec, 0xffff")
            a.vmem(f"buffer_load_dword v{vDm}, v{vTW}, s[{sWSP}:{sWSP+3}], s{sT0} offen")
        a(f"s_mov_b64 exec, -1")
    NUP = int(os.environ.get('NUP', '2'))
    if not FUSED:
        for c_ in range(NUP): touch(c_)
    def wof_job():
        sWJ = 54
        lwj = a.newlabel("c_wj")
        a(f"s_cmp_ge_u32 s2, 192")
        a(f"s_cbranch_scc1 {lwj}")
        a(f"s_mul_i32 s{sT0}, s2, 2731")
        a(f"s_lshr_b32 s{sT0}, s{sT0}, 16")
        a(f"s_mul_i32 s{sT1}, s{sT0}, 24")
        a(f"s_sub_u32 s{sT1}, s2, s{sT1}")
        a(f"s_mul_i32 s{sT1}, s{sT1}, {32*1280}")
        a(f"s_mul_i32 s{sT0}, s{sT0}, 160")
        a(f"s_add_u32 s{sWJ}, s{sT0}, s{sT1}")
        for r in range(2):
            l2 = None
            if r == 1:
                l2 = a.newlabel("c_wj2")
                a(f"s_cmp_lg_u32 s{sW}, 0")
                a(f"s_cbranch_scc1 {l2}")
            if r == 0: a(f"v_mov_b32 v{t0}, v0")
            else: a(f"v_add_u32 v{t0}, 256, v{vL}")
            a(f"v_mul_u32_u24 v{t1}, 6554, v{t0}")
            a(f"v_lshrrev_b32 v{t1}, 16, v{t1}")
            a(f"v_mul_u32_u24 v{t2}, 10, v{t1}")
            a(f"v_sub_u32 v{t0}, v{t0}, v{t2}")
            a(f"v_lshlrev_b32 v{t0}, 4, v{t0}")
            a(f"v_mul_u32_u24 v{t1}, 1280, v{t1}")
            a(f"v_add_u32 v{t0}, v{t0}, v{t1}")
            if r == 0:
                a(f"s_lshl_b32 s{sT0}, s{sW}, 10")
                a(f"s_add_u32 m0, s{sT0}, {WJ}")
            else: a(f"s_mov_b32 m0, {WJ + 4096}")
            a(f"buffer_load_dwordx4 v{t0}, s[{sWO}:{sWO+3}], s{sWJ} offen lds")
            a.vm -= 1
            if l2: a.label(l2)
        a.label(lwj)
        for i_ in range(1, NCH): loads(i_)
    if FUSED: wof_job()
    Zr = V(4, 4)
    for e in range(4): a(f"v_mov_b32 v{Zr+e}, 0")
    a(f"v_mul_u32_u24 v{t0}, {CS_}, v0")
    if TOEP: a(f"v_add_u32 v{t0}, {TOEP}, v{t0}")
    a(f"v_cmp_gt_u32 vcc, 64, v0")
    a(f"s_and_saveexec_b64 s[50:51], vcc")
    lz = a.newlabel("c_z")
    a(f"s_cbranch_execz {lz}")
    a(f"v_subrev_u32 v{t1}, {32*16 - UB}, v{vT}")
    a(f"v_cmp_gt_u32 vcc, 8, v0")
    a(f"v_cndmask_b32 v{t1}, v{t1}, v{t0}, vcc")
    a(f"v_add_u32 v{t2}, -8, v0")
    a(f"v_cmp_lt_u32 vcc, 23, v{t2}")
    a(f"s_and_b64 exec, exec, vcc")
    a.ds(f"ds_write_b128 v{t1}, v[{Zr}:{Zr+3}]")
    a.label(lz)
    a(f"s_mov_b64 exec, s[50:51]")
    vTW_ = V()
    a(f"v_add_u32 v{vTW_}, {OZ*16 + TOEP}, v{vT}")
    vUW = V()
    a(f"v_add_u32 v{vUW}, {UB + UZ*16}, v{vT}")
    vA = V()
    a(f"v_and_b32 v{t0}, 7, v{vL}")
    a(f"v_mul_u32_u24 v{t0}, {CS_}, v{t0}")
    a(f"v_bfe_u32 v{t1}, v{vL}, 3, 1")
    a(f"v_lshrrev_b32 v{t2}, 4, v{vL}")
    a(f"v_sub_u32 v{t1}, v{t1}, v{t2}")
    a(f"v_add_u32 v{t1}, 3, v{t1}")
    a(f"v_lshl_add_u32 v{vA}, v{t1}, 4, v{t0}")
    if TOEP: a(f"v_add_u32 v{vA}, {TOEP}, v{vA}")
    vBq = V()
    a(f"v_and_b32 v{t0}, 15, v{vL}")
    a(f"v_lshl_add_u32 v{t0}, v{t0}, 1, v{t2}")
    a(f"v_lshlrev_b32 v{vBq}, 4, v{t0}")
    a(f"v_add_u32 v{vBq}, {UB}, v{vBq}")
    DM = V(4, 4)
    a(f"v_and_b32 v{t0}, 15, v{vL}")
    a(f"v_lshlrev_b32 v{t1}, 3, v{t2}")
    a(f"v_sub_u32 v{t1}, v{t1}, v{t0}")
    a(f"v_add_u32 v{t1}, -9, v{t1}")
    vK0, vK1 = V(), V()
    a(f"v_mov_b32 v{vK0}, 0xffff"); a(f"v_mov_b32 v{vK1}, 0xffff0000")
    for dw in range(4):
        a(f"v_cmp_eq_u32 vcc, {2*dw}, v{t1}")
        a(f"v_cndmask_b32 v{DM+dw}, 0, v{vK0}, vcc")
        a(f"v_cmp_eq_u32 vcc, {2*dw + 1}, v{t1}")
        a(f"v_cndmask_b32 v{DM+dw}, v{DM+dw}, v{vK1}, vcc")
    vPW = V()
    a(f"v_and_b32 v{t0}, 15, v{vL}")
    a(f"v_lshlrev_b32 v{t0}, 6, v{t0}")
    a(f"v_lshl_add_u32 v{t0}, v{t2}, 4, v{t0}")
    a(f"s_lshl_b32 s{sT0}, s{sW}, 13")
    a(f"s_add_u32 s{sT0}, s{sT0}, {PB}")
    a(f"v_add_u32 v{vPW}, s{sT0}, v{t0}")
    vPR = V()
    a(f"v_lshlrev_b32 v{vPR}, 5, v0")
    a(f"v_add_u32 v{vPR}, {PB}, v{vPR}")
    ACC = V(32, 4)
    AF = V(12, 4); BF = V(64, 4)
    EW = V(8, 4); TQ = V(4, 4); DG = V(4, 4)

    def mfma_block(w, tiles, touches):
        tq = list(touches)
        started = set()
        seq = []
        for r in range(2):
            q0 = 2*w + r
            dmin = 0
            ips = [ip for ip in range(8) if any(T >= ip for T in tiles)]
            seq += [(r, ip) for ip in ips]
        bid = {}
        def need_d(r): return sorted({T - ip for (rr, ip) in seq if rr == r for T in tiles if T >= ip})
        def read_b(r):
            q0 = 2*w + r
            for d in need_d(r):
                m = 8*d - q0
                bid[(r, d)] = a.ds(f"ds_read_b128 v[{BF+(r*8+d)*4}:{BF+(r*8+d)*4+3}], v{vBq} offset:{(4*m - 2 + UZ)*16}")
        aid = {}
        def read_a(n):
            r, ip = seq[n]
            q = 2*w + r + 8*ip
            aid[n] = a.ds(f"ds_read_b128 v[{AF+(n%3)*4}:{AF+(n%3)*4+3}], v{vA} offset:{64*q}")
        read_a(0); read_b(0); read_a(1)
        for n, (r, ip) in enumerate(seq):
            if n + 2 < len(seq): read_a(n + 2)
            if n == 2: read_b(1)
            last = max([aid[n]] + [bid[(r, T - ip)] for T in tiles if T >= ip])
            a.wait_lg(last)
            q0 = 2*w + r
            for T in sorted(tiles, reverse=True):
                if T < ip: continue
                c = f"v[{ACC+4*T}:{ACC+4*T+3}]" if T in started else "0"; started.add(T)
                a(f"v_mfma_f32_16x16x32_bf16 v[{ACC+4*T}:{ACC+4*T+3}], v[{AF+(n%3)*4}:{AF+(n%3)*4+3}], v[{BF+(r*8+T-ip)*4}:{BF+(r*8+T-ip)*4+3}], {c}")
            if q0 == 0 and ip == 0:
                for T in tiles:
                    a(f"v_mfma_f32_16x16x32_bf16 v[{ACC+4*T}:{ACC+4*T+3}], v[{DG}:{DG+3}], v[{BF+(r*8+T)*4}:{BF+(r*8+T)*4+3}], v[{ACC+4*T}:{ACC+4*T+3}]")
            if tq and n % 2 == 1: touch(tq.pop(0))
        for T in tiles:
            a.ds(f"ds_write_b128 v{vPW}, v[{ACC+4*T}:{ACC+4*T+3}] offset:{T*1024}")
    def finalize(i, tiles):
        regs = [BF, BF+8, BF+16, BF+24]
        full = len(tiles) == 8
        if not full:
            lab = a.newlabel("c_fm")
            a(f"s_mov_b64 exec, 0")
            for w in range(4):
                lo = 0xffffffff if 2*w in tiles else 0
                hi = 0xffffffff if 2*w + 1 in tiles else 0
                a(f"s_cmp_eq_u32 s{sW}, {w}")
                a(f"s_cselect_b32 exec_lo, {lo if lo == 0 else -1}, exec_lo")
                a(f"s_cselect_b32 exec_hi, {hi if hi == 0 else -1}, exec_hi")
            lskip = a.newlabel("c_fskip")
            a(f"s_cbranch_execz {lskip}")
        for k in range(4):
            a.ds(f"ds_read_b128 v[{regs[k]}:{regs[k]+3}], v{vPR} offset:{k*PT_}")
            a.ds(f"ds_read_b128 v[{regs[k]+4}:{regs[k]+7}], v{vPR} offset:{k*PT_ + 16}")
        a(f"s_lshl_b32 s{sT0}, s{sCHN[i]}, 12")
        a(f"s_add_u32 s{sT0}, s{sT0}, {WS_YT}")
        a("s_waitcnt lgkmcnt(0)")
        for e in range(0, 8, 2):
            a(f"v_pk_add_f32 {P(regs[0]+e)}, {P(regs[0]+e)}, {P(regs[1]+e)}")
            a(f"v_pk_add_f32 {P(regs[2]+e)}, {P(regs[2]+e)}, {P(regs[3]+e)}")
        for e in range(0, 8, 2):
            a(f"v_pk_add_f32 {P(regs[0]+e)}, {P(regs[0]+e)}, {P(regs[2]+e)}")
        for e in range(4):
            a(f"v_cvt_pk_bf16_f32 v{TQ+e}, v{regs[0]+2*e}, v{regs[0]+2*e+1}")
        a(f"buffer_store_dwordx4 v[{TQ}:{TQ+3}], v{vT}, s[{sWS}:{sWS+3}], s{sT0} offen" + (" sc1" if "ysc1" in K2X else ""))
        a.vm -= 1
        if not full:
            a.label(lskip)
            a(f"s_mov_b64 exec, -1")
        a("s_nop 1")

    def per_wave(variants):
        lend = a.newlabel("c_pw_end"); labs = [a.newlabel("c_pw") for _ in range(4)]
        lg0, vm0 = a.lg, a.vm
        lgmax, vmmin = lg0, None
        for w in range(4):
            if w < 3:
                a(f"s_cmp_lg_u32 s{sW}, {w}")
                a(f"s_cbranch_scc1 {labs[w]}")
            a.lg, a.vm = lg0, vm0
            variants[w]()
            lgmax = max(lgmax, a.lg); vmmin = a.vm if vmmin is None else min(vmmin, a.vm)
            if w < 3:
                a(f"s_branch {lend}")
                a.label(labs[w])
        a.label(lend)
        a.lg, a.vm = lgmax, vmmin

    for i in range(NCH):
        a.comment(f"------- channel slot {i}")
        a.wait_vm(ld[i])
        ST(f"c{i}_ld")
        d = HR + 8*i
        a(f"v_cmp_ne_u32 vcc, 0, v0")
        for e in range(4): a(f"v_cndmask_b32 v{d+e}, 0, v{d+e}, vcc")
        for e in range(7): a(f"v_alignbit_b32 v{EW+e}, v{d+e+1}, v{d+e}, 16")
        for c in range(8):
            st = c + 1
            if st % 2 == 0: src = d + st//2
            else: src = EW + (st-1)//2
            if (src % 2) != 0:
                for e in range(4): a(f"v_mov_b32 v{TQ+e}, v{src+e}")
                src = TQ
            a.ds(f"ds_write_b128 v{vTW_}, v[{src}:{src+3}] offset:{c*CS_}")
            if src == TQ: a("s_nop 1")
        if FUSED and i == 0:
            poll_all()
            load_u(0)
            for c_ in range(NUP): touch(c_)
            for i_ in range(1, NCH): load_u(i_)
            a.wait_vm(ld[0])
        a.ds(f"ds_write_b128 v{vUW}, v[{UR+4*i}:{UR+4*i+3}]")
        a(f"v_lshlrev_b32 v{t0}, 16, v{DR+i}")
        a(f"v_or_b32 v{t0}, v{t0}, v{DR+i}")
        for e in range(4): a(f"v_and_b32 v{DG+e}, v{DM+e}, v{t0}")
        if i == 0 and not FUSED: wof_job()
        csync()
        ST(f"c{i}_built")
        if i == 1:
            lw3 = a.newlabel("c_wj3")
            a(f"s_cmp_ge_u32 s2, 192")
            a(f"s_cbranch_scc1 {lw3}")
            a(f"v_lshrrev_b32 v{t0}, 4, v{vL}")
            a(f"v_and_b32 v{t2}, 15, v{vL}")
            a(f"v_lshrrev_b32 v{t1}, 2, v{t2}")
            a(f"v_lshl_add_u32 v{t0}, v{t0}, 2, v{t1}")
            a(f"v_mul_u32_u24 v{t0}, 160, v{t0}")
            a(f"v_and_b32 v{t1}, 3, v{t2}")
            a(f"v_lshl_add_u32 v{t0}, v{t1}, 3, v{t0}")
            a(f"v_lshlrev_b32 v{t2}, 4, v{vL}")
            for r in range(2):
                l2 = None
                if r == 1:
                    l2 = a.newlabel("c_wj4")
                    a(f"s_cmp_lg_u32 s{sW}, 0")
                    a(f"s_cbranch_scc1 {l2}")
                if r == 0: a(f"s_lshl_b32 s{sT0}, s{sW}, 5")
                else: a(f"s_mov_b32 s{sT0}, 128")
                a(f"s_add_u32 s{sT1}, s{sT0}, {WJ}")
                a(f"v_add_u32 v{t1}, s{sT1}, v{t0}")
                a(f"ds_read_b64_tr_b16 v[{TQ}:{TQ+1}], v{t1}")
                a(f"ds_read_b64_tr_b16 v[{TQ+2}:{TQ+3}], v{t1} offset:2560")
                a(f"s_mul_i32 s{sT1}, s2, 5120")
                a(f"s_lshl_b32 s{sT0}, s{sT0}, 5")
                a(f"s_add_u32 s{sT1}, s{sT1}, s{sT0}")
                a(f"s_add_u32 s{sT1}, s{sT1}, {WS_WOF}")
                a("s_waitcnt lgkmcnt(0)")
                a(f"buffer_store_dwordx4 v[{TQ}:{TQ+3}], v{t2}, s[{sWS}:{sWS+3}], s{sT1} offen" + (" sc1" if "ysc1" in K2X else ""))
                a("s_nop 1")
                a.vm -= 1; a.lg -= 2
                if l2: a.label(l2)
            a.label(lw3)
        tch = list(range(NUP, 8)) if i == 0 else []
        def do_channel(tiles):
            per_wave([(lambda w=w: mfma_block(w, tiles, tch)) for w in range(4)])
            if i < 2: ST(f"c{i}_mfma")
            if FULL and i == 1: a("s_waitcnt vmcnt(0)")
            csync()
            if FULL and i == 1:
                a(f"s_lshl_b32 s{sT0}, s2, 3")
                a(f"s_add_u32 s{sT0}, s{sT0}, {WS_F4}")
                a(f"v_mov_b32 v{FP}, s{sTAGF}"); a(f"v_mov_b32 v{FP+1}, s{sTAGF+1}")
                a(f"v_mov_b32 v{t0}, 0")
                a(f"s_cmp_eq_u32 s{sW}, 0")
                a(f"s_cselect_b64 exec, 1, 0")
                a(f"s_cmp_lt_u32 s2, 192")
                a(f"s_cselect_b64 exec, exec, 0")
                a(f"buffer_store_dwordx2 {P(FP)}, v{t0}, s[{sWS}:{sWS+3}], s{sT0} offen sc1")
                a.vm -= 1
                a(f"s_mov_b64 exec, -1")
            finalize(i, tiles)
        if i < 2:
            do_channel(list(range(8)))
        else:
            labB = a.newlabel("c_halfB"); labE = a.newlabel("c_halfE")
            a(f"s_bitcmp1_b32 s2, 0")
            a(f"s_cbranch_scc1 {labB}")
            lg0, vm0, c0_ = a.lg, a.vm, cst[0]
            do_channel([2, 6, 7])
            a(f"s_branch {labE}")
            a.label(labB); a.lg, a.vm, cst[0] = lg0, vm0, c0_
            do_channel([0, 1, 3, 4, 5])
            a.label(labE)
        ST(f"c{i}_done")
    ST.dump(sWS, sW, t0, t1, WS_DBG + 0x400000)

def gen_k2(name="k2_kernel", prof=False):
    a = Asm()
    a.raw(f".globl {name}\n.p2align 8\n.type {name},@function\n{name}:")
    a(f"s_cmp_ge_u32 s2, 512")
    a(f"s_cbranch_scc1 {name}_end")
    a(f"s_cmp_lt_u32 s2, 256")
    a(f"s_cbranch_scc1 {name}_conv" if "noconv" not in K2X else f"s_cbranch_scc1 {name}_end")
    ST = Stamps(a, enabled=prof); ST("g_start")
    V = Alloc(1, 256, "v")
    gen_gemm(a, V, ST, prof)
    a("s_endpgm")
    hi = V.hi
    a.label(f"{name}_conv")
    a.vm = 0; a.lg = 0
    ST2 = Stamps(a, enabled=prof); ST2("c_start")
    V2 = Alloc(1, 256, "v")
    gen_conv(a, V2, ST2, prof, name)
    a.label(f"{name}_end")
    a("s_endpgm")
    gen_k2.stamp_names = {"k2g": ST.names, "k2c": ST2.names}
    return a.finish(), max(hi, V2.hi)


def gen_k12(name="k12_kernel", prof=False):
    import k1, k3, k3f
    P8 = FULL and "p4" not in os.environ.get("K3X", "")
    a, hi1, sW1 = k1.gen_k1(name=name, prof=prof, fused=True)
    if P8: a("v_mov_b32 v253, v0")
    a(f"s_cmp_ge_u32 s{sW1}, 4")
    a(f"s_cbranch_scc1 {name}_conv")
    a.vm = 0; a.lg = 0
    ST = Stamps(a, enabled=prof); ST("g_start")
    V = Alloc(1, 253, "v")
    gen_gemm(a, V, ST, prof)
    hi3 = 0
    def publish_f2(srd, sWv):
        a(f"s_lshl_b32 s58, s2, 3")
        a(f"s_add_u32 s58, s58, {WS_F2}")
        a(f"v_mov_b32 v250, s{sTAGF}"); a(f"v_mov_b32 v251, s{sTAGF+1}")
        a(f"v_mov_b32 v252, 0")
        a(f"s_cmp_eq_u32 s{sWv}, 0")
        a(f"s_cselect_b64 exec, 1, 0")
        a(f"buffer_store_dwordx2 v[250:251], v252, s[{srd}:{srd+3}], s58 offen sc1")
        a(f"s_mov_b64 exec, -1")
    if FULL and not P8 and "split" in os.environ.get("K3X", ""):
        a("s_waitcnt vmcnt(0)")
        gsync(a, 0, gen_gemm.gst, 1, 2)
        a(f"s_lshl_b32 s58, s32, 6")
        a(f"s_lshl_b32 s59, s33, 3")
        a(f"s_add_u32 s58, s58, s59")
        a(f"s_add_u32 s58, s58, {WS_F5}")
        a(f"v_mov_b32 v250, s{sTAGF}"); a(f"v_mov_b32 v251, s{sTAGF+1}")
        a(f"v_mov_b32 v252, 0")
        a(f"s_cmp_eq_u32 s34, 0")
        a(f"s_cselect_b64 exec, 1, 0")
        a(f"buffer_store_dwordx2 v[250:251], v252, s[8:11], s58 offen sc1")
        a(f"s_mov_b64 exec, -1")
        a.vm = 0; a.lg = 0
        hi3 = k3.gen_k3(prof=prof, fa=a, split={'gsync': lambda: gsync(a, 0, gen_gemm.gst, 251, 252)})
    elif FULL and not P8 and "nomid" not in os.environ.get("K3X", ""):
        gsync(a, 0, gen_gemm.gst, 1, 2)
        a.vm = 0; a.lg = 0
        def mid(srd, sWv):
            a("s_barrier")
            publish_f2(srd, sWv)
        hi3 = k3.gen_k3(prof=prof, fa=a, mid=mid)
    elif FULL:
        a("s_waitcnt vmcnt(0) lgkmcnt(0)")
        a("s_barrier")
        publish_f2(8, 34)
        a.vm = 0; a.lg = 0
        if P8: a(f"s_branch {name}_p3")
        else: hi3 = k3.gen_k3(prof=prof, fa=a)
    if not P8: a("s_endpgm")
    hi = V.hi
    a.label(f"{name}_conv")
    a.vm = 0; a.lg = 0
    ST2 = Stamps(a, enabled=prof); ST2("c_start")
    V2 = Alloc(1, 253, "v")
    gen_conv(a, V2, ST2, prof, name)
    if FULL and "split" in os.environ.get("K3X", ""):
        a("s_waitcnt vmcnt(0) lgkmcnt(0)")
        gsync(a, 1, gen_conv.cst, 251, 252)
        publish_f2(8, 34)
        if "split2" not in os.environ.get("K3X", ""): a("s_barrier")
    elif FULL:
        a("s_waitcnt vmcnt(0) lgkmcnt(0)")
        a("s_barrier")
    if P8:
        a.label(f"{name}_p3")
        a.vm = 0; a.lg = 0
        hi3 = k3f.gen_phase3(a, prof, poll_flags_n, poll_all_flags, sTAGF)
    a.label(f"{name}_end")
    a("s_endpgm")
    gen_k12.stamp_names = {"k1": k1.gen_k1.stamp_names, "k2g": ST.names, "k2c": ST2.names}
    if FULL: gen_k12.stamp_names["k3"] = k3f.gen_phase3.stamp_names if P8 else k3.gen_k3.stamp_names
    return a.finish(), max(hi1, hi, V2.hi, hi3, 254 if FULL else 0)
```
